```python
import torch

def _softmax(x, axis=-1):
    return torch.softmax(x, dim=axis)
def _gelu(x):
    return torch.nn.functional.gelu(x, approximate="tanh")
def _silu(x):
    return torch.nn.functional.silu(x)
def _sigmoid(x):
    return torch.sigmoid(x)
def _layernorm(x, axis=-1, eps=1e-5):
    m = x.mean(dim=axis, keepdim=True)
    v = x.var(dim=axis, keepdim=True, unbiased=False)
    return (x - m) / torch.sqrt(v + eps)
def _scatter_add(tgt, idx, src, axis=0):
    return tgt.clone().index_add_(axis, idx, src)
def _segment_sum(src, seg, n):
    out = torch.zeros((n,) + src.shape[1:], dtype=src.dtype)
    return out.index_add_(0, seg, src)
def _pad(x, pw):
    flat = tuple(v for pair in reversed(pw) for v in pair)
    return torch.nn.functional.pad(x, flat)

kernel_name = 'recurrent_scan__ssm_conv_h3__dense_activation_relu__prompt'

def setup_inputs():

    _w = (lambda a: (lambda t: t.to(torch.bfloat16) if t.is_floating_point() else t)(torch.as_tensor(a)))
    def _A_setup():
        B, S, D = 1, 2048, 640
        ks = 4
        return {
            "q": _w((lambda *s: torch.randn(*s, dtype=torch.bfloat16) * 0.05)(B, S, D)),
            "k": _w((lambda *s: torch.randn(*s, dtype=torch.bfloat16) * 0.2)(B, S, D)),
            "v": _w((lambda *s: torch.randn(*s, dtype=torch.bfloat16) * 0.2)(B, S, D)),
            "shift_k": _w((lambda *s: torch.randn(*s, dtype=torch.bfloat16) * 0.2)(D, ks) * 0.5),
            "ssm_k": _w((lambda *s: torch.randn(*s, dtype=torch.bfloat16) * 0.2)(D, S) * (1.0 / S ** 0.5)),
            "ssm_D": _w((lambda *s: torch.randn(*s, dtype=torch.bfloat16) * 0.2)(D)),
        }
    _A_in = _A_setup()

    def _B_setup():
        B, S, D, Dff = 1, 2048, 640, 1728
        return {
            "x": _w((lambda *s: torch.randn(*s, dtype=torch.bfloat16) * 0.05)(B, S, D)),
            "w1": _w((lambda *s: torch.randn(*s, dtype=torch.bfloat16) * 0.1)(D, Dff)),
            "w2": _w((lambda *s: torch.randn(*s, dtype=torch.bfloat16) * 0.1)(Dff, D)),
        }
    _B_in = _B_setup()

    return {
        "A_q": _A_in["q"],
        "A_k": _A_in["k"],
        "A_v": _A_in["v"],
        "A_shift_k": _A_in["shift_k"],
        "A_ssm_k": _A_in["ssm_k"],
        "A_ssm_D": _A_in["ssm_D"],
        "B_x": _B_in["x"],
        "B_w1": _B_in["w1"],
        "B_w2": _B_in["w2"],
    }

def reference(A_q, A_k, A_v, A_shift_k, A_ssm_k, A_ssm_D, B_x, B_w1, B_w2):
    def _A_ref(q, k, v, shift_k, ssm_k, ssm_D):
        B, S, D = q.shape
        ks = shift_k.shape[-1]
        k_pad = _pad(k, ((0, 0), (ks - 1, 0), (0, 0)))
        k_shift = torch.zeros_like(k)
        for t in range(ks):
            k_shift = k_shift + k_pad[:, t:t + S, :] * shift_k[:, ks - 1 - t][None, None, :]
        kv = k_shift * v
        L = 2 * S
        kv_pad = _pad(kv, ((0, 0), (0, S), (0, 0)))
        kf_pad = _pad(ssm_k, ((0, 0), (0, S)))
        kv_f = (lambda x, axes=(-2,-1): torch.fft.rfft2(x.float(), dim=axes))(kv_pad[:, None, :, :], axes=(1, 2))
        kf_f = (lambda x, axes=(-2,-1): torch.fft.rfft2(x.float(), dim=axes))(kf_pad[:, None, :], axes=(1, 2))
        kf_f = (lambda x, *d: x.permute(*d))(kf_f, 1, 2, 0)
        y_f = kv_f * kf_f[None, :, :, :]
        y = (lambda x, s, axes=(-2,-1): torch.fft.irfft2(x, s=s, dim=axes).to(torch.bfloat16))(y_f, (1, L), axes=(1, 2))[:, 0, :S, :]
        y = y + kv * ssm_D[None, None, :]
        return q * y

    def _B_ref(x, w1, w2):
        h = torch.einsum("bsd,df->bsf", x, w1)
        zero = torch.zeros_like(h)
        h = torch.maximum(h, zero)
        return torch.einsum("bsf,fd->bsd", h, w2)

    x = A_q
    xn = _layernorm(x, axis=-1)
    s = _A_ref(xn, A_k, A_v, A_shift_k, A_ssm_k, A_ssm_D)
    g = _silu(_B_ref(xn, B_w1, B_w2))
    return x + s * g
```

```python
import re

TRANS = ("v_exp_f32", "v_log_f32", "v_rcp_f32", "v_rsq_f32", "v_sqrt_f32", "v_sin_f32", "v_cos_f32")

def parse_regs(tok):
    tok = tok.strip()
    tok = tok.lstrip("-")
    m = re.match(r"^abs\((.*)\)$", tok)
    if m: tok = m.group(1)
    tok = tok.strip("|")
    m = re.match(r"^([vas])\[(\d+):(\d+)\]$", tok)
    if m:
        return [(m.group(1), i) for i in range(int(m.group(2)), int(m.group(3)) + 1)]
    m = re.match(r"^([vas])(\d+)$", tok)
    if m:
        return [(m.group(1), int(m.group(2)))]
    if tok == "vcc": return [("s", 106), ("s", 107)]
    if tok == "vcc_lo": return [("s", 106)]
    if tok == "vcc_hi": return [("s", 107)]
    if tok == "m0": return [("s", 124)]
    if tok == "exec": return [("s", 126), ("s", 127)]
    return []

def split_ops(s):
    ops, depth, cur = [], 0, ""
    for ch in s:
        if ch in "[(": depth += 1
        if ch in "])": depth -= 1
        if ch == "," and depth == 0:
            ops.append(cur.strip()); cur = ""
        else:
            cur += ch
    if cur.strip(): ops.append(cur.strip())
    return ops

class Ins:
    def __init__(self, text):
        self.text = text
        t = text.split(";")[0].strip()
        self.is_label = t.endswith(":")
        self.is_dir = t.startswith(".") or t == ""
        self.mn = ""
        self.dst, self.src = [], []
        self.kind = "other"
        if self.is_label or self.is_dir: return
        parts = t.split(None, 1)
        self.mn = mn = parts[0]
        rest = parts[1] if len(parts) > 1 else ""
        ops = split_ops(rest)
        mods = ""
        if ops:
            sp = ops[-1].split(None, 1)
            ops[-1] = sp[0]
            mods = sp[1] if len(sp) > 1 else ""
        self.mods = mods
        self.ops = ops
        R = [parse_regs(o) for o in ops]
        flat = lambda l: [x for y in l for x in y]
        if mn.startswith("v_mfma"):
            self.kind = "mfma"
            self.dst = R[0]; self.srcA = R[1]; self.srcB = R[2]; self.srcC = R[3]
            self.src = flat(R[1:])
            self.passes = 8 if "32x32x16" in mn else 4
        elif mn.startswith("v_"):
            self.kind = "valu"
            self.dpp = ("quad_perm" in mods or "row_" in mods or "wave_" in mods or mn.endswith("_dpp"))
            if mn.startswith("v_cmp"):
                self.dst = R[0]; self.src = flat(R[1:])
                if mn.startswith("v_cmpx"): self.dst = self.dst + [("s",126),("s",127)]
            elif mn.startswith(("v_add_co", "v_sub_co", "v_addc_co", "v_subb_co", "v_subrev_co")):
                self.dst = R[0] + R[1]; self.src = flat(R[2:])
            elif mn.startswith("v_permlane") and "swap" in mn:
                self.dst = R[0] + R[1]; self.src = R[0] + R[1]
            else:
                self.dst = R[0]; self.src = flat(R[1:])
                if mn.startswith(("v_fmac", "v_pk_fmac", "v_dot2c", "v_writelane")) or self.dpp:
                    self.src = self.src + R[0]
        elif mn.startswith("buffer_") or mn.startswith("global_"):
            self.kind = "vmem"
            self.lds = bool(re.search(r"\blds\b", mods)) or "_lds_" in mn
            if "load" in mn and not self.lds:
                self.dst = R[0]; self.src = flat(R[1:])
            elif "atomic" in mn:
                self.src = flat(R)
                if "sc0" in mods: self.dst = R[0]
            else:
                self.src = flat(R)
            if "store" in mn:
                self.data = R[0] if mn.startswith("buffer_") else R[1]
        elif mn.startswith("ds_"):
            self.kind = "ds"
            if "read" in mn or "permute" in mn or "swizzle" in mn or "rtn" in mn:
                self.dst = R[0]; self.src = flat(R[1:])
            else:
                self.src = flat(R)
        elif mn.startswith("s_"):
            self.kind = "salu"
            if mn.startswith(("s_cmp", "s_cbranch", "s_branch", "s_waitcnt", "s_nop", "s_barrier", "s_endpgm", "s_setprio", "s_sleep", "s_bitcmp")):
                self.src = flat(R)
            else:
                self.dst = R[0] if R else []; self.src = flat(R[1:])
                if "saveexec" in mn: self.dst = self.dst + [("s",126),("s",127)]
    def states(self):
        if self.is_label or self.is_dir: return 0
        if self.mn == "s_nop": return int(self.ops[0], 0) + 1
        return 1

def need(prod, cons):
    n = 0
    pd, cs, cd = set(prod.dst), set(cons.src), set(cons.dst)
    pv = {r for r in pd if r[0] in "va"}
    ps = {r for r in pd if r[0] == "s"}
    if prod.kind == "valu":
        if cons.kind == "mfma" and pv & cs: n = max(n, 2)
        if cons.kind == "mfma" and ("s",126) in ps: n = max(n, 4)
        if cons.kind == "valu":
            if prod.mn.startswith(TRANS) and not cons.mn.startswith(TRANS) and pv & cs: n = max(n, 1)
            if prod.mn.startswith(TRANS) and pv & cs: n = max(n, 1)
            if cons.dpp and pv & cs: n = max(n, 2)
            if cons.dpp and ("s",126) in ps: n = max(n, 5)
            if cons.mn.startswith("v_permlane") and pv & cs: n = max(n, 2)
            if cons.mn.startswith(("v_readlane", "v_readfirstlane")) and pv & cs: n = max(n, 1)
            if cons.mn.startswith(("v_readlane", "v_writelane")) and ps & cs: n = max(n, 4)
            if ps & cs: n = max(n, 2)
            if cons.mn.startswith(("v_readlane", "v_readfirstlane", "v_writelane", "v_permlane")) and ("s",126) in ps: n = max(n, 4)
            if ("op_sel" in prod.mods and not prod.mn.startswith("v_pk_")) or "sdwa" in prod.mn or "dst_sel" in prod.mods:
                if pv & (cs | cd): n = max(n, 1)
        if cons.kind == "vmem" and ps & cs: n = max(n, 5)
        if cons.kind == "salu" and ps & cs: n = max(n, 1)
    if prod.kind == "mfma":
        p = prod.passes
        D = set(prod.dst)
        if cons.kind == "mfma":
            if D & (set(cons.srcA) | set(cons.srcB)): n = max(n, {4: 8, 8: 12}[p])
            if D & set(cons.srcC):
                if not (cons.srcC == prod.dst and cons.passes == p): n = max(n, {4: 6, 8: 10}[p])
            elif D & set(cons.dst):
                n = max(n, {4: 8, 8: 12}[p])
        elif cons.kind in ("valu", "vmem", "ds"):
            if D & (cs | cd): n = max(n, {4: 8, 8: 12}[p])
            if cons.kind == "valu" and set(prod.srcC) & cd: n = max(n, {4: 3, 8: 7}[p])
    if prod.kind == "salu":
        if ("s",124) in ps and cons.kind == "vmem" and cons.lds: n = max(n, 1)
        if ("s",124) in ps and cons.kind == "ds" and "addtid" in cons.mn: n = max(n, 1)
    if prod.kind == "vmem" and "store" in prod.mn and ("x4" in prod.mn or "x3" in prod.mn):
        if set(prod.data) & cd: n = max(n, 2 if cons.kind == "valu" else 1)
    return n

def fix_hazards(lines):
    out = []
    for ln in lines:
        for sub in ln.split("\n"):
            ins = Ins(sub)
            if not (ins.is_label or ins.is_dir):
                dist = 0; req = 0
                for prev in reversed(out):
                    if prev.is_label or prev.is_dir: continue
                    k = need(prev, ins)
                    if k - dist > req: req = k - dist
                    dist += prev.states()
                    if dist >= 12: break
                while req > 0:
                    k = min(req, 16)
                    out.append(Ins(f"    s_nop {k-1}"))
                    req -= k
            out.append(ins)
    return [i.text for i in out]

class Kern:
    def __init__(self, name):
        self.name = name
        self.lines = []
        self.maxv = -1; self.maxa = -1
    def e(self, s):
        for sub in s.strip("\n").split("\n"):
            sub = sub.strip()
            if not sub: continue
            if sub.endswith(":") : self.lines.append(sub)
            else: self.lines.append("    " + sub)
    def c(self, s):
        self.lines.append("    ; " + s)
    def body(self):
        fixed = fix_hazards(self.lines)
        for l in fixed:
            t = l.split(";")[0]
            for m in re.finditer(r"\bv\[(\d+):(\d+)\]|\bv(\d+)\b", t):
                self.maxv = max(self.maxv, int(m.group(2) or m.group(3)))
            for m in re.finditer(r"\ba\[(\d+):(\d+)\]|\ba(\d+)\b", t):
                self.maxa = max(self.maxa, int(m.group(2) or m.group(3)))
        hdr = f".globl {self.name}\n.p2align 8\n.type {self.name},@function\n{self.name}:"
        return hdr + "\n" + "\n".join(fixed) + "\n"
    def desc(self, min_alloc=0):
        acc = max(4, (self.maxv + 1 + 3) // 4 * 4)
        nfv = acc + self.maxa + 1 if self.maxa >= 0 else self.maxv + 1
        nfv = max(nfv, min_alloc)
        if self.maxa < 0 and nfv > acc: acc = min(256, (nfv + 3) // 4 * 4)
        assert acc <= 256 and nfv <= 512, (acc, nfv)
        return f""".p2align 6
.amdhsa_kernel {self.name}
  .amdhsa_next_free_vgpr {nfv}
  .amdhsa_next_free_sgpr 102
  .amdhsa_accum_offset {acc}
  .amdhsa_group_segment_fixed_size 0
  .amdhsa_kernarg_size 96
  .amdhsa_user_sgpr_count 2
  .amdhsa_user_sgpr_kernarg_segment_ptr 1
  .amdhsa_system_sgpr_workgroup_id_x 1
.end_amdhsa_kernel
"""

def vr(b, n=1):
    return f"v{b}" if n == 1 else f"v[{b}:{b+n-1}]"
def ar(b, n=1):
    return f"a{b}" if n == 1 else f"a[{b}:{b+n-1}]"
def sr(b, n=1):
    return f"s{b}" if n == 1 else f"s[{b}:{b+n-1}]"
```

```python
from common import *

def emit_stats(k, s_row0):
    srd(k, 40, P_Q, NB_X)
    srd(k, 44, P_WS, 16384, ST_OFF)
    k.e(f"s_mul_i32 s48, s{s_row0}, 1280")
    k.e("v_lshrrev_b32 v1, 3, v0")
    k.e("v_mul_u32_u24 v2, 1280, v1")
    k.e("v_and_b32 v3, 7, v0")
    k.e("v_lshl_add_u32 v2, v3, 4, v2")
    RAW = 8
    UNP = 48
    for i in range(10):
        k.e(f"buffer_load_dwordx4 v[{RAW+4*i}:{RAW+4*i+3}], v2, s[40:43], s48 offen offset:{128*i}")
    ACC = 4
    for i in range(10):
        k.e(f"s_waitcnt vmcnt({9-i})")
        for j in range(4):
            unpack(k, UNP + 8*i + 2*j, UNP + 8*i + 2*j + 1, RAW + 4*i + j)
        for j in range(4):
            u = UNP + 8*i + 2*j
            a = ACC + 2 * (j & 1)
            if i == 0 and j < 2:
                k.e(f"v_pk_add_f32 v[{a}:{a+1}], v[{u}:{u+1}], v[{u+4}:{u+5}]")
            elif i == 0:
                pass
            else:
                k.e(f"v_pk_add_f32 v[{a}:{a+1}], v[{a}:{a+1}], v[{u}:{u+1}]")
    def reduce8(dst):
        k.e("v_pk_add_f32 v[4:5], v[4:5], v[6:7]")
        k.e(f"v_add_f32 v{dst}, v4, v5")
        k.e(f"v_add_f32_dpp v{dst}, v{dst}, v{dst} quad_perm:[1,0,3,2] row_mask:0xf bank_mask:0xf")
        k.e(f"v_add_f32_dpp v{dst}, v{dst}, v{dst} quad_perm:[2,3,0,1] row_mask:0xf bank_mask:0xf")
        k.e(f"v_add_f32_dpp v{dst}, v{dst}, v{dst} row_half_mirror row_mask:0xf bank_mask:0xf")
    reduce8(8)
    k.e(f"v_mul_f32 v8, {1.0/D!r}, v8")
    k.e("v_sub_f32 v10, 0, v8")
    k.e("v_sub_f32 v11, 0, v8")
    for i in range(40):
        u = UNP + 2*i
        k.e(f"v_pk_add_f32 v[{u}:{u+1}], v[{u}:{u+1}], v[10:11]")
    for i in range(40):
        u = UNP + 2*i
        a = ACC + 2 * (i & 1)
        if i < 2:
            k.e(f"v_pk_mul_f32 v[{a}:{a+1}], v[{u}:{u+1}], v[{u}:{u+1}]")
        else:
            k.e(f"v_pk_fma_f32 v[{a}:{a+1}], v[{u}:{u+1}], v[{u}:{u+1}], v[{a}:{a+1}]")
    reduce8(9)
    k.e(f"v_mul_f32 v9, {1.0/D!r}, v9")
    k.e("v_cvt_pk_bf16_f32 v12, v8, v9")
    k.e("v_lshlrev_b32 v14, 16, v12")
    k.e("v_and_b32 v13, 0xffff0000, v12")
    k.e("v_add_f32 v13, 0x3727c5ac, v13")
    k.e("v_cvt_pk_bf16_f32 v13, v13, v13")
    k.e("v_and_b32 v13, 0xffff0000, v13")
    k.e("v_sqrt_f32 v13, v13")
    k.e("v_cvt_pk_bf16_f32 v13, v13, v13")
    k.e("v_and_b32 v13, 0xffff0000, v13")
    k.e("v_rcp_f32 v15, v13")
    k.e("v_lshlrev_b32 v1, 3, v1")
    k.e(f"s_lshl_b32 s48, s{s_row0}, 3")
    k.e("v_cmp_eq_u32 vcc, 0, v3")
    k.e("s_and_saveexec_b64 s[50:51], vcc")
    k.e("buffer_store_dwordx2 v[14:15], v1, s[44:47], s48 offen")
    k.e("s_mov_b64 exec, s[50:51]")

def emit_prep(k, s_unit):
    srd(k, 40, P_K, NB_X)
    srd(k, 44, P_V, NB_X)
    srd(k, 52, P_SH, D * 8)
    srd(k, 56, P_WS, D * S * 2, UR_OFF)
    k.e(f"s_mul_i32 s48, s{s_unit}, 6554")
    k.e("s_lshr_b32 s48, s48, 16")
    k.e("s_mul_i32 s49, s48, 10")
    k.e(f"s_sub_u32 s49, s{s_unit}, s49")
    k.e("v_and_b32 v1, 7, v0")
    k.e("v_lshrrev_b32 v2, 3, v0")
    k.e("v_lshlrev_b32 v3, 6, v1")
    k.e("s_lshl_b32 s50, s49, 9")
    TR = 8
    for i in range(4):
        k.e(f"buffer_load_dwordx4 v[{TR+4*i}:{TR+4*i+3}], v3, s[52:55], s50 offen offset:{16*i}")
    k.e("s_mul_i32 s51, s48, 81920")
    k.e("s_lshl_b32 s60, s49, 7")
    k.e("s_add_u32 s51, s51, s60")
    k.e("v_mul_u32_u24 v4, 10240, v2")
    k.e("v_lshl_add_u32 v4, v1, 4, v4")
    k.e("v_add_u32 v4, s51, v4")
    k.e("v_subrev_u32 v5, 3840, v4")
    k.e("s_movk_i32 s61, 5120")
    KR = 24
    VR = 68
    for j in range(3):
        k.e(f"buffer_load_dwordx4 v[{KR+4*j}:{KR+4*j+3}], v5, s[40:43], 0 offen offset:{1280*j}")
    for j in range(8):
        so = "0" if j < 4 else "s61"
        k.e(f"buffer_load_dwordx4 v[{KR+12+4*j}:{KR+12+4*j+3}], v4, s[40:43], {so} offen offset:{1280*(j%4)}")
        k.e(f"buffer_load_dwordx4 v[{VR+4*j}:{VR+4*j+3}], v4, s[44:47], {so} offen offset:{1280*(j%4)}")
    TP = 100
    k.e("s_waitcnt vmcnt(19)")
    for c in range(8):
        unpack(k, TP + 0*8 + c, TP + 1*8 + c, TR + 2*c)
        unpack(k, TP + 2*8 + c, TP + 3*8 + c, TR + 2*c + 1)
    KW = 132
    VU = 164
    KV = 172
    OUT = 188
    def unpack_row(dst, src):
        for i in range(4):
            unpack(k, dst + 2*i, dst + 2*i + 1, src + i)
    k.e("s_waitcnt vmcnt(16)")
    for j in range(3):
        unpack_row(KW + 8*j, KR + 4*j)
    for r in range(8):
        k.e(f"s_waitcnt vmcnt({14-2*r})")
        unpack_row(KW + 8*((r+3) % 4), KR + 12 + 4*r)
        unpack_row(VU, VR + 4*r)
        kv = KV + 8*(r & 1)
        for i in range(4):
            d = kv + 2*i
            for j in (3, 2, 1, 0):
                w = KW + 8*((r + 3 - j) % 4) + 2*i
                t = TP + 8*j + 2*i
                if j == 3:
                    k.e(f"v_pk_mul_f32 v[{d}:{d+1}], v[{w}:{w+1}], v[{t}:{t+1}]")
                else:
                    k.e(f"v_pk_fma_f32 v[{d}:{d+1}], v[{w}:{w+1}], v[{t}:{t+1}], v[{d}:{d+1}]")
        for i in range(4):
            d = kv + 2*i
            k.e(f"v_pk_mul_f32 v[{d}:{d+1}], v[{d}:{d+1}], v[{VU+2*i}:{VU+2*i+1}]")
        if r & 1:
            for c in range(8):
                k.e(f"v_cvt_pk_bf16_f32 v{OUT+4*c+3-r//2}, v{KV+8+c}, v{KV+c}")
    k.e("v_lshlrev_b32 v3, 15, v1")
    k.e("v_lshlrev_b32 v6, 4, v2")
    k.e("v_sub_u32 v3, v3, v6")
    k.e("s_lshl_b32 s60, s48, 7")
    k.e("s_sub_u32 s60, 4080, s60")
    k.e("v_add_u32 v3, s60, v3")
    k.e("s_lshl_b32 s60, s49, 18")
    for c in range(8):
        k.e(f"buffer_store_dwordx4 v[{OUT+4*c}:{OUT+4*c+3}], v3, s[56:59], s60 offen")
        if c < 7: k.e("s_add_u32 s60, s60, 4096")

def emit_relayout(k, s_unit, s_lds):
    srd(k, 40, P_W2, NB_W)
    srd(k, 44, P_WS, NB_W, W2_OFF)
    k.e(f"s_lshr_b32 s48, s{s_unit}, 2")
    k.e(f"s_and_b32 s49, s{s_unit}, 3")
    k.e("s_mul_i32 s50, s48, 40960")
    k.e("s_mul_i32 s51, s49, 320")
    k.e("s_add_u32 s50, s50, s51")
    for i in range(10):
        k.e(f"v_add_u32 v1, {64*i}, v0")
        k.e("v_mul_u32_u24 v2, 52429, v1")
        k.e("v_lshrrev_b32 v2, 20, v2")
        k.e("v_mul_u32_u24 v2, 960, v2")
        k.e("v_lshl_add_u32 v2, v1, 4, v2")
        k.e(f"s_add_u32 m0, s{s_lds}, {1024*i}")
        k.e("buffer_load_dwordx4 v2, s[40:43], s50 offen lds")
    k.e("v_lshrrev_b32 v3, 2, v0")
    k.e("v_mul_u32_u24 v3, 320, v3")
    k.e("v_and_b32 v4, 3, v0")
    k.e("v_lshl_add_u32 v3, v4, 3, v3")
    k.e(f"v_add_u32 v3, s{s_lds}, v3")
    k.e("v_lshlrev_b32 v5, 4, v0")
    k.e("s_mul_i32 s51, s49, 108")
    k.e("s_add_u32 s51, s51, s48")
    k.e("s_mul_i32 s51, s51, 5120")
    k.e(f"s_add_u32 s52, s51, {54*5120}")
    k.e("s_add_u32 s53, s51, 4096")
    k.e("s_add_u32 s54, s52, 4096")
    k.e("s_waitcnt vmcnt(0)")
    for b in range(10):
        r = 8 + 4*b
        k.e(f"ds_read_b64_tr_b16 v[{r}:{r+1}], v3 offset:{32*b}")
        k.e(f"ds_read_b64_tr_b16 v[{r+2}:{r+3}], v3 offset:{32*b+5120}")
    for b in range(10):
        r = 8 + 4*b
        k.e(f"s_waitcnt lgkmcnt({min(15,18-2*b)})")
        db = b % 5
        so = (51 if b < 5 else 52) if db < 4 else (53 if b < 5 else 54)
        k.e(f"buffer_store_dwordx4 v[{r}:{r+3}], v5, s[44:47], s{so} offen offset:{1024*(db%4)}")

def aux_kernel():
    k = Kern("aux_kernel")
    k.e("s_cmp_ge_u32 s2, 256")
    k.e("s_cbranch_scc1 L_aux_end")
    load_ptrs(k)
    k.e("v_lshrrev_b32 v1, 6, v0")
    k.e("v_readfirstlane_b32 s3, v1")
    k.e("v_and_b32 v0, 63, v0")
    k.e("s_waitcnt lgkmcnt(0)")
    k.e("s_cmp_eq_u32 s3, 1")
    k.e("s_cbranch_scc1 L_aux_prep1")
    k.e("s_cmp_eq_u32 s3, 2")
    k.e("s_cbranch_scc1 L_aux_rel")
    k.e("s_cmp_eq_u32 s3, 3")
    k.e("s_cbranch_scc1 L_aux_prep2")
    k.e("s_lshl_b32 s4, s2, 3")
    emit_stats(k, 4)
    k.e("s_endpgm")
    k.e("L_aux_prep2:")
    k.e("s_cmp_ge_u32 s2, 64")
    k.e("s_cbranch_scc1 L_aux_end")
    k.e("s_add_u32 s2, s2, 256")
    k.e("L_aux_prep1:")
    emit_prep(k, 2)
    k.e("s_endpgm")
    k.e("L_aux_rel:")
    k.e("s_cmp_ge_u32 s2, 216")
    k.e("s_cbranch_scc1 L_aux_end")
    k.e("s_mov_b32 s4, 0")
    emit_relayout(k, 2, 4)
    k.e("L_aux_end:")
    k.e("s_endpgm")
    return k
```

```python
from asmlib import *

S, D, F = 2048, 640, 1728
NB_X = S * D * 2
NB_W = D * F * 2
H_OFF  = 0x0000000
W2_OFF = 0x0700000
UR_OFF = 0x0A00000
YT_OFF = 0x0D00000
ST_OFF = 0x1000000
FL_OFF = 0x1010000
WS_USED = 0x1100000
NT = 54

P_Q, P_K, P_V, P_SH, P_SK, P_D, P_BX, P_W1, P_W2, P_OUT, P_DBG, P_WS = 16, 18, 20, 22, 24, 26, 28, 30, 32, 34, 36, 38

def load_ptrs(k):
    k.e("s_load_dwordx16 s[16:31], s[0:1], 0")
    k.e("s_load_dwordx8 s[32:39], s[0:1], 64")

def srd(k, dst, ptr, nbytes, base_off=0):
    if base_off:
        k.e(f"s_add_u32 s{dst}, s{ptr}, {base_off:#x}")
        k.e(f"s_addc_u32 s{dst+1}, s{ptr+1}, 0")
    else:
        k.e(f"s_mov_b32 s{dst}, s{ptr}")
        k.e(f"s_mov_b32 s{dst+1}, s{ptr+1}")
    k.e(f"s_mov_b32 s{dst+2}, {nbytes:#x}")
    k.e(f"s_mov_b32 s{dst+3}, 0x20000")

def unpack(k, lo, hi, src):
    k.e(f"v_lshlrev_b32 v{lo}, 16, v{src}")
    k.e(f"v_and_b32 v{hi}, 0xffff0000, v{src}")
```

```python
from common import *

CP = 4160
UROFF = 4 * CP
CONV_LDS = UROFF + 4608

C_ACC = 8
C_FR = 40

def conv_setup(k, s_ch, s_lds):
    srd(k, 60, P_SK, D * S * 2)
    srd(k, 64, P_WS, D * S * 2, UR_OFF)
    srd(k, 68, P_WS, D * S * 2, YT_OFF)
    k.e(f"s_lshl_b32 s72, s{s_ch}, 12")
    k.e(f"s_and_b32 s73, s{s_ch}, 0xfffe")
    k.e("s_lshl_b32 s73, s73, 1")
    k.e(f"s_load_dword s74, s[{P_D}:{P_D+1}], s73")
    k.e("v_lshlrev_b32 v1, 4, v0")
    for c in range(4):
        for sh in range(3):
            r = C_FR + 12*c + 4*sh
            k.e(f"buffer_load_dwordx4 v[{r}:{r+3}], v1, s[60:63], s72 offen offset:{1024*c + 4*sh}")
    k.e(f"s_add_u32 m0, s{s_lds}, {UROFF}")
    for c in range(4):
        k.e(f"buffer_load_dwordx4 v1, s[64:67], s72 offen offset:{1024*c} lds")

def conv_stage(k, s_ch, s_lds, younger):
    k.e(f"v_add_u32 v2, s{s_lds}, v1")
    for i in range(4): k.e(f"v_mov_b32 v{C_ACC+i}, 0")
    k.e(f"v_add_u32 v3, {UROFF + 4096}, v2")
    k.e("v_bfe_u32 v4, v0, 1, 2")
    k.e(f"v_mul_u32_u24 v4, {CP}, v4")
    k.e("v_and_b32 v5, 1, v0")
    k.e("v_lshl_add_u32 v4, v5, 4, v4")
    k.e(f"v_add_u32 v4, s{s_lds}, v4")
    k.e("v_cmp_gt_u32 vcc, 32, v0")
    k.e("v_cndmask_b32 v3, v4, v3, vcc")
    k.e(f"ds_write_b128 v3, v[{C_ACC}:{C_ACC+3}]")
    OD = C_FR + 48
    for c in range(4):
        k.e(f"s_waitcnt vmcnt({younger + 4 + 3*(3-c)})")
        d, e_, f = C_FR + 12*c, C_FR + 12*c + 4, C_FR + 12*c + 8
        o1, o3 = OD + 8*c, OD + 8*c + 4
        for i in range(4):
            k.e(f"v_alignbit_b32 v{o1+i}, v{e_+i}, v{d+i}, 16")
            k.e(f"v_alignbit_b32 v{o3+i}, v{f+i}, v{e_+i}, 16")
        for s, r in enumerate((d, o1, e_, o3)):
            k.e(f"ds_write_b128 v2, v[{r}:{r+3}] offset:{s*CP + 32 + 1024*c}")
        if c == 0:
            k.e(f"v_lshlrev_b32 v5, 16, v{d}")
            k.e("v_cmp_eq_u32 vcc, 0, v0")
            k.e("s_and_saveexec_b64 s[76:77], vcc")
            k.e(f"ds_write_b32 v2, v5 offset:{1*CP + 28}")
            k.e(f"ds_write_b32 v2, v{d} offset:{2*CP + 28}")
            k.e(f"ds_write_b32 v2, v5 offset:{3*CP + 24}")
            k.e(f"ds_write_b32 v2, v{o1} offset:{3*CP + 28}")
            k.e("s_mov_b64 exec, s[76:77]")
    k.e("v_and_b32 v6, 15, v0")
    k.e("v_lshrrev_b32 v7, 4, v0")
    k.e("v_add_u32 v3, 1, v6")
    k.e("v_and_b32 v4, 3, v3")
    k.e(f"v_mul_u32_u24 v4, {CP}, v4")
    k.e("v_and_b32 v3, 0x1c, v3")
    k.e("v_lshl_add_u32 v3, v3, 1, v4")
    k.e("v_lshl_add_u32 v3, v7, 4, v3")
    k.e(f"v_add_u32 v3, s{s_lds}, v3")
    k.e("v_lshlrev_b32 v6, 5, v6")
    k.e(f"s_add_u32 s75, s{s_lds}, {UROFF + 480}")
    k.e("v_sub_u32 v4, s75, v6")
    k.e("v_lshlrev_b32 v5, 3, v7")
    k.e("v_sub_u32 v5, v4, v5")
    k.e("v_add_u32 v5, 24, v5")
    k.e("v_lshl_add_u32 v4, v7, 4, v4")
    k.e("v_and_b32 v2, 1, v7")
    k.e("v_lshl_add_u32 v6, v2, 9, v6")
    k.e("v_lshrrev_b32 v7, 1, v7")
    k.e("v_lshl_add_u32 v6, v7, 4, v6")
    for i in range(32): k.e(f"v_mov_b32 v{C_ACC+i}, 0")
    k.e(f"s_waitcnt vmcnt({younger}) lgkmcnt(0)")

def conv_reads(buf, roff):
    fa = C_FR + 64*buf; fb = fa + 32
    L = []
    for i in range(8):
        L.append(f"ds_read_b64 v[{fa+4*i}:{fa+4*i+1}], v3 offset:{512*i + roff}")
        L.append(f"ds_read_b64 v[{fa+4*i+2}:{fa+4*i+3}], v3 offset:{512*i + roff + 8}")
        L.append(f"ds_read_b128 v[{fb+4*i}:{fb+4*i+3}], v4 offset:{512*(7-i) + roff}")
    return L

def conv_mfmas(buf):
    fa = C_FR + 64*buf; fb = fa + 32
    L = []
    for a in range(8):
        for c in range(a, 8):
            y = C_ACC + 4*c
            L.append(f"v_mfma_f32_16x16x32_bf16 v[{y}:{y+3}], v[{fa+4*a}:{fa+4*a+3}], v[{fb+4*(c-a)}:{fb+4*(c-a)+3}], v[{y}:{y+3}]")
    return L

def interleave(main, fill, start=0):
    out = []; fi = 0
    for i, x in enumerate(main):
        out.append(x)
        if i >= start and fi < len(fill):
            out.append(fill[fi]); fi += 1
    out += fill[fi:]
    return out

def conv_main(k, tag):
    for x in conv_reads(0, 0): k.e(x)
    k.e("s_mov_b32 s75, 0")
    k.e(f"L_conv_loop_{tag}:")
    k.e("s_waitcnt lgkmcnt(0)")
    for x in interleave(conv_mfmas(0), conv_reads(1, 64)): k.e(x)
    k.e("s_waitcnt lgkmcnt(0)")
    for x in interleave(conv_mfmas(1), conv_reads(0, 128)): k.e(x)
    k.e("v_add_u32 v3, 128, v3")
    k.e("v_add_u32 v4, 128, v4")
    k.e("s_add_u32 s75, s75, 1")
    k.e("s_cmp_lt_u32 s75, 4")
    k.e(f"s_cbranch_scc1 L_conv_loop_{tag}")

def conv_epilogue(k, s_ch, sc=""):
    U = C_FR + 64
    T = C_FR + 80
    O = C_FR + 96
    k.e("s_waitcnt lgkmcnt(0)")
    for c in range(8):
        k.e(f"ds_read_b64 v[{U+2*c}:{U+2*c+1}], v5 offset:{512*(7-c)}")
    k.e(f"s_bitcmp1_b32 s{s_ch}, 0")
    k.e("s_lshl_b32 s73, s74, 16")
    k.e("s_and_b32 s74, s74, 0xffff0000")
    k.e(f"s_bitcmp1_b32 s{s_ch}, 0")
    k.e("s_cselect_b32 s74, s74, s73")
    for c in range(8):
        k.e(f"s_waitcnt lgkmcnt({7-c})")
        y = C_ACC + 4*c
        t = T + 4*(c & 1)
        k.e(f"v_and_b32 v{t}, 0xffff0000, v{U+2*c+1}")
        k.e(f"v_lshlrev_b32 v{t+1}, 16, v{U+2*c+1}")
        k.e(f"v_and_b32 v{t+2}, 0xffff0000, v{U+2*c}")
        k.e(f"v_lshlrev_b32 v{t+3}, 16, v{U+2*c}")
        for r in range(4):
            k.e(f"v_fmac_f32 v{y+r}, s74, v{t+r}")
        o = O + 4*(c >> 1) + 2*(c & 1)
        k.e(f"v_cvt_pk_bf16_f32 v{o}, v{y}, v{y+1}")
        k.e(f"v_cvt_pk_bf16_f32 v{o+1}, v{y+2}, v{y+3}")
        if c & 1:
            o = O + 4*(c >> 1)
            k.e(f"v_permlane16_swap_b32 v{o}, v{o+2}")
            k.e(f"v_permlane16_swap_b32 v{o+1}, v{o+3}")
            k.e(f"buffer_store_dwordx4 v[{o}:{o+3}], v6, s[68:71], s72 offen offset:{512*(c-1)}{sc}")

def conv_kernel():
    k = Kern("conv_kernel")
    k.e("s_cmp_ge_u32 s2, 160")
    k.e("s_cbranch_scc1 L_conv_end")
    load_ptrs(k)
    k.e("v_lshrrev_b32 v1, 6, v0")
    k.e("v_readfirstlane_b32 s3, v1")
    k.e("v_and_b32 v0, 63, v0")
    k.e("s_lshl_b32 s4, s2, 2")
    k.e("s_add_u32 s4, s4, s3")
    k.e(f"s_mul_i32 s5, s3, {CONV_LDS}")
    k.e("s_waitcnt lgkmcnt(0)")
    conv_setup(k, 4, 5)
    conv_stage(k, 4, 5, 0)
    conv_main(k, "a")
    conv_epilogue(k, 4)
    k.e("L_conv_end:")
    k.e("s_endpgm")
    return k
```

```python
from common import *

NSTAGE = 10
SLOT = 32768
WPART = 16384

def emit_g1(k, s_mt, s_ft, s_wave, lbl_end):
    srd(k, 40, P_Q, NB_X)
    srd(k, 44, P_W1, NB_W)
    srd(k, 48, P_WS, 32 * NT * 4096, H_OFF)
    k.e(f"s_and_b32 s52, s{s_wave}, 1")
    k.e(f"s_lshr_b32 s53, s{s_wave}, 1")
    XA, WA = 2, 6
    k.e("v_lshrrev_b32 v10, 3, v0")
    k.e(f"s_lshl_b32 s54, s{s_wave}, 5")
    k.e("v_add_u32 v10, s54, v10")
    k.e("v_mul_u32_u24 v10, 1280, v10")
    k.e("v_and_b32 v11, 7, v0")
    k.e("v_lshrrev_b32 v12, 4, v0")
    k.e("v_xor_b32 v13, v11, v12")
    k.e("v_xor_b32 v14, 4, v13")
    k.e(f"v_lshl_add_u32 v{XA}, v13, 4, v10")
    k.e(f"v_lshl_add_u32 v{XA+1}, v14, 4, v10")
    k.e(f"v_add_u32 v{XA+2}, {2*(10240-1024)}, v{XA}")
    k.e(f"v_add_u32 v{XA+3}, {3*(10240-1024)}, v{XA+1}")
    k.e(f"v_add_u32 v{XA+1}, {10240-1024}, v{XA+1}")
    k.e(f"s_lshl_b32 s54, s{s_wave}, 4")
    k.e("v_add_u32 v10, s54, v12")
    k.e("v_mul_u32_u24 v10, 3456, v10")
    k.e("v_and_b32 v11, 1, v0")
    k.e("v_lshl_add_u32 v10, v11, 4, v10")
    k.e("v_bfe_u32 v11, v0, 1, 3")
    k.e("v_xor_b32 v13, v11, v12")
    k.e("v_xor_b32 v14, 4, v13")
    k.e(f"v_lshl_add_u32 v{WA}, v13, 5, v10")
    k.e(f"v_lshl_add_u32 v{WA+2}, v14, 5, v10")
    k.e(f"s_cmp_eq_u32 s{s_ft}, 13")
    k.e("s_cselect_b32 s54, 0x40000000, 0")
    k.e("v_mov_b32 v15, s54")
    k.e("v_cmp_lt_u32 vcc, 3, v13")
    k.e("v_cndmask_b32 v16, 0, v15, vcc")
    k.e("v_cndmask_b32 v17, v15, 0, vcc") if False else None
    k.e("v_sub_u32 v17, v15, v16")
    k.e(f"v_add_u32 v{WA}, v{WA}, v16")
    k.e(f"v_add_u32 v{WA+2}, v{WA+2}, v17")
    st = 4 * 3456 - 1024
    k.e(f"v_add_u32 v{WA+1}, {st}, v{WA}")
    k.e(f"v_add_u32 v{WA+3}, {3*st}, v{WA+2}")
    k.e(f"v_add_u32 v{WA+2}, {2*st}, v{WA+2}")
    k.e(f"s_mul_i32 s55, s{s_mt}, {128*1280}")
    k.e(f"s_lshl_b32 s56, s{s_ft}, 8")
    k.e(f"s_lshl_b32 s57, s{s_wave}, 12")
    def dma(stage):
        slot = (stage % 4) * SLOT
        L = []
        L.append(f"s_add_u32 m0, s57, {slot}")
        for i in range(4):
            L.append(f"buffer_load_dwordx4 v{XA+i}, s[40:43], s55 offen offset:{1024*i} lds")
        L.append(f"s_add_u32 m0, s57, {slot + WPART}")
        for i in range(4):
            L.append(f"buffer_load_dwordx4 v{WA+i}, s[44:47], s56 offen offset:{1024*i} lds")
        L.append("s_add_u32 s55, s55, 128")
        L.append(f"s_add_u32 s56, s56, {64*3456}")
        return L
    for s in range(4):
        for x in dma(s): k.e(x)
    BA, AA = 10, 14
    k.e("v_and_b32 v18, 15, v0")
    k.e("v_lshrrev_b32 v19, 4, v0")
    k.e("v_lshrrev_b32 v20, 1, v18")
    k.e("v_xor_b32 v20, v20, v19")
    k.e("v_lshlrev_b32 v20, 4, v20")
    k.e("v_lshl_add_u32 v20, v18, 7, v20")
    k.e("s_lshl_b32 s58, s52, 13")
    k.e("s_lshl_b32 s59, s53, 12")
    k.e("s_add_u32 s58, s58, s59")
    k.e(f"v_add_u32 v{BA}, s58, v20")
    k.e(f"v_xor_b32 v{BA+1}, 64, v{BA}")
    k.e(f"v_xor_b32 v{BA+2}, 0x1000, v{BA}")
    k.e(f"v_xor_b32 v{BA+3}, 0x1040, v{BA}")
    k.e("v_lshrrev_b32 v20, 2, v18")
    k.e("v_and_b32 v21, 3, v18")
    k.e("v_lshl_add_u32 v22, v19, 3, v20")
    k.e("v_lshlrev_b32 v22, 8, v22")
    k.e("v_lshl_add_u32 v22, v21, 3, v22")
    k.e(f"v_add_u32 v22, {WPART}, v22")
    k.e("v_and_b32 v23, 1, v19")
    k.e("v_lshl_add_u32 v23, v23, 2, v20")
    k.e("s_lshl_b32 s58, s53, 2")
    k.e("s_lshl_b32 s59, s52, 1")
    k.e("s_add_u32 s58, s58, s59")
    k.e("v_xor_b32 v23, s58, v23")
    k.e(f"v_lshl_add_u32 v{AA}, v23, 5, v22")
    for fb in range(1, 4):
        k.e(f"v_xor_b32 v{AA+fb}, {32*fb}, v{AA}")
    ONE = 20
    for i in range(4): k.e(f"v_mov_b32 v{ONE+i}, 0x3f803f80")
    ACC = 24
    AR = 88
    AC = 96
    FR = 112
    for i in range(64 + 16): k.e(f"v_mov_b32 v{ACC+i}, 0")
    def reads(stage, ks, buf):
        so = (stage % 2) * SLOT
        L = []
        fa = FR + 32 * buf; fb_ = fa + 16
        order = []
        for i in range(4):
            order.append(("B", i)); order.append(("A", i))
        for t, i in order:
            if t == "B":
                L.append(f"ds_read_b128 v[{fb_+4*i}:{fb_+4*i+3}], v{BA + 2*(i>>1) + ks} offset:{so + 2048*(i&1)}")
            else:
                L.append(f"ds_read_b64_tr_b16 v[{fa+4*i}:{fa+4*i+1}], v{AA+i} offset:{so + 8192*ks}")
                L.append(f"ds_read_b64_tr_b16 v[{fa+4*i+2}:{fa+4*i+3}], v{AA+i} offset:{so + 8192*ks + 1024}")
        return L
    def mfmas(buf):
        fa = FR + 32 * buf; fb_ = fa + 16
        L = []
        for f in range(4):
            for m in range(4):
                a = ACC + 16*f + 4*m
                L.append(f"v_mfma_f32_16x16x32_bf16 v[{a}:{a+3}], v[{fa+4*f}:{fa+4*f+3}], v[{fb_+4*m}:{fb_+4*m+3}], v[{a}:{a+3}]")
        for i in range(2):
            L.append(f"v_mfma_f32_16x16x32_bf16 v[{AR+4*i}:{AR+4*i+3}], v[{ONE}:{ONE+3}], v[{fb_+4*i}:{fb_+4*i+3}], v[{AR+4*i}:{AR+4*i+3}]")
            L.append(f"v_mfma_f32_16x16x32_bf16 v[{AC+4*i}:{AC+4*i+3}], v[{fa+4*i}:{fa+4*i+3}], v[{ONE}:{ONE+3}], v[{AC+4*i}:{AC+4*i+3}]")
        return L
    def interleave(main, fill, start=0):
        out = []; fi = 0
        for i, x in enumerate(main):
            out.append(x)
            if i >= start and fi < len(fill):
                out.append(fill[fi]); fi += 1
        out += fill[fi:]
        return out
    for s in range(NSTAGE):
        issued = min(NSTAGE, max(4, s + 3))
        k.c(f"---- stage {s}")
        k.e(f"s_waitcnt vmcnt({8*(issued - s - 1)}) lgkmcnt(0)")
        k.e("s_barrier")
        if s > 0 and s % 2 == 0:
            for r in list(range(BA, BA+4)) + list(range(AA, AA+4)):
                k.e(f"v_xor_b32 v{r}, 0x10000, v{r}")
        fill = reads(s, 0, 0)
        if s >= 1 and s + 3 < NSTAGE: fill += dma(s + 3)
        if s == 0:
            for x in fill: k.e(x)
        else:
            for x in interleave(mfmas(1), fill): k.e(x)
        k.e("s_waitcnt lgkmcnt(0)")
        for x in interleave(mfmas(0), reads(s, 1, 1)): k.e(x)
    k.e("s_waitcnt lgkmcnt(0)")
    for x in mfmas(1): k.e(x)
    k.c("exchange row/col sums")
    k.e("v_lshlrev_b32 v2, 4, v0")
    k.e("v_add_u32 v3, s57, v2")
    k.e(f"v_mov_b32 v{AR+1}, v{AR+4}")
    k.e(f"ds_write_b64 v3, v[{AR}:{AR+1}]")
    k.e(f"ds_write_b128 v3, v[{AC}:{AC+3}] offset:1024")
    k.e(f"ds_write_b128 v3, v[{AC+4}:{AC+7}] offset:2048")
    k.e("v_xor_b32 v4, 0x2000, v3")
    k.e("v_xor_b32 v5, 0x1000, v3")
    k.e("s_waitcnt lgkmcnt(0)")
    k.e("s_barrier")
    k.e(f"ds_read_b64 v[{AR+2}:{AR+3}], v4")
    k.e(f"ds_read_b128 v[{AC+8}:{AC+11}], v5 offset:1024")
    k.e(f"ds_read_b128 v[{AC+12}:{AC+15}], v5 offset:2048")
    k.e(f"s_lshl_b32 s58, s{s_ft}, 2")
    k.e("s_lshl_b32 s59, s53, 1")
    k.e("s_add_u32 s58, s58, s59")
    k.e(f"s_cmp_ge_u32 s58, {NT}")
    k.e(f"s_cbranch_scc1 {lbl_end}")
    k.e(f"s_lshl_b32 s59, s{s_mt}, 1")
    k.e("s_add_u32 s59, s59, s52")
    k.e(f"s_mul_i32 s59, s59, {NT}")
    k.e("s_add_u32 s58, s58, s59")
    k.e("s_lshl_b32 s58, s58, 12")
    k.e("s_lshl_b32 s60, s52, 12")
    k.e("s_add_u32 s61, s58, s60")
    k.e("s_xor_b32 s60, s60, 0x1000")
    k.e("s_add_u32 s62, s58, s60")
    k.e("s_lshl_b32 s60, s53, 11")
    k.e("v_add_u32 v6, s60, v2")
    k.e("v_xor_b32 v7, 0x800, v6")
    k.e("s_waitcnt lgkmcnt(0)")
    NM = FR
    for m in range(4):
        k.e(f"v_mul_f32 v{AR+m}, {-1.0/D!r}, v{AR+m}")
    k.e(f"v_cvt_pk_bf16_f32 v{AR+4}, v{AR}, v{AR+1}")
    k.e(f"v_cvt_pk_bf16_f32 v{AR+5}, v{AR+2}, v{AR+3}")
    for m in range(4):
        src = AR + 4 + (m >> 1)
        for h in range(2):
            if m & 1: k.e(f"v_and_b32 v{NM+2*m+h}, 0xffff0000, v{src}")
            else:     k.e(f"v_lshlrev_b32 v{NM+2*m+h}, 16, v{src}")
    OUT = FR + 8
    n = 0
    for p in range(2):
        for m in range(4):
            o = OUT + 4 * (n % 4); n += 1
            for ff in range(2):
                f = 2*p + ff
                a = ACC + 16*f + 4*m
                for h in range(2):
                    k.e(f"v_pk_fma_f32 v[{a+2*h}:{a+2*h+1}], v[{AC+4*f+2*h}:{AC+4*f+2*h+1}], v[{NM+2*m}:{NM+2*m+1}], v[{a+2*h}:{a+2*h+1}]")
                for h in range(2):
                    k.e(f"v_cvt_pk_bf16_f32 v{o+2*ff+h}, v{a+2*h}, v{a+2*h+1}")
            for i in range(4):
                k.e(f"v_pk_max_i16 v{o+i}, v{o+i}, 0")
            k.e(f"buffer_store_dwordx4 v[{o}:{o+3}], v{6+(m>>1)}, s[48:51], s{61+p} offen offset:{1024*(m&1)}")

def g1_kernel():
    k = Kern("g1_kernel")
    k.e("s_cmp_ge_u32 s2, 224")
    k.e("s_cbranch_scc1 L_g1_end")
    load_ptrs(k)
    k.e("v_lshrrev_b32 v1, 6, v0")
    k.e("v_readfirstlane_b32 s3, v1")
    k.e("v_and_b32 v0, 63, v0")
    k.e("s_and_b32 s4, s2, 7")
    k.e("s_lshr_b32 s5, s2, 3")
    k.e("s_lshr_b32 s6, s4, 1")
    k.e("s_lshl_b32 s6, s6, 2")
    k.e("s_and_b32 s7, s5, 3")
    k.e("s_add_u32 s6, s6, s7")
    k.e("s_and_b32 s7, s4, 1")
    k.e("s_mul_i32 s7, s7, 7")
    k.e("s_lshr_b32 s8, s5, 2")
    k.e("s_add_u32 s7, s7, s8")
    k.e("s_waitcnt lgkmcnt(0)")
    emit_g1(k, 6, 7, 3, "L_g1_end")
    k.e("L_g1_end:")
    k.e("s_endpgm")
    return k
```

```python
from common import *

NSTEP = 14
PF = 7
G_ACC = 40
RED_LDS = 0
Y_LDS = 61440
X_LDS = 71680
G2_LDS = X_LDS + 4 * 3072

def g2_setup(k, s_mt, s_dt, s_wave):
    srd(k, 40, P_WS, 32 * NT * 4096, H_OFF)
    srd(k, 44, P_WS, NB_W, W2_OFF)
    k.e(f"s_mul_i32 s48, s{s_wave}, 14")
    k.e(f"s_cmp_eq_u32 s{s_wave}, 3")
    k.e("s_cselect_b32 s48, 41, s48")
    k.e(f"s_mul_i32 s49, s{s_mt}, {NT}")
    k.e("s_add_u32 s49, s49, s48")
    k.e("s_lshl_b32 s49, s49, 12")
    k.e(f"s_mul_i32 s50, s{s_dt}, {NT}")
    k.e("s_add_u32 s50, s50, s48")
    k.e("s_mul_i32 s50, s50, 5120")
    k.e(f"s_cmp_ge_u32 s{s_wave}, 2")
    k.e("s_cselect_b32 s51, 0x40000000, 0")
    k.e("v_lshlrev_b32 v168, 4, v0")
    k.e("v_add_u32 v169, 4096, v168")
    k.e(f"s_lshl_b32 s52, s{s_wave}, 10")
    k.e("v_add_u32 v170, s52, v168")
    for m in range(1, 4):
        k.e(f"v_xor_b32 v{170+m}, {1024*m}, v170")

def g2_issue(step):
    b = (step % PF) * 36
    L = []
    if step == NSTEP - 1:
        L.append("s_add_u32 s49, s49, s51")
        L.append("s_add_u32 s50, s50, s51")
    for m in range(4):
        L.append(f"buffer_load_dwordx4 a[{b+4*m}:{b+4*m+3}], v{170+m}, s[40:43], s49 offen")
    for d in range(4):
        L.append(f"buffer_load_dwordx4 a[{b+16+4*d}:{b+16+4*d+3}], v168, s[44:47], s50 offen offset:{1024*d}")
    L.append(f"buffer_load_dwordx4 a[{b+32}:{b+35}], v169, s[44:47], s50 offen")
    if step < NSTEP - 1:
        L.append("s_add_u32 s49, s49, 4096")
        L.append("s_add_u32 s50, s50, 5120")
    return L

def g2_mfmas(step):
    b = (step % PF) * 36
    L = []
    for d in range(5):
        for m in range(4):
            a = G_ACC + 16*d + 4*m
            c = "0" if step == 0 else f"v[{a}:{a+3}]"
            L.append(f"v_mfma_f32_16x16x32_bf16 v[{a}:{a+3}], a[{b+16+4*d}:{b+16+4*d+3}], a[{b+4*m}:{b+4*m+3}], {c}")
    return L

def g2_side_loads(k, s_mt, s_dt, s_wave):
    srd(k, 80, P_Q, NB_X)
    srd(k, 84, P_WS, 16384, ST_OFF)
    k.e(f"s_lshl_b32 s53, s{s_mt}, 2")
    k.e(f"s_add_u32 s53, s53, s{s_wave}")
    k.e("s_mul_i32 s54, s53, 20480")
    k.e(f"s_mul_i32 s55, s{s_dt}, 160")
    k.e("s_add_u32 s54, s54, s55")
    k.e(f"s_mul_i32 s56, s{s_wave}, 3072")
    k.e(f"s_add_u32 s56, s56, {X_LDS}")
    for i in range(3):
        k.e(f"v_add_u32 v1, {64*i}, v0")
        k.e("v_mul_u32_u24 v2, 6554, v1")
        k.e("v_lshrrev_b32 v2, 16, v2")
        k.e("v_mul_u32_u24 v2, 1120, v2")
        k.e(f"v_lshl_add_u32 v{176+i}, v1, 4, v2")
    k.e("v_mov_b32 v2, 0x40000000")
    k.e("v_cmp_gt_u32 vcc, 32, v0")
    k.e("v_cndmask_b32 v178, v2, v178, vcc")
    for i in range(3):
        k.e(f"s_add_u32 m0, s56, {1024*i}")
        k.e(f"buffer_load_dwordx4 v{176+i}, s[80:83], s54 offen lds")
    k.e("v_and_b32 v1, 15, v0")
    k.e("v_lshlrev_b32 v1, 3, v1")
    k.e("s_lshl_b32 s57, s53, 7")
    k.e("buffer_load_dwordx2 v[180:181], v1, s[84:87], s57 offen")

def g2_y_loads(k, s_mt, s_dt, s_wave, sc=""):
    srd(k, 88, P_WS, D * S * 2, YT_OFF)
    k.e("v_lshrrev_b32 v1, 3, v0")
    k.e("v_lshlrev_b32 v1, 12, v1")
    k.e("v_and_b32 v2, 7, v0")
    k.e("v_lshl_add_u32 v1, v2, 4, v1")
    k.e(f"s_mul_i32 s58, s{s_dt}, 10")
    k.e(f"s_add_u32 s58, s58, s{s_wave}")
    k.e("s_lshl_b32 s58, s58, 15")
    k.e(f"s_lshl_b32 s59, s{s_mt}, 7")
    k.e("s_add_u32 s58, s58, s59")
    k.e(f"s_lshl_b32 s59, s{s_wave}, 10")
    k.e(f"s_add_u32 s59, s59, {Y_LDS}")
    for i in range(3):
        if i == 2:
            k.e(f"s_cmp_ge_u32 s{s_wave}, 2")
            k.e("s_cbranch_scc1 L_g2_noy")
        k.e(f"s_add_u32 m0, s59, {4096*i}")
        k.e(f"buffer_load_dwordx4 v1, s[88:91], s58 offen lds{sc}")
        if i < 2: k.e(f"s_add_u32 s58, s58, {4*8*4096}")
    k.e("L_g2_noy:")

def g2_tail(k, s_wave):
    srd(k, 92, P_OUT, NB_X)
    for m in range(1, 4):
        k.e(f"s_xor_b32 s58, s{s_wave}, {m}")
        k.e("s_mul_i32 s58, s58, 15360")
        k.e(f"v_add_u32 v{m}, s58, v168")
    for m in range(1, 4):
        for d in range(5):
            a = G_ACC + 16*d + 4*m
            k.e(f"ds_write_b128 v{m}, v[{a}:{a+3}] offset:{RED_LDS + (m-1)*5120 + 1024*d}")
    k.e(f"s_mul_i32 s58, s{s_wave}, 15360")
    k.e("v_add_u32 v4, s58, v168")
    k.e("v_and_b32 v5, 15, v0")
    k.e("v_mul_u32_u24 v5, 160, v5")
    k.e("v_lshrrev_b32 v6, 4, v0")
    k.e("v_lshl_add_u32 v5, v6, 3, v5")
    k.e("v_add_u32 v5, s56, v5")
    k.e("v_lshrrev_b32 v6, 2, v0")
    k.e("v_lshlrev_b32 v6, 7, v6")
    k.e("v_and_b32 v7, 3, v0")
    k.e("v_lshl_add_u32 v6, v7, 3, v6")
    k.e(f"s_lshl_b32 s58, s{s_wave}, 5")
    k.e(f"s_add_u32 s58, s58, {Y_LDS}")
    k.e("v_add_u32 v6, s58, v6")
    k.e("v_add_u32 v7, s56, v168")
    k.e("s_waitcnt vmcnt(0) lgkmcnt(0)")
    k.e("s_barrier")
    XR, YR = 8, 18
    for d in range(5):
        k.e(f"ds_read_b64 v[{XR+2*d}:{XR+2*d+1}], v5 offset:{32*d}")
        k.e(f"ds_read_b64_tr_b16 v[{YR+2*d}:{YR+2*d+1}], v6 offset:{2048*d}")
    for d in range(5):
        for m in range(1, 4):
            a = G_ACC + 16*d + 4*m
            k.e(f"ds_read_b128 v[{a}:{a+3}], v4 offset:{RED_LDS + (m-1)*5120 + 1024*d}")
    k.e("v_mul_f32 v182, 0xbfb8aa3b, v181")
    k.e("v_mul_f32 v183, 0xbfb8aa3b, v181")
    k.e("v_mul_f32 v184, v181, v181")
    k.e("v_mul_f32 v185, v181, v181")
    k.e("v_sub_f32 v186, 0, v180")
    k.e("v_sub_f32 v187, 0, v180")
    k.e("v_mov_b32 v188, 1.0")
    k.e("v_mov_b32 v189, 1.0")
    XF, SF = 120, 140
    k.e("s_waitcnt lgkmcnt(15)")
    for d in range(5):
        for h in range(2):
            x = XF + 4*d + 2*h; s = SF + 4*d + 2*h
            unpack(k, x, x+1, XR + 2*d + h)
            unpack(k, s, s+1, YR + 2*d + h)
            k.e(f"v_pk_add_f32 v[28:29], v[{x}:{x+1}], v[186:187]")
            k.e(f"v_pk_mul_f32 v[{s}:{s+1}], v[{s}:{s+1}], v[184:185]")
            k.e(f"v_pk_mul_f32 v[{s}:{s+1}], v[{s}:{s+1}], v[28:29]")
    for d in range(5):
        k.e(f"s_waitcnt lgkmcnt({12-3*d})")
        a = G_ACC + 16*d
        for h in range(2):
            k.e(f"v_pk_add_f32 v[{a+2*h}:{a+2*h+1}], v[{a+2*h}:{a+2*h+1}], v[{a+4+2*h}:{a+4+2*h+1}]")
            k.e(f"v_pk_add_f32 v[{a+8+2*h}:{a+8+2*h+1}], v[{a+8+2*h}:{a+8+2*h+1}], v[{a+12+2*h}:{a+12+2*h+1}]")
        for h in range(2):
            k.e(f"v_pk_add_f32 v[{a+2*h}:{a+2*h+1}], v[{a+2*h}:{a+2*h+1}], v[{a+8+2*h}:{a+8+2*h+1}]")
        e = a + 4
        for h in range(2):
            k.e(f"v_pk_mul_f32 v[{e+2*h}:{e+2*h+1}], v[{a+2*h}:{a+2*h+1}], v[182:183]")
        for r in range(4):
            k.e(f"v_exp_f32 v{e+r}, v{e+r}")
        for h in range(2):
            s = SF + 4*d + 2*h
            k.e(f"v_pk_mul_f32 v[{a+2*h}:{a+2*h+1}], v[{a+2*h}:{a+2*h+1}], v[{s}:{s+1}]")
        for h in range(2):
            k.e(f"v_pk_add_f32 v[{e+2*h}:{e+2*h+1}], v[{e+2*h}:{e+2*h+1}], v[188:189]")
        for r in range(4):
            k.e(f"v_rcp_f32 v{e+r}, v{e+r}")
        for h in range(2):
            x = XF + 4*d + 2*h
            k.e(f"v_pk_fma_f32 v[{a+2*h}:{a+2*h+1}], v[{a+2*h}:{a+2*h+1}], v[{e+2*h}:{e+2*h+1}], v[{x}:{x+1}]")
        k.e(f"v_cvt_pk_bf16_f32 v{a+8}, v{a}, v{a+1}")
        k.e(f"v_cvt_pk_bf16_f32 v{a+9}, v{a+2}, v{a+3}")
    for d in range(5):
        a = G_ACC + 16*d
        k.e(f"ds_write_b64 v5, v[{a+8}:{a+9}] offset:{32*d}")
    k.e("s_waitcnt lgkmcnt(0)")
    for i in range(3):
        k.e(f"ds_read_b128 v[{8+4*i}:{8+4*i+3}], v7 offset:{1024*i}")
    for i in range(3):
        k.e(f"s_waitcnt lgkmcnt({2-i})")
        k.e(f"buffer_store_dwordx4 v[{8+4*i}:{8+4*i+3}], v{176+i}, s[92:95], s54 offen")

def g2_ids(k):
    k.e("s_and_b32 s4, s2, 7")
    k.e("s_lshr_b32 s5, s2, 3")
    k.e("s_lshr_b32 s6, s4, 1")
    k.e("s_lshl_b32 s6, s6, 3")
    k.e("s_lshr_b32 s7, s5, 2")
    k.e("s_add_u32 s6, s6, s7")
    k.e("s_and_b32 s7, s4, 1")
    k.e("s_lshl_b32 s7, s7, 2")
    k.e("s_and_b32 s8, s5, 3")
    k.e("s_add_u32 s7, s7, s8")

def g2_kernel():
    from conv import interleave
    k = Kern("g2_kernel")
    k.e("s_cmp_ge_u32 s2, 256")
    k.e("s_cbranch_scc1 L_g2_end")
    load_ptrs(k)
    k.e("v_lshrrev_b32 v1, 6, v0")
    k.e("v_readfirstlane_b32 s3, v1")
    k.e("v_and_b32 v0, 63, v0")
    g2_ids(k)
    k.e("s_waitcnt lgkmcnt(0)")
    g2_setup(k, 6, 7, 3)
    g2_side_loads(k, 6, 7, 3)
    g2_y_loads(k, 6, 7, 3)
    for s in range(PF - 1):
        for x in g2_issue(s): k.e(x)
    for s in range(NSTEP):
        issued = min(NSTEP, s + PF - 1)
        k.e(f"s_waitcnt vmcnt({9*(issued - s - 1)})")
        nxt = s + PF - 1
        fill = g2_issue(nxt) if nxt < NSTEP else []
        for x in interleave(g2_mfmas(s), fill): k.e(x)
    g2_tail(k, 3)
    k.e("L_g2_end:")
    k.e("s_endpgm")
    return k
```

```python
import sys
from common import *
import aux, g1, conv, g2
hdr = open("recurrent_scan__ssm_conv_h3__dense_activation_relu__prompt.s.ref").read().split("; Override")[0]
ks = [(aux.aux_kernel(), 256, 256, 10240), (g1.g1_kernel(), 224, 256, 131072), (conv.conv_kernel(), 160, 256, 4*conv.CONV_LDS), (g2.g2_kernel(), 256, 256, g2.G2_LDS)]
out = hdr
for k, g, b, l in ks:
    out += f"; @launch kernel={k.name} grid=({g},1,1) block=({b},1,1) lds={l}\n"
out += '.amdgcn_target "amdgcn-amd-amdhsa--gfx950"\n.text\n'
for k, *_ in ks: out += k.body()
out += '.section .rodata,"a"\n'
for k, *_ in ks: out += k.desc()
open(sys.argv[1], "w").write(out)
```

```python
import sys
from common import *
import aux, g1, conv, g2
hdr = open("recurrent_scan__ssm_conv_h3__dense_activation_relu__prompt.s.ref").read().split("; Override")[0]
def nop_kernel():
    k = Kern("nop_kernel"); k.e("v_mov_b32 v1, 0"); k.e("s_endpgm"); return k
nextra = int(sys.argv[2]); dup = sys.argv[3] if len(sys.argv) > 3 else ""
ks = [(aux.aux_kernel(), 256, 256, 10240), (g1.g1_kernel(), 224, 256, 131072), (conv.conv_kernel(), 160, 256, 4*conv.CONV_LDS), (g2.g2_kernel(), 256, 256, g2.G2_LDS), (nop_kernel(), 256, 256, 0)]
out = hdr
for k, g, b, l in ks:
    n = nextra if k.name == "nop_kernel" else (2 if k.name.startswith(dup) and dup else 1)
    for _ in range(n):
        out += f"; @launch kernel={k.name} grid=({g},1,1) block=({b},1,1) lds={l}\n"
out += '.amdgcn_target "amdgcn-amd-amdhsa--gfx950"\n.text\n'
for k, *_ in ks: out += k.body()
out += '.section .rodata,"a"\n'
for k, *_ in ks: out += k.desc()
open(sys.argv[1], "w").write(out)
```

```python
from common import *

def emit_stats(k, s_row0):
    srd(k, 40, P_Q, NB_X)
    srd(k, 44, P_WS, 16384, ST_OFF)
    k.e(f"s_mul_i32 s48, s{s_row0}, 1280")
    k.e("v_lshrrev_b32 v1, 3, v0")
    k.e("v_mul_u32_u24 v2, 1280, v1")
    k.e("v_and_b32 v3, 7, v0")
    k.e("v_lshl_add_u32 v2, v3, 4, v2")
    RAW = 8
    UNP = 48
    for i in range(10):
        k.e(f"buffer_load_dwordx4 v[{RAW+4*i}:{RAW+4*i+3}], v2, s[40:43], s48 offen offset:{128*i}")
    ACC = 4
    for i in range(10):
        k.e(f"s_waitcnt vmcnt({9-i})")
        for j in range(4):
            unpack(k, UNP + 8*i + 2*j, UNP + 8*i + 2*j + 1, RAW + 4*i + j)
        for j in range(4):
            u = UNP + 8*i + 2*j
            a = ACC + 2 * (j & 1)
            if i == 0 and j < 2:
                k.e(f"v_pk_add_f32 v[{a}:{a+1}], v[{u}:{u+1}], v[{u+4}:{u+5}]")
            elif i == 0:
                pass
            else:
                k.e(f"v_pk_add_f32 v[{a}:{a+1}], v[{a}:{a+1}], v[{u}:{u+1}]")
    def reduce8(dst):
        k.e("v_pk_add_f32 v[4:5], v[4:5], v[6:7]")
        k.e(f"v_add_f32 v{dst}, v4, v5")
        k.e(f"v_add_f32_dpp v{dst}, v{dst}, v{dst} quad_perm:[1,0,3,2] row_mask:0xf bank_mask:0xf")
        k.e(f"v_add_f32_dpp v{dst}, v{dst}, v{dst} quad_perm:[2,3,0,1] row_mask:0xf bank_mask:0xf")
        k.e(f"v_add_f32_dpp v{dst}, v{dst}, v{dst} row_half_mirror row_mask:0xf bank_mask:0xf")
    reduce8(8)
    k.e(f"v_mul_f32 v8, {1.0/D!r}, v8")
    k.e("v_sub_f32 v10, 0, v8")
    k.e("v_sub_f32 v11, 0, v8")
    for i in range(40):
        u = UNP + 2*i
        k.e(f"v_pk_add_f32 v[{u}:{u+1}], v[{u}:{u+1}], v[10:11]")
    for i in range(40):
        u = UNP + 2*i
        a = ACC + 2 * (i & 1)
        if i < 2:
            k.e(f"v_pk_mul_f32 v[{a}:{a+1}], v[{u}:{u+1}], v[{u}:{u+1}]")
        else:
            k.e(f"v_pk_fma_f32 v[{a}:{a+1}], v[{u}:{u+1}], v[{u}:{u+1}], v[{a}:{a+1}]")
    reduce8(9)
    k.e(f"v_mul_f32 v9, {1.0/D!r}, v9")
    k.e("v_cvt_pk_bf16_f32 v12, v8, v9")
    k.e("v_lshlrev_b32 v14, 16, v12")
    k.e("v_and_b32 v13, 0xffff0000, v12")
    k.e("v_add_f32 v13, 0x3727c5ac, v13")
    k.e("v_cvt_pk_bf16_f32 v13, v13, v13")
    k.e("v_and_b32 v13, 0xffff0000, v13")
    k.e("v_sqrt_f32 v13, v13")
    k.e("v_cvt_pk_bf16_f32 v13, v13, v13")
    k.e("v_and_b32 v13, 0xffff0000, v13")
    k.e("v_rcp_f32 v15, v13")
    k.e("v_lshlrev_b32 v1, 3, v1")
    k.e(f"s_lshl_b32 s48, s{s_row0}, 3")
    k.e("v_cmp_eq_u32 vcc, 0, v3")
    k.e("s_and_saveexec_b64 s[50:51], vcc")
    k.e("buffer_store_dwordx2 v[14:15], v1, s[44:47], s48 offen")
    k.e("s_mov_b64 exec, s[50:51]")

def emit_prep(k, s_unit):
    srd(k, 40, P_K, NB_X)
    srd(k, 44, P_V, NB_X)
    srd(k, 52, P_SH, D * 8)
    srd(k, 56, P_WS, D * S * 2, UR_OFF)
    k.e(f"s_mul_i32 s48, s{s_unit}, 6554")
    k.e("s_lshr_b32 s48, s48, 16")
    k.e("s_mul_i32 s49, s48, 10")
    k.e(f"s_sub_u32 s49, s{s_unit}, s49")
    k.e("v_and_b32 v1, 7, v0")
    k.e("v_lshrrev_b32 v2, 3, v0")
    k.e("v_lshlrev_b32 v3, 6, v1")
    k.e("s_lshl_b32 s50, s49, 9")
    TR = 8
    for i in range(4):
        k.e(f"buffer_load_dwordx4 v[{TR+4*i}:{TR+4*i+3}], v3, s[52:55], s50 offen offset:{16*i}")
    k.e("s_mul_i32 s51, s48, 81920")
    k.e("s_lshl_b32 s60, s49, 7")
    k.e("s_add_u32 s51, s51, s60")
    k.e("v_mul_u32_u24 v4, 10240, v2")
    k.e("v_lshl_add_u32 v4, v1, 4, v4")
    k.e("v_add_u32 v4, s51, v4")
    k.e("v_subrev_u32 v5, 3840, v4")
    k.e("s_movk_i32 s61, 5120")
    KR = 24
    VR = 68
    for j in range(3):
        k.e(f"buffer_load_dwordx4 v[{KR+4*j}:{KR+4*j+3}], v5, s[40:43], 0 offen offset:{1280*j}")
    for j in range(8):
        so = "0" if j < 4 else "s61"
        k.e(f"buffer_load_dwordx4 v[{KR+12+4*j}:{KR+12+4*j+3}], v4, s[40:43], {so} offen offset:{1280*(j%4)}")
        k.e(f"buffer_load_dwordx4 v[{VR+4*j}:{VR+4*j+3}], v4, s[44:47], {so} offen offset:{1280*(j%4)}")
    TP = 100
    k.e("s_waitcnt vmcnt(19)")
    for c in range(8):
        unpack(k, TP + 0*8 + c, TP + 1*8 + c, TR + 2*c)
        unpack(k, TP + 2*8 + c, TP + 3*8 + c, TR + 2*c + 1)
    KW = 132
    VU = 164
    KV = 172
    OUT = 188
    def unpack_row(dst, src):
        for i in range(4):
            unpack(k, dst + 2*i, dst + 2*i + 1, src + i)
    k.e("s_waitcnt vmcnt(16)")
    for j in range(3):
        unpack_row(KW + 8*j, KR + 4*j)
    for r in range(8):
        k.e(f"s_waitcnt vmcnt({14-2*r})")
        unpack_row(KW + 8*((r+3) % 4), KR + 12 + 4*r)
        unpack_row(VU, VR + 4*r)
        kv = KV + 8*(r & 1)
        for i in range(4):
            d = kv + 2*i
            for j in (3, 2, 1, 0):
                w = KW + 8*((r + 3 - j) % 4) + 2*i
                t = TP + 8*j + 2*i
                if j == 3:
                    k.e(f"v_pk_mul_f32 v[{d}:{d+1}], v[{w}:{w+1}], v[{t}:{t+1}]")
                else:
                    k.e(f"v_pk_fma_f32 v[{d}:{d+1}], v[{w}:{w+1}], v[{t}:{t+1}], v[{d}:{d+1}]")
        for i in range(4):
            d = kv + 2*i
            k.e(f"v_pk_mul_f32 v[{d}:{d+1}], v[{d}:{d+1}], v[{VU+2*i}:{VU+2*i+1}]")
        if r & 1:
            for c in range(8):
                k.e(f"v_cvt_pk_bf16_f32 v{OUT+4*c+3-r//2}, v{KV+8+c}, v{KV+c}")
    k.e("v_lshlrev_b32 v3, 15, v1")
    k.e("v_lshlrev_b32 v6, 4, v2")
    k.e("v_sub_u32 v3, v3, v6")
    k.e("s_lshl_b32 s60, s48, 7")
    k.e("s_sub_u32 s60, 4080, s60")
    k.e("v_add_u32 v3, s60, v3")
    k.e("s_lshl_b32 s60, s49, 18")
    for c in range(8):
        k.e(f"buffer_store_dwordx4 v[{OUT+4*c}:{OUT+4*c+3}], v3, s[56:59], s60 offen")
        if c < 7: k.e("s_add_u32 s60, s60, 4096")

def emit_relayout(k, s_unit, s_lds):
    srd(k, 40, P_W2, NB_W)
    srd(k, 44, P_WS, NB_W, W2_OFF)
    k.e(f"s_lshr_b32 s48, s{s_unit}, 2")
    k.e(f"s_and_b32 s49, s{s_unit}, 3")
    k.e("s_mul_i32 s50, s48, 40960")
    k.e("s_mul_i32 s51, s49, 320")
    k.e("s_add_u32 s50, s50, s51")
    for i in range(10):
        k.e(f"v_add_u32 v1, {64*i}, v0")
        k.e("v_mul_u32_u24 v2, 52429, v1")
        k.e("v_lshrrev_b32 v2, 20, v2")
        k.e("v_mul_u32_u24 v2, 960, v2")
        k.e("v_lshl_add_u32 v2, v1, 4, v2")
        k.e(f"s_add_u32 m0, s{s_lds}, {1024*i}")
        k.e("buffer_load_dwordx4 v2, s[40:43], s50 offen lds")
    k.e("v_lshrrev_b32 v3, 2, v0")
    k.e("v_mul_u32_u24 v3, 320, v3")
    k.e("v_and_b32 v4, 3, v0")
    k.e("v_lshl_add_u32 v3, v4, 3, v3")
    k.e(f"v_add_u32 v3, s{s_lds}, v3")
    k.e("v_lshlrev_b32 v5, 4, v0")
    k.e("s_mul_i32 s51, s49, 108")
    k.e("s_add_u32 s51, s51, s48")
    k.e("s_mul_i32 s51, s51, 5120")
    k.e(f"s_add_u32 s52, s51, {54*5120}")
    k.e("s_add_u32 s53, s51, 4096")
    k.e("s_add_u32 s54, s52, 4096")
    k.e("s_waitcnt vmcnt(0)")
    for b in range(10):
        r = 8 + 4*b
        k.e(f"ds_read_b64_tr_b16 v[{r}:{r+1}], v3 offset:{32*b}")
        k.e(f"ds_read_b64_tr_b16 v[{r+2}:{r+3}], v3 offset:{32*b+5120}")
    for b in range(10):
        r = 8 + 4*b
        k.e(f"s_waitcnt lgkmcnt({min(15,18-2*b)})")
        db = b % 5
        so = (51 if b < 5 else 52) if db < 4 else (53 if b < 5 else 54)
        k.e(f"buffer_store_dwordx4 v[{r}:{r+3}], v5, s[44:47], s{so} offen offset:{1024*(db%4)}")

def aux_kernel():
    k = Kern("aux_kernel")
    stamp_begin(k)
    k.e("s_cmp_ge_u32 s2, 256")
    k.e("s_cbranch_scc1 L_aux_end")
    load_ptrs(k)
    k.e("v_lshrrev_b32 v1, 6, v0")
    k.e("v_readfirstlane_b32 s3, v1")
    k.e("v_and_b32 v0, 63, v0")
    k.e("s_waitcnt lgkmcnt(0)")
    k.e("s_cmp_eq_u32 s3, 1")
    k.e("s_cbranch_scc1 L_aux_prep1")
    k.e("s_cmp_eq_u32 s3, 2")
    k.e("s_cbranch_scc1 L_aux_rel")
    k.e("s_cmp_eq_u32 s3, 3")
    k.e("s_cbranch_scc1 L_aux_prep2")
    k.e("s_lshl_b32 s4, s2, 3")
    emit_stats(k, 4)
    finish(k, 0)
    k.e("L_aux_prep2:")
    k.e("s_cmp_ge_u32 s2, 64")
    k.e("s_cbranch_scc1 L_aux_end")
    k.e("s_add_u32 s2, s2, 256")
    k.e("L_aux_prep1:")
    emit_prep(k, 2)
    finish(k, 0)
    k.e("L_aux_rel:")
    k.e("s_cmp_ge_u32 s2, 216")
    k.e("s_cbranch_scc1 L_aux_end")
    k.e("s_mov_b32 s4, 0")
    emit_relayout(k, 2, 4)
    finish(k, 0)
    k.e("L_aux_end:")
    k.e("s_endpgm")
    return k
```

```python
from asmlib import *

S, D, F = 2048, 640, 1728
NB_X = S * D * 2
NB_W = D * F * 2
H_OFF  = 0x0000000
W2_OFF = 0x0700000
UR_OFF = 0x0A00000
YT_OFF = 0x0D00000
ST_OFF = 0x1000000
FL_OFF = 0x1010000
WS_USED = 0x1100000
NT = 54

P_Q, P_K, P_V, P_SH, P_SK, P_D, P_BX, P_W1, P_W2, P_OUT, P_DBG, P_WS = 16, 18, 20, 22, 24, 26, 28, 30, 32, 34, 36, 38

def load_ptrs(k):
    k.e("s_load_dwordx16 s[16:31], s[0:1], 0")
    k.e("s_load_dwordx8 s[32:39], s[0:1], 64")

def srd(k, dst, ptr, nbytes, base_off=0):
    if base_off:
        k.e(f"s_add_u32 s{dst}, s{ptr}, {base_off:#x}")
        k.e(f"s_addc_u32 s{dst+1}, s{ptr+1}, 0")
    else:
        k.e(f"s_mov_b32 s{dst}, s{ptr}")
        k.e(f"s_mov_b32 s{dst+1}, s{ptr+1}")
    k.e(f"s_mov_b32 s{dst+2}, {nbytes:#x}")
    k.e(f"s_mov_b32 s{dst+3}, 0x20000")

def unpack(k, lo, hi, src):
    k.e(f"v_lshlrev_b32 v{lo}, 16, v{src}")
    k.e(f"v_and_b32 v{hi}, 0xffff0000, v{src}")

import os
STAMP = bool(int(os.environ.get("STAMP", "0")))
STAMP_OFF = 0x1200000
def stamp_begin(k):
    if not STAMP: return
    k.e("s_memrealtime s[96:97]")
    k.e("s_memtime s[98:99]")
    k.e("s_mov_b32 s100, s2")
    for i in range(4): k.e(f"s_mov_b32 s{12+i}, 0")
def stamp_mid(k, i):
    if not STAMP: return
    k.e("s_memrealtime s[10:11]")
    k.e("s_waitcnt lgkmcnt(0)")
    k.e(f"s_mov_b32 s{12+i}, s10")
def finish(k, slot, s_wave=3):
    if STAMP:
        k.e("s_waitcnt vmcnt(0) lgkmcnt(0)")
        k.e("s_memrealtime s[40:41]")
        k.e("s_memtime s[42:43]")
        srd(k, 44, P_WS, 0x100000, STAMP_OFF)
        k.e("s_lshl_b32 s48, s100, 3")
        k.e(f"s_add_u32 s48, s48, s{s_wave}")
        k.e("s_lshl_b32 s48, s48, 5")
        k.e(f"s_add_u32 s48, s48, {slot * 0x20000}")
        k.e("s_waitcnt lgkmcnt(0)")
        k.e("s_mov_b64 exec, 1")
        k.e("v_mov_b32 v4, s96")
        k.e("v_mov_b32 v5, s40")
        k.e("v_mov_b32 v6, s98")
        k.e("v_mov_b32 v7, s42")
        k.e("v_mov_b32 v8, s12")
        k.e("v_mov_b32 v9, s13")
        k.e("v_mov_b32 v10, s14")
        k.e("v_mov_b32 v11, s15")
        k.e("v_mov_b32 v1, 0")
        k.e("buffer_store_dwordx4 v[4:7], v1, s[44:47], s48 offen")
        k.e("buffer_store_dwordx4 v[8:11], v1, s[44:47], s48 offen offset:16")
    k.e("s_endpgm")

def flag(name, default=0):
    return int(os.environ.get(name, str(default)))
```

```python
from common import *

CP = 4160
UROFF = 4 * CP
CONV_LDS = UROFF + 4608

C_ACC = 8
C_FR = 40

def conv_setup(k, s_ch, s_lds):
    srd(k, 60, P_SK, D * S * 2)
    srd(k, 64, P_WS, D * S * 2, UR_OFF)
    srd(k, 68, P_WS, D * S * 2, YT_OFF)
    k.e(f"s_lshl_b32 s72, s{s_ch}, 12")
    k.e(f"s_and_b32 s73, s{s_ch}, 0xfffe")
    k.e("s_lshl_b32 s73, s73, 1")
    k.e(f"s_load_dword s74, s[{P_D}:{P_D+1}], s73")
    k.e("v_lshlrev_b32 v1, 4, v0")
    for c in range(4):
        for sh in range(3):
            r = C_FR + 12*c + 4*sh
            k.e(f"buffer_load_dwordx4 v[{r}:{r+3}], v1, s[60:63], s72 offen offset:{1024*c + 4*sh}")
    k.e(f"s_add_u32 m0, s{s_lds}, {UROFF}")
    for c in range(4):
        k.e(f"buffer_load_dwordx4 v1, s[64:67], s72 offen offset:{1024*c} lds")

def conv_stage(k, s_ch, s_lds, younger):
    k.e(f"v_add_u32 v2, s{s_lds}, v1")
    for i in range(4): k.e(f"v_mov_b32 v{C_ACC+i}, 0")
    k.e(f"v_add_u32 v3, {UROFF + 4096}, v2")
    k.e("v_bfe_u32 v4, v0, 1, 2")
    k.e(f"v_mul_u32_u24 v4, {CP}, v4")
    k.e("v_and_b32 v5, 1, v0")
    k.e("v_lshl_add_u32 v4, v5, 4, v4")
    k.e(f"v_add_u32 v4, s{s_lds}, v4")
    k.e("v_cmp_gt_u32 vcc, 32, v0")
    k.e("v_cndmask_b32 v3, v4, v3, vcc")
    k.e(f"ds_write_b128 v3, v[{C_ACC}:{C_ACC+3}]")
    OD = C_FR + 48
    for c in range(4):
        k.e(f"s_waitcnt vmcnt({younger + 4 + 3*(3-c)})")
        d, e_, f = C_FR + 12*c, C_FR + 12*c + 4, C_FR + 12*c + 8
        o1, o3 = OD + 8*c, OD + 8*c + 4
        for i in range(4):
            k.e(f"v_alignbit_b32 v{o1+i}, v{e_+i}, v{d+i}, 16")
            k.e(f"v_alignbit_b32 v{o3+i}, v{f+i}, v{e_+i}, 16")
        for s, r in enumerate((d, o1, e_, o3)):
            k.e(f"ds_write_b128 v2, v[{r}:{r+3}] offset:{s*CP + 32 + 1024*c}")
        if c == 0:
            k.e(f"v_lshlrev_b32 v5, 16, v{d}")
            k.e("v_cmp_eq_u32 vcc, 0, v0")
            k.e("s_and_saveexec_b64 s[76:77], vcc")
            k.e(f"ds_write_b32 v2, v5 offset:{1*CP + 28}")
            k.e(f"ds_write_b32 v2, v{d} offset:{2*CP + 28}")
            k.e(f"ds_write_b32 v2, v5 offset:{3*CP + 24}")
            k.e(f"ds_write_b32 v2, v{o1} offset:{3*CP + 28}")
            k.e("s_mov_b64 exec, s[76:77]")
    k.e("v_and_b32 v6, 15, v0")
    k.e("v_lshrrev_b32 v7, 4, v0")
    k.e("v_add_u32 v3, 1, v6")
    k.e("v_and_b32 v4, 3, v3")
    k.e(f"v_mul_u32_u24 v4, {CP}, v4")
    k.e("v_and_b32 v3, 0x1c, v3")
    k.e("v_lshl_add_u32 v3, v3, 1, v4")
    k.e("v_lshl_add_u32 v3, v7, 4, v3")
    k.e(f"v_add_u32 v3, s{s_lds}, v3")
    k.e("v_lshlrev_b32 v6, 5, v6")
    k.e(f"s_add_u32 s75, s{s_lds}, {UROFF + 480}")
    k.e("v_sub_u32 v4, s75, v6")
    k.e("v_lshlrev_b32 v5, 3, v7")
    k.e("v_sub_u32 v5, v4, v5")
    k.e("v_add_u32 v5, 24, v5")
    k.e("v_lshl_add_u32 v4, v7, 4, v4")
    k.e("v_and_b32 v2, 1, v7")
    k.e("v_lshl_add_u32 v6, v2, 9, v6")
    k.e("v_lshrrev_b32 v7, 1, v7")
    k.e("v_lshl_add_u32 v6, v7, 4, v6")
    for i in range(32): k.e(f"v_mov_b32 v{C_ACC+i}, 0")
    k.e(f"s_waitcnt vmcnt({younger}) lgkmcnt(0)")

def conv_reads(buf, roff):
    fa = C_FR + 64*buf; fb = fa + 32
    L = []
    for i in range(8):
        L.append(f"ds_read_b64 v[{fa+4*i}:{fa+4*i+1}], v3 offset:{512*i + roff}")
        L.append(f"ds_read_b64 v[{fa+4*i+2}:{fa+4*i+3}], v3 offset:{512*i + roff + 8}")
        L.append(f"ds_read_b128 v[{fb+4*i}:{fb+4*i+3}], v4 offset:{512*(7-i) + roff}")
    return L

def conv_mfmas(buf):
    fa = C_FR + 64*buf; fb = fa + 32
    L = []
    for a in range(8):
        for c in range(a, 8):
            y = C_ACC + 4*c
            L.append(f"v_mfma_f32_16x16x32_bf16 v[{y}:{y+3}], v[{fa+4*a}:{fa+4*a+3}], v[{fb+4*(c-a)}:{fb+4*(c-a)+3}], v[{y}:{y+3}]")
    return L

def interleave(main, fill, start=0):
    out = []; fi = 0
    for i, x in enumerate(main):
        out.append(x)
        if i >= start and fi < len(fill):
            out.append(fill[fi]); fi += 1
    out += fill[fi:]
    return out

def conv_main(k, tag):
    for x in conv_reads(0, 0): k.e(x)
    k.e("s_mov_b32 s75, 0")
    k.e(f"L_conv_loop_{tag}:")
    k.e("s_waitcnt lgkmcnt(0)")
    for x in interleave(conv_mfmas(0), conv_reads(1, 64)): k.e(x)
    k.e("s_waitcnt lgkmcnt(0)")
    for x in interleave(conv_mfmas(1), conv_reads(0, 128)): k.e(x)
    k.e("v_add_u32 v3, 128, v3")
    k.e("v_add_u32 v4, 128, v4")
    k.e("s_add_u32 s75, s75, 1")
    k.e("s_cmp_lt_u32 s75, 4")
    k.e(f"s_cbranch_scc1 L_conv_loop_{tag}")

def conv_epilogue(k, s_ch, sc=""):
    U = C_FR + 64
    T = C_FR + 80
    O = C_FR + 96
    k.e("s_waitcnt lgkmcnt(0)")
    for c in range(8):
        k.e(f"ds_read_b64 v[{U+2*c}:{U+2*c+1}], v5 offset:{512*(7-c)}")
    k.e(f"s_bitcmp1_b32 s{s_ch}, 0")
    k.e("s_lshl_b32 s73, s74, 16")
    k.e("s_and_b32 s74, s74, 0xffff0000")
    k.e(f"s_bitcmp1_b32 s{s_ch}, 0")
    k.e("s_cselect_b32 s74, s74, s73")
    for c in range(8):
        k.e(f"s_waitcnt lgkmcnt({7-c})")
        y = C_ACC + 4*c
        t = T + 4*(c & 1)
        k.e(f"v_and_b32 v{t}, 0xffff0000, v{U+2*c+1}")
        k.e(f"v_lshlrev_b32 v{t+1}, 16, v{U+2*c+1}")
        k.e(f"v_and_b32 v{t+2}, 0xffff0000, v{U+2*c}")
        k.e(f"v_lshlrev_b32 v{t+3}, 16, v{U+2*c}")
        for r in range(4):
            k.e(f"v_fmac_f32 v{y+r}, s74, v{t+r}")
        o = O + 4*(c >> 1) + 2*(c & 1)
        k.e(f"v_cvt_pk_bf16_f32 v{o}, v{y}, v{y+1}")
        k.e(f"v_cvt_pk_bf16_f32 v{o+1}, v{y+2}, v{y+3}")
        if c & 1:
            o = O + 4*(c >> 1)
            k.e(f"v_permlane16_swap_b32 v{o}, v{o+2}")
            k.e(f"v_permlane16_swap_b32 v{o+1}, v{o+3}")
            k.e(f"buffer_store_dwordx4 v[{o}:{o+3}], v6, s[68:71], s72 offen offset:{512*(c-1)}{sc}")

def conv_kernel():
    k = Kern("conv_kernel")
    stamp_begin(k)
    k.e("s_cmp_ge_u32 s2, 160")
    k.e("s_cbranch_scc1 L_conv_end")
    load_ptrs(k)
    k.e("v_lshrrev_b32 v1, 6, v0")
    k.e("v_readfirstlane_b32 s3, v1")
    k.e("v_and_b32 v0, 63, v0")
    k.e("s_lshl_b32 s4, s2, 2")
    k.e("s_add_u32 s4, s4, s3")
    k.e(f"s_mul_i32 s5, s3, {CONV_LDS}")
    k.e("s_waitcnt lgkmcnt(0)")
    conv_setup(k, 4, 5)
    conv_stage(k, 4, 5, 0)
    stamp_mid(k, 0)
    conv_main(k, "a")
    stamp_mid(k, 1)
    conv_epilogue(k, 4)
    finish(k, 2)
    k.e("L_conv_end:")
    k.e("s_endpgm")
    return k
```

```python
from common import *
import aux

NSTAGE = 10
SLOT = 32768
WPART = 16384
REL_LDS = 4 * SLOT
K1_LDS = REL_LDS + 10240

class Vm:
    def __init__(self): self.n = 0
    def op(self): self.n += 1; return self.n - 1
    def wait(self, idx): return min(63, self.n - idx - 1)

def is_vmem(x): return x.startswith(("buffer_", "global_"))

def loader_setup(k, s_mt, s_ft, s_lw):
    srd(k, 64, P_Q, NB_X)
    srd(k, 68, P_W1, NB_W)
    XA, WA = 240, 244
    k.e("v_lshrrev_b32 v10, 3, v0")
    k.e(f"s_lshl_b32 s72, s{s_lw}, 5")
    k.e("v_add_u32 v10, s72, v10")
    k.e("v_mul_u32_u24 v10, 1280, v10")
    k.e("v_and_b32 v11, 7, v0")
    k.e("v_lshrrev_b32 v12, 4, v0")
    k.e("v_xor_b32 v13, v11, v12")
    k.e("v_xor_b32 v14, 4, v13")
    k.e(f"v_lshl_add_u32 v{XA}, v13, 4, v10")
    k.e(f"v_lshl_add_u32 v{XA+1}, v14, 4, v10")
    k.e(f"v_add_u32 v{XA+2}, {2*(10240-1024)}, v{XA}")
    k.e(f"v_add_u32 v{XA+3}, {3*(10240-1024)}, v{XA+1}")
    k.e(f"v_add_u32 v{XA+1}, {10240-1024}, v{XA+1}")
    k.e(f"s_lshl_b32 s72, s{s_lw}, 4")
    k.e("v_add_u32 v10, s72, v12")
    k.e("v_mul_u32_u24 v10, 3456, v10")
    k.e("v_and_b32 v11, 1, v0")
    k.e("v_lshl_add_u32 v10, v11, 4, v10")
    k.e("v_bfe_u32 v11, v0, 1, 3")
    k.e("v_xor_b32 v13, v11, v12")
    k.e("v_xor_b32 v14, 4, v13")
    k.e(f"v_lshl_add_u32 v{WA}, v13, 5, v10")
    k.e(f"v_lshl_add_u32 v{WA+2}, v14, 5, v10")
    k.e(f"s_cmp_eq_u32 s{s_ft}, 13")
    k.e("s_cselect_b32 s72, 0x40000000, 0")
    k.e("v_mov_b32 v15, s72")
    k.e("v_cmp_lt_u32 vcc, 3, v13")
    k.e("v_cndmask_b32 v16, 0, v15, vcc")
    k.e("v_sub_u32 v17, v15, v16")
    k.e(f"v_add_u32 v{WA}, v{WA}, v16")
    k.e(f"v_add_u32 v{WA+2}, v{WA+2}, v17")
    st = 4 * 3456 - 1024
    k.e(f"v_add_u32 v{WA+1}, {st}, v{WA}")
    k.e(f"v_add_u32 v{WA+3}, {3*st}, v{WA+2}")
    k.e(f"v_add_u32 v{WA+2}, {2*st}, v{WA+2}")
    k.e(f"s_mul_i32 s73, s{s_mt}, {128*1280}")
    k.e(f"s_lshl_b32 s74, s{s_ft}, 8")
    k.e(f"s_lshl_b32 s75, s{s_lw}, 12")

def dma(stage):
    XA, WA = 240, 244
    slot = (stage % 4) * SLOT
    L = [f"s_add_u32 m0, s75, {slot}"]
    for i in range(4):
        L.append(f"buffer_load_dwordx4 v{XA+i}, s[64:67], s73 offen offset:{1024*i} lds")
    L.append(f"s_add_u32 m0, s75, {slot + WPART}")
    for i in range(4):
        L.append(f"buffer_load_dwordx4 v{WA+i}, s[68:71], s74 offen offset:{1024*i} lds")
    L.append("s_add_u32 s73, s73, 128")
    L.append(f"s_add_u32 s74, s74, {64*3456}")
    return L

class Rec:
    def __init__(self): self.lines = []
    def e(self, s): self.lines.append(s.strip())
    def c(self, s): pass

def split_aux(emit):
    r = Rec(); emit(r)
    idx = next(i for i, x in enumerate(r.lines) if x.startswith("s_waitcnt vmcnt"))
    loads = r.lines[:idx]
    comp = [x for x in r.lines[idx:] if not x.startswith("s_waitcnt vmcnt")]
    return loads, comp

def loader_body(k, auxparts, aux_load_after=1, aux_first_stage=2):
    vm = Vm(); last = {}
    for s in range(2):
        for _ in range(8): last[s] = vm.op()
    def put(x):
        k.e(x)
        return vm.op() if is_vmem(x) else None
    loads, comp = auxparts if auxparts else ([], [])
    if flag("NOAUX"): loads, comp = [], []
    for x in loads: put(x)
    for s in (2, 3):
        for x in dma(s):
            r = put(x)
            if r is not None: last[s] = r
    nch = 9 - aux_first_stage
    per = (len(comp) + nch - 1) // nch if comp else 0
    ci = 0
    for s in range(NSTAGE):
        k.e(f"s_waitcnt vmcnt({vm.wait(last[s])})")
        k.e("s_barrier")
        if s == NSTAGE - 1: break
        d = dma(s + 3) if (s >= 1 and s + 3 < NSTAGE) else []
        if flag("NODMA") and d:
            last[s + 3] = last[3]; d = []
        chunk = comp[ci:ci + per] if s >= aux_first_stage else []
        ci += len(chunk)
        groups = []; cur = []; masked = False
        for x in chunk:
            cur.append(x)
            if "saveexec" in x: masked = True
            if x.startswith("s_mov_b64 exec"): masked = False
            if not masked:
                groups.append(cur); cur = []
        if cur:
            while True:
                x = comp[ci]; ci += 1; cur.append(x)
                if x.startswith("s_mov_b64 exec"): break
            groups.append(cur)
        nd = max(1, len([x for x in d if is_vmem(x)]))
        gper = (len(groups) + nd - 1) // nd
        gi = 0
        for x in d:
            r = put(x)
            if r is not None:
                last[s + 3] = r
                for g in groups[gi:gi + gper]:
                    for y in g: put(y)
                gi += gper
        for g in groups[gi:]:
            for y in g: put(y)
    for y in comp[ci:]: put(y)

def g1_compute(k, s_mt, s_ft, s_wave, lbl_end):
    srd(k, 48, P_WS, 32 * NT * 4096, H_OFF)
    k.e(f"s_and_b32 s52, s{s_wave}, 1")
    k.e(f"s_lshr_b32 s53, s{s_wave}, 1")
    k.e(f"s_lshl_b32 s57, s{s_wave}, 12")
    BA, AA = 10, 14
    k.e("v_and_b32 v18, 15, v0")
    k.e("v_lshrrev_b32 v19, 4, v0")
    k.e("v_lshrrev_b32 v20, 1, v18")
    k.e("v_xor_b32 v20, v20, v19")
    k.e("v_lshlrev_b32 v20, 4, v20")
    k.e("v_lshl_add_u32 v20, v18, 7, v20")
    k.e("s_lshl_b32 s58, s52, 13")
    k.e("s_lshl_b32 s59, s53, 12")
    k.e("s_add_u32 s58, s58, s59")
    k.e(f"v_add_u32 v{BA}, s58, v20")
    k.e(f"v_xor_b32 v{BA+1}, 64, v{BA}")
    k.e(f"v_xor_b32 v{BA+2}, 0x1000, v{BA}")
    k.e(f"v_xor_b32 v{BA+3}, 0x1040, v{BA}")
    k.e("v_lshrrev_b32 v20, 2, v18")
    k.e("v_and_b32 v21, 3, v18")
    k.e("v_lshl_add_u32 v22, v19, 3, v20")
    k.e("v_lshlrev_b32 v22, 8, v22")
    k.e("v_lshl_add_u32 v22, v21, 3, v22")
    k.e(f"v_add_u32 v22, {WPART}, v22")
    k.e("v_and_b32 v23, 1, v19")
    k.e("v_lshl_add_u32 v23, v23, 2, v20")
    k.e("s_lshl_b32 s58, s53, 2")
    k.e("s_lshl_b32 s59, s52, 1")
    k.e("s_add_u32 s58, s58, s59")
    k.e("v_xor_b32 v23, s58, v23")
    k.e(f"v_lshl_add_u32 v{AA}, v23, 5, v22")
    for fb in range(1, 4):
        k.e(f"v_xor_b32 v{AA+fb}, {32*fb}, v{AA}")
    ONE = 20
    for i in range(4): k.e(f"v_mov_b32 v{ONE+i}, 0x3f803f80")
    ACC, AR, AC, FR = 24, 88, 96, 112
    def reads(stage, ks, buf):
        so = (stage % 2) * SLOT
        L = []
        fa = FR + 32 * buf; fb_ = fa + 16
        for i in range(4):
            L.append(f"ds_read_b128 v[{fb_+4*i}:{fb_+4*i+3}], v{BA + 2*(i>>1) + ks} offset:{so + 2048*(i&1)}")
            L.append(f"ds_read_b64_tr_b16 v[{fa+4*i}:{fa+4*i+1}], v{AA+i} offset:{so + 8192*ks}")
            L.append(f"ds_read_b64_tr_b16 v[{fa+4*i+2}:{fa+4*i+3}], v{AA+i} offset:{so + 8192*ks + 1024}")
        if flag("NOREAD"): return L[:1]
        return L
    def mfmas(buf, first=False):
        fa = FR + 32 * buf; fb_ = fa + 16
        L = []
        def mm(d, a, b):
            c = "0" if first else f"v[{d}:{d+3}]"
            L.append(f"v_mfma_f32_16x16x32_bf16 v[{d}:{d+3}], v[{a}:{a+3}], v[{b}:{b+3}], {c}")
        for f in range(4):
            for m in range(4):
                mm(ACC + 16*f + 4*m, fa + 4*f, fb_ + 4*m)
        for i in range(2):
            mm(AR + 4*i, ONE, fb_ + 4*i)
            mm(AC + 4*i, fa + 4*i, ONE)
        if flag("NOMFMA"): return L[:1]
        if flag("NOSUM"): return L[:16]
        return L
    from conv import interleave
    for s in range(NSTAGE):
        k.c(f"---- stage {s}")
        k.e("s_waitcnt lgkmcnt(0)")
        k.e("s_barrier")
        if s == 0: stamp_mid(k, 0)
        if s == 4: stamp_mid(k, 1)
        tog = []
        if s > 0 and s % 2 == 0:
            tog = [f"v_xor_b32 v{r}, 0x10000, v{r}" for r in list(range(BA, BA+4)) + list(range(AA, AA+4))]
        if s == 0:
            for x in reads(s, 0, 0): k.e(x)
        else:
            for x in interleave(mfmas(1), reads(s, 0, 0)): k.e(x)
        k.e("s_waitcnt lgkmcnt(0)")
        nxt = []
        if (s + 1) % 2 == 0 and s + 1 < NSTAGE:
            nxt = [f"v_xor_b32 v{r}, 0x10000, v{r}" for r in list(range(BA, BA+4)) + list(range(AA, AA+4))]
        for x in interleave(mfmas(0, first=(s == 0)), reads(s, 1, 1) + nxt): k.e(x)
    k.e("s_waitcnt lgkmcnt(0)")
    for x in mfmas(1): k.e(x)
    stamp_mid(k, 2)
    k.c("exchange row/col sums")
    k.e("v_lshlrev_b32 v2, 4, v0")
    k.e("v_add_u32 v3, s57, v2")
    k.e(f"v_mov_b32 v{AR+1}, v{AR+4}")
    k.e(f"ds_write_b64 v3, v[{AR}:{AR+1}]")
    k.e(f"ds_write_b128 v3, v[{AC}:{AC+3}] offset:1024")
    k.e(f"ds_write_b128 v3, v[{AC+4}:{AC+7}] offset:2048")
    k.e("v_xor_b32 v4, 0x2000, v3")
    k.e("v_xor_b32 v5, 0x1000, v3")
    k.e("s_waitcnt lgkmcnt(0)")
    k.e("s_barrier")
    k.e(f"ds_read_b64 v[{AR+2}:{AR+3}], v4")
    k.e(f"ds_read_b128 v[{AC+8}:{AC+11}], v5 offset:1024")
    k.e(f"ds_read_b128 v[{AC+12}:{AC+15}], v5 offset:2048")
    k.e(f"s_lshl_b32 s58, s{s_ft}, 2")
    k.e("s_lshl_b32 s59, s53, 1")
    k.e("s_add_u32 s58, s58, s59")
    k.e(f"s_cmp_ge_u32 s58, {NT}")
    k.e(f"s_cbranch_scc1 {lbl_end}")
    k.e(f"s_lshl_b32 s59, s{s_mt}, 1")
    k.e("s_add_u32 s59, s59, s52")
    k.e(f"s_mul_i32 s59, s59, {NT}")
    k.e("s_add_u32 s58, s58, s59")
    k.e("s_lshl_b32 s58, s58, 12")
    k.e("s_lshl_b32 s60, s52, 12")
    k.e("s_add_u32 s61, s58, s60")
    k.e("s_xor_b32 s60, s60, 0x1000")
    k.e("s_add_u32 s62, s58, s60")
    k.e("s_lshl_b32 s60, s53, 11")
    k.e("v_add_u32 v6, s60, v2")
    k.e("v_xor_b32 v7, 0x800, v6")
    k.e("s_waitcnt lgkmcnt(0)")
    NM = FR
    for m in range(4):
        k.e(f"v_mul_f32 v{AR+m}, {-1.0/D!r}, v{AR+m}")
    k.e(f"v_cvt_pk_bf16_f32 v{AR+4}, v{AR}, v{AR+1}")
    k.e(f"v_cvt_pk_bf16_f32 v{AR+5}, v{AR+2}, v{AR+3}")
    for m in range(4):
        src = AR + 4 + (m >> 1)
        for h in range(2):
            if m & 1: k.e(f"v_and_b32 v{NM+2*m+h}, 0xffff0000, v{src}")
            else:     k.e(f"v_lshlrev_b32 v{NM+2*m+h}, 16, v{src}")
    OUT = FR + 8
    n = 0
    for p in range(2):
        for m in range(4):
            o = OUT + 4 * (n % 4); n += 1
            for ff in range(2):
                f = 2*p + ff
                a = ACC + 16*f + 4*m
                for h in range(2):
                    k.e(f"v_pk_fma_f32 v[{a+2*h}:{a+2*h+1}], v[{AC+4*f+2*h}:{AC+4*f+2*h+1}], v[{NM+2*m}:{NM+2*m+1}], v[{a+2*h}:{a+2*h+1}]")
                for h in range(2):
                    k.e(f"v_cvt_pk_bf16_f32 v{o+2*ff+h}, v{a+2*h}, v{a+2*h+1}")
            for i in range(4):
                k.e(f"v_pk_max_i16 v{o+i}, v{o+i}, 0")
            k.e(f"buffer_store_dwordx4 v[{o}:{o+3}], v{6+(m>>1)}, s[48:51], s{61+p} offen offset:{1024*(m&1)}")

def k1_kernel():
    k = Kern("k1_kernel")
    stamp_begin(k)
    k.e("s_cmp_ge_u32 s2, 256")
    k.e("s_cbranch_scc1 L_k1_end")
    load_ptrs(k)
    k.e("v_lshrrev_b32 v1, 6, v0")
    k.e("v_readfirstlane_b32 s3, v1")
    k.e("v_and_b32 v0, 63, v0")
    k.e("s_and_b32 s4, s2, 7")
    k.e("s_lshr_b32 s5, s2, 3")
    k.e("s_lshr_b32 s6, s4, 1")
    k.e("s_lshl_b32 s6, s6, 2")
    k.e("s_and_b32 s7, s5, 3")
    k.e("s_add_u32 s6, s6, s7")
    k.e("s_and_b32 s7, s4, 1")
    k.e("s_mul_i32 s7, s7, 7")
    k.e("s_lshr_b32 s8, s5, 2")
    k.e("s_add_u32 s7, s7, s8")
    k.e("s_cmp_ge_u32 s2, 224")
    k.e("s_cbranch_scc1 L_k1_free")
    k.e("s_cmp_lt_u32 s3, 4")
    k.e("s_cbranch_scc1 L_k1_mfma")
    k.e("s_sub_u32 s9, s3, 4")
    k.e("s_waitcnt lgkmcnt(0)")
    loader_setup(k, 6, 7, 9)
    for s in range(2):
        for x in dma(s): k.e(x)
    k.e("s_cmp_eq_u32 s9, 0")
    k.e("s_cbranch_scc1 L_k1_stats")
    k.e("s_cmp_eq_u32 s9, 1")
    k.e("s_cbranch_scc1 L_k1_rel")
    k.e("s_cmp_eq_u32 s9, 2")
    k.e("s_cbranch_scc1 L_k1_prep")
    k.e("s_sub_u32 s10, s2, 64")
    k.e("s_cmp_lt_u32 s10, 32")
    k.e("s_cbranch_scc0 L_k1_w7")
    k.e("s_add_u32 s2, s10, 224")
    k.e("L_k1_stats:")
    k.e("s_and_b32 s10, s2, 6")
    k.e("s_lshl_b32 s10, s10, 8")
    k.e("s_lshr_b32 s11, s2, 3")
    k.e("s_lshl_b32 s11, s11, 4")
    k.e("s_add_u32 s10, s10, s11")
    k.e("s_and_b32 s11, s2, 1")
    k.e("s_lshl_b32 s11, s11, 3")
    k.e("s_add_u32 s78, s10, s11")
    loader_body(k, split_aux(lambda r: aux.emit_stats(r, 78)))
    finish(k, 0)
    k.e("L_k1_w7:")
    k.e("s_sub_u32 s10, s2, 96")
    k.e("s_cmp_lt_u32 s10, 3")
    k.e("s_cbranch_scc0 L_k1_plain")
    srd(k, 40, P_WS, 4096, FL_OFF)
    k.e("s_lshl_b32 s10, s10, 10")
    k.e("v_lshlrev_b32 v1, 4, v0")
    for i in range(4): k.e(f"v_mov_b32 v{4+i}, 0")
    k.e("buffer_store_dwordx4 v[4:7], v1, s[40:43], s10 offen")
    k.e("s_waitcnt vmcnt(0)")
    k.e("L_k1_plain:")
    loader_body(k, None)
    finish(k, 0)
    k.e("L_k1_rel:")
    k.e("s_cmp_ge_u32 s2, 216")
    k.e("s_cbranch_scc1 L_k1_plain")
    k.e(f"s_mov_b32 s78, {REL_LDS}")
    loader_body(k, split_aux(lambda r: aux.emit_relayout(r, 2, 78)))
    finish(k, 0)
    k.e("L_k1_prep:")
    k.e("s_cmp_lt_u32 s2, 160")
    k.e("s_cbranch_scc1 L_k1_plain")
    k.e("s_add_u32 s78, s2, 96")
    loader_body(k, split_aux(lambda r: aux.emit_prep(r, 78)))
    finish(k, 0)
    k.e("L_k1_free:")
    k.e("s_sub_u32 s78, s2, 224")
    k.e("s_lshl_b32 s78, s78, 3")
    k.e("s_add_u32 s78, s78, s3")
    k.e("s_waitcnt lgkmcnt(0)")
    aux.emit_prep(k, 78)
    finish(k, 2)
    k.e("L_k1_mfma:")
    k.e("s_waitcnt lgkmcnt(0)")
    g1_compute(k, 6, 7, 3, "L_k1_end")
    finish(k, 1)
    k.e("L_k1_end:")
    k.e("s_endpgm")
    return k
```

```python
from common import *
import conv
from conv import interleave, CONV_LDS

NSTEP = 14
PF = 4
G_ACC = 8
G_BUF = 88
RED_LDS = 4 * CONV_LDS
CNT_LDS = RED_LDS + 61440
K2_LDS = CNT_LDS + 64
XO, YO, SO = 0, 3072, 6144
SC1 = " sc1"

def ids(k):
    k.e("s_and_b32 s4, s2, 7")
    k.e("s_lshr_b32 s5, s2, 3")
    k.e("s_lshr_b32 s6, s4, 1")
    k.e("s_lshl_b32 s6, s6, 3")
    k.e("s_lshr_b32 s7, s5, 2")
    k.e("s_add_u32 s6, s6, s7")
    k.e("s_and_b32 s7, s4, 1")
    k.e("s_lshl_b32 s7, s7, 2")
    k.e("s_and_b32 s8, s5, 3")
    k.e("s_add_u32 s7, s7, s8")

def xo_offsets(k, s_mt, s_dt, s_w, vb):
    k.e(f"s_lshl_b32 s53, s{s_mt}, 2")
    k.e(f"s_add_u32 s53, s53, s{s_w}")
    k.e("s_mul_i32 s54, s53, 20480")
    k.e(f"s_mul_i32 s55, s{s_dt}, 160")
    k.e("s_add_u32 s54, s54, s55")
    for i in range(3):
        k.e(f"v_add_u32 v1, {64*i}, v0")
        k.e("v_mul_u32_u24 v2, 6554, v1")
        k.e("v_lshrrev_b32 v2, 16, v2")
        k.e("v_mul_u32_u24 v2, 1120, v2")
        k.e(f"v_lshl_add_u32 v{vb+i}, v1, 4, v2")
    k.e("v_mov_b32 v2, 0x40000000")
    k.e("v_cmp_gt_u32 vcc, 32, v0")
    k.e(f"v_cndmask_b32 v{vb+2}, v2, v{vb+2}, vcc")

def g2_setup(k, s_mt, s_dt, s_w):
    srd(k, 40, P_WS, 32 * NT * 4096, H_OFF)
    srd(k, 44, P_WS, NB_W, W2_OFF)
    k.e(f"s_mul_i32 s48, s{s_w}, 14")
    k.e(f"s_cmp_eq_u32 s{s_w}, 3")
    k.e("s_cselect_b32 s48, 41, s48")
    k.e(f"s_mul_i32 s49, s{s_mt}, {NT}")
    k.e("s_add_u32 s49, s49, s48")
    k.e("s_lshl_b32 s49, s49, 12")
    k.e(f"s_mul_i32 s50, s{s_dt}, {NT}")
    k.e("s_add_u32 s50, s50, s48")
    k.e("s_mul_i32 s50, s50, 5120")
    k.e(f"s_cmp_ge_u32 s{s_w}, 2")
    k.e("s_cselect_b32 s51, 0x40000000, 0")
    k.e("v_lshlrev_b32 v232, 4, v0")
    k.e("v_add_u32 v233, 4096, v232")
    k.e(f"s_lshl_b32 s52, s{s_w}, 10")
    k.e("v_add_u32 v234, s52, v232")
    for m in range(1, 4):
        k.e(f"v_xor_b32 v{234+m}, {1024*m}, v234")

def g2_issue(step):
    b = G_BUF + (step % PF) * 36
    L = []
    if step == NSTEP - 1:
        L.append("s_add_u32 s49, s49, s51")
        L.append("s_add_u32 s50, s50, s51")
    for m in range(4):
        L.append(f"buffer_load_dwordx4 v[{b+4*m}:{b+4*m+3}], v{234+m}, s[40:43], s49 offen")
    for d in range(4):
        L.append(f"buffer_load_dwordx4 v[{b+16+4*d}:{b+16+4*d+3}], v232, s[44:47], s50 offen offset:{1024*d}")
    L.append(f"buffer_load_dwordx4 v[{b+32}:{b+35}], v233, s[44:47], s50 offen")
    if step < NSTEP - 1:
        L.append("s_add_u32 s49, s49, 4096")
        L.append("s_add_u32 s50, s50, 5120")
    return L

def g2_mfmas(step):
    b = G_BUF + (step % PF) * 36
    L = []
    for d in range(5):
        for m in range(4):
            a = G_ACC + 16*d + 4*m
            c = "0" if step == 0 else f"v[{a}:{a+3}]"
            L.append(f"v_mfma_f32_16x16x32_bf16 v[{a}:{a+3}], v[{b+16+4*d}:{b+16+4*d+3}], v[{b+4*m}:{b+4*m+3}], {c}")
    return L

def spread2(m, loads):
    out = []; fi = 0
    for i, x in enumerate(m):
        out.append(x)
        if i % 2 == 0:
            while fi < len(loads) and loads[fi].startswith("s_"):
                out.append(loads[fi]); fi += 1
            if fi < len(loads):
                out.append(loads[fi]); fi += 1
    return out + loads[fi:]

def g2_wave(k, s_mt, s_dt, s_w):
    g2_setup(k, s_mt, s_dt, s_w)
    for s in range(0, PF - 1):
        for x in g2_issue(s): k.e(x)
    srd(k, 84, P_WS, 16384, ST_OFF)
    srd(k, 92, P_OUT, NB_X)
    xo_offsets(k, s_mt, s_dt, s_w, 238)
    k.e(f"s_mul_i32 s56, s{s_w}, {CONV_LDS}")
    for m in range(1, 4):
        k.e(f"s_xor_b32 s58, s{s_w}, {m}")
        k.e("s_mul_i32 s58, s58, 15360")
        k.e(f"s_add_u32 s58, s58, {RED_LDS}")
        k.e(f"v_add_u32 v{240+m}, s58, v232")
    k.e(f"s_mul_i32 s58, s{s_w}, 15360")
    k.e(f"s_add_u32 s58, s58, {RED_LDS}")
    k.e("v_add_u32 v244, s58, v232")
    k.e("v_add_u32 v245, s56, v232")
    k.e("v_and_b32 v1, 15, v0")
    k.e("v_mul_u32_u24 v246, 160, v1")
    k.e("v_lshrrev_b32 v2, 4, v0")
    k.e("v_lshl_add_u32 v246, v2, 3, v246")
    k.e("v_add_u32 v246, s56, v246")
    k.e("v_lshlrev_b32 v1, 3, v1")
    k.e("s_lshl_b32 s57, s53, 7")
    for s in range(NSTEP):
        issued = min(NSTEP, s + PF - 1)
        extra = 1 if s >= NSTEP - PF + 2 else 0
        k.e(f"s_waitcnt vmcnt({9*(issued - s - 1) + extra})")
        if s == 0: stamp_mid(k, 0)
        nxt = s + PF - 1
        fill = g2_issue(nxt) if nxt < NSTEP else []
        if nxt == NSTEP: fill = ["buffer_load_dwordx2 v[248:249], v1, s[84:87], s57 offen"]
        for x in spread2(g2_mfmas(s), fill): k.e(x)
    stamp_mid(k, 1)
    for m in range(1, 4):
        for d in range(5):
            a = G_ACC + 16*d + 4*m
            k.e(f"ds_write_b128 v{240+m}, v[{a}:{a+3}] offset:{(m-1)*5120 + 1024*d}")
    k.e("s_waitcnt vmcnt(0)")
    k.e("v_mul_f32 v250, 0xbfb8aa3b, v249")
    k.e("v_mul_f32 v251, 0xbfb8aa3b, v249")
    k.e("v_mov_b32 v252, 1.0")
    k.e("v_mov_b32 v253, 1.0")
    k.e("s_waitcnt lgkmcnt(0)")
    k.e("s_barrier")
    stamp_mid(k, 2)
    SF, XF = G_BUF, G_BUF + 20
    for d in range(5):
        for m in range(1, 4):
            a = G_ACC + 16*d + 4*m
            k.e(f"ds_read_b128 v[{a}:{a+3}], v244 offset:{(m-1)*5120 + 1024*d}")
        k.e(f"ds_read_b128 v[{SF+4*d}:{SF+4*d+3}], v245 offset:{SO + 1024*d}")
        k.e(f"ds_read_b128 v[{XF+4*d}:{XF+4*d+3}], v245 offset:{SO + 5120 + 1024*d}")
    for d in range(5):
        k.e(f"s_waitcnt lgkmcnt({min(15, 20-5*d)})")
        a = G_ACC + 16*d
        for h in range(2):
            k.e(f"v_pk_add_f32 v[{a+2*h}:{a+2*h+1}], v[{a+2*h}:{a+2*h+1}], v[{a+4+2*h}:{a+4+2*h+1}]")
            k.e(f"v_pk_add_f32 v[{a+8+2*h}:{a+8+2*h+1}], v[{a+8+2*h}:{a+8+2*h+1}], v[{a+12+2*h}:{a+12+2*h+1}]")
        for h in range(2):
            k.e(f"v_pk_add_f32 v[{a+2*h}:{a+2*h+1}], v[{a+2*h}:{a+2*h+1}], v[{a+8+2*h}:{a+8+2*h+1}]")
        e = a + 4
        for h in range(2):
            k.e(f"v_pk_mul_f32 v[{e+2*h}:{e+2*h+1}], v[{a+2*h}:{a+2*h+1}], v[250:251]")
        for r in range(4):
            k.e(f"v_exp_f32 v{e+r}, v{e+r}")
        for h in range(2):
            s = SF + 4*d + 2*h
            k.e(f"v_pk_mul_f32 v[{a+2*h}:{a+2*h+1}], v[{a+2*h}:{a+2*h+1}], v[{s}:{s+1}]")
        for h in range(2):
            k.e(f"v_pk_add_f32 v[{e+2*h}:{e+2*h+1}], v[{e+2*h}:{e+2*h+1}], v[252:253]")
        for r in range(4):
            k.e(f"v_rcp_f32 v{e+r}, v{e+r}")
        for h in range(2):
            x = XF + 4*d + 2*h
            k.e(f"v_pk_fma_f32 v[{a+2*h}:{a+2*h+1}], v[{a+2*h}:{a+2*h+1}], v[{e+2*h}:{e+2*h+1}], v[{x}:{x+1}]")
        k.e(f"v_cvt_pk_bf16_f32 v{a+8}, v{a}, v{a+1}")
        k.e(f"v_cvt_pk_bf16_f32 v{a+9}, v{a+2}, v{a+3}")
    for d in range(5):
        a = G_ACC + 16*d
        k.e(f"ds_write_b64 v246, v[{a+8}:{a+9}] offset:{XO + 32*d}")
    k.e("s_waitcnt lgkmcnt(0)")
    O = G_BUF + 40
    for i in range(3):
        k.e(f"ds_read_b128 v[{O+4*i}:{O+4*i+3}], v245 offset:{XO + 1024*i}")
    for i in range(3):
        k.e(f"s_waitcnt lgkmcnt({2-i})")
        k.e(f"buffer_store_dwordx4 v[{O+4*i}:{O+4*i+3}], v{238+i}, s[92:95], s54 offen")

def a_wave(k, s_mt, s_dt, s_w):
    k.e(f"s_mul_i32 s9, s{s_w}, {CONV_LDS}")
    k.e("s_lshr_b32 s78, s5, 1")
    k.e("s_lshl_b32 s78, s78, 3")
    k.e("s_add_u32 s78, s78, s4")
    k.e("s_mul_i32 s78, s78, 5")
    k.e("s_and_b32 s79, s5, 1")
    k.e("s_mul_i32 s80, s79, 3")
    k.e("s_add_u32 s78, s78, s80")
    k.e(f"s_add_u32 s78, s78, s{s_w}")
    k.e(f"s_add_u32 s79, s79, s{s_w}")
    srd(k, 88, P_WS, 4096, FL_OFF)
    k.e("s_cmp_ge_u32 s79, 3")
    k.e("s_cbranch_scc1 L_k2_aprep")
    k.e("s_setprio 3")
    conv.conv_setup(k, 78, 9)
    conv.conv_stage(k, 78, 9, 0)
    stamp_mid(k, 0)
    k.e(f"s_setprio {flag('PA', 0)}")
    conv.conv_main(k, "k2")
    k.e("s_setprio 3")
    conv.conv_epilogue(k, 78, SC1)
    k.e("s_lshl_b32 s79, s78, 2")
    k.e("v_mov_b32 v1, 0")
    k.e("v_mov_b32 v2, 1")
    k.e("s_waitcnt vmcnt(0)")
    k.e("s_mov_b64 exec, 1")
    k.e(f"buffer_store_dword v2, v1, s[88:91], s79 offen{SC1}")
    k.e("s_mov_b64 exec, -1")
    stamp_mid(k, 1)
    k.e("L_k2_aprep:")
    k.e("s_setprio 3")
    srd(k, 80, P_Q, NB_X)
    srd(k, 84, P_WS, 16384, ST_OFF)
    srd(k, 68, P_WS, D * S * 2, YT_OFF)
    xo_offsets(k, s_mt, s_dt, s_w, 8)
    for i in range(3):
        k.e(f"s_add_u32 m0, s9, {XO + 1024*i}")
        k.e(f"buffer_load_dwordx4 v{8+i}, s[80:83], s54 offen lds")
    k.e("v_and_b32 v1, 15, v0")
    k.e("v_lshlrev_b32 v3, 3, v1")
    k.e("s_lshl_b32 s57, s53, 7")
    k.e("buffer_load_dwordx2 v[12:13], v3, s[84:87], s57 offen")
    k.e("v_lshrrev_b32 v4, 3, v0")
    k.e("v_lshlrev_b32 v4, 12, v4")
    k.e("v_and_b32 v2, 7, v0")
    k.e("v_lshl_add_u32 v4, v2, 4, v4")
    k.e(f"s_mul_i32 s58, s{s_dt}, 10")
    k.e(f"s_add_u32 s58, s58, s{s_w}")
    k.e("s_lshl_b32 s58, s58, 15")
    k.e(f"s_lshl_b32 s59, s{s_mt}, 7")
    k.e("s_add_u32 s58, s58, s59")
    k.e("v_min_u32 v5, 39, v0")
    k.e("v_lshlrev_b32 v5, 3, v5")
    k.e(f"s_mul_i32 s59, s{s_dt}, 320")
    k.e(f"v_mov_b32 v2, {CNT_LDS}")
    k.e(f"s_cmp_eq_u32 s{s_w}, 0")
    k.e("s_cbranch_scc1 L_k2_poller")
    k.e("s_setprio 0")
    k.e("L_k2_lwait:")
    k.e("s_sleep 4")
    k.e("ds_read_b32 v3, v2 offset:4")
    k.e("s_waitcnt lgkmcnt(0)")
    k.e("v_readfirstlane_b32 s60, v3")
    k.e("s_cmp_eq_u32 s60, 0")
    k.e("s_cbranch_scc1 L_k2_lwait")
    k.e("s_setprio 3")
    k.e("s_branch L_k2_go")
    k.e("L_k2_poller:")
    k.e("s_mov_b32 s60, 0")
    k.e("L_k2_poll:")
    k.e(f"buffer_load_dwordx2 v[6:7], v5, s[88:91], s59 offen{SC1}")
    k.e("s_waitcnt vmcnt(0)")
    k.e("v_and_b32 v6, v6, v7")
    k.e("v_cmp_ne_u32 vcc, 1, v6")
    k.e("s_cmp_eq_u64 vcc, 0")
    k.e("s_cbranch_scc1 L_k2_ready")
    k.e(f"s_sleep {flag('SLP', 8)}")
    k.e("s_add_u32 s60, s60, 1")
    k.e("s_cmp_lt_u32 s60, 0x40000")
    k.e("s_cbranch_scc1 L_k2_poll")
    k.e("L_k2_ready:")
    k.e("v_mov_b32 v3, 1")
    k.e("ds_write_b32 v2, v3 offset:4")
    k.e("L_k2_go:")
    stamp_mid(k, 2)
    for i in range(3):
        if i == 2:
            k.e(f"s_cmp_ge_u32 s{s_w}, 2")
            k.e("s_cbranch_scc1 L_k2_noy")
        k.e(f"s_add_u32 m0, s9, {YO + 1024*i}")
        k.e(f"buffer_load_dwordx4 v4, s[68:71], s58 offen{SC1} lds")
        if i < 2: k.e(f"s_add_u32 s58, s58, {4*8*4096}")
    k.e("L_k2_noy:")
    k.e("v_mul_u32_u24 v5, 160, v1")
    k.e("v_lshrrev_b32 v2, 4, v0")
    k.e("v_lshl_add_u32 v5, v2, 3, v5")
    k.e("v_add_u32 v5, s9, v5")
    k.e("v_lshrrev_b32 v6, 5, v0")
    k.e(f"v_mul_u32_u24 v6, {CONV_LDS}, v6")
    k.e("v_bfe_u32 v7, v0, 2, 3")
    k.e("v_lshl_add_u32 v6, v7, 7, v6")
    k.e("v_and_b32 v7, 3, v0")
    k.e("v_lshl_add_u32 v6, v7, 3, v6")
    k.e(f"s_lshl_b32 s59, s{s_w}, 5")
    k.e("v_add_u32 v6, s59, v6")
    k.e("v_lshlrev_b32 v7, 4, v0")
    k.e("v_add_u32 v7, s9, v7")
    k.e(f"v_mov_b32 v2, {CNT_LDS}")
    k.e("v_mov_b32 v3, 1")
    k.e("s_waitcnt vmcnt(0)")
    k.e("s_mov_b64 exec, 1")
    k.e("ds_add_u32 v2, v3")
    k.e("s_mov_b64 exec, -1")
    XR, YR = 16, 26
    for d in range(5):
        k.e(f"ds_read_b64 v[{XR+2*d}:{XR+2*d+1}], v5 offset:{XO + 32*d}")
    k.e("v_mul_f32 v14, v13, v13")
    k.e("v_mul_f32 v15, v13, v13")
    k.e("v_sub_f32 v12, 0, v12")
    k.e("v_mov_b32 v13, v12")
    k.e("L_k2_cnt:")
    k.e("ds_read_b32 v3, v2")
    k.e("s_waitcnt lgkmcnt(0)")
    k.e("v_readfirstlane_b32 s59, v3")
    k.e("s_cmp_lt_u32 s59, 4")
    k.e("s_cbranch_scc1 L_k2_cnt")
    for d in range(5):
        k.e(f"ds_read_b64_tr_b16 v[{YR+2*d}:{YR+2*d+1}], v6 offset:{YO + 2*(d&1)*CONV_LDS + (d>>1)*1024}")
    XF, SF = 40, 60
    k.e("s_waitcnt lgkmcnt(0)")
    for d in range(5):
        for h in range(2):
            x = XF + 4*d + 2*h; s = SF + 4*d + 2*h
            unpack(k, x, x+1, XR + 2*d + h)
            unpack(k, s, s+1, YR + 2*d + h)
            k.e(f"v_pk_add_f32 v[36:37], v[{x}:{x+1}], v[12:13]")
            k.e(f"v_pk_mul_f32 v[{s}:{s+1}], v[{s}:{s+1}], v[14:15]")
            k.e(f"v_pk_mul_f32 v[{s}:{s+1}], v[{s}:{s+1}], v[36:37]")
        k.e(f"ds_write_b128 v7, v[{SF+4*d}:{SF+4*d+3}] offset:{SO + 1024*d}")
        k.e(f"ds_write_b128 v7, v[{XF+4*d}:{XF+4*d+3}] offset:{SO + 5120 + 1024*d}")
    k.e("s_waitcnt lgkmcnt(0)")

def k2_kernel(prio_b=1, prio_a=0):
    k = Kern("k2_kernel")
    stamp_begin(k)
    k.e("s_cmp_ge_u32 s2, 256")
    k.e("s_cbranch_scc1 L_k2_end")
    load_ptrs(k)
    k.e("v_lshrrev_b32 v1, 6, v0")
    k.e("v_readfirstlane_b32 s3, v1")
    k.e("v_and_b32 v0, 63, v0")
    ids(k)
    k.e("s_and_b32 s101, s3, 3")
    k.e("v_mov_b32 v1, 0")
    k.e(f"v_mov_b32 v2, {CNT_LDS}")
    k.e("ds_write_b32 v2, v1")
    k.e("ds_write_b32 v2, v1 offset:4")
    k.e("s_cmp_lt_u32 s3, 4")
    k.e("s_waitcnt lgkmcnt(0)")
    k.e("s_barrier")
    k.e("s_cbranch_scc1 L_k2_a")
    if prio_b: k.e(f"s_setprio {prio_b}")
    g2_wave(k, 6, 7, 101)
    finish(k, 4)
    k.e("L_k2_a:")
    a_wave(k, 6, 7, 101)
    finish(k, 3)
    k.e("L_k2_end:")
    k.e("s_endpgm")
    return k
```

```python
import sys, os
from common import *
import k1, k2
hdr = open("recurrent_scan__ssm_conv_h3__dense_activation_relu__prompt.s.ref").read().split("; Override")[0]
pb = int(os.environ.get("PB", "1")); pa = int(os.environ.get("PA", "0"))
ks = [(k1.k1_kernel(), 256, 512, k1.K1_LDS), (k2.k2_kernel(pb, pa), 256, 512, k2.K2_LDS)]
if flag('K1ONLY'): ks = ks[:1]
out = hdr
for k, g, b, l in ks:
    out += f"; @launch kernel={k.name} grid=({g},1,1) block=({b},1,1) lds={l}\n"
out += '.amdgcn_target "amdgcn-amd-amdhsa--gfx950"\n.text\n'
for k, *_ in ks: out += k.body()
out += '.section .rodata,"a"\n'
for k, *_ in ks: out += k.desc()
open(sys.argv[1], "w").write(out)
```

```python
import sys, os
from common import *
import k1, k2
hdr = open("recurrent_scan__ssm_conv_h3__dense_activation_relu__prompt.s.ref").read().split("; Override")[0]
tgt = sys.argv[2]
def chase():
    k = Kern("chase_kernel")
    k.e("s_cmp_ge_u32 s2, 1")
    k.e("s_cbranch_scc1 L_ch_end")
    load_ptrs(k)
    k.e("s_waitcnt lgkmcnt(0)")
    if tgt == "bx": srd(k, 40, P_BX, NB_X)
    elif tgt == "out": srd(k, 40, P_OUT, NB_X)
    elif tgt == "none": srd(k, 40, P_BX, 0)
    else: srd(k, 40, P_WS, NB_X, int(tgt) << 20)
    k.e("v_mov_b32 v1, 0")
    k.e("s_mov_b32 s44, 0")
    k.e("L_ch_loop:")
    k.e("buffer_load_dword v2, v1, s[40:43], 0 offen")
    k.e("s_waitcnt vmcnt(0)")
    k.e("v_and_b32 v2, 0, v2")
    k.e("v_add_u32 v1, v1, v2")
    k.e(f"v_add_u32 v1, {16384+128}, v1")
    k.e("s_add_u32 s44, s44, 1")
    k.e("s_cmp_lt_u32 s44, 100")
    k.e("s_cbranch_scc1 L_ch_loop")
    k.e("L_ch_end:")
    k.e("s_endpgm")
    return k
ks = [(chase(), 1, 64, 0), (k1.k1_kernel(), 256, 512, k1.K1_LDS), (k2.k2_kernel(1, 2), 256, 512, k2.K2_LDS)]
out = hdr
for k, g, b, l in ks:
    out += f"; @launch kernel={k.name} grid=({g},1,1) block=({b},1,1) lds={l}\n"
out += '.amdgcn_target "amdgcn-amd-amdhsa--gfx950"\n.text\n'
for k, *_ in ks: out += k.body()
out += '.section .rodata,"a"\n'
for k, *_ in ks: out += k.desc()
open(sys.argv[1], "w").write(out)
```

```python
import sys, os
from common import *
import k1, k2
hdr = open("recurrent_scan__ssm_conv_h3__dense_activation_relu__prompt.s.ref").read().split("; Override")[0]
mode = sys.argv[2]; NL = int(sys.argv[3])
def bw():
    k = Kern("bw_kernel")
    k.e("s_cmp_ge_u32 s2, 256")
    k.e("s_cbranch_scc1 L_bw_end")
    load_ptrs(k)
    k.e("v_lshrrev_b32 v1, 6, v0")
    k.e("v_readfirstlane_b32 s3, v1")
    k.e("v_and_b32 v0, 63, v0")
    k.e("v_lshlrev_b32 v1, 4, v0")
    k.e("s_lshl_b32 s4, s2, 2")
    k.e("s_add_u32 s4, s4, s3")
    k.e("s_lshl_b32 s4, s4, 10")
    k.e("s_waitcnt lgkmcnt(0)")
    srd(k, 40, P_WS, 128 << 20, 64 << 20)
    for i in range(128): k.e(f"v_mov_b32 v{8+i}, 0")
    k.e("s_mov_b32 s44, 0")
    if NL:
        k.e("L_bw_loop:")
        for i in range(32):
            if mode == "rd": k.e(f"buffer_load_dwordx4 v[{8+4*i}:{8+4*i+3}], v1, s[40:43], s4 offen")
            else: k.e(f"buffer_store_dwordx4 v[{8+4*i}:{8+4*i+3}], v1, s[40:43], s4 offen")
            k.e("s_add_u32 s4, s4, 0x100000")
        k.e("s_add_u32 s44, s44, 1")
        k.e(f"s_cmp_lt_u32 s44, {NL}")
        k.e("s_cbranch_scc1 L_bw_loop")
    k.e("s_waitcnt vmcnt(0)")
    k.e("L_bw_end:")
    k.e("s_endpgm")
    return k
ks = [(bw(), 256, 256, 0), (k1.k1_kernel(), 256, 512, k1.K1_LDS), (k2.k2_kernel(1, 2), 256, 512, k2.K2_LDS)]
out = hdr
for k, g, b, l in ks:
    out += f"; @launch kernel={k.name} grid=({g},1,1) block=({b},1,1) lds={l}\n"
out += '.amdgcn_target "amdgcn-amd-amdhsa--gfx950"\n.text\n'
for k, *_ in ks: out += k.body()
out += '.section .rodata,"a"\n'
for k, *_ in ks: out += k.desc()
open(sys.argv[1], "w").write(out)
```

```python
from common import *

def emit_stats(k, s_row0, sc=""):
    srd(k, 40, P_Q, NB_X)
    srd(k, 44, P_WS, 16384, ST_OFF)
    k.e(f"s_mul_i32 s48, s{s_row0}, 1280")
    k.e("v_lshrrev_b32 v1, 3, v0")
    k.e("v_mul_u32_u24 v2, 1280, v1")
    k.e("v_and_b32 v3, 7, v0")
    k.e("v_lshl_add_u32 v2, v3, 4, v2")
    RAW = 8
    UNP = 48
    for i in range(10):
        k.e(f"buffer_load_dwordx4 v[{RAW+4*i}:{RAW+4*i+3}], v2, s[40:43], s48 offen offset:{128*i}")
    ACC = 4
    for i in range(10):
        k.e(f"s_waitcnt vmcnt({9-i})")
        for j in range(4):
            unpack(k, UNP + 8*i + 2*j, UNP + 8*i + 2*j + 1, RAW + 4*i + j)
        for j in range(4):
            u = UNP + 8*i + 2*j
            a = ACC + 2 * (j & 1)
            if i == 0 and j < 2:
                k.e(f"v_pk_add_f32 v[{a}:{a+1}], v[{u}:{u+1}], v[{u+4}:{u+5}]")
            elif i == 0:
                pass
            else:
                k.e(f"v_pk_add_f32 v[{a}:{a+1}], v[{a}:{a+1}], v[{u}:{u+1}]")
    def reduce8(dst):
        k.e("v_pk_add_f32 v[4:5], v[4:5], v[6:7]")
        k.e(f"v_add_f32 v{dst}, v4, v5")
        k.e(f"v_add_f32_dpp v{dst}, v{dst}, v{dst} quad_perm:[1,0,3,2] row_mask:0xf bank_mask:0xf")
        k.e(f"v_add_f32_dpp v{dst}, v{dst}, v{dst} quad_perm:[2,3,0,1] row_mask:0xf bank_mask:0xf")
        k.e(f"v_add_f32_dpp v{dst}, v{dst}, v{dst} row_half_mirror row_mask:0xf bank_mask:0xf")
    reduce8(8)
    k.e(f"v_mul_f32 v8, {1.0/D!r}, v8")
    k.e("v_sub_f32 v10, 0, v8")
    k.e("v_sub_f32 v11, 0, v8")
    for i in range(40):
        u = UNP + 2*i
        k.e(f"v_pk_add_f32 v[{u}:{u+1}], v[{u}:{u+1}], v[10:11]")
    for i in range(40):
        u = UNP + 2*i
        a = ACC + 2 * (i & 1)
        if i < 2:
            k.e(f"v_pk_mul_f32 v[{a}:{a+1}], v[{u}:{u+1}], v[{u}:{u+1}]")
        else:
            k.e(f"v_pk_fma_f32 v[{a}:{a+1}], v[{u}:{u+1}], v[{u}:{u+1}], v[{a}:{a+1}]")
    reduce8(9)
    k.e(f"v_mul_f32 v9, {1.0/D!r}, v9")
    k.e("v_cvt_pk_bf16_f32 v12, v8, v9")
    k.e("v_lshlrev_b32 v14, 16, v12")
    k.e("v_and_b32 v13, 0xffff0000, v12")
    k.e("v_add_f32 v13, 0x3727c5ac, v13")
    k.e("v_cvt_pk_bf16_f32 v13, v13, v13")
    k.e("v_and_b32 v13, 0xffff0000, v13")
    k.e("v_sqrt_f32 v13, v13")
    k.e("v_cvt_pk_bf16_f32 v13, v13, v13")
    k.e("v_and_b32 v13, 0xffff0000, v13")
    k.e("v_rcp_f32 v15, v13")
    k.e("v_lshlrev_b32 v1, 3, v1")
    k.e(f"s_lshl_b32 s48, s{s_row0}, 3")
    k.e("v_cmp_eq_u32 vcc, 0, v3")
    k.e("s_and_saveexec_b64 s[50:51], vcc")
    k.e(f"buffer_store_dwordx2 v[14:15], v1, s[44:47], s48 offen{sc}")
    k.e("s_mov_b64 exec, s[50:51]")

def emit_prep(k, s_unit, s_lds=None, sc=""):
    srd(k, 40, P_K, NB_X)
    srd(k, 44, P_V, NB_X)
    srd(k, 52, P_SH, D * 8)
    srd(k, 56, P_WS, NB_T, UR_OFF)
    k.e(f"s_mul_i32 s48, s{s_unit}, 6554")
    k.e("s_lshr_b32 s48, s48, 16")
    k.e("s_mul_i32 s49, s48, 10")
    k.e(f"s_sub_u32 s49, s{s_unit}, s49")
    k.e("v_and_b32 v1, 7, v0")
    k.e("v_lshrrev_b32 v2, 3, v0")
    k.e("s_mul_i32 s51, s48, 81920")
    k.e("s_lshl_b32 s60, s49, 7")
    k.e("s_add_u32 s51, s51, s60")
    k.e("v_mul_u32_u24 v4, 10240, v2")
    k.e("v_lshl_add_u32 v4, v1, 4, v4")
    k.e("v_add_u32 v4, s51, v4")
    k.e("v_subrev_u32 v5, 3840, v4")
    k.e("s_movk_i32 s61, 5120")
    k.e("v_lshlrev_b32 v3, 4, v0")
    k.e("s_lshl_b32 s50, s49, 9")
    k.e(f"s_mov_b32 m0, s{s_lds}")
    k.e("buffer_load_dwordx4 v3, s[52:55], s50 offen lds")
    TR = 8
    KR = 24
    VR = 68
    def kload(j):
        so = "0" if j < 4 else "s61"
        k.e(f"buffer_load_dwordx4 v[{KR+12+4*j}:{KR+12+4*j+3}], v4, s[40:43], {so} offen offset:{1280*(j%4)}")
    def vload(j):
        so = "0" if j < 4 else "s61"
        k.e(f"buffer_load_dwordx4 v[{VR+4*j}:{VR+4*j+3}], v4, s[44:47], {so} offen offset:{1280*(j%4)}")
    for j in range(3):
        kload(5 + j)
        k.e(f"buffer_load_dwordx4 v[{KR+4*j}:{KR+4*j+3}], v5, s[40:43], 0 offen offset:{1280*j}")
    for j in range(8):
        if j < 5: kload(j)
        vload(j)
    k.e(f"v_lshl_add_u32 v6, v1, 6, s{s_lds}")
    k.e("s_waitcnt vmcnt(19)")
    for i in range(4):
        k.e(f"ds_read_b128 v[{TR+4*i}:{TR+4*i+3}], v6 offset:{16*i}")
    k.e("v_sub_u32 v7, 7, v2")
    k.e("v_xor_b32 v7, v7, v1")
    k.e("v_lshlrev_b32 v7, 4, v7")
    k.e("v_lshl_add_u32 v7, v1, 10, v7")
    k.e(f"v_add_u32 v7, s{s_lds}, v7")
    k.e("v_xor_b32 v6, v1, v2")
    k.e("v_lshlrev_b32 v6, 4, v6")
    k.e("v_lshl_add_u32 v6, v2, 10, v6")
    k.e(f"v_add_u32 v6, s{s_lds}, v6")
    k.e(f"v_mul_u32_u24 v3, {8*RS}, v2")
    k.e("v_lshl_add_u32 v3, v1, 4, v3")
    TP = 100
    k.e("s_waitcnt lgkmcnt(0)")
    for c in range(8):
        unpack(k, TP + 0*8 + c, TP + 1*8 + c, TR + 2*c)
        unpack(k, TP + 2*8 + c, TP + 3*8 + c, TR + 2*c + 1)
    KW = 132
    VU = 164
    KV = 172
    OUT = 188
    def unpack_row(dst, src):
        for i in range(4):
            unpack(k, dst + 2*i, dst + 2*i + 1, src + i)
    k.e("s_waitcnt vmcnt(13)")
    for j in range(3):
        unpack_row(KW + 8*j, KR + 4*j)
    for r in range(8):
        left = (13 - 2*(r+1)) if r < 5 else (7 - r)
        k.e(f"s_waitcnt vmcnt({left})")
        unpack_row(KW + 8*((r+3) % 4), KR + 12 + 4*r)
        unpack_row(VU, VR + 4*r)
        kv = KV + 8*(r & 1)
        for i in range(4):
            d = kv + 2*i
            for j in (3, 2, 1, 0):
                w = KW + 8*((r + 3 - j) % 4) + 2*i
                t = TP + 8*j + 2*i
                if j == 3:
                    k.e(f"v_pk_mul_f32 v[{d}:{d+1}], v[{w}:{w+1}], v[{t}:{t+1}]")
                else:
                    k.e(f"v_pk_fma_f32 v[{d}:{d+1}], v[{w}:{w+1}], v[{t}:{t+1}], v[{d}:{d+1}]")
        for i in range(4):
            d = kv + 2*i
            k.e(f"v_pk_mul_f32 v[{d}:{d+1}], v[{d}:{d+1}], v[{VU+2*i}:{VU+2*i+1}]")
        if r & 1:
            for c in range(8):
                k.e(f"v_cvt_pk_bf16_f32 v{OUT+4*c+3-r//2}, v{KV+8+c}, v{KV+c}")
    for c in range(8):
        k.e(f"ds_write_b128 v7, v[{OUT+4*c}:{OUT+4*c+3}] offset:{128*c}")
    k.e("s_lshl_b32 s60, s48, 7")
    k.e("s_sub_u32 s60, 3968, s60")
    k.e(f"s_mul_i32 s61, s49, {64*RS}")
    k.e("s_add_u32 s60, s60, s61")
    k.e("s_waitcnt lgkmcnt(0)")
    for c in range(8):
        k.e(f"ds_read_b128 v[{OUT+4*c}:{OUT+4*c+3}], v6 offset:{128*c}")
    for c in range(8):
        k.e(f"s_waitcnt lgkmcnt({7-c})")
        k.e(f"buffer_store_dwordx4 v[{OUT+4*c}:{OUT+4*c+3}], v3, s[56:59], s60 offen{sc}")
        if c < 7: k.e(f"s_add_u32 s60, s60, {RS}")

def emit_relayout(k, s_unit, s_lds, sc=""):
    srd(k, 40, P_W2, NB_W)
    srd(k, 44, P_WS, NB_W, W2_OFF)
    k.e(f"s_lshr_b32 s48, s{s_unit}, 2")
    k.e(f"s_and_b32 s49, s{s_unit}, 3")
    k.e("s_mul_i32 s50, s48, 40960")
    k.e("s_mul_i32 s51, s49, 320")
    k.e("s_add_u32 s50, s50, s51")
    for i in range(10):
        k.e(f"v_add_u32 v1, {64*i}, v0")
        k.e("v_mul_u32_u24 v2, 52429, v1")
        k.e("v_lshrrev_b32 v2, 20, v2")
        k.e("v_mul_u32_u24 v2, 960, v2")
        k.e("v_lshl_add_u32 v2, v1, 4, v2")
        k.e(f"s_add_u32 m0, s{s_lds}, {1024*i}")
        k.e("buffer_load_dwordx4 v2, s[40:43], s50 offen lds")
    k.e("v_lshrrev_b32 v3, 2, v0")
    k.e("v_mul_u32_u24 v3, 320, v3")
    k.e("v_and_b32 v4, 3, v0")
    k.e("v_lshl_add_u32 v3, v4, 3, v3")
    k.e(f"v_add_u32 v3, s{s_lds}, v3")
    k.e("v_lshlrev_b32 v5, 4, v0")
    k.e("s_mul_i32 s51, s49, 108")
    k.e("s_add_u32 s51, s51, s48")
    k.e("s_mul_i32 s51, s51, 5120")
    k.e(f"s_add_u32 s52, s51, {54*5120}")
    k.e("s_add_u32 s53, s51, 4096")
    k.e("s_add_u32 s54, s52, 4096")
    k.e("s_waitcnt vmcnt(0)")
    for b in range(10):
        r = 8 + 4*b
        k.e(f"ds_read_b64_tr_b16 v[{r}:{r+1}], v3 offset:{32*b}")
        k.e(f"ds_read_b64_tr_b16 v[{r+2}:{r+3}], v3 offset:{32*b+5120}")
    for b in range(10):
        r = 8 + 4*b
        k.e(f"s_waitcnt lgkmcnt({min(15,18-2*b)})")
        db = b % 5
        so = (51 if b < 5 else 52) if db < 4 else (53 if b < 5 else 54)
        k.e(f"buffer_store_dwordx4 v[{r}:{r+3}], v5, s[44:47], s{so} offen offset:{1024*(db%4)}{sc}")

def aux_kernel():
    k = Kern("aux_kernel")
    stamp_begin(k)
    k.e("s_cmp_ge_u32 s2, 256")
    k.e("s_cbranch_scc1 L_aux_end")
    load_ptrs(k)
    k.e("v_lshrrev_b32 v1, 6, v0")
    k.e("v_readfirstlane_b32 s3, v1")
    k.e("v_and_b32 v0, 63, v0")
    k.e("s_waitcnt lgkmcnt(0)")
    k.e("s_cmp_eq_u32 s3, 1")
    k.e("s_cbranch_scc1 L_aux_prep1")
    k.e("s_cmp_eq_u32 s3, 2")
    k.e("s_cbranch_scc1 L_aux_rel")
    k.e("s_cmp_eq_u32 s3, 3")
    k.e("s_cbranch_scc1 L_aux_prep2")
    k.e("s_lshl_b32 s4, s2, 3")
    emit_stats(k, 4)
    finish(k, 0)
    k.e("L_aux_prep2:")
    k.e("s_cmp_ge_u32 s2, 64")
    k.e("s_cbranch_scc1 L_aux_end")
    k.e("s_add_u32 s2, s2, 256")
    k.e("L_aux_prep1:")
    emit_prep(k, 2)
    finish(k, 0)
    k.e("L_aux_rel:")
    k.e("s_cmp_ge_u32 s2, 216")
    k.e("s_cbranch_scc1 L_aux_end")
    k.e("s_mov_b32 s4, 0")
    emit_relayout(k, 2, 4)
    finish(k, 0)
    k.e("L_aux_end:")
    k.e("s_endpgm")
    return k
```

```python
from asmlib import *

S, D, F = 2048, 640, 1728
NB_X = S * D * 2
NB_W = D * F * 2
H_OFF  = 0x0000000
W2_OFF = 0x0700000
UR_OFF = 0x0A00000
YT_OFF = 0x0D00000
ST_OFF = 0x1000000
FL_OFF = 0x1010000
WS_USED = 0x1100000
NT = 54

P_Q, P_K, P_V, P_SH, P_SK, P_D, P_BX, P_W1, P_W2, P_OUT, P_DBG, P_WS = 16, 18, 20, 22, 24, 26, 28, 30, 32, 34, 36, 38

def load_ptrs(k):
    k.e("s_load_dwordx16 s[16:31], s[0:1], 0")
    k.e("s_load_dwordx8 s[32:39], s[0:1], 64")

def srd(k, dst, ptr, nbytes, base_off=0):
    if base_off:
        k.e(f"s_add_u32 s{dst}, s{ptr}, {base_off:#x}")
        k.e(f"s_addc_u32 s{dst+1}, s{ptr+1}, 0")
    else:
        k.e(f"s_mov_b32 s{dst}, s{ptr}")
        k.e(f"s_mov_b32 s{dst+1}, s{ptr+1}")
    k.e(f"s_mov_b32 s{dst+2}, {nbytes:#x}")
    k.e(f"s_mov_b32 s{dst+3}, 0x20000")

def unpack(k, lo, hi, src):
    k.e(f"v_lshlrev_b32 v{lo}, 16, v{src}")
    k.e(f"v_and_b32 v{hi}, 0xffff0000, v{src}")

import os
STAMP = bool(int(os.environ.get("STAMP", "0")))
STAMP_OFF = 0x1200000
def stamp_begin(k):
    if not STAMP: return
    k.e("s_memrealtime s[96:97]")
    k.e("s_memtime s[98:99]")
    k.e("s_mov_b32 s100, s2")
    for i in range(4): k.e(f"s_mov_b32 s{12+i}, 0")
def stamp_mid(k, i):
    import inspect
    if flag("EST"):
        if 'flag("EST")' not in (inspect.stack()[1].code_context or [""])[0]: return
    if not STAMP: return
    k.e("s_memrealtime s[10:11]")
    k.e("s_waitcnt lgkmcnt(0)")
    k.e(f"s_mov_b32 s{12+i}, s10")
def finish(k, slot, s_wave=3):
    if STAMP:
        k.e("s_waitcnt vmcnt(0) lgkmcnt(0)")
        k.e("s_memrealtime s[40:41]")
        k.e("s_memtime s[42:43]")
        srd(k, 44, P_WS, 0x100000, STAMP_OFF)
        k.e("s_lshl_b32 s48, s100, 3")
        k.e(f"s_add_u32 s48, s48, s{s_wave}")
        k.e("s_lshl_b32 s48, s48, 5")
        k.e(f"s_add_u32 s48, s48, {slot * 0x20000}")
        if flag("SPLITFREE"):
            k.e("s_cmp_ge_u32 s100, 224")
            k.e("s_cselect_b32 s49, 0x40000, 0")
            k.e("s_add_u32 s48, s48, s49")
        k.e("s_waitcnt lgkmcnt(0)")
        k.e("s_mov_b64 exec, 1")
        k.e("v_mov_b32 v4, s96")
        k.e("v_mov_b32 v5, s40")
        k.e("v_mov_b32 v6, s98")
        k.e("v_mov_b32 v7, s42")
        k.e("v_mov_b32 v8, s12")
        k.e("v_mov_b32 v9, s13")
        k.e("v_mov_b32 v10, s14")
        k.e("v_mov_b32 v11, s15")
        k.e("v_mov_b32 v1, 0")
        k.e("buffer_store_dwordx4 v[4:7], v1, s[44:47], s48 offen")
        k.e("buffer_store_dwordx4 v[8:11], v1, s[44:47], s48 offen offset:16")
    k.e("s_endpgm")

def flag(name, default=0):
    return int(os.environ.get(name, str(default)))

RS = flag("RS", 4224)
NB_T = D * RS
```

```python
from common import *

CP = 4160
UROFF = 4 * CP
CONV_LDS = UROFF + 4608

C_ACC = 8
C_FR = 40

def conv_setup(k, s_ch, s_lds, sc=""):
    srd(k, 60, P_SK, D * S * 2)
    srd(k, 64, P_WS, D * S * 2, UR_OFF)
    srd(k, 68, P_WS, D * S * 2, YT_OFF)
    k.e(f"s_lshl_b32 s72, s{s_ch}, 12")
    k.e(f"s_and_b32 s73, s{s_ch}, 0xfffe")
    k.e("s_lshl_b32 s73, s73, 1")
    k.e(f"s_load_dword s74, s[{P_D}:{P_D+1}], s73")
    k.e("v_lshlrev_b32 v1, 4, v0")
    for c in range(4):
        for sh in range(3):
            r = C_FR + 12*c + 4*sh
            k.e(f"buffer_load_dwordx4 v[{r}:{r+3}], v1, s[60:63], s72 offen offset:{1024*c + 4*sh}")
    k.e(f"s_add_u32 m0, s{s_lds}, {UROFF}")
    for c in range(4):
        k.e(f"buffer_load_dwordx4 v1, s[64:67], s72 offen offset:{1024*c}{sc} lds")

def conv_setup_hk(k, s_ch, s_lds):
    srd(k, 60, P_SK, D * S * 2)
    srd(k, 64, P_WS, NB_T, UR_OFF)
    srd(k, 68, P_WS, NB_T, YT_OFF)
    k.e(f"s_lshl_b32 s72, s{s_ch}, 12")
    k.e(f"s_and_b32 s73, s{s_ch}, 0xfffe")
    k.e("s_lshl_b32 s73, s73, 1")
    k.e(f"s_load_dword s74, s[{P_D}:{P_D+1}], s73")
    k.e("v_lshlrev_b32 v1, 4, v0")
    for c in range(4):
        for sh in range(3):
            r = C_FR + 12*c + 4*sh
            k.e(f"buffer_load_dwordx4 v[{r}:{r+3}], v1, s[60:63], s72 offen offset:{1024*c + 4*sh}")
    k.e(f"s_mul_i32 s72, s{s_ch}, {RS}")

def conv_setup_u(k, s_ch, s_lds, sc=""):
    k.e(f"s_add_u32 m0, s{s_lds}, {UROFF}")
    for c in range(4):
        k.e(f"buffer_load_dwordx4 v1, s[64:67], s72 offen offset:{1024*c}{sc} lds")

def conv_stage(k, s_ch, s_lds, younger, hook=None):
    k.e(f"v_add_u32 v2, s{s_lds}, v1")
    for i in range(4): k.e(f"v_mov_b32 v{C_ACC+i}, 0")
    k.e(f"v_add_u32 v3, {UROFF + 4096}, v2")
    k.e("v_bfe_u32 v4, v0, 1, 2")
    k.e(f"v_mul_u32_u24 v4, {CP}, v4")
    k.e("v_and_b32 v5, 1, v0")
    k.e("v_lshl_add_u32 v4, v5, 4, v4")
    k.e(f"v_add_u32 v4, s{s_lds}, v4")
    k.e("v_cmp_gt_u32 vcc, 32, v0")
    k.e("v_cndmask_b32 v3, v4, v3, vcc")
    k.e(f"ds_write_b128 v3, v[{C_ACC}:{C_ACC+3}]")
    OD = C_FR + 48
    for c in range(4):
        k.e(f"s_waitcnt vmcnt({younger + 4 + 3*(3-c)})")
        d, e_, f = C_FR + 12*c, C_FR + 12*c + 4, C_FR + 12*c + 8
        o1, o3 = OD + 8*c, OD + 8*c + 4
        for i in range(4):
            k.e(f"v_alignbit_b32 v{o1+i}, v{e_+i}, v{d+i}, 16")
            k.e(f"v_alignbit_b32 v{o3+i}, v{f+i}, v{e_+i}, 16")
        for s, r in enumerate((d, o1, e_, o3)):
            k.e(f"ds_write_b128 v2, v[{r}:{r+3}] offset:{s*CP + 32 + 1024*c}")
        if c == 0:
            k.e(f"v_lshlrev_b32 v5, 16, v{d}")
            k.e("v_cmp_eq_u32 vcc, 0, v0")
            k.e("s_and_saveexec_b64 s[76:77], vcc")
            k.e(f"ds_write_b32 v2, v5 offset:{1*CP + 28}")
            k.e(f"ds_write_b32 v2, v{d} offset:{2*CP + 28}")
            k.e(f"ds_write_b32 v2, v5 offset:{3*CP + 24}")
            k.e(f"ds_write_b32 v2, v{o1} offset:{3*CP + 28}")
            k.e("s_mov_b64 exec, s[76:77]")
            if hook: hook()
    k.e("v_and_b32 v6, 15, v0")
    k.e("v_lshrrev_b32 v7, 4, v0")
    k.e("v_add_u32 v3, 1, v6")
    k.e("v_and_b32 v4, 3, v3")
    k.e(f"v_mul_u32_u24 v4, {CP}, v4")
    k.e("v_and_b32 v3, 0x1c, v3")
    k.e("v_lshl_add_u32 v3, v3, 1, v4")
    k.e("v_lshl_add_u32 v3, v7, 4, v3")
    k.e(f"v_add_u32 v3, s{s_lds}, v3")
    k.e("v_lshlrev_b32 v6, 5, v6")
    k.e(f"s_add_u32 s75, s{s_lds}, {UROFF + 480}")
    k.e("v_sub_u32 v4, s75, v6")
    k.e("v_lshlrev_b32 v5, 3, v7")
    k.e("v_sub_u32 v5, v4, v5")
    k.e("v_add_u32 v5, 24, v5")
    k.e("v_lshl_add_u32 v4, v7, 4, v4")
    k.e("v_and_b32 v2, 1, v7")
    k.e("v_lshl_add_u32 v6, v2, 9, v6")
    k.e("v_lshrrev_b32 v7, 1, v7")
    k.e("v_lshl_add_u32 v6, v7, 4, v6")
    for i in range(32): k.e(f"v_mov_b32 v{C_ACC+i}, 0")
    k.e(f"s_waitcnt vmcnt({younger}) lgkmcnt(0)")

def conv_reads(buf, roff):
    fa = C_FR + 64*buf; fb = fa + 32
    L = []
    for i in range(8):
        L.append(f"ds_read_b64 v[{fa+4*i}:{fa+4*i+1}], v3 offset:{512*i + roff}")
        L.append(f"ds_read_b64 v[{fa+4*i+2}:{fa+4*i+3}], v3 offset:{512*i + roff + 8}")
        L.append(f"ds_read_b128 v[{fb+4*i}:{fb+4*i+3}], v4 offset:{512*(7-i) + roff}")
    return L

def conv_mfmas(buf):
    fa = C_FR + 64*buf; fb = fa + 32
    L = []
    for a in range(8):
        for c in range(a, 8):
            y = C_ACC + 4*c
            L.append(f"v_mfma_f32_16x16x32_bf16 v[{y}:{y+3}], v[{fa+4*a}:{fa+4*a+3}], v[{fb+4*(c-a)}:{fb+4*(c-a)+3}], v[{y}:{y+3}]")
    return L

def interleave(main, fill, start=0):
    out = []; fi = 0
    for i, x in enumerate(main):
        out.append(x)
        if i >= start and fi < len(fill):
            out.append(fill[fi]); fi += 1
    out += fill[fi:]
    return out

def conv_main(k, tag):
    for x in conv_reads(0, 0): k.e(x)
    k.e("s_mov_b32 s75, 0")
    k.e(f"L_conv_loop_{tag}:")
    k.e("s_waitcnt lgkmcnt(0)")
    for x in interleave(conv_mfmas(0), conv_reads(1, 64)): k.e(x)
    k.e("s_waitcnt lgkmcnt(0)")
    for x in interleave(conv_mfmas(1), conv_reads(0, 128)): k.e(x)
    k.e("v_add_u32 v3, 128, v3")
    k.e("v_add_u32 v4, 128, v4")
    k.e("s_add_u32 s75, s75, 1")
    k.e("s_cmp_lt_u32 s75, 4")
    k.e(f"s_cbranch_scc1 L_conv_loop_{tag}")

def conv_epilogue(k, s_ch, sc=""):
    U = C_FR + 64
    T = C_FR + 80
    O = C_FR + 96
    k.e("s_waitcnt lgkmcnt(0)")
    for c in range(8):
        k.e(f"ds_read_b64 v[{U+2*c}:{U+2*c+1}], v5 offset:{512*(7-c)}")
    k.e(f"s_bitcmp1_b32 s{s_ch}, 0")
    k.e("s_lshl_b32 s73, s74, 16")
    k.e("s_and_b32 s74, s74, 0xffff0000")
    k.e(f"s_bitcmp1_b32 s{s_ch}, 0")
    k.e("s_cselect_b32 s74, s74, s73")
    for c in range(8):
        k.e(f"s_waitcnt lgkmcnt({7-c})")
        y = C_ACC + 4*c
        t = T + 4*(c & 1)
        k.e(f"v_and_b32 v{t}, 0xffff0000, v{U+2*c+1}")
        k.e(f"v_lshlrev_b32 v{t+1}, 16, v{U+2*c+1}")
        k.e(f"v_and_b32 v{t+2}, 0xffff0000, v{U+2*c}")
        k.e(f"v_lshlrev_b32 v{t+3}, 16, v{U+2*c}")
        for r in range(4):
            k.e(f"v_fmac_f32 v{y+r}, s74, v{t+r}")
        o = O + 4*(c >> 1) + 2*(c & 1)
        k.e(f"v_cvt_pk_bf16_f32 v{o}, v{y}, v{y+1}")
        k.e(f"v_cvt_pk_bf16_f32 v{o+1}, v{y+2}, v{y+3}")
        if c & 1:
            o = O + 4*(c >> 1)
            k.e(f"v_permlane16_swap_b32 v{o}, v{o+2}")
            k.e(f"v_permlane16_swap_b32 v{o+1}, v{o+3}")
            k.e(f"buffer_store_dwordx4 v[{o}:{o+3}], v6, s[68:71], s72 offen offset:{512*(c-1)}{sc}")

def conv_kernel():
    k = Kern("conv_kernel")
    stamp_begin(k)
    k.e("s_cmp_ge_u32 s2, 160")
    k.e("s_cbranch_scc1 L_conv_end")
    load_ptrs(k)
    k.e("v_lshrrev_b32 v1, 6, v0")
    k.e("v_readfirstlane_b32 s3, v1")
    k.e("v_and_b32 v0, 63, v0")
    k.e("s_lshl_b32 s4, s2, 2")
    k.e("s_add_u32 s4, s4, s3")
    k.e(f"s_mul_i32 s5, s3, {CONV_LDS}")
    k.e("s_waitcnt lgkmcnt(0)")
    conv_setup(k, 4, 5)
    conv_stage(k, 4, 5, 0)
    stamp_mid(k, 0)
    conv_main(k, "a")
    stamp_mid(k, 1)
    conv_epilogue(k, 4)
    finish(k, 2)
    k.e("L_conv_end:")
    k.e("s_endpgm")
    return k
```

```python
from common import *
import aux, conv, k1
from conv import interleave, CONV_LDS
from k1 import Vm, is_vmem, SLOT, WPART, NSTAGE

NAME = "recurrent_scan__ssm_conv_h3__dense_activation_relu__prompt_kernel"
SC1 = " sc1"
FSH = 7
FU, FW, FH, FY, FS, EP = 0, 320 << FSH, 576 << FSH, 1600 << FSH, 2240 << FSH, 2496 << FSH
FL_BYTES = 2497 << FSH
RB0 = 65536
TOP = RB0 + 4 * CONV_LDS
CNT = 163776
LDS_BYTES = 163840
XO, YO, SO = 0, 3072, 6144
NSTEP = 14
SH0, SW0 = 62, 76
TAG = 90
FSRD = 92
SPIN_MAX = 0x20000

HSC = "" if flag("LOCALH") else SC1
def publish(k, s_off, va, sc=SC1):
    k.e(f"v_mov_b32 v{va}, s{TAG}")
    k.e(f"v_mov_b32 v{va+1}, s{TAG+1}")
    k.e(f"v_mov_b32 v{va+2}, 0")
    k.e("s_mov_b64 exec, 1")
    k.e(f"buffer_store_dwordx2 v[{va}:{va+1}], v{va+2}, s[{FSRD}:{FSRD+3}], s{s_off} offen{sc}")
    k.e("s_mov_b64 exec, -1")

def check2(k, vd):
    k.e(f"v_cmp_ne_u64 vcc, s[{TAG}:{TAG+1}], v[{vd}:{vd+1}]")
    k.e("s_cmp_eq_u64 vcc, 0")

def poll2(k, lbl, vd, voff, s_off, s_cnt, sleep=4, preloaded=False):
    k.e(f"s_mov_b32 s{s_cnt}, 0")
    if preloaded:
        check2(k, vd)
        k.e(f"s_cbranch_scc1 {lbl}_ok")
    k.e(f"{lbl}:")
    k.e(f"buffer_load_dwordx2 v[{vd}:{vd+1}], v{voff}, s[{FSRD}:{FSRD+3}], s{s_off} offen{SC1}")
    k.e("s_waitcnt vmcnt(0)")
    check2(k, vd)
    k.e(f"s_cbranch_scc1 {lbl}_ok")
    k.e(f"s_sleep {sleep}")
    k.e(f"s_add_u32 s{s_cnt}, s{s_cnt}, 1")
    k.e(f"s_cmp_lt_u32 s{s_cnt}, {SPIN_MAX:#x}")
    k.e(f"s_cbranch_scc1 {lbl}")
    k.e(f"{lbl}_ok:")

def make_tag(k):
    k.e(f"s_mul_i32 s{TAG}, s{TAG}, 1664525")
    k.e(f"s_add_u32 s{TAG}, s{TAG}, 1013904223")
    k.e(f"s_mul_i32 s{TAG+1}, s{TAG+1}, 22695477")
    k.e(f"s_add_u32 s{TAG+1}, s{TAG+1}, 1")

def precompute(k):
    T0, T1, T2, T3 = 10, 11, "vcc_lo", "vcc_hi"
    k.e("s_mul_i32 s10, s101, 14")
    k.e("s_cmp_eq_u32 s101, 3")
    k.e("s_cselect_b32 s10, 41, s10")
    k.e(f"s_mul_i32 s11, s8, {NT}")
    k.e("s_add_u32 s11, s11, s10")
    k.e(f"s_lshl_b32 s{SH0+13}, s11, 12")
    k.e(f"s_mul_i32 s11, s9, {NT}")
    k.e("s_add_u32 s11, s11, s10")
    k.e(f"s_mul_i32 s{SW0+13}, s11, 5120")
    k.e("s_and_b32 s10, s8, 7")
    k.e("s_mul_i32 s10, s10, 7")
    k.e("s_lshr_b32 s10, s10, 2")
    k.e("s_and_b32 s11, s9, 3")
    k.e("s_mul_i32 s11, s11, 7")
    k.e("s_lshr_b32 s11, s11, 1")
    k.e("s_add_u32 s10, s10, s11")
    if flag("MAP81"):
        k.e("s_and_b32 s10, s8, 3")
        k.e("s_mul_i32 s10, s10, 7")
        k.e("s_lshr_b32 s10, s10, 1")
        k.e("s_lshr_b32 s11, s4, 1")
        k.e("s_add_u32 s10, s10, s11")
    if not flag("G2ROT", 1): k.e("s_mov_b32 s10, 0")
    k.e("s_sub_u32 s11, s10, 14")
    k.e("s_cmp_ge_u32 s10, 14")
    k.e("s_cselect_b32 s10, s11, s10")
    k.e("s_cmp_ge_u32 s101, 2")
    k.e("s_cselect_b32 vcc_hi, 13, 99")
    for i in range(NSTEP):
        k.e("s_cmp_eq_u32 s10, vcc_hi")
        k.e("s_cselect_b32 s11, 0x40000, s10")
        k.e("s_lshl_b32 vcc_lo, s11, 12")
        k.e(f"s_add_u32 s{SH0+i}, s{SH0+13}, vcc_lo")
        k.e("s_mul_i32 vcc_lo, s11, 5120")
        k.e(f"s_add_u32 s{SW0+i}, s{SW0+13}, vcc_lo")
        if i < NSTEP - 1:
            k.e("s_add_u32 s10, s10, 1")
            k.e("s_cmp_eq_u32 s10, 14")
            k.e("s_cselect_b32 s10, 0, s10")

G_ACC, G_H = 8, 88
W_SLOT = [176, 196, 216, 236, 136, 156]
def w_loads(step):
    b = W_SLOT[step % 6]
    L = [f"buffer_load_dwordx4 v[{b+4*d}:{b+4*d+3}], v1, s[44:47], s{SW0+step} offen offset:{1024*d}{SC1}" for d in range(4)]
    L.append(f"buffer_load_dwordx4 v[{b+16}:{b+19}], v2, s[44:47], s{SW0+step} offen{SC1}")
    return L
def h_loads(step):
    b = G_H + 16 * (step % 3)
    return [f"buffer_load_dwordx4 v[{b+4*m}:{b+4*m+3}], v{3+m}, s[40:43], s{SH0+step} offen{SC1}" for m in range(4)]
def w_lds_reads(step):
    b = W_SLOT[step % 6]
    return [f"ds_read_b128 v[{b+4*d}:{b+4*d+3}], v7 offset:{(step-11)*5120 + 1024*d}" for d in range(5)]
def g2_mfmas(step):
    b = G_H + 16 * (step % 3); wb = W_SLOT[step % 6]
    L = []
    for d in range(5):
        for m in range(4):
            a = G_ACC + 16*d + 4*m
            c = "0" if step == 0 else f"v[{a}:{a+3}]"
            L.append(f"v_mfma_f32_16x16x32_bf16 v[{a}:{a+3}], v[{wb+4*d}:{wb+4*d+3}], v[{b+4*m}:{b+4*m+3}], {c}")
    return L
def spread(m, fill, every=2):
    out = []; fi = 0
    for i, x in enumerate(m):
        out.append(x)
        if i % every == 0 and fi < len(fill):
            out.append(fill[fi]); fi += 1
    return out + fill[fi:]

def xo_offsets(k, vb, t1, t2):
    k.e("s_lshl_b32 s53, s8, 2")
    k.e("s_add_u32 s53, s53, s101")
    k.e("s_mul_i32 s54, s53, 20480")
    k.e("s_mul_i32 s55, s9, 160")
    k.e("s_add_u32 s54, s54, s55")
    for i in range(3):
        k.e(f"v_add_u32 v{t1}, {64*i}, v0")
        k.e(f"v_mul_u32_u24 v{t2}, 6554, v{t1}")
        k.e(f"v_lshrrev_b32 v{t2}, 16, v{t2}")
        k.e(f"v_mul_u32_u24 v{t2}, 1120, v{t2}")
        k.e(f"v_lshl_add_u32 v{vb+i}, v{t1}, 4, v{t2}")
    k.e(f"v_mov_b32 v{t2}, 0x40000000")
    k.e("v_cmp_gt_u32 vcc, 32, v0")
    k.e(f"v_cndmask_b32 v{vb+2}, v{t2}, v{vb+2}, vcc")

def g2_phase(k):
    k.e("s_setprio 0")
    srd(k, 40, P_WS, 32 * NT * 4096, H_OFF)
    for s in ((0, 1, 2, 3, 4, 5) if flag("NOWL") else (4, 5)):
        for x in w_loads(s): k.e(x)
    k.e("s_lshl_b32 s56, s101, 14")
    for s in (11, 12, 13):
        k.e(f"s_add_u32 m0, s56, {(s-11)*5120}")
        for d in range(4):
            k.e(f"buffer_load_dwordx4 v1, s[44:47], s{SW0+s} offen offset:{1024*d}{SC1} lds")
        k.e(f"s_add_u32 m0, s56, {(s-11)*5120 + 4096}")
        k.e(f"buffer_load_dwordx4 v2, s[44:47], s{SW0+s} offen{SC1} lds")
    k.e("s_lshl_b32 s52, s101, 10")
    k.e("v_add_u32 v3, s52, v1")
    for m in range(1, 4):
        k.e(f"v_xor_b32 v{3+m}, {1024*m}, v3")
    k.e("v_add_u32 v7, s56, v1")
    k.e("s_mul_i32 s57, s101, 7")
    k.e("s_min_u32 s57, s57, 20")
    k.e("s_lshl_b32 s57, s57, 3")
    k.e("s_lshl_b32 s58, s8, 8")
    k.e("s_add_u32 s57, s57, s58")
    k.e(f"s_add_u32 s57, s57, {FH}")
    k.e("v_min_u32 v8, 6, v0")
    k.e("v_lshlrev_b32 v8, 3, v8")
    poll2(k, "L_hpoll", 10, 8, 57, 58, sleep=2)
    if not flag("STG1"): stamp_mid(k, 2)
    vm = Vm(); need = {}
    def put(x, key=None):
        k.e(x)
        if is_vmem(x):
            r = vm.op()
            if key is not None: need[key] = r
    for s in (0, 1):
        for x in h_loads(s): put(x, s)
    wneed = {}
    for s in range(NSTEP):
        idx = max(need[s], wneed.get(s, -1))
        lg = " lgkmcnt(0)" if s >= 11 else ""
        k.e(f"s_waitcnt vmcnt({vm.wait(idx)}){lg}")
        fill = []
        if s + 2 < NSTEP: fill += [(x, "h", s + 2) for x in h_loads(s + 2)]
        if 1 <= s <= 5: fill += [(x, "w", s + 5) for x in w_loads(s + 5)]
        if 6 <= s <= 8: fill += [(x, "l", s + 5) for x in w_lds_reads(s + 5)]
        tagmap = {x: (t, st) for x, t, st in fill}
        for x in spread(g2_mfmas(s), [f[0] for f in fill]):
            k.e(x)
            if is_vmem(x):
                r = vm.op(); t, st = tagmap[x]
                if t == "h": need[st] = r
                else: wneed[st] = r
    if not flag("STG1"): stamp_mid(k, 3)
    k.e("s_setprio 2")
    for m in range(1, 4):
        for d in range(5):
            a = G_ACC + 16*d + 4*m
            k.e(f"ds_write_b128 v7, v[{a}:{a+3}] offset:{(m-1)*5120 + 1024*d}")
    srd(k, 48, P_OUT, NB_X)
    T = 200
    xo_offsets(k, T, T+3, T+4)
    for m in range(1, 4):
        k.e(f"v_xor_b32 v{T+4+m}, {16384*m}, v7")
    k.e(f"s_mul_i32 s59, s101, {CONV_LDS}")
    k.e(f"s_add_u32 s59, s59, {RB0}")
    k.e(f"v_add_u32 v{T+8}, s59, v1")
    k.e(f"v_and_b32 v{T+9}, 15, v0")
    k.e(f"v_mul_u32_u24 v{T+9}, 160, v{T+9}")
    k.e(f"v_lshrrev_b32 v{T+10}, 4, v0")
    k.e(f"v_lshl_add_u32 v{T+9}, v{T+10}, 3, v{T+9}")
    k.e(f"v_add_u32 v{T+9}, s59, v{T+9}")
    k.e(f"v_mov_b32 v{T+12}, 1.0")
    k.e(f"v_mov_b32 v{T+13}, 1.0")
    k.e("s_waitcnt lgkmcnt(0)")
    k.e("s_barrier")
    SF, XF, CC = 88, 108, T + 14
    k.e(f"ds_read_b64 v[{CC}:{CC+1}], v{T+8} offset:{SO + 10240}")
    for d in range(5):
        for m in range(1, 4):
            a = G_ACC + 16*d + 4*m
            k.e(f"ds_read_b128 v[{a}:{a+3}], v{T+4+m} offset:{(m-1)*5120 + 1024*d}")
        k.e(f"ds_read_b128 v[{SF+4*d}:{SF+4*d+3}], v{T+8} offset:{SO + 1024*d}")
        k.e(f"ds_read_b128 v[{XF+4*d}:{XF+4*d+3}], v{T+8} offset:{SO + 5120 + 1024*d}")
    for d in range(5):
        k.e(f"s_waitcnt lgkmcnt({min(15, 20-5*d)})")
        a = G_ACC + 16*d
        for h in range(2):
            k.e(f"v_pk_add_f32 v[{a+2*h}:{a+2*h+1}], v[{a+2*h}:{a+2*h+1}], v[{a+4+2*h}:{a+4+2*h+1}]")
            k.e(f"v_pk_add_f32 v[{a+8+2*h}:{a+8+2*h+1}], v[{a+8+2*h}:{a+8+2*h+1}], v[{a+12+2*h}:{a+12+2*h+1}]")
        for h in range(2):
            k.e(f"v_pk_add_f32 v[{a+2*h}:{a+2*h+1}], v[{a+2*h}:{a+2*h+1}], v[{a+8+2*h}:{a+8+2*h+1}]")
        e = a + 4
        for h in range(2):
            k.e(f"v_pk_mul_f32 v[{e+2*h}:{e+2*h+1}], v[{a+2*h}:{a+2*h+1}], v[{CC}:{CC+1}]")
        for r in range(4):
            k.e(f"v_exp_f32 v{e+r}, v{e+r}")
        for h in range(2):
            s = SF + 4*d + 2*h
            k.e(f"v_pk_mul_f32 v[{a+2*h}:{a+2*h+1}], v[{a+2*h}:{a+2*h+1}], v[{s}:{s+1}]")
        for h in range(2):
            k.e(f"v_pk_add_f32 v[{e+2*h}:{e+2*h+1}], v[{e+2*h}:{e+2*h+1}], v[{T+12}:{T+13}]")
        for r in range(4):
            k.e(f"v_rcp_f32 v{e+r}, v{e+r}")
        for h in range(2):
            x = XF + 4*d + 2*h
            k.e(f"v_pk_fma_f32 v[{a+2*h}:{a+2*h+1}], v[{a+2*h}:{a+2*h+1}], v[{e+2*h}:{e+2*h+1}], v[{x}:{x+1}]")
        k.e(f"v_cvt_pk_bf16_f32 v{a+8}, v{a}, v{a+1}")
        k.e(f"v_cvt_pk_bf16_f32 v{a+9}, v{a+2}, v{a+3}")
    for d in range(5):
        a = G_ACC + 16*d
        k.e(f"ds_write_b64 v{T+9}, v[{a+8}:{a+9}] offset:{XO + 32*d}")
    k.e("s_waitcnt lgkmcnt(0)")
    O = 128
    for i in range(3):
        k.e(f"ds_read_b128 v[{O+4*i}:{O+4*i+3}], v{T+8} offset:{XO + 1024*i}")
    for i in range(3):
        k.e(f"s_waitcnt lgkmcnt({2-i})")
        k.e(f"buffer_store_dwordx4 v[{O+4*i}:{O+4*i+3}], v{T+i}, s[48:51], s54 offen")

def g1_phase(k):
    srd(k, 48, P_WS, 32 * NT * 4096, H_OFF)
    srd(k, 44, P_WS, NB_W, W2_OFF)
    k.e("s_and_b32 s52, s3, 1")
    k.e("s_lshr_b32 s53, s3, 1")
    BA, AA = 10, 14
    k.e("v_lshlrev_b32 v1, 4, v0")
    k.e("v_add_u32 v2, 4096, v1")
    k.e("v_and_b32 v18, 15, v0")
    k.e("v_lshrrev_b32 v19, 4, v0")
    k.e("v_lshrrev_b32 v20, 1, v18")
    k.e("v_xor_b32 v20, v20, v19")
    k.e("v_lshlrev_b32 v20, 4, v20")
    k.e("v_lshl_add_u32 v20, v18, 7, v20")
    k.e("s_lshl_b32 s58, s52, 13")
    k.e("s_lshl_b32 s59, s53, 12")
    k.e("s_add_u32 s58, s58, s59")
    k.e(f"v_add_u32 v{BA}, s58, v20")
    k.e(f"v_xor_b32 v{BA+1}, 64, v{BA}")
    k.e(f"v_xor_b32 v{BA+2}, 0x1000, v{BA}")
    k.e(f"v_xor_b32 v{BA+3}, 0x1040, v{BA}")
    k.e("v_lshrrev_b32 v20, 2, v18")
    k.e("v_and_b32 v21, 3, v18")
    k.e("v_lshl_add_u32 v22, v19, 3, v20")
    k.e("v_lshlrev_b32 v22, 8, v22")
    k.e("v_lshl_add_u32 v22, v21, 3, v22")
    k.e(f"v_add_u32 v22, {WPART}, v22")
    k.e("v_and_b32 v23, 1, v19")
    k.e("v_lshl_add_u32 v23, v23, 2, v20")
    k.e("s_lshl_b32 s58, s53, 2")
    k.e("s_lshl_b32 s59, s52, 1")
    k.e("s_add_u32 s58, s58, s59")
    k.e("v_xor_b32 v23, s58, v23")
    k.e(f"v_lshl_add_u32 v{AA}, v23, 5, v22")
    for fb in range(1, 4):
        k.e(f"v_xor_b32 v{AA+fb}, {32*fb}, v{AA}")
    ONE = 20
    for i in range(4): k.e(f"v_mov_b32 v{ONE+i}, 0x3f803f80")
    ACC, AR, AC, FR = 24, 88, 96, 112
    for r, x in ((3, 0), (4, 2), (5, 1)):
        k.e(f"s_xor_b32 s58, s3, {x}")
        k.e("s_mul_i32 s58, s58, 3072")
        k.e(f"s_add_u32 s58, s58, {TOP}")
        k.e(f"v_add_u32 v{r}, s58, v1")
    k.e("s_lshl_b32 s58, s7, 1")
    k.e("s_add_u32 s57, s58, s53")
    k.e("s_lshl_b32 s59, s6, 1")
    k.e("s_add_u32 s59, s59, s52")
    k.e("s_lshl_b32 s56, s59, 5")
    k.e("s_add_u32 s56, s56, s57")
    k.e("s_lshl_b32 s56, s56, 3")
    k.e(f"s_add_u32 s56, s56, {FH}")
    k.e(f"s_mul_i32 s59, s59, {NT}")
    k.e("s_lshl_b32 s58, s57, 1")
    k.e("s_add_u32 s58, s58, s59")
    k.e("s_lshl_b32 s58, s58, 12")
    k.e("s_lshl_b32 s59, s52, 12")
    k.e("s_add_u32 s60, s58, s59")
    k.e("s_xor_b32 s59, s59, 0x1000")
    k.e("s_add_u32 s61, s58, s59")
    k.e("s_lshl_b32 s59, s53, 11")
    k.e("v_add_u32 v6, s59, v1")
    k.e("v_xor_b32 v7, 0x800, v6")
    def reads(stage, ks, buf):
        so = (stage % 2) * SLOT
        L = []
        fa = FR + 32 * buf; fb_ = fa + 16
        for i in range(4):
            L.append(f"ds_read_b128 v[{fb_+4*i}:{fb_+4*i+3}], v{BA + 2*(i>>1) + ks} offset:{so + 2048*(i&1)}")
            L.append(f"ds_read_b64_tr_b16 v[{fa+4*i}:{fa+4*i+1}], v{AA+i} offset:{so + 8192*ks}")
            L.append(f"ds_read_b64_tr_b16 v[{fa+4*i+2}:{fa+4*i+3}], v{AA+i} offset:{so + 8192*ks + 1024}")
        return L
    def mfmas(buf, first=False, sums_first=False):
        fa = FR + 32 * buf; fb_ = fa + 16
        L = []; Sm = []
        def mm(T, d, a, b):
            c = "0" if first else f"v[{d}:{d+3}]"
            T.append(f"v_mfma_f32_16x16x32_bf16 v[{d}:{d+3}], v[{a}:{a+3}], v[{b}:{b+3}], {c}")
        for f in range(4):
            for m in range(4):
                mm(L, ACC + 16*f + 4*m, fa + 4*f, fb_ + 4*m)
        for i in range(2):
            mm(Sm, AR + 4*i, ONE, fb_ + 4*i)
            mm(Sm, AC + 4*i, fa + 4*i, ONE)
        return Sm + L if sums_first else L + Sm
    wl = [x for s in range(4) for x in w_loads(s)]
    if flag("NOWL"): wl = []
    for s in range(NSTAGE):
        k.c(f"---- stage {s}")
        k.e("s_waitcnt lgkmcnt(0)")
        k.e("s_barrier")
        if s == 0: stamp_mid(k, 0)
        if flag("STG1") and s == 6: stamp_mid(k, 1)
        if flag("STG1") and s == 9: stamp_mid(k, 2)
        if s == 2 and not flag("NOPREP"):
            k.e("s_cmp_lg_u32 s3, 0")
            k.e("s_cbranch_scc1 L_g1_nopub")
            k.e("s_waitcnt vmcnt(0)")
            publish(k, 55, 176)
            k.e("L_g1_nopub:")
        last = s == NSTAGE - 1
        if s == 0:
            for x in reads(s, 0, 0): k.e(x)
        else:
            for x in interleave(mfmas(1), reads(s, 0, 0) + (wl[:6] if last else [])): k.e(x)
        k.e("s_waitcnt lgkmcnt(0)")
        nxt = []
        if (s + 1) % 2 == 0 and s + 1 < NSTAGE:
            nxt = [f"v_xor_b32 v{r}, 0x10000, v{r}" for r in list(range(BA, BA+4)) + list(range(AA, AA+4))]
        if last: nxt = wl[6:12]
        for x in interleave(mfmas(0, first=(s == 0)), reads(s, 1, 1) + nxt): k.e(x)
    k.e("s_waitcnt lgkmcnt(0)")
    fin = mfmas(1, sums_first=True)
    exch = [f"v_mov_b32 v{AR+1}, v{AR+4}",
            f"ds_write_b64 v3, v[{AR}:{AR+1}]",
            f"ds_write_b128 v3, v[{AC}:{AC+3}] offset:1024",
            f"ds_write_b128 v3, v[{AC+4}:{AC+7}] offset:2048"]
    for x in interleave(fin[:12], wl[12:20]): k.e(x)
    for x in interleave(fin[12:], exch): k.e(x)
    k.e("s_setprio 2")
    k.e("s_waitcnt lgkmcnt(0)")
    k.e("s_barrier")
    k.e(f"ds_read_b64 v[{AR+2}:{AR+3}], v4")
    k.e(f"ds_read_b128 v[{AC+8}:{AC+11}], v5 offset:1024")
    k.e(f"ds_read_b128 v[{AC+12}:{AC+15}], v5 offset:2048")
    k.e("s_cmp_ge_u32 s57, 27")
    k.e("s_waitcnt lgkmcnt(0)")
    k.e("s_cbranch_scc1 L_g2")
    NM = FR
    for m in range(4):
        k.e(f"v_mul_f32 v{AR+m}, {-1.0/D!r}, v{AR+m}")
    k.e(f"v_cvt_pk_bf16_f32 v{AR+4}, v{AR}, v{AR+1}")
    k.e(f"v_cvt_pk_bf16_f32 v{AR+5}, v{AR+2}, v{AR+3}")
    for m in range(4):
        src = AR + 4 + (m >> 1)
        for h in range(2):
            if m & 1: k.e(f"v_and_b32 v{NM+2*m+h}, 0xffff0000, v{src}")
            else:     k.e(f"v_lshlrev_b32 v{NM+2*m+h}, 16, v{src}")
    OUT = FR + 8
    n = 0
    for p in range(2):
        for m in range(4):
            o = OUT + 4 * (n % 4); n += 1
            for ff in range(2):
                f = 2*p + ff
                a = ACC + 16*f + 4*m
                for h in range(2):
                    k.e(f"v_pk_fma_f32 v[{a+2*h}:{a+2*h+1}], v[{AC+4*f+2*h}:{AC+4*f+2*h+1}], v[{NM+2*m}:{NM+2*m+1}], v[{a+2*h}:{a+2*h+1}]")
                for h in range(2):
                    k.e(f"v_cvt_pk_bf16_f32 v{o+2*ff+h}, v{a+2*h}, v{a+2*h+1}")
            for i in range(4):
                k.e(f"v_pk_max_i16 v{o+i}, v{o+i}, 0")
            k.e(f"buffer_store_dwordx4 v[{o}:{o+3}], v{6+(m>>1)}, s[48:51], s{60+p} offen offset:{1024*(m&1)}{HSC}")
    k.e("s_waitcnt vmcnt(0)")
    publish(k, 56, 8, HSC)
    stamp_mid(k, 3 if flag("STG1") else 1)

def b_aprep(k):
    srd(k, 40, P_Q, NB_X)
    srd(k, 44, P_WS, 16384, ST_OFF)
    srd(k, 68, P_WS, D * S * 2, YT_OFF)
    xo_offsets(k, 8, 1, 2)
    for i in range(3):
        k.e(f"s_add_u32 m0, s81, {XO + 1024*i}")
        k.e(f"buffer_load_dwordx4 v{8+i}, s[40:43], s54 offen lds")
    k.e("v_and_b32 v1, 15, v0")
    k.e("v_lshlrev_b32 v3, 3, v1")
    k.e("s_lshl_b32 s57, s53, 7")
    k.e("v_lshrrev_b32 v4, 3, v0")
    k.e("v_lshlrev_b32 v4, 12, v4")
    k.e("v_and_b32 v2, 7, v0")
    k.e("v_lshl_add_u32 v4, v2, 4, v4")
    k.e("s_mul_i32 s58, s9, 10")
    k.e("s_add_u32 s58, s58, s101")
    k.e("s_lshl_b32 s58, s58, 15")
    k.e("s_lshl_b32 s59, s8, 7")
    k.e("s_add_u32 s58, s58, s59")
    k.e(f"v_mov_b32 v2, {CNT}")
    k.e("s_cmp_eq_u32 s101, 0")
    k.e("s_cbranch_scc1 L_b_poller")
    k.e("s_setprio 0")
    k.e("L_b_lwait:")
    k.e("s_sleep 4")
    k.e("ds_read_b32 v5, v2 offset:4")
    k.e("s_waitcnt lgkmcnt(0)")
    k.e("v_readfirstlane_b32 s60, v5")
    k.e("s_cmp_eq_u32 s60, 0")
    k.e("s_cbranch_scc1 L_b_lwait")
    k.e("s_setprio 3")
    k.e("s_branch L_b_go")
    k.e("L_b_poller:")
    k.e(f"s_mul_i32 s59, s9, {80 << FSH}")
    k.e(f"s_add_u32 s59, s59, {FY}")
    k.e(f"v_lshl_add_u32 v5, v0, {FSH}, s59")
    k.e(f"v_add_u32 v7, {64 << FSH}, v5")
    k.e(f"s_lshl_b32 s59, s8, {3 + FSH}")
    k.e(f"s_add_u32 s59, s59, {FS}")
    k.e("v_and_b32 v6, 7, v0")
    k.e(f"v_lshl_add_u32 v6, v6, {FSH}, s59")
    k.e("v_cmp_gt_u32 vcc, 16, v0")
    k.e("v_cndmask_b32 v6, v6, v7, vcc")
    k.e("s_mov_b32 s60, 0")
    k.e("L_b_poll:")
    k.e(f"buffer_load_dwordx2 v[12:13], v5, s[{FSRD}:{FSRD+3}], 0 offen{SC1}")
    k.e(f"buffer_load_dwordx2 v[14:15], v6, s[{FSRD}:{FSRD+3}], 0 offen{SC1}")
    k.e("s_waitcnt vmcnt(0)")
    k.e(f"v_cmp_ne_u64 vcc, s[{TAG}:{TAG+1}], v[12:13]")
    k.e(f"v_cmp_ne_u64 s[62:63], s[{TAG}:{TAG+1}], v[14:15]")
    k.e("s_or_b64 vcc, vcc, s[62:63]")
    k.e("s_cbranch_scc0 L_b_ready")
    k.e(f"s_sleep {flag('YSLP', 4)}")
    k.e("s_add_u32 s60, s60, 1")
    k.e(f"s_cmp_lt_u32 s60, {SPIN_MAX:#x}")
    k.e("s_cbranch_scc1 L_b_poll")
    k.e("L_b_ready:")
    k.e("v_mov_b32 v5, 1")
    k.e("ds_write_b32 v2, v5 offset:4")
    k.e("L_b_go:")
    stamp_mid(k, 3)
    k.e(f"buffer_load_dwordx2 v[12:13], v3, s[44:47], s57 offen{SC1}")
    for i in range(3):
        if i == 2:
            k.e("s_cmp_ge_u32 s101, 2")
            k.e("s_cbranch_scc1 L_b_noy")
        k.e(f"s_add_u32 m0, s81, {YO + 1024*i}")
        k.e(f"buffer_load_dwordx4 v4, s[68:71], s58 offen{SC1} lds")
        if i < 2: k.e(f"s_add_u32 s58, s58, {4*8*4096}")
    k.e("L_b_noy:")
    k.e("v_mul_u32_u24 v5, 160, v1")
    k.e("v_lshrrev_b32 v6, 4, v0")
    k.e("v_lshl_add_u32 v5, v6, 3, v5")
    k.e("v_add_u32 v5, s81, v5")
    k.e("v_lshrrev_b32 v6, 5, v0")
    k.e(f"v_mul_u32_u24 v6, {CONV_LDS}, v6")
    k.e("v_bfe_u32 v7, v0, 2, 3")
    k.e("v_lshl_add_u32 v6, v7, 7, v6")
    k.e("v_and_b32 v7, 3, v0")
    k.e("v_lshl_add_u32 v6, v7, 3, v6")
    k.e("s_lshl_b32 s59, s101, 5")
    k.e(f"s_add_u32 s59, s59, {RB0}")
    k.e("v_add_u32 v6, s59, v6")
    k.e("v_lshlrev_b32 v7, 4, v0")
    k.e("v_add_u32 v7, s81, v7")
    k.e("v_mov_b32 v3, 1")
    k.e("s_waitcnt vmcnt(0)")
    k.e("s_mov_b64 exec, 1")
    k.e("ds_add_u32 v2, v3")
    k.e("s_mov_b64 exec, -1")
    XR, YR = 16, 26
    for d in range(5):
        k.e(f"ds_read_b64 v[{XR+2*d}:{XR+2*d+1}], v5 offset:{XO + 32*d}")
    k.e("v_mul_f32 v38, 0xbfb8aa3b, v13")
    k.e("v_mul_f32 v39, 0xbfb8aa3b, v13")
    k.e(f"ds_write_b64 v7, v[38:39] offset:{SO + 10240}")
    k.e("v_mul_f32 v14, v13, v13")
    k.e("v_mul_f32 v15, v13, v13")
    k.e("v_sub_f32 v12, 0, v12")
    k.e("v_mov_b32 v13, v12")
    k.e("L_b_cnt:")
    k.e("ds_read_b32 v3, v2")
    k.e("s_waitcnt lgkmcnt(0)")
    k.e("v_readfirstlane_b32 s59, v3")
    k.e("s_cmp_lt_u32 s59, 4")
    k.e("s_cbranch_scc1 L_b_cnt")
    for d in range(5):
        k.e(f"ds_read_b64_tr_b16 v[{YR+2*d}:{YR+2*d+1}], v6 offset:{YO + 2*(d&1)*CONV_LDS + (d>>1)*1024}")
    XF, SF = 40, 60
    k.e("s_waitcnt lgkmcnt(0)")
    for d in range(5):
        for h in range(2):
            x = XF + 4*d + 2*h; s = SF + 4*d + 2*h
            unpack(k, x, x+1, XR + 2*d + h)
            unpack(k, s, s+1, YR + 2*d + h)
            k.e(f"v_pk_add_f32 v[36:37], v[{x}:{x+1}], v[12:13]")
            k.e(f"v_pk_mul_f32 v[{s}:{s+1}], v[{s}:{s+1}], v[14:15]")
            k.e(f"v_pk_mul_f32 v[{s}:{s+1}], v[{s}:{s+1}], v[36:37]")
        k.e(f"ds_write_b128 v7, v[{SF+4*d}:{SF+4*d+3}] offset:{SO + 1024*d}")
        k.e(f"ds_write_b128 v7, v[{XF+4*d}:{XF+4*d+3}] offset:{SO + 5120 + 1024*d}")
    k.e("s_waitcnt lgkmcnt(0)")

def stats_unit(k):
    k.e("s_and_b32 s10, s2, 6")
    k.e("s_lshl_b32 s10, s10, 8")
    k.e("s_lshl_b32 s11, s5, 4")
    k.e("s_add_u32 s10, s10, s11")
    k.e("s_and_b32 s11, s2, 1")
    k.e("s_lshl_b32 s11, s11, 3")
    k.e("s_add_u32 s52, s10, s11")
    aux.emit_stats(k, 52, SC1)
    k.e(f"s_add_u32 s52, s52, {FS}")
    k.e("s_waitcnt vmcnt(0)")
    publish(k, 52, 4)

def b_flagset(k):
    k.e("s_lshr_b32 s83, s82, 6")
    k.e(f"s_lshl_b32 s83, s83, {5 + FSH}")
    k.e("s_lshr_b32 s10, s9, 1")
    k.e(f"s_lshl_b32 s10, s10, {6 + FSH}")
    k.e(f"s_add_u32 s10, s10, {FW}")
    k.e("s_cmp_lt_u32 s82, 640")
    k.e("s_cselect_b32 s83, s83, s10")
    k.e("s_cselect_b32 s10, 31, 53")
    k.e("v_min_u32 v250, s10, v0")
    k.e(f"v_lshlrev_b32 v250, {FSH}, v250")

def kernel():
    k = Kern(NAME)
    stamp_begin(k)
    k.e("s_cmp_ge_u32 s2, 256")
    k.e("s_cbranch_scc1 L_end")
    load_ptrs(k)
    k.e("v_lshrrev_b32 v1, 6, v0")
    k.e("v_readfirstlane_b32 s3, v1")
    k.e("v_and_b32 v0, 63, v0")
    k.e("s_and_b32 s4, s2, 7")
    k.e("s_lshr_b32 s5, s2, 3")
    k.e("s_lshr_b32 s10, s4, 1")
    k.e("s_and_b32 s11, s4, 1")
    k.e("s_lshl_b32 s6, s10, 2")
    k.e("s_and_b32 s7, s5, 3")
    k.e("s_add_u32 s6, s6, s7")
    k.e("s_lshl_b32 s9, s11, 2")
    k.e("s_add_u32 s9, s9, s7")
    k.e("s_lshr_b32 s8, s5, 2")
    k.e("s_mul_i32 s7, s11, 7")
    k.e("s_add_u32 s7, s7, s8")
    k.e("s_lshl_b32 s10, s10, 3")
    k.e("s_add_u32 s8, s8, s10")
    if flag("MAP81"):
        k.e("s_lshl_b32 s6, s4, 1")
        k.e("s_and_b32 s7, s5, 1")
        k.e("s_add_u32 s6, s6, s7")
        k.e("s_lshr_b32 s7, s5, 1")
        k.e("s_lshl_b32 s8, s4, 2")
        k.e("s_lshr_b32 s9, s5, 3")
        k.e("s_add_u32 s8, s8, s9")
        k.e("s_and_b32 s9, s5, 7")
    k.e("s_and_b32 s101, s3, 3")
    k.e("v_mov_b32 v2, 0")
    k.e("v_mov_b32 v3, 0")
    k.e(f"v_mov_b32 v1, {CNT}")
    k.e("ds_write_b64 v1, v[2:3]")
    k.e("s_waitcnt lgkmcnt(0)")
    srd(k, FSRD, P_WS, 32768, FL_OFF)
    k.e(f"s_load_dwordx2 s[{TAG}:{TAG+1}], s[{FSRD}:{FSRD+1}], {EP}")
    k.e(f"s_mul_i32 s81, s101, {CONV_LDS}")
    k.e(f"s_add_u32 s81, s81, {RB0}")
    k.e("s_cmp_ge_u32 s2, 224")
    k.e("s_cbranch_scc1 L_free")
    k.e("s_cmp_lt_u32 s3, 4")
    k.e("s_cbranch_scc1 L_a")
    k.e("s_setprio 1")
    k1.loader_setup(k, 6, 7, 101)
    vm = Vm(); last = {}
    def put(x):
        k.e(x)
        return vm.op() if is_vmem(x) else None
    def dma(st):
        for x in k1.dma(st):
            r = put(x)
            if r is not None: last[st] = r
    dma(0); dma(1)
    if flag("D4"): dma(2); dma(3)
    k.e("s_lshl_b32 s82, s2, 1")
    k.e("s_add_u32 s82, s82, s101")
    k.e("s_add_u32 s10, s2, 448")
    k.e("s_cmp_lt_u32 s2, 64")
    k.e("s_cselect_b32 s10, s10, 1000")
    k.e("s_cmp_eq_u32 s101, 2")
    k.e("s_cselect_b32 s82, s10, s82")
    k.e("s_cmp_eq_u32 s101, 3")
    k.e("s_cselect_b32 s82, 1000, s82")
    b_flagset(k)
    k.e("s_waitcnt lgkmcnt(0)")
    make_tag(k)
    for s in range(NSTAGE - 1):
        k.e(f"s_waitcnt vmcnt({vm.wait(last[s])})")
        k.e("s_barrier")
        if s == 0:
            if not flag("D4"): dma(2); dma(3)
        elif s + 3 < NSTAGE:
            if s + 3 == 8 and not flag("NOPP"):
                put(f"buffer_load_dwordx2 v[252:253], v250, s[{FSRD}:{FSRD+3}], s83 offen{SC1}")
            dma(s + 3)
    if flag("NOCONV"):
        k.e("s_cmp_lt_u32 s82, 640")
        k.e("s_cbranch_scc1 L_bpre_ok")
    if flag("NOWF"):
        k.e("s_cmp_lt_u32 s82, 640")
        k.e("s_cbranch_scc0 L_bpre_ok")
    poll2(k, "L_bpre", 252, 250, 83, 10, preloaded=True)
    k.e("s_cmp_lt_u32 s82, 640")
    k.e("s_cbranch_scc1 L_b_hasconv")
    k.e("s_waitcnt vmcnt(0)")
    k.e("s_barrier")
    k.e("s_barrier")
    k.e("s_cmp_eq_u32 s101, 3")
    k.e("s_cbranch_scc0 L_b_aprep")
    k.e("s_setprio 0")
    stats_unit(k)
    k.e("s_branch L_b_aprep")
    k.e("L_b_hasconv:")
    if not flag("NOCS"): conv.conv_setup(k, 82, 81, SC1)
    k.e(f"s_waitcnt vmcnt({0 if flag('NOCS') else 16})")
    k.e("s_barrier")
    k.e("s_barrier")
    k.e("L_b_conv:")
    stamp_mid(k, 0)
    if not flag("NOCONV"):
        conv.conv_stage(k, 82, 81, 0)
        stamp_mid(k, 1)
        k.e(f"s_setprio {flag('PC', 1)}")
        conv.conv_main(k, "f")
        k.e("s_setprio 3")
        conv.conv_epilogue(k, 82, SC1)
    k.e("s_lshl_b32 s10, s82, 3")
    k.e(f"s_add_u32 s83, s10, {FY}")
    k.e("s_waitcnt vmcnt(0)")
    publish(k, 83, 4)
    stamp_mid(k, 2)
    k.e("L_b_aprep:")
    k.e("s_setprio 3")
    b_aprep(k)
    k.e("s_add_u32 s10, s2, s101")
    k.e("s_cmp_eq_u32 s10, 0")
    k.e("s_cbranch_scc0 L_b_end")
    k.e("s_barrier")
    k.e("v_lshlrev_b32 v1, 3, v0")
    for i in range(10):
        k.e(f"s_mov_b32 s83, {FY + 512*i}")
        poll2(k, f"L_ep{i}", 4, 1, 83, 10)
    k.e(f"s_mov_b32 s83, {EP}")
    publish(k, 83, 4)
    k.e("L_b_end:")
    finish(k, 1)
    k.e("L_free:")
    if flag("FREESLP"):
        for _ in range(3): k.e("s_sleep 100")
    k.e("s_barrier")
    k.e("s_sub_u32 s84, s2, 224")
    k.e("s_cmp_lt_u32 s3, 4")
    k.e("s_cbranch_scc1 L_free_a")
    k.e("s_cmp_eq_u32 s3, 7")
    k.e("s_cbranch_scc1 L_free_stats")
    k.e("s_mul_i32 s85, s84, 3")
    k.e("s_add_u32 s85, s85, s101")
    k.e("s_add_u32 s85, s85, 224")
    aux.emit_prep(k, 85, 81, SC1)
    make_tag(k)
    k.e("s_lshl_b32 s55, s49, 5")
    k.e("s_add_u32 s55, s55, s48")
    k.e("s_lshl_b32 s55, s55, 3")
    k.e("s_waitcnt vmcnt(0)")
    publish(k, 55, 4)
    k.e("s_branch L_free_b2")
    k.e("L_free_stats:")
    k.e("s_waitcnt lgkmcnt(0)")
    make_tag(k)
    stats_unit(k)
    k.e("L_free_b2:")
    k.e("s_lshl_b32 s82, s84, 2")
    k.e("s_add_u32 s82, s82, s101")
    k.e("s_add_u32 s82, s82, 512")
    b_flagset(k)
    if not flag("NOCONV"): poll2(k, "L_fu", 252, 250, 83, 10, sleep=8)
    conv.conv_setup(k, 82, 81, SC1)
    k.e("s_branch L_b_conv")
    k.e("L_free_a:")
    k.e("s_lshl_b32 s85, s84, 2")
    k.e("s_add_u32 s85, s85, s101")
    k.e("s_lshl_b32 s86, s101, 14")
    k.e("s_waitcnt lgkmcnt(0)")
    make_tag(k)
    if flag("NOREL"): k.e("s_branch L_free_norel")
    k.e("L_free_rel:")
    aux.emit_relayout(k, 85, 86, SC1)
    k.e("s_lshl_b32 s55, s49, 6")
    k.e("s_add_u32 s55, s55, s48")
    k.e("s_lshl_b32 s55, s55, 3")
    k.e(f"s_add_u32 s55, s55, {FW}")
    k.e("s_waitcnt vmcnt(0)")
    publish(k, 55, 4)
    k.e("s_add_u32 s85, s85, 128")
    k.e("s_cmp_lt_u32 s85, 216")
    k.e("s_cbranch_scc1 L_free_rel")
    k.e("L_free_norel:")
    k.e("s_sleep 100") if flag("NOREL") else None
    k.e("s_sleep 100") if flag("NOREL") else None
    stamp_mid(k, 0)
    precompute(k)
    k.e("s_lshr_b32 s57, s9, 1")
    k.e("s_lshl_b32 s57, s57, 9")
    k.e(f"s_add_u32 s57, s57, {FW}")
    k.e("v_min_u32 v8, 53, v0")
    k.e("v_lshlrev_b32 v8, 3, v8")
    if not flag("NOWF"): poll2(k, "L_fw", 10, 8, 57, 58, sleep=8)
    srd(k, 44, P_WS, NB_W, W2_OFF)
    k.e("v_lshlrev_b32 v1, 4, v0")
    k.e("v_add_u32 v2, 4096, v1")
    for s in range(0 if flag("NOWL") else 4):
        for x in w_loads(s): k.e(x)
    k.e("s_sleep 64") if flag("FSLP") else None
    k.e("s_branch L_g2")
    k.e("L_a:")
    k.e("s_mov_b32 s55, 0")
    k.e(f"s_cmp_lg_u32 s3, {99 if flag('NOPREP') else 0}")
    k.e("s_cbranch_scc1 L_a_noprep")
    k.e("s_setprio 3")
    k.e(f"s_mov_b32 s81, {TOP}")
    aux.emit_prep(k, 2, 81, SC1)
    k.e("s_setprio 0")
    k.e("s_lshl_b32 s55, s49, 5")
    k.e("s_add_u32 s55, s55, s48")
    k.e("s_lshl_b32 s55, s55, 3")
    k.e("L_a_noprep:")
    k.e("s_waitcnt lgkmcnt(0)")
    make_tag(k)
    precompute(k)
    g1_phase(k)
    k.e("L_g2:")
    g2_phase(k)
    finish(k, 0)
    k.e("L_end:")
    k.e("s_endpgm")
    return k

if __name__ == "__main__":
    import sys
    hdr = open("recurrent_scan__ssm_conv_h3__dense_activation_relu__prompt.s.ref").read().split("; Override")[0]
    k = kernel()
    out = hdr + f"; @launch grid=(256,1,1) block=(512,1,1) lds={LDS_BYTES}\n"
    out += '.amdgcn_target "amdgcn-amd-amdhsa--gfx950"\n.text\n' + k.body() + '.section .rodata,"a"\n' + k.desc()
    open(sys.argv[1], "w").write(out)
```

```python
from common import *
import aux, conv, k1
from conv import interleave, CONV_LDS
from k1 import Vm, is_vmem, SLOT, WPART, NSTAGE
import fused as F
from fused import (NAME, SC1, FU, FW, FH, FY, FS, EP, RB0, TOP, CNT, LDS_BYTES, XO, YO, SO, NSTEP, TAG, FSRD,
                   SPIN_MAX, FSH, FL_BYTES, publish, check2, poll2, make_tag, xo_offsets, spread, b_aprep, b_flagset)

EA = 131072
OOB = 0x40000000
NH = flag("NH", 4); NW = flag("NW", 5)
G_ACC, G_H = 8, 88
G_W = G_H + 16 * NH
assert G_W + 20 * NW <= 256

def early_loads(k):
    srd(k, 40, P_K, NB_X)
    srd(k, 44, P_V, NB_X)
    srd(k, 48, P_SH, D * 8)
    srd(k, 62 + 2, P_W2, NB_W)
    k.e("s_mul_i32 s52, s2, 6554")
    k.e("s_lshr_b32 s52, s52, 16")
    k.e("s_mul_i32 s53, s52, 10")
    k.e("s_sub_u32 s53, s2, s53")
    k.e("s_lshl_b32 s54, s52, 2")
    k.e("s_add_u32 s54, s54, s3")
    k.e("s_mul_i32 s54, s54, 20480")
    k.e("s_lshl_b32 s55, s53, 7")
    k.e("s_add_u32 s54, s54, s55")
    k.e("v_lshrrev_b32 v1, 3, v0")
    k.e("v_mul_u32_u24 v2, 1280, v1")
    k.e("v_and_b32 v3, 7, v0")
    k.e("v_lshl_add_u32 v2, v3, 4, v2")
    k.e("v_add_u32 v2, s54, v2")
    k.e("v_subrev_u32 v4, 3840, v2")
    k.e("s_mul_i32 s56, s3, 5120")
    k.e(f"s_add_u32 s56, s56, {EA}")
    k.e("s_mov_b32 m0, s56")
    k.e("buffer_load_dwordx4 v4, s[40:43], 0 offen lds")
    k.e(f"v_add_u32 v5, {10240 - 3840 - 1024}, v2")
    k.e("buffer_load_dwordx4 v5, s[40:43], 0 offen offset:1024 lds")
    k.e(f"v_add_u32 v5, {20480 - 3840 - 2048}, v2")
    k.e(f"v_mov_b32 v6, {OOB}")
    k.e("v_cmp_gt_u32 vcc, 24, v0")
    k.e("v_cndmask_b32 v5, v6, v5, vcc")
    k.e("buffer_load_dwordx4 v5, s[40:43], 0 offen offset:2048 lds")
    k.e("s_add_u32 m0, s56, 3072")
    k.e(f"v_add_u32 v5, {10240 - 1024}, v2")
    k.e("buffer_load_dwordx4 v2, s[44:47], 0 offen lds")
    k.e("buffer_load_dwordx4 v5, s[44:47], 0 offen offset:1024 lds")
    k.e("v_and_b32 v7, 31, v0")
    k.e("v_lshlrev_b32 v8, 4, v7")
    k.e("s_lshl_b32 s55, s53, 9")
    k.e("buffer_load_dwordx4 v[12:15], v8, s[48:51], s55 offen")
    k.e("s_lshr_b32 s57, s2, 2")
    k.e("s_and_b32 s58, s2, 3")
    k.e("s_mul_i32 s59, s57, 40960")
    k.e("s_mul_i32 s60, s58, 320")
    k.e("s_add_u32 s59, s59, s60")
    k.e("s_lshl_b32 s60, s3, 6")
    k.e("s_lshl_b32 s61, s3, 10")
    for i in range(3):
        if i == 2:
            k.e("s_cmp_ge_u32 s3, 2")
            k.e("s_cbranch_scc1 L_ea_no3")
        k.e(f"v_add_u32 v9, s60, v0")
        if i: k.e(f"v_add_u32 v9, {256*i}, v9")
        k.e("v_mul_u32_u24 v10, 52429, v9")
        k.e("v_lshrrev_b32 v10, 20, v10")
        k.e("v_mul_u32_u24 v10, 960, v10")
        k.e("v_lshl_add_u32 v10, v9, 4, v10")
        k.e(f"s_add_u32 m0, s61, {EA + 20480 + 4096*i}")
        k.e("buffer_load_dwordx4 v10, s[64:67], s59 offen lds")
    k.e("L_ea_no3:")

def early_compute(k):
    k.e("v_lshrrev_b32 v9, 5, v0")
    k.e("v_lshlrev_b32 v10, 10, v9")
    k.e("v_lshl_add_u32 v10, v7, 2, v10")
    k.e("v_add_u32 v10, s56, v10")
    k.e("v_sub_u32 v11, 1, v9")
    k.e("v_lshlrev_b32 v11, 4, v11")
    k.e("v_lshl_add_u32 v11, v7, 6, v11")
    k.e("v_add_u32 v11, s56, v11")
    KR, VR, TP, KU, VU, KV, OUT = 16, 28, 36, 44, 66, 82, 88
    k.e("s_waitcnt vmcnt(2)")
    for j in range(11):
        k.e(f"ds_read_b32 v{KR+j}, v10 offset:{128*j}")
    for j in range(8):
        k.e(f"ds_read_b32 v{VR+j}, v10 offset:{3072 + 128*j}")
    for c in range(2):
        unpack(k, TP + 0 + c, TP + 2 + c, 12 + 2*c)
        unpack(k, TP + 4 + c, TP + 6 + c, 13 + 2*c)
    k.e("s_waitcnt lgkmcnt(0)")
    for j in range(11): unpack(k, KU + 2*j, KU + 2*j + 1, KR + j)
    for j in range(8): unpack(k, VU + 2*j, VU + 2*j + 1, VR + j)
    for r in range(8):
        d = KV + 2*(r & 1)
        for j in (3, 2, 1, 0):
            w = KU + 2*(r + 3 - j); t = TP + 2*j
            if j == 3: k.e(f"v_pk_mul_f32 v[{d}:{d+1}], v[{w}:{w+1}], v[{t}:{t+1}]")
            else: k.e(f"v_pk_fma_f32 v[{d}:{d+1}], v[{w}:{w+1}], v[{t}:{t+1}], v[{d}:{d+1}]")
        k.e(f"v_pk_mul_f32 v[{d}:{d+1}], v[{d}:{d+1}], v[{VU+2*r}:{VU+2*r+1}]")
        if r & 1:
            for c in range(2):
                k.e(f"v_cvt_pk_bf16_f32 v{OUT+4*c+3-r//2}, v{KV+2+c}, v{KV+c}")
    for c in range(2):
        k.e(f"ds_write_b128 v11, v[{OUT+4*c}:{OUT+4*c+3}] offset:{32*c}")
    srd(k, 40, P_WS, D * S * 2, UR_OFF)
    k.e("v_and_b32 v9, 7, v0")
    k.e("v_lshrrev_b32 v10, 3, v0")
    k.e("v_lshrrev_b32 v11, 1, v9")
    k.e("v_sub_u32 v11, 3, v11")
    k.e("v_mul_u32_u24 v11, 5120, v11")
    k.e("v_lshl_add_u32 v11, v10, 5, v11")
    k.e("v_and_b32 v12, 1, v9")
    k.e("v_lshl_add_u32 v11, v12, 4, v11")
    k.e("s_lshl_b32 s60, s3, 9")
    k.e(f"s_add_u32 s60, s60, {EA}")
    k.e("v_add_u32 v176, s60, v11")
    k.e("v_lshlrev_b32 v177, 12, v10")
    k.e("v_lshl_add_u32 v177, v9, 4, v177")
    k.e("s_lshl_b32 s68, s53, 2")
    k.e("s_add_u32 s68, s68, s3")
    k.e("s_lshl_b32 s68, s68, 16")
    k.e("s_lshl_b32 s60, s52, 7")
    k.e("s_sub_u32 s60, 3968, s60")
    k.e("s_add_u32 s68, s68, s60")
    k.e("s_add_u32 s69, s68, 32768")
    k.e("v_lshrrev_b32 v11, 2, v0")
    k.e("v_mul_u32_u24 v11, 320, v11")
    k.e("v_and_b32 v12, 3, v0")
    k.e("v_lshl_add_u32 v11, v12, 3, v11")
    k.e("s_lshl_b32 s60, s3, 5")
    k.e(f"s_add_u32 s60, s60, {EA + 20480}")
    k.e("v_add_u32 v178, s60, v11")
    k.e("s_mul_i32 s60, s58, 108")
    k.e("s_add_u32 s60, s60, s57")
    k.e("s_mul_i32 s60, s60, 5120")
    k.e("s_cmp_ge_u32 s2, 216")
    k.e(f"s_cselect_b32 s60, {OOB}, s60")
    k.e("s_lshl_b32 s61, s3, 10")
    k.e("s_add_u32 s70, s60, s61")
    k.e("s_cmp_eq_u32 s3, 0")
    k.e(f"s_cselect_b32 s71, 0, {54*5120 - 5120}")
    k.e("s_add_u32 s71, s71, s70")
    k.e("s_add_u32 s71, s71, 4096")
    k.e(f"s_add_u32 s72, s70, {54*5120 + 3072}")
    k.e("s_cmp_ge_u32 s3, 2")
    k.e(f"s_cselect_b32 s72, {OOB}, s72")
    k.e("s_lshl_b32 s73, s53, 5")
    k.e("s_add_u32 s73, s73, s52")
    k.e(f"s_lshl_b32 s73, s73, {FSH}")
    k.e("s_lshl_b32 s74, s58, 6")
    k.e("s_add_u32 s74, s74, s57")
    k.e(f"s_lshl_b32 s74, s74, {FSH}")
    k.e(f"s_add_u32 s74, s74, {FW}")
    k.e("s_waitcnt vmcnt(0)")

def early_reads():
    L = [f"ds_read_b128 v[{180+4*i}:{183+4*i}], v176 offset:{256*i}" for i in range(2)]
    for i in range(3):
        L.append(f"ds_read_b64_tr_b16 v[{188+4*i}:{189+4*i}], v178 offset:{128*i}")
        L.append(f"ds_read_b64_tr_b16 v[{190+4*i}:{191+4*i}], v178 offset:{128*i + 5120}")
    return L
def early_stores():
    L = [f"buffer_store_dwordx4 v[{180+4*i}:{183+4*i}], v177, s[40:43], s{68+i} offen{SC1}" for i in range(2)]
    L += [f"buffer_store_dwordx4 v[{188+4*i}:{191+4*i}], v1, s[44:47], s{70+i} offen{SC1}" for i in range(3)]
    return L

def g2_offsets(k):
    k.e("s_mul_i32 s10, s101, 14")
    k.e("s_cmp_eq_u32 s101, 3")
    k.e("s_cselect_b32 s10, 41, s10")
    k.e(f"s_mul_i32 s11, s8, {NT}")
    k.e("s_add_u32 s11, s11, s10")
    k.e("s_lshl_b32 s76, s11, 12")
    k.e(f"s_mul_i32 s11, s9, {NT}")
    k.e("s_add_u32 s11, s11, s10")
    k.e("s_mul_i32 s77, s11, 5120")
    k.e(f"s_add_u32 s78, s77, {11*5120}")
    k.e("s_cmp_ge_u32 s101, 2")
    k.e(f"s_cselect_b32 s79, {OOB}, 0")
def w_loads(step):
    b = G_W + 20 * (step % NW)
    L = [f"buffer_load_dwordx4 v[{b+4*d}:{b+4*d+3}], v1, s[44:47], s77 offen offset:{1024*d}{SC1}" for d in range(4)]
    L.append(f"buffer_load_dwordx4 v[{b+16}:{b+19}], v2, s[44:47], s77 offen{SC1}")
    L.append("s_add_u32 s77, s77, 5120")
    return L
def h_loads(step):
    b = G_H + 16 * (step % NH)
    L = ["s_add_u32 s76, s76, s79"] if step == NSTEP - 1 else []
    L += [f"buffer_load_dwordx4 v[{b+4*m}:{b+4*m+3}], v{3+m}, s[40:43], s76 offen{SC1}" for m in range(4)]
    L.append("s_add_u32 s76, s76, 4096")
    return L
def w_lds_reads(step):
    b = G_W + 20 * (step % NW)
    return [f"ds_read_b128 v[{b+4*d}:{b+4*d+3}], v7 offset:{(step-11)*5120 + 1024*d}" for d in range(5)]
def g2_mfmas(step):
    b = G_H + 16 * (step % NH); wb = G_W + 20 * (step % NW)
    L = []
    for d in range(5):
        for m in range(4):
            a = G_ACC + 16*d + 4*m
            c = "0" if step == 0 else f"v[{a}:{a+3}]"
            L.append(f"v_mfma_f32_16x16x32_bf16 v[{a}:{a+3}], v[{wb+4*d}:{wb+4*d+3}], v[{b+4*m}:{b+4*m+3}], {c}")
    return L

def g2_prefetch_a():
    return [x for s in range(NW) for x in w_loads(s)]
def g2_prefetch_b(k):
    k.e("s_lshl_b32 s56, s101, 14")
    for s in (11, 12, 13):
        if s == 13: k.e("s_add_u32 s78, s78, s79")
        k.e(f"s_add_u32 m0, s56, {(s-11)*5120}")
        for d in range(4):
            k.e(f"buffer_load_dwordx4 v1, s[44:47], s78 offen offset:{1024*d}{SC1} lds")
        k.e(f"s_add_u32 m0, s56, {(s-11)*5120 + 4096}")
        k.e(f"buffer_load_dwordx4 v2, s[44:47], s78 offen{SC1} lds")
        k.e("s_add_u32 s78, s78, 5120")

def g2_phase(k):
    k.e("s_setprio 0")
    g2_prefetch_b(k)
    srd(k, 40, P_WS, 32 * NT * 4096, H_OFF)
    k.e("s_lshl_b32 s52, s101, 10")
    k.e("v_add_u32 v3, s52, v1")
    for m in range(1, 4):
        k.e(f"v_xor_b32 v{3+m}, {1024*m}, v3")
    k.e("v_add_u32 v7, s56, v1")
    k.e("s_mul_i32 s57, s101, 7")
    k.e("s_min_u32 s57, s57, 20")
    k.e("s_lshl_b32 s58, s8, 5")
    k.e("s_add_u32 s57, s57, s58")
    k.e(f"s_lshl_b32 s57, s57, {FSH}")
    k.e(f"s_add_u32 s57, s57, {FH}")
    k.e("v_min_u32 v8, 6, v0")
    k.e(f"v_lshlrev_b32 v8, {FSH}, v8")
    poll2(k, "L_hpoll", 10, 8, 57, 58, sleep=flag("HSLP", 2))
    if not flag("STG1"): stamp_mid(k, 2)
    vm = Vm(); hneed = {}; wneed = {}
    for s in range(NH - 1):
        for x in h_loads(s):
            k.e(x)
            if is_vmem(x): hneed[s] = vm.op()
    for s in range(NSTEP):
        idx = max(hneed[s], wneed.get(s, -1))
        lg = " lgkmcnt(0)" if s >= 11 else ""
        k.e(f"s_waitcnt vmcnt({vm.wait(idx)}){lg}")
        fill = []
        if s + NH - 1 < NSTEP: fill += [(x, "h", s + NH - 1) for x in h_loads(s + NH - 1)]
        r = s + NW - 1
        if s >= 1 and r <= 10: fill += [(x, "w", r) for x in w_loads(r)]
        if s >= 1 and 11 <= r <= 13: fill += [(x, "l", r) for x in w_lds_reads(r)]
        m = g2_mfmas(s); fi = 0
        for i, x in enumerate(m):
            k.e(x)
            if i % 2 == 0 or flag("DENSE"):
                while fi < len(fill):
                    y, t, st = fill[fi]; fi += 1
                    k.e(y)
                    if is_vmem(y):
                        (hneed if t == "h" else wneed)[st] = vm.op()
                    if not y.startswith("s_"): break
        for y, t, st in fill[fi:]:
            k.e(y)
            if is_vmem(y): (hneed if t == "h" else wneed)[st] = vm.op()
    if not flag("STG1"): stamp_mid(k, 3)
    g2_tail(k)

def g2_tail(k):
    k.e("s_setprio 2")
    for m in range(1, 4):
        for d in range(5):
            a = G_ACC + 16*d + 4*m
            k.e(f"ds_write_b128 v7, v[{a}:{a+3}] offset:{(m-1)*5120 + 1024*d}")
    srd(k, 48, P_OUT, NB_X)
    T = 200
    xo_offsets(k, T, T+3, T+4)
    for m in range(1, 4):
        k.e(f"v_xor_b32 v{T+4+m}, {16384*m}, v7")
    k.e(f"s_mul_i32 s59, s101, {CONV_LDS}")
    k.e(f"s_add_u32 s59, s59, {RB0}")
    k.e(f"v_add_u32 v{T+8}, s59, v1")
    k.e(f"v_and_b32 v{T+9}, 15, v0")
    k.e(f"v_mul_u32_u24 v{T+9}, 160, v{T+9}")
    k.e(f"v_lshrrev_b32 v{T+10}, 4, v0")
    k.e(f"v_lshl_add_u32 v{T+9}, v{T+10}, 3, v{T+9}")
    k.e(f"v_add_u32 v{T+9}, s59, v{T+9}")
    k.e(f"v_mov_b32 v{T+12}, 1.0")
    k.e(f"v_mov_b32 v{T+13}, 1.0")
    k.e("s_waitcnt lgkmcnt(0)")
    k.e("s_barrier")
    SF, XF, CC = 88, 108, T + 14
    k.e(f"ds_read_b64 v[{CC}:{CC+1}], v{T+8} offset:{SO + 10240}")
    for d in range(5):
        for m in range(1, 4):
            a = G_ACC + 16*d + 4*m
            k.e(f"ds_read_b128 v[{a}:{a+3}], v{T+4+m} offset:{(m-1)*5120 + 1024*d}")
        k.e(f"ds_read_b128 v[{SF+4*d}:{SF+4*d+3}], v{T+8} offset:{SO + 1024*d}")
        k.e(f"ds_read_b128 v[{XF+4*d}:{XF+4*d+3}], v{T+8} offset:{SO + 5120 + 1024*d}")
    for d in range(5):
        k.e(f"s_waitcnt lgkmcnt({min(15, 20-5*d)})")
        a = G_ACC + 16*d
        for h in range(2):
            k.e(f"v_pk_add_f32 v[{a+2*h}:{a+2*h+1}], v[{a+2*h}:{a+2*h+1}], v[{a+4+2*h}:{a+4+2*h+1}]")
            k.e(f"v_pk_add_f32 v[{a+8+2*h}:{a+8+2*h+1}], v[{a+8+2*h}:{a+8+2*h+1}], v[{a+12+2*h}:{a+12+2*h+1}]")
        for h in range(2):
            k.e(f"v_pk_add_f32 v[{a+2*h}:{a+2*h+1}], v[{a+2*h}:{a+2*h+1}], v[{a+8+2*h}:{a+8+2*h+1}]")
        e = a + 4
        for h in range(2):
            k.e(f"v_pk_mul_f32 v[{e+2*h}:{e+2*h+1}], v[{a+2*h}:{a+2*h+1}], v[{CC}:{CC+1}]")
        for r in range(4):
            k.e(f"v_exp_f32 v{e+r}, v{e+r}")
        for h in range(2):
            s = SF + 4*d + 2*h
            k.e(f"v_pk_mul_f32 v[{a+2*h}:{a+2*h+1}], v[{a+2*h}:{a+2*h+1}], v[{s}:{s+1}]")
        for h in range(2):
            k.e(f"v_pk_add_f32 v[{e+2*h}:{e+2*h+1}], v[{e+2*h}:{e+2*h+1}], v[{T+12}:{T+13}]")
        for r in range(4):
            k.e(f"v_rcp_f32 v{e+r}, v{e+r}")
        for h in range(2):
            x = XF + 4*d + 2*h
            k.e(f"v_pk_fma_f32 v[{a+2*h}:{a+2*h+1}], v[{a+2*h}:{a+2*h+1}], v[{e+2*h}:{e+2*h+1}], v[{x}:{x+1}]")
        k.e(f"v_cvt_pk_bf16_f32 v{a+8}, v{a}, v{a+1}")
        k.e(f"v_cvt_pk_bf16_f32 v{a+9}, v{a+2}, v{a+3}")
    for d in range(5):
        a = G_ACC + 16*d
        k.e(f"ds_write_b64 v{T+9}, v[{a+8}:{a+9}] offset:{XO + 32*d}")
    k.e("s_waitcnt lgkmcnt(0)")
    O = 128
    for i in range(3):
        k.e(f"ds_read_b128 v[{O+4*i}:{O+4*i+3}], v{T+8} offset:{XO + 1024*i}")
    for i in range(3):
        k.e(f"s_waitcnt lgkmcnt({2-i})")
        k.e(f"buffer_store_dwordx4 v[{O+4*i}:{O+4*i+3}], v{T+i}, s[48:51], s54 offen")

def g1_phase(k):
    PUB = flag("PUB", 4)
    srd(k, 48, P_WS, 32 * NT * 4096, H_OFF)
    srd(k, 44, P_WS, NB_W, W2_OFF)
    k.e("s_and_b32 s52, s3, 1")
    k.e("s_lshr_b32 s53, s3, 1")
    BA, AA = 10, 14
    k.e("v_lshlrev_b32 v1, 4, v0")
    k.e("v_add_u32 v2, 4096, v1")
    k.e("v_and_b32 v18, 15, v0")
    k.e("v_lshrrev_b32 v19, 4, v0")
    k.e("v_lshrrev_b32 v20, 1, v18")
    k.e("v_xor_b32 v20, v20, v19")
    k.e("v_lshlrev_b32 v20, 4, v20")
    k.e("v_lshl_add_u32 v20, v18, 7, v20")
    k.e("s_lshl_b32 s58, s52, 13")
    k.e("s_lshl_b32 s59, s53, 12")
    k.e("s_add_u32 s58, s58, s59")
    k.e(f"v_add_u32 v{BA}, s58, v20")
    k.e(f"v_xor_b32 v{BA+1}, 64, v{BA}")
    k.e(f"v_xor_b32 v{BA+2}, 0x1000, v{BA}")
    k.e(f"v_xor_b32 v{BA+3}, 0x1040, v{BA}")
    k.e("v_lshrrev_b32 v20, 2, v18")
    k.e("v_and_b32 v21, 3, v18")
    k.e("v_lshl_add_u32 v22, v19, 3, v20")
    k.e("v_lshlrev_b32 v22, 8, v22")
    k.e("v_lshl_add_u32 v22, v21, 3, v22")
    k.e(f"v_add_u32 v22, {WPART}, v22")
    k.e("v_and_b32 v23, 1, v19")
    k.e("v_lshl_add_u32 v23, v23, 2, v20")
    k.e("s_lshl_b32 s58, s53, 2")
    k.e("s_lshl_b32 s59, s52, 1")
    k.e("s_add_u32 s58, s58, s59")
    k.e("v_xor_b32 v23, s58, v23")
    k.e(f"v_lshl_add_u32 v{AA}, v23, 5, v22")
    for fb in range(1, 4):
        k.e(f"v_xor_b32 v{AA+fb}, {32*fb}, v{AA}")
    ONE = 20
    for i in range(4): k.e(f"v_mov_b32 v{ONE+i}, 0x3f803f80")
    ACC, AR, AC, FR = 24, 88, 96, 112
    for r, x in ((3, 0), (4, 2), (5, 1)):
        k.e(f"s_xor_b32 s58, s3, {x}")
        k.e("s_mul_i32 s58, s58, 3072")
        k.e(f"s_add_u32 s58, s58, {TOP}")
        k.e(f"v_add_u32 v{r}, s58, v1")
    k.e("s_lshl_b32 s58, s7, 1")
    k.e("s_add_u32 s57, s58, s53")
    k.e("s_lshl_b32 s59, s6, 1")
    k.e("s_add_u32 s59, s59, s52")
    k.e("s_lshl_b32 s56, s59, 5")
    k.e("s_add_u32 s56, s56, s57")
    k.e(f"s_lshl_b32 s56, s56, {FSH}")
    k.e(f"s_add_u32 s56, s56, {FH}")
    k.e(f"s_mul_i32 s59, s59, {NT}")
    k.e("s_lshl_b32 s58, s57, 1")
    k.e("s_add_u32 s58, s58, s59")
    k.e("s_lshl_b32 s58, s58, 12")
    k.e("s_lshl_b32 s59, s52, 12")
    k.e("s_add_u32 s60, s58, s59")
    k.e("s_xor_b32 s59, s59, 0x1000")
    k.e("s_add_u32 s61, s58, s59")
    k.e("s_lshl_b32 s59, s53, 11")
    k.e("v_add_u32 v6, s59, v1")
    k.e("v_xor_b32 v7, 0x800, v6")
    def reads(stage, ks, buf):
        so = (stage % 2) * SLOT
        L = []
        fa = FR + 32 * buf; fb_ = fa + 16
        for i in range(4):
            L.append(f"ds_read_b128 v[{fb_+4*i}:{fb_+4*i+3}], v{BA + 2*(i>>1) + ks} offset:{so + 2048*(i&1)}")
            L.append(f"ds_read_b64_tr_b16 v[{fa+4*i}:{fa+4*i+1}], v{AA+i} offset:{so + 8192*ks}")
            L.append(f"ds_read_b64_tr_b16 v[{fa+4*i+2}:{fa+4*i+3}], v{AA+i} offset:{so + 8192*ks + 1024}")
        return L
    def mfmas(buf, first=False, sums_first=False):
        fa = FR + 32 * buf; fb_ = fa + 16
        L = []; Sm = []
        def mm(T, d, a, b):
            c = "0" if first else f"v[{d}:{d+3}]"
            T.append(f"v_mfma_f32_16x16x32_bf16 v[{d}:{d+3}], v[{a}:{a+3}], v[{b}:{b+3}], {c}")
        for f in range(4):
            for m in range(4):
                mm(L, ACC + 16*f + 4*m, fa + 4*f, fb_ + 4*m)
        for i in range(2):
            mm(Sm, AR + 4*i, ONE, fb_ + 4*i)
            mm(Sm, AC + 4*i, fa + 4*i, ONE)
        return Sm + L if sums_first else L + Sm
    for s in range(NSTAGE):
        k.c(f"---- stage {s}")
        k.e("s_waitcnt vmcnt(0) lgkmcnt(0)" if s == PUB else "s_waitcnt lgkmcnt(0)")
        k.e("s_barrier")
        if s == 0: stamp_mid(k, 0)
        if flag("STG1") and s == flag("STA", 4): stamp_mid(k, 1)
        if flag("STG1") and s == flag("STB", 9): stamp_mid(k, 2)
        if s == PUB and not flag("NOPUB"):
            k.e("s_cmp_gt_u32 s3, 1")
            k.e("s_cbranch_scc1 L_g1_nopub")
            k.e("s_cmp_eq_u32 s3, 0")
            k.e("s_cselect_b32 s73, s73, s74")
            k.e("s_setprio 2")
            publish(k, 73, 176)
            k.e("s_setprio 0")
            k.e("L_g1_nopub:")
        if s == 0:
            for x in reads(s, 0, 0) + early_reads(): k.e(x)
        else:
            for x in interleave(mfmas(1), reads(s, 0, 0)): k.e(x)
        k.e("s_waitcnt lgkmcnt(0)")
        nxt = []
        if (s + 1) % 2 == 0 and s + 1 < NSTAGE:
            nxt = [f"v_xor_b32 v{r}, 0x10000, v{r}" for r in list(range(BA, BA+4)) + list(range(AA, AA+4))]
        for x in interleave(mfmas(0, first=(s == 0)), reads(s, 1, 1) + nxt): k.e(x)
        if s == 0:
            k.e("s_setprio 2")
            for x in early_stores(): k.e(x)
            k.e("s_setprio 0")
    k.e("s_waitcnt lgkmcnt(0)")
    fin = mfmas(1, sums_first=True)
    exch = [f"v_mov_b32 v{AR+1}, v{AR+4}",
            f"ds_write_b64 v3, v[{AR}:{AR+1}]",
            f"ds_write_b128 v3, v[{AC}:{AC+3}] offset:1024",
            f"ds_write_b128 v3, v[{AC+4}:{AC+7}] offset:2048"]
    for x in fin[:8]: k.e(x)
    for x in interleave(fin[8:], exch): k.e(x)
    k.e("s_setprio 2")
    k.e("s_waitcnt lgkmcnt(0)")
    k.e("s_barrier")
    if flag("STG1"): stamp_mid(k, 3)
    k.e(f"ds_read_b64 v[{AR+2}:{AR+3}], v4")
    k.e(f"ds_read_b128 v[{AC+8}:{AC+11}], v5 offset:1024")
    k.e(f"ds_read_b128 v[{AC+12}:{AC+15}], v5 offset:2048")
    k.e("s_cmp_ge_u32 s57, 27")
    k.e("s_waitcnt lgkmcnt(0)")
    k.e("s_cbranch_scc1 L_g2pre")
    NM = FR
    for m in range(4):
        k.e(f"v_mul_f32 v{AR+m}, {-1.0/D!r}, v{AR+m}")
    k.e(f"v_cvt_pk_bf16_f32 v{AR+4}, v{AR}, v{AR+1}")
    k.e(f"v_cvt_pk_bf16_f32 v{AR+5}, v{AR+2}, v{AR+3}")
    for m in range(4):
        src = AR + 4 + (m >> 1)
        for h in range(2):
            if m & 1: k.e(f"v_and_b32 v{NM+2*m+h}, 0xffff0000, v{src}")
            else:     k.e(f"v_lshlrev_b32 v{NM+2*m+h}, 16, v{src}")
    OUT = FR + 8
    n = 0
    for p in range(2):
        for m in range(4):
            o = OUT + 4 * (n % 4); n += 1
            for ff in range(2):
                f = 2*p + ff
                a = ACC + 16*f + 4*m
                for h in range(2):
                    k.e(f"v_pk_fma_f32 v[{a+2*h}:{a+2*h+1}], v[{AC+4*f+2*h}:{AC+4*f+2*h+1}], v[{NM+2*m}:{NM+2*m+1}], v[{a+2*h}:{a+2*h+1}]")
                for h in range(2):
                    k.e(f"v_cvt_pk_bf16_f32 v{o+2*ff+h}, v{a+2*h}, v{a+2*h+1}")
            for i in range(4):
                k.e(f"v_pk_max_i16 v{o+i}, v{o+i}, 0")
            k.e(f"buffer_store_dwordx4 v[{o}:{o+3}], v{6+(m>>1)}, s[48:51], s{60+p} offen offset:{1024*(m&1)}{SC1}")
    pre = g2_prefetch_a()
    NPRE = flag("NPRE", 10)
    k.e("s_setprio 0")
    cnt = 0; i = 0
    while cnt < NPRE:
        k.e(pre[i]); cnt += is_vmem(pre[i]); i += 1
    k.e(f"s_waitcnt vmcnt({cnt})")
    k.e("s_setprio 2")
    publish(k, 56, 8)
    k.e("s_setprio 0")
    if not flag("STG1"): stamp_mid(k, 1)
    for x in pre[i:]: k.e(x)
    k.e("s_branch L_g2")
    k.e("L_g2pre:")
    k.e("s_setprio 0")
    for x in pre: k.e(x)

def stats_rows(k, s_idx):
    k.e("s_and_b32 s10, s84, 6")
    k.e("s_lshl_b32 s10, s10, 8")
    k.e("s_lshr_b32 s11, s84, 3")
    k.e("s_lshl_b32 s11, s11, 7")
    k.e("s_add_u32 s10, s10, s11")
    k.e("s_and_b32 s11, s84, 1")
    k.e("s_lshl_b32 s11, s11, 6")
    k.e("s_add_u32 s10, s10, s11")
    k.e(f"s_lshl_b32 s11, s{s_idx}, 3")
    k.e("s_add_u32 s52, s10, s11")

def kernel():
    k = Kern(NAME)
    stamp_begin(k)
    k.e("s_cmp_ge_u32 s2, 256")
    k.e("s_cbranch_scc1 L_end")
    load_ptrs(k)
    k.e("v_lshrrev_b32 v1, 6, v0")
    k.e("v_readfirstlane_b32 s3, v1")
    k.e("v_and_b32 v0, 63, v0")
    k.e("s_and_b32 s4, s2, 7")
    k.e("s_lshr_b32 s5, s2, 3")
    k.e("s_lshr_b32 s10, s4, 1")
    k.e("s_and_b32 s11, s4, 1")
    k.e("s_lshl_b32 s6, s10, 2")
    k.e("s_and_b32 s7, s5, 3")
    k.e("s_add_u32 s6, s6, s7")
    k.e("s_lshl_b32 s9, s11, 2")
    k.e("s_add_u32 s9, s9, s7")
    k.e("s_lshr_b32 s8, s5, 2")
    k.e("s_mul_i32 s7, s11, 7")
    k.e("s_add_u32 s7, s7, s8")
    k.e("s_lshl_b32 s10, s10, 3")
    k.e("s_add_u32 s8, s8, s10")
    k.e("s_and_b32 s101, s3, 3")
    k.e("v_mov_b32 v2, 0")
    k.e("v_mov_b32 v3, 0")
    k.e(f"v_mov_b32 v1, {CNT}")
    k.e("ds_write_b64 v1, v[2:3]")
    k.e(f"s_mul_i32 s81, s101, {CONV_LDS}")
    k.e(f"s_add_u32 s81, s81, {RB0}")
    k.e("s_waitcnt lgkmcnt(0)")
    srd(k, FSRD, P_WS, FL_BYTES, FL_OFF)
    k.e(f"s_load_dwordx2 s[{TAG}:{TAG+1}], s[{FSRD}:{FSRD+1}], {EP}")
    k.e("s_cmp_ge_u32 s2, 224")
    k.e("s_cbranch_scc1 L_free")
    k.e("s_cmp_lt_u32 s3, 4")
    k.e("s_cbranch_scc1 L_a")
    k.e("s_setprio 1")
    k1.loader_setup(k, 6, 7, 101)
    vm = Vm(); last = {}
    def put(x):
        k.e(x)
        return vm.op() if is_vmem(x) else None
    def dma(st):
        for x in k1.dma(st):
            r = put(x)
            if r is not None: last[st] = r
    dma(0); dma(1)
    k.e("s_lshl_b32 s82, s2, 1")
    k.e("s_add_u32 s82, s82, s101")
    k.e("s_add_u32 s10, s2, 448")
    k.e("s_cmp_lt_u32 s2, 64")
    k.e("s_cselect_b32 s10, s10, 1000")
    k.e("s_cmp_eq_u32 s101, 2")
    k.e("s_cselect_b32 s82, s10, s82")
    k.e("s_cmp_eq_u32 s101, 3")
    k.e("s_cselect_b32 s82, 1000, s82")
    b_flagset(k)
    k.e("s_waitcnt lgkmcnt(0)")
    make_tag(k)
    for s in range(NSTAGE - 1):
        k.e(f"s_waitcnt vmcnt({vm.wait(last[s])})")
        k.e("s_barrier")
        if s == 0:
            dma(2); dma(3)
        elif s + 3 < NSTAGE:
            dma(s + 3)
    k.e("s_cmp_lt_u32 s82, 640")
    k.e("s_cbranch_scc1 L_b_hasconv")
    k.e("s_waitcnt vmcnt(0)")
    k.e("s_barrier")
    k.e("s_cmp_eq_u32 s101, 3")
    k.e("s_cbranch_scc0 L_bw_ok")
    poll2(k, "L_bw", 252, 250, 83, 10)
    k.e("s_barrier")
    k.e("s_branch L_b_aprep")
    k.e("L_b_hasconv:")
    conv.conv_setup_hk(k, 82, 81)
    k.e("s_waitcnt vmcnt(12)")
    k.e("s_barrier")
    k.e(f"buffer_load_dwordx2 v[252:253], v250, s[{FSRD}:{FSRD+3}], s83 offen{SC1}")
    k.e("s_barrier")
    k.e("s_waitcnt vmcnt(0)")
    poll2(k, "L_bu", 252, 250, 83, 10, preloaded=True)
    k.e("L_b_conv:")
    conv.conv_setup_u(k, 82, 81, SC1)
    stamp_mid(k, 0)
    conv.conv_stage(k, 82, 81, 0)
    stamp_mid(k, 1)
    k.e(f"s_setprio {flag('PC', 1)}")
    conv.conv_main(k, "f")
    k.e("s_setprio 3")
    conv.conv_epilogue(k, 82, SC1)
    k.e(f"s_lshl_b32 s10, s82, {FSH}")
    k.e(f"s_add_u32 s83, s10, {FY}")
    k.e("s_waitcnt vmcnt(0)")
    publish(k, 83, 4)
    stamp_mid(k, 2)
    k.e("L_b_aprep:")
    k.e("s_setprio 3")
    b_aprep(k)
    k.e("s_add_u32 s10, s2, s101")
    k.e("s_cmp_eq_u32 s10, 0")
    k.e("s_cbranch_scc0 L_b_end")
    k.e("s_barrier")
    k.e(f"v_lshlrev_b32 v1, {FSH}, v0")
    k.e(f"s_mov_b32 s83, {FY}")
    k.e("L_ep_next:")
    poll2(k, "L_ep", 4, 1, 83, 10)
    k.e(f"s_add_u32 s83, s83, {64 << FSH}")
    k.e(f"s_cmp_lt_u32 s83, {FY + (640 << FSH)}")
    k.e("s_cbranch_scc1 L_ep_next")
    k.e(f"s_mov_b32 s83, {EP}")
    publish(k, 83, 4)
    k.e("L_b_end:")
    finish(k, 1)
    k.e("L_free:")
    k.e("s_barrier")
    k.e("s_sub_u32 s84, s2, 224")
    k.e("s_min_u32 s85, s3, 4")
    k.e("s_cmp_lt_u32 s3, 4")
    k.e("s_cbranch_scc1 L_free_stats")
    k.e("s_cmp_eq_u32 s3, 7")
    k.e("s_cbranch_scc1 L_free_stats")
    k.e("s_setprio 2")
    k.e("s_mul_i32 s85, s84, 3")
    k.e("s_add_u32 s85, s85, s101")
    k.e("s_add_u32 s85, s85, 224")
    aux.emit_prep(k, 85, 81, SC1)
    make_tag(k)
    k.e("s_lshl_b32 s55, s49, 5")
    k.e("s_add_u32 s55, s55, s48")
    k.e(f"s_lshl_b32 s55, s55, {FSH}")
    k.e("s_waitcnt vmcnt(0)")
    publish(k, 55, 4)
    k.e("s_branch L_free_b2")
    k.e("L_free_stats:")
    k.e("s_waitcnt lgkmcnt(0)")
    make_tag(k)
    k.e("L_free_stats2:")
    stats_rows(k, 85)
    aux.emit_stats(k, 52, SC1)
    k.e(f"s_lshl_b32 s52, s52, {FSH - 3}")
    k.e(f"s_add_u32 s52, s52, {FS}")
    k.e("s_waitcnt vmcnt(0)")
    publish(k, 52, 4)
    k.e("s_add_u32 s85, s85, 5")
    k.e("s_cmp_lt_u32 s85, 8")
    k.e("s_waitcnt vmcnt(0)")
    k.e("s_cbranch_scc1 L_free_stats2")
    k.e("s_cmp_lt_u32 s3, 4")
    k.e("s_cbranch_scc1 L_free_a")
    k.e("L_free_b2:")
    k.e("s_lshl_b32 s82, s84, 2")
    k.e("s_add_u32 s82, s82, s101")
    k.e("s_add_u32 s82, s82, 512")
    b_flagset(k)
    conv.conv_setup_hk(k, 82, 81)
    poll2(k, "L_fu", 252, 250, 83, 10, sleep=flag("FSL", 8))
    k.e("s_branch L_b_conv")
    k.e("L_free_a:")
    stamp_mid(k, 0)
    g2_offsets(k)
    k.e("s_lshr_b32 s57, s9, 1")
    k.e(f"s_lshl_b32 s57, s57, {6 + FSH}")
    k.e(f"s_add_u32 s57, s57, {FW}")
    k.e("v_min_u32 v8, 53, v0")
    k.e(f"v_lshlrev_b32 v8, {FSH}, v8")
    poll2(k, "L_fw", 10, 8, 57, 58, sleep=flag("FSL", 8))
    srd(k, 44, P_WS, NB_W, W2_OFF)
    k.e("v_lshlrev_b32 v1, 4, v0")
    k.e("v_add_u32 v2, 4096, v1")
    k.e("s_branch L_g2pre")
    k.e("L_a:")
    k.e("s_setprio 3")
    early_loads(k)
    k.e("s_setprio 0")
    g2_offsets(k)
    k.e("s_waitcnt lgkmcnt(0)")
    make_tag(k)
    early_compute(k)
    g1_phase(k)
    k.e("L_g2:")
    g2_phase(k)
    finish(k, 0)
    k.e("L_end:")
    k.e("s_endpgm")
    return k

if __name__ == "__main__":
    import sys
    hdr = open("recurrent_scan__ssm_conv_h3__dense_activation_relu__prompt.s.ref").read().split("; Override")[0]
    k = kernel()
    out = hdr + f"; @launch grid=(256,1,1) block=(512,1,1) lds={LDS_BYTES}\n"
    out += '.amdgcn_target "amdgcn-amd-amdhsa--gfx950"\n.text\n' + k.body() + '.section .rodata,"a"\n' + k.desc()
    open(sys.argv[1], "w").write(out)
```

```python
from common import *
import aux

NSTAGE = 10
SLOT = 32768
WPART = 16384
REL_LDS = 4 * SLOT
K1_LDS = REL_LDS + 10240

class Vm:
    def __init__(self): self.n = 0
    def op(self): self.n += 1; return self.n - 1
    def wait(self, idx): return min(63, self.n - idx - 1)

def is_vmem(x): return x.startswith(("buffer_", "global_"))

def loader_setup(k, s_mt, s_ft, s_lw):
    srd(k, 64, P_Q, NB_X)
    srd(k, 68, P_W1, NB_W)
    XA, WA = 240, 244
    k.e("v_lshrrev_b32 v10, 3, v0")
    k.e(f"s_lshl_b32 s72, s{s_lw}, 5")
    k.e("v_add_u32 v10, s72, v10")
    k.e("v_mul_u32_u24 v10, 1280, v10")
    k.e("v_and_b32 v11, 7, v0")
    k.e("v_lshrrev_b32 v12, 4, v0")
    k.e("v_xor_b32 v13, v11, v12")
    k.e("v_xor_b32 v14, 4, v13")
    k.e(f"v_lshl_add_u32 v{XA}, v13, 4, v10")
    k.e(f"v_lshl_add_u32 v{XA+1}, v14, 4, v10")
    k.e(f"v_add_u32 v{XA+2}, {2*(10240-1024)}, v{XA}")
    k.e(f"v_add_u32 v{XA+3}, {3*(10240-1024)}, v{XA+1}")
    k.e(f"v_add_u32 v{XA+1}, {10240-1024}, v{XA+1}")
    k.e(f"s_lshl_b32 s72, s{s_lw}, 4")
    k.e("v_add_u32 v10, s72, v12")
    k.e("v_mul_u32_u24 v10, 3456, v10")
    k.e("v_and_b32 v11, 1, v0")
    k.e("v_lshl_add_u32 v10, v11, 4, v10")
    k.e("v_bfe_u32 v11, v0, 1, 3")
    k.e("v_xor_b32 v13, v11, v12")
    k.e("v_xor_b32 v14, 4, v13")
    k.e(f"v_lshl_add_u32 v{WA}, v13, 5, v10")
    k.e(f"v_lshl_add_u32 v{WA+2}, v14, 5, v10")
    k.e(f"s_cmp_eq_u32 s{s_ft}, 13")
    k.e("s_cselect_b32 s72, 0x40000000, 0")
    k.e("v_mov_b32 v15, s72")
    k.e("v_cmp_lt_u32 vcc, 3, v13")
    k.e("v_cndmask_b32 v16, 0, v15, vcc")
    k.e("v_sub_u32 v17, v15, v16")
    k.e(f"v_add_u32 v{WA}, v{WA}, v16")
    k.e(f"v_add_u32 v{WA+2}, v{WA+2}, v17")
    st = 4 * 3456 - 1024
    k.e(f"v_add_u32 v{WA+1}, {st}, v{WA}")
    k.e(f"v_add_u32 v{WA+3}, {3*st}, v{WA+2}")
    k.e(f"v_add_u32 v{WA+2}, {2*st}, v{WA+2}")
    k.e(f"s_mul_i32 s73, s{s_mt}, {128*1280}")
    k.e(f"s_lshl_b32 s74, s{s_ft}, 8")
    k.e(f"s_lshl_b32 s75, s{s_lw}, 12")
    if flag("ROT"):
        k.e("s_and_b32 s76, s5, 3")
        k.e(f"s_mul_i32 s76, s76, {flag('RA', 3)}")
        k.e("s_lshr_b32 s77, s5, 2")
        k.e(f"s_mul_i32 s77, s77, {flag('RB', 1)}")
        k.e("s_add_u32 s76, s76, s77")
        if flag("ROT") == 2:
            k.e("s_and_b32 s76, s5, 3")
            k.e("s_mul_i32 s76, s76, 5")
            k.e("s_add_u32 s76, s76, 1")
            k.e("s_lshr_b32 s76, s76, 1")
            k.e("s_lshr_b32 s77, s5, 2")
            k.e("s_mul_i32 s77, s77, 3")
            k.e("s_add_u32 s76, s76, s77")
            k.e("s_and_b32 s77, s4, 6")
            k.e("s_lshr_b32 s77, 0x64, s77")
            k.e("s_and_b32 s77, s77, 3")
            k.e("s_add_u32 s76, s76, s77")
            k.e("s_and_b32 s77, s4, 1")
            k.e("s_add_u32 s76, s76, s77")
        if flag("ROT") == 3:
            k.e("s_and_b32 s76, s5, 1")
            k.e("s_mul_i32 s76, s76, 5")
            k.e("s_lshr_b32 s77, s5, 1")
            k.e("s_mul_i32 s77, s77, 3")
            k.e("s_add_u32 s76, s76, s77")
            k.e("s_mul_i32 s77, s4, 5")
            k.e("s_lshr_b32 s77, s77, 3")
            k.e("s_add_u32 s76, s76, s77")
        k.e("s_mul_i32 s77, s76, 6554")
        k.e("s_lshr_b32 s77, s77, 16")
        k.e("s_mul_i32 s77, s77, 10")
        k.e("s_sub_u32 s76, s76, s77")
        k.e("s_lshl_b32 s77, s76, 7")
        k.e("s_add_u32 s73, s73, s77")
        k.e(f"s_mov_b32 s79, {64*3456}")
        k.e("s_movk_i32 s80, 128")
        k.e("s_mul_i32 s77, s76, s79")
        k.e("s_add_u32 s74, s74, s77")

def dma(stage):
    XA, WA = 240, 244
    slot = (stage % 4) * SLOT
    L = [f"s_add_u32 m0, s75, {slot}"]
    for i in range(4):
        L.append(f"buffer_load_dwordx4 v{XA+i}, s[64:67], s73 offen offset:{1024*i} lds")
    L.append(f"s_add_u32 m0, s75, {slot + WPART}")
    for i in range(4):
        L.append(f"buffer_load_dwordx4 v{WA+i}, s[68:71], s74 offen offset:{1024*i} lds")
    if flag("ROT"):
        L.append("s_add_u32 s76, s76, 1")
        L.append("s_cmp_eq_u32 s76, 10")
        L.append("s_cselect_b32 s76, 0, s76")
        L.append(f"s_cselect_b32 s72, {(-9*128) & 0xffffffff:#x}, s80")
        L.append(f"s_cselect_b32 s77, {(-9*64*3456) & 0xffffffff:#x}, s79")
        L.append("s_add_u32 s73, s73, s72")
        L.append("s_add_u32 s74, s74, s77")
    else:
        L.append("s_add_u32 s73, s73, 128")
        L.append(f"s_add_u32 s74, s74, {64*3456}")
    return L

class Rec:
    def __init__(self): self.lines = []
    def e(self, s): self.lines.append(s.strip())
    def c(self, s): pass

def split_aux(emit):
    r = Rec(); emit(r)
    idx = next(i for i, x in enumerate(r.lines) if x.startswith("s_waitcnt vmcnt"))
    loads = r.lines[:idx]
    comp = [x for x in r.lines[idx:] if not x.startswith("s_waitcnt vmcnt")]
    return loads, comp

def loader_body(k, auxparts):
    AL = flag("AL", 3)
    vm = Vm(); last = {}
    for s in range(2):
        for _ in range(8): last[s] = vm.op()
    def put(x):
        k.e(x)
        return vm.op() if is_vmem(x) else None
    loads, comp = auxparts if auxparts else ([], [])
    if flag("NOAUX"): loads, comp = [], []
    if AL == 1:
        for x in loads: put(x)
    first = AL + 1
    nch = max(1, 9 - first)
    per = (len(comp) + nch - 1) // nch if comp else 0
    ci = 0
    for s in range(NSTAGE):
        k.e(f"s_waitcnt vmcnt({vm.wait(last[s])})")
        k.e("s_barrier")
        if s == NSTAGE - 1: break
        stages = [2, 3] if s == 0 else ([s + 3] if s + 3 < NSTAGE else [])
        chunk = comp[ci:ci + per] if s >= first else []
        ci += len(chunk)
        groups = []; cur = []; masked = False
        for x in chunk:
            cur.append(x)
            if "saveexec" in x: masked = True
            if x.startswith("s_mov_b64 exec"): masked = False
            if not masked:
                groups.append(cur); cur = []
        if cur:
            while True:
                x = comp[ci]; ci += 1; cur.append(x)
                if x.startswith("s_mov_b64 exec"): break
            groups.append(cur)
        gper = (len(groups) + 7) // 8
        gi = 0
        for st in stages:
            for x in dma(st):
                r = put(x)
                if r is not None:
                    last[st] = r
                    for g in groups[gi:gi + gper]:
                        for y in g: put(y)
                    gi += gper
            if st == AL:
                for x in loads: put(x)
        for g in groups[gi:]:
            for y in g: put(y)
    if AL == 9:
        k.e("s_barrier")
        k.e("s_waitcnt vmcnt(0)")
    for y in comp[ci:]: put(y)

def g1_compute(k, s_mt, s_ft, s_wave, lbl_end):
    srd(k, 48, P_WS, 32 * NT * 4096, H_OFF)
    k.e(f"s_and_b32 s52, s{s_wave}, 1")
    k.e(f"s_lshr_b32 s53, s{s_wave}, 1")
    k.e(f"s_lshl_b32 s57, s{s_wave}, 12")
    BA, AA = 10, 14
    k.e("v_and_b32 v18, 15, v0")
    k.e("v_lshrrev_b32 v19, 4, v0")
    k.e("v_lshrrev_b32 v20, 1, v18")
    k.e("v_xor_b32 v20, v20, v19")
    k.e("v_lshlrev_b32 v20, 4, v20")
    k.e("v_lshl_add_u32 v20, v18, 7, v20")
    k.e("s_lshl_b32 s58, s52, 13")
    k.e("s_lshl_b32 s59, s53, 12")
    k.e("s_add_u32 s58, s58, s59")
    k.e(f"v_add_u32 v{BA}, s58, v20")
    k.e(f"v_xor_b32 v{BA+1}, 64, v{BA}")
    k.e(f"v_xor_b32 v{BA+2}, 0x1000, v{BA}")
    k.e(f"v_xor_b32 v{BA+3}, 0x1040, v{BA}")
    k.e("v_lshrrev_b32 v20, 2, v18")
    k.e("v_and_b32 v21, 3, v18")
    k.e("v_lshl_add_u32 v22, v19, 3, v20")
    k.e("v_lshlrev_b32 v22, 8, v22")
    k.e("v_lshl_add_u32 v22, v21, 3, v22")
    k.e(f"v_add_u32 v22, {WPART}, v22")
    k.e("v_and_b32 v23, 1, v19")
    k.e("v_lshl_add_u32 v23, v23, 2, v20")
    k.e("s_lshl_b32 s58, s53, 2")
    k.e("s_lshl_b32 s59, s52, 1")
    k.e("s_add_u32 s58, s58, s59")
    k.e("v_xor_b32 v23, s58, v23")
    k.e(f"v_lshl_add_u32 v{AA}, v23, 5, v22")
    for fb in range(1, 4):
        k.e(f"v_xor_b32 v{AA+fb}, {32*fb}, v{AA}")
    ONE = 20
    for i in range(4): k.e(f"v_mov_b32 v{ONE+i}, 0x3f803f80")
    ACC, AR, AC, FR = 24, 88, 96, 112
    def reads(stage, ks, buf):
        so = (stage % 2) * SLOT
        L = []
        fa = FR + 32 * buf; fb_ = fa + 16
        for i in range(4):
            L.append(f"ds_read_b128 v[{fb_+4*i}:{fb_+4*i+3}], v{BA + 2*(i>>1) + ks} offset:{so + 2048*(i&1)}")
            L.append(f"ds_read_b64_tr_b16 v[{fa+4*i}:{fa+4*i+1}], v{AA+i} offset:{so + 8192*ks}")
            L.append(f"ds_read_b64_tr_b16 v[{fa+4*i+2}:{fa+4*i+3}], v{AA+i} offset:{so + 8192*ks + 1024}")
        if flag("NOREAD"): return L[:1]
        return L
    def mfmas(buf, first=False):
        fa = FR + 32 * buf; fb_ = fa + 16
        L = []
        def mm(d, a, b):
            c = "0" if first else f"v[{d}:{d+3}]"
            L.append(f"v_mfma_f32_16x16x32_bf16 v[{d}:{d+3}], v[{a}:{a+3}], v[{b}:{b+3}], {c}")
        for f in range(4):
            for m in range(4):
                mm(ACC + 16*f + 4*m, fa + 4*f, fb_ + 4*m)
        for i in range(2):
            mm(AR + 4*i, ONE, fb_ + 4*i)
            mm(AC + 4*i, fa + 4*i, ONE)
        if flag("NOMFMA"): return L[:1]
        if flag("NOSUM"): return L[:16]
        return L
    from conv import interleave
    for s in range(NSTAGE):
        k.c(f"---- stage {s}")
        k.e("s_waitcnt lgkmcnt(0)")
        k.e("s_barrier")
        if s == 0: stamp_mid(k, 0)
        if s == 3: stamp_mid(k, 1)
        if s == 6: stamp_mid(k, 2)
        tog = []
        if s > 0 and s % 2 == 0:
            tog = [f"v_xor_b32 v{r}, 0x10000, v{r}" for r in list(range(BA, BA+4)) + list(range(AA, AA+4))]
        if s == 0:
            for x in reads(s, 0, 0): k.e(x)
        else:
            for x in interleave(mfmas(1), reads(s, 0, 0)): k.e(x)
        k.e("s_waitcnt lgkmcnt(0)")
        nxt = []
        if (s + 1) % 2 == 0 and s + 1 < NSTAGE:
            nxt = [f"v_xor_b32 v{r}, 0x10000, v{r}" for r in list(range(BA, BA+4)) + list(range(AA, AA+4))]
        for x in interleave(mfmas(0, first=(s == 0)), reads(s, 1, 1) + nxt): k.e(x)
    k.e("s_waitcnt lgkmcnt(0)")
    for x in mfmas(1): k.e(x)
    stamp_mid(k, 3)
    k.c("exchange row/col sums")
    k.e("v_lshlrev_b32 v2, 4, v0")
    k.e("v_add_u32 v3, s57, v2")
    k.e(f"v_mov_b32 v{AR+1}, v{AR+4}")
    k.e(f"ds_write_b64 v3, v[{AR}:{AR+1}]")
    k.e(f"ds_write_b128 v3, v[{AC}:{AC+3}] offset:1024")
    k.e(f"ds_write_b128 v3, v[{AC+4}:{AC+7}] offset:2048")
    k.e("v_xor_b32 v4, 0x2000, v3")
    k.e("v_xor_b32 v5, 0x1000, v3")
    k.e("s_waitcnt lgkmcnt(0)")
    k.e("s_barrier")
    k.e(f"ds_read_b64 v[{AR+2}:{AR+3}], v4")
    k.e(f"ds_read_b128 v[{AC+8}:{AC+11}], v5 offset:1024")
    k.e(f"ds_read_b128 v[{AC+12}:{AC+15}], v5 offset:2048")
    k.e(f"s_lshl_b32 s58, s{s_ft}, 2")
    k.e("s_lshl_b32 s59, s53, 1")
    k.e("s_add_u32 s58, s58, s59")
    k.e(f"s_cmp_ge_u32 s58, {NT}")
    k.e(f"s_cbranch_scc1 {lbl_end}")
    k.e(f"s_lshl_b32 s59, s{s_mt}, 1")
    k.e("s_add_u32 s59, s59, s52")
    k.e(f"s_mul_i32 s59, s59, {NT}")
    k.e("s_add_u32 s58, s58, s59")
    k.e("s_lshl_b32 s58, s58, 12")
    k.e("s_lshl_b32 s60, s52, 12")
    k.e("s_add_u32 s61, s58, s60")
    k.e("s_xor_b32 s60, s60, 0x1000")
    k.e("s_add_u32 s62, s58, s60")
    k.e("s_lshl_b32 s60, s53, 11")
    k.e("v_add_u32 v6, s60, v2")
    k.e("v_xor_b32 v7, 0x800, v6")
    k.e("s_waitcnt lgkmcnt(0)")
    NM = FR
    for m in range(4):
        k.e(f"v_mul_f32 v{AR+m}, {-1.0/D!r}, v{AR+m}")
    k.e(f"v_cvt_pk_bf16_f32 v{AR+4}, v{AR}, v{AR+1}")
    k.e(f"v_cvt_pk_bf16_f32 v{AR+5}, v{AR+2}, v{AR+3}")
    for m in range(4):
        src = AR + 4 + (m >> 1)
        for h in range(2):
            if m & 1: k.e(f"v_and_b32 v{NM+2*m+h}, 0xffff0000, v{src}")
            else:     k.e(f"v_lshlrev_b32 v{NM+2*m+h}, 16, v{src}")
    OUT = FR + 8
    n = 0
    for p in range(2):
        for m in range(4):
            o = OUT + 4 * (n % 4); n += 1
            for ff in range(2):
                f = 2*p + ff
                a = ACC + 16*f + 4*m
                for h in range(2):
                    k.e(f"v_pk_fma_f32 v[{a+2*h}:{a+2*h+1}], v[{AC+4*f+2*h}:{AC+4*f+2*h+1}], v[{NM+2*m}:{NM+2*m+1}], v[{a+2*h}:{a+2*h+1}]")
                for h in range(2):
                    k.e(f"v_cvt_pk_bf16_f32 v{o+2*ff+h}, v{a+2*h}, v{a+2*h+1}")
            for i in range(4):
                k.e(f"v_pk_max_i16 v{o+i}, v{o+i}, 0")
            k.e(f"buffer_store_dwordx4 v[{o}:{o+3}], v{6+(m>>1)}, s[48:51], s{61+p} offen offset:{1024*(m&1)}")

def l2_prefetch(k):
    srd(k, 64, P_Q, NB_X)
    srd(k, 68, P_W1, NB_W)
    k.e("s_lshr_b32 s72, s5, 2")
    k.e("s_add_u32 s72, s72, 3")
    k.e("s_lshl_b32 s72, s72, 7")
    k.e(f"s_mul_i32 s73, s6, {128*1280}")
    k.e("s_add_u32 s72, s72, s73")
    k.e("s_and_b32 s73, s3, 1")
    k.e(f"s_mul_i32 s73, s73, {64*1280}")
    k.e("s_add_u32 s72, s72, s73")
    k.e("v_mul_u32_u24 v2, 1280, v0")
    k.e("s_and_b32 s74, s5, 3")
    k.e("s_mul_i32 s74, s74, 112")
    k.e("s_mul_i32 s75, s3, 28")
    k.e("s_add_u32 s74, s74, s75")
    k.e("s_add_u32 s74, s74, 192")
    k.e("s_mul_i32 s74, s74, 3456")
    k.e("s_lshl_b32 s75, s7, 8")
    k.e("s_add_u32 s74, s74, s75")
    k.e("v_min_u32 v3, 55, v0")
    k.e("v_lshrrev_b32 v4, 1, v3")
    k.e("v_mul_u32_u24 v4, 3456, v4")
    k.e("v_and_b32 v3, 1, v3")
    k.e("v_lshl_add_u32 v4, v3, 7, v4")
    if flag("PFD"): k.e(f"s_sleep {flag('PFD')}")
    k.e("buffer_load_dword v200, v4, s[68:71], s74 offen")
    k.e("s_cmp_ge_u32 s3, 2")
    k.e("s_cbranch_scc1 L_k1_nopfx")
    k.e("buffer_load_dword v201, v2, s[64:67], s72 offen")
    k.e("L_k1_nopfx:")

def k1_kernel():
    k = Kern("k1_kernel")
    stamp_begin(k)
    k.e("s_cmp_ge_u32 s2, 256")
    k.e("s_cbranch_scc1 L_k1_end")
    load_ptrs(k)
    k.e("v_lshrrev_b32 v1, 6, v0")
    k.e("v_readfirstlane_b32 s3, v1")
    k.e("v_and_b32 v0, 63, v0")
    k.e("s_and_b32 s4, s2, 7")
    k.e("s_lshr_b32 s5, s2, 3")
    k.e("s_lshr_b32 s6, s4, 1")
    k.e("s_lshl_b32 s6, s6, 2")
    k.e("s_and_b32 s7, s5, 3")
    k.e("s_add_u32 s6, s6, s7")
    k.e("s_and_b32 s7, s4, 1")
    k.e("s_mul_i32 s7, s7, 7")
    k.e("s_lshr_b32 s8, s5, 2")
    k.e("s_add_u32 s7, s7, s8")
    k.e("s_cmp_ge_u32 s2, 224")
    k.e("s_cbranch_scc1 L_k1_free")
    k.e("s_cmp_lt_u32 s3, 4")
    k.e("s_cbranch_scc1 L_k1_mfma")
    k.e("s_sub_u32 s9, s3, 4")
    if flag("PL"): k.e(f"s_setprio {flag('PL')}")
    k.e("s_waitcnt lgkmcnt(0)")
    loader_setup(k, 6, 7, 9)
    for s in range(2):
        for x in dma(s): k.e(x)
    k.e("s_cmp_eq_u32 s9, 0")
    k.e("s_cbranch_scc1 L_k1_stats")
    k.e("s_cmp_eq_u32 s9, 1")
    k.e("s_cbranch_scc1 L_k1_rel")
    k.e("s_cmp_eq_u32 s9, 2")
    k.e("s_cbranch_scc1 L_k1_plain")
    k.e("s_sub_u32 s10, s2, 64")
    k.e("s_cmp_lt_u32 s10, 32")
    k.e("s_cbranch_scc0 L_k1_w7")
    k.e("s_add_u32 s2, s10, 224")
    k.e("L_k1_stats:")
    k.e("s_and_b32 s10, s2, 6")
    k.e("s_lshl_b32 s10, s10, 8")
    k.e("s_lshr_b32 s11, s2, 3")
    k.e("s_lshl_b32 s11, s11, 4")
    k.e("s_add_u32 s10, s10, s11")
    k.e("s_and_b32 s11, s2, 1")
    k.e("s_lshl_b32 s11, s11, 3")
    k.e("s_add_u32 s78, s10, s11")
    loader_body(k, split_aux(lambda r: aux.emit_stats(r, 78)))
    finish(k, 0)
    k.e("L_k1_w7:")
    k.e("s_sub_u32 s10, s2, 96")
    k.e("s_cmp_lt_u32 s10, 3")
    k.e("s_cbranch_scc0 L_k1_plain")
    srd(k, 40, P_WS, 4096, FL_OFF)
    k.e("s_lshl_b32 s10, s10, 10")
    k.e("v_lshlrev_b32 v1, 4, v0")
    for i in range(4): k.e(f"v_mov_b32 v{4+i}, 0")
    k.e("buffer_store_dwordx4 v[4:7], v1, s[40:43], s10 offen")
    k.e("s_waitcnt vmcnt(0)")
    k.e("L_k1_plain:")
    loader_body(k, None)
    finish(k, 0)
    k.e("L_k1_rel:")
    k.e("s_cmp_ge_u32 s2, 216")
    k.e("s_cbranch_scc1 L_k1_plain")
    k.e(f"s_mov_b32 s78, {REL_LDS}")
    loader_body(k, split_aux(lambda r: aux.emit_relayout(r, 2, 78)))
    finish(k, 0)
    k.e("L_k1_free:")
    if flag("NOFREE"): k.e("s_endpgm")
    k.e("s_sub_u32 s78, s2, 224")
    k.e("s_lshl_b32 s78, s78, 3")
    k.e("s_add_u32 s78, s78, s3")
    k.e("s_lshl_b32 s79, s3, 13")
    k.e("s_waitcnt lgkmcnt(0)")
    k.e("L_k1_prep:")
    aux.emit_prep(k, 78, 79)
    k.e("s_cmp_ge_u32 s78, 256")
    k.e("s_cbranch_scc1 L_k1_prepdone")
    k.e("s_cmp_ge_u32 s3, 2")
    k.e("s_cbranch_scc1 L_k1_prepdone")
    k.e("s_sub_u32 s78, s2, 224")
    k.e("s_lshl_b32 s78, s78, 1")
    k.e("s_add_u32 s78, s78, s3")
    k.e("s_add_u32 s78, s78, 256")
    k.e("s_waitcnt vmcnt(0)")
    k.e("s_branch L_k1_prep")
    k.e("L_k1_prepdone:")
    finish(k, 2)
    k.e("L_k1_mfma:")
    k.e("s_waitcnt lgkmcnt(0)")
    if flag("PFL2"):
        l2_prefetch(k)
    g1_compute(k, 6, 7, 3, "L_k1_end")
    finish(k, 1)
    k.e("L_k1_end:")
    k.e("s_endpgm")
    return k
```

```python
from common import *
import aux, conv, k1
from conv import interleave, CONV_LDS
from k1 import Vm, is_vmem, SLOT, WPART, NSTAGE, Rec
from fused import NAME, SC1, RB0, TOP, CNT, LDS_BYTES, XO, YO, SO, NSTEP, TAG, FSRD, SPIN_MAX, make_tag, xo_offsets
import fused2 as F2
from fused2 import EA, OOB, NH, NW, G_ACC, G_H, G_W, g2_offsets, w_loads, h_loads, w_lds_reads, g2_mfmas, g2_prefetch_a, g2_prefetch_b, g2_tail, stats_rows

HSH = flag("HSH", 7); YSH = flag("YSH", 5)
FA, EP, FH, FY = 0, 4096, 8192, 8192 + (1024 << 7)
FL_BYTES = FY + (640 << 7)
AUXOK = 12

def lds_wait(k, lbl, vaddr, vtmp, off, s_tmp, sleep=2):
    k.e(f"{lbl}:")
    k.e(f"ds_read_b32 v{vtmp}, v{vaddr} offset:{off}")
    k.e("s_waitcnt lgkmcnt(0)")
    k.e(f"v_readfirstlane_b32 s{s_tmp}, v{vtmp}")
    k.e(f"s_cmp_lg_u32 s{s_tmp}, 0")
    k.e(f"s_cbranch_scc1 {lbl}_ok")
    k.e(f"s_sleep {sleep}")
    k.e(f"s_branch {lbl}")
    k.e(f"{lbl}_ok:")

def aux_watch_loads(vd, va):
    return [f"buffer_load_dwordx4 v[{vd}:{vd+3}], v{va}, s[{FSRD}:{FSRD+3}], 0 offen{SC1}",
            f"buffer_load_dwordx4 v[{vd+4}:{vd+7}], v{va}, s[{FSRD}:{FSRD+3}], 0 offen offset:1024{SC1}"]
def aux_watch_check(k, vd):
    k.e(f"v_cmp_ne_u64 vcc, s[{TAG}:{TAG+1}], v[{vd}:{vd+1}]")
    for i in range(1, 4):
        k.e(f"v_cmp_ne_u64 s[62:63], s[{TAG}:{TAG+1}], v[{vd+2*i}:{vd+2*i+1}]")
        k.e("s_or_b64 vcc, vcc, s[62:63]")
def aux_watch(k, lbl, vd, va, preloaded):
    k.e("s_mov_b32 s10, 0")
    if preloaded: k.e(f"s_branch {lbl}_chk")
    k.e(f"{lbl}:")
    for x in aux_watch_loads(vd, va): k.e(x)
    k.e(f"{lbl}_chk:")
    k.e("s_waitcnt vmcnt(0)")
    aux_watch_check(k, vd)
    k.e(f"s_cbranch_scc0 {lbl}_ok")
    k.e(f"s_sleep {flag('ASL', 8)}")
    k.e("s_add_u32 s10, s10, 1")
    k.e(f"s_cmp_lt_u32 s10, {SPIN_MAX:#x}")
    k.e(f"s_cbranch_scc1 {lbl}")
    k.e(f"{lbl}_ok:")
    k.e(f"v_mov_b32 v{vd}, {CNT}")
    k.e(f"v_mov_b32 v{vd+1}, 1")
    k.e(f"ds_write_b32 v{vd}, v{vd+1} offset:{AUXOK}")

def publish(k, s_off, va, vo=None, mask=1):
    k.e(f"v_mov_b32 v{va}, s{TAG}")
    k.e(f"v_mov_b32 v{va+1}, s{TAG+1}")
    if vo is None:
        vo = va + 2
        k.e(f"v_mov_b32 v{vo}, 0")
    k.e(f"s_mov_b64 exec, {mask}")
    so = f"s{s_off}" if s_off is not None else "0"
    k.e(f"buffer_store_dwordx2 v[{va}:{va+1}], v{vo}, s[{FSRD}:{FSRD+3}], {so} offen{SC1}")
    k.e("s_mov_b64 exec, -1")

def poll(k, lbl, vd, voff, s_off, s_cnt, nlanes, sleep=4, preloaded=False):
    so = f"s{s_off}" if s_off is not None else "0"
    k.e(f"s_mov_b32 s{s_cnt}, 0")
    if nlanes < 64:
        k.e(f"s_bfm_b64 exec, {nlanes}, 0")
    if preloaded:
        k.e(f"s_branch {lbl}_chk")
    k.e(f"{lbl}:")
    k.e(f"buffer_load_dwordx2 v[{vd}:{vd+1}], v{voff}, s[{FSRD}:{FSRD+3}], {so} offen{SC1}")
    k.e("s_waitcnt vmcnt(0)")
    k.e(f"{lbl}_chk:")
    k.e(f"v_cmp_ne_u64 vcc, s[{TAG}:{TAG+1}], v[{vd}:{vd+1}]")
    k.e("s_and_b64 exec, exec, vcc")
    k.e(f"s_cbranch_scc0 {lbl}_ok")
    k.e(f"s_sleep {sleep}")
    k.e(f"s_add_u32 s{s_cnt}, s{s_cnt}, 1")
    k.e(f"s_cmp_lt_u32 s{s_cnt}, {SPIN_MAX:#x}")
    k.e(f"s_cbranch_scc1 {lbl}")
    k.e(f"{lbl}_ok:")
    k.e("s_mov_b64 exec, -1")

def aux_addr(k):
    srd(k, 40, P_K, NB_X)
    srd(k, 44, P_V, NB_X)
    srd(k, 48, P_SH, D * 8)
    srd(k, 84, P_W2, NB_W)
    k.e("s_mul_i32 s52, s2, 6554")
    k.e("s_lshr_b32 s52, s52, 16")
    k.e("s_mul_i32 s53, s52, 10")
    k.e("s_sub_u32 s53, s2, s53")
    k.e("s_lshl_b32 s54, s52, 2")
    k.e("s_add_u32 s54, s54, s101")
    k.e("s_mul_i32 s54, s54, 20480")
    k.e("s_lshl_b32 s55, s53, 7")
    k.e("s_add_u32 s54, s54, s55")
    k.e("v_lshrrev_b32 v1, 3, v0")
    k.e("v_mul_u32_u24 v2, 1280, v1")
    k.e("v_and_b32 v3, 7, v0")
    k.e("v_lshl_add_u32 v2, v3, 4, v2")
    k.e("v_add_u32 v200, s54, v2")
    k.e("v_subrev_u32 v201, 3840, v200")
    k.e(f"v_add_u32 v202, {10240 - 3840 - 1024}, v200")
    k.e(f"v_add_u32 v203, {20480 - 3840 - 2048}, v200")
    k.e(f"v_mov_b32 v6, {OOB}")
    k.e("v_cmp_gt_u32 vcc, 24, v0")
    k.e("v_cndmask_b32 v203, v6, v203, vcc")
    k.e(f"v_add_u32 v204, {10240 - 1024}, v200")
    k.e("s_mul_i32 s56, s101, 5120")
    k.e(f"s_add_u32 s56, s56, {EA}")
    k.e("v_and_b32 v7, 31, v0")
    k.e("v_lshlrev_b32 v205, 4, v7")
    k.e("s_lshl_b32 s55, s53, 9")
    k.e("s_lshr_b32 s57, s2, 2")
    k.e("s_and_b32 s58, s2, 3")
    k.e("s_mul_i32 s59, s57, 40960")
    k.e("s_mul_i32 s60, s58, 320")
    k.e("s_add_u32 s59, s59, s60")
    k.e("s_lshl_b32 s60, s101, 6")
    k.e("s_lshl_b32 s61, s101, 10")
    for i in range(3):
        k.e("v_add_u32 v9, s60, v0")
        if i: k.e(f"v_add_u32 v9, {256*i}, v9")
        k.e("v_mul_u32_u24 v10, 52429, v9")
        k.e("v_lshrrev_b32 v10, 20, v10")
        k.e("v_mul_u32_u24 v10, 960, v10")
        k.e(f"v_lshl_add_u32 v{206+i}, v9, 4, v10")
    k.e("s_cmp_ge_u32 s101, 2")
    k.e(f"s_cselect_b32 s60, {OOB}, 0")
    k.e("v_add_u32 v208, s60, v208")
    k.e(f"s_add_u32 s62, s61, {EA + 20480 + 8192}")
    k.e("s_cmp_ge_u32 s101, 2")
    k.e(f"s_cselect_b32 s62, {EA + 30720}, s62")
    k.e("v_lshrrev_b32 v9, 5, v0")
    k.e("v_lshlrev_b32 v10, 10, v9")
    k.e("v_lshl_add_u32 v10, v7, 2, v10")
    k.e("v_add_u32 v209, s56, v10")
    k.e("v_sub_u32 v11, 1, v9")
    k.e("v_lshlrev_b32 v11, 4, v11")
    k.e("v_lshl_add_u32 v11, v7, 6, v11")
    k.e("v_add_u32 v210, s56, v11")
    k.e("v_lshrrev_b32 v11, 1, v3")
    k.e("v_sub_u32 v11, 3, v11")
    k.e("v_mul_u32_u24 v11, 5120, v11")
    k.e("v_lshl_add_u32 v11, v1, 5, v11")
    k.e("v_and_b32 v12, 1, v3")
    k.e("v_lshl_add_u32 v11, v12, 4, v11")
    k.e("s_lshl_b32 s60, s101, 9")
    k.e(f"s_add_u32 s60, s60, {EA}")
    k.e("v_add_u32 v211, s60, v11")
    k.e(f"v_mul_u32_u24 v212, {RS}, v1")
    k.e("v_lshl_add_u32 v212, v3, 4, v212")
    k.e("s_lshl_b32 s63, s53, 2")
    k.e("s_add_u32 s63, s63, s101")
    k.e(f"s_mul_i32 s88, s63, {16*RS}")
    k.e("s_lshl_b32 s60, s52, 7")
    k.e("s_sub_u32 s60, 3968, s60")
    k.e("s_add_u32 s88, s88, s60")
    k.e(f"v_add_u32 v213, {8*RS}, v212")
    k.e("s_lshr_b32 s10, s101, 1")
    k.e("s_and_b32 s11, s101, 1")
    k.e("s_mul_i32 s60, s10, 5")
    k.e("s_mul_i32 s54, s11, 3")
    k.e("s_add_u32 s60, s60, s54")
    k.e("s_lshl_b32 s60, s60, 5")
    k.e(f"s_add_u32 s60, s60, {EA + 20480}")
    k.e("v_lshrrev_b32 v11, 2, v0")
    k.e("v_mul_u32_u24 v11, 320, v11")
    k.e("v_and_b32 v12, 3, v0")
    k.e("v_lshl_add_u32 v11, v12, 3, v11")
    k.e("v_add_u32 v214, s60, v11")
    k.e("s_lshl_b32 s60, s58, 1")
    k.e("s_add_u32 s60, s60, s10")
    k.e(f"s_mul_i32 s89, s60, {NT}")
    k.e("s_add_u32 s89, s89, s57")
    k.e("s_mul_i32 s89, s89, 5120")
    k.e("s_lshl_b32 s54, s54, 10")
    k.e("s_add_u32 s89, s89, s54")
    k.e("s_cmp_ge_u32 s2, 216")
    k.e(f"s_cselect_b32 s89, {OOB}, s89")
    k.e("v_lshlrev_b32 v215, 4, v0")
    k.e("s_cmp_eq_u32 s11, 1")
    k.e(f"s_cselect_b32 s54, {OOB}, 0")
    k.e("v_add_u32 v216, s54, v215")

def aux_loads():
    return ["s_mov_b32 m0, s56",
            "buffer_load_dwordx4 v201, s[40:43], 0 offen lds",
            "buffer_load_dwordx4 v202, s[40:43], 0 offen offset:1024 lds",
            "buffer_load_dwordx4 v203, s[40:43], 0 offen offset:2048 lds",
            "s_add_u32 m0, s56, 3072",
            "buffer_load_dwordx4 v200, s[44:47], 0 offen lds",
            "buffer_load_dwordx4 v204, s[44:47], 0 offen offset:1024 lds",
            "buffer_load_dwordx4 v[12:15], v205, s[48:51], s55 offen"] + ([] if flag("RELFREE", 0) else [
            f"s_add_u32 m0, s61, {EA + 20480}",
            "buffer_load_dwordx4 v206, s[84:87], s59 offen lds",
            f"s_add_u32 m0, s61, {EA + 20480 + 4096}",
            "buffer_load_dwordx4 v207, s[84:87], s59 offen lds",
            "s_mov_b32 m0, s62",
            "buffer_load_dwordx4 v208, s[84:87], s59 offen lds"])

def aux_compute():
    k = Rec()
    KR, VR, TP, KU, VU, KV, OUT = 16, 28, 36, 44, 66, 82, 88
    for j in range(11):
        k.e(f"ds_read_b32 v{KR+j}, v209 offset:{128*j}")
    for j in range(8):
        k.e(f"ds_read_b32 v{VR+j}, v209 offset:{3072 + 128*j}")
    for c in range(2):
        unpack(k, TP + 0 + c, TP + 2 + c, 12 + 2*c)
        unpack(k, TP + 4 + c, TP + 6 + c, 13 + 2*c)
    srd(k, 40, P_WS, NB_T, UR_OFF)
    srd(k, 44, P_WS, NB_W, W2_OFF)
    k.e("s_waitcnt lgkmcnt(0)")
    for j in range(11): unpack(k, KU + 2*j, KU + 2*j + 1, KR + j)
    for j in range(8): unpack(k, VU + 2*j, VU + 2*j + 1, VR + j)
    p1 = k.lines; k = Rec()
    for r in range(8):
        d = KV + 2*(r & 1)
        for j in (3, 2, 1, 0):
            w = KU + 2*(r + 3 - j); t = TP + 2*j
            if j == 3: k.e(f"v_pk_mul_f32 v[{d}:{d+1}], v[{w}:{w+1}], v[{t}:{t+1}]")
            else: k.e(f"v_pk_fma_f32 v[{d}:{d+1}], v[{w}:{w+1}], v[{t}:{t+1}], v[{d}:{d+1}]")
        k.e(f"v_pk_mul_f32 v[{d}:{d+1}], v[{d}:{d+1}], v[{VU+2*r}:{VU+2*r+1}]")
        if r & 1:
            for c in range(2):
                k.e(f"v_cvt_pk_bf16_f32 v{OUT+4*c+3-r//2}, v{KV+2+c}, v{KV+c}")
    for c in range(2):
        k.e(f"ds_write_b128 v210, v[{OUT+4*c}:{OUT+4*c+3}] offset:{32*c}")
    k.e("s_waitcnt lgkmcnt(0)")
    return p1, k.lines

def aux_reads():
    L = [f"ds_read_b128 v[{180+4*i}:{183+4*i}], v211 offset:{256*i}" for i in range(2)]
    for i in range(0 if flag("RELFREE", 0) else 3):
        L.append(f"ds_read_b64_tr_b16 v[{188+4*i}:{189+4*i}], v214 offset:{32*i}")
        L.append(f"ds_read_b64_tr_b16 v[{190+4*i}:{191+4*i}], v214 offset:{32*i + 5120}")
    return L
def aux_stores():
    SC1 = "" if flag("AUXPLAIN") else " sc1"
    L = ["s_waitcnt lgkmcnt(0)"]
    L += [f"buffer_store_dwordx4 v[{180+4*i}:{183+4*i}], v{212+i}, s[40:43], s88 offen{SC1}" for i in range(2)]
    L += [f"buffer_store_dwordx4 v[{188+4*i}:{191+4*i}], v{216 if i == 2 else 215}, s[44:47], s89 offen offset:{1024*i}{SC1}" for i in range(0 if flag("RELFREE", 0) else 3)]
    return L

def w_flag_addr(k):
    k.e(f"v_lshlrev_b32 v9, {HSH}, v0")

def g2_phase(k):
    g2_prefetch_b(k)
    srd(k, 40, P_WS, 32 * NT * 4096, H_OFF)
    k.e("s_lshl_b32 s52, s101, 10")
    k.e("v_add_u32 v3, s52, v1")
    for m in range(1, 4):
        k.e(f"v_xor_b32 v{3+m}, {1024*m}, v3")
    k.e("v_add_u32 v7, s56, v1")
    k.e("s_mul_i32 s57, s101, 7")
    k.e("s_min_u32 s57, s57, 20")
    k.e("s_lshl_b32 s58, s8, 5")
    k.e("s_add_u32 s57, s57, s58")
    k.e(f"s_lshl_b32 s57, s57, {HSH}")
    k.e(f"s_add_u32 s57, s57, {FH}")
    poll(k, "L_hpoll", 10, 9, 57, 58, 7, sleep=flag("HSLP", 4))
    if not flag("STG1"): stamp_mid(k, 2)
    vm = Vm(); hneed = {}; wneed = {}
    for s in range(NH - 1):
        for x in h_loads(s):
            k.e(x)
            if is_vmem(x): hneed[s] = vm.op()
    for s in range(NSTEP):
        idx = max(hneed[s], wneed.get(s, -1))
        lg = " lgkmcnt(0)" if s >= 11 else ""
        k.e(f"s_waitcnt vmcnt({vm.wait(idx)}){lg}")
        fill = []
        if s + NH - 1 < NSTEP: fill += [(x, "h", s + NH - 1) for x in h_loads(s + NH - 1)]
        r = s + NW - 1
        if s >= 1 and r <= 10: fill += [(x, "w", r) for x in w_loads(r)]
        if s >= 1 and 11 <= r <= 13: fill += [(x, "l", r) for x in w_lds_reads(r)]
        m = g2_mfmas(s); fi = 0
        for i, x in enumerate(m):
            k.e(x)
            if i % 2 == 0 or flag("DENSE"):
                while fi < len(fill):
                    y, t, st = fill[fi]; fi += 1
                    k.e(y)
                    if is_vmem(y):
                        (hneed if t == "h" else wneed)[st] = vm.op()
                    if not y.startswith("s_"): break
        for y, t, st in fill[fi:]:
            k.e(y)
            if is_vmem(y): (hneed if t == "h" else wneed)[st] = vm.op()
    if not flag("STG1"): stamp_mid(k, 3)
    g2_tail(k)

def g1_phase(k):
    srd(k, 48, P_WS, 32 * NT * 4096, H_OFF)
    srd(k, 44, P_WS, NB_W, W2_OFF)
    k.e("s_and_b32 s52, s3, 1")
    k.e("s_lshr_b32 s53, s3, 1")
    BA, AA = 10, 14
    k.e("v_lshlrev_b32 v1, 4, v0")
    k.e("v_add_u32 v2, 4096, v1")
    k.e("v_and_b32 v18, 15, v0")
    k.e("v_lshrrev_b32 v19, 4, v0")
    k.e("v_lshrrev_b32 v20, 1, v18")
    k.e("v_xor_b32 v20, v20, v19")
    k.e("v_lshlrev_b32 v20, 4, v20")
    k.e("v_lshl_add_u32 v20, v18, 7, v20")
    k.e("s_lshl_b32 s58, s52, 13")
    k.e("s_lshl_b32 s59, s53, 12")
    k.e("s_add_u32 s58, s58, s59")
    k.e(f"v_add_u32 v{BA}, s58, v20")
    k.e(f"v_xor_b32 v{BA+1}, 64, v{BA}")
    k.e(f"v_xor_b32 v{BA+2}, 0x1000, v{BA}")
    k.e(f"v_xor_b32 v{BA+3}, 0x1040, v{BA}")
    k.e("v_lshrrev_b32 v20, 2, v18")
    k.e("v_and_b32 v21, 3, v18")
    k.e("v_lshl_add_u32 v22, v19, 3, v20")
    k.e("v_lshlrev_b32 v22, 8, v22")
    k.e("v_lshl_add_u32 v22, v21, 3, v22")
    k.e(f"v_add_u32 v22, {WPART}, v22")
    k.e("v_and_b32 v23, 1, v19")
    k.e("v_lshl_add_u32 v23, v23, 2, v20")
    k.e("s_lshl_b32 s58, s53, 2")
    k.e("s_lshl_b32 s59, s52, 1")
    k.e("s_add_u32 s58, s58, s59")
    k.e("v_xor_b32 v23, s58, v23")
    k.e(f"v_lshl_add_u32 v{AA}, v23, 5, v22")
    for fb in range(1, 4):
        k.e(f"v_xor_b32 v{AA+fb}, {32*fb}, v{AA}")
    ONE = 20
    for i in range(4): k.e(f"v_mov_b32 v{ONE+i}, 0x3f803f80")
    ACC, AR, AC, FR = 24, 88, 96, 112
    for r, x in ((3, 0), (4, 2), (5, 1)):
        k.e(f"s_xor_b32 s58, s3, {x}")
        k.e("s_mul_i32 s58, s58, 3072")
        k.e(f"s_add_u32 s58, s58, {TOP}")
        k.e(f"v_add_u32 v{r}, s58, v1")
    k.e("s_lshl_b32 s58, s7, 1")
    k.e("s_add_u32 s57, s58, s53")
    k.e("s_lshl_b32 s59, s6, 1")
    k.e("s_add_u32 s59, s59, s52")
    k.e("s_lshl_b32 s56, s59, 5")
    k.e("s_add_u32 s56, s56, s57")
    k.e(f"s_lshl_b32 s56, s56, {HSH}")
    k.e(f"s_add_u32 s56, s56, {FH}")
    k.e(f"s_mul_i32 s59, s59, {NT}")
    k.e("s_lshl_b32 s58, s57, 1")
    k.e("s_add_u32 s58, s58, s59")
    k.e("s_lshl_b32 s58, s58, 12")
    k.e("s_lshl_b32 s59, s52, 12")
    k.e("s_add_u32 s60, s58, s59")
    k.e("s_xor_b32 s59, s59, 0x1000")
    k.e("s_add_u32 s61, s58, s59")
    k.e("s_lshl_b32 s59, s53, 11")
    k.e("v_add_u32 v6, s59, v1")
    k.e("v_xor_b32 v7, 0x800, v6")
    k.e(f"v_mov_b32 v176, {CNT}")
    k.e("v_mov_b32 v177, 1")
    def reads(stage, ks, buf):
        so = (stage % 2) * SLOT
        L = []
        fa = FR + 32 * buf; fb_ = fa + 16
        for i in range(4):
            L.append(f"ds_read_b128 v[{fb_+4*i}:{fb_+4*i+3}], v{BA + 2*(i>>1) + ks} offset:{so + 2048*(i&1)}")
            L.append(f"ds_read_b64_tr_b16 v[{fa+4*i}:{fa+4*i+1}], v{AA+i} offset:{so + 8192*ks}")
            L.append(f"ds_read_b64_tr_b16 v[{fa+4*i+2}:{fa+4*i+3}], v{AA+i} offset:{so + 8192*ks + 1024}")
        return L
    def mfmas(buf, first=False, sums_first=False):
        fa = FR + 32 * buf; fb_ = fa + 16
        L = []; Sm = []
        def mm(T, d, a, b):
            c = "0" if first else f"v[{d}:{d+3}]"
            T.append(f"v_mfma_f32_16x16x32_bf16 v[{d}:{d+3}], v[{a}:{a+3}], v[{b}:{b+3}], {c}")
        for f in range(4):
            for m in range(4):
                mm(L, ACC + 16*f + 4*m, fa + 4*f, fb_ + 4*m)
        for i in range(2):
            mm(Sm, AR + 4*i, ONE, fb_ + 4*i)
            mm(Sm, AC + 4*i, fa + 4*i, ONE)
        return Sm + L if sums_first else L + Sm
    for s in range(NSTAGE):
        k.c(f"---- stage {s}")
        k.e("s_waitcnt lgkmcnt(0)")
        k.e("s_barrier")
        if s == 0: stamp_mid(k, 0)
        if flag("STG1") and s == flag("STA", 4): stamp_mid(k, 1)
        if flag("STG1") and s == flag("STB", 9): stamp_mid(k, 2)
        if s == NSTAGE - 1:
            k.e("s_setprio 2")

        if s == 0:
            for x in reads(s, 0, 0): k.e(x)
        else:
            for x in interleave(mfmas(1), reads(s, 0, 0)): k.e(x)
        k.e("s_waitcnt lgkmcnt(0)")
        nxt = []
        if (s + 1) % 2 == 0 and s + 1 < NSTAGE:
            nxt = [f"v_xor_b32 v{r}, 0x10000, v{r}" for r in list(range(BA, BA+4)) + list(range(AA, AA+4))]
        for x in interleave(mfmas(0, first=(s == 0)), reads(s, 1, 1) + nxt): k.e(x)
    k.e("s_waitcnt lgkmcnt(0)")
    fin = mfmas(1, sums_first=True)
    exch = [f"v_mov_b32 v{AR+1}, v{AR+4}",
            f"ds_write_b64 v3, v[{AR}:{AR+1}]",
            f"ds_write_b128 v3, v[{AC}:{AC+3}] offset:1024",
            f"ds_write_b128 v3, v[{AC+4}:{AC+7}] offset:2048",
            "s_mov_b64 exec, 1\nds_add_u32 v176, v177 offset:8\ns_mov_b64 exec, -1"]
    for x in fin[:7]: k.e(x)
    for x in interleave(fin[7:], exch): k.e(x)
    k.e("L_a_sync:")
    k.e("ds_read_b32 v178, v176 offset:8")
    k.e(f"ds_read_b64 v[{AR+2}:{AR+3}], v4")
    k.e(f"ds_read_b128 v[{AC+8}:{AC+11}], v5 offset:1024")
    k.e(f"ds_read_b128 v[{AC+12}:{AC+15}], v5 offset:2048")
    k.e("s_waitcnt lgkmcnt(0)")
    k.e("v_readfirstlane_b32 s58, v178")
    k.e("s_cmp_lt_u32 s58, 4")
    k.e("s_cbranch_scc1 L_a_sync")
    if flag("STG1"): stamp_mid(k, 3)
    k.e("s_cmp_ge_u32 s57, 27")
    k.e("s_cbranch_scc1 L_g2w")
    NM = FR
    for m in range(4):
        k.e(f"v_mul_f32 v{AR+m}, {-1.0/D!r}, v{AR+m}")
    k.e(f"v_cvt_pk_bf16_f32 v{AR+4}, v{AR}, v{AR+1}")
    k.e(f"v_cvt_pk_bf16_f32 v{AR+5}, v{AR+2}, v{AR+3}")
    for m in range(4):
        src = AR + 4 + (m >> 1)
        for h in range(2):
            if m & 1: k.e(f"v_and_b32 v{NM+2*m+h}, 0xffff0000, v{src}")
            else:     k.e(f"v_lshlrev_b32 v{NM+2*m+h}, 16, v{src}")
    OUT = FR + 8
    n = 0
    for p in range(2):
        for m in range(4):
            o = OUT + 4 * (n % 4); n += 1
            for ff in range(2):
                f = 2*p + ff
                a = ACC + 16*f + 4*m
                for h in range(2):
                    k.e(f"v_pk_fma_f32 v[{a+2*h}:{a+2*h+1}], v[{AC+4*f+2*h}:{AC+4*f+2*h+1}], v[{NM+2*m}:{NM+2*m+1}], v[{a+2*h}:{a+2*h+1}]")
                for h in range(2):
                    k.e(f"v_cvt_pk_bf16_f32 v{o+2*ff+h}, v{a+2*h}, v{a+2*h+1}")
            if p == 1 and m == 2: k.e("ds_read_b32 v178, v176 offset:12")
            for i in range(4):
                k.e(f"v_pk_max_i16 v{o+i}, v{o+i}, 0")
            k.e(f"buffer_store_dwordx4 v[{o}:{o+3}], v{6+(m>>1)}, s[48:51], s{60+p} offen offset:{1024*(m&1)}{SC1}")
    pre = g2_prefetch_a()
    NPRE = flag("NPRE", 10)
    n1 = 0; cnt = 0
    while cnt < NPRE:
        cnt += is_vmem(pre[n1]); n1 += 1
    k.e("s_waitcnt lgkmcnt(0)")
    k.e("v_readfirstlane_b32 s58, v178")
    k.e("s_cmp_eq_u32 s58, 1")
    k.e("s_cbranch_scc0 L_a_slow")
    k.e("s_setprio 0")
    for x in pre[:n1]: k.e(x)
    k.e(f"s_waitcnt vmcnt({cnt})")
    k.e("s_setprio 2")
    publish(k, 56, 12)
    if not flag("STG1"): stamp_mid(k, 1)
    k.e("s_branch L_g2b")
    k.e("L_a_slow:")
    k.e("s_waitcnt vmcnt(0)")
    publish(k, 56, 12)
    k.e("L_g2w:")
    k.e("s_setprio 0")
    k.e(f"v_mov_b32 v10, {CNT}")
    lds_wait(k, "L_aw2", 10, 11, AUXOK, 58, sleep=4)
    k.e("s_setprio 0")
    for x in pre[:n1]: k.e(x)
    k.e("L_g2b:")
    k.e("s_setprio 0")
    for x in pre[n1:]: k.e(x)

def b_aprep(k):
    srd(k, 40, P_Q, NB_X)
    srd(k, 44, P_WS, 16384, ST_OFF)
    srd(k, 68, P_WS, NB_T, YT_OFF)
    xo_offsets(k, 8, 1, 2)
    for i in range(3):
        k.e(f"s_add_u32 m0, s81, {XO + 1024*i}")
        k.e(f"buffer_load_dwordx4 v{8+i}, s[40:43], s54 offen lds")
    k.e("v_and_b32 v1, 15, v0")
    k.e("v_lshlrev_b32 v3, 3, v1")
    k.e("s_lshl_b32 s57, s53, 7")
    k.e("v_lshrrev_b32 v4, 3, v0")
    k.e(f"v_mul_u32_u24 v4, {RS}, v4")
    k.e("v_and_b32 v2, 7, v0")
    k.e("v_lshl_add_u32 v4, v2, 4, v4")
    k.e("s_mul_i32 s58, s9, 10")
    k.e("s_add_u32 s58, s58, s101")
    k.e(f"s_mul_i32 s58, s58, {8*RS}")
    k.e("s_lshl_b32 s59, s8, 7")
    k.e("s_add_u32 s58, s58, s59")
    k.e(f"v_mov_b32 v2, {CNT}")
    k.e("s_cmp_eq_u32 s101, 0")
    k.e("s_cbranch_scc1 L_b_poller")
    k.e("s_setprio 0")
    lds_wait(k, "L_b_lwait", 2, 6, 4, 60, sleep=4)
    k.e("s_setprio 3")
    k.e("s_branch L_b_go")
    k.e("L_b_poller:")
    k.e(f"s_mul_i32 s59, s9, {80 << YSH}")
    k.e(f"s_add_u32 s59, s59, {FY}")
    k.e(f"s_add_u32 s61, s59, {64 << YSH}")
    k.e(f"v_lshlrev_b32 v5, {YSH}, v0")
    k.e("s_bfm_b64 exec, 16, 0")
    k.e(f"buffer_load_dwordx2 v[14:15], v5, s[{FSRD}:{FSRD+3}], s61 offen{SC1}")
    k.e("s_mov_b64 exec, -1")
    poll(k, "L_by", 12, 5, 59, 60, 64, sleep=flag("YSLP", 8))
    poll(k, "L_by2", 14, 5, 61, 60, 16, sleep=flag("YSLP", 8), preloaded=True)
    k.e("v_mov_b32 v6, 1")
    k.e("ds_write_b32 v2, v6 offset:4")
    k.e("L_b_go:")
    k.e("s_waitcnt vmcnt(0)")
    if not flag("FST") and not flag("BST"): stamp_mid(k, 3)
    k.e(f"buffer_load_dwordx2 v[12:13], v3, s[44:47], s57 offen{SC1}")
    for i in range(3):
        if i == 2:
            k.e("s_cmp_ge_u32 s101, 2")
            k.e("s_cbranch_scc1 L_b_noy")
        k.e(f"s_add_u32 m0, s81, {YO + 1024*i}")
        k.e(f"buffer_load_dwordx4 v4, s[68:71], s58 offen{SC1} lds")
        if i < 2: k.e(f"s_add_u32 s58, s58, {4*8*RS}")
    k.e("L_b_noy:")
    k.e("v_mul_u32_u24 v5, 160, v1")
    k.e("v_lshrrev_b32 v6, 4, v0")
    k.e("v_lshl_add_u32 v5, v6, 3, v5")
    k.e("v_add_u32 v5, s81, v5")
    k.e("v_lshrrev_b32 v6, 5, v0")
    k.e(f"v_mul_u32_u24 v6, {CONV_LDS}, v6")
    k.e("v_bfe_u32 v7, v0, 2, 3")
    k.e("v_lshl_add_u32 v6, v7, 7, v6")
    k.e("v_and_b32 v7, 3, v0")
    k.e("v_lshl_add_u32 v6, v7, 3, v6")
    k.e("s_lshl_b32 s59, s101, 5")
    k.e(f"s_add_u32 s59, s59, {RB0}")
    k.e("v_add_u32 v6, s59, v6")
    k.e("v_lshlrev_b32 v7, 4, v0")
    k.e("v_add_u32 v7, s81, v7")
    k.e("v_mov_b32 v3, 1")
    XR, YR = 16, 26
    for d in range(5):
        k.e(f"ds_read_b64 v[{XR+2*d}:{XR+2*d+1}], v5 offset:{XO + 32*d}")
    XF, SF = 40, 60
    k.e("s_waitcnt lgkmcnt(0)")
    for d in range(5):
        for h in range(2):
            x = XF + 4*d + 2*h
            unpack(k, x, x+1, XR + 2*d + h)
        k.e(f"ds_write_b128 v7, v[{XF+4*d}:{XF+4*d+3}] offset:{SO + 5120 + 1024*d}")
    k.e("s_waitcnt vmcnt(0)")
    k.e("s_mov_b64 exec, 1")
    k.e("ds_add_u32 v2, v3")
    k.e("s_mov_b64 exec, -1")
    k.e("v_mul_f32 v38, 0xbfb8aa3b, v13")
    k.e("v_mul_f32 v39, 0xbfb8aa3b, v13")
    k.e(f"ds_write_b64 v7, v[38:39] offset:{SO + 10240}")
    k.e("v_mul_f32 v14, v13, v13")
    k.e("v_mul_f32 v15, v13, v13")
    k.e("v_sub_f32 v12, 0, v12")
    k.e("v_mov_b32 v13, v12")
    for i in range(10):
        x = XF + 2*i
        k.e(f"v_pk_add_f32 v[{80+2*i}:{81+2*i}], v[{x}:{x+1}], v[12:13]")
        k.e(f"v_pk_mul_f32 v[{80+2*i}:{81+2*i}], v[{80+2*i}:{81+2*i}], v[14:15]")
    k.e("L_b_cnt:")
    k.e("ds_read_b32 v3, v2")
    for d in range(5):
        k.e(f"ds_read_b64_tr_b16 v[{YR+2*d}:{YR+2*d+1}], v6 offset:{YO + 2*(d&1)*CONV_LDS + (d>>1)*1024}")
    k.e("s_waitcnt lgkmcnt(0)")
    k.e("v_readfirstlane_b32 s59, v3")
    k.e("s_cmp_lt_u32 s59, 4")
    k.e("s_cbranch_scc1 L_b_cnt")
    for d in range(5):
        for h in range(2):
            s = SF + 4*d + 2*h
            unpack(k, s, s+1, YR + 2*d + h)
            k.e(f"v_pk_mul_f32 v[{s}:{s+1}], v[{s}:{s+1}], v[{80+4*d+2*h}:{81+4*d+2*h}]")
        k.e(f"ds_write_b128 v7, v[{SF+4*d}:{SF+4*d+3}] offset:{SO + 1024*d}")
    k.e("s_waitcnt lgkmcnt(0)")

def kernel():
    AL = flag("AL", 1)
    k = Kern(NAME)
    stamp_begin(k)
    k.e("s_cmp_ge_u32 s2, 256")
    k.e("s_cbranch_scc1 L_end")
    load_ptrs(k)
    k.e("v_lshrrev_b32 v1, 6, v0")
    k.e("v_readfirstlane_b32 s3, v1")
    k.e("v_and_b32 v0, 63, v0")
    k.e("s_and_b32 s4, s2, 7")
    k.e("s_lshr_b32 s5, s2, 3")
    k.e("s_lshr_b32 s10, s4, 1")
    k.e("s_and_b32 s11, s4, 1")
    k.e("s_lshl_b32 s6, s10, 2")
    k.e("s_and_b32 s7, s5, 3")
    k.e("s_add_u32 s6, s6, s7")
    k.e("s_lshl_b32 s9, s11, 2")
    k.e("s_add_u32 s9, s9, s7")
    k.e("s_lshr_b32 s8, s5, 2")
    k.e("s_mul_i32 s7, s11, 7")
    k.e("s_add_u32 s7, s7, s8")
    k.e("s_lshl_b32 s10, s10, 3")
    k.e("s_add_u32 s8, s8, s10")
    k.e("s_and_b32 s101, s3, 3")
    for i in range(4): k.e(f"v_mov_b32 v{4+i}, 0")
    k.e(f"v_mov_b32 v1, {CNT}")
    k.e("ds_write_b128 v1, v[4:7]")
    k.e(f"s_mul_i32 s81, s101, {CONV_LDS}")
    k.e(f"s_add_u32 s81, s81, {RB0}")
    k.e("s_waitcnt lgkmcnt(0)")
    srd(k, FSRD, P_WS, FL_BYTES, FL_OFF)
    k.e(f"s_load_dwordx2 s[{TAG}:{TAG+1}], s[{FSRD}:{FSRD+1}], {EP}")
    k.e("s_cmp_ge_u32 s2, 224")
    k.e("s_cbranch_scc1 L_free")
    k.e("s_cmp_lt_u32 s3, 4")
    k.e("s_cbranch_scc1 L_a")
    k.e("s_setprio 1")
    k1.loader_setup(k, 6, 7, 101)
    vm = Vm(); last = {}
    def put(x):
        k.e(x)
        return vm.op() if is_vmem(x) else None
    def dma(st):
        for x in k1.dma(st):
            r = put(x)
            if r is not None: last[st] = r
        if st == AL:
            for x in aux_loads(): put(x)
    dma(0)
    aux_addr(k)
    dma(1)
    k.e("s_lshl_b32 s82, s2, 1")
    k.e("s_add_u32 s82, s82, s101")
    k.e("s_add_u32 s10, s2, 448")
    k.e("s_cmp_lt_u32 s2, 64")
    k.e("s_cselect_b32 s10, s10, 1000")
    k.e("s_cmp_eq_u32 s101, 2")
    k.e("s_cselect_b32 s82, s10, s82")
    k.e("s_cmp_eq_u32 s101, 3")
    k.e("s_cselect_b32 s82, 1000, s82")
    k.e("s_waitcnt lgkmcnt(0)")
    make_tag(k)
    p1, p2 = aux_compute()
    st_idx = None
    k.e("s_lshl_b32 s83, s2, 3")
    k.e("s_cmp_eq_u32 s101, 3")
    k.e(f"s_cselect_b32 s63, 0, {OOB}")
    k.e("v_lshl_add_u32 v250, v0, 4, s63")
    k.e("s_cmp_eq_u32 s101, 2")
    k.e(f"s_cselect_b32 s83, s83, {OOB}")
    PUBS = AL + flag("PUBD", 4)
    for s in range(NSTAGE - 1):
        w = vm.wait(last[s])
        if s == PUBS: w = min(w, vm.wait(st_idx))
        k.e(f"s_waitcnt vmcnt({w})")
        k.e("s_barrier")
        if s == PUBS:
            publish(k, 83, 4); vm.op()
            if flag("BST"): stamp_mid(k, 1)
        if s == AL + 2:
            for x in aux_reads(): k.e(x)
        if s == 0:
            dma(2); dma(3)
        elif s + 3 < NSTAGE:
            dma(s + 3)
        if s == AL + 1:
            for x in p1 + p2: k.e(x)
        if s == AL + 2:
            for x in aux_stores():
                r = put(x)
                if r is not None: st_idx = r
            if flag("BST"): stamp_mid(k, 0)
        if s == flag("WPRE", 7):
            for x in aux_watch_loads(224, 250): put(x)
    w9 = vm.wait(last[9])
    k.e("s_cmp_lt_u32 s82, 640")
    k.e("s_cbranch_scc1 L_b_hasconv")
    k.e("s_waitcnt vmcnt(0)")
    aux_watch_check(k, 224)
    k.e("s_cbranch_scc1 L_b_notyet")
    k.e(f"v_mov_b32 v1, {CNT}")
    k.e("v_mov_b32 v2, 1")
    k.e(f"ds_write_b32 v1, v2 offset:{AUXOK}")
    k.e("s_waitcnt lgkmcnt(0)")
    k.e("L_b_notyet:")
    k.e("s_barrier")
    k.e("s_cmp_eq_u32 s101, 3")
    k.e("s_cbranch_scc0 L_b_aprep")
    aux_watch(k, "L_bw", 224, 250, True)
    if flag("BST"): stamp_mid(k, 2)
    k.e("s_cmp_lg_u32 s2, 0")
    k.e("s_cbranch_scc1 L_b_aprep")
    k.e(f"s_mov_b32 s83, {EP}")
    publish(k, 83, 4)
    k.e("s_branch L_b_aprep")
    k.e("L_b_hasconv:")
    conv.conv_setup_hk(k, 82, 81)
    k.e(f"s_waitcnt vmcnt({w9 + 12})")
    k.e("s_barrier")
    if flag("BST"): stamp_mid(k, 3)
    k.e("L_b_conv:")
    k.e(f"v_mov_b32 v250, {CNT}")
    k.e(f"ds_read_b32 v251, v250 offset:{AUXOK}")
    k.e("s_waitcnt lgkmcnt(0)")
    k.e("v_readfirstlane_b32 s80, v251")
    k.e("s_cmp_eq_u32 s80, 0")
    k.e("s_cbranch_scc1 L_b_late1")
    conv.conv_setup_u(k, 82, 81, SC1)
    k.e("s_waitcnt vmcnt(4)")
    k.e("s_branch L_b_st")
    k.e("L_b_late1:")
    k.e("s_waitcnt vmcnt(0)")
    k.e("L_b_st:")
    conv.conv_stage(k, 82, 81, 0)
    if not flag("BST"): stamp_mid(k, 0)
    k.e("s_cmp_eq_u32 s80, 0")
    k.e("s_cbranch_scc0 L_b_run")
    lds_wait(k, "L_b_uw", 250, 251, AUXOK, 80)
    conv.conv_setup_u(k, 82, 81, SC1)
    k.e("s_waitcnt vmcnt(0)")
    k.e("L_b_run:")
    if not flag("BST"): stamp_mid(k, 1)
    k.e(f"s_setprio {flag('PC', 1)}")
    conv.conv_main(k, "f")
    k.e("s_setprio 3")
    conv.conv_epilogue(k, 82, SC1)
    k.e(f"s_lshl_b32 s10, s82, {YSH}")
    k.e(f"s_add_u32 s83, s10, {FY}")
    k.e("s_waitcnt vmcnt(0)")
    publish(k, 83, 4)
    if not flag("FST") and not flag("BST"): stamp_mid(k, 2)
    k.e("L_b_aprep:")
    k.e("s_setprio 3")
    b_aprep(k)
    k.e("L_b_end:")
    finish(k, 1)
    k.e("L_free:")
    k.e("s_sub_u32 s84, s2, 224")
    k.e("s_mov_b32 s85, s3")
    k.e("s_cmp_eq_u32 s3, 7")
    k.e("s_cbranch_scc1 L_free_sync")
    k.e("s_cmp_lt_u32 s3, 4")
    k.e("s_cbranch_scc1 L_free_stats")
    k.e("s_setprio 2")
    k.e("s_mul_i32 s85, s84, 3")
    k.e("s_add_u32 s85, s85, s101")
    k.e("s_add_u32 s85, s85, 224")
    aux.emit_prep(k, 85, 81, SC1)
    k.e("s_branch L_free_sync")
    k.e("L_free_stats:")
    stats_rows(k, 85)
    aux.emit_stats(k, 52, SC1)
    k.e("s_add_u32 s85, s85, 4")
    k.e("s_cmp_lt_u32 s85, 8")
    k.e("s_cbranch_scc1 L_free_stats")
    k.e("L_free_sync:")
    k.e("s_waitcnt vmcnt(0) lgkmcnt(0)")
    k.e("s_barrier")
    make_tag(k)
    k.e("s_cmp_lt_u32 s3, 4")
    k.e("s_cbranch_scc1 L_free_a")
    k.e("s_setprio 1")
    k.e("s_lshl_b32 s82, s84, 2")
    k.e("s_add_u32 s82, s82, s101")
    k.e("s_add_u32 s82, s82, 512")
    conv.conv_setup_hk(k, 82, 81)
    k.e("s_branch L_b_conv")
    k.e("L_free_a:")
    stamp_mid(k, 0)
    g2_offsets(k)
    w_flag_addr(k)
    srd(k, 44, P_WS, NB_W, W2_OFF)
    k.e("v_lshlrev_b32 v1, 4, v0")
    k.e("v_add_u32 v2, 4096, v1")
    k.e("s_cmp_lg_u32 s3, 0")
    k.e("s_cbranch_scc1 L_g2w")
    k.e("s_lshl_b32 s83, s2, 3")
    publish(k, 83, 4)
    for _ in range(flag("FREESLP", 1)): k.e("s_sleep 40")
    aux_watch(k, "L_fw", 16, 1, False)
    k.e("s_branch L_g2w")
    k.e("L_a:")
    g2_offsets(k)
    w_flag_addr(k)
    k.e("s_waitcnt lgkmcnt(0)")
    make_tag(k)
    g1_phase(k)
    k.e("L_g2:")
    g2_phase(k)
    finish(k, 0)
    k.e("L_end:")
    k.e("s_endpgm")
    return k

if __name__ == "__main__":
    import sys
    hdr = open("recurrent_scan__ssm_conv_h3__dense_activation_relu__prompt.s.ref").read().split("; Override")[0]
    k = kernel()
    out = hdr + f"; @launch grid=(256,1,1) block=(512,1,1) lds={LDS_BYTES}\n"
    out += '.amdgcn_target "amdgcn-amd-amdhsa--gfx950"\n.text\n' + k.body() + '.section .rodata,"a"\n' + k.desc()
    open(sys.argv[1], "w").write(out)
```

```python
from common import *
import aux, conv, k1
from conv import interleave, CONV_LDS
from k1 import Vm, is_vmem, SLOT, WPART, NSTAGE
import fused as F
from fused import (NAME, SC1, FU, FW, FH, FY, FS, EP, RB0, TOP, CNT, LDS_BYTES, XO, YO, SO, NSTEP, TAG, FSRD,
                   SPIN_MAX, FSH, FL_BYTES, publish, check2, poll2, make_tag, xo_offsets, spread, b_aprep, b_flagset)

EA = 131072
if flag('LPLAIN'): SC1 = ''
OOB = 0x40000000
NH = flag("NH", 4); NW = flag("NW", 5)
G_ACC, G_H = 8, 88
G_W = G_H + 16 * NH
assert G_W + 20 * NW <= 256

def early_loads(k):
    srd(k, 40, P_K, NB_X)
    srd(k, 44, P_V, NB_X)
    srd(k, 48, P_SH, D * 8)
    srd(k, 62 + 2, P_W2, NB_W)
    k.e("s_mul_i32 s52, s2, 6554")
    k.e("s_lshr_b32 s52, s52, 16")
    k.e("s_mul_i32 s53, s52, 10")
    k.e("s_sub_u32 s53, s2, s53")
    k.e("s_lshl_b32 s54, s52, 2")
    k.e("s_add_u32 s54, s54, s3")
    k.e("s_mul_i32 s54, s54, 20480")
    k.e("s_lshl_b32 s55, s53, 7")
    k.e("s_add_u32 s54, s54, s55")
    k.e("v_lshrrev_b32 v1, 3, v0")
    k.e("v_mul_u32_u24 v2, 1280, v1")
    k.e("v_and_b32 v3, 7, v0")
    k.e("v_lshl_add_u32 v2, v3, 4, v2")
    k.e("v_add_u32 v2, s54, v2")
    k.e("v_subrev_u32 v4, 3840, v2")
    k.e("s_mul_i32 s56, s3, 5120")
    k.e(f"s_add_u32 s56, s56, {EA}")
    k.e("s_mov_b32 m0, s56")
    k.e("buffer_load_dwordx4 v4, s[40:43], 0 offen lds")
    k.e(f"v_add_u32 v5, {10240 - 3840 - 1024}, v2")
    k.e("buffer_load_dwordx4 v5, s[40:43], 0 offen offset:1024 lds")
    k.e(f"v_add_u32 v5, {20480 - 3840 - 2048}, v2")
    k.e(f"v_mov_b32 v6, {OOB}")
    k.e("v_cmp_gt_u32 vcc, 24, v0")
    k.e("v_cndmask_b32 v5, v6, v5, vcc")
    k.e("buffer_load_dwordx4 v5, s[40:43], 0 offen offset:2048 lds")
    k.e("s_add_u32 m0, s56, 3072")
    k.e(f"v_add_u32 v5, {10240 - 1024}, v2")
    k.e("buffer_load_dwordx4 v2, s[44:47], 0 offen lds")
    k.e("buffer_load_dwordx4 v5, s[44:47], 0 offen offset:1024 lds")
    k.e("v_and_b32 v7, 31, v0")
    k.e("v_lshlrev_b32 v8, 4, v7")
    k.e("s_lshl_b32 s55, s53, 9")
    k.e("buffer_load_dwordx4 v[12:15], v8, s[48:51], s55 offen")
    k.e("s_lshr_b32 s57, s2, 2")
    k.e("s_and_b32 s58, s2, 3")
    k.e("s_mul_i32 s59, s57, 40960")
    k.e("s_mul_i32 s60, s58, 320")
    k.e("s_add_u32 s59, s59, s60")
    k.e("s_lshl_b32 s60, s3, 6")
    k.e("s_lshl_b32 s61, s3, 10")
    for i in range(3):
        if i == 2:
            k.e("s_cmp_ge_u32 s3, 2")
            k.e("s_cbranch_scc1 L_ea_no3")
        k.e(f"v_add_u32 v9, s60, v0")
        if i: k.e(f"v_add_u32 v9, {256*i}, v9")
        k.e("v_mul_u32_u24 v10, 52429, v9")
        k.e("v_lshrrev_b32 v10, 20, v10")
        k.e("v_mul_u32_u24 v10, 960, v10")
        k.e("v_lshl_add_u32 v10, v9, 4, v10")
        k.e(f"s_add_u32 m0, s61, {EA + 20480 + 4096*i}")
        k.e("buffer_load_dwordx4 v10, s[64:67], s59 offen lds")
    k.e("L_ea_no3:")

def early_compute(k):
    k.e("v_lshrrev_b32 v9, 5, v0")
    k.e("v_lshlrev_b32 v10, 10, v9")
    k.e("v_lshl_add_u32 v10, v7, 2, v10")
    k.e("v_add_u32 v10, s56, v10")
    k.e("v_sub_u32 v11, 1, v9")
    k.e("v_lshlrev_b32 v11, 4, v11")
    k.e("v_lshl_add_u32 v11, v7, 6, v11")
    k.e("v_add_u32 v11, s56, v11")
    KR, VR, TP, KU, VU, KV, OUT = 16, 28, 36, 44, 66, 82, 88
    k.e("s_waitcnt vmcnt(2)")
    for j in range(11):
        k.e(f"ds_read_b32 v{KR+j}, v10 offset:{128*j}")
    for j in range(8):
        k.e(f"ds_read_b32 v{VR+j}, v10 offset:{3072 + 128*j}")
    for c in range(2):
        unpack(k, TP + 0 + c, TP + 2 + c, 12 + 2*c)
        unpack(k, TP + 4 + c, TP + 6 + c, 13 + 2*c)
    k.e("s_waitcnt lgkmcnt(0)")
    for j in range(11): unpack(k, KU + 2*j, KU + 2*j + 1, KR + j)
    for j in range(8): unpack(k, VU + 2*j, VU + 2*j + 1, VR + j)
    for r in range(8):
        d = KV + 2*(r & 1)
        for j in (3, 2, 1, 0):
            w = KU + 2*(r + 3 - j); t = TP + 2*j
            if j == 3: k.e(f"v_pk_mul_f32 v[{d}:{d+1}], v[{w}:{w+1}], v[{t}:{t+1}]")
            else: k.e(f"v_pk_fma_f32 v[{d}:{d+1}], v[{w}:{w+1}], v[{t}:{t+1}], v[{d}:{d+1}]")
        k.e(f"v_pk_mul_f32 v[{d}:{d+1}], v[{d}:{d+1}], v[{VU+2*r}:{VU+2*r+1}]")
        if r & 1:
            for c in range(2):
                k.e(f"v_cvt_pk_bf16_f32 v{OUT+4*c+3-r//2}, v{KV+2+c}, v{KV+c}")
    for c in range(2):
        k.e(f"ds_write_b128 v11, v[{OUT+4*c}:{OUT+4*c+3}] offset:{32*c}")
    srd(k, 40, P_WS, D * S * 2, UR_OFF)
    k.e("v_and_b32 v9, 7, v0")
    k.e("v_lshrrev_b32 v10, 3, v0")
    k.e("v_lshrrev_b32 v11, 1, v9")
    k.e("v_sub_u32 v11, 3, v11")
    k.e("v_mul_u32_u24 v11, 5120, v11")
    k.e("v_lshl_add_u32 v11, v10, 5, v11")
    k.e("v_and_b32 v12, 1, v9")
    k.e("v_lshl_add_u32 v11, v12, 4, v11")
    k.e("s_lshl_b32 s60, s3, 9")
    k.e(f"s_add_u32 s60, s60, {EA}")
    k.e("v_add_u32 v176, s60, v11")
    k.e("v_lshlrev_b32 v177, 12, v10")
    k.e("v_lshl_add_u32 v177, v9, 4, v177")
    k.e("s_lshl_b32 s68, s53, 2")
    k.e("s_add_u32 s68, s68, s3")
    k.e("s_lshl_b32 s68, s68, 16")
    k.e("s_lshl_b32 s60, s52, 7")
    k.e("s_sub_u32 s60, 3968, s60")
    k.e("s_add_u32 s68, s68, s60")
    k.e("s_add_u32 s69, s68, 32768")
    k.e("v_lshrrev_b32 v11, 2, v0")
    k.e("v_mul_u32_u24 v11, 320, v11")
    k.e("v_and_b32 v12, 3, v0")
    k.e("v_lshl_add_u32 v11, v12, 3, v11")
    k.e("s_lshl_b32 s60, s3, 5")
    k.e(f"s_add_u32 s60, s60, {EA + 20480}")
    k.e("v_add_u32 v178, s60, v11")
    k.e("s_mul_i32 s60, s58, 108")
    k.e("s_add_u32 s60, s60, s57")
    k.e("s_mul_i32 s60, s60, 5120")
    k.e("s_cmp_ge_u32 s2, 216")
    k.e(f"s_cselect_b32 s60, {OOB}, s60")
    k.e("s_lshl_b32 s61, s3, 10")
    k.e("s_add_u32 s70, s60, s61")
    k.e("s_cmp_eq_u32 s3, 0")
    k.e(f"s_cselect_b32 s71, 0, {54*5120 - 5120}")
    k.e("s_add_u32 s71, s71, s70")
    k.e("s_add_u32 s71, s71, 4096")
    k.e(f"s_add_u32 s72, s70, {54*5120 + 3072}")
    k.e("s_cmp_ge_u32 s3, 2")
    k.e(f"s_cselect_b32 s72, {OOB}, s72")
    k.e("s_lshl_b32 s73, s53, 5")
    k.e("s_add_u32 s73, s73, s52")
    k.e(f"s_lshl_b32 s73, s73, {FSH}")
    k.e("s_lshl_b32 s74, s58, 6")
    k.e("s_add_u32 s74, s74, s57")
    k.e(f"s_lshl_b32 s74, s74, {FSH}")
    k.e(f"s_add_u32 s74, s74, {FW}")
    k.e("s_waitcnt vmcnt(0)")

def early_reads():
    L = [f"ds_read_b128 v[{180+4*i}:{183+4*i}], v176 offset:{256*i}" for i in range(2)]
    for i in range(3):
        L.append(f"ds_read_b64_tr_b16 v[{188+4*i}:{189+4*i}], v178 offset:{128*i}")
        L.append(f"ds_read_b64_tr_b16 v[{190+4*i}:{191+4*i}], v178 offset:{128*i + 5120}")
    return L
def early_stores():
    L = [f"buffer_store_dwordx4 v[{180+4*i}:{183+4*i}], v177, s[40:43], s{68+i} offen{SC1}" for i in range(2)]
    L += [f"buffer_store_dwordx4 v[{188+4*i}:{191+4*i}], v1, s[44:47], s{70+i} offen{SC1}" for i in range(3)]
    return L

GR = flag("GR", 0)
def g2_offsets(k):
    k.e("s_mul_i32 s10, s101, 14")
    k.e("s_cmp_eq_u32 s101, 3")
    k.e("s_cselect_b32 s10, 41, s10")
    k.e(f"s_mul_i32 s11, s8, {NT}")
    k.e("s_add_u32 s11, s11, s10")
    k.e("s_lshl_b32 s71, s11, 12")
    k.e(f"s_mul_i32 s11, s9, {NT}")
    k.e("s_add_u32 s11, s11, s10")
    k.e("s_mul_i32 s72, s11, 5120")
    k.e("s_and_b32 s68, s9, 3")
    k.e(f"s_mul_i32 s68, s68, {7 * GR}")
    k.e("s_lshr_b32 s68, s68, 1")
    k.e("s_mov_b32 s69, s68")
    k.e("s_add_u32 s70, s68, 11")
    k.e("s_sub_u32 s11, s70, 14")
    k.e("s_cmp_ge_u32 s70, 14")
    k.e("s_cselect_b32 s70, s11, s70")
    k.e("s_cmp_ge_u32 s101, 2")
    k.e("s_cselect_b32 s79, 13, 99")
def next_off(sidx, sdst, sbase, mul):
    return [f"s_cmp_eq_u32 s{sidx}, s79",
            f"s_cselect_b32 s{sdst}, 0x40000, s{sidx}",
            f"s_mul_i32 s{sdst}, s{sdst}, {mul}",
            f"s_add_u32 s{sdst}, s{sdst}, s{sbase}",
            f"s_add_u32 s{sidx}, s{sidx}, 1",
            f"s_cmp_eq_u32 s{sidx}, 14",
            f"s_cselect_b32 s{sidx}, 0, s{sidx}"]
def w_loads(step):
    b = G_W + 20 * (step % NW)
    L = next_off(69, 77, 72, 5120)
    L += [f"buffer_load_dwordx4 v[{b+4*d}:{b+4*d+3}], v1, s[44:47], s77 offen offset:{1024*d}{SC1}" for d in range(4)]
    L.append(f"buffer_load_dwordx4 v[{b+16}:{b+19}], v2, s[44:47], s77 offen{SC1}")
    return L
def h_loads(step):
    b = G_H + 16 * (step % NH)
    L = next_off(68, 76, 71, 4096)
    L += [f"buffer_load_dwordx4 v[{b+4*m}:{b+4*m+3}], v{3+m}, s[40:43], s76 offen{SC1}" for m in range(4)]
    return L
def w_lds_reads(step):
    b = G_W + 20 * (step % NW)
    return [f"ds_read_b128 v[{b+4*d}:{b+4*d+3}], v7 offset:{(step-11)*5120 + 1024*d}" for d in range(5)]
def g2_mfmas(step):
    b = G_H + 16 * (step % NH); wb = G_W + 20 * (step % NW)
    L = []
    for d in range(5):
        for m in range(4):
            a = G_ACC + 16*d + 4*m
            c = "0" if step == 0 else f"v[{a}:{a+3}]"
            L.append(f"v_mfma_f32_16x16x32_bf16 v[{a}:{a+3}], v[{wb+4*d}:{wb+4*d+3}], v[{b+4*m}:{b+4*m+3}], {c}")
    return L

def g2_prefetch_a():
    return [x for s in range(NW) for x in w_loads(s)]
def g2_prefetch_b(k):
    k.e("s_lshl_b32 s56, s101, 14")
    for s in (11, 12, 13):
        for x in next_off(70, 78, 72, 5120): k.e(x)
        k.e(f"s_add_u32 m0, s56, {(s-11)*5120}")
        for d in range(4):
            k.e(f"buffer_load_dwordx4 v1, s[44:47], s78 offen offset:{1024*d}{SC1} lds")
        k.e(f"s_add_u32 m0, s56, {(s-11)*5120 + 4096}")
        k.e(f"buffer_load_dwordx4 v2, s[44:47], s78 offen{SC1} lds")

def g2_phase(k):
    k.e("s_setprio 0")
    g2_prefetch_b(k)
    srd(k, 40, P_WS, 32 * NT * 4096, H_OFF)
    k.e("s_lshl_b32 s52, s101, 10")
    k.e("v_add_u32 v3, s52, v1")
    for m in range(1, 4):
        k.e(f"v_xor_b32 v{3+m}, {1024*m}, v3")
    k.e("v_add_u32 v7, s56, v1")
    k.e("s_mul_i32 s57, s101, 7")
    k.e("s_min_u32 s57, s57, 20")
    k.e("s_lshl_b32 s58, s8, 5")
    k.e("s_add_u32 s57, s57, s58")
    k.e(f"s_lshl_b32 s57, s57, {FSH}")
    k.e(f"s_add_u32 s57, s57, {FH}")
    k.e("v_min_u32 v8, 6, v0")
    k.e(f"v_lshlrev_b32 v8, {FSH}, v8")
    poll2(k, "L_hpoll", 10, 8, 57, 58, sleep=flag("HSLP", 2))
    if not flag("STG1"): stamp_mid(k, 2)
    vm = Vm(); hneed = {}; wneed = {}
    for s in range(NH - 1):
        for x in h_loads(s):
            k.e(x)
            if is_vmem(x): hneed[s] = vm.op()
    for s in range(NSTEP):
        idx = max(hneed[s], wneed.get(s, -1))
        lg = " lgkmcnt(0)" if s >= 11 else ""
        k.e(f"s_waitcnt vmcnt({vm.wait(idx)}){lg}")
        fill = []
        if s + NH - 1 < NSTEP: fill += [(x, "h", s + NH - 1) for x in h_loads(s + NH - 1)]
        r = s + NW - 1
        if s >= 1 and r <= 10: fill += [(x, "w", r) for x in w_loads(r)]
        if s >= 1 and 11 <= r <= 13: fill += [(x, "l", r) for x in w_lds_reads(r)]
        m = g2_mfmas(s); fi = 0
        for i, x in enumerate(m):
            k.e(x)
            if i % 2 == 0 or flag("DENSE"):
                while fi < len(fill):
                    y, t, st = fill[fi]; fi += 1
                    k.e(y)
                    if is_vmem(y):
                        (hneed if t == "h" else wneed)[st] = vm.op()
                    if not y.startswith("s_"): break
        for y, t, st in fill[fi:]:
            k.e(y)
            if is_vmem(y): (hneed if t == "h" else wneed)[st] = vm.op()
    if not flag("STG1"): stamp_mid(k, 3)
    g2_tail(k)

def g2_tail(k):
    k.e("s_setprio 2")
    for m in range(1, 4):
        for d in range(5):
            a = G_ACC + 16*d + 4*m
            k.e(f"ds_write_b128 v7, v[{a}:{a+3}] offset:{(m-1)*5120 + 1024*d}")
    srd(k, 48, P_OUT, NB_X)
    T = 200
    xo_offsets(k, T, T+3, T+4)
    for m in range(1, 4):
        k.e(f"v_xor_b32 v{T+4+m}, {16384*m}, v7")
    k.e(f"s_mul_i32 s59, s101, {CONV_LDS}")
    k.e(f"s_add_u32 s59, s59, {RB0}")
    k.e(f"v_add_u32 v{T+8}, s59, v1")
    k.e(f"v_and_b32 v{T+9}, 15, v0")
    k.e(f"v_mul_u32_u24 v{T+9}, 160, v{T+9}")
    k.e(f"v_lshrrev_b32 v{T+10}, 4, v0")
    k.e(f"v_lshl_add_u32 v{T+9}, v{T+10}, 3, v{T+9}")
    k.e(f"v_add_u32 v{T+9}, s59, v{T+9}")
    k.e(f"v_mov_b32 v{T+12}, 1.0")
    k.e(f"v_mov_b32 v{T+13}, 1.0")
    k.e("s_waitcnt lgkmcnt(0)")
    k.e("s_barrier")
    SF, XF, CC = 88, 108, T + 14
    k.e(f"ds_read_b64 v[{CC}:{CC+1}], v{T+8} offset:{SO + 10240}")
    for d in range(5):
        for m in range(1, 4):
            a = G_ACC + 16*d + 4*m
            k.e(f"ds_read_b128 v[{a}:{a+3}], v{T+4+m} offset:{(m-1)*5120 + 1024*d}")
        k.e(f"ds_read_b128 v[{SF+4*d}:{SF+4*d+3}], v{T+8} offset:{SO + 1024*d}")
        k.e(f"ds_read_b128 v[{XF+4*d}:{XF+4*d+3}], v{T+8} offset:{SO + 5120 + 1024*d}")
    for d in range(5):
        k.e(f"s_waitcnt lgkmcnt({min(15, 20-5*d)})")
        a = G_ACC + 16*d
        for h in range(2):
            k.e(f"v_pk_add_f32 v[{a+2*h}:{a+2*h+1}], v[{a+2*h}:{a+2*h+1}], v[{a+4+2*h}:{a+4+2*h+1}]")
            k.e(f"v_pk_add_f32 v[{a+8+2*h}:{a+8+2*h+1}], v[{a+8+2*h}:{a+8+2*h+1}], v[{a+12+2*h}:{a+12+2*h+1}]")
        for h in range(2):
            k.e(f"v_pk_add_f32 v[{a+2*h}:{a+2*h+1}], v[{a+2*h}:{a+2*h+1}], v[{a+8+2*h}:{a+8+2*h+1}]")
        e = a + 4
        for h in range(2):
            k.e(f"v_pk_mul_f32 v[{e+2*h}:{e+2*h+1}], v[{a+2*h}:{a+2*h+1}], v[{CC}:{CC+1}]")
        for r in range(4):
            k.e(f"v_exp_f32 v{e+r}, v{e+r}")
        for h in range(2):
            s = SF + 4*d + 2*h
            k.e(f"v_pk_mul_f32 v[{a+2*h}:{a+2*h+1}], v[{a+2*h}:{a+2*h+1}], v[{s}:{s+1}]")
        for h in range(2):
            k.e(f"v_pk_add_f32 v[{e+2*h}:{e+2*h+1}], v[{e+2*h}:{e+2*h+1}], v[{T+12}:{T+13}]")
        for r in range(4):
            k.e(f"v_rcp_f32 v{e+r}, v{e+r}")
        for h in range(2):
            x = XF + 4*d + 2*h
            k.e(f"v_pk_fma_f32 v[{a+2*h}:{a+2*h+1}], v[{a+2*h}:{a+2*h+1}], v[{e+2*h}:{e+2*h+1}], v[{x}:{x+1}]")
        k.e(f"v_cvt_pk_bf16_f32 v{a+8}, v{a}, v{a+1}")
        k.e(f"v_cvt_pk_bf16_f32 v{a+9}, v{a+2}, v{a+3}")
    for d in range(5):
        a = G_ACC + 16*d
        k.e(f"ds_write_b64 v{T+9}, v[{a+8}:{a+9}] offset:{XO + 32*d}")
    k.e("s_waitcnt lgkmcnt(0)")
    O = 128
    for i in range(3):
        k.e(f"ds_read_b128 v[{O+4*i}:{O+4*i+3}], v{T+8} offset:{XO + 1024*i}")
    for i in range(3):
        k.e(f"s_waitcnt lgkmcnt({2-i})")
        k.e(f"buffer_store_dwordx4 v[{O+4*i}:{O+4*i+3}], v{T+i}, s[48:51], s54 offen")

def g1_phase(k):
    PUB = flag("PUB", 4)
    srd(k, 48, P_WS, 32 * NT * 4096, H_OFF)
    srd(k, 44, P_WS, NB_W, W2_OFF)
    k.e("s_and_b32 s52, s3, 1")
    k.e("s_lshr_b32 s53, s3, 1")
    BA, AA = 10, 14
    k.e("v_lshlrev_b32 v1, 4, v0")
    k.e("v_add_u32 v2, 4096, v1")
    k.e("v_and_b32 v18, 15, v0")
    k.e("v_lshrrev_b32 v19, 4, v0")
    k.e("v_lshrrev_b32 v20, 1, v18")
    k.e("v_xor_b32 v20, v20, v19")
    k.e("v_lshlrev_b32 v20, 4, v20")
    k.e("v_lshl_add_u32 v20, v18, 7, v20")
    k.e("s_lshl_b32 s58, s52, 13")
    k.e("s_lshl_b32 s59, s53, 12")
    k.e("s_add_u32 s58, s58, s59")
    k.e(f"v_add_u32 v{BA}, s58, v20")
    k.e(f"v_xor_b32 v{BA+1}, 64, v{BA}")
    k.e(f"v_xor_b32 v{BA+2}, 0x1000, v{BA}")
    k.e(f"v_xor_b32 v{BA+3}, 0x1040, v{BA}")
    k.e("v_lshrrev_b32 v20, 2, v18")
    k.e("v_and_b32 v21, 3, v18")
    k.e("v_lshl_add_u32 v22, v19, 3, v20")
    k.e("v_lshlrev_b32 v22, 8, v22")
    k.e("v_lshl_add_u32 v22, v21, 3, v22")
    k.e(f"v_add_u32 v22, {WPART}, v22")
    k.e("v_and_b32 v23, 1, v19")
    k.e("v_lshl_add_u32 v23, v23, 2, v20")
    k.e("s_lshl_b32 s58, s53, 2")
    k.e("s_lshl_b32 s59, s52, 1")
    k.e("s_add_u32 s58, s58, s59")
    k.e("v_xor_b32 v23, s58, v23")
    k.e(f"v_lshl_add_u32 v{AA}, v23, 5, v22")
    for fb in range(1, 4):
        k.e(f"v_xor_b32 v{AA+fb}, {32*fb}, v{AA}")
    ONE = 20
    for i in range(4): k.e(f"v_mov_b32 v{ONE+i}, 0x3f803f80")
    ACC, AR, AC, FR = 24, 88, 96, 112
    for r, x in ((3, 0), (4, 2), (5, 1)):
        k.e(f"s_xor_b32 s58, s3, {x}")
        k.e("s_mul_i32 s58, s58, 3072")
        k.e(f"s_add_u32 s58, s58, {TOP}")
        k.e(f"v_add_u32 v{r}, s58, v1")
    k.e("s_lshl_b32 s58, s7, 1")
    k.e("s_add_u32 s57, s58, s53")
    k.e("s_lshl_b32 s59, s6, 1")
    k.e("s_add_u32 s59, s59, s52")
    k.e("s_lshl_b32 s56, s59, 5")
    k.e("s_add_u32 s56, s56, s57")
    k.e(f"s_lshl_b32 s56, s56, {FSH}")
    k.e(f"s_add_u32 s56, s56, {FH}")
    k.e(f"s_mul_i32 s59, s59, {NT}")
    k.e("s_lshl_b32 s58, s57, 1")
    k.e("s_add_u32 s58, s58, s59")
    k.e("s_lshl_b32 s58, s58, 12")
    k.e("s_lshl_b32 s59, s52, 12")
    k.e("s_add_u32 s60, s58, s59")
    k.e("s_xor_b32 s59, s59, 0x1000")
    k.e("s_add_u32 s61, s58, s59")
    k.e("s_lshl_b32 s59, s53, 11")
    k.e("v_add_u32 v6, s59, v1")
    k.e("v_xor_b32 v7, 0x800, v6")
    def reads(stage, ks, buf):
        so = (stage % 2) * SLOT
        L = []
        fa = FR + 32 * buf; fb_ = fa + 16
        for i in range(4):
            L.append(f"ds_read_b128 v[{fb_+4*i}:{fb_+4*i+3}], v{BA + 2*(i>>1) + ks} offset:{so + 2048*(i&1)}")
            L.append(f"ds_read_b64_tr_b16 v[{fa+4*i}:{fa+4*i+1}], v{AA+i} offset:{so + 8192*ks}")
            L.append(f"ds_read_b64_tr_b16 v[{fa+4*i+2}:{fa+4*i+3}], v{AA+i} offset:{so + 8192*ks + 1024}")
        return L
    def mfmas(buf, first=False, sums_first=False):
        fa = FR + 32 * buf; fb_ = fa + 16
        L = []; Sm = []
        def mm(T, d, a, b):
            c = "0" if first else f"v[{d}:{d+3}]"
            T.append(f"v_mfma_f32_16x16x32_bf16 v[{d}:{d+3}], v[{a}:{a+3}], v[{b}:{b+3}], {c}")
        for f in range(4):
            for m in range(4):
                mm(L, ACC + 16*f + 4*m, fa + 4*f, fb_ + 4*m)
        for i in range(2):
            mm(Sm, AR + 4*i, ONE, fb_ + 4*i)
            mm(Sm, AC + 4*i, fa + 4*i, ONE)
        return Sm + L if sums_first else L + Sm
    for s in range(NSTAGE):
        k.c(f"---- stage {s}")
        k.e("s_waitcnt vmcnt(0) lgkmcnt(0)" if s == PUB else "s_waitcnt lgkmcnt(0)")
        k.e("s_barrier")
        if s == 0: stamp_mid(k, 0)
        if flag("STG1") and s == flag("STA", 4): stamp_mid(k, 1)
        if flag("STG1") and s == flag("STB", 9): stamp_mid(k, 2)
        if s == PUB and not flag("NOPUB"):
            k.e("s_cmp_gt_u32 s3, 1")
            k.e("s_cbranch_scc1 L_g1_nopub")
            k.e("s_cmp_eq_u32 s3, 0")
            k.e("s_cselect_b32 s73, s73, s74")
            k.e("s_setprio 2")
            publish(k, 73, 176)
            k.e("s_setprio 0")
            k.e("L_g1_nopub:")
        if s == 0:
            for x in reads(s, 0, 0) + early_reads(): k.e(x)
        else:
            for x in interleave(mfmas(1), reads(s, 0, 0)): k.e(x)
        k.e("s_waitcnt lgkmcnt(0)")
        nxt = []
        if (s + 1) % 2 == 0 and s + 1 < NSTAGE:
            nxt = [f"v_xor_b32 v{r}, 0x10000, v{r}" for r in list(range(BA, BA+4)) + list(range(AA, AA+4))]
        for x in interleave(mfmas(0, first=(s == 0)), reads(s, 1, 1) + nxt): k.e(x)
        if s == 0:
            k.e("s_setprio 2")
            for x in early_stores(): k.e(x)
            k.e("s_setprio 0")
    k.e("s_waitcnt lgkmcnt(0)")
    fin = mfmas(1, sums_first=True)
    exch = [f"v_mov_b32 v{AR+1}, v{AR+4}",
            f"ds_write_b64 v3, v[{AR}:{AR+1}]",
            f"ds_write_b128 v3, v[{AC}:{AC+3}] offset:1024",
            f"ds_write_b128 v3, v[{AC+4}:{AC+7}] offset:2048"]
    for x in fin[:8]: k.e(x)
    for x in interleave(fin[8:], exch): k.e(x)
    k.e("s_setprio 2")
    k.e("s_waitcnt lgkmcnt(0)")
    k.e("s_barrier")
    if flag("STG1"): stamp_mid(k, 3)
    k.e(f"ds_read_b64 v[{AR+2}:{AR+3}], v4")
    k.e(f"ds_read_b128 v[{AC+8}:{AC+11}], v5 offset:1024")
    k.e(f"ds_read_b128 v[{AC+12}:{AC+15}], v5 offset:2048")
    k.e("s_cmp_ge_u32 s57, 27")
    k.e("s_waitcnt lgkmcnt(0)")
    k.e("s_cbranch_scc1 L_g2pre")
    NM = FR
    for m in range(4):
        k.e(f"v_mul_f32 v{AR+m}, {-1.0/D!r}, v{AR+m}")
    k.e(f"v_cvt_pk_bf16_f32 v{AR+4}, v{AR}, v{AR+1}")
    k.e(f"v_cvt_pk_bf16_f32 v{AR+5}, v{AR+2}, v{AR+3}")
    for m in range(4):
        src = AR + 4 + (m >> 1)
        for h in range(2):
            if m & 1: k.e(f"v_and_b32 v{NM+2*m+h}, 0xffff0000, v{src}")
            else:     k.e(f"v_lshlrev_b32 v{NM+2*m+h}, 16, v{src}")
    OUT = FR + 8
    n = 0
    for p in range(2):
        for m in range(4):
            o = OUT + 4 * (n % 4); n += 1
            for ff in range(2):
                f = 2*p + ff
                a = ACC + 16*f + 4*m
                for h in range(2):
                    k.e(f"v_pk_fma_f32 v[{a+2*h}:{a+2*h+1}], v[{AC+4*f+2*h}:{AC+4*f+2*h+1}], v[{NM+2*m}:{NM+2*m+1}], v[{a+2*h}:{a+2*h+1}]")
                for h in range(2):
                    k.e(f"v_cvt_pk_bf16_f32 v{o+2*ff+h}, v{a+2*h}, v{a+2*h+1}")
            for i in range(4):
                k.e(f"v_pk_max_i16 v{o+i}, v{o+i}, 0")
            k.e(f"buffer_store_dwordx4 v[{o}:{o+3}], v{6+(m>>1)}, s[48:51], s{60+p} offen offset:{1024*(m&1)}{SC1}")
    pre = g2_prefetch_a()
    NPRE = flag("NPRE", 10)
    k.e("s_setprio 0")
    cnt = 0; i = 0
    while cnt < NPRE:
        k.e(pre[i]); cnt += is_vmem(pre[i]); i += 1
    k.e(f"s_waitcnt vmcnt({cnt})")
    k.e("s_setprio 2")
    publish(k, 56, 8)
    k.e("s_setprio 0")
    if not flag("STG1"): stamp_mid(k, 1)
    for x in pre[i:]: k.e(x)
    k.e("s_branch L_g2")
    k.e("L_g2pre:")
    k.e("s_setprio 0")
    for x in pre: k.e(x)

def stats_rows(k, s_idx):
    k.e("s_and_b32 s10, s84, 6")
    k.e("s_lshl_b32 s10, s10, 8")
    k.e("s_lshr_b32 s11, s84, 3")
    k.e("s_lshl_b32 s11, s11, 7")
    k.e("s_add_u32 s10, s10, s11")
    k.e("s_and_b32 s11, s84, 1")
    k.e("s_lshl_b32 s11, s11, 6")
    k.e("s_add_u32 s10, s10, s11")
    k.e(f"s_lshl_b32 s11, s{s_idx}, 3")
    k.e("s_add_u32 s52, s10, s11")

def kernel():
    k = Kern(NAME)
    stamp_begin(k)
    k.e("s_cmp_ge_u32 s2, 256")
    k.e("s_cbranch_scc1 L_end")
    load_ptrs(k)
    k.e("v_lshrrev_b32 v1, 6, v0")
    k.e("v_readfirstlane_b32 s3, v1")
    k.e("v_and_b32 v0, 63, v0")
    k.e("s_and_b32 s4, s2, 7")
    k.e("s_lshr_b32 s5, s2, 3")
    k.e("s_lshr_b32 s10, s4, 1")
    k.e("s_and_b32 s11, s4, 1")
    k.e("s_lshl_b32 s6, s10, 2")
    k.e("s_and_b32 s7, s5, 3")
    k.e("s_add_u32 s6, s6, s7")
    k.e("s_lshl_b32 s9, s11, 2")
    k.e("s_add_u32 s9, s9, s7")
    k.e("s_lshr_b32 s8, s5, 2")
    k.e("s_mul_i32 s7, s11, 7")
    k.e("s_add_u32 s7, s7, s8")
    k.e("s_lshl_b32 s10, s10, 3")
    k.e("s_add_u32 s8, s8, s10")
    k.e("s_and_b32 s101, s3, 3")
    k.e("v_mov_b32 v2, 0")
    k.e("v_mov_b32 v3, 0")
    k.e(f"v_mov_b32 v1, {CNT}")
    k.e("ds_write_b64 v1, v[2:3]")
    k.e(f"s_mul_i32 s81, s101, {CONV_LDS}")
    k.e(f"s_add_u32 s81, s81, {RB0}")
    k.e("s_waitcnt lgkmcnt(0)")
    srd(k, FSRD, P_WS, FL_BYTES, FL_OFF)
    k.e(f"s_load_dwordx2 s[{TAG}:{TAG+1}], s[{FSRD}:{FSRD+1}], {EP}")
    k.e("s_cmp_ge_u32 s2, 224")
    k.e("s_cbranch_scc1 L_free")
    k.e("s_cmp_lt_u32 s3, 4")
    k.e("s_cbranch_scc1 L_a")
    k.e("s_setprio 1")
    k1.loader_setup(k, 6, 7, 101)
    vm = Vm(); last = {}
    def put(x):
        k.e(x)
        return vm.op() if is_vmem(x) else None
    def dma(st):
        for x in k1.dma(st):
            r = put(x)
            if r is not None: last[st] = r
    dma(0); dma(1)
    k.e("s_lshl_b32 s82, s2, 1")
    k.e("s_add_u32 s82, s82, s101")
    k.e("s_add_u32 s10, s2, 448")
    k.e("s_cmp_lt_u32 s2, 64")
    k.e("s_cselect_b32 s10, s10, 1000")
    k.e("s_cmp_eq_u32 s101, 2")
    k.e("s_cselect_b32 s82, s10, s82")
    k.e("s_cmp_eq_u32 s101, 3")
    k.e("s_cselect_b32 s82, 1000, s82")
    b_flagset(k)
    k.e("s_waitcnt lgkmcnt(0)")
    make_tag(k)
    for s in range(NSTAGE - 1):
        k.e(f"s_waitcnt vmcnt({vm.wait(last[s])})")
        k.e("s_barrier")
        if s == 0:
            dma(2); dma(3)
        elif s + 3 < NSTAGE:
            dma(s + 3)
    k.e("s_cmp_lt_u32 s82, 640")
    k.e("s_cbranch_scc1 L_b_hasconv")
    k.e("s_waitcnt vmcnt(0)")
    k.e("s_barrier")
    k.e("s_cmp_eq_u32 s101, 3")
    k.e("s_cbranch_scc0 L_bw_ok")
    poll2(k, "L_bw", 252, 250, 83, 10)
    k.e("s_barrier")
    k.e("s_branch L_b_aprep")
    k.e("L_b_hasconv:")
    conv.conv_setup_hk(k, 82, 81)
    k.e("s_waitcnt vmcnt(12)")
    k.e("s_barrier")
    k.e(f"buffer_load_dwordx2 v[252:253], v250, s[{FSRD}:{FSRD+3}], s83 offen{SC1}")
    k.e("s_barrier")
    k.e("s_waitcnt vmcnt(0)")
    poll2(k, "L_bu", 252, 250, 83, 10, preloaded=True)
    k.e("L_b_conv:")
    conv.conv_setup_u(k, 82, 81, SC1)
    stamp_mid(k, 0)
    conv.conv_stage(k, 82, 81, 0)
    stamp_mid(k, 1)
    k.e(f"s_setprio {flag('PC', 1)}")
    conv.conv_main(k, "f")
    k.e("s_setprio 3")
    conv.conv_epilogue(k, 82, SC1)
    k.e(f"s_lshl_b32 s10, s82, {FSH}")
    k.e(f"s_add_u32 s83, s10, {FY}")
    k.e("s_waitcnt vmcnt(0)")
    publish(k, 83, 4)
    stamp_mid(k, 2)
    k.e("L_b_aprep:")
    k.e("s_setprio 3")
    b_aprep(k)
    k.e("s_add_u32 s10, s2, s101")
    k.e("s_cmp_eq_u32 s10, 0")
    k.e("s_cbranch_scc0 L_b_end")
    k.e("s_barrier")
    k.e(f"v_lshlrev_b32 v1, {FSH}, v0")
    k.e(f"s_mov_b32 s83, {FY}")
    k.e("L_ep_next:")
    poll2(k, "L_ep", 4, 1, 83, 10)
    k.e(f"s_add_u32 s83, s83, {64 << FSH}")
    k.e(f"s_cmp_lt_u32 s83, {FY + (640 << FSH)}")
    k.e("s_cbranch_scc1 L_ep_next")
    k.e(f"s_mov_b32 s83, {EP}")
    publish(k, 83, 4)
    k.e("L_b_end:")
    finish(k, 1)
    k.e("L_free:")
    k.e("s_barrier")
    k.e("s_sub_u32 s84, s2, 224")
    k.e("s_min_u32 s85, s3, 4")
    k.e("s_cmp_lt_u32 s3, 4")
    k.e("s_cbranch_scc1 L_free_stats")
    k.e("s_cmp_eq_u32 s3, 7")
    k.e("s_cbranch_scc1 L_free_stats")
    k.e("s_setprio 2")
    k.e("s_mul_i32 s85, s84, 3")
    k.e("s_add_u32 s85, s85, s101")
    k.e("s_add_u32 s85, s85, 224")
    aux.emit_prep(k, 85, 81, SC1)
    make_tag(k)
    k.e("s_lshl_b32 s55, s49, 5")
    k.e("s_add_u32 s55, s55, s48")
    k.e(f"s_lshl_b32 s55, s55, {FSH}")
    k.e("s_waitcnt vmcnt(0)")
    publish(k, 55, 4)
    k.e("s_branch L_free_b2")
    k.e("L_free_stats:")
    k.e("s_waitcnt lgkmcnt(0)")
    make_tag(k)
    k.e("L_free_stats2:")
    stats_rows(k, 85)
    aux.emit_stats(k, 52, SC1)
    k.e(f"s_lshl_b32 s52, s52, {FSH - 3}")
    k.e(f"s_add_u32 s52, s52, {FS}")
    k.e("s_waitcnt vmcnt(0)")
    publish(k, 52, 4)
    k.e("s_add_u32 s85, s85, 5")
    k.e("s_cmp_lt_u32 s85, 8")
    k.e("s_waitcnt vmcnt(0)")
    k.e("s_cbranch_scc1 L_free_stats2")
    k.e("s_cmp_lt_u32 s3, 4")
    k.e("s_cbranch_scc1 L_free_a")
    k.e("L_free_b2:")
    k.e("s_lshl_b32 s82, s84, 2")
    k.e("s_add_u32 s82, s82, s101")
    k.e("s_add_u32 s82, s82, 512")
    b_flagset(k)
    conv.conv_setup_hk(k, 82, 81)
    poll2(k, "L_fu", 252, 250, 83, 10, sleep=flag("FSL", 8))
    k.e("s_branch L_b_conv")
    k.e("L_free_a:")
    stamp_mid(k, 0)
    g2_offsets(k)
    k.e("s_lshr_b32 s57, s9, 1")
    k.e(f"s_lshl_b32 s57, s57, {6 + FSH}")
    k.e(f"s_add_u32 s57, s57, {FW}")
    k.e("v_min_u32 v8, 53, v0")
    k.e(f"v_lshlrev_b32 v8, {FSH}, v8")
    poll2(k, "L_fw", 10, 8, 57, 58, sleep=flag("FSL", 8))
    srd(k, 44, P_WS, NB_W, W2_OFF)
    k.e("v_lshlrev_b32 v1, 4, v0")
    k.e("v_add_u32 v2, 4096, v1")
    k.e("s_branch L_g2pre")
    k.e("L_a:")
    k.e("s_setprio 3")
    early_loads(k)
    k.e("s_setprio 0")
    g2_offsets(k)
    k.e("s_waitcnt lgkmcnt(0)")
    make_tag(k)
    early_compute(k)
    g1_phase(k)
    k.e("L_g2:")
    g2_phase(k)
    finish(k, 0)
    k.e("L_end:")
    k.e("s_endpgm")
    return k

if __name__ == "__main__":
    import sys
    hdr = open("recurrent_scan__ssm_conv_h3__dense_activation_relu__prompt.s.ref").read().split("; Override")[0]
    k = kernel()
    out = hdr + f"; @launch grid=(256,1,1) block=(512,1,1) lds={LDS_BYTES}\n"
    out += '.amdgcn_target "amdgcn-amd-amdhsa--gfx950"\n.text\n' + k.body() + '.section .rodata,"a"\n' + k.desc()
    open(sys.argv[1], "w").write(out)
```

```python
from common import *
import aux, conv, k1
from conv import interleave, CONV_LDS
from k1 import Vm, is_vmem, SLOT, WPART, NSTAGE, Rec
from fused import NAME, SC1, RB0, TOP, CNT, LDS_BYTES, XO, YO, SO, NSTEP, TAG, FSRD, SPIN_MAX, make_tag, xo_offsets
import fused2 as F2
from fused2 import EA, OOB, NH, NW, G_ACC, G_H, G_W, g2_offsets, w_loads, h_loads, w_lds_reads, g2_mfmas, g2_prefetch_a, g2_prefetch_b, g2_tail, stats_rows

HSH = flag("HSH", 7); YSH = flag("YSH", 6)
FA, EP, FB, FH = 0, 40960, 45056, 77824
FY = FH + (1024 << 7)
FL_BYTES = FY + (640 << 7)
UOK = 16
PREPB = flag('PREPB', 0)
HSC = '' if flag('HPLAIN') else SC1
AUXOK = 12

def lds_wait(k, lbl, vaddr, vtmp, off, s_tmp, sleep=2):
    k.e(f"{lbl}:")
    k.e(f"ds_read_b32 v{vtmp}, v{vaddr} offset:{off}")
    k.e("s_waitcnt lgkmcnt(0)")
    k.e(f"v_readfirstlane_b32 s{s_tmp}, v{vtmp}")
    k.e(f"s_cmp_lg_u32 s{s_tmp}, 0")
    k.e(f"s_cbranch_scc1 {lbl}_ok")
    k.e(f"s_sleep {sleep}")
    k.e(f"s_branch {lbl}")
    k.e(f"{lbl}_ok:")

def aux_watch_addr(k, va, s_cha, s_chb):
    k.e("s_lshr_b32 s10, s9, 1")
    k.e(f"s_add_u32 s10, s10, {FB >> 7}")
    k.e(f"v_lshl_add_u32 v{va}, v0, 2, s10")
    k.e("s_lshr_b32 s10, s8, 3")
    k.e("s_lshl_b32 s10, s10, 1")
    k.e("s_and_b32 s11, s8, 1")
    k.e("s_add_u32 s10, s10, s11")
    k.e("s_and_b32 s11, s8, 6")
    k.e("s_lshl_b32 s11, s11, 2")
    k.e("s_add_u32 s10, s10, s11")
    k.e(f"s_add_u32 s10, s10, {224 + (FB >> 7)}")
    k.e(f"v_mov_b32 v{va+1}, s10")
    k.e("v_cmp_gt_u32 vcc, 54, v0")
    k.e(f"v_cndmask_b32 v{va}, v{va+1}, v{va}, vcc")
    k.e(f"v_lshlrev_b32 v{va}, 7, v{va}")
    k.e(f"s_lshr_b32 s10, s{s_cha}, 6")
    k.e(f"s_lshr_b32 s11, s{s_chb}, 6")
    k.e(f"v_mov_b32 v{va+1}, s11")
    k.e(f"v_mov_b32 v{va+2}, s10")
    k.e("v_cmp_gt_u32 vcc, 32, v0")
    k.e(f"v_cndmask_b32 v{va+1}, v{va+1}, v{va+2}, vcc")
    k.e(f"v_and_b32 v{va+2}, 31, v0")
    k.e(f"v_mad_u32_u24 v{va+1}, v{va+2}, 10, v{va+1}")
    k.e(f"v_lshlrev_b32 v{va+1}, 7, v{va+1}")
def aux_watch_pre(vd, va):
    return [f"buffer_load_dwordx2 v[{vd}:{vd+1}], v{va+1}, s[{FSRD}:{FSRD+3}], 0 offen{SC1}",
            f"buffer_load_dwordx2 v[{vd+2}:{vd+3}], v{va}, s[{FSRD}:{FSRD+3}], 0 offen{SC1}"]
def aux_watch(k, lbl, vd, va):
    k.e("s_waitcnt vmcnt(1)")
    poll(k, lbl + "a", vd, va + 1, None, 10, 64, sleep=flag("ASL", 4), preloaded=True)
    k.e(f"v_mov_b32 v{vd}, {CNT}")
    k.e(f"v_mov_b32 v{vd+1}, 1")
    k.e(f"ds_write_b32 v{vd}, v{vd+1} offset:{UOK}")
    k.e("s_waitcnt vmcnt(0)")
    poll(k, lbl + "b", vd + 2, va, None, 10, 64, sleep=flag("ASL", 4), preloaded=True)
    k.e(f"ds_write_b32 v{vd}, v{vd+1} offset:{AUXOK}")

def publish(k, s_off, va, vo=None, mask=1, SC1=SC1):
    k.e(f"v_mov_b32 v{va}, s{TAG}")
    k.e(f"v_mov_b32 v{va+1}, s{TAG+1}")
    if vo is None:
        vo = va + 2
        k.e(f"v_mov_b32 v{vo}, 0")
    k.e(f"s_mov_b64 exec, {mask}")
    so = f"s{s_off}" if s_off is not None else "0"
    k.e(f"buffer_store_dwordx2 v[{va}:{va+1}], v{vo}, s[{FSRD}:{FSRD+3}], {so} offen{SC1}")
    k.e("s_mov_b64 exec, -1")

def poll(k, lbl, vd, voff, s_off, s_cnt, nlanes, sleep=4, preloaded=False):
    so = f"s{s_off}" if s_off is not None else "0"
    k.e(f"s_mov_b32 s{s_cnt}, 0")
    if nlanes < 64:
        k.e(f"s_bfm_b64 exec, {nlanes}, 0")
    if preloaded:
        k.e(f"s_branch {lbl}_chk")
    k.e(f"{lbl}:")
    k.e(f"buffer_load_dwordx2 v[{vd}:{vd+1}], v{voff}, s[{FSRD}:{FSRD+3}], {so} offen{SC1}")
    k.e("s_waitcnt vmcnt(0)")
    k.e(f"{lbl}_chk:")
    k.e(f"v_cmp_ne_u64 vcc, s[{TAG}:{TAG+1}], v[{vd}:{vd+1}]")
    k.e("s_and_b64 exec, exec, vcc")
    k.e(f"s_cbranch_scc0 {lbl}_ok")
    k.e(f"s_sleep {sleep}")
    k.e(f"s_add_u32 s{s_cnt}, s{s_cnt}, 1")
    k.e(f"s_cmp_lt_u32 s{s_cnt}, {SPIN_MAX:#x}")
    k.e(f"s_cbranch_scc1 {lbl}")
    k.e(f"{lbl}_ok:")
    k.e("s_mov_b64 exec, -1")

def prep_loads(k):
    srd(k, 40, P_K, NB_X)
    srd(k, 44, P_V, NB_X)
    srd(k, 48, P_SH, D * 8)
    k.e("s_mul_i32 s52, s2, 6554")
    k.e("s_lshr_b32 s52, s52, 16")
    k.e("s_mul_i32 s53, s52, 10")
    k.e("s_sub_u32 s53, s2, s53")
    k.e("s_lshl_b32 s54, s52, 2")
    k.e("s_add_u32 s54, s54, s101")
    k.e("s_mul_i32 s54, s54, 20480")
    k.e("s_lshl_b32 s55, s53, 7")
    k.e("s_add_u32 s54, s54, s55")
    k.e("v_lshrrev_b32 v1, 3, v0")
    k.e("v_mul_u32_u24 v2, 1280, v1")
    k.e("v_and_b32 v3, 7, v0")
    k.e("v_lshl_add_u32 v2, v3, 4, v2")
    k.e("v_add_u32 v2, s54, v2")
    k.e("v_subrev_u32 v4, 3840, v2")
    k.e("s_mul_i32 s56, s101, 5120")
    k.e(f"s_add_u32 s56, s56, {EA}")
    k.e("s_mov_b32 m0, s56")
    k.e("buffer_load_dwordx4 v4, s[40:43], 0 offen lds")
    k.e(f"v_add_u32 v5, {10240 - 3840 - 1024}, v2")
    k.e("buffer_load_dwordx4 v5, s[40:43], 0 offen offset:1024 lds")
    k.e(f"v_add_u32 v5, {20480 - 3840 - 2048}, v2")
    k.e(f"v_mov_b32 v6, {OOB}")
    k.e("v_cmp_gt_u32 vcc, 24, v0")
    k.e("v_cndmask_b32 v5, v6, v5, vcc")
    k.e("buffer_load_dwordx4 v5, s[40:43], 0 offen offset:2048 lds")
    k.e("s_add_u32 m0, s56, 3072")
    k.e(f"v_add_u32 v5, {10240 - 1024}, v2")
    k.e("buffer_load_dwordx4 v2, s[44:47], 0 offen lds")
    k.e("buffer_load_dwordx4 v5, s[44:47], 0 offen offset:1024 lds")
    k.e("v_and_b32 v7, 31, v0")
    k.e("v_lshlrev_b32 v8, 4, v7")
    k.e("s_lshl_b32 s55, s53, 9")
    k.e("buffer_load_dwordx4 v[212:215], v8, s[48:51], s55 offen")
    k.e("v_lshrrev_b32 v9, 5, v0")
    k.e("v_lshlrev_b32 v10, 10, v9")
    k.e("v_lshl_add_u32 v10, v7, 2, v10")
    k.e("v_add_u32 v209, s56, v10")
    k.e("v_sub_u32 v11, 1, v9")
    k.e("v_lshlrev_b32 v11, 4, v11")
    k.e("v_lshl_add_u32 v11, v7, 6, v11")
    k.e("v_add_u32 v210, s56, v11")
    k.e("v_lshrrev_b32 v11, 1, v3")
    k.e("v_sub_u32 v11, 3, v11")
    k.e("v_mul_u32_u24 v11, 5120, v11")
    k.e("v_lshl_add_u32 v11, v1, 5, v11")
    k.e("v_and_b32 v12, 1, v3")
    k.e("v_lshl_add_u32 v11, v12, 4, v11")
    k.e("s_lshl_b32 s60, s101, 9")
    k.e(f"s_add_u32 s60, s60, {EA}")
    k.e("v_add_u32 v211, s60, v11")
    k.e(f"v_mul_u32_u24 v207, {RS}, v1")
    k.e("v_lshl_add_u32 v207, v3, 4, v207")
    k.e(f"v_add_u32 v208, {8*RS}, v207")
    k.e("s_lshl_b32 s63, s53, 2")
    k.e("s_add_u32 s63, s63, s101")
    k.e(f"s_mul_i32 s63, s63, {16*RS}")
    k.e("s_lshl_b32 s60, s52, 7")
    k.e("s_sub_u32 s60, 3968, s60")
    k.e("s_add_u32 s63, s63, s60")
    srd(k, 64, P_WS, NB_T, UR_OFF)
    k.e("s_lshl_b32 s62, s2, 7")

def prep_compute(k):
    KR, VR, TP, KU, VU, KV, OUT = (112, 124, 132, 140, 80, 162, 168) if PREPB else (112, 124, 132, 140, 216, 180, 184)
    k.e("s_waitcnt vmcnt(0)")
    for j in range(11):
        k.e(f"ds_read_b32 v{KR+j}, v209 offset:{128*j}")
    for j in range(8):
        k.e(f"ds_read_b32 v{VR+j}, v209 offset:{3072 + 128*j}")
    for c in range(2):
        unpack(k, TP + 0 + c, TP + 2 + c, 212 + 2*c)
        unpack(k, TP + 4 + c, TP + 6 + c, 213 + 2*c)
    k.e("s_waitcnt lgkmcnt(8)")
    for j in range(11): unpack(k, KU + 2*j, KU + 2*j + 1, KR + j)
    k.e("s_waitcnt lgkmcnt(0)")
    for j in range(8): unpack(k, VU + 2*j, VU + 2*j + 1, VR + j)
    for r in range(8):
        d = KV + 2*(r & 1)
        for j in (3, 2, 1, 0):
            w = KU + 2*(r + 3 - j); t = TP + 2*j
            if PREPB:
                for c in range(2):
                    k.e(f"{'v_mul_f32' if j == 3 else 'v_fmac_f32'} v{d+c}, v{w+c}, v{t+c}")
            elif j == 3: k.e(f"v_pk_mul_f32 v[{d}:{d+1}], v[{w}:{w+1}], v[{t}:{t+1}]")
            else: k.e(f"v_pk_fma_f32 v[{d}:{d+1}], v[{w}:{w+1}], v[{t}:{t+1}], v[{d}:{d+1}]")
        if PREPB:
            for c in range(2): k.e(f"v_mul_f32 v{d+c}, v{d+c}, v{VU+2*r+c}")
        else:
            k.e(f"v_pk_mul_f32 v[{d}:{d+1}], v[{d}:{d+1}], v[{VU+2*r}:{VU+2*r+1}]")
        if r & 1:
            for c in range(2):
                k.e(f"v_cvt_pk_bf16_f32 v{OUT+4*c+3-r//2}, v{KV+2+c}, v{KV+c}")
    for c in range(2):
        k.e(f"ds_write_b128 v210, v[{OUT+4*c}:{OUT+4*c+3}] offset:{32*c}")
def prep_reads():
    return [f"ds_read_b128 v[{192+4*i}:{195+4*i}], v211 offset:{256*i}" for i in range(2)]
def prep_stores():
    return [f"buffer_store_dwordx4 v[{192+4*i}:{195+4*i}], v{207+i}, s[64:67], s63 offen{SC1}" for i in range(2)]

def prepb_addr(k):
    srd(k, 40, P_K, NB_X)
    srd(k, 48, P_V, NB_X)
    k.e("s_mul_i32 s10, s2, 6554")
    k.e("s_lshr_b32 s10, s10, 16")
    k.e("s_mul_i32 s11, s10, 10")
    k.e("s_sub_u32 s11, s2, s11")
    k.e("s_lshl_b32 s54, s10, 2")
    k.e("s_add_u32 s54, s54, s101")
    k.e("s_mul_i32 s54, s54, 20480")
    k.e("s_lshl_b32 s55, s11, 7")
    k.e("s_add_u32 s54, s54, s55")
    k.e("v_lshrrev_b32 v1, 3, v0")
    k.e("v_mul_u32_u24 v2, 1280, v1")
    k.e("v_and_b32 v3, 7, v0")
    k.e("v_lshl_add_u32 v2, v3, 4, v2")
    k.e("v_add_u32 v200, s54, v2")
    k.e("v_subrev_u32 v201, 3840, v200")
    k.e(f"v_add_u32 v202, {10240 - 3840 - 1024}, v200")
    k.e(f"v_add_u32 v203, {20480 - 3840 - 2048}, v200")
    k.e(f"v_mov_b32 v6, {OOB}")
    k.e("v_cmp_gt_u32 vcc, 24, v0")
    k.e("v_cndmask_b32 v203, v6, v203, vcc")
    k.e(f"v_add_u32 v204, {10240 - 1024}, v200")
    k.e("s_mul_i32 s56, s101, 5120")
    k.e(f"s_add_u32 s56, s56, {EA}")
    k.e("v_and_b32 v7, 31, v0")
    k.e("s_lshl_b32 s55, s11, 9")
    k.e("v_lshl_add_u32 v205, v7, 4, s55")
    k.e("v_lshrrev_b32 v9, 5, v0")
    k.e("v_lshlrev_b32 v10, 10, v9")
    k.e("v_lshl_add_u32 v10, v7, 2, v10")
    k.e("v_add_u32 v209, s56, v10")
    k.e("v_sub_u32 v11, 1, v9")
    k.e("v_lshlrev_b32 v11, 4, v11")
    k.e("v_lshl_add_u32 v11, v7, 6, v11")
    k.e("v_add_u32 v210, s56, v11")
    k.e("v_lshrrev_b32 v11, 1, v3")
    k.e("v_sub_u32 v11, 3, v11")
    k.e("v_mul_u32_u24 v11, 5120, v11")
    k.e("v_lshl_add_u32 v11, v1, 5, v11")
    k.e("v_and_b32 v12, 1, v3")
    k.e("v_lshl_add_u32 v11, v12, 4, v11")
    k.e("s_lshl_b32 s55, s101, 9")
    k.e(f"s_add_u32 s55, s55, {EA}")
    k.e("v_add_u32 v211, s55, v11")
    k.e(f"v_mul_u32_u24 v232, {RS}, v1")
    k.e("v_lshl_add_u32 v232, v3, 4, v232")
    k.e(f"v_add_u32 v233, {8*RS}, v232")
    k.e("s_lshl_b32 s63, s11, 2")
    k.e("s_add_u32 s63, s63, s101")
    k.e(f"s_mul_i32 s63, s63, {16*RS}")
    k.e("s_lshl_b32 s55, s10, 7")
    k.e("s_sub_u32 s55, 3968, s55")
    k.e("s_add_u32 s63, s63, s55")
    if flag("XNOST"):
        k.e(f"s_mov_b32 s63, {OOB}")
        k.e(f"s_mov_b32 s89, {OOB}")
    srd(k, 52, P_SH, D * 8)
def prepb_loads():
    return ["s_mov_b32 m0, s56",
            "buffer_load_dwordx4 v201, s[40:43], 0 offen lds",
            "buffer_load_dwordx4 v202, s[40:43], 0 offen offset:1024 lds",
            "buffer_load_dwordx4 v203, s[40:43], 0 offen offset:2048 lds",
            "s_add_u32 m0, s56, 3072",
            "buffer_load_dwordx4 v200, s[48:51], 0 offen lds",
            "buffer_load_dwordx4 v204, s[48:51], 0 offen offset:1024 lds",
            "buffer_load_dwordx4 v[236:239], v205, s[52:55], 0 offen"]
def prepb_compute():
    r = Rec(); prep_compute(r)
    L = [x.replace("v212", "v236").replace("v213", "v237").replace("v214", "v238").replace("v215", "v239") for x in r.lines if not x.startswith("s_waitcnt vmcnt")]
    r = Rec(); srd(r, 40, P_WS, NB_T, UR_OFF)
    return r.lines + L + ["s_waitcnt lgkmcnt(0)"]
def prepb_out():
    return ([f"ds_read_b128 v[{100+4*i}:{103+4*i}], v211 offset:{256*i}" for i in range(2)] + ["s_waitcnt lgkmcnt(0)"] +
            [f"buffer_store_dwordx4 v[{100+4*i}:{103+4*i}], v{232+i}, s[40:43], s63 offen{SC1}" for i in range(2)])

def rel_addr(k):
    srd(k, 84, P_W2, NB_W)
    srd(k, 44, P_WS, NB_W, W2_OFF)
    k.e("s_lshr_b32 s57, s2, 2")
    k.e("s_and_b32 s58, s2, 3")
    k.e("s_mul_i32 s59, s57, 40960")
    k.e("s_mul_i32 s60, s58, 320")
    k.e("s_add_u32 s59, s59, s60")
    k.e("s_lshl_b32 s60, s101, 6")
    k.e("s_lshl_b32 s61, s101, 10")
    for i in range(3):
        k.e("v_add_u32 v9, s60, v0")
        if i: k.e(f"v_add_u32 v9, {256*i}, v9")
        k.e("v_mul_u32_u24 v10, 52429, v9")
        k.e("v_lshrrev_b32 v10, 20, v10")
        k.e("v_mul_u32_u24 v10, 960, v10")
        k.e(f"v_lshl_add_u32 v{206+i}, v9, 4, v10")
    k.e("s_cmp_ge_u32 s101, 2")
    k.e(f"s_cselect_b32 s60, {OOB}, 0")
    k.e("v_add_u32 v208, s60, v208")
    k.e(f"s_add_u32 s62, s61, {EA + 20480 + 8192}")
    k.e("s_cmp_ge_u32 s101, 2")
    k.e(f"s_cselect_b32 s62, {EA + 30720}, s62")
    k.e("s_lshr_b32 s10, s101, 1")
    k.e("s_and_b32 s11, s101, 1")
    k.e("s_mul_i32 s60, s10, 5")
    k.e("s_mul_i32 s54, s11, 3")
    k.e("s_add_u32 s60, s60, s54")
    k.e("s_lshl_b32 s60, s60, 5")
    k.e(f"s_add_u32 s60, s60, {EA + 20480}")
    k.e("v_lshrrev_b32 v11, 2, v0")
    k.e("v_mul_u32_u24 v11, 320, v11")
    k.e("v_and_b32 v12, 3, v0")
    k.e("v_lshl_add_u32 v11, v12, 3, v11")
    k.e("v_add_u32 v214, s60, v11")
    k.e("s_lshl_b32 s60, s58, 1")
    k.e("s_add_u32 s60, s60, s10")
    k.e(f"s_mul_i32 s89, s60, {NT}")
    k.e("s_add_u32 s89, s89, s57")
    k.e("s_mul_i32 s89, s89, 5120")
    k.e("s_lshl_b32 s54, s54, 10")
    k.e("s_add_u32 s89, s89, s54")
    k.e("s_cmp_ge_u32 s2, 216")
    k.e(f"s_cselect_b32 s89, {OOB}, s89")
    k.e("v_lshlrev_b32 v215, 4, v0")
    k.e("s_cmp_eq_u32 s11, 1")
    k.e(f"s_cselect_b32 s54, {OOB}, 0")
    k.e("v_add_u32 v216, s54, v215")
def aux_loads():
    return [f"s_add_u32 m0, s61, {EA + 20480}",
            "buffer_load_dwordx4 v206, s[84:87], s59 offen lds",
            f"s_add_u32 m0, s61, {EA + 20480 + 4096}",
            "buffer_load_dwordx4 v207, s[84:87], s59 offen lds",
            "s_mov_b32 m0, s62",
            "buffer_load_dwordx4 v208, s[84:87], s59 offen lds"]
def aux_reads():
    L = []
    for i in range(3):
        L.append(f"ds_read_b64_tr_b16 v[{188+4*i}:{189+4*i}], v214 offset:{32*i}")
        L.append(f"ds_read_b64_tr_b16 v[{190+4*i}:{191+4*i}], v214 offset:{32*i + 5120}")
    return L
def aux_stores():
    L = ["s_waitcnt lgkmcnt(0)"]
    L += [f"buffer_store_dwordx4 v[{188+4*i}:{191+4*i}], v{216 if i == 2 else 215}, s[44:47], s89 offen offset:{1024*i}{SC1}" for i in range(3)]
    return L

def w_flag_addr(k):
    k.e(f"v_lshlrev_b32 v9, {HSH}, v0")

def g2_phase(k):
    srd(k, 40, P_WS, 32 * NT * 4096, H_OFF)
    k.e("s_lshl_b32 s52, s101, 10")
    k.e("v_add_u32 v3, s52, v1")
    for m in range(1, 4):
        k.e(f"v_xor_b32 v{3+m}, {1024*m}, v3")
    k.e("s_mul_i32 s57, s101, 7")
    k.e("s_min_u32 s57, s57, 20")
    k.e("s_lshl_b32 s58, s8, 5")
    k.e("s_add_u32 s57, s57, s58")
    k.e(f"s_lshl_b32 s57, s57, {HSH}")
    k.e(f"s_add_u32 s57, s57, {FH}")
    r = Rec(); g2_prefetch_b(r)
    EPOL = flag("EPOL", 8)
    left = 15
    for x in r.lines:
        if is_vmem(x):
            if left == EPOL:
                k.e("s_bfm_b64 exec, 7, 0")
                k.e(f"buffer_load_dwordx2 v[10:11], v9, s[{FSRD}:{FSRD+3}], s57 offen{SC1}")
                k.e("s_mov_b64 exec, -1")
            left -= 1
        k.e(x)
    k.e("v_add_u32 v7, s56, v1")
    if EPOL: k.e(f"s_waitcnt vmcnt({EPOL})")
    poll(k, "L_hpoll", 10, 9, 57, 58, 7, sleep=flag("HSLP", 2), preloaded=bool(EPOL))
    if not flag("STG1"): stamp_mid(k, 2)
    k.e(f"v_mov_b32 v{G_W + 20*NW}, {CNT}")
    vm = Vm(); hneed = {}; wneed = {}
    for s in range(NH - 1):
        for x in h_loads(s):
            k.e(x)
            if is_vmem(x): hneed[s] = vm.op()
    for s in range(NSTEP):
        idx = max(hneed[s], wneed.get(s, -1))
        lg = " lgkmcnt(0)" if s >= 11 else ""
        k.e(f"s_waitcnt vmcnt({vm.wait(idx)}){lg}")
        fill = []
        if s + NH - 1 < NSTEP: fill += [(x, "h", s + NH - 1) for x in h_loads(s + NH - 1)]
        r = s + NW - 1
        if s >= 1 and r <= 10: fill += [(x, "w", r) for x in w_loads(r)]
        if s >= 1 and 11 <= r <= 13: fill += [(x, "l", r) for x in w_lds_reads(r)]
        m = g2_mfmas(s); fi = 0
        if flag("G2NOMM"): m = m[:2]
        if s == flag("YAT", 6):
            fill = [(f"ds_write_b32 v{G_W + 20*NW}, v{G_W + 20*NW} offset:20", "l", 0)] + fill
        for i, x in enumerate(m):
            k.e(x)
            if i % 2 == 0 or flag("DENSE"):
                while fi < len(fill):
                    y, t, st = fill[fi]; fi += 1
                    k.e(y)
                    if is_vmem(y):
                        (hneed if t == "h" else wneed)[st] = vm.op()
                    if not y.startswith("s_"): break
        for y, t, st in fill[fi:]:
            k.e(y)
            if is_vmem(y): (hneed if t == "h" else wneed)[st] = vm.op()
    if not flag("STG1") and not flag("STG2"): stamp_mid(k, 3)
    g2_tail(k)

def g1_phase(k):
    srd(k, 48, P_WS, 32 * NT * 4096, H_OFF)
    srd(k, 44, P_WS, NB_W, W2_OFF)
    k.e("s_and_b32 s52, s3, 1")
    k.e("s_lshr_b32 s53, s3, 1")
    BA, AA = 10, 14
    k.e("v_lshlrev_b32 v1, 4, v0")
    k.e("v_add_u32 v2, 4096, v1")
    k.e("v_and_b32 v18, 15, v0")
    k.e("v_lshrrev_b32 v19, 4, v0")
    k.e("v_lshrrev_b32 v20, 1, v18")
    k.e("v_xor_b32 v20, v20, v19")
    k.e("v_lshlrev_b32 v20, 4, v20")
    k.e("v_lshl_add_u32 v20, v18, 7, v20")
    k.e("s_lshl_b32 s58, s52, 13")
    k.e("s_lshl_b32 s59, s53, 12")
    k.e("s_add_u32 s58, s58, s59")
    k.e(f"v_add_u32 v{BA}, s58, v20")
    k.e(f"v_xor_b32 v{BA+1}, 64, v{BA}")
    k.e(f"v_xor_b32 v{BA+2}, 0x1000, v{BA}")
    k.e(f"v_xor_b32 v{BA+3}, 0x1040, v{BA}")
    k.e("v_lshrrev_b32 v20, 2, v18")
    k.e("v_and_b32 v21, 3, v18")
    k.e("v_lshl_add_u32 v22, v19, 3, v20")
    k.e("v_lshlrev_b32 v22, 8, v22")
    k.e("v_lshl_add_u32 v22, v21, 3, v22")
    k.e(f"v_add_u32 v22, {WPART}, v22")
    k.e("v_and_b32 v23, 1, v19")
    k.e("v_lshl_add_u32 v23, v23, 2, v20")
    k.e("s_lshl_b32 s58, s53, 2")
    k.e("s_lshl_b32 s59, s52, 1")
    k.e("s_add_u32 s58, s58, s59")
    k.e("v_xor_b32 v23, s58, v23")
    k.e(f"v_lshl_add_u32 v{AA}, v23, 5, v22")
    for fb in range(1, 4):
        k.e(f"v_xor_b32 v{AA+fb}, {32*fb}, v{AA}")
    ONE = 20
    for i in range(4): k.e(f"v_mov_b32 v{ONE+i}, 0x3f803f80")
    ACC, AR, AC, FR = 24, 88, 96, 112
    for r, x in ((3, 0), (4, 2), (5, 1)):
        k.e(f"s_xor_b32 s58, s3, {x}")
        k.e("s_mul_i32 s58, s58, 3072")
        k.e(f"s_add_u32 s58, s58, {TOP}")
        k.e(f"v_add_u32 v{r}, s58, v1")
    k.e("s_lshl_b32 s58, s7, 1")
    k.e("s_add_u32 s57, s58, s53")
    k.e("s_lshl_b32 s59, s6, 1")
    k.e("s_add_u32 s59, s59, s52")
    k.e("s_lshl_b32 s56, s59, 5")
    k.e("s_add_u32 s56, s56, s57")
    k.e(f"s_lshl_b32 s56, s56, {HSH}")
    k.e(f"s_add_u32 s56, s56, {FH}")
    k.e(f"s_mul_i32 s59, s59, {NT}")
    k.e("s_lshl_b32 s58, s57, 1")
    k.e("s_add_u32 s58, s58, s59")
    k.e("s_lshl_b32 s58, s58, 12")
    k.e("s_lshl_b32 s59, s52, 12")
    k.e("s_add_u32 s60, s58, s59")
    k.e("s_xor_b32 s59, s59, 0x1000")
    k.e("s_add_u32 s61, s58, s59")
    k.e("s_lshl_b32 s59, s53, 11")
    k.e("v_add_u32 v6, s59, v1")
    k.e("v_xor_b32 v7, 0x800, v6")
    k.e(f"v_mov_b32 v176, {CNT}")
    k.e("v_mov_b32 v177, 1")
    def reads(stage, ks, buf):
        so = (stage % 2) * SLOT
        L = []
        fa = FR + 32 * buf; fb_ = fa + 16
        for i in range(4):
            L.append(f"ds_read_b128 v[{fb_+4*i}:{fb_+4*i+3}], v{BA + 2*(i>>1) + ks} offset:{so + 2048*(i&1)}")
            L.append(f"ds_read_b64_tr_b16 v[{fa+4*i}:{fa+4*i+1}], v{AA+i} offset:{so + 8192*ks}")
            L.append(f"ds_read_b64_tr_b16 v[{fa+4*i+2}:{fa+4*i+3}], v{AA+i} offset:{so + 8192*ks + 1024}")
        return L
    def mfmas(buf, first=False, sums_first=False):
        fa = FR + 32 * buf; fb_ = fa + 16
        L = []; Sm = []
        def mm(T, d, a, b):
            c = "0" if first else f"v[{d}:{d+3}]"
            T.append(f"v_mfma_f32_16x16x32_bf16 v[{d}:{d+3}], v[{a}:{a+3}], v[{b}:{b+3}], {c}")
        for f in range(4):
            for m in range(4):
                mm(L, ACC + 16*f + 4*m, fa + 4*f, fb_ + 4*m)
        for i in range(2):
            mm(Sm, AR + 4*i, ONE, fb_ + 4*i)
            mm(Sm, AC + 4*i, fa + 4*i, ONE)
        return Sm + L if sums_first else L + Sm
    if not PREPB: prep_compute(k)
    UPUB = 99 if PREPB else flag("UPUB", 2)
    for s in range(NSTAGE):
        k.c(f"---- stage {s}")
        k.e("s_waitcnt vmcnt(0) lgkmcnt(0)" if s == UPUB else "s_waitcnt lgkmcnt(0)")
        if s < 9: k.e("s_barrier")
        if s == UPUB:
            k.e("s_cmp_lg_u32 s3, 0")
            k.e("s_cbranch_scc1 L_g1_nopub")
            k.e("s_setprio 2")
            publish(k, 62, 180)
            k.e("s_setprio 0")
            k.e("L_g1_nopub:")
        if s == 0 and not flag("STG2"): stamp_mid(k, 0)
        if flag("STG1") and s == flag("STA", 4): stamp_mid(k, 1)
        if flag("STG1") and s == flag("STB", 9): stamp_mid(k, 2)
        if s == NSTAGE - 2:
            k.e("s_setprio 2")

        if s == 0 and PREPB:
            for x in reads(s, 0, 0): k.e(x)
        elif s == 0:
            for x in prep_reads() + reads(s, 0, 0): k.e(x)
            k.e("s_waitcnt lgkmcnt(12)")
            k.e("s_setprio 2")
            for x in prep_stores(): k.e(x)
            k.e("s_setprio 0")
        else:
            for x in interleave(mfmas(1), reads(s, 0, 0)): k.e(x)
        k.e("s_waitcnt lgkmcnt(0)")
        nxt = []
        if (s + 1) % 2 == 0 and s + 1 < NSTAGE:
            nxt = [f"v_xor_b32 v{r}, 0x10000, v{r}" for r in list(range(BA, BA+4)) + list(range(AA, AA+4))]
        for x in interleave(mfmas(0, first=(s == 0)), reads(s, 1, 1) + nxt): k.e(x)
    k.e("s_waitcnt lgkmcnt(0)")
    fin = mfmas(1, sums_first=True)
    exch = [f"v_mov_b32 v{AR+1}, v{AR+4}",
            f"ds_write_b64 v3, v[{AR}:{AR+1}]",
            f"ds_write_b128 v3, v[{AC}:{AC+3}] offset:1024",
            f"ds_write_b128 v3, v[{AC+4}:{AC+7}] offset:2048",
            "s_mov_b64 exec, 1\nds_add_u32 v176, v177 offset:8\ns_mov_b64 exec, -1"]
    for x in fin[:7]: k.e(x)
    for x in interleave(fin[7:], exch): k.e(x)
    k.e("L_a_sync:")
    k.e("ds_read_b32 v178, v176 offset:8")
    k.e(f"ds_read_b64 v[{AR+2}:{AR+3}], v4")
    k.e(f"ds_read_b128 v[{AC+8}:{AC+11}], v5 offset:1024")
    k.e(f"ds_read_b128 v[{AC+12}:{AC+15}], v5 offset:2048")
    k.e("s_waitcnt lgkmcnt(0)")
    k.e("v_readfirstlane_b32 s58, v178")
    k.e("s_cmp_lt_u32 s58, 4")
    k.e("s_cbranch_scc1 L_a_sync")
    if flag("STG1"): stamp_mid(k, 3)
    if flag("STG2"): stamp_mid(k, 0)
    k.e("s_cmp_ge_u32 s57, 27")
    k.e("s_cbranch_scc1 L_g2w")
    NM = FR
    for m in range(4):
        k.e(f"v_mul_f32 v{AR+m}, {-1.0/D!r}, v{AR+m}")
    k.e(f"v_cvt_pk_bf16_f32 v{AR+4}, v{AR}, v{AR+1}")
    k.e(f"v_cvt_pk_bf16_f32 v{AR+5}, v{AR+2}, v{AR+3}")
    for m in range(4):
        src = AR + 4 + (m >> 1)
        for h in range(2):
            if m & 1: k.e(f"v_and_b32 v{NM+2*m+h}, 0xffff0000, v{src}")
            else:     k.e(f"v_lshlrev_b32 v{NM+2*m+h}, 16, v{src}")
    OUT = FR + 8
    n = 0
    for p in range(2):
        for m in range(4):
            o = OUT + 4 * (n % 4); n += 1
            for ff in range(2):
                f = 2*p + ff
                a = ACC + 16*f + 4*m
                if flag("SFMA", 1):
                    for r in range(4):
                        k.e(f"v_fmac_f32 v{a+r}, v{AC+4*f+r}, v{NM+2*m}")
                else:
                  for h in range(2):
                    k.e(f"v_pk_fma_f32 v[{a+2*h}:{a+2*h+1}], v[{AC+4*f+2*h}:{AC+4*f+2*h+1}], v[{NM+2*m}:{NM+2*m+1}], v[{a+2*h}:{a+2*h+1}]")
                for h in range(2):
                    k.e(f"v_cvt_pk_bf16_f32 v{o+2*ff+h}, v{a+2*h}, v{a+2*h+1}")
            if p == 1 and m == 2: k.e("ds_read_b32 v178, v176 offset:12")
            for i in range(4):
                k.e(f"v_pk_max_i16 v{o+i}, v{o+i}, 0")
            k.e(f"buffer_store_dwordx4 v[{o}:{o+3}], v{6+(m>>1)}, s[48:51], s{60+p} offen offset:{1024*(m&1)}{HSC}")
    if flag("STG2") == 1: stamp_mid(k, 3)
    pre = g2_prefetch_a()
    NPRE = flag("NPRE", 10)
    n1 = 0; cnt = 0
    while cnt < NPRE:
        cnt += is_vmem(pre[n1]); n1 += 1
    k.e("s_waitcnt lgkmcnt(0)")
    k.e("v_readfirstlane_b32 s58, v178")
    k.e("s_cmp_eq_u32 s58, 1")
    k.e("s_cbranch_scc0 L_a_slow")
    for x in pre[:n1]: k.e(x)
    k.e(f"s_waitcnt vmcnt({cnt})")
    publish(k, 56, 12, SC1=HSC)
    if not flag("STG1"): stamp_mid(k, 1)
    k.e("s_branch L_g2b")
    k.e("L_a_slow:")
    k.e("s_waitcnt vmcnt(0)")
    publish(k, 56, 12, SC1=HSC)
    k.e("L_g2w:")
    k.e("s_setprio 0")
    k.e(f"v_mov_b32 v10, {CNT}")
    lds_wait(k, "L_aw2", 10, 11, AUXOK, 58, sleep=4)
    k.e("s_setprio 0")
    for x in pre[:n1]: k.e(x)
    k.e("L_g2b:")
    for _ in range(flag("WDELAY")): k.e("s_sleep 32")
    k.e("s_setprio 0")
    for x in pre[n1:]: k.e(x)

def b_aprep(k):
    srd(k, 40, P_Q, NB_X)
    srd(k, 44, P_WS, 16384, ST_OFF)
    srd(k, 68, P_WS, NB_T, YT_OFF)
    xo_offsets(k, 8, 1, 2)
    for i in range(3):
        k.e(f"s_add_u32 m0, s81, {XO + 1024*i}")
        k.e(f"buffer_load_dwordx4 v{8+i}, s[40:43], s54 offen lds")
    k.e("v_and_b32 v1, 15, v0")
    k.e("v_lshlrev_b32 v3, 3, v1")
    k.e("s_lshl_b32 s57, s53, 7")
    k.e("v_lshrrev_b32 v4, 3, v0")
    k.e(f"v_mul_u32_u24 v4, {RS}, v4")
    k.e("v_and_b32 v2, 7, v0")
    k.e("v_lshl_add_u32 v4, v2, 4, v4")
    k.e("s_mul_i32 s58, s9, 10")
    k.e("s_add_u32 s58, s58, s101")
    k.e(f"s_mul_i32 s58, s58, {8*RS}")
    k.e("s_lshl_b32 s59, s8, 7")
    k.e("s_add_u32 s58, s58, s59")
    k.e(f"v_mov_b32 v2, {CNT}")
    k.e("s_cmp_eq_u32 s101, 0")
    k.e("s_cbranch_scc1 L_b_poller")
    k.e("s_setprio 0")
    lds_wait(k, "L_b_lwait", 2, 6, 4, 60, sleep=4)
    k.e("s_setprio 3")
    k.e("s_branch L_b_go")
    k.e("L_b_poller:")
    k.e("s_setprio 0")
    lds_wait(k, "L_b_aw", 2, 6, 20, 60, sleep=4)
    k.e("s_setprio 3")
    k.e(f"s_mul_i32 s59, s9, {80 << YSH}")
    k.e(f"s_add_u32 s59, s59, {FY}")
    k.e(f"s_add_u32 s61, s59, {64 << YSH}")
    k.e(f"v_lshlrev_b32 v5, {YSH}, v0")
    k.e("s_bfm_b64 exec, 16, 0")
    k.e(f"buffer_load_dwordx2 v[14:15], v5, s[{FSRD}:{FSRD+3}], s61 offen{SC1}")
    k.e("s_mov_b64 exec, -1")
    poll(k, "L_by", 12, 5, 59, 60, 64, sleep=flag("YSLP", 8))
    poll(k, "L_by2", 14, 5, 61, 60, 16, sleep=flag("YSLP", 8), preloaded=True)
    k.e("v_mov_b32 v6, 1")
    k.e("ds_write_b32 v2, v6 offset:4")
    k.e("L_b_go:")
    k.e("s_waitcnt vmcnt(0)")
    if not flag("FST") and not flag("BST"): stamp_mid(k, 3)
    k.e(f"buffer_load_dwordx2 v[12:13], v3, s[44:47], s57 offen{SC1}")
    for i in range(3):
        if i == 2:
            k.e("s_cmp_ge_u32 s101, 2")
            k.e("s_cbranch_scc1 L_b_noy")
        k.e(f"s_add_u32 m0, s81, {YO + 1024*i}")
        k.e(f"buffer_load_dwordx4 v4, s[68:71], s58 offen{SC1} lds")
        if i < 2: k.e(f"s_add_u32 s58, s58, {4*8*RS}")
    k.e("L_b_noy:")
    k.e("v_mul_u32_u24 v5, 160, v1")
    k.e("v_lshrrev_b32 v6, 4, v0")
    k.e("v_lshl_add_u32 v5, v6, 3, v5")
    k.e("v_add_u32 v5, s81, v5")
    k.e("v_lshrrev_b32 v6, 5, v0")
    k.e(f"v_mul_u32_u24 v6, {CONV_LDS}, v6")
    k.e("v_bfe_u32 v7, v0, 2, 3")
    k.e("v_lshl_add_u32 v6, v7, 7, v6")
    k.e("v_and_b32 v7, 3, v0")
    k.e("v_lshl_add_u32 v6, v7, 3, v6")
    k.e("s_lshl_b32 s59, s101, 5")
    k.e(f"s_add_u32 s59, s59, {RB0}")
    k.e("v_add_u32 v6, s59, v6")
    k.e("v_lshlrev_b32 v7, 4, v0")
    k.e("v_add_u32 v7, s81, v7")
    k.e("v_mov_b32 v3, 1")
    XR, YR = 16, 26
    for d in range(5):
        k.e(f"ds_read_b64 v[{XR+2*d}:{XR+2*d+1}], v5 offset:{XO + 32*d}")
    XF, SF = 40, 60
    k.e("s_waitcnt lgkmcnt(0)")
    for d in range(5):
        for h in range(2):
            x = XF + 4*d + 2*h
            unpack(k, x, x+1, XR + 2*d + h)
        k.e(f"ds_write_b128 v7, v[{XF+4*d}:{XF+4*d+3}] offset:{SO + 5120 + 1024*d}")
    k.e("s_waitcnt vmcnt(0)")
    k.e("s_mov_b64 exec, 1")
    k.e("ds_add_u32 v2, v3")
    k.e("s_mov_b64 exec, -1")
    k.e("v_mul_f32 v38, 0xbfb8aa3b, v13")
    k.e("v_mul_f32 v39, 0xbfb8aa3b, v13")
    k.e(f"ds_write_b64 v7, v[38:39] offset:{SO + 10240}")
    k.e("v_mul_f32 v14, v13, v13")
    k.e("v_mul_f32 v15, v13, v13")
    k.e("v_sub_f32 v12, 0, v12")
    k.e("v_mov_b32 v13, v12")
    k.e("v_mul_f32 v12, v12, v14")
    for i in range(20):
        k.e(f"v_fma_f32 v{80+i}, v{XF+i}, v14, v12")
    k.e("L_b_cnt:")
    k.e("ds_read_b32 v3, v2")
    for d in range(5):
        k.e(f"ds_read_b64_tr_b16 v[{YR+2*d}:{YR+2*d+1}], v6 offset:{YO + 2*(d&1)*CONV_LDS + (d>>1)*1024}")
    k.e("s_waitcnt lgkmcnt(0)")
    k.e("v_readfirstlane_b32 s59, v3")
    k.e("s_cmp_lt_u32 s59, 4")
    k.e("s_cbranch_scc1 L_b_cnt")
    for d in range(5):
        for h in range(2):
            s = SF + 4*d + 2*h
            unpack(k, s, s+1, YR + 2*d + h)
            k.e(f"v_mul_f32 v{s}, v{s}, v{80+4*d+2*h}")
            k.e(f"v_mul_f32 v{s+1}, v{s+1}, v{81+4*d+2*h}")
        k.e(f"ds_write_b128 v7, v[{SF+4*d}:{SF+4*d+3}] offset:{SO + 1024*d}")
    k.e("s_waitcnt lgkmcnt(0)")

def w_warm(k):
    M81 = flag("MAP81")
    k.e("s_setprio 1")
    k.e("s_lshr_b32 s10, s9, 1")
    k.e(f"s_lshl_b32 s10, s10, {3 if M81 else 4}")
    k.e(f"s_and_b32 s11, s8, {3 if M81 else 7}")
    k.e("s_lshl_b32 s11, s11, 1")
    k.e("s_add_u32 s10, s10, s11")
    k.e("s_and_b32 s11, s9, 1")
    k.e("s_add_u32 s10, s10, s11")
    k.e(f"s_mul_i32 s10, s10, {69120 if M81 else 34560}")
    k.e("v_lshlrev_b32 v30, 7, v0")
    n = 9 if M81 else 5
    for i in range(n):
        if i == n - 1: k.e(f"s_bfm_b64 exec, {28 if M81 else 14}, 0")
        k.e(f"buffer_load_dword v{32+i}, v30, s[44:47], s10 offen{SC1}")
        k.e("s_add_u32 s10, s10, 8192")
    k.e("s_mov_b64 exec, -1")

def kernel():
    AL = flag("AL", 2); AP = flag("AP", 2)
    k = Kern(NAME)
    stamp_begin(k)
    k.e("s_cmp_ge_u32 s2, 256")
    k.e("s_cbranch_scc1 L_end")
    load_ptrs(k)
    k.e("v_lshrrev_b32 v1, 6, v0")
    k.e("v_readfirstlane_b32 s3, v1")
    k.e("v_and_b32 v0, 63, v0")
    k.e("s_and_b32 s4, s2, 7")
    k.e("s_lshr_b32 s5, s2, 3")
    k.e("s_lshr_b32 s10, s4, 1")
    k.e("s_and_b32 s11, s4, 1")
    k.e("s_lshl_b32 s6, s10, 2")
    k.e("s_and_b32 s7, s5, 3")
    k.e("s_add_u32 s6, s6, s7")
    k.e("s_lshl_b32 s9, s11, 2")
    k.e("s_add_u32 s9, s9, s7")
    k.e("s_lshr_b32 s8, s5, 2")
    k.e("s_mul_i32 s7, s11, 7")
    k.e("s_add_u32 s7, s7, s8")
    k.e("s_lshl_b32 s10, s10, 3")
    k.e("s_add_u32 s8, s8, s10")
    if flag("MAP81"):
        k.e("s_lshl_b32 s6, s4, 1")
        k.e("s_and_b32 s7, s5, 1")
        k.e("s_add_u32 s6, s6, s7")
        k.e("s_lshr_b32 s7, s5, 1")
        k.e("s_lshl_b32 s8, s4, 2")
        k.e("s_lshr_b32 s9, s5, 3")
        k.e("s_add_u32 s8, s8, s9")
        k.e("s_and_b32 s9, s5, 7")
    k.e("s_and_b32 s101, s3, 3")
    for i in range(4): k.e(f"v_mov_b32 v{4+i}, 0")
    k.e(f"v_mov_b32 v1, {CNT}")
    k.e("ds_write_b128 v1, v[4:7]")
    k.e("ds_write_b128 v1, v[4:7] offset:16")
    k.e(f"s_mul_i32 s81, s101, {CONV_LDS}")
    k.e(f"s_add_u32 s81, s81, {RB0}")
    k.e("s_waitcnt lgkmcnt(0)")
    srd(k, FSRD, P_WS, FL_BYTES, FL_OFF)
    k.e(f"s_load_dwordx2 s[{TAG}:{TAG+1}], s[{FSRD}:{FSRD+1}], {EP}")
    k.e("s_cmp_ge_u32 s2, 224")
    k.e("s_cbranch_scc1 L_free")
    k.e("s_cmp_lt_u32 s3, 4")
    k.e("s_cbranch_scc1 L_a")
    k.e("s_setprio 1")
    k1.loader_setup(k, 6, 7, 101)
    vm = Vm(); last = {}
    def put(x):
        k.e(x)
        return vm.op() if is_vmem(x) else None
    def dma(st):
        for x in k1.dma(st):
            r = put(x)
            if r is not None: last[st] = r
        if st == AP and PREPB:
            for x in ([] if flag("XNOLD") else prepb_loads()): put(x)
        if st == AL:
            for x in ([] if flag("XNOLD") or flag("XNORL") else aux_loads()): put(x)
    dma(0)
    rel_addr(k)
    if PREPB: prepb_addr(k)
    dma(1)
    DA = flag("DA", 2)
    for st in range(2, DA): dma(st)
    k.e("s_lshl_b32 s82, s2, 1")
    k.e("s_add_u32 s82, s82, s101")
    k.e("s_add_u32 s10, s2, 448")
    k.e("s_cmp_lt_u32 s2, 64")
    k.e("s_cselect_b32 s10, s10, 1000")
    k.e("s_cmp_eq_u32 s101, 2")
    k.e("s_cselect_b32 s82, s10, s82")
    k.e("s_cmp_eq_u32 s101, 3")
    k.e("s_cselect_b32 s82, 1000, s82")
    k.e("s_waitcnt lgkmcnt(0)")
    make_tag(k)
    st_idx = None
    k.e("s_lshl_b32 s83, s2, 7")
    k.e(f"s_add_u32 s83, s83, {FB}")
    k.e("s_cmp_eq_u32 s101, 2")
    k.e(f"s_cselect_b32 s83, s83, {OOB}")
    STS = AL + 1
    PUBS = STS + flag("PUBD", 2)
    assert PUBS <= 6
    PCS = flag("PCS", 0)
    UST = AP + 2 + PCS; UPB = UST + flag("PUBD", 2); ust_idx = None
    if PREPB:
        assert UPB <= 6
        pc = prepb_compute()
        if flag("XNOCP"): pc = pc[:6]
        half = len(pc) // 2 if PCS else len(pc)
        k.e("s_lshl_b32 s88, s2, 7")
        k.e("s_cmp_eq_u32 s101, 1")
        k.e(f"s_cselect_b32 s88, s88, {OOB}")
    for s in range(7):
        w = vm.wait(last[s])
        if s == PUBS: w = min(w, vm.wait(st_idx))
        if PREPB and s == UPB: w = min(w, vm.wait(ust_idx))
        k.e(f"s_waitcnt vmcnt({w})")
        k.e("s_barrier")
        if s == PUBS:
            publish(k, 83, 4); vm.op()
            if flag("BST"): stamp_mid(k, 1)
        if PREPB and s == UPB:
            publish(k, 88, 4); vm.op()
            if flag("BST"): stamp_mid(k, 0)
        if PREPB and s == UST:
            for x in prepb_out():
                r = put(x)
                if r is not None: ust_idx = r
        if s == STS:
            for x in aux_reads(): k.e(x)
            for x in aux_stores():
                r = put(x)
                if r is not None: st_idx = r
        if s == 0:
            for st in range(DA, 4): dma(st)
        elif s + 3 < NSTAGE:
            dma(s + 3)
        if PREPB and s == AP + 1:
            for x in pc[:half]: k.e(x)
        if PREPB and PCS and s == AP + 2:
            for x in pc[half:]: k.e(x)
    w7 = vm.wait(last[7]); w9 = vm.wait(last[9])
    k.e("s_cmp_lt_u32 s82, 640")
    k.e("s_cbranch_scc1 L_b_hasconv")
    k.e("s_lshl_b32 s62, s2, 1")
    k.e("s_add_u32 s63, s2, 448")
    k.e("s_cmp_lt_u32 s2, 64")
    k.e("s_cselect_b32 s63, s63, s62")
    aux_watch_addr(k, 224, 62, 63)
    k.e("s_cmp_eq_u32 s101, 3")
    k.e(f"s_cselect_b32 s62, 0, {OOB}")
    k.e("v_add_u32 v224, s62, v224")
    k.e("v_add_u32 v225, s62, v225")
    pre = aux_watch_pre(228, 224)
    k.e(pre[0])
    k.e(f"s_waitcnt vmcnt({w7 + 1})")
    k.e("s_barrier")
    k.e(f"s_waitcnt vmcnt({w9 + 1})")
    k.e("s_barrier")
    k.e("s_cmp_eq_u32 s101, 3")
    k.e("s_cbranch_scc0 L_b_aprep")
    k.e("s_setprio 3")
    k.e(pre[1])
    aux_watch(k, "L_bw", 228, 224)
    if flag("BST"): stamp_mid(k, 2)
    if flag("WARM", 1): w_warm(k)
    k.e("s_cmp_lg_u32 s2, 0")
    k.e("s_cbranch_scc1 L_b_aprep")
    k.e("s_setprio 0")
    k.e("v_lshlrev_b32 v1, 7, v0")
    k.e(f"s_mov_b32 s83, {FB}")
    k.e("L_ep_next:")
    poll(k, "L_ep", 4, 1, 83, 10, 64, sleep=16)
    k.e("s_add_u32 s83, s83, 8192")
    k.e(f"s_cmp_lt_u32 s83, {FB + 32768}")
    k.e("s_cbranch_scc1 L_ep_next")
    k.e(f"s_mov_b32 s83, {EP}")
    publish(k, 83, 4)
    k.e("s_branch L_b_aprep")
    k.e("L_b_hasconv:")
    conv.conv_setup_hk(k, 82, 81)
    k.e(f"s_waitcnt vmcnt({w7 + 12})")
    k.e("s_barrier")
    k.e(f"s_waitcnt vmcnt({w9 + 12})")
    k.e("s_barrier")
    if flag("BST"): stamp_mid(k, 3)
    k.e("L_b_conv:")
    k.e(f"s_setprio {flag('PST', 3)}")
    k.e(f"v_mov_b32 v250, {CNT}")
    k.e("s_waitcnt vmcnt(0)")
    def hook():
        k.e(f"ds_read_b32 v251, v250 offset:{UOK}")
        k.e("s_waitcnt lgkmcnt(0)")
        k.e("v_readfirstlane_b32 s80, v251")
        k.e("s_cmp_eq_u32 s80, 0")
        k.e("s_cbranch_scc1 L_b_late1")
        conv.conv_setup_u(k, 82, 81, SC1)
        k.e("L_b_late1:")
    conv.conv_stage(k, 82, 81, 0, hook)
    if not flag("BST"): stamp_mid(k, 0)
    k.e("s_cmp_eq_u32 s80, 0")
    k.e("s_cbranch_scc0 L_b_run")
    lds_wait(k, "L_b_uw", 250, 251, UOK, 80)
    conv.conv_setup_u(k, 82, 81, SC1)
    k.e("s_waitcnt vmcnt(0)")
    k.e("L_b_run:")
    if not flag("BST"): stamp_mid(k, 1)
    k.e(f"s_setprio {flag('PC', 1)}")
    if not flag("NOCM"): conv.conv_main(k, "f")
    k.e("s_setprio 3")
    conv.conv_epilogue(k, 82, SC1)
    k.e(f"s_lshl_b32 s10, s82, {YSH}")
    k.e(f"s_add_u32 s83, s10, {FY}")
    k.e("s_waitcnt vmcnt(0)")
    publish(k, 83, 4)
    if not flag("FST") and not flag("BST"): stamp_mid(k, 2)
    k.e("L_b_aprep:")
    if flag("NOAPREP"): k.e("s_branch L_b_end")
    k.e("s_setprio 3")
    b_aprep(k)
    k.e("L_b_end:")
    finish(k, 1)
    k.e("L_free:")
    for _ in range(flag("XFREE")): k.e("s_sleep 64")
    k.e("s_sub_u32 s84, s2, 224")
    k.e("s_mov_b32 s85, s3")
    k.e("s_cmp_eq_u32 s3, 7")
    k.e("s_cbranch_scc1 L_free_sync")
    k.e("s_cmp_lt_u32 s3, 4")
    k.e("s_cbranch_scc1 L_free_stats")
    k.e("s_setprio 2")
    k.e("s_mul_i32 s85, s84, 3")
    k.e("s_add_u32 s85, s85, s101")
    k.e("s_add_u32 s85, s85, 224")
    aux.emit_prep(k, 85, 81, SC1)
    make_tag(k)
    k.e("s_lshl_b32 s85, s85, 7")
    k.e("s_waitcnt vmcnt(0)")
    publish(k, 85, 4)
    k.e("s_barrier")
    k.e("s_branch L_free_b")
    k.e("L_free_stats:")
    stats_rows(k, 85)
    aux.emit_stats(k, 52, SC1)
    k.e("s_add_u32 s85, s85, 4")
    k.e("s_cmp_lt_u32 s85, 8")
    k.e("s_cbranch_scc1 L_free_stats")
    k.e("L_free_sync:")
    k.e("s_waitcnt vmcnt(0) lgkmcnt(0)")
    k.e("s_barrier")
    make_tag(k)
    k.e("s_cmp_lt_u32 s3, 4")
    k.e("s_cbranch_scc1 L_free_a")
    k.e("L_free_b:")
    k.e("s_setprio 1")
    k.e("s_lshl_b32 s82, s84, 2")
    k.e("s_add_u32 s82, s82, s101")
    k.e("s_add_u32 s82, s82, 512")
    conv.conv_setup_hk(k, 82, 81)
    k.e("s_branch L_b_conv")
    k.e("L_free_a:")
    stamp_mid(k, 0)
    g2_offsets(k)
    w_flag_addr(k)
    srd(k, 44, P_WS, NB_W, W2_OFF)
    k.e("v_lshlrev_b32 v1, 4, v0")
    k.e("v_add_u32 v2, 4096, v1")
    k.e("s_cmp_lg_u32 s3, 0")
    k.e("s_cbranch_scc1 L_g2w")
    k.e("s_lshl_b32 s83, s2, 7")
    k.e(f"s_add_u32 s83, s83, {FB}")
    publish(k, 83, 4)
    k.e("s_lshl_b32 s62, s84, 2")
    k.e("s_add_u32 s62, s62, 512")
    aux_watch_addr(k, 16, 62, 62)
    for x in aux_watch_pre(20, 16): k.e(x)
    aux_watch(k, "L_fw", 20, 16)
    if flag("WARM", 1): w_warm(k)
    k.e("s_branch L_g2w")
    k.e("L_a:")
    if not PREPB:
        k.e("s_setprio 3")
        prep_loads(k)
        k.e("s_setprio 0")
    g2_offsets(k)
    w_flag_addr(k)
    k.e("s_waitcnt lgkmcnt(0)")
    make_tag(k)
    g1_phase(k)
    k.e("L_g2:")
    g2_phase(k)
    finish(k, 0)
    k.e("L_end:")
    k.e("s_endpgm")
    return k

if __name__ == "__main__":
    import sys
    hdr = open("recurrent_scan__ssm_conv_h3__dense_activation_relu__prompt.s.ref").read().split("; Override")[0]
    k = kernel()
    out = hdr + f"; @launch grid=(256,1,1) block=(512,1,1) lds={LDS_BYTES}\n"
    out += '.amdgcn_target "amdgcn-amd-amdhsa--gfx950"\n.text\n' + k.body() + '.section .rodata,"a"\n' + k.desc()
    open(sys.argv[1], "w").write(out)
```

```python
from common import *
import aux, conv, k1
from conv import interleave, CONV_LDS
from k1 import Vm, is_vmem, SLOT, WPART, NSTAGE, Rec
from fused import NAME, SC1, RB0, TOP, CNT, LDS_BYTES, XO, YO, SO, NSTEP, TAG, FSRD, SPIN_MAX, make_tag, xo_offsets
import fused2 as F2
from fused2 import EA, OOB, NH, NW, G_ACC, G_H, G_W, g2_offsets, w_loads, h_loads, w_lds_reads, g2_mfmas, g2_prefetch_a, g2_prefetch_b, g2_tail, stats_rows

HSH = flag("HSH", 7); YSH = flag("YSH", 6)
FA, EP, FB, FH = 0, 40960, 45056, 77824
FY = FH + (1024 << 7)
FL_BYTES = FY + (640 << 7)
UOK = 16
PREPB = flag('PREPB', 0)
HSC = '' if flag('HPLAIN') else SC1
AUXOK = 12

def lds_wait(k, lbl, vaddr, vtmp, off, s_tmp, sleep=2):
    k.e(f"{lbl}:")
    k.e(f"ds_read_b32 v{vtmp}, v{vaddr} offset:{off}")
    k.e("s_waitcnt lgkmcnt(0)")
    k.e(f"v_readfirstlane_b32 s{s_tmp}, v{vtmp}")
    k.e(f"s_cmp_lg_u32 s{s_tmp}, 0")
    k.e(f"s_cbranch_scc1 {lbl}_ok")
    k.e(f"s_sleep {sleep}")
    k.e(f"s_branch {lbl}")
    k.e(f"{lbl}_ok:")

def aux_watch_addr(k, va, s_cha, s_chb):
    k.e("s_lshr_b32 s10, s9, 1")
    k.e(f"s_add_u32 s10, s10, {FB >> 7}")
    k.e(f"v_lshl_add_u32 v{va}, v0, 2, s10")
    k.e("s_lshr_b32 s10, s8, 3")
    k.e("s_lshl_b32 s10, s10, 1")
    k.e("s_and_b32 s11, s8, 1")
    k.e("s_add_u32 s10, s10, s11")
    k.e("s_and_b32 s11, s8, 6")
    k.e("s_lshl_b32 s11, s11, 2")
    k.e("s_add_u32 s10, s10, s11")
    k.e(f"s_add_u32 s10, s10, {224 + (FB >> 7)}")
    k.e(f"v_mov_b32 v{va+1}, s10")
    k.e("v_cmp_gt_u32 vcc, 54, v0")
    k.e(f"v_cndmask_b32 v{va}, v{va+1}, v{va}, vcc")
    k.e(f"v_lshlrev_b32 v{va}, 7, v{va}")
    k.e(f"s_lshr_b32 s10, s{s_cha}, 6")
    k.e(f"s_lshr_b32 s11, s{s_chb}, 6")
    k.e(f"v_mov_b32 v{va+1}, s11")
    k.e(f"v_mov_b32 v{va+2}, s10")
    k.e("v_cmp_gt_u32 vcc, 32, v0")
    k.e(f"v_cndmask_b32 v{va+1}, v{va+1}, v{va+2}, vcc")
    k.e(f"v_and_b32 v{va+2}, 31, v0")
    k.e(f"v_mad_u32_u24 v{va+1}, v{va+2}, 10, v{va+1}")
    k.e(f"v_lshlrev_b32 v{va+1}, 7, v{va+1}")
def aux_watch_pre(vd, va):
    return [f"buffer_load_dwordx2 v[{vd}:{vd+1}], v{va+1}, s[{FSRD}:{FSRD+3}], 0 offen{SC1}",
            f"buffer_load_dwordx2 v[{vd+2}:{vd+3}], v{va}, s[{FSRD}:{FSRD+3}], 0 offen{SC1}"]
def aux_watch(k, lbl, vd, va):
    k.e("s_waitcnt vmcnt(1)")
    poll(k, lbl + "a", vd, va + 1, None, 10, 64, sleep=flag("ASL", 4), preloaded=True)
    k.e(f"v_mov_b32 v{vd}, {CNT}")
    k.e(f"v_mov_b32 v{vd+1}, 1")
    k.e(f"ds_write_b32 v{vd}, v{vd+1} offset:{UOK}")
    k.e("s_waitcnt vmcnt(0)")
    poll(k, lbl + "b", vd + 2, va, None, 10, 64, sleep=flag("ASL", 4), preloaded=True)
    k.e(f"ds_write_b32 v{vd}, v{vd+1} offset:{AUXOK}")

def publish(k, s_off, va, vo=None, mask=1, SC1=SC1):
    k.e(f"v_mov_b32 v{va}, s{TAG}")
    k.e(f"v_mov_b32 v{va+1}, s{TAG+1}")
    if vo is None:
        vo = va + 2
        k.e(f"v_mov_b32 v{vo}, 0")
    k.e(f"s_mov_b64 exec, {mask}")
    so = f"s{s_off}" if s_off is not None else "0"
    k.e(f"buffer_store_dwordx2 v[{va}:{va+1}], v{vo}, s[{FSRD}:{FSRD+3}], {so} offen{SC1}")
    k.e("s_mov_b64 exec, -1")

def poll(k, lbl, vd, voff, s_off, s_cnt, nlanes, sleep=4, preloaded=False):
    so = f"s{s_off}" if s_off is not None else "0"
    k.e(f"s_mov_b32 s{s_cnt}, 0")
    if nlanes < 64:
        k.e(f"s_bfm_b64 exec, {nlanes}, 0")
    if preloaded:
        k.e(f"s_branch {lbl}_chk")
    k.e(f"{lbl}:")
    k.e(f"buffer_load_dwordx2 v[{vd}:{vd+1}], v{voff}, s[{FSRD}:{FSRD+3}], {so} offen{SC1}")
    k.e("s_waitcnt vmcnt(0)")
    k.e(f"{lbl}_chk:")
    k.e(f"v_cmp_ne_u64 vcc, s[{TAG}:{TAG+1}], v[{vd}:{vd+1}]")
    k.e("s_and_b64 exec, exec, vcc")
    k.e(f"s_cbranch_scc0 {lbl}_ok")
    k.e(f"s_sleep {sleep}")
    k.e(f"s_add_u32 s{s_cnt}, s{s_cnt}, 1")
    k.e(f"s_cmp_lt_u32 s{s_cnt}, {SPIN_MAX:#x}")
    k.e(f"s_cbranch_scc1 {lbl}")
    k.e(f"{lbl}_ok:")
    k.e("s_mov_b64 exec, -1")

def prep_loads(k):
    srd(k, 40, P_K, NB_X)
    srd(k, 44, P_V, NB_X)
    srd(k, 48, P_SH, D * 8)
    k.e("s_mul_i32 s52, s2, 6554")
    k.e("s_lshr_b32 s52, s52, 16")
    k.e("s_mul_i32 s53, s52, 10")
    k.e("s_sub_u32 s53, s2, s53")
    k.e("s_lshl_b32 s54, s52, 2")
    k.e("s_add_u32 s54, s54, s101")
    k.e("s_mul_i32 s54, s54, 20480")
    k.e("s_lshl_b32 s55, s53, 7")
    k.e("s_add_u32 s54, s54, s55")
    k.e("v_lshrrev_b32 v1, 3, v0")
    k.e("v_mul_u32_u24 v2, 1280, v1")
    k.e("v_and_b32 v3, 7, v0")
    k.e("v_lshl_add_u32 v2, v3, 4, v2")
    k.e("v_add_u32 v2, s54, v2")
    k.e("v_subrev_u32 v4, 3840, v2")
    k.e("s_mul_i32 s56, s101, 5120")
    k.e(f"s_add_u32 s56, s56, {EA}")
    k.e("s_mov_b32 m0, s56")
    k.e("buffer_load_dwordx4 v4, s[40:43], 0 offen lds")
    k.e(f"v_add_u32 v5, {10240 - 3840 - 1024}, v2")
    k.e("buffer_load_dwordx4 v5, s[40:43], 0 offen offset:1024 lds")
    k.e(f"v_add_u32 v5, {20480 - 3840 - 2048}, v2")
    k.e(f"v_mov_b32 v6, {OOB}")
    k.e("v_cmp_gt_u32 vcc, 24, v0")
    k.e("v_cndmask_b32 v5, v6, v5, vcc")
    k.e("buffer_load_dwordx4 v5, s[40:43], 0 offen offset:2048 lds")
    k.e("s_add_u32 m0, s56, 3072")
    k.e(f"v_add_u32 v5, {10240 - 1024}, v2")
    k.e("buffer_load_dwordx4 v2, s[44:47], 0 offen lds")
    k.e("buffer_load_dwordx4 v5, s[44:47], 0 offen offset:1024 lds")
    k.e("v_and_b32 v7, 31, v0")
    k.e("v_lshlrev_b32 v8, 4, v7")
    k.e("s_lshl_b32 s55, s53, 9")
    k.e("buffer_load_dwordx4 v[212:215], v8, s[48:51], s55 offen")
    k.e("v_lshrrev_b32 v9, 5, v0")
    k.e("v_lshlrev_b32 v10, 10, v9")
    k.e("v_lshl_add_u32 v10, v7, 2, v10")
    k.e("v_add_u32 v209, s56, v10")
    k.e("v_sub_u32 v11, 1, v9")
    k.e("v_lshlrev_b32 v11, 4, v11")
    k.e("v_lshl_add_u32 v11, v7, 6, v11")
    k.e("v_add_u32 v210, s56, v11")
    k.e("v_lshrrev_b32 v11, 1, v3")
    k.e("v_sub_u32 v11, 3, v11")
    k.e("v_mul_u32_u24 v11, 5120, v11")
    k.e("v_lshl_add_u32 v11, v1, 5, v11")
    k.e("v_and_b32 v12, 1, v3")
    k.e("v_lshl_add_u32 v11, v12, 4, v11")
    k.e("s_lshl_b32 s60, s101, 9")
    k.e(f"s_add_u32 s60, s60, {EA}")
    k.e("v_add_u32 v211, s60, v11")
    k.e(f"v_mul_u32_u24 v207, {RS}, v1")
    k.e("v_lshl_add_u32 v207, v3, 4, v207")
    k.e(f"v_add_u32 v208, {8*RS}, v207")
    k.e("s_lshl_b32 s63, s53, 2")
    k.e("s_add_u32 s63, s63, s101")
    k.e(f"s_mul_i32 s63, s63, {16*RS}")
    k.e("s_lshl_b32 s60, s52, 7")
    k.e("s_sub_u32 s60, 3968, s60")
    k.e("s_add_u32 s63, s63, s60")
    srd(k, 64, P_WS, NB_T, UR_OFF)
    k.e("s_lshl_b32 s62, s2, 7")

def prep_compute(k):
    KR, VR, TP, KU, VU, KV, OUT = (112, 124, 132, 140, 80, 162, 168) if PREPB else (112, 124, 132, 140, 216, 180, 184)
    k.e("s_waitcnt vmcnt(0)")
    for j in range(11):
        k.e(f"ds_read_b32 v{KR+j}, v209 offset:{128*j}")
    for j in range(8):
        k.e(f"ds_read_b32 v{VR+j}, v209 offset:{3072 + 128*j}")
    for c in range(2):
        unpack(k, TP + 0 + c, TP + 2 + c, 212 + 2*c)
        unpack(k, TP + 4 + c, TP + 6 + c, 213 + 2*c)
    k.e("s_waitcnt lgkmcnt(8)")
    for j in range(11): unpack(k, KU + 2*j, KU + 2*j + 1, KR + j)
    k.e("s_waitcnt lgkmcnt(0)")
    for j in range(8): unpack(k, VU + 2*j, VU + 2*j + 1, VR + j)
    for r in range(8):
        d = KV + 2*(r & 1)
        for j in (3, 2, 1, 0):
            w = KU + 2*(r + 3 - j); t = TP + 2*j
            if PREPB:
                for c in range(2):
                    k.e(f"{'v_mul_f32' if j == 3 else 'v_fmac_f32'} v{d+c}, v{w+c}, v{t+c}")
            elif j == 3: k.e(f"v_pk_mul_f32 v[{d}:{d+1}], v[{w}:{w+1}], v[{t}:{t+1}]")
            else: k.e(f"v_pk_fma_f32 v[{d}:{d+1}], v[{w}:{w+1}], v[{t}:{t+1}], v[{d}:{d+1}]")
        if PREPB:
            for c in range(2): k.e(f"v_mul_f32 v{d+c}, v{d+c}, v{VU+2*r+c}")
        else:
            k.e(f"v_pk_mul_f32 v[{d}:{d+1}], v[{d}:{d+1}], v[{VU+2*r}:{VU+2*r+1}]")
        if r & 1:
            for c in range(2):
                k.e(f"v_cvt_pk_bf16_f32 v{OUT+4*c+3-r//2}, v{KV+2+c}, v{KV+c}")
    for c in range(2):
        k.e(f"ds_write_b128 v210, v[{OUT+4*c}:{OUT+4*c+3}] offset:{32*c}")
def prep_reads():
    return [f"ds_read_b128 v[{192+4*i}:{195+4*i}], v211 offset:{256*i}" for i in range(2)]
def prep_stores():
    return [f"buffer_store_dwordx4 v[{192+4*i}:{195+4*i}], v{207+i}, s[64:67], s63 offen{SC1}" for i in range(2)]

def prepb_addr(k):
    srd(k, 40, P_K, NB_X)
    srd(k, 48, P_V, NB_X)
    k.e("s_mul_i32 s10, s2, 6554")
    k.e("s_lshr_b32 s10, s10, 16")
    k.e("s_mul_i32 s11, s10, 10")
    k.e("s_sub_u32 s11, s2, s11")
    k.e("s_lshl_b32 s54, s10, 2")
    k.e("s_add_u32 s54, s54, s101")
    k.e("s_mul_i32 s54, s54, 20480")
    k.e("s_lshl_b32 s55, s11, 7")
    k.e("s_add_u32 s54, s54, s55")
    k.e("v_lshrrev_b32 v1, 3, v0")
    k.e("v_mul_u32_u24 v2, 1280, v1")
    k.e("v_and_b32 v3, 7, v0")
    k.e("v_lshl_add_u32 v2, v3, 4, v2")
    k.e("v_add_u32 v200, s54, v2")
    k.e("v_subrev_u32 v201, 3840, v200")
    k.e(f"v_add_u32 v202, {10240 - 3840 - 1024}, v200")
    k.e(f"v_add_u32 v203, {20480 - 3840 - 2048}, v200")
    k.e(f"v_mov_b32 v6, {OOB}")
    k.e("v_cmp_gt_u32 vcc, 24, v0")
    k.e("v_cndmask_b32 v203, v6, v203, vcc")
    k.e(f"v_add_u32 v204, {10240 - 1024}, v200")
    k.e("s_mul_i32 s56, s101, 5120")
    k.e(f"s_add_u32 s56, s56, {EA}")
    k.e("v_and_b32 v7, 31, v0")
    k.e("s_lshl_b32 s55, s11, 9")
    k.e("v_lshl_add_u32 v205, v7, 4, s55")
    k.e("v_lshrrev_b32 v9, 5, v0")
    k.e("v_lshlrev_b32 v10, 10, v9")
    k.e("v_lshl_add_u32 v10, v7, 2, v10")
    k.e("v_add_u32 v209, s56, v10")
    k.e("v_sub_u32 v11, 1, v9")
    k.e("v_lshlrev_b32 v11, 4, v11")
    k.e("v_lshl_add_u32 v11, v7, 6, v11")
    k.e("v_add_u32 v210, s56, v11")
    k.e("v_lshrrev_b32 v11, 1, v3")
    k.e("v_sub_u32 v11, 3, v11")
    k.e("v_mul_u32_u24 v11, 5120, v11")
    k.e("v_lshl_add_u32 v11, v1, 5, v11")
    k.e("v_and_b32 v12, 1, v3")
    k.e("v_lshl_add_u32 v11, v12, 4, v11")
    k.e("s_lshl_b32 s55, s101, 9")
    k.e(f"s_add_u32 s55, s55, {EA}")
    k.e("v_add_u32 v211, s55, v11")
    k.e(f"v_mul_u32_u24 v232, {RS}, v1")
    k.e("v_lshl_add_u32 v232, v3, 4, v232")
    k.e(f"v_add_u32 v233, {8*RS}, v232")
    k.e("s_lshl_b32 s63, s11, 2")
    k.e("s_add_u32 s63, s63, s101")
    k.e(f"s_mul_i32 s63, s63, {16*RS}")
    k.e("s_lshl_b32 s55, s10, 7")
    k.e("s_sub_u32 s55, 3968, s55")
    k.e("s_add_u32 s63, s63, s55")
    if flag("XNOST"):
        k.e(f"s_mov_b32 s63, {OOB}")
        k.e(f"s_mov_b32 s89, {OOB}")
    srd(k, 52, P_SH, D * 8)
def prepb_loads():
    return ["s_mov_b32 m0, s56",
            "buffer_load_dwordx4 v201, s[40:43], 0 offen lds",
            "buffer_load_dwordx4 v202, s[40:43], 0 offen offset:1024 lds",
            "buffer_load_dwordx4 v203, s[40:43], 0 offen offset:2048 lds",
            "s_add_u32 m0, s56, 3072",
            "buffer_load_dwordx4 v200, s[48:51], 0 offen lds",
            "buffer_load_dwordx4 v204, s[48:51], 0 offen offset:1024 lds",
            "buffer_load_dwordx4 v[236:239], v205, s[52:55], 0 offen"]
def prepb_compute():
    r = Rec(); prep_compute(r)
    L = [x.replace("v212", "v236").replace("v213", "v237").replace("v214", "v238").replace("v215", "v239") for x in r.lines if not x.startswith("s_waitcnt vmcnt")]
    r = Rec(); srd(r, 40, P_WS, NB_T, UR_OFF)
    return r.lines + L + ["s_waitcnt lgkmcnt(0)"]
def prepb_out():
    return ([f"ds_read_b128 v[{100+4*i}:{103+4*i}], v211 offset:{256*i}" for i in range(2)] + ["s_waitcnt lgkmcnt(0)"] +
            [f"buffer_store_dwordx4 v[{100+4*i}:{103+4*i}], v{232+i}, s[40:43], s63 offen{SC1}" for i in range(2)])

def rel_addr(k):
    srd(k, 84, P_W2, NB_W)
    srd(k, 44, P_WS, NB_W, W2_OFF)
    k.e("s_lshr_b32 s57, s2, 2")
    k.e("s_and_b32 s58, s2, 3")
    k.e("s_mul_i32 s59, s57, 40960")
    k.e("s_mul_i32 s60, s58, 320")
    k.e("s_add_u32 s59, s59, s60")
    k.e("s_lshl_b32 s60, s101, 6")
    k.e("s_lshl_b32 s61, s101, 10")
    for i in range(3):
        k.e("v_add_u32 v9, s60, v0")
        if i: k.e(f"v_add_u32 v9, {256*i}, v9")
        k.e("v_mul_u32_u24 v10, 52429, v9")
        k.e("v_lshrrev_b32 v10, 20, v10")
        k.e("v_mul_u32_u24 v10, 960, v10")
        k.e(f"v_lshl_add_u32 v{206+i}, v9, 4, v10")
    k.e("s_cmp_ge_u32 s101, 2")
    k.e(f"s_cselect_b32 s60, {OOB}, 0")
    k.e("v_add_u32 v208, s60, v208")
    k.e(f"s_add_u32 s62, s61, {EA + 20480 + 8192}")
    k.e("s_cmp_ge_u32 s101, 2")
    k.e(f"s_cselect_b32 s62, {EA + 30720}, s62")
    k.e("s_lshr_b32 s10, s101, 1")
    k.e("s_and_b32 s11, s101, 1")
    k.e("s_mul_i32 s60, s10, 5")
    k.e("s_mul_i32 s54, s11, 3")
    k.e("s_add_u32 s60, s60, s54")
    k.e("s_lshl_b32 s60, s60, 5")
    k.e(f"s_add_u32 s60, s60, {EA + 20480}")
    k.e("v_lshrrev_b32 v11, 2, v0")
    k.e("v_mul_u32_u24 v11, 320, v11")
    k.e("v_and_b32 v12, 3, v0")
    k.e("v_lshl_add_u32 v11, v12, 3, v11")
    k.e("v_add_u32 v214, s60, v11")
    k.e("s_lshl_b32 s60, s58, 1")
    k.e("s_add_u32 s60, s60, s10")
    k.e(f"s_mul_i32 s89, s60, {NT}")
    k.e("s_add_u32 s89, s89, s57")
    k.e("s_mul_i32 s89, s89, 5120")
    k.e("s_lshl_b32 s54, s54, 10")
    k.e("s_add_u32 s89, s89, s54")
    k.e("s_cmp_ge_u32 s2, 216")
    k.e(f"s_cselect_b32 s89, {OOB}, s89")
    k.e("v_lshlrev_b32 v215, 4, v0")
    k.e("s_cmp_eq_u32 s11, 1")
    k.e(f"s_cselect_b32 s54, {OOB}, 0")
    k.e("v_add_u32 v216, s54, v215")
def aux_loads():
    return [f"s_add_u32 m0, s61, {EA + 20480}",
            "buffer_load_dwordx4 v206, s[84:87], s59 offen lds",
            f"s_add_u32 m0, s61, {EA + 20480 + 4096}",
            "buffer_load_dwordx4 v207, s[84:87], s59 offen lds",
            "s_mov_b32 m0, s62",
            "buffer_load_dwordx4 v208, s[84:87], s59 offen lds"]
def aux_reads():
    L = []
    for i in range(3):
        L.append(f"ds_read_b64_tr_b16 v[{188+4*i}:{189+4*i}], v214 offset:{32*i}")
        L.append(f"ds_read_b64_tr_b16 v[{190+4*i}:{191+4*i}], v214 offset:{32*i + 5120}")
    return L
def aux_stores():
    L = ["s_waitcnt lgkmcnt(0)"]
    L += [f"buffer_store_dwordx4 v[{188+4*i}:{191+4*i}], v{216 if i == 2 else 215}, s[44:47], s89 offen offset:{1024*i}{SC1}" for i in range(3)]
    return L

def w_flag_addr(k):
    k.e(f"v_lshlrev_b32 v9, {HSH}, v0")

def g2_phase(k):
    srd(k, 40, P_WS, 32 * NT * 4096, H_OFF)
    k.e("s_lshl_b32 s52, s101, 10")
    k.e("v_add_u32 v3, s52, v1")
    for m in range(1, 4):
        k.e(f"v_xor_b32 v{3+m}, {1024*m}, v3")
    k.e("s_mul_i32 s57, s101, 7")
    k.e("s_min_u32 s57, s57, 20")
    k.e("s_lshl_b32 s58, s8, 5")
    k.e("s_add_u32 s57, s57, s58")
    k.e(f"s_lshl_b32 s57, s57, {HSH}")
    k.e(f"s_add_u32 s57, s57, {FH}")
    r = Rec(); g2_prefetch_b(r)
    EPOL = flag("EPOL", 8)
    left = 15
    for x in r.lines:
        if is_vmem(x):
            if left == EPOL:
                k.e("s_bfm_b64 exec, 7, 0")
                k.e(f"buffer_load_dwordx2 v[10:11], v9, s[{FSRD}:{FSRD+3}], s57 offen{SC1}")
                k.e("s_mov_b64 exec, -1")
            left -= 1
        k.e(x)
    k.e("v_add_u32 v7, s56, v1")
    if EPOL: k.e(f"s_waitcnt vmcnt({EPOL})")
    poll(k, "L_hpoll", 10, 9, 57, 58, 7, sleep=flag("HSLP", 2), preloaded=bool(EPOL))
    if not flag("STG1"): stamp_mid(k, 2)
    k.e(f"v_mov_b32 v{G_W + 20*NW}, {CNT}")
    vm = Vm(); hneed = {}; wneed = {}
    for s in range(NH - 1):
        for x in h_loads(s):
            k.e(x)
            if is_vmem(x): hneed[s] = vm.op()
    for s in range(NSTEP):
        idx = max(hneed[s], wneed.get(s, -1))
        lg = " lgkmcnt(0)" if s >= 11 else ""
        k.e(f"s_waitcnt vmcnt({vm.wait(idx)}){lg}")
        fill = []
        if s + NH - 1 < NSTEP: fill += [(x, "h", s + NH - 1) for x in h_loads(s + NH - 1)]
        r = s + NW - 1
        if s >= 1 and r <= 10: fill += [(x, "w", r) for x in w_loads(r)]
        if s >= 1 and 11 <= r <= 13: fill += [(x, "l", r) for x in w_lds_reads(r)]
        m = g2_mfmas(s); fi = 0
        if flag("G2NOMM"): m = m[:2]
        if s == flag("YAT", 6):
            fill = [(f"ds_write_b32 v{G_W + 20*NW}, v{G_W + 20*NW} offset:20", "l", 0)] + fill
        for i, x in enumerate(m):
            k.e(x)
            if i % 2 == 0 or flag("DENSE"):
                while fi < len(fill):
                    y, t, st = fill[fi]; fi += 1
                    k.e(y)
                    if is_vmem(y):
                        (hneed if t == "h" else wneed)[st] = vm.op()
                    if not y.startswith("s_"): break
        for y, t, st in fill[fi:]:
            k.e(y)
            if is_vmem(y): (hneed if t == "h" else wneed)[st] = vm.op()
    if not flag("STG1") and not flag("STG2"): stamp_mid(k, 3)
    g2_tail(k)

def g1_phase(k):
    srd(k, 48, P_WS, 32 * NT * 4096, H_OFF)
    srd(k, 44, P_WS, NB_W, W2_OFF)
    k.e("s_and_b32 s52, s3, 1")
    k.e("s_lshr_b32 s53, s3, 1")
    BA, AA = 10, 14
    k.e("v_lshlrev_b32 v1, 4, v0")
    k.e("v_add_u32 v2, 4096, v1")
    k.e("v_and_b32 v18, 15, v0")
    k.e("v_lshrrev_b32 v19, 4, v0")
    k.e("v_lshrrev_b32 v20, 1, v18")
    k.e("v_xor_b32 v20, v20, v19")
    k.e("v_lshlrev_b32 v20, 4, v20")
    k.e("v_lshl_add_u32 v20, v18, 7, v20")
    k.e("s_lshl_b32 s58, s52, 13")
    k.e("s_lshl_b32 s59, s53, 12")
    k.e("s_add_u32 s58, s58, s59")
    k.e(f"v_add_u32 v{BA}, s58, v20")
    k.e(f"v_xor_b32 v{BA+1}, 64, v{BA}")
    k.e(f"v_xor_b32 v{BA+2}, 0x1000, v{BA}")
    k.e(f"v_xor_b32 v{BA+3}, 0x1040, v{BA}")
    k.e("v_lshrrev_b32 v20, 2, v18")
    k.e("v_and_b32 v21, 3, v18")
    k.e("v_lshl_add_u32 v22, v19, 3, v20")
    k.e("v_lshlrev_b32 v22, 8, v22")
    k.e("v_lshl_add_u32 v22, v21, 3, v22")
    k.e(f"v_add_u32 v22, {WPART}, v22")
    k.e("v_and_b32 v23, 1, v19")
    k.e("v_lshl_add_u32 v23, v23, 2, v20")
    k.e("s_lshl_b32 s58, s53, 2")
    k.e("s_lshl_b32 s59, s52, 1")
    k.e("s_add_u32 s58, s58, s59")
    k.e("v_xor_b32 v23, s58, v23")
    k.e(f"v_lshl_add_u32 v{AA}, v23, 5, v22")
    for fb in range(1, 4):
        k.e(f"v_xor_b32 v{AA+fb}, {32*fb}, v{AA}")
    ONE = 20
    for i in range(4): k.e(f"v_mov_b32 v{ONE+i}, 0x3f803f80")
    ACC, AR, AC, FR = 24, 88, 96, 112
    for r, x in ((3, 0), (4, 2), (5, 1)):
        k.e(f"s_xor_b32 s58, s3, {x}")
        k.e("s_mul_i32 s58, s58, 3072")
        k.e(f"s_add_u32 s58, s58, {TOP}")
        k.e(f"v_add_u32 v{r}, s58, v1")
    k.e("s_lshl_b32 s58, s7, 1")
    k.e("s_add_u32 s57, s58, s53")
    k.e("s_lshl_b32 s59, s6, 1")
    k.e("s_add_u32 s59, s59, s52")
    k.e("s_lshl_b32 s56, s59, 5")
    k.e("s_add_u32 s56, s56, s57")
    k.e(f"s_lshl_b32 s56, s56, {HSH}")
    k.e(f"s_add_u32 s56, s56, {FH}")
    k.e(f"s_mul_i32 s59, s59, {NT}")
    k.e("s_lshl_b32 s58, s57, 1")
    k.e("s_add_u32 s58, s58, s59")
    k.e("s_lshl_b32 s58, s58, 12")
    k.e("s_lshl_b32 s59, s52, 12")
    k.e("s_add_u32 s60, s58, s59")
    k.e("s_xor_b32 s59, s59, 0x1000")
    k.e("s_add_u32 s61, s58, s59")
    k.e("s_lshl_b32 s59, s53, 11")
    k.e("v_add_u32 v6, s59, v1")
    k.e("v_xor_b32 v7, 0x800, v6")
    k.e(f"v_mov_b32 v176, {CNT}")
    k.e("v_mov_b32 v177, 1")
    def reads(stage, ks, buf):
        so = (stage % 2) * SLOT
        L = []
        fa = FR + 32 * buf; fb_ = fa + 16
        for i in range(4):
            L.append(f"ds_read_b128 v[{fb_+4*i}:{fb_+4*i+3}], v{BA + 2*(i>>1) + ks} offset:{so + 2048*(i&1)}")
            L.append(f"ds_read_b64_tr_b16 v[{fa+4*i}:{fa+4*i+1}], v{AA+i} offset:{so + 8192*ks}")
            L.append(f"ds_read_b64_tr_b16 v[{fa+4*i+2}:{fa+4*i+3}], v{AA+i} offset:{so + 8192*ks + 1024}")
        return L
    def mfmas(buf, first=False, sums_first=False):
        fa = FR + 32 * buf; fb_ = fa + 16
        L = []; Sm = []
        def mm(T, d, a, b):
            c = "0" if first else f"v[{d}:{d+3}]"
            T.append(f"v_mfma_f32_16x16x32_bf16 v[{d}:{d+3}], v[{a}:{a+3}], v[{b}:{b+3}], {c}")
        for f in range(4):
            for m in range(4):
                mm(L, ACC + 16*f + 4*m, fa + 4*f, fb_ + 4*m)
        for i in range(2):
            mm(Sm, AR + 4*i, ONE, fb_ + 4*i)
            mm(Sm, AC + 4*i, fa + 4*i, ONE)
        return Sm + L if sums_first else L + Sm
    if not PREPB: prep_compute(k)
    UPUB = 99 if PREPB else flag("UPUB", 2)
    for s in range(NSTAGE):
        k.c(f"---- stage {s}")
        k.e("s_waitcnt vmcnt(0) lgkmcnt(0)" if s == UPUB else "s_waitcnt lgkmcnt(0)")
        if s < 9: k.e("s_barrier")
        if s == UPUB:
            k.e("s_cmp_lg_u32 s3, 0")
            k.e("s_cbranch_scc1 L_g1_nopub")
            k.e("s_setprio 2")
            publish(k, 62, 180)
            k.e("s_setprio 0")
            k.e("L_g1_nopub:")
        if s == 0 and not flag("STG2"): stamp_mid(k, 0)
        if flag("STG1") and s == flag("STA", 4): stamp_mid(k, 1)
        if flag("STG1") and s == flag("STB", 9): stamp_mid(k, 2)
        if s == NSTAGE - 2:
            k.e("s_setprio 2")

        if s == 0 and PREPB:
            for x in reads(s, 0, 0): k.e(x)
        elif s == 0:
            for x in prep_reads() + reads(s, 0, 0): k.e(x)
            k.e("s_waitcnt lgkmcnt(12)")
            k.e("s_setprio 2")
            for x in prep_stores(): k.e(x)
            k.e("s_setprio 0")
        else:
            for x in interleave(mfmas(1), reads(s, 0, 0)): k.e(x)
        k.e("s_waitcnt lgkmcnt(0)")
        nxt = []
        if (s + 1) % 2 == 0 and s + 1 < NSTAGE:
            nxt = [f"v_xor_b32 v{r}, 0x10000, v{r}" for r in list(range(BA, BA+4)) + list(range(AA, AA+4))]
        for x in interleave(mfmas(0, first=(s == 0)), reads(s, 1, 1) + nxt): k.e(x)
    k.e("s_waitcnt lgkmcnt(0)")
    fin = mfmas(1, sums_first=True)
    exch = [f"v_mov_b32 v{AR+1}, v{AR+4}",
            f"ds_write_b64 v3, v[{AR}:{AR+1}]",
            f"ds_write_b128 v3, v[{AC}:{AC+3}] offset:1024",
            f"ds_write_b128 v3, v[{AC+4}:{AC+7}] offset:2048",
            "s_mov_b64 exec, 1\nds_add_u32 v176, v177 offset:8\ns_mov_b64 exec, -1"]
    for x in fin[:7]: k.e(x)
    for x in interleave(fin[7:], exch): k.e(x)
    k.e("L_a_sync:")
    k.e("ds_read_b32 v178, v176 offset:8")
    k.e(f"ds_read_b64 v[{AR+2}:{AR+3}], v4")
    k.e(f"ds_read_b128 v[{AC+8}:{AC+11}], v5 offset:1024")
    k.e(f"ds_read_b128 v[{AC+12}:{AC+15}], v5 offset:2048")
    k.e("s_waitcnt lgkmcnt(0)")
    k.e("v_readfirstlane_b32 s58, v178")
    k.e("s_cmp_lt_u32 s58, 4")
    k.e("s_cbranch_scc1 L_a_sync")
    if flag("STG1"): stamp_mid(k, 3)
    if flag("STG2"): stamp_mid(k, 0)
    k.e("s_cmp_ge_u32 s57, 27")
    k.e("s_cbranch_scc1 L_g2w")
    NM = FR
    for m in range(4):
        k.e(f"v_mul_f32 v{AR+m}, {-1.0/D!r}, v{AR+m}")
    k.e(f"v_cvt_pk_bf16_f32 v{AR+4}, v{AR}, v{AR+1}")
    k.e(f"v_cvt_pk_bf16_f32 v{AR+5}, v{AR+2}, v{AR+3}")
    for m in range(4):
        src = AR + 4 + (m >> 1)
        for h in range(2):
            if m & 1: k.e(f"v_and_b32 v{NM+2*m+h}, 0xffff0000, v{src}")
            else:     k.e(f"v_lshlrev_b32 v{NM+2*m+h}, 16, v{src}")
    OUT = FR + 8
    n = 0
    for p in range(2):
        for m in range(4):
            o = OUT + 4 * (n % 4); n += 1
            for ff in range(2):
                f = 2*p + ff
                a = ACC + 16*f + 4*m
                if flag("SFMA", 1):
                    for r in range(4):
                        k.e(f"v_fmac_f32 v{a+r}, v{AC+4*f+r}, v{NM+2*m}")
                else:
                  for h in range(2):
                    k.e(f"v_pk_fma_f32 v[{a+2*h}:{a+2*h+1}], v[{AC+4*f+2*h}:{AC+4*f+2*h+1}], v[{NM+2*m}:{NM+2*m+1}], v[{a+2*h}:{a+2*h+1}]")
                for h in range(2):
                    k.e(f"v_cvt_pk_bf16_f32 v{o+2*ff+h}, v{a+2*h}, v{a+2*h+1}")
            if p == 1 and m == 2: k.e("ds_read_b32 v178, v176 offset:12")
            for i in range(4):
                k.e(f"v_pk_max_i16 v{o+i}, v{o+i}, 0")
            k.e(f"buffer_store_dwordx4 v[{o}:{o+3}], v{6+(m>>1)}, s[48:51], s{60+p} offen offset:{1024*(m&1)}{HSC}")
    if flag("STG2") == 1: stamp_mid(k, 3)
    pre = g2_prefetch_a()
    NPRE = flag("NPRE", 10)
    n1 = 0; cnt = 0
    while cnt < NPRE:
        cnt += is_vmem(pre[n1]); n1 += 1
    k.e("s_waitcnt lgkmcnt(0)")
    k.e("v_readfirstlane_b32 s58, v178")
    k.e("s_cmp_eq_u32 s58, 1")
    k.e("s_cbranch_scc0 L_a_slow")
    for x in pre[:n1]: k.e(x)
    k.e(f"s_waitcnt vmcnt({cnt})")
    publish(k, 56, 12, SC1=HSC)
    if not flag("STG1"): stamp_mid(k, 1)
    k.e("s_branch L_g2b")
    k.e("L_a_slow:")
    k.e("s_waitcnt vmcnt(0)")
    publish(k, 56, 12, SC1=HSC)
    k.e("L_g2w:")
    k.e("s_setprio 0")
    k.e(f"v_mov_b32 v10, {CNT}")
    lds_wait(k, "L_aw2", 10, 11, AUXOK, 58, sleep=4)
    k.e("s_setprio 0")
    for x in pre[:n1]: k.e(x)
    k.e("L_g2b:")
    for _ in range(flag("WDELAY")): k.e("s_sleep 32")
    k.e("s_setprio 0")
    for x in pre[n1:]: k.e(x)

def b_aprep(k):
    srd(k, 40, P_Q, NB_X)
    srd(k, 44, P_WS, 16384, ST_OFF)
    srd(k, 68, P_WS, NB_T, YT_OFF)
    xo_offsets(k, 8, 1, 2)
    for i in range(3):
        k.e(f"s_add_u32 m0, s81, {XO + 1024*i}")
        k.e(f"buffer_load_dwordx4 v{8+i}, s[40:43], s54 offen lds")
    k.e("v_and_b32 v1, 15, v0")
    k.e("v_lshlrev_b32 v3, 3, v1")
    k.e("s_lshl_b32 s57, s53, 7")
    k.e("v_lshrrev_b32 v4, 3, v0")
    k.e(f"v_mul_u32_u24 v4, {RS}, v4")
    k.e("v_and_b32 v2, 7, v0")
    k.e("v_lshl_add_u32 v4, v2, 4, v4")
    k.e("s_mul_i32 s58, s9, 10")
    k.e("s_add_u32 s58, s58, s101")
    k.e(f"s_mul_i32 s58, s58, {8*RS}")
    k.e("s_lshl_b32 s59, s8, 7")
    k.e("s_add_u32 s58, s58, s59")
    k.e(f"v_mov_b32 v2, {CNT}")
    k.e("s_cmp_eq_u32 s101, 0")
    k.e("s_cbranch_scc1 L_b_poller")
    k.e("s_setprio 0")
    lds_wait(k, "L_b_lwait", 2, 6, 4, 60, sleep=4)
    k.e("s_setprio 3")
    k.e("s_branch L_b_go")
    k.e("L_b_poller:")
    k.e("s_setprio 0")
    lds_wait(k, "L_b_aw", 2, 6, 20, 60, sleep=4)
    k.e("s_setprio 3")
    k.e(f"s_mul_i32 s59, s9, {80 << YSH}")
    k.e(f"s_add_u32 s59, s59, {FY}")
    k.e(f"s_add_u32 s61, s59, {64 << YSH}")
    k.e(f"v_lshlrev_b32 v5, {YSH}, v0")
    k.e("s_bfm_b64 exec, 16, 0")
    k.e(f"buffer_load_dwordx2 v[14:15], v5, s[{FSRD}:{FSRD+3}], s61 offen{SC1}")
    k.e("s_mov_b64 exec, -1")
    poll(k, "L_by", 12, 5, 59, 60, 64, sleep=flag("YSLP", 8))
    poll(k, "L_by2", 14, 5, 61, 60, 16, sleep=flag("YSLP", 8), preloaded=True)
    k.e("v_mov_b32 v6, 1")
    k.e("ds_write_b32 v2, v6 offset:4")
    k.e("L_b_go:")
    k.e("s_waitcnt vmcnt(0)")
    if not flag("FST") and not flag("BST"): stamp_mid(k, 3)
    k.e(f"buffer_load_dwordx2 v[12:13], v3, s[44:47], s57 offen{SC1}")
    for i in range(3):
        if i == 2:
            k.e("s_cmp_ge_u32 s101, 2")
            k.e("s_cbranch_scc1 L_b_noy")
        k.e(f"s_add_u32 m0, s81, {YO + 1024*i}")
        k.e(f"buffer_load_dwordx4 v4, s[68:71], s58 offen{SC1} lds")
        if i < 2: k.e(f"s_add_u32 s58, s58, {4*8*RS}")
    k.e("L_b_noy:")
    k.e("v_mul_u32_u24 v5, 160, v1")
    k.e("v_lshrrev_b32 v6, 4, v0")
    k.e("v_lshl_add_u32 v5, v6, 3, v5")
    k.e("v_add_u32 v5, s81, v5")
    k.e("v_lshrrev_b32 v6, 5, v0")
    k.e(f"v_mul_u32_u24 v6, {CONV_LDS}, v6")
    k.e("v_bfe_u32 v7, v0, 2, 3")
    k.e("v_lshl_add_u32 v6, v7, 7, v6")
    k.e("v_and_b32 v7, 3, v0")
    k.e("v_lshl_add_u32 v6, v7, 3, v6")
    k.e("s_lshl_b32 s59, s101, 5")
    k.e(f"s_add_u32 s59, s59, {RB0}")
    k.e("v_add_u32 v6, s59, v6")
    k.e("v_lshlrev_b32 v7, 4, v0")
    k.e("v_add_u32 v7, s81, v7")
    k.e("v_mov_b32 v3, 1")
    XR, YR = 16, 26
    for d in range(5):
        k.e(f"ds_read_b64 v[{XR+2*d}:{XR+2*d+1}], v5 offset:{XO + 32*d}")
    XF, SF = 40, 60
    k.e("s_waitcnt lgkmcnt(0)")
    for d in range(5):
        for h in range(2):
            x = XF + 4*d + 2*h
            unpack(k, x, x+1, XR + 2*d + h)
        k.e(f"ds_write_b128 v7, v[{XF+4*d}:{XF+4*d+3}] offset:{SO + 5120 + 1024*d}")
    k.e("s_waitcnt vmcnt(0)")
    k.e("s_mov_b64 exec, 1")
    k.e("ds_add_u32 v2, v3")
    k.e("s_mov_b64 exec, -1")
    k.e("v_mul_f32 v38, 0xbfb8aa3b, v13")
    k.e("v_mul_f32 v39, 0xbfb8aa3b, v13")
    k.e(f"ds_write_b64 v7, v[38:39] offset:{SO + 10240}")
    k.e("v_mul_f32 v14, v13, v13")
    k.e("v_mul_f32 v15, v13, v13")
    k.e("v_sub_f32 v12, 0, v12")
    k.e("v_mov_b32 v13, v12")
    k.e("v_mul_f32 v12, v12, v14")
    for i in range(20):
        k.e(f"v_fma_f32 v{80+i}, v{XF+i}, v14, v12")
    k.e("L_b_cnt:")
    k.e("ds_read_b32 v3, v2")
    for d in range(5):
        k.e(f"ds_read_b64_tr_b16 v[{YR+2*d}:{YR+2*d+1}], v6 offset:{YO + 2*(d&1)*CONV_LDS + (d>>1)*1024}")
    k.e("s_waitcnt lgkmcnt(0)")
    k.e("v_readfirstlane_b32 s59, v3")
    k.e("s_cmp_lt_u32 s59, 4")
    k.e("s_cbranch_scc1 L_b_cnt")
    for d in range(5):
        for h in range(2):
            s = SF + 4*d + 2*h
            unpack(k, s, s+1, YR + 2*d + h)
            k.e(f"v_mul_f32 v{s}, v{s}, v{80+4*d+2*h}")
            k.e(f"v_mul_f32 v{s+1}, v{s+1}, v{81+4*d+2*h}")
        k.e(f"ds_write_b128 v7, v[{SF+4*d}:{SF+4*d+3}] offset:{SO + 1024*d}")
    k.e("s_waitcnt lgkmcnt(0)")

def w_warm(k):
    M81 = flag("MAP81")
    k.e("s_setprio 1")
    k.e("s_lshr_b32 s10, s9, 1")
    k.e(f"s_lshl_b32 s10, s10, {3 if M81 else 4}")
    k.e(f"s_and_b32 s11, s8, {3 if M81 else 7}")
    k.e("s_lshl_b32 s11, s11, 1")
    k.e("s_add_u32 s10, s10, s11")
    k.e("s_and_b32 s11, s9, 1")
    k.e("s_add_u32 s10, s10, s11")
    k.e(f"s_mul_i32 s10, s10, {69120 if M81 else 34560}")
    k.e("v_lshlrev_b32 v30, 7, v0")
    n = 9 if M81 else 5
    for i in range(n):
        if i == n - 1: k.e(f"s_bfm_b64 exec, {28 if M81 else 14}, 0")
        k.e(f"buffer_load_dword v{32+i}, v30, s[44:47], s10 offen{SC1}")
        k.e("s_add_u32 s10, s10, 8192")
    k.e("s_mov_b64 exec, -1")

def kernel():
    AL = flag("AL", 2); AP = flag("AP", 2)
    k = Kern(NAME)
    stamp_begin(k)
    if flag("FIXT"): k.e("s_memrealtime s[96:97]")
    k.e("s_cmp_ge_u32 s2, 256")
    k.e("s_cbranch_scc1 L_end")
    load_ptrs(k)
    k.e("v_lshrrev_b32 v1, 6, v0")
    k.e("v_readfirstlane_b32 s3, v1")
    k.e("v_and_b32 v0, 63, v0")
    k.e("s_and_b32 s4, s2, 7")
    k.e("s_lshr_b32 s5, s2, 3")
    k.e("s_lshr_b32 s10, s4, 1")
    k.e("s_and_b32 s11, s4, 1")
    k.e("s_lshl_b32 s6, s10, 2")
    k.e("s_and_b32 s7, s5, 3")
    k.e("s_add_u32 s6, s6, s7")
    k.e("s_lshl_b32 s9, s11, 2")
    k.e("s_add_u32 s9, s9, s7")
    k.e("s_lshr_b32 s8, s5, 2")
    k.e("s_mul_i32 s7, s11, 7")
    k.e("s_add_u32 s7, s7, s8")
    k.e("s_lshl_b32 s10, s10, 3")
    k.e("s_add_u32 s8, s8, s10")
    if flag("MAP81"):
        k.e("s_lshl_b32 s6, s4, 1")
        k.e("s_and_b32 s7, s5, 1")
        k.e("s_add_u32 s6, s6, s7")
        k.e("s_lshr_b32 s7, s5, 1")
        k.e("s_lshl_b32 s8, s4, 2")
        k.e("s_lshr_b32 s9, s5, 3")
        k.e("s_add_u32 s8, s8, s9")
        k.e("s_and_b32 s9, s5, 7")
    k.e("s_and_b32 s101, s3, 3")
    for i in range(4): k.e(f"v_mov_b32 v{4+i}, 0")
    k.e(f"v_mov_b32 v1, {CNT}")
    k.e("ds_write_b128 v1, v[4:7]")
    k.e("ds_write_b128 v1, v[4:7] offset:16")
    k.e(f"s_mul_i32 s81, s101, {CONV_LDS}")
    k.e(f"s_add_u32 s81, s81, {RB0}")
    k.e("s_waitcnt lgkmcnt(0)")
    srd(k, FSRD, P_WS, FL_BYTES, FL_OFF)
    k.e(f"s_load_dwordx2 s[{TAG}:{TAG+1}], s[{FSRD}:{FSRD+1}], {EP}")
    k.e("s_cmp_ge_u32 s2, 224")
    k.e("s_cbranch_scc1 L_free")
    k.e("s_cmp_lt_u32 s3, 4")
    k.e("s_cbranch_scc1 L_a")
    k.e("s_setprio 1")
    k1.loader_setup(k, 6, 7, 101)
    vm = Vm(); last = {}
    def put(x):
        k.e(x)
        return vm.op() if is_vmem(x) else None
    def dma(st):
        for x in k1.dma(st):
            r = put(x)
            if r is not None: last[st] = r
        if st == AP and PREPB:
            for x in ([] if flag("XNOLD") else prepb_loads()): put(x)
        if st == AL:
            for x in ([] if flag("XNOLD") or flag("XNORL") else aux_loads()): put(x)
    dma(0)
    rel_addr(k)
    if PREPB: prepb_addr(k)
    dma(1)
    DA = flag("DA", 2)
    for st in range(2, DA): dma(st)
    k.e("s_lshl_b32 s82, s2, 1")
    k.e("s_add_u32 s82, s82, s101")
    k.e("s_add_u32 s10, s2, 448")
    k.e("s_cmp_lt_u32 s2, 64")
    k.e("s_cselect_b32 s10, s10, 1000")
    k.e("s_cmp_eq_u32 s101, 2")
    k.e("s_cselect_b32 s82, s10, s82")
    k.e("s_cmp_eq_u32 s101, 3")
    k.e("s_cselect_b32 s82, 1000, s82")
    k.e("s_waitcnt lgkmcnt(0)")
    make_tag(k)
    st_idx = None
    k.e("s_lshl_b32 s83, s2, 7")
    k.e(f"s_add_u32 s83, s83, {FB}")
    k.e("s_cmp_eq_u32 s101, 2")
    k.e(f"s_cselect_b32 s83, s83, {OOB}")
    STS = AL + 1
    PUBS = STS + flag("PUBD", 2)
    assert PUBS <= 6
    PCS = flag("PCS", 0)
    UST = AP + 2 + PCS; UPB = UST + flag("PUBD", 2); ust_idx = None
    if PREPB:
        assert UPB <= 6
        pc = prepb_compute()
        if flag("XNOCP"): pc = pc[:6]
        half = len(pc) // 2 if PCS else len(pc)
        k.e("s_lshl_b32 s88, s2, 7")
        k.e("s_cmp_eq_u32 s101, 1")
        k.e(f"s_cselect_b32 s88, s88, {OOB}")
    for s in range(7):
        w = vm.wait(last[s])
        if s == PUBS: w = min(w, vm.wait(st_idx))
        if PREPB and s == UPB: w = min(w, vm.wait(ust_idx))
        k.e(f"s_waitcnt vmcnt({w})")
        k.e("s_barrier")
        if s == PUBS:
            publish(k, 83, 4); vm.op()
            if flag("BST"): stamp_mid(k, 1)
        if PREPB and s == UPB:
            publish(k, 88, 4); vm.op()
            if flag("BST"): stamp_mid(k, 0)
        if PREPB and s == UST:
            for x in prepb_out():
                r = put(x)
                if r is not None: ust_idx = r
        if s == STS:
            for x in aux_reads(): k.e(x)
            for x in aux_stores():
                r = put(x)
                if r is not None: st_idx = r
        if s == 0:
            for st in range(DA, 4): dma(st)
        elif s + 3 < NSTAGE:
            dma(s + 3)
        if PREPB and s == AP + 1:
            for x in pc[:half]: k.e(x)
        if PREPB and PCS and s == AP + 2:
            for x in pc[half:]: k.e(x)
    w7 = vm.wait(last[7]); w9 = vm.wait(last[9])
    k.e("s_cmp_lt_u32 s82, 640")
    k.e("s_cbranch_scc1 L_b_hasconv")
    k.e("s_lshl_b32 s62, s2, 1")
    k.e("s_add_u32 s63, s2, 448")
    k.e("s_cmp_lt_u32 s2, 64")
    k.e("s_cselect_b32 s63, s63, s62")
    aux_watch_addr(k, 224, 62, 63)
    k.e("s_cmp_eq_u32 s101, 3")
    k.e(f"s_cselect_b32 s62, 0, {OOB}")
    k.e("v_add_u32 v224, s62, v224")
    k.e("v_add_u32 v225, s62, v225")
    pre = aux_watch_pre(228, 224)
    k.e(pre[0])
    k.e(f"s_waitcnt vmcnt({w7 + 1})")
    k.e("s_barrier")
    k.e(f"s_waitcnt vmcnt({w9 + 1})")
    k.e("s_barrier")
    k.e("s_cmp_eq_u32 s101, 3")
    k.e("s_cbranch_scc0 L_b_aprep")
    k.e("s_setprio 3")
    k.e(pre[1])
    aux_watch(k, "L_bw", 228, 224)
    if flag("BST"): stamp_mid(k, 2)
    if flag("WARM", 1): w_warm(k)
    k.e("s_cmp_lg_u32 s2, 0")
    k.e("s_cbranch_scc1 L_b_aprep")
    k.e("s_setprio 0")
    k.e("v_lshlrev_b32 v1, 7, v0")
    k.e(f"s_mov_b32 s83, {FB}")
    k.e("L_ep_next:")
    poll(k, "L_ep", 4, 1, 83, 10, 64, sleep=16)
    k.e("s_add_u32 s83, s83, 8192")
    k.e(f"s_cmp_lt_u32 s83, {FB + 32768}")
    k.e("s_cbranch_scc1 L_ep_next")
    k.e(f"s_mov_b32 s83, {EP}")
    publish(k, 83, 4)
    k.e("s_branch L_b_aprep")
    k.e("L_b_hasconv:")
    conv.conv_setup_hk(k, 82, 81)
    k.e(f"s_waitcnt vmcnt({w7 + 12})")
    k.e("s_barrier")
    k.e(f"s_waitcnt vmcnt({w9 + 12})")
    k.e("s_barrier")
    if flag("BST"): stamp_mid(k, 3)
    k.e("L_b_conv:")
    k.e(f"s_setprio {flag('PST', 3)}")
    k.e(f"v_mov_b32 v250, {CNT}")
    k.e("s_waitcnt vmcnt(0)")
    def hook():
        k.e(f"ds_read_b32 v251, v250 offset:{UOK}")
        k.e("s_waitcnt lgkmcnt(0)")
        k.e("v_readfirstlane_b32 s80, v251")
        k.e("s_cmp_eq_u32 s80, 0")
        k.e("s_cbranch_scc1 L_b_late1")
        conv.conv_setup_u(k, 82, 81, SC1)
        k.e("L_b_late1:")
    conv.conv_stage(k, 82, 81, 0, hook)
    if not flag("BST"): stamp_mid(k, 0)
    k.e("s_cmp_eq_u32 s80, 0")
    k.e("s_cbranch_scc0 L_b_run")
    lds_wait(k, "L_b_uw", 250, 251, UOK, 80)
    conv.conv_setup_u(k, 82, 81, SC1)
    k.e("s_waitcnt vmcnt(0)")
    k.e("L_b_run:")
    if not flag("BST"): stamp_mid(k, 1)
    k.e(f"s_setprio {flag('PC', 1)}")
    if not flag("NOCM"): conv.conv_main(k, "f")
    k.e("s_setprio 3")
    conv.conv_epilogue(k, 82, SC1)
    k.e(f"s_lshl_b32 s10, s82, {YSH}")
    k.e(f"s_add_u32 s83, s10, {FY}")
    k.e("s_waitcnt vmcnt(0)")
    publish(k, 83, 4)
    if not flag("FST") and not flag("BST"): stamp_mid(k, 2)
    k.e("L_b_aprep:")
    if flag("NOAPREP"): k.e("s_branch L_b_end")
    k.e("s_setprio 3")
    b_aprep(k)
    k.e("L_b_end:")
    finish(k, 1)
    k.e("L_free:")
    for _ in range(flag("XFREE")): k.e("s_sleep 64")
    k.e("s_sub_u32 s84, s2, 224")
    k.e("s_mov_b32 s85, s3")
    k.e("s_cmp_eq_u32 s3, 7")
    k.e("s_cbranch_scc1 L_free_sync")
    k.e("s_cmp_lt_u32 s3, 4")
    k.e("s_cbranch_scc1 L_free_stats")
    k.e("s_setprio 2")
    k.e("s_mul_i32 s85, s84, 3")
    k.e("s_add_u32 s85, s85, s101")
    k.e("s_add_u32 s85, s85, 224")
    aux.emit_prep(k, 85, 81, SC1)
    make_tag(k)
    k.e("s_lshl_b32 s85, s85, 7")
    k.e("s_waitcnt vmcnt(0)")
    publish(k, 85, 4)
    k.e("s_barrier")
    k.e("s_branch L_free_b")
    k.e("L_free_stats:")
    stats_rows(k, 85)
    aux.emit_stats(k, 52, SC1)
    k.e("s_add_u32 s85, s85, 4")
    k.e("s_cmp_lt_u32 s85, 8")
    k.e("s_cbranch_scc1 L_free_stats")
    k.e("L_free_sync:")
    k.e("s_waitcnt vmcnt(0) lgkmcnt(0)")
    k.e("s_barrier")
    make_tag(k)
    k.e("s_cmp_lt_u32 s3, 4")
    k.e("s_cbranch_scc1 L_free_a")
    k.e("L_free_b:")
    k.e("s_setprio 1")
    k.e("s_lshl_b32 s82, s84, 2")
    k.e("s_add_u32 s82, s82, s101")
    k.e("s_add_u32 s82, s82, 512")
    conv.conv_setup_hk(k, 82, 81)
    k.e("s_branch L_b_conv")
    k.e("L_free_a:")
    stamp_mid(k, 0)
    g2_offsets(k)
    w_flag_addr(k)
    srd(k, 44, P_WS, NB_W, W2_OFF)
    k.e("v_lshlrev_b32 v1, 4, v0")
    k.e("v_add_u32 v2, 4096, v1")
    k.e("s_cmp_lg_u32 s3, 0")
    k.e("s_cbranch_scc1 L_g2w")
    k.e("s_lshl_b32 s83, s2, 7")
    k.e(f"s_add_u32 s83, s83, {FB}")
    publish(k, 83, 4)
    k.e("s_lshl_b32 s62, s84, 2")
    k.e("s_add_u32 s62, s62, 512")
    aux_watch_addr(k, 16, 62, 62)
    for x in aux_watch_pre(20, 16): k.e(x)
    aux_watch(k, "L_fw", 20, 16)
    if flag("WARM", 1): w_warm(k)
    k.e("s_branch L_g2w")
    k.e("L_a:")
    if not PREPB:
        k.e("s_setprio 3")
        prep_loads(k)
        k.e("s_setprio 0")
    g2_offsets(k)
    w_flag_addr(k)
    k.e("s_waitcnt lgkmcnt(0)")
    make_tag(k)
    g1_phase(k)
    k.e("L_g2:")
    g2_phase(k)
    if flag("FIXT"):
        k.e("L_fix:")
        k.e("s_memrealtime s[98:99]")
        k.e("s_waitcnt lgkmcnt(0)")
        k.e("s_sub_u32 s98, s98, s96")
        k.e(f"s_cmp_lt_u32 s98, {flag('FIXT')}")
        k.e("s_cbranch_scc1 L_fix")
    finish(k, 0)
    k.e("L_end:")
    k.e("s_endpgm")
    return k

if __name__ == "__main__":
    import sys
    hdr = open("recurrent_scan__ssm_conv_h3__dense_activation_relu__prompt.s.ref").read().split("; Override")[0]
    k = kernel()
    out = hdr + f"; @launch grid=(256,1,1) block=(512,1,1) lds={LDS_BYTES}\n"
    out += '.amdgcn_target "amdgcn-amd-amdhsa--gfx950"\n.text\n' + k.body() + '.section .rodata,"a"\n' + k.desc()
    open(sys.argv[1], "w").write(out)
```

```python
import re

TRANS = ("v_exp_f32", "v_log_f32", "v_rcp_f32", "v_rsq_f32", "v_sqrt_f32", "v_sin_f32", "v_cos_f32")

def parse_regs(tok):
    tok = tok.strip()
    tok = tok.lstrip("-")
    m = re.match(r"^abs\((.*)\)$", tok)
    if m: tok = m.group(1)
    tok = tok.strip("|")
    m = re.match(r"^([vas])\[(\d+):(\d+)\]$", tok)
    if m:
        return [(m.group(1), i) for i in range(int(m.group(2)), int(m.group(3)) + 1)]
    m = re.match(r"^([vas])(\d+)$", tok)
    if m:
        return [(m.group(1), int(m.group(2)))]
    if tok == "vcc": return [("s", 106), ("s", 107)]
    if tok == "vcc_lo": return [("s", 106)]
    if tok == "vcc_hi": return [("s", 107)]
    if tok == "m0": return [("s", 124)]
    if tok == "exec": return [("s", 126), ("s", 127)]
    return []

def split_ops(s):
    ops, depth, cur = [], 0, ""
    for ch in s:
        if ch in "[(": depth += 1
        if ch in "])": depth -= 1
        if ch == "," and depth == 0:
            ops.append(cur.strip()); cur = ""
        else:
            cur += ch
    if cur.strip(): ops.append(cur.strip())
    return ops

class Ins:
    def __init__(self, text):
        self.text = text
        t = text.split(";")[0].strip()
        self.is_label = t.endswith(":")
        self.is_dir = t.startswith(".") or t == ""
        self.mn = ""
        self.dst, self.src = [], []
        self.kind = "other"
        if self.is_label or self.is_dir: return
        parts = t.split(None, 1)
        self.mn = mn = parts[0]
        rest = parts[1] if len(parts) > 1 else ""
        ops = split_ops(rest)
        mods = ""
        if ops:
            sp = ops[-1].split(None, 1)
            ops[-1] = sp[0]
            mods = sp[1] if len(sp) > 1 else ""
        self.mods = mods
        self.ops = ops
        R = [parse_regs(o) for o in ops]
        flat = lambda l: [x for y in l for x in y]
        if mn.startswith("v_mfma"):
            self.kind = "mfma"
            self.dst = R[0]; self.srcA = R[1]; self.srcB = R[2]; self.srcC = R[3]
            self.src = flat(R[1:])
            self.passes = 8 if "32x32x16" in mn else 4
        elif mn.startswith("v_"):
            self.kind = "valu"
            self.dpp = ("quad_perm" in mods or "row_" in mods or "wave_" in mods or mn.endswith("_dpp"))
            if mn.startswith("v_cmp"):
                self.dst = R[0]; self.src = flat(R[1:])
                if mn.startswith("v_cmpx"): self.dst = self.dst + [("s",126),("s",127)]
            elif mn.startswith(("v_add_co", "v_sub_co", "v_addc_co", "v_subb_co", "v_subrev_co")):
                self.dst = R[0] + R[1]; self.src = flat(R[2:])
            elif mn.startswith("v_permlane") and "swap" in mn:
                self.dst = R[0] + R[1]; self.src = R[0] + R[1]
            else:
                self.dst = R[0]; self.src = flat(R[1:])
                if mn.startswith(("v_fmac", "v_pk_fmac", "v_dot2c", "v_writelane")) or self.dpp:
                    self.src = self.src + R[0]
        elif mn.startswith("buffer_") or mn.startswith("global_"):
            self.kind = "vmem"
            self.lds = bool(re.search(r"\blds\b", mods)) or "_lds_" in mn
            if "load" in mn and not self.lds:
                self.dst = R[0]; self.src = flat(R[1:])
            elif "atomic" in mn:
                self.src = flat(R)
                if "sc0" in mods: self.dst = R[0]
            else:
                self.src = flat(R)
            if "store" in mn:
                self.data = R[0] if mn.startswith("buffer_") else R[1]
        elif mn.startswith("ds_"):
            self.kind = "ds"
            if "read" in mn or "permute" in mn or "swizzle" in mn or "rtn" in mn:
                self.dst = R[0]; self.src = flat(R[1:])
            else:
                self.src = flat(R)
        elif mn.startswith("s_"):
            self.kind = "salu"
            if mn.startswith(("s_cmp", "s_cbranch", "s_branch", "s_waitcnt", "s_nop", "s_barrier", "s_endpgm", "s_setprio", "s_sleep", "s_bitcmp")):
                self.src = flat(R)
            else:
                self.dst = R[0] if R else []; self.src = flat(R[1:])
                if "saveexec" in mn: self.dst = self.dst + [("s",126),("s",127)]
    def states(self):
        if self.is_label or self.is_dir: return 0
        if self.mn == "s_nop": return int(self.ops[0], 0) + 1
        return 1

def need(prod, cons):
    n = 0
    pd, cs, cd = set(prod.dst), set(cons.src), set(cons.dst)
    pv = {r for r in pd if r[0] in "va"}
    ps = {r for r in pd if r[0] == "s"}
    if prod.kind == "valu":
        if cons.kind == "mfma" and pv & cs: n = max(n, 2)
        if cons.kind == "mfma" and ("s",126) in ps: n = max(n, 4)
        if cons.kind == "valu":
            if prod.mn.startswith(TRANS) and not cons.mn.startswith(TRANS) and pv & cs: n = max(n, 1)
            if prod.mn.startswith(TRANS) and pv & cs: n = max(n, 1)
            if cons.dpp and pv & cs: n = max(n, 2)
            if cons.dpp and ("s",126) in ps: n = max(n, 5)
            if cons.mn.startswith("v_permlane") and pv & cs: n = max(n, 2)
            if cons.mn.startswith(("v_readlane", "v_readfirstlane")) and pv & cs: n = max(n, 1)
            if cons.mn.startswith(("v_readlane", "v_writelane")) and ps & cs: n = max(n, 4)
            if ps & cs: n = max(n, 2)
            if cons.mn.startswith(("v_readlane", "v_readfirstlane", "v_writelane", "v_permlane")) and ("s",126) in ps: n = max(n, 4)
            if ("op_sel" in prod.mods and not prod.mn.startswith("v_pk_")) or "sdwa" in prod.mn or "dst_sel" in prod.mods:
                if pv & (cs | cd): n = max(n, 1)
        if cons.kind == "vmem" and ps & cs: n = max(n, 5)
        if cons.kind == "salu" and ps & cs: n = max(n, 1)
    if prod.kind == "mfma":
        p = prod.passes
        D = set(prod.dst)
        if cons.kind == "mfma":
            if D & (set(cons.srcA) | set(cons.srcB)): n = max(n, {4: 8, 8: 12}[p])
            if D & set(cons.srcC):
                if not (cons.srcC == prod.dst and cons.passes == p): n = max(n, {4: 6, 8: 10}[p])
            elif D & set(cons.dst):
                n = max(n, {4: 8, 8: 12}[p])
        elif cons.kind in ("valu", "vmem", "ds"):
            if D & (cs | cd): n = max(n, {4: 8, 8: 12}[p])
            if cons.kind == "valu" and set(prod.srcC) & cd: n = max(n, {4: 3, 8: 7}[p])
    if prod.kind == "salu":
        if ("s",124) in ps and cons.kind == "vmem" and cons.lds: n = max(n, 1)
        if ("s",124) in ps and cons.kind == "ds" and "addtid" in cons.mn: n = max(n, 1)
    if prod.kind == "vmem" and "store" in prod.mn and ("x4" in prod.mn or "x3" in prod.mn):
        if set(prod.data) & cd: n = max(n, 2 if cons.kind == "valu" else 1)
    return n

def fix_hazards(lines):
    out = []
    for ln in lines:
        for sub in ln.split("\n"):
            ins = Ins(sub)
            if not (ins.is_label or ins.is_dir):
                dist = 0; req = 0
                for prev in reversed(out):
                    if prev.is_label or prev.is_dir: continue
                    k = need(prev, ins)
                    if k - dist > req: req = k - dist
                    dist += prev.states()
                    if dist >= 12: break
                while req > 0:
                    k = min(req, 16)
                    out.append(Ins(f"    s_nop {k-1}"))
                    req -= k
            out.append(ins)
    return [i.text for i in out]

def align_pass(lines):
    out = []; prev8 = False
    for l in lines:
        t = l.split(";")[0].strip()
        if t.startswith("v_mfma") and not prev8:
            out.append("    .p2align 3")
        out.append(l)
        if t and not t.endswith(":"):
            prev8 = (t.startswith(("v_mfma", "ds_", "buffer_")) and (prev8 or t.startswith("v_mfma")))
    return out

class Kern:
    def __init__(self, name):
        self.name = name
        self.lines = []
        self.maxv = -1; self.maxa = -1
    def e(self, s):
        for sub in s.strip("\n").split("\n"):
            sub = sub.strip()
            if not sub: continue
            if sub.endswith(":") or sub.startswith("."): self.lines.append(sub)
            else: self.lines.append("    " + sub)
    def c(self, s):
        self.lines.append("    ; " + s)
    def body(self):
        fixed = fix_hazards(self.lines)
        import os
        if int(os.environ.get("ALN", "0")): fixed = align_pass(fixed)
        for l in fixed:
            t = l.split(";")[0]
            for m in re.finditer(r"\bv\[(\d+):(\d+)\]|\bv(\d+)\b", t):
                self.maxv = max(self.maxv, int(m.group(2) or m.group(3)))
            for m in re.finditer(r"\ba\[(\d+):(\d+)\]|\ba(\d+)\b", t):
                self.maxa = max(self.maxa, int(m.group(2) or m.group(3)))
        hdr = f".globl {self.name}\n.p2align 8\n.type {self.name},@function\n{self.name}:"
        return hdr + "\n" + "\n".join(fixed) + "\n"
    def desc(self, min_alloc=0):
        acc = max(4, (self.maxv + 1 + 3) // 4 * 4)
        nfv = acc + self.maxa + 1 if self.maxa >= 0 else self.maxv + 1
        nfv = max(nfv, min_alloc)
        if self.maxa < 0 and nfv > acc: acc = min(256, (nfv + 3) // 4 * 4)
        assert acc <= 256 and nfv <= 512, (acc, nfv)
        return f""".p2align 6
.amdhsa_kernel {self.name}
  .amdhsa_next_free_vgpr {nfv}
  .amdhsa_next_free_sgpr 102
  .amdhsa_accum_offset {acc}
  .amdhsa_group_segment_fixed_size 0
  .amdhsa_kernarg_size 96
  .amdhsa_user_sgpr_count 2
  .amdhsa_user_sgpr_kernarg_segment_ptr 1
  .amdhsa_system_sgpr_workgroup_id_x 1
.end_amdhsa_kernel
"""

def vr(b, n=1):
    return f"v{b}" if n == 1 else f"v[{b}:{b+n-1}]"
def ar(b, n=1):
    return f"a{b}" if n == 1 else f"a[{b}:{b+n-1}]"
def sr(b, n=1):
    return f"s{b}" if n == 1 else f"s[{b}:{b+n-1}]"
```

```python
from common import *

CP = 4160
UROFF = 4 * CP
CONV_LDS = UROFF + 4608

C_ACC = 8
C_FR = 40

def conv_setup(k, s_ch, s_lds, sc=""):
    srd(k, 60, P_SK, D * S * 2)
    srd(k, 64, P_WS, D * S * 2, UR_OFF)
    srd(k, 68, P_WS, D * S * 2, YT_OFF)
    k.e(f"s_lshl_b32 s72, s{s_ch}, 12")
    k.e(f"s_and_b32 s73, s{s_ch}, 0xfffe")
    k.e("s_lshl_b32 s73, s73, 1")
    k.e(f"s_load_dword s74, s[{P_D}:{P_D+1}], s73")
    k.e("v_lshlrev_b32 v1, 4, v0")
    for c in range(4):
        for sh in range(3):
            r = C_FR + 12*c + 4*sh
            k.e(f"buffer_load_dwordx4 v[{r}:{r+3}], v1, s[60:63], s72 offen offset:{1024*c + 4*sh}")
    k.e(f"s_add_u32 m0, s{s_lds}, {UROFF}")
    for c in range(4):
        k.e(f"buffer_load_dwordx4 v1, s[64:67], s72 offen offset:{1024*c}{sc} lds")

def conv_setup_hk(k, s_ch, s_lds):
    srd(k, 60, P_SK, D * S * 2)
    srd(k, 64, P_WS, NB_T, UR_OFF)
    srd(k, 68, P_WS, NB_T, YT_OFF)
    k.e(f"s_lshl_b32 s72, s{s_ch}, 12")
    k.e(f"s_and_b32 s73, s{s_ch}, 0xfffe")
    k.e("s_lshl_b32 s73, s73, 1")
    k.e(f"s_load_dword s74, s[{P_D}:{P_D+1}], s73")
    k.e("v_lshlrev_b32 v1, 4, v0")
    for c in range(4):
        for sh in range(3):
            r = C_FR + 12*c + 4*sh
            k.e(f"buffer_load_dwordx4 v[{r}:{r+3}], v1, s[60:63], s72 offen offset:{1024*c + 4*sh}")
    k.e(f"s_mul_i32 s72, s{s_ch}, {RS}")

def conv_setup_u(k, s_ch, s_lds, sc=""):
    k.e(f"s_add_u32 m0, s{s_lds}, {UROFF}")
    for c in range(4):
        k.e(f"buffer_load_dwordx4 v1, s[64:67], s72 offen offset:{1024*c}{sc} lds")

def conv_stage(k, s_ch, s_lds, younger, hook=None):
    k.e(f"v_add_u32 v2, s{s_lds}, v1")
    for i in range(4): k.e(f"v_mov_b32 v{C_ACC+i}, 0")
    k.e(f"v_add_u32 v3, {UROFF + 4096}, v2")
    k.e("v_bfe_u32 v4, v0, 1, 2")
    k.e(f"v_mul_u32_u24 v4, {CP}, v4")
    k.e("v_and_b32 v5, 1, v0")
    k.e("v_lshl_add_u32 v4, v5, 4, v4")
    k.e(f"v_add_u32 v4, s{s_lds}, v4")
    k.e("v_cmp_gt_u32 vcc, 32, v0")
    k.e("v_cndmask_b32 v3, v4, v3, vcc")
    k.e(f"ds_write_b128 v3, v[{C_ACC}:{C_ACC+3}]")
    OD = C_FR + 48
    for c in range(4):
        k.e(f"s_waitcnt vmcnt({younger + 4 + 3*(3-c)})")
        d, e_, f = C_FR + 12*c, C_FR + 12*c + 4, C_FR + 12*c + 8
        o1, o3 = OD + 8*c, OD + 8*c + 4
        for i in range(4):
            k.e(f"v_alignbit_b32 v{o1+i}, v{e_+i}, v{d+i}, 16")
            k.e(f"v_alignbit_b32 v{o3+i}, v{f+i}, v{e_+i}, 16")
        for s, r in enumerate((d, o1, e_, o3)):
            k.e(f"ds_write_b128 v2, v[{r}:{r+3}] offset:{s*CP + 32 + 1024*c}")
        if c == 0:
            k.e(f"v_lshlrev_b32 v5, 16, v{d}")
            k.e("v_cmp_eq_u32 vcc, 0, v0")
            k.e("s_and_saveexec_b64 s[76:77], vcc")
            k.e(f"ds_write_b32 v2, v5 offset:{1*CP + 28}")
            k.e(f"ds_write_b32 v2, v{d} offset:{2*CP + 28}")
            k.e(f"ds_write_b32 v2, v5 offset:{3*CP + 24}")
            k.e(f"ds_write_b32 v2, v{o1} offset:{3*CP + 28}")
            k.e("s_mov_b64 exec, s[76:77]")
            if hook: hook()
    k.e("v_and_b32 v6, 15, v0")
    k.e("v_lshrrev_b32 v7, 4, v0")
    k.e("v_add_u32 v3, 1, v6")
    k.e("v_and_b32 v4, 3, v3")
    k.e(f"v_mul_u32_u24 v4, {CP}, v4")
    k.e("v_and_b32 v3, 0x1c, v3")
    k.e("v_lshl_add_u32 v3, v3, 1, v4")
    k.e("v_lshl_add_u32 v3, v7, 4, v3")
    k.e(f"v_add_u32 v3, s{s_lds}, v3")
    k.e("v_lshlrev_b32 v6, 5, v6")
    k.e(f"s_add_u32 s75, s{s_lds}, {UROFF + 480}")
    k.e("v_sub_u32 v4, s75, v6")
    k.e("v_lshlrev_b32 v5, 3, v7")
    k.e("v_sub_u32 v5, v4, v5")
    k.e("v_add_u32 v5, 24, v5")
    k.e("v_lshl_add_u32 v4, v7, 4, v4")
    k.e("v_and_b32 v2, 1, v7")
    k.e("v_lshl_add_u32 v6, v2, 9, v6")
    k.e("v_lshrrev_b32 v7, 1, v7")
    k.e("v_lshl_add_u32 v6, v7, 4, v6")
    for i in range(32): k.e(f"v_mov_b32 v{C_ACC+i}, 0")
    k.e(f"s_waitcnt vmcnt({younger}) lgkmcnt(0)")

def conv_reads(buf, roff):
    fa = C_FR + 64*buf; fb = fa + 32
    L = []
    for i in range(8):
        L.append(f"ds_read_b64 v[{fa+4*i}:{fa+4*i+1}], v3 offset:{512*i + roff}")
        L.append(f"ds_read_b64 v[{fa+4*i+2}:{fa+4*i+3}], v3 offset:{512*i + roff + 8}")
        L.append(f"ds_read_b128 v[{fb+4*i}:{fb+4*i+3}], v4 offset:{512*(7-i) + roff}")
    return L

def conv_mfmas(buf):
    fa = C_FR + 64*buf; fb = fa + 32
    L = []
    for a in range(8):
        for c in range(a, 8):
            y = C_ACC + 4*c
            L.append(f"v_mfma_f32_16x16x32_bf16 v[{y}:{y+3}], v[{fa+4*a}:{fa+4*a+3}], v[{fb+4*(c-a)}:{fb+4*(c-a)+3}], v[{y}:{y+3}]")
    return L

def interleave(main, fill, start=0):
    out = []; fi = 0
    for i, x in enumerate(main):
        out.append(x)
        if i >= start and fi < len(fill):
            out.append(fill[fi]); fi += 1
    out += fill[fi:]
    return out

def conv_main(k, tag):
    for x in conv_reads(0, 0): k.e(x)
    k.e("s_mov_b32 s75, 0")
    if flag("CAL", -1) >= 0:
        k.e(".p2align 6")
        for _ in range(flag("CAL")): k.e("s_nop 0")
    k.e(f"L_conv_loop_{tag}:")
    k.e("s_waitcnt lgkmcnt(0)")
    for x in interleave(conv_mfmas(0), conv_reads(1, 64)): k.e(x)
    k.e("s_waitcnt lgkmcnt(0)")
    for x in interleave(conv_mfmas(1), conv_reads(0, 128)): k.e(x)
    k.e("v_add_u32 v3, 128, v3")
    k.e("v_add_u32 v4, 128, v4")
    k.e("s_add_u32 s75, s75, 1")
    k.e("s_cmp_lt_u32 s75, 4")
    k.e(f"s_cbranch_scc1 L_conv_loop_{tag}")

def conv_epilogue(k, s_ch, sc=""):
    U = C_FR + 64
    T = C_FR + 80
    O = C_FR + 96
    k.e("s_waitcnt lgkmcnt(0)")
    for c in range(8):
        k.e(f"ds_read_b64 v[{U+2*c}:{U+2*c+1}], v5 offset:{512*(7-c)}")
    k.e(f"s_bitcmp1_b32 s{s_ch}, 0")
    k.e("s_lshl_b32 s73, s74, 16")
    k.e("s_and_b32 s74, s74, 0xffff0000")
    k.e(f"s_bitcmp1_b32 s{s_ch}, 0")
    k.e("s_cselect_b32 s74, s74, s73")
    for c in range(8):
        k.e(f"s_waitcnt lgkmcnt({7-c})")
        y = C_ACC + 4*c
        t = T + 4*(c & 1)
        k.e(f"v_and_b32 v{t}, 0xffff0000, v{U+2*c+1}")
        k.e(f"v_lshlrev_b32 v{t+1}, 16, v{U+2*c+1}")
        k.e(f"v_and_b32 v{t+2}, 0xffff0000, v{U+2*c}")
        k.e(f"v_lshlrev_b32 v{t+3}, 16, v{U+2*c}")
        for r in range(4):
            k.e(f"v_fmac_f32 v{y+r}, s74, v{t+r}")
        o = O + 4*(c >> 1) + 2*(c & 1)
        k.e(f"v_cvt_pk_bf16_f32 v{o}, v{y}, v{y+1}")
        k.e(f"v_cvt_pk_bf16_f32 v{o+1}, v{y+2}, v{y+3}")
        if c & 1:
            o = O + 4*(c >> 1)
            k.e(f"v_permlane16_swap_b32 v{o}, v{o+2}")
            k.e(f"v_permlane16_swap_b32 v{o+1}, v{o+3}")
            k.e(f"buffer_store_dwordx4 v[{o}:{o+3}], v6, s[68:71], s72 offen offset:{512*(c-1)}{sc}")

def conv_kernel():
    k = Kern("conv_kernel")
    stamp_begin(k)
    k.e("s_cmp_ge_u32 s2, 160")
    k.e("s_cbranch_scc1 L_conv_end")
    load_ptrs(k)
    k.e("v_lshrrev_b32 v1, 6, v0")
    k.e("v_readfirstlane_b32 s3, v1")
    k.e("v_and_b32 v0, 63, v0")
    k.e("s_lshl_b32 s4, s2, 2")
    k.e("s_add_u32 s4, s4, s3")
    k.e(f"s_mul_i32 s5, s3, {CONV_LDS}")
    k.e("s_waitcnt lgkmcnt(0)")
    conv_setup(k, 4, 5)
    conv_stage(k, 4, 5, 0)
    stamp_mid(k, 0)
    conv_main(k, "a")
    stamp_mid(k, 1)
    conv_epilogue(k, 4)
    finish(k, 2)
    k.e("L_conv_end:")
    k.e("s_endpgm")
    return k


def conv2_setup(k, s_ch):
    k.e(f"s_lshl_b32 s72, s{s_ch}, 12")
    k.e(f"s_add_u32 s60, s{P_SK}, s72")
    k.e(f"s_addc_u32 s61, s{P_SK+1}, 0")
    k.e(f"s_sub_u32 s62, {D * S * 2}, s72")
    k.e("s_mov_b32 s63, 0x20000")
    srd(k, 64, P_WS, NB_T, UR_OFF)
    srd(k, 68, P_WS, NB_T, YT_OFF)
    k.e(f"s_and_b32 s73, s{s_ch}, 0xfffe")
    k.e("s_lshl_b32 s73, s73, 1")
    k.e(f"s_load_dword s74, s[{P_D}:{P_D+1}], s73")
    k.e("v_lshlrev_b32 v1, 4, v0")
    k.e("v_and_b32 v2, 31, v0")
    k.e("v_lshlrev_b32 v2, 7, v2")
    k.e("buffer_load_dword v41, v2, s[60:63], 0 offen")
    k.e("v_and_b32 v6, 15, v0")
    k.e("v_lshrrev_b32 v7, 4, v0")
    k.e("v_add_u32 v2, v6, v7")
    k.e("v_lshlrev_b32 v2, 1, v2")
    k.e("v_subrev_u32 v2, 32, v2")
    k.e("buffer_load_ushort v40, v2, s[60:63], 0 offen")
    k.e(f"s_mul_i32 s72, s{s_ch}, {RS}")

def conv2_addr(k, s_lds):
    k.e(f"v_mul_u32_u24 v42, {CP}, v7")
    k.e("v_lshl_add_u32 v42, v6, 1, v42")
    k.e(f"v_add_u32 v42, s{s_lds}, v42")
    k.e("v_lshlrev_b32 v43, 3, v0")
    k.e(f"v_add_u32 v43, s{s_lds}, v43")
    k.e("v_add_u32 v3, 1, v6")
    k.e("v_and_b32 v4, 3, v3")
    k.e(f"v_mul_u32_u24 v4, {CP}, v4")
    k.e("v_and_b32 v3, 0x1c, v3")
    k.e("v_lshl_add_u32 v3, v3, 1, v4")
    k.e("v_lshl_add_u32 v3, v7, 4, v3")
    k.e(f"v_add_u32 v3, s{s_lds}, v3")
    k.e("v_lshlrev_b32 v6, 5, v6")
    k.e(f"s_add_u32 s75, s{s_lds}, {UROFF + 480}")
    k.e("v_sub_u32 v4, s75, v6")
    k.e("v_lshlrev_b32 v5, 3, v7")
    k.e("v_sub_u32 v5, v4, v5")
    k.e("v_add_u32 v5, 24, v5")
    k.e("v_lshl_add_u32 v4, v7, 4, v4")
    k.e("v_and_b32 v2, 1, v7")
    k.e("v_lshl_add_u32 v6, v2, 9, v6")
    k.e("v_lshrrev_b32 v7, 1, v7")
    k.e("v_lshl_add_u32 v6, v7, 4, v6")
    for i in range(32): k.e(f"v_mov_b32 v{C_ACC+i}, 0")

def conv2_dma(k, s_lds):
    for s in (0, 2, 1, 3):
        k.e(f"s_add_u32 m0, s{s_lds}, {s*CP + 32}")
        k.e(f"s_mov_b32 s75, {2*s}")
        for c in range(4):
            k.e(f"buffer_load_dwordx4 v1, s[60:63], s75 offen offset:{1024*c} lds")

def conv2_fix(k):
    k.e("ds_write_b16 v42, v40")
    k.e(f"ds_write_b64 v43, v[{C_ACC}:{C_ACC+1}] offset:{UROFF + 4096}")
```

```python
from common import *
import aux

NSTAGE = 10
SLOT = 32768
WPART = 16384
REL_LDS = 4 * SLOT
K1_LDS = REL_LDS + 10240

class Vm:
    def __init__(self): self.n = 0
    def op(self): self.n += 1; return self.n - 1
    def wait(self, idx): return min(63, self.n - idx - 1)

def is_vmem(x): return x.startswith(("buffer_", "global_"))

def loader_setup(k, s_mt, s_ft, s_lw):
    srd(k, 64, P_Q, NB_X)
    srd(k, 68, P_W1, NB_W)
    XA, WA = 240, 244
    k.e("v_lshrrev_b32 v10, 3, v0")
    k.e(f"s_lshl_b32 s72, s{s_lw}, 5")
    k.e("v_add_u32 v10, s72, v10")
    k.e("v_mul_u32_u24 v10, 1280, v10")
    k.e("v_and_b32 v11, 7, v0")
    k.e("v_lshrrev_b32 v12, 4, v0")
    k.e("v_xor_b32 v13, v11, v12")
    k.e("v_xor_b32 v14, 4, v13")
    k.e(f"v_lshl_add_u32 v{XA}, v13, 4, v10")
    k.e(f"v_lshl_add_u32 v{XA+1}, v14, 4, v10")
    k.e(f"v_add_u32 v{XA+2}, {2*(10240-1024)}, v{XA}")
    k.e(f"v_add_u32 v{XA+3}, {3*(10240-1024)}, v{XA+1}")
    k.e(f"v_add_u32 v{XA+1}, {10240-1024}, v{XA+1}")
    k.e(f"s_lshl_b32 s72, s{s_lw}, 4")
    k.e("v_add_u32 v10, s72, v12")
    k.e("v_mul_u32_u24 v10, 3456, v10")
    k.e("v_and_b32 v11, 1, v0")
    k.e("v_lshl_add_u32 v10, v11, 4, v10")
    k.e("v_bfe_u32 v11, v0, 1, 3")
    k.e("v_xor_b32 v13, v11, v12")
    k.e("v_xor_b32 v14, 4, v13")
    k.e(f"v_lshl_add_u32 v{WA}, v13, 5, v10")
    k.e(f"v_lshl_add_u32 v{WA+2}, v14, 5, v10")
    k.e(f"s_cmp_eq_u32 s{s_ft}, 13")
    k.e("s_cselect_b32 s72, 0x40000000, 0")
    k.e("v_mov_b32 v15, s72")
    k.e("v_cmp_lt_u32 vcc, 3, v13")
    k.e("v_cndmask_b32 v16, 0, v15, vcc")
    k.e("v_sub_u32 v17, v15, v16")
    k.e(f"v_add_u32 v{WA}, v{WA}, v16")
    k.e(f"v_add_u32 v{WA+2}, v{WA+2}, v17")
    st = 4 * 3456 - 1024
    k.e(f"v_add_u32 v{WA+1}, {st}, v{WA}")
    k.e(f"v_add_u32 v{WA+3}, {3*st}, v{WA+2}")
    k.e(f"v_add_u32 v{WA+2}, {2*st}, v{WA+2}")
    k.e(f"s_mul_i32 s73, s{s_mt}, {128*1280}")
    k.e(f"s_lshl_b32 s74, s{s_ft}, 8")
    k.e(f"s_lshl_b32 s75, s{s_lw}, 12")
    if flag("ROT"):
        k.e("s_and_b32 s76, s5, 3")
        k.e(f"s_mul_i32 s76, s76, {flag('RA', 3)}")
        k.e("s_lshr_b32 s77, s5, 2")
        k.e(f"s_mul_i32 s77, s77, {flag('RB', 1)}")
        k.e("s_add_u32 s76, s76, s77")
        if flag("ROT") == 2:
            k.e("s_and_b32 s76, s5, 3")
            k.e("s_mul_i32 s76, s76, 5")
            k.e("s_add_u32 s76, s76, 1")
            k.e("s_lshr_b32 s76, s76, 1")
            k.e("s_lshr_b32 s77, s5, 2")
            k.e("s_mul_i32 s77, s77, 3")
            k.e("s_add_u32 s76, s76, s77")
            k.e("s_and_b32 s77, s4, 6")
            k.e("s_lshr_b32 s77, 0x64, s77")
            k.e("s_and_b32 s77, s77, 3")
            k.e("s_add_u32 s76, s76, s77")
            k.e("s_and_b32 s77, s4, 1")
            k.e("s_add_u32 s76, s76, s77")
        if flag("ROT") == 4:
            k.e("s_and_b32 s76, s5, 3")
            k.e("s_lshr_b32 s77, s5, 2")
            k.e("s_add_u32 s76, s76, s77")
            G = flag("RG", 2)
            if G == 3:
                k.e("s_mul_i32 s77, s76, 21846")
                k.e("s_lshr_b32 s77, s77, 16")
                k.e("s_mul_i32 s77, s77, 3")
                k.e("s_sub_u32 s76, s76, s77")
            else:
                k.e(f"s_and_b32 s76, s76, {G-1}")
            k.e(f"s_mul_i32 s76, s76, {flag('RA', 5)}")
            k.e(f"s_mul_i32 s77, s4, {flag('RX', 5)}")
            k.e("s_lshr_b32 s77, s77, 3")
            k.e("s_add_u32 s76, s76, s77")
        if flag("ROT") == 3:
            k.e("s_and_b32 s76, s5, 1")
            k.e("s_mul_i32 s76, s76, 5")
            k.e("s_lshr_b32 s77, s5, 1")
            k.e("s_mul_i32 s77, s77, 3")
            k.e("s_add_u32 s76, s76, s77")
            k.e("s_mul_i32 s77, s4, 5")
            k.e("s_lshr_b32 s77, s77, 3")
            k.e("s_add_u32 s76, s76, s77")
        k.e("s_mul_i32 s77, s76, 6554")
        k.e("s_lshr_b32 s77, s77, 16")
        k.e("s_mul_i32 s77, s77, 10")
        k.e("s_sub_u32 s76, s76, s77")
        k.e("s_lshl_b32 s77, s76, 7")
        k.e("s_add_u32 s73, s73, s77")
        k.e(f"s_mov_b32 s79, {64*3456}")
        k.e("s_movk_i32 s80, 128")
        k.e("s_mul_i32 s77, s76, s79")
        k.e("s_add_u32 s74, s74, s77")

def dma(stage):
    XA, WA = 240, 244
    slot = (stage % 4) * SLOT
    L = [f"s_add_u32 m0, s75, {slot}"]
    for i in range(4):
        L.append(f"buffer_load_dwordx4 v{XA+i}, s[64:67], s73 offen offset:{1024*i} lds")
    L.append(f"s_add_u32 m0, s75, {slot + WPART}")
    for i in range(4):
        L.append(f"buffer_load_dwordx4 v{WA+i}, s[68:71], s74 offen offset:{1024*i} lds")
    if flag("ROT"):
        L.append("s_add_u32 s76, s76, 1")
        L.append("s_cmp_eq_u32 s76, 10")
        L.append("s_cselect_b32 s76, 0, s76")
        L.append(f"s_cselect_b32 s72, {(-9*128) & 0xffffffff:#x}, s80")
        L.append(f"s_cselect_b32 s77, {(-9*64*3456) & 0xffffffff:#x}, s79")
        L.append("s_add_u32 s73, s73, s72")
        L.append("s_add_u32 s74, s74, s77")
    else:
        L.append("s_add_u32 s73, s73, 128")
        L.append(f"s_add_u32 s74, s74, {64*3456}")
    return L

class Rec:
    def __init__(self): self.lines = []
    def e(self, s): self.lines.append(s.strip())
    def c(self, s): pass

def split_aux(emit):
    r = Rec(); emit(r)
    idx = next(i for i, x in enumerate(r.lines) if x.startswith("s_waitcnt vmcnt"))
    loads = r.lines[:idx]
    comp = [x for x in r.lines[idx:] if not x.startswith("s_waitcnt vmcnt")]
    return loads, comp

def loader_body(k, auxparts):
    AL = flag("AL", 3)
    vm = Vm(); last = {}
    for s in range(2):
        for _ in range(8): last[s] = vm.op()
    def put(x):
        k.e(x)
        return vm.op() if is_vmem(x) else None
    loads, comp = auxparts if auxparts else ([], [])
    if flag("NOAUX"): loads, comp = [], []
    if AL == 1:
        for x in loads: put(x)
    first = AL + 1
    nch = max(1, 9 - first)
    per = (len(comp) + nch - 1) // nch if comp else 0
    ci = 0
    for s in range(NSTAGE):
        k.e(f"s_waitcnt vmcnt({vm.wait(last[s])})")
        k.e("s_barrier")
        if s == NSTAGE - 1: break
        stages = [2, 3] if s == 0 else ([s + 3] if s + 3 < NSTAGE else [])
        chunk = comp[ci:ci + per] if s >= first else []
        ci += len(chunk)
        groups = []; cur = []; masked = False
        for x in chunk:
            cur.append(x)
            if "saveexec" in x: masked = True
            if x.startswith("s_mov_b64 exec"): masked = False
            if not masked:
                groups.append(cur); cur = []
        if cur:
            while True:
                x = comp[ci]; ci += 1; cur.append(x)
                if x.startswith("s_mov_b64 exec"): break
            groups.append(cur)
        gper = (len(groups) + 7) // 8
        gi = 0
        for st in stages:
            for x in dma(st):
                r = put(x)
                if r is not None:
                    last[st] = r
                    for g in groups[gi:gi + gper]:
                        for y in g: put(y)
                    gi += gper
            if st == AL:
                for x in loads: put(x)
        for g in groups[gi:]:
            for y in g: put(y)
    if AL == 9:
        k.e("s_barrier")
        k.e("s_waitcnt vmcnt(0)")
    for y in comp[ci:]: put(y)

def g1_compute(k, s_mt, s_ft, s_wave, lbl_end):
    srd(k, 48, P_WS, 32 * NT * 4096, H_OFF)
    k.e(f"s_and_b32 s52, s{s_wave}, 1")
    k.e(f"s_lshr_b32 s53, s{s_wave}, 1")
    k.e(f"s_lshl_b32 s57, s{s_wave}, 12")
    BA, AA = 10, 14
    k.e("v_and_b32 v18, 15, v0")
    k.e("v_lshrrev_b32 v19, 4, v0")
    k.e("v_lshrrev_b32 v20, 1, v18")
    k.e("v_xor_b32 v20, v20, v19")
    k.e("v_lshlrev_b32 v20, 4, v20")
    k.e("v_lshl_add_u32 v20, v18, 7, v20")
    k.e("s_lshl_b32 s58, s52, 13")
    k.e("s_lshl_b32 s59, s53, 12")
    k.e("s_add_u32 s58, s58, s59")
    k.e(f"v_add_u32 v{BA}, s58, v20")
    k.e(f"v_xor_b32 v{BA+1}, 64, v{BA}")
    k.e(f"v_xor_b32 v{BA+2}, 0x1000, v{BA}")
    k.e(f"v_xor_b32 v{BA+3}, 0x1040, v{BA}")
    k.e("v_lshrrev_b32 v20, 2, v18")
    k.e("v_and_b32 v21, 3, v18")
    k.e("v_lshl_add_u32 v22, v19, 3, v20")
    k.e("v_lshlrev_b32 v22, 8, v22")
    k.e("v_lshl_add_u32 v22, v21, 3, v22")
    k.e(f"v_add_u32 v22, {WPART}, v22")
    k.e("v_and_b32 v23, 1, v19")
    k.e("v_lshl_add_u32 v23, v23, 2, v20")
    k.e("s_lshl_b32 s58, s53, 2")
    k.e("s_lshl_b32 s59, s52, 1")
    k.e("s_add_u32 s58, s58, s59")
    k.e("v_xor_b32 v23, s58, v23")
    k.e(f"v_lshl_add_u32 v{AA}, v23, 5, v22")
    for fb in range(1, 4):
        k.e(f"v_xor_b32 v{AA+fb}, {32*fb}, v{AA}")
    ONE = 20
    for i in range(4): k.e(f"v_mov_b32 v{ONE+i}, 0x3f803f80")
    ACC, AR, AC, FR = 24, 88, 96, 112
    def reads(stage, ks, buf):
        so = (stage % 2) * SLOT
        L = []
        fa = FR + 32 * buf; fb_ = fa + 16
        for i in range(4):
            L.append(f"ds_read_b128 v[{fb_+4*i}:{fb_+4*i+3}], v{BA + 2*(i>>1) + ks} offset:{so + 2048*(i&1)}")
            L.append(f"ds_read_b64_tr_b16 v[{fa+4*i}:{fa+4*i+1}], v{AA+i} offset:{so + 8192*ks}")
            L.append(f"ds_read_b64_tr_b16 v[{fa+4*i+2}:{fa+4*i+3}], v{AA+i} offset:{so + 8192*ks + 1024}")
        if flag("NOREAD"): return L[:1]
        return L
    def mfmas(buf, first=False):
        fa = FR + 32 * buf; fb_ = fa + 16
        L = []
        def mm(d, a, b):
            c = "0" if first else f"v[{d}:{d+3}]"
            L.append(f"v_mfma_f32_16x16x32_bf16 v[{d}:{d+3}], v[{a}:{a+3}], v[{b}:{b+3}], {c}")
        for f in range(4):
            for m in range(4):
                mm(ACC + 16*f + 4*m, fa + 4*f, fb_ + 4*m)
        for i in range(2):
            mm(AR + 4*i, ONE, fb_ + 4*i)
            mm(AC + 4*i, fa + 4*i, ONE)
        if flag("NOMFMA"): return L[:1]
        if flag("NOSUM"): return L[:16]
        return L
    from conv import interleave
    for s in range(NSTAGE):
        k.c(f"---- stage {s}")
        k.e("s_waitcnt lgkmcnt(0)")
        k.e("s_barrier")
        if s == 0: stamp_mid(k, 0)
        if s == 3: stamp_mid(k, 1)
        if s == 6: stamp_mid(k, 2)
        tog = []
        if s > 0 and s % 2 == 0:
            tog = [f"v_xor_b32 v{r}, 0x10000, v{r}" for r in list(range(BA, BA+4)) + list(range(AA, AA+4))]
        if s == 0:
            for x in reads(s, 0, 0): k.e(x)
        else:
            for x in interleave(mfmas(1), reads(s, 0, 0)): k.e(x)
        k.e("s_waitcnt lgkmcnt(0)")
        nxt = []
        if (s + 1) % 2 == 0 and s + 1 < NSTAGE:
            nxt = [f"v_xor_b32 v{r}, 0x10000, v{r}" for r in list(range(BA, BA+4)) + list(range(AA, AA+4))]
        for x in interleave(mfmas(0, first=(s == 0)), reads(s, 1, 1) + nxt): k.e(x)
    k.e("s_waitcnt lgkmcnt(0)")
    for x in mfmas(1): k.e(x)
    stamp_mid(k, 3)
    k.c("exchange row/col sums")
    k.e("v_lshlrev_b32 v2, 4, v0")
    k.e("v_add_u32 v3, s57, v2")
    k.e(f"v_mov_b32 v{AR+1}, v{AR+4}")
    k.e(f"ds_write_b64 v3, v[{AR}:{AR+1}]")
    k.e(f"ds_write_b128 v3, v[{AC}:{AC+3}] offset:1024")
    k.e(f"ds_write_b128 v3, v[{AC+4}:{AC+7}] offset:2048")
    k.e("v_xor_b32 v4, 0x2000, v3")
    k.e("v_xor_b32 v5, 0x1000, v3")
    k.e("s_waitcnt lgkmcnt(0)")
    k.e("s_barrier")
    k.e(f"ds_read_b64 v[{AR+2}:{AR+3}], v4")
    k.e(f"ds_read_b128 v[{AC+8}:{AC+11}], v5 offset:1024")
    k.e(f"ds_read_b128 v[{AC+12}:{AC+15}], v5 offset:2048")
    k.e(f"s_lshl_b32 s58, s{s_ft}, 2")
    k.e("s_lshl_b32 s59, s53, 1")
    k.e("s_add_u32 s58, s58, s59")
    k.e(f"s_cmp_ge_u32 s58, {NT}")
    k.e(f"s_cbranch_scc1 {lbl_end}")
    k.e(f"s_lshl_b32 s59, s{s_mt}, 1")
    k.e("s_add_u32 s59, s59, s52")
    k.e(f"s_mul_i32 s59, s59, {NT}")
    k.e("s_add_u32 s58, s58, s59")
    k.e("s_lshl_b32 s58, s58, 12")
    k.e("s_lshl_b32 s60, s52, 12")
    k.e("s_add_u32 s61, s58, s60")
    k.e("s_xor_b32 s60, s60, 0x1000")
    k.e("s_add_u32 s62, s58, s60")
    k.e("s_lshl_b32 s60, s53, 11")
    k.e("v_add_u32 v6, s60, v2")
    k.e("v_xor_b32 v7, 0x800, v6")
    k.e("s_waitcnt lgkmcnt(0)")
    NM = FR
    for m in range(4):
        k.e(f"v_mul_f32 v{AR+m}, {-1.0/D!r}, v{AR+m}")
    k.e(f"v_cvt_pk_bf16_f32 v{AR+4}, v{AR}, v{AR+1}")
    k.e(f"v_cvt_pk_bf16_f32 v{AR+5}, v{AR+2}, v{AR+3}")
    for m in range(4):
        src = AR + 4 + (m >> 1)
        for h in range(2):
            if m & 1: k.e(f"v_and_b32 v{NM+2*m+h}, 0xffff0000, v{src}")
            else:     k.e(f"v_lshlrev_b32 v{NM+2*m+h}, 16, v{src}")
    OUT = FR + 8
    n = 0
    for p in range(2):
        for m in range(4):
            o = OUT + 4 * (n % 4); n += 1
            for ff in range(2):
                f = 2*p + ff
                a = ACC + 16*f + 4*m
                for h in range(2):
                    k.e(f"v_pk_fma_f32 v[{a+2*h}:{a+2*h+1}], v[{AC+4*f+2*h}:{AC+4*f+2*h+1}], v[{NM+2*m}:{NM+2*m+1}], v[{a+2*h}:{a+2*h+1}]")
                for h in range(2):
                    k.e(f"v_cvt_pk_bf16_f32 v{o+2*ff+h}, v{a+2*h}, v{a+2*h+1}")
            for i in range(4):
                k.e(f"v_pk_max_i16 v{o+i}, v{o+i}, 0")
            k.e(f"buffer_store_dwordx4 v[{o}:{o+3}], v{6+(m>>1)}, s[48:51], s{61+p} offen offset:{1024*(m&1)}")

def l2_prefetch(k):
    srd(k, 64, P_Q, NB_X)
    srd(k, 68, P_W1, NB_W)
    k.e("s_lshr_b32 s72, s5, 2")
    k.e("s_add_u32 s72, s72, 3")
    k.e("s_lshl_b32 s72, s72, 7")
    k.e(f"s_mul_i32 s73, s6, {128*1280}")
    k.e("s_add_u32 s72, s72, s73")
    k.e("s_and_b32 s73, s3, 1")
    k.e(f"s_mul_i32 s73, s73, {64*1280}")
    k.e("s_add_u32 s72, s72, s73")
    k.e("v_mul_u32_u24 v2, 1280, v0")
    k.e("s_and_b32 s74, s5, 3")
    k.e("s_mul_i32 s74, s74, 112")
    k.e("s_mul_i32 s75, s3, 28")
    k.e("s_add_u32 s74, s74, s75")
    k.e("s_add_u32 s74, s74, 192")
    k.e("s_mul_i32 s74, s74, 3456")
    k.e("s_lshl_b32 s75, s7, 8")
    k.e("s_add_u32 s74, s74, s75")
    k.e("v_min_u32 v3, 55, v0")
    k.e("v_lshrrev_b32 v4, 1, v3")
    k.e("v_mul_u32_u24 v4, 3456, v4")
    k.e("v_and_b32 v3, 1, v3")
    k.e("v_lshl_add_u32 v4, v3, 7, v4")
    if flag("PFD"): k.e(f"s_sleep {flag('PFD')}")
    k.e("buffer_load_dword v200, v4, s[68:71], s74 offen")
    k.e("s_cmp_ge_u32 s3, 2")
    k.e("s_cbranch_scc1 L_k1_nopfx")
    k.e("buffer_load_dword v201, v2, s[64:67], s72 offen")
    k.e("L_k1_nopfx:")

def k1_kernel():
    k = Kern("k1_kernel")
    stamp_begin(k)
    k.e("s_cmp_ge_u32 s2, 256")
    k.e("s_cbranch_scc1 L_k1_end")
    load_ptrs(k)
    k.e("v_lshrrev_b32 v1, 6, v0")
    k.e("v_readfirstlane_b32 s3, v1")
    k.e("v_and_b32 v0, 63, v0")
    k.e("s_and_b32 s4, s2, 7")
    k.e("s_lshr_b32 s5, s2, 3")
    k.e("s_lshr_b32 s6, s4, 1")
    k.e("s_lshl_b32 s6, s6, 2")
    k.e("s_and_b32 s7, s5, 3")
    k.e("s_add_u32 s6, s6, s7")
    k.e("s_and_b32 s7, s4, 1")
    k.e("s_mul_i32 s7, s7, 7")
    k.e("s_lshr_b32 s8, s5, 2")
    k.e("s_add_u32 s7, s7, s8")
    k.e("s_cmp_ge_u32 s2, 224")
    k.e("s_cbranch_scc1 L_k1_free")
    k.e("s_cmp_lt_u32 s3, 4")
    k.e("s_cbranch_scc1 L_k1_mfma")
    k.e("s_sub_u32 s9, s3, 4")
    if flag("PL"): k.e(f"s_setprio {flag('PL')}")
    k.e("s_waitcnt lgkmcnt(0)")
    loader_setup(k, 6, 7, 9)
    for s in range(2):
        for x in dma(s): k.e(x)
    k.e("s_cmp_eq_u32 s9, 0")
    k.e("s_cbranch_scc1 L_k1_stats")
    k.e("s_cmp_eq_u32 s9, 1")
    k.e("s_cbranch_scc1 L_k1_rel")
    k.e("s_cmp_eq_u32 s9, 2")
    k.e("s_cbranch_scc1 L_k1_plain")
    k.e("s_sub_u32 s10, s2, 64")
    k.e("s_cmp_lt_u32 s10, 32")
    k.e("s_cbranch_scc0 L_k1_w7")
    k.e("s_add_u32 s2, s10, 224")
    k.e("L_k1_stats:")
    k.e("s_and_b32 s10, s2, 6")
    k.e("s_lshl_b32 s10, s10, 8")
    k.e("s_lshr_b32 s11, s2, 3")
    k.e("s_lshl_b32 s11, s11, 4")
    k.e("s_add_u32 s10, s10, s11")
    k.e("s_and_b32 s11, s2, 1")
    k.e("s_lshl_b32 s11, s11, 3")
    k.e("s_add_u32 s78, s10, s11")
    loader_body(k, split_aux(lambda r: aux.emit_stats(r, 78)))
    finish(k, 0)
    k.e("L_k1_w7:")
    k.e("s_sub_u32 s10, s2, 96")
    k.e("s_cmp_lt_u32 s10, 3")
    k.e("s_cbranch_scc0 L_k1_plain")
    srd(k, 40, P_WS, 4096, FL_OFF)
    k.e("s_lshl_b32 s10, s10, 10")
    k.e("v_lshlrev_b32 v1, 4, v0")
    for i in range(4): k.e(f"v_mov_b32 v{4+i}, 0")
    k.e("buffer_store_dwordx4 v[4:7], v1, s[40:43], s10 offen")
    k.e("s_waitcnt vmcnt(0)")
    k.e("L_k1_plain:")
    loader_body(k, None)
    finish(k, 0)
    k.e("L_k1_rel:")
    k.e("s_cmp_ge_u32 s2, 216")
    k.e("s_cbranch_scc1 L_k1_plain")
    k.e(f"s_mov_b32 s78, {REL_LDS}")
    loader_body(k, split_aux(lambda r: aux.emit_relayout(r, 2, 78)))
    finish(k, 0)
    k.e("L_k1_free:")
    if flag("NOFREE"): k.e("s_endpgm")
    k.e("s_sub_u32 s78, s2, 224")
    k.e("s_lshl_b32 s78, s78, 3")
    k.e("s_add_u32 s78, s78, s3")
    k.e("s_lshl_b32 s79, s3, 13")
    k.e("s_waitcnt lgkmcnt(0)")
    k.e("L_k1_prep:")
    aux.emit_prep(k, 78, 79)
    k.e("s_cmp_ge_u32 s78, 256")
    k.e("s_cbranch_scc1 L_k1_prepdone")
    k.e("s_cmp_ge_u32 s3, 2")
    k.e("s_cbranch_scc1 L_k1_prepdone")
    k.e("s_sub_u32 s78, s2, 224")
    k.e("s_lshl_b32 s78, s78, 1")
    k.e("s_add_u32 s78, s78, s3")
    k.e("s_add_u32 s78, s78, 256")
    k.e("s_waitcnt vmcnt(0)")
    k.e("s_branch L_k1_prep")
    k.e("L_k1_prepdone:")
    finish(k, 2)
    k.e("L_k1_mfma:")
    k.e("s_waitcnt lgkmcnt(0)")
    if flag("PFL2"):
        l2_prefetch(k)
    g1_compute(k, 6, 7, 3, "L_k1_end")
    finish(k, 1)
    k.e("L_k1_end:")
    k.e("s_endpgm")
    return k
```

```python
from common import *
import aux, conv, k1
from conv import interleave, CONV_LDS
from k1 import Vm, is_vmem, SLOT, WPART, NSTAGE, Rec

NAME = "recurrent_scan__ssm_conv_h3__dense_activation_relu__prompt_kernel"
SC1 = " sc1"
OOB = 0x40000000
RB0 = 65536
EA = 131072
TOP = RB0 + 4 * CONV_LDS
RLB = 135168
CNT = 163776
LDS_BYTES = 163840
YCNT, YOK, AUXOK, UOK, PROG, PA, PB = 0, 4, 12, 16, 20, 32, 48
XO, YO, SO = 0, 3072, 6144
HSH = 7; YSH = flag("YSH", 3)
FA, EP, FB, FH = 0, 40960, 45056, 77824
FY = FH + (1024 << 7)
FL_BYTES = FY + (640 << 7)
TAG, FSRD = 90, 92
SPIN_MAX = 0x20000
NSTEP, NH, NW = 14, 4, 5
G_ACC, G_H = 8, 88
W_SL = [176, 196, 216, 236, 156]
ST = flag("ST", 0)
def stamp(k, setno, i):
    if ST == setno: stamp_mid(k, i)

def make_tag(k):
    k.e(f"s_mul_i32 s{TAG}, s{TAG}, 1664525")
    k.e(f"s_add_u32 s{TAG}, s{TAG}, 1013904223")
    k.e(f"s_mul_i32 s{TAG+1}, s{TAG+1}, 22695477")
    k.e(f"s_add_u32 s{TAG+1}, s{TAG+1}, 1")

def publish(k, s_off, va):
    k.e(f"v_mov_b32 v{va}, s{TAG}")
    k.e(f"v_mov_b32 v{va+1}, s{TAG+1}")
    k.e(f"v_mov_b32 v{va+2}, 0")
    k.e("s_mov_b64 exec, 1")
    k.e(f"buffer_store_dwordx2 v[{va}:{va+1}], v{va+2}, s[{FSRD}:{FSRD+3}], s{s_off} offen{SC1}")
    k.e("s_mov_b64 exec, -1")

def poll(k, lbl, vd, voff, s_off, s_cnt, nlanes, sleep=4, preloaded=False):
    so = f"s{s_off}" if s_off is not None else "0"
    k.e(f"s_mov_b32 s{s_cnt}, 0")
    if nlanes < 64: k.e(f"s_bfm_b64 exec, {nlanes}, 0")
    if preloaded: k.e(f"s_branch {lbl}_chk")
    k.e(f"{lbl}:")
    k.e(f"buffer_load_dwordx2 v[{vd}:{vd+1}], v{voff}, s[{FSRD}:{FSRD+3}], {so} offen{SC1}")
    k.e("s_waitcnt vmcnt(0)")
    k.e(f"{lbl}_chk:")
    k.e(f"v_cmp_ne_u64 vcc, s[{TAG}:{TAG+1}], v[{vd}:{vd+1}]")
    k.e("s_and_b64 exec, exec, vcc")
    k.e(f"s_cbranch_scc0 {lbl}_ok")
    k.e(f"s_sleep {sleep}")
    k.e(f"s_add_u32 s{s_cnt}, s{s_cnt}, 1")
    k.e(f"s_cmp_lt_u32 s{s_cnt}, {SPIN_MAX:#x}")
    k.e(f"s_cbranch_scc1 {lbl}")
    k.e(f"{lbl}_ok:")
    k.e("s_mov_b64 exec, -1")

def lds_wait(k, lbl, vaddr, vtmp, off, s_tmp, sleep=2):
    k.e(f"{lbl}:")
    k.e(f"ds_read_b32 v{vtmp}, v{vaddr} offset:{off}")
    k.e("s_waitcnt lgkmcnt(0)")
    k.e(f"v_readfirstlane_b32 s{s_tmp}, v{vtmp}")
    k.e(f"s_cmp_lg_u32 s{s_tmp}, 0")
    k.e(f"s_cbranch_scc1 {lbl}_ok")
    k.e(f"s_sleep {sleep}")
    k.e(f"s_branch {lbl}")
    k.e(f"{lbl}_ok:")

def prog_write(vaddr, vtmp, val):
    return [f"v_mov_b32 v{vtmp}, {val}", f"s_mov_b64 exec, 1\nds_write_b32 v{vaddr}, v{vtmp}\ns_mov_b64 exec, -1"]
def prog_min(vd, s_tmp):
    return [f"v_min3_u32 v{vd}, v{vd}, v{vd+1}, v{vd+2}", f"v_min_u32 v{vd}, v{vd}, v{vd+3}", f"v_readfirstlane_b32 s{s_tmp}, v{vd}"]
def prog_spin(k, lbl, vcnt, vd, off, s_tmp, need, sleep=0):
    k.e(f"s_cmp_ge_u32 s{s_tmp}, {need}")
    k.e(f"s_cbranch_scc1 {lbl}_ok")
    k.e(f"{lbl}:")
    if sleep: k.e(f"s_sleep {sleep}")
    k.e(f"ds_read_b128 v[{vd}:{vd+3}], v{vcnt} offset:{off}")
    k.e("s_waitcnt lgkmcnt(0)")
    for x in prog_min(vd, s_tmp): k.e(x)
    k.e(f"s_cmp_lt_u32 s{s_tmp}, {need}")
    k.e(f"s_cbranch_scc1 {lbl}")
    k.e(f"{lbl}_ok:")
def prog_wait(k, lbl, vcnt, vd, off, s_tmp, need, sleep=1):
    k.e(f"s_mov_b32 s{s_tmp}, 0")
    prog_spin(k, lbl, vcnt, vd, off, s_tmp, need, sleep)

def watch_addr(k, va, s_cha, s_chb):
    k.e("s_lshr_b32 s10, s9, 1")
    k.e(f"s_add_u32 s10, s10, {FB >> 7}")
    k.e(f"v_lshl_add_u32 v{va}, v0, 2, s10")
    k.e(f"v_mov_b32 v{va+1}, s10")
    k.e("v_cmp_gt_u32 vcc, 54, v0")
    k.e(f"v_cndmask_b32 v{va}, v{va+1}, v{va}, vcc")
    k.e(f"v_lshlrev_b32 v{va}, 7, v{va}")
    k.e(f"s_lshr_b32 s10, s{s_cha}, 6")
    k.e(f"s_lshr_b32 s11, s{s_chb}, 6")
    k.e(f"v_mov_b32 v{va+1}, s11")
    k.e(f"v_mov_b32 v{va+2}, s10")
    k.e("v_cmp_gt_u32 vcc, 32, v0")
    k.e(f"v_cndmask_b32 v{va+1}, v{va+1}, v{va+2}, vcc")
    k.e(f"v_and_b32 v{va+2}, 31, v0")
    k.e(f"v_mad_u32_u24 v{va+1}, v{va+2}, 10, v{va+1}")
    k.e(f"v_lshlrev_b32 v{va+1}, 7, v{va+1}")
def watch_pre(vd, va):
    return [f"buffer_load_dwordx2 v[{vd}:{vd+1}], v{va+1}, s[{FSRD}:{FSRD+3}], 0 offen{SC1}",
            f"buffer_load_dwordx2 v[{vd+2}:{vd+3}], v{va}, s[{FSRD}:{FSRD+3}], 0 offen{SC1}"]
def watch(k, lbl, vd, va):
    k.e("s_waitcnt vmcnt(0)")
    poll(k, lbl + "a", vd, va + 1, None, 10, 64, preloaded=True)
    k.e(f"v_mov_b32 v{vd}, {CNT}")
    k.e(f"v_mov_b32 v{vd+1}, 1")
    k.e(f"ds_write_b32 v{vd}, v{vd+1} offset:{UOK}")
    poll(k, lbl + "b", vd + 2, va, None, 10, 64, preloaded=True)
    k.e(f"ds_write_b32 v{vd}, v{vd+1} offset:{AUXOK}")

def xo_offsets(k, vb, t1, t2):
    k.e("s_lshl_b32 s53, s8, 2")
    k.e("s_add_u32 s53, s53, s101")
    k.e("s_mul_i32 s54, s53, 20480")
    k.e("s_mul_i32 s55, s9, 160")
    k.e("s_add_u32 s54, s54, s55")
    for i in range(3):
        k.e(f"v_add_u32 v{t1}, {64*i}, v0")
        k.e(f"v_mul_u32_u24 v{t2}, 6554, v{t1}")
        k.e(f"v_lshrrev_b32 v{t2}, 16, v{t2}")
        k.e(f"v_mul_u32_u24 v{t2}, 1120, v{t2}")
        k.e(f"v_lshl_add_u32 v{vb+i}, v{t1}, 4, v{t2}")
    k.e(f"v_mov_b32 v{t2}, {OOB}")
    k.e("v_cmp_gt_u32 vcc, 32, v0")
    k.e(f"v_cndmask_b32 v{vb+2}, v{t2}, v{vb+2}, vcc")

def unit_ids(k, s_rb, s_cgp):
    k.e(f"s_mul_i32 s{s_rb}, s2, 6554")
    k.e(f"s_lshr_b32 s{s_rb}, s{s_rb}, 16")
    k.e(f"s_mul_i32 s{s_cgp}, s{s_rb}, 10")
    k.e(f"s_sub_u32 s{s_cgp}, s2, s{s_cgp}")
def prep_addr(k):
    unit_ids(k, 52, 53)
    k.e("s_lshl_b32 s54, s52, 2")
    k.e("s_add_u32 s54, s54, s101")
    k.e("s_mul_i32 s54, s54, 20480")
    k.e("s_lshl_b32 s55, s53, 7")
    k.e("s_add_u32 s54, s54, s55")
    k.e("v_lshrrev_b32 v1, 3, v0")
    k.e("v_mul_u32_u24 v2, 1280, v1")
    k.e("v_and_b32 v3, 7, v0")
    k.e("v_lshl_add_u32 v2, v3, 4, v2")
    if flag("XNOPL"): k.e(f"s_mov_b32 s54, {OOB}")
    k.e("v_add_u32 v200, s54, v2")
    k.e("v_subrev_u32 v201, 3840, v200")
    k.e(f"v_add_u32 v202, {10240 - 3840 - 1024}, v200")
    k.e(f"v_add_u32 v203, {20480 - 3840 - 2048}, v200")
    k.e(f"v_mov_b32 v6, {OOB}")
    k.e("v_cmp_gt_u32 vcc, 24, v0")
    k.e("v_cndmask_b32 v203, v6, v203, vcc")
    k.e(f"v_add_u32 v204, {10240 - 1024}, v200")
    k.e("s_mul_i32 s56, s101, 5120")
    k.e(f"s_add_u32 s56, s56, {EA}")
    k.e("v_and_b32 v7, 31, v0")
    k.e("s_lshl_b32 s55, s53, 9")
    k.e("v_lshl_add_u32 v205, v7, 4, s55")
def prep_loads(k):
    srd(k, 40, P_K, NB_X)
    k.e("s_mov_b32 m0, s56")
    k.e("buffer_load_dwordx4 v201, s[40:43], 0 offen lds")
    k.e("buffer_load_dwordx4 v202, s[40:43], 0 offen offset:1024 lds")
    k.e("buffer_load_dwordx4 v203, s[40:43], 0 offen offset:2048 lds")
    srd(k, 44, P_V, NB_X)
    k.e("s_add_u32 m0, s56, 3072")
    k.e("buffer_load_dwordx4 v200, s[44:47], 0 offen lds")
    k.e("buffer_load_dwordx4 v204, s[44:47], 0 offen offset:1024 lds")
    srd(k, 48, P_SH, D * 8)
    k.e("buffer_load_dwordx4 v[212:215], v205, s[48:51], 0 offen")
    k.e("v_lshrrev_b32 v9, 5, v0")
    k.e("v_lshlrev_b32 v10, 10, v9")
    k.e("v_lshl_add_u32 v10, v7, 2, v10")
    k.e("v_add_u32 v209, s56, v10")
    k.e("v_sub_u32 v11, 1, v9")
    k.e("v_lshlrev_b32 v11, 4, v11")
    k.e("v_lshl_add_u32 v11, v7, 6, v11")
    k.e("v_add_u32 v210, s56, v11")
def prep_compute(k):
    KR, VR, TP, KU, VU, KV, OUT = 112, 124, 132, 140, 216, 180, 184
    k.e("s_waitcnt vmcnt(0)")
    for j in range(11): k.e(f"ds_read_b32 v{KR+j}, v209 offset:{128*j}")
    for j in range(8): k.e(f"ds_read_b32 v{VR+j}, v209 offset:{3072 + 128*j}")
    for c in range(2):
        unpack(k, TP + 0 + c, TP + 2 + c, 212 + 2*c)
        unpack(k, TP + 4 + c, TP + 6 + c, 213 + 2*c)
    k.e("s_waitcnt lgkmcnt(8)")
    for j in range(11): unpack(k, KU + 2*j, KU + 2*j + 1, KR + j)
    k.e("s_waitcnt lgkmcnt(0)")
    for j in range(8): unpack(k, VU + 2*j, VU + 2*j + 1, VR + j)
    for r in range(8):
        d = KV + 2*(r & 1)
        for j in (3, 2, 1, 0):
            w = KU + 2*(r + 3 - j); t = TP + 2*j
            if j == 3: k.e(f"v_pk_mul_f32 v[{d}:{d+1}], v[{w}:{w+1}], v[{t}:{t+1}]")
            else: k.e(f"v_pk_fma_f32 v[{d}:{d+1}], v[{w}:{w+1}], v[{t}:{t+1}], v[{d}:{d+1}]")
        k.e(f"v_pk_mul_f32 v[{d}:{d+1}], v[{d}:{d+1}], v[{VU+2*r}:{VU+2*r+1}]")
        if r & 1:
            for c in range(2):
                k.e(f"v_cvt_pk_bf16_f32 v{OUT+4*c+3-r//2}, v{KV+2+c}, v{KV+c}")
    for c in range(2):
        k.e(f"ds_write_b128 v210, v[{OUT+4*c}:{OUT+4*c+3}] offset:{32*c}")

def b_aux_addr(k):
    srd(k, 84, P_W2, NB_W)
    srd(k, 44, P_WS, NB_W, W2_OFF)
    srd(k, 40, P_WS, NB_T, UR_OFF)
    k.e("s_lshr_b32 s57, s2, 2")
    k.e("s_and_b32 s58, s2, 3")
    k.e("s_mul_i32 s59, s57, 40960")
    k.e("s_mul_i32 s60, s58, 320")
    k.e("s_add_u32 s59, s59, s60")
    k.e("s_lshl_b32 s60, s101, 6")
    k.e("s_lshl_b32 s61, s101, 10")
    for i in range(3):
        k.e("v_add_u32 v9, s60, v0")
        if i: k.e(f"v_add_u32 v9, {256*i}, v9")
        k.e("v_mul_u32_u24 v10, 52429, v9")
        k.e("v_lshrrev_b32 v10, 20, v10")
        k.e("v_mul_u32_u24 v10, 960, v10")
        k.e(f"v_lshl_add_u32 v{206+i}, v9, 4, v10")
    k.e("s_cmp_ge_u32 s101, 2")
    k.e(f"s_cselect_b32 s60, {OOB}, 0")
    k.e("v_add_u32 v208, s60, v208")
    k.e(f"s_add_u32 s62, s61, {EA + 20480 + 8192}")
    k.e("s_cmp_ge_u32 s101, 2")
    k.e(f"s_cselect_b32 s62, {EA + 30720}, s62")
def b_aux_addr2(k):
    k.e("s_lshr_b32 s10, s101, 1")
    k.e("s_and_b32 s11, s101, 1")
    k.e("s_mul_i32 s60, s10, 5")
    k.e("s_mul_i32 s54, s11, 3")
    k.e("s_add_u32 s60, s60, s54")
    k.e("s_lshl_b32 s60, s60, 5")
    k.e(f"s_add_u32 s60, s60, {EA + 20480}")
    k.e("v_lshrrev_b32 v11, 2, v0")
    k.e("v_mul_u32_u24 v11, 320, v11")
    k.e("v_and_b32 v12, 3, v0")
    k.e("v_lshl_add_u32 v11, v12, 3, v11")
    k.e("v_add_u32 v214, s60, v11")
    k.e("s_lshl_b32 s60, s58, 1")
    k.e("s_add_u32 s60, s60, s10")
    k.e(f"s_mul_i32 s89, s60, {NT}")
    k.e("s_add_u32 s89, s89, s57")
    k.e("s_mul_i32 s89, s89, 5120")
    k.e("s_lshl_b32 s54, s54, 10")
    k.e("s_add_u32 s89, s89, s54")
    k.e("s_cmp_ge_u32 s2, 216")
    k.e(f"s_cselect_b32 s89, {OOB}, s89")
    k.e("v_lshlrev_b32 v215, 4, v0")
    k.e("s_cmp_eq_u32 s11, 1")
    k.e(f"s_cselect_b32 s54, {OOB}, 0")
    k.e("v_add_u32 v216, s54, v215")
    unit_ids(k, 52, 53)
    k.e("v_lshrrev_b32 v1, 3, v0")
    k.e("v_and_b32 v3, 7, v0")
    k.e("v_lshrrev_b32 v11, 1, v3")
    k.e("v_sub_u32 v11, 3, v11")
    k.e("v_mul_u32_u24 v11, 5120, v11")
    k.e("v_lshl_add_u32 v11, v1, 5, v11")
    k.e("v_and_b32 v12, 1, v3")
    k.e("v_lshl_add_u32 v11, v12, 4, v11")
    k.e("s_lshl_b32 s55, s101, 9")
    k.e(f"s_add_u32 s55, s55, {EA}")
    k.e("v_add_u32 v211, s55, v11")
    k.e(f"v_mul_u32_u24 v232, {RS}, v1")
    k.e("v_lshl_add_u32 v232, v3, 4, v232")
    k.e(f"v_add_u32 v233, {8*RS}, v232")
    k.e("s_lshl_b32 s63, s53, 2")
    k.e("s_add_u32 s63, s63, s101")
    k.e(f"s_mul_i32 s63, s63, {16*RS}")
    k.e("s_lshl_b32 s55, s52, 7")
    k.e("s_sub_u32 s55, 3968, s55")
    k.e("s_add_u32 s63, s63, s55")
    if flag("XNOST"):
        k.e(f"s_mov_b32 s63, {OOB}")
        k.e(f"s_mov_b32 s89, {OOB}")
def rel_loads():
    return [f"s_add_u32 m0, s61, {EA + 20480}",
            "buffer_load_dwordx4 v206, s[84:87], s59 offen lds",
            f"s_add_u32 m0, s61, {EA + 20480 + 4096}",
            "buffer_load_dwordx4 v207, s[84:87], s59 offen lds",
            "s_mov_b32 m0, s62",
            "buffer_load_dwordx4 v208, s[84:87], s59 offen lds"]
def aux_out():
    L = [f"ds_read_b128 v[{100+4*i}:{103+4*i}], v211 offset:{256*i}" for i in range(2)]
    for i in range(3):
        L.append(f"ds_read_b64_tr_b16 v[{188+4*i}:{189+4*i}], v214 offset:{32*i}")
        L.append(f"ds_read_b64_tr_b16 v[{190+4*i}:{191+4*i}], v214 offset:{32*i + 5120}")
    L.append("s_waitcnt lgkmcnt(0)")
    L += [f"buffer_store_dwordx4 v[{100+4*i}:{103+4*i}], v{232+i}, s[40:43], s63 offen{SC1}" for i in range(2)]
    L += [f"buffer_store_dwordx4 v[{188+4*i}:{191+4*i}], v{216 if i == 2 else 215}, s[44:47], s89 offen offset:{1024*i}{SC1}" for i in range(3)]
    return L

def rel1_addr(k):
    srd(k, 84, P_W2, NB_W)
    srd(k, 44, P_WS, NB_W, W2_OFF)
    k.e("s_lshr_b32 s57, s2, 2")
    k.e("s_and_b32 s58, s2, 3")
    k.e("s_mul_i32 s59, s57, 40960")
    k.e("s_mul_i32 s60, s58, 320")
    k.e("s_add_u32 s59, s59, s60")
    k.e("s_lshl_b32 s60, s101, 6")
    k.e("s_lshl_b32 s61, s101, 10")
    for i in range(3):
        k.e("v_add_u32 v9, s60, v0")
        if i: k.e(f"v_add_u32 v9, {256*i}, v9")
        k.e("v_mul_u32_u24 v10, 52429, v9")
        k.e("v_lshrrev_b32 v10, 20, v10")
        k.e("v_mul_u32_u24 v10, 960, v10")
        k.e(f"v_lshl_add_u32 v{110+i}, v9, 4, v10")
    k.e("s_cmp_ge_u32 s101, 2")
    k.e(f"s_cselect_b32 s60, {OOB}, 0")
    k.e("v_add_u32 v112, s60, v112")
    k.e("v_lshrrev_b32 v11, 2, v0")
    k.e("v_mul_u32_u24 v11, 320, v11")
    k.e("v_and_b32 v12, 3, v0")
    k.e("v_lshl_add_u32 v11, v12, 3, v11")
    k.e("s_lshr_b32 s10, s101, 1")
    k.e("s_and_b32 s11, s101, 1")
    k.e("s_mul_i32 s60, s10, 5")
    k.e("s_mul_i32 s54, s11, 3")
    k.e("s_add_u32 s60, s60, s54")
    k.e("s_lshl_b32 s60, s60, 5")
    k.e(f"s_add_u32 s60, s60, {RLB}")
    k.e("v_add_u32 v214, s60, v11")
    k.e("s_lshl_b32 s60, s58, 1")
    k.e("s_add_u32 s60, s60, s10")
    k.e(f"s_mul_i32 s89, s60, {NT}")
    k.e("s_add_u32 s89, s89, s57")
    k.e("s_mul_i32 s89, s89, 5120")
    k.e("s_lshl_b32 s54, s54, 10")
    k.e("s_add_u32 s89, s89, s54")
    k.e("s_cmp_ge_u32 s2, 216")
    k.e(f"s_cselect_b32 s89, {OOB}, s89")
    k.e("v_lshlrev_b32 v215, 4, v0")
    k.e("s_cmp_eq_u32 s11, 1")
    k.e(f"s_cselect_b32 s54, {OOB}, 0")
    k.e("v_add_u32 v216, s54, v215")
def rel1_loads():
    L = []
    for i in range(3):
        L.append(f"s_add_u32 m0, s61, {RLB + 4096*i}")
        L.append(f"buffer_load_dwordx4 v{110+i}, s[84:87], s59 offen lds")
    return L
def rel1_reads():
    L = []
    for i in range(3):
        L.append(f"ds_read_b64_tr_b16 v[{188+4*i}:{189+4*i}], v214 offset:{32*i}")
        L.append(f"ds_read_b64_tr_b16 v[{190+4*i}:{191+4*i}], v214 offset:{32*i + 5120}")
    return L
def rel1_stores():
    return ["s_waitcnt lgkmcnt(0)"] + [f"buffer_store_dwordx4 v[{188+4*i}:{191+4*i}], v{216 if i == 2 else 215}, s[44:47], s89 offen offset:{1024*i}{SC1}" for i in range(3)]
def u_addr(k):
    srd(k, 40, P_WS, NB_T, UR_OFF)
    unit_ids(k, 52, 53)
    k.e("v_lshrrev_b32 v1, 3, v0")
    k.e("v_and_b32 v3, 7, v0")
    k.e("v_lshrrev_b32 v11, 1, v3")
    k.e("v_sub_u32 v11, 3, v11")
    k.e("v_mul_u32_u24 v11, 5120, v11")
    k.e("v_lshl_add_u32 v11, v1, 5, v11")
    k.e("v_and_b32 v12, 1, v3")
    k.e("v_lshl_add_u32 v11, v12, 4, v11")
    k.e("s_lshl_b32 s55, s101, 9")
    k.e(f"s_add_u32 s55, s55, {EA}")
    k.e("v_add_u32 v211, s55, v11")
    k.e(f"v_mul_u32_u24 v232, {RS}, v1")
    k.e("v_lshl_add_u32 v232, v3, 4, v232")
    k.e(f"v_add_u32 v233, {8*RS}, v232")
    k.e("s_lshl_b32 s63, s53, 2")
    k.e("s_add_u32 s63, s63, s101")
    k.e(f"s_mul_i32 s63, s63, {16*RS}")
    k.e("s_lshl_b32 s55, s52, 7")
    k.e("s_sub_u32 s55, 3968, s55")
    k.e("s_add_u32 s63, s63, s55")
def u_out():
    L = [f"ds_read_b128 v[{100+4*i}:{103+4*i}], v211 offset:{256*i}" for i in range(2)]
    L.append("s_waitcnt lgkmcnt(0)")
    L += [f"buffer_store_dwordx4 v[{100+4*i}:{103+4*i}], v{232+i}, s[40:43], s63 offen{SC1}" for i in range(2)]
    return L

def g2_offsets(k):
    k.e("s_mul_i32 s10, s101, 14")
    k.e("s_cmp_eq_u32 s101, 3")
    k.e("s_cselect_b32 s10, 41, s10")
    k.e(f"s_mul_i32 s11, s8, {NT}")
    k.e("s_add_u32 s11, s11, s10")
    k.e("s_lshl_b32 s76, s11, 12")
    k.e(f"s_mul_i32 s11, s9, {NT}")
    k.e("s_add_u32 s11, s11, s10")
    k.e("s_mul_i32 s77, s11, 5120")
    k.e(f"s_add_u32 s78, s77, {11*5120}")
    k.e("s_cmp_ge_u32 s101, 2")
    k.e(f"s_cselect_b32 s79, {OOB}, 0")
    k.e("s_mul_i32 s75, s101, 7")
    k.e("s_min_u32 s75, s75, 20")
    k.e("s_lshl_b32 s11, s8, 5")
    k.e("s_add_u32 s75, s75, s11")
    k.e(f"s_lshl_b32 s75, s75, {HSH}")
    k.e(f"s_add_u32 s75, s75, {FH}")
    k.e("s_lshl_b32 s74, s101, 14")
def w_loads(step):
    b = W_SL[step % NW]
    L = [f"buffer_load_dwordx4 v[{b+4*d}:{b+4*d+3}], v1, s[44:47], s77 offen offset:{1024*d}{SC1}" for d in range(4)]
    L.append(f"buffer_load_dwordx4 v[{b+16}:{b+19}], v2, s[44:47], s77 offen{SC1}")
    L.append("s_add_u32 s77, s77, 5120")
    return L
def h_loads(step):
    b = G_H + 16 * (step % NH)
    L = ["s_add_u32 s76, s76, s79"] if step == NSTEP - 1 else []
    L += [f"buffer_load_dwordx4 v[{b+4*m}:{b+4*m+3}], v{3+m}, s[40:43], s76 offen{SC1}" for m in range(4)]
    L.append("s_add_u32 s76, s76, 4096")
    return L
def w_lds_reads(step):
    b = W_SL[step % NW]
    return [f"ds_read_b128 v[{b+4*d}:{b+4*d+3}], v7 offset:{(step-11)*5120 + 1024*d}" for d in range(5)]
def g2_mfmas(step, order=None):
    b = G_H + 16 * (step % NH); wb = W_SL[step % NW]
    L = []
    for d, m in (order or [(d, m) for d in range(5) for m in range(4)]):
        a = G_ACC + 16*d + 4*m
        c = "0" if step == 0 else f"v[{a}:{a+3}]"
        L.append(f"v_mfma_f32_16x16x32_bf16 v[{a}:{a+3}], v[{wb+4*d}:{wb+4*d+3}], v[{b+4*m}:{b+4*m+3}], {c}")
    return L

def g2_phase(k):
    for s in range(NW):
        for x in w_loads(s): k.e(x)
    srd(k, 40, P_WS, 32 * NT * 4096, H_OFF)
    k.e("s_lshl_b32 s52, s101, 10")
    k.e("v_add_u32 v3, s52, v1")
    for m in range(1, 4): k.e(f"v_xor_b32 v{3+m}, {1024*m}, v3")
    k.e(f"v_lshlrev_b32 v9, {HSH}, v0")
    EPOL = flag("EPOL", 8); left = 15
    for s in (11, 12, 13):
        if s == 13: k.e("s_add_u32 s78, s78, s79")
        for d in range(5):
            if left == EPOL:
                k.e("s_bfm_b64 exec, 7, 0")
                k.e(f"buffer_load_dwordx2 v[10:11], v9, s[{FSRD}:{FSRD+3}], s75 offen{SC1}")
                k.e("s_mov_b64 exec, -1")
            left -= 1
            if d in (0, 4): k.e(f"s_add_u32 m0, s74, {(s-11)*5120 + 1024*d}")
            if d < 4: k.e(f"buffer_load_dwordx4 v1, s[44:47], s78 offen offset:{1024*d}{SC1} lds")
            else: k.e(f"buffer_load_dwordx4 v2, s[44:47], s78 offen{SC1} lds")
        k.e("s_add_u32 s78, s78, 5120")
    k.e("v_add_u32 v7, s74, v1")
    k.e(f"v_mov_b32 v152, {CNT}")
    k.e(f"s_waitcnt vmcnt({EPOL})")
    poll(k, "L_hpoll", 10, 9, 75, 58, 7, sleep=2, preloaded=True)
    stamp(k, 1, 2)
    vm = Vm(); hneed = {}; wneed = {}
    for s in range(NH - 1):
        for x in h_loads(s):
            k.e(x)
            if is_vmem(x): hneed[s] = vm.op()
    for s in range(NSTEP):
        idx = max(hneed[s], wneed.get(s, -1))
        lg = " lgkmcnt(0)" if s >= 11 else ""
        k.e(f"s_waitcnt vmcnt({vm.wait(idx)}){lg}")
        fill = []
        if s == flag("YAT", 7): fill.append((f"ds_write_b32 v152, v152 offset:{PROG}", "l", 0))
        if s + NH - 1 < NSTEP: fill += [(x, "h", s + NH - 1) for x in h_loads(s + NH - 1)]
        r = s + NW - 1
        if s >= 1 and r <= 10: fill += [(x, "w", r) for x in w_loads(r)]
        if s >= 1 and 11 <= r <= 13: fill += [(x, "l", r) for x in w_lds_reads(r)]
        if s == NSTEP - 1: break
        fi = 0
        for i, x in enumerate(g2_mfmas(s)):
            k.e(x)
            if i % 2 == 0:
                while fi < len(fill):
                    y, t, st = fill[fi]; fi += 1
                    k.e(y)
                    if is_vmem(y): (hneed if t == "h" else wneed)[st] = vm.op()
                    if not y.startswith("s_"): break
        for y, t, st in fill[fi:]:
            k.e(y)
            if is_vmem(y): (hneed if t == "h" else wneed)[st] = vm.op()
        if s == 11: tail_addr(k)
    k.e("s_setprio 2")
    order = [(d, m) for m in (1, 2, 3, 0) for d in range(5)]
    wr = [f"ds_write_b128 v7, v[{G_ACC+16*d+4*m}:{G_ACC+16*d+4*m+3}] offset:{(m-1)*5120 + 1024*d}" for d, m in order[:15]]
    for x in interleave(g2_mfmas(NSTEP - 1, order), wr, start=6): k.e(x)
    stamp(k, 1, 3)
    g2_tail(k)

T = 156
def tail_addr(k):
    srd(k, 48, P_OUT, NB_X)
    xo_offsets(k, T, T+3, T+4)
    for m in range(1, 4): k.e(f"v_xor_b32 v{T+4+m}, {16384*m}, v7")
    k.e(f"v_add_u32 v{T+8}, s81, v1")
    k.e(f"v_and_b32 v{T+9}, 15, v0")
    k.e(f"v_mul_u32_u24 v{T+9}, 160, v{T+9}")
    k.e(f"v_lshrrev_b32 v{T+10}, 4, v0")
    k.e(f"v_lshl_add_u32 v{T+9}, v{T+10}, 3, v{T+9}")
    k.e(f"v_add_u32 v{T+9}, s81, v{T+9}")
    k.e(f"v_mov_b32 v{T+12}, 1.0")
    k.e(f"v_mov_b32 v{T+13}, 1.0")
def g2_tail(k):
    k.e("s_waitcnt lgkmcnt(0)")
    k.e("s_barrier")
    SF, XF, CC = 88, 108, T + 14
    k.e(f"ds_read_b64 v[{CC}:{CC+1}], v{T+8} offset:{SO + 10240}")
    for d in range(5):
        for m in range(1, 4):
            a = G_ACC + 16*d + 4*m
            k.e(f"ds_read_b128 v[{a}:{a+3}], v{T+4+m} offset:{(m-1)*5120 + 1024*d}")
        k.e(f"ds_read_b128 v[{SF+4*d}:{SF+4*d+3}], v{T+8} offset:{SO + 1024*d}")
        k.e(f"ds_read_b128 v[{XF+4*d}:{XF+4*d+3}], v{T+8} offset:{SO + 5120 + 1024*d}")
    for d in range(5):
        k.e(f"s_waitcnt lgkmcnt({min(15, 20-5*d)})")
        a = G_ACC + 16*d
        for h in range(2):
            k.e(f"v_pk_add_f32 v[{a+2*h}:{a+2*h+1}], v[{a+2*h}:{a+2*h+1}], v[{a+4+2*h}:{a+4+2*h+1}]")
            k.e(f"v_pk_add_f32 v[{a+8+2*h}:{a+8+2*h+1}], v[{a+8+2*h}:{a+8+2*h+1}], v[{a+12+2*h}:{a+12+2*h+1}]")
        for h in range(2):
            k.e(f"v_pk_add_f32 v[{a+2*h}:{a+2*h+1}], v[{a+2*h}:{a+2*h+1}], v[{a+8+2*h}:{a+8+2*h+1}]")
        e = a + 4
        for h in range(2):
            k.e(f"v_pk_mul_f32 v[{e+2*h}:{e+2*h+1}], v[{a+2*h}:{a+2*h+1}], v[{CC}:{CC+1}]")
        for r in range(4): k.e(f"v_exp_f32 v{e+r}, v{e+r}")
        for h in range(2):
            s = SF + 4*d + 2*h
            k.e(f"v_pk_mul_f32 v[{a+2*h}:{a+2*h+1}], v[{a+2*h}:{a+2*h+1}], v[{s}:{s+1}]")
        for h in range(2):
            k.e(f"v_pk_add_f32 v[{e+2*h}:{e+2*h+1}], v[{e+2*h}:{e+2*h+1}], v[{T+12}:{T+13}]")
        for r in range(4): k.e(f"v_rcp_f32 v{e+r}, v{e+r}")
        for h in range(2):
            x = XF + 4*d + 2*h
            k.e(f"v_pk_fma_f32 v[{a+2*h}:{a+2*h+1}], v[{a+2*h}:{a+2*h+1}], v[{e+2*h}:{e+2*h+1}], v[{x}:{x+1}]")
        k.e(f"v_cvt_pk_bf16_f32 v{a+8}, v{a}, v{a+1}")
        k.e(f"v_cvt_pk_bf16_f32 v{a+9}, v{a+2}, v{a+3}")
    for d in range(5):
        a = G_ACC + 16*d
        k.e(f"ds_write_b64 v{T+9}, v[{a+8}:{a+9}] offset:{XO + 32*d}")
    k.e("s_waitcnt lgkmcnt(0)")
    O = 128
    for i in range(3): k.e(f"ds_read_b128 v[{O+4*i}:{O+4*i+3}], v{T+8} offset:{XO + 1024*i}")
    osc = {0: "", 1: " sc1", 2: " nt", 3: " sc0 sc1"}[flag("OSC", 0)]
    for i in range(3):
        k.e(f"s_waitcnt lgkmcnt({2-i})")
        k.e(f"buffer_store_dwordx4 v[{O+4*i}:{O+4*i+3}], v{T+i}, s[48:51], s54 offen{osc}")

BA, AA, ONE, ACC, AR, AC, FR = 10, 14, 20, 24, 88, 96, 112
def g1_setup(k):
    srd(k, 48, P_WS, 32 * NT * 4096, H_OFF)
    srd(k, 44, P_WS, NB_W, W2_OFF)
    k.e("s_and_b32 s52, s3, 1")
    k.e("s_lshr_b32 s53, s3, 1")
    k.e("v_lshlrev_b32 v1, 4, v0")
    k.e("v_add_u32 v2, 4096, v1")
    k.e("v_and_b32 v18, 15, v0")
    k.e("v_lshrrev_b32 v19, 4, v0")
    k.e("v_lshrrev_b32 v20, 1, v18")
    k.e("v_xor_b32 v20, v20, v19")
    k.e("v_lshlrev_b32 v20, 4, v20")
    k.e("v_lshl_add_u32 v20, v18, 7, v20")
    k.e("s_lshl_b32 s58, s52, 13")
    k.e("s_lshl_b32 s59, s53, 12")
    k.e("s_add_u32 s58, s58, s59")
    k.e(f"v_add_u32 v{BA}, s58, v20")
    k.e(f"v_xor_b32 v{BA+1}, 64, v{BA}")
    k.e(f"v_xor_b32 v{BA+2}, 0x1000, v{BA}")
    k.e(f"v_xor_b32 v{BA+3}, 0x1040, v{BA}")
    k.e("v_lshrrev_b32 v20, 2, v18")
    k.e("v_and_b32 v21, 3, v18")
    k.e("v_lshl_add_u32 v22, v19, 3, v20")
    k.e("v_lshlrev_b32 v22, 8, v22")
    k.e("v_lshl_add_u32 v22, v21, 3, v22")
    k.e(f"v_add_u32 v22, {WPART}, v22")
    k.e("v_and_b32 v23, 1, v19")
    k.e("v_lshl_add_u32 v23, v23, 2, v20")
    k.e("s_lshl_b32 s58, s53, 2")
    k.e("s_lshl_b32 s59, s52, 1")
    k.e("s_add_u32 s58, s58, s59")
    k.e("v_xor_b32 v23, s58, v23")
    k.e(f"v_lshl_add_u32 v{AA}, v23, 5, v22")
    for fb in range(1, 4): k.e(f"v_xor_b32 v{AA+fb}, {32*fb}, v{AA}")
    for i in range(4): k.e(f"v_mov_b32 v{ONE+i}, 0x3f803f80")
    for r, x in ((3, 0), (4, 2), (5, 1)):
        k.e(f"s_xor_b32 s58, s3, {x}")
        k.e("s_mul_i32 s58, s58, 3072")
        k.e(f"s_add_u32 s58, s58, {TOP}")
        k.e(f"v_add_u32 v{r}, s58, v1")
    k.e("s_lshl_b32 s58, s7, 1")
    k.e("s_add_u32 s57, s58, s53")
    k.e("s_lshl_b32 s59, s6, 1")
    k.e("s_add_u32 s59, s59, s52")
    k.e("s_lshl_b32 s56, s59, 5")
    k.e("s_add_u32 s56, s56, s57")
    k.e(f"s_lshl_b32 s56, s56, {HSH}")
    k.e(f"s_add_u32 s56, s56, {FH}")
    k.e(f"s_mul_i32 s59, s59, {NT}")
    k.e("s_lshl_b32 s58, s57, 1")
    k.e("s_add_u32 s58, s58, s59")
    k.e("s_lshl_b32 s58, s58, 12")
    k.e("s_lshl_b32 s59, s52, 12")
    k.e("s_add_u32 s60, s58, s59")
    k.e("s_xor_b32 s59, s59, 0x1000")
    k.e("s_add_u32 s61, s58, s59")
    k.e("s_lshl_b32 s59, s53, 11")
    k.e("v_add_u32 v6, s59, v1")
    k.e("v_xor_b32 v7, 0x800, v6")
    k.e(f"v_mov_b32 v18, {CNT}")
    k.e("s_lshl_b32 s58, s3, 2")
    k.e(f"s_add_u32 s58, s58, {CNT + PA}")
    k.e("v_mov_b32 v19, s58")

def g1_phase(k):
    PV = 176
    def reads(stage, ks, buf):
        so = (stage % 2) * SLOT
        L = []
        fa = FR + 32 * buf; fb_ = fa + 16
        for i in range(4):
            L.append(f"ds_read_b128 v[{fb_+4*i}:{fb_+4*i+3}], v{BA + 2*(i>>1) + ks} offset:{so + 2048*(i&1)}")
            L.append(f"ds_read_b64_tr_b16 v[{fa+4*i}:{fa+4*i+1}], v{AA+i} offset:{so + 8192*ks}")
            L.append(f"ds_read_b64_tr_b16 v[{fa+4*i+2}:{fa+4*i+3}], v{AA+i} offset:{so + 8192*ks + 1024}")
        return L
    def mfmas(buf, first=False, sums_first=False):
        fa = FR + 32 * buf; fb_ = fa + 16
        L = []; Sm = []
        def mm(Tg, d, a, b):
            c = "0" if first else f"v[{d}:{d+3}]"
            Tg.append(f"v_mfma_f32_16x16x32_bf16 v[{d}:{d+3}], v[{a}:{a+3}], v[{b}:{b+3}], {c}")
        for f in range(4):
            for m in range(4): mm(L, ACC + 16*f + 4*m, fa + 4*f, fb_ + 4*m)
        for i in range(2):
            mm(Sm, AR + 4*i, ONE, fb_ + 4*i)
            mm(Sm, AC + 4*i, fa + 4*i, ONE)
        if flag("QNOSUM") and not first and not sums_first: return L
        return Sm + L if sums_first else L + Sm
    def dense(L):
        n = flag("DEN", 2)
        return ["\n".join(L[i:i+n]) for i in range(0, len(L), n)]
    tog = [f"v_xor_b32 v{r}, 0x10000, v{r}" for r in list(range(BA, BA+4)) + list(range(AA, AA+4))]
    for s in range(NSTAGE):
        k.c(f"---- stage {s}")
        k.e("s_waitcnt lgkmcnt(0)")
        m1 = mfmas(1)
        if s < 9: k.e("s_barrier")
        else:
            for x in interleave(m1[:3], prog_min(PV, 58)): k.e(x)
            m1 = m1[3:]
            prog_spin(k, "L_a9", 18, PV, PB, 58, 1)
        if s == 0: stamp(k, 1, 0); stamp(k, 2, 0)
        if s == 4: stamp(k, 2, 1)
        if s == 8:
            stamp(k, 2, 2)
            k.e("s_setprio 2")
        for x in (reads(0, 0, 0) if s == 0 else interleave(m1, dense(reads(s, 0, 0)))): k.e(x)
        k.e("s_waitcnt lgkmcnt(0)")
        m0 = mfmas(0, first=(s == 0))
        nxt = tog if ((s + 1) % 2 == 0 and s + 1 < NSTAGE) else []
        if s == 8:
            body = interleave(m0[:-3], dense(reads(s, 1, 1))) + [f"ds_read_b128 v[{PV}:{PV+3}], v18 offset:{PB}"] + m0[-3:]
        else:
            body = interleave(m0, dense(reads(s, 1, 1)) + nxt)
        for x in body: k.e(x)
    k.e("s_waitcnt lgkmcnt(0)")
    fin = mfmas(1, sums_first=True)
    exch = [f"v_mov_b32 v{AR+1}, v{AR+4}",
            f"ds_write_b64 v3, v[{AR}:{AR+1}]",
            f"ds_write_b128 v3, v[{AC}:{AC+3}] offset:1024",
            f"ds_write_b128 v3, v[{AC+4}:{AC+7}] offset:2048"] + prog_write(19, 8, 11)
    for x in fin[:7] + interleave(fin[7:], exch): k.e(x)
    k.e("L_a_sync:")
    k.e(f"ds_read_b128 v[{PV}:{PV+3}], v18 offset:{PA}")
    k.e(f"ds_read_b64 v[{AR+2}:{AR+3}], v4")
    k.e(f"ds_read_b128 v[{AC+8}:{AC+11}], v5 offset:1024")
    k.e(f"ds_read_b128 v[{AC+12}:{AC+15}], v5 offset:2048")
    k.e("s_waitcnt lgkmcnt(0)")
    for x in prog_min(PV, 58): k.e(x)
    k.e("s_cmp_lt_u32 s58, 11")
    k.e("s_cbranch_scc1 L_a_sync")
    stamp(k, 2, 3)
    k.e("s_cmp_ge_u32 s57, 27")
    k.e("s_cbranch_scc1 L_g2w")
    NM = FR
    for m in range(4): k.e(f"v_mul_f32 v{AR+m}, {-1.0/D!r}, v{AR+m}")
    k.e(f"v_cvt_pk_bf16_f32 v{AR+4}, v{AR}, v{AR+1}")
    k.e(f"v_cvt_pk_bf16_f32 v{AR+5}, v{AR+2}, v{AR+3}")
    for m in range(4):
        src = AR + 4 + (m >> 1)
        if m & 1: k.e(f"v_and_b32 v{NM+m}, 0xffff0000, v{src}")
        else:     k.e(f"v_lshlrev_b32 v{NM+m}, 16, v{src}")
    OUT = FR + 8
    n = 0
    for p in range(2):
        for m in range(4):
            o = OUT + 4 * (n % 4); n += 1
            for ff in range(2):
                f = 2*p + ff
                a = ACC + 16*f + 4*m
                for r in range(4): k.e(f"v_fmac_f32 v{a+r}, v{AC+4*f+r}, v{NM+m}")
                for h in range(2): k.e(f"v_cvt_pk_bf16_f32 v{o+2*ff+h}, v{a+2*h}, v{a+2*h+1}")
            for i in range(4): k.e(f"v_pk_max_i16 v{o+i}, v{o+i}, 0")
            k.e(f"buffer_store_dwordx4 v[{o}:{o+3}], v{6+(m>>1)}, s[48:51], s{60+p} offen offset:{1024*(m&1)}{SC1}")
    k.e("s_waitcnt vmcnt(0)")
    publish(k, 56, 12)
    stamp(k, 1, 1)
    k.e("L_g2w:")
    k.e("s_setprio 0")
    k.e(f"v_mov_b32 v10, {CNT}")
    lds_wait(k, "L_aw2", 10, 11, AUXOK, 58, sleep=4)

def b_aprep(k):
    srd(k, 40, P_Q, NB_X)
    srd(k, 44, P_WS, 16384, ST_OFF)
    srd(k, 68, P_WS, NB_T, YT_OFF)
    xo_offsets(k, 8, 1, 2)
    for i in range(3):
        k.e(f"s_add_u32 m0, s81, {XO + 1024*i}")
        k.e(f"buffer_load_dwordx4 v{8+i}, s[40:43], s54 offen lds")
    k.e("v_and_b32 v1, 15, v0")
    k.e("v_lshlrev_b32 v3, 3, v1")
    k.e("s_lshl_b32 s57, s53, 7")
    k.e("v_lshrrev_b32 v4, 3, v0")
    k.e(f"v_mul_u32_u24 v4, {RS}, v4")
    k.e("v_and_b32 v2, 7, v0")
    k.e("v_lshl_add_u32 v4, v2, 4, v4")
    k.e("s_mul_i32 s58, s9, 10")
    k.e("s_add_u32 s58, s58, s101")
    k.e(f"s_mul_i32 s58, s58, {8*RS}")
    k.e("s_lshl_b32 s59, s8, 7")
    k.e("s_add_u32 s58, s58, s59")
    k.e(f"v_mov_b32 v2, {CNT}")
    k.e("v_mul_u32_u24 v5, 160, v1")
    k.e("v_lshrrev_b32 v6, 4, v0")
    k.e("v_lshl_add_u32 v5, v6, 3, v5")
    k.e("v_add_u32 v5, s81, v5")
    k.e("v_lshrrev_b32 v36, 5, v0")
    k.e(f"v_mul_u32_u24 v36, {CONV_LDS}, v36")
    k.e("v_bfe_u32 v7, v0, 2, 3")
    k.e("v_lshl_add_u32 v36, v7, 7, v36")
    k.e("v_and_b32 v7, 3, v0")
    k.e("v_lshl_add_u32 v36, v7, 3, v36")
    k.e("s_lshl_b32 s59, s101, 5")
    k.e(f"s_add_u32 s59, s59, {RB0}")
    k.e("v_add_u32 v36, s59, v36")
    k.e("v_lshlrev_b32 v37, 4, v0")
    k.e("v_add_u32 v37, s81, v37")
    XR, YR, XF, SF = 16, 26, 40, 60
    k.e("s_waitcnt vmcnt(0)")
    for d in range(5): k.e(f"ds_read_b64 v[{XR+2*d}:{XR+2*d+1}], v5 offset:{XO + 32*d}")
    k.e("s_waitcnt lgkmcnt(0)")
    for d in range(5):
        for h in range(2): unpack(k, XF + 4*d + 2*h, XF + 4*d + 2*h + 1, XR + 2*d + h)
        k.e(f"ds_write_b128 v37, v[{XF+4*d}:{XF+4*d+3}] offset:{SO + 5120 + 1024*d}")
    k.e("s_setprio 0")
    k.e("s_cmp_eq_u32 s101, 0")
    k.e("s_cbranch_scc1 L_b_poller")
    lds_wait(k, "L_b_lw0", 2, 6, PROG, 60, sleep=flag("LSL", 16))
    lds_wait(k, "L_b_lwait", 2, 6, YOK, 60, sleep=2)
    k.e("s_setprio 3")
    k.e("s_branch L_b_go")
    k.e("L_b_poller:")
    k.e(f"s_mul_i32 s59, s9, {80 << YSH}")
    k.e(f"s_add_u32 s59, s59, {FY}")
    k.e(f"s_add_u32 s61, s59, {64 << YSH}")
    k.e(f"v_lshlrev_b32 v5, {YSH}, v0")
    k.e("v_add_u32 v7, s61, v5")
    k.e("s_lshr_b32 s10, s8, 3")
    k.e("s_lshl_b32 s10, s10, 1")
    k.e("s_and_b32 s11, s8, 1")
    k.e("s_add_u32 s10, s10, s11")
    k.e("s_and_b32 s11, s8, 6")
    k.e("s_lshl_b32 s11, s11, 2")
    k.e("s_add_u32 s10, s10, s11")
    k.e(f"s_add_u32 s10, s10, {224 + (FB >> 7)}")
    k.e("s_lshl_b32 s10, s10, 7")
    k.e("v_writelane_b32 v7, s10, 16")
    lds_wait(k, "L_b_aw", 2, 6, PROG, 60, sleep=flag("LSL2", 6))
    k.e("s_setprio 3")
    k.e("s_bfm_b64 exec, 17, 0")
    k.e(f"buffer_load_dwordx2 v[14:15], v7, s[{FSRD}:{FSRD+3}], 0 offen{SC1}")
    k.e("s_mov_b64 exec, -1")
    poll(k, "L_by", 12, 5, 59, 60, 64, sleep=8)
    poll(k, "L_by2", 14, 7, None, 60, 17, sleep=8, preloaded=True)
    k.e("v_mov_b32 v6, 1")
    k.e(f"ds_write_b32 v2, v6 offset:{YOK}")
    k.e("L_b_go:")
    stamp(k, 1, 3); stamp(k, 2, 3)
    k.e(f"buffer_load_dwordx2 v[12:13], v3, s[44:47], s57 offen{SC1}")
    for i in range(3):
        if i == 2:
            k.e("s_cmp_ge_u32 s101, 2")
            k.e("s_cbranch_scc1 L_b_noy")
        k.e(f"s_add_u32 m0, s81, {YO + 1024*i}")
        k.e(f"buffer_load_dwordx4 v4, s[68:71], s58 offen{SC1} lds")
        if i < 2: k.e(f"s_add_u32 s58, s58, {4*8*RS}")
    k.e("L_b_noy:")
    k.e("v_mov_b32 v3, 1")
    k.e("s_waitcnt vmcnt(0)")
    k.e("s_mov_b64 exec, 1")
    k.e(f"ds_add_u32 v2, v3 offset:{YCNT}")
    k.e("s_mov_b64 exec, -1")
    k.e("v_mul_f32 v38, 0xbfb8aa3b, v13")
    k.e("v_mul_f32 v39, 0xbfb8aa3b, v13")
    k.e(f"ds_write_b64 v37, v[38:39] offset:{SO + 10240}")
    k.e("v_mul_f32 v14, v13, v13")
    k.e("v_mul_f32 v12, v12, v14")
    for i in range(20): k.e(f"v_fma_f32 v{80+i}, v{XF+i}, v14, -v12")
    k.e("L_b_cnt:")
    k.e(f"ds_read_b32 v3, v2 offset:{YCNT}")
    for d in range(5):
        k.e(f"ds_read_b64_tr_b16 v[{YR+2*d}:{YR+2*d+1}], v36 offset:{YO + 2*(d&1)*CONV_LDS + (d>>1)*1024}")
    k.e("s_waitcnt lgkmcnt(0)")
    k.e("v_readfirstlane_b32 s59, v3")
    k.e("s_cmp_lt_u32 s59, 4")
    k.e("s_cbranch_scc1 L_b_cnt")
    for d in range(5):
        for h in range(2):
            s = SF + 4*d + 2*h
            unpack(k, s, s+1, YR + 2*d + h)
            k.e(f"v_mul_f32 v{s}, v{s}, v{80+4*d+2*h}")
            k.e(f"v_mul_f32 v{s+1}, v{s+1}, v{81+4*d+2*h}")
        k.e(f"ds_write_b128 v37, v[{SF+4*d}:{SF+4*d+3}] offset:{SO + 1024*d}")
    k.e("s_waitcnt lgkmcnt(0)")

def stats_rows(k, s_idx):
    k.e("s_and_b32 s10, s84, 6")
    k.e("s_lshl_b32 s10, s10, 8")
    k.e("s_lshr_b32 s11, s84, 3")
    k.e("s_lshl_b32 s11, s11, 7")
    k.e("s_add_u32 s10, s10, s11")
    k.e("s_and_b32 s11, s84, 1")
    k.e("s_lshl_b32 s11, s11, 6")
    k.e("s_add_u32 s10, s10, s11")
    k.e(f"s_lshl_b32 s11, s{s_idx}, 3")
    k.e("s_add_u32 s52, s10, s11")

def kernel():
    STS = flag("STS", 3); RLD = flag("RLD", 4); RST = flag("RST", 7)
    assert STS < RLD and RLD + 3 <= RST <= 7
    k = Kern(NAME)
    stamp_begin(k)
    k.e("s_cmp_ge_u32 s2, 256")
    k.e("s_cbranch_scc1 L_end")
    load_ptrs(k)
    k.e("v_lshrrev_b32 v1, 6, v0")
    k.e("v_readfirstlane_b32 s3, v1")
    k.e("v_and_b32 v0, 63, v0")
    for i in range(4): k.e(f"v_mov_b32 v{4+i}, 0")
    k.e("v_and_b32 v1, 3, v0")
    k.e("v_lshlrev_b32 v1, 4, v1")
    k.e(f"v_add_u32 v1, {CNT}, v1")
    k.e("ds_write_b128 v1, v[4:7]")
    k.e("s_and_b32 s4, s2, 7")
    k.e("s_lshr_b32 s5, s2, 3")
    k.e("s_lshr_b32 s10, s4, 1")
    k.e("s_and_b32 s11, s4, 1")
    k.e("s_lshl_b32 s6, s10, 2")
    k.e("s_and_b32 s7, s5, 3")
    k.e("s_add_u32 s6, s6, s7")
    k.e("s_lshl_b32 s9, s11, 2")
    k.e("s_add_u32 s9, s9, s7")
    k.e("s_lshr_b32 s8, s5, 2")
    k.e("s_mul_i32 s7, s11, 7")
    k.e("s_add_u32 s7, s7, s8")
    k.e("s_lshl_b32 s10, s10, 3")
    k.e("s_add_u32 s8, s8, s10")
    k.e("s_and_b32 s101, s3, 3")
    k.e(f"s_mul_i32 s81, s101, {CONV_LDS}")
    k.e(f"s_add_u32 s81, s81, {RB0}")
    def flags_srd():
        srd(k, FSRD, P_WS, FL_BYTES, FL_OFF)
        k.e(f"s_load_dwordx2 s[{TAG}:{TAG+1}], s[{FSRD}:{FSRD+1}], {EP}")
    k.e("s_cmp_ge_u32 s2, 224")
    k.e("s_cbranch_scc1 L_free")
    k.e("s_cmp_lt_u32 s3, 4")
    k.e("s_cbranch_scc1 L_a")
    k.e(f"s_setprio {flag('PBL', 1)}")
    r = Rec(); k1.loader_setup(r, 6, 7, 101)
    for x in r.lines[8:]: k.e(x)
    k.e("s_waitcnt lgkmcnt(0)")
    for x in r.lines[:8]: k.e(x)
    vm = Vm(); last = {}
    def put(x):
        k.e(x)
        return vm.op() if is_vmem(x) else None
    def dma(st):
        for x in k1.dma(st):
            q = put(x)
            if q is not None: last[st] = q
    if flag("SB", 1): k.e("s_barrier")
    dma(0)
    flags_srd()
    k.e(f"v_mov_b32 v250, {CNT}")
    k.e("s_lshl_b32 s10, s101, 2")
    k.e(f"s_add_u32 s10, s10, {CNT + PB}")
    k.e("v_mov_b32 v248, s10")
    u_addr(k)
    rel1_addr(k)
    k.e("s_lshl_b32 s82, s2, 1")
    k.e("s_add_u32 s53, s2, 448")
    k.e("s_cmp_lt_u32 s2, 64")
    k.e("s_cselect_b32 s52, s53, 1000")
    k.e("s_cselect_b32 s53, s53, s82")
    watch_addr(k, 224, 82, 53)
    k.e("s_add_u32 s82, s82, s101")
    k.e("s_cmp_eq_u32 s101, 2")
    k.e("s_cselect_b32 s82, s52, s82")
    k.e("s_cmp_eq_u32 s101, 3")
    k.e("s_cselect_b32 s82, 1000, s82")
    k.e("s_lshl_b32 s83, s2, 7")
    k.e("s_waitcnt lgkmcnt(0)")
    make_tag(k)
    dma(1)
    PV = 252
    PUBS = STS + flag("PUBD", 2); st_idx = None
    k.e("s_cmp_eq_u32 s101, 2")
    k.e(f"s_cselect_b32 s83, s83, {OOB}")
    k.e("v_mov_b32 v249, 1")
    for s in range(8):
        w = vm.wait(last[s])
        if s == PUBS: w = min(w, vm.wait(st_idx))
        k.e(f"s_waitcnt vmcnt({w})")
        k.e("s_barrier")
        if s == PUBS:
            publish(k, 83, 4); vm.op()
            stamp(k, 2, 0)
        if s == STS:
            for x in u_out():
                q = put(x)
                if q is not None: st_idx = q
        if s == RST:
            for x in rel1_reads(): k.e(x)
        dma(s + 2)
        if s == RST:
            for x in rel1_stores():
                q = put(x)
                if q is not None: rs_idx = q
        if s == RLD:
            for x in rel1_loads(): put(x)
    w8, w9 = vm.wait(last[8]), vm.wait(last[9]); wr = min(vm.wait(rs_idx), w9)
    k.e("s_cmp_lt_u32 s82, 640")
    k.e("s_cbranch_scc1 L_b_hasconv")
    k.e(f"s_waitcnt vmcnt({w8})")
    k.e("s_barrier")
    k.e("s_cmp_eq_u32 s101, 3")
    k.e("s_cbranch_scc1 L_b_w7")
    k.e(f"s_waitcnt vmcnt({w9})")
    for x in prog_write(248, 251, 1): k.e(x)
    k.e("s_waitcnt vmcnt(0)")
    for x in prog_write(248, 251, 2): k.e(x)
    k.e("s_branch L_b_aprep")
    k.e("L_b_w7:")
    pre = watch_pre(228, 224)
    k.e("s_setprio 3")
    k.e(pre[0])
    k.e(f"s_waitcnt vmcnt({w9 + 1})")
    for x in prog_write(248, 251, 1): k.e(x)
    k.e("s_waitcnt vmcnt(0)")
    for x in prog_write(248, 251, 2): k.e(x)
    k.e(f"v_cmp_ne_u64 vcc, s[{TAG}:{TAG+1}], v[228:229]")
    k.e("s_cmp_eq_u64 vcc, 0")
    k.e("s_cbranch_scc0 L_b_n1")
    k.e(f"ds_write_b32 v250, v249 offset:{UOK}")
    k.e("L_b_n1:")
    k.e("s_lshl_b32 s83, s2, 7")
    k.e(f"s_add_u32 s83, s83, {FB}")
    prog_wait(k, "L_b_rs", 250, PV, PB, 10, 2)
    publish(k, 83, 4)
    stamp(k, 2, 1)
    for _ in range(flag("WSL", 1)): k.e("s_sleep 16")
    k.e(pre[1])
    watch(k, "L_bw", 228, 224)
    stamp(k, 2, 2)
    k.e("s_cmp_lg_u32 s2, 0")
    k.e("s_cbranch_scc1 L_b_aprep")
    k.e("s_setprio 0")
    k.e("v_lshlrev_b32 v1, 7, v0")
    k.e(f"s_mov_b32 s83, {FB}")
    k.e("L_ep_next:")
    poll(k, "L_ep", 4, 1, 83, 10, 64, sleep=16)
    k.e("s_add_u32 s83, s83, 8192")
    k.e(f"s_cmp_lt_u32 s83, {FB + 32768}")
    k.e("s_cbranch_scc1 L_ep_next")
    k.e(f"s_mov_b32 s83, {EP}")
    publish(k, 83, 4)
    k.e("s_branch L_b_aprep")
    k.e("L_b_hasconv:")
    conv.conv2_setup(k, 82)
    k.e(f"s_waitcnt vmcnt({w8 + 2})")
    k.e("s_barrier")
    conv.conv2_addr(k, 81)
    k.e(f"s_waitcnt vmcnt({w9 + 2})")
    for x in prog_write(248, 251, 1): k.e(x)
    k.e(f"s_waitcnt vmcnt({wr + 2})")
    for x in prog_write(248, 251, 2): k.e(x)
    k.e("L_b_conv:")
    k.e(f"v_mov_b32 v250, {CNT}")
    conv.conv2_dma(k, 81)
    k.e("s_waitcnt vmcnt(16)")
    conv.conv2_fix(k)
    stamp(k, 1, 0)
    lds_wait(k, "L_b_uw", 250, 251, UOK, 80)
    conv.conv_setup_u(k, 82, 81, SC1)
    k.e("s_waitcnt vmcnt(0)")
    stamp(k, 1, 1); stamp(k, 3, 3)
    k.e(f"s_setprio {flag('PC', 1)}")
    conv.conv_main(k, "f")
    stamp(k, 3, 0)
    k.e("s_setprio 3")
    conv.conv_epilogue(k, 82, SC1)
    stamp(k, 3, 1)
    k.e(f"s_lshl_b32 s10, s82, {YSH}")
    k.e(f"s_add_u32 s83, s10, {FY}")
    k.e("s_waitcnt vmcnt(0)")
    stamp(k, 3, 2)
    publish(k, 83, 4)
    stamp(k, 1, 2)
    k.e("L_b_aprep:")
    k.e("s_setprio 1")
    b_aprep(k)
    finish(k, 1)
    k.e("L_free:")
    for _ in range(flag("XFREE")): k.e("s_sleep 64")
    k.e("s_waitcnt lgkmcnt(0)")
    flags_srd()
    k.e("s_sub_u32 s84, s2, 224")
    k.e("s_mov_b32 s85, s3")
    k.e("s_cmp_eq_u32 s3, 7")
    k.e("s_cbranch_scc1 L_free_code" if flag("CPF", 1) else "s_cbranch_scc1 L_free_sync")
    k.e("s_cmp_lt_u32 s3, 4")
    k.e("s_cbranch_scc1 L_free_stats")
    k.e("s_setprio 2")
    k.e("s_mul_i32 s85, s84, 3")
    k.e("s_add_u32 s85, s85, s101")
    k.e("s_add_u32 s85, s85, 224")
    aux.emit_prep(k, 85, 81, SC1)
    make_tag(k)
    k.e("s_lshl_b32 s85, s85, 7")
    k.e("s_waitcnt vmcnt(0)")
    publish(k, 85, 4)
    k.e("s_barrier")
    k.e("s_branch L_free_b")
    if flag("CPF", 1):
        k.e("L_free_code:")
        k.e("s_setprio 3")
        k.e("s_getpc_b64 s[40:41]")
        k.e("L_pc:")
        k.e(f"s_sub_u32 s40, s40, L_pc-{NAME}")
        k.e("s_subb_u32 s41, s41, 0")
        k.e(f"s_mov_b32 s42, L_end-{NAME}")
        k.e("s_mov_b32 s43, 0x20000")
        k.e("v_lshlrev_b32 v1, 7, v0")
        k.e("s_mov_b32 s44, 0")
        for i in range(4):
            k.e(f"buffer_load_dword v{8+i}, v1, s[40:43], s44 offen")
            k.e("s_add_u32 s44, s44, 8192")
        k.e("s_setprio 0")
        k.e("s_branch L_free_sync")
    k.e("L_free_stats:")
    stats_rows(k, 85)
    aux.emit_stats(k, 52, SC1)
    k.e("s_add_u32 s85, s85, 4")
    k.e("s_cmp_lt_u32 s85, 8")
    k.e("s_cbranch_scc1 L_free_stats")
    k.e("L_free_sync:")
    k.e("s_waitcnt vmcnt(0) lgkmcnt(0)")
    k.e("s_barrier")
    make_tag(k)
    k.e("s_cmp_lt_u32 s3, 4")
    k.e("s_cbranch_scc1 L_free_a")
    k.e("L_free_b:")
    k.e("s_setprio 1")
    k.e("s_lshl_b32 s82, s84, 2")
    k.e("s_add_u32 s82, s82, s101")
    k.e("s_add_u32 s82, s82, 512")
    conv.conv2_setup(k, 82)
    conv.conv2_addr(k, 81)
    k.e("s_branch L_b_conv")
    k.e("L_free_a:")
    g2_offsets(k)
    srd(k, 44, P_WS, NB_W, W2_OFF)
    k.e("v_lshlrev_b32 v1, 4, v0")
    k.e("v_add_u32 v2, 4096, v1")
    k.e("s_cmp_lg_u32 s3, 0")
    k.e("s_cbranch_scc1 L_g2w")
    k.e("s_lshl_b32 s83, s2, 7")
    k.e(f"s_add_u32 s83, s83, {FB}")
    publish(k, 83, 4)
    k.e("s_lshl_b32 s62, s84, 2")
    k.e("s_add_u32 s62, s62, 512")
    watch_addr(k, 16, 62, 62)
    for x in watch_pre(20, 16): k.e(x)
    watch(k, "L_fw", 20, 16)
    k.e("s_branch L_g2w")
    k.e("L_a:")
    k.e("s_setprio 3")
    prep_addr(k)
    k.e("s_waitcnt lgkmcnt(0)")
    prep_loads(k)
    if flag("SB", 1): k.e("s_barrier")
    k.e(f"s_setprio {flag('PAL', 0)}")
    flags_srd()
    g2_offsets(k)
    g1_setup(k)
    k.e("s_waitcnt lgkmcnt(0)")
    make_tag(k)
    prep_compute(k)
    g1_phase(k)
    g2_phase(k)
    finish(k, 0)
    k.e("L_end:")
    k.e("s_endpgm")
    return k

if __name__ == "__main__":
    import sys
    hdr = open("recurrent_scan__ssm_conv_h3__dense_activation_relu__prompt.s.ref").read().split("; Override")[0]
    k = kernel()
    out = hdr + f"; @launch grid=(256,1,1) block=(512,1,1) lds={LDS_BYTES}\n"
    out += '.amdgcn_target "amdgcn-amd-amdhsa--gfx950"\n.text\n' + k.body() + '.section .rodata,"a"\n' + k.desc()
    open(sys.argv[1], "w").write(out)
```

```python
from common import *

class _Scalarize:
    def __init__(self, k): self.k = k
    def c(self, s): pass
    def e(self, x):
        import re
        m = re.match(r"v_pk_(add|mul|fma)_f32 (.*)", x.strip())
        if not m: return self.k.e(x)
        regs = [int(r) for r in re.findall(r"v\[(\d+):", m.group(2))]
        for h in range(2):
            self.k.e(f"v_{m.group(1)}_f32 " + ", ".join(f"v{r+h}" for r in regs))

def emit_stats_scalar(k, s_row0, sc=""):
    emit_stats(_Scalarize(k), s_row0, sc)

def emit_stats(k, s_row0, sc=""):
    srd(k, 40, P_Q, NB_X)
    srd(k, 44, P_WS, 16384, ST_OFF)
    k.e(f"s_mul_i32 s48, s{s_row0}, 1280")
    k.e("v_lshrrev_b32 v1, 3, v0")
    k.e("v_mul_u32_u24 v2, 1280, v1")
    k.e("v_and_b32 v3, 7, v0")
    k.e("v_lshl_add_u32 v2, v3, 4, v2")
    RAW = 8
    UNP = 48
    for i in range(10):
        k.e(f"buffer_load_dwordx4 v[{RAW+4*i}:{RAW+4*i+3}], v2, s[40:43], s48 offen offset:{128*i}")
    ACC = 4
    for i in range(10):
        k.e(f"s_waitcnt vmcnt({9-i})")
        for j in range(4):
            unpack(k, UNP + 8*i + 2*j, UNP + 8*i + 2*j + 1, RAW + 4*i + j)
        for j in range(4):
            u = UNP + 8*i + 2*j
            a = ACC + 2 * (j & 1)
            if i == 0 and j < 2:
                k.e(f"v_pk_add_f32 v[{a}:{a+1}], v[{u}:{u+1}], v[{u+4}:{u+5}]")
            elif i == 0:
                pass
            else:
                k.e(f"v_pk_add_f32 v[{a}:{a+1}], v[{a}:{a+1}], v[{u}:{u+1}]")
    def reduce8(dst):
        k.e("v_pk_add_f32 v[4:5], v[4:5], v[6:7]")
        k.e(f"v_add_f32 v{dst}, v4, v5")
        k.e(f"v_add_f32_dpp v{dst}, v{dst}, v{dst} quad_perm:[1,0,3,2] row_mask:0xf bank_mask:0xf")
        k.e(f"v_add_f32_dpp v{dst}, v{dst}, v{dst} quad_perm:[2,3,0,1] row_mask:0xf bank_mask:0xf")
        k.e(f"v_add_f32_dpp v{dst}, v{dst}, v{dst} row_half_mirror row_mask:0xf bank_mask:0xf")
    reduce8(8)
    k.e(f"v_mul_f32 v8, {1.0/D!r}, v8")
    k.e("v_sub_f32 v10, 0, v8")
    k.e("v_sub_f32 v11, 0, v8")
    for i in range(40):
        u = UNP + 2*i
        k.e(f"v_pk_add_f32 v[{u}:{u+1}], v[{u}:{u+1}], v[10:11]")
    for i in range(40):
        u = UNP + 2*i
        a = ACC + 2 * (i & 1)
        if i < 2:
            k.e(f"v_pk_mul_f32 v[{a}:{a+1}], v[{u}:{u+1}], v[{u}:{u+1}]")
        else:
            k.e(f"v_pk_fma_f32 v[{a}:{a+1}], v[{u}:{u+1}], v[{u}:{u+1}], v[{a}:{a+1}]")
    reduce8(9)
    k.e(f"v_mul_f32 v9, {1.0/D!r}, v9")
    k.e("v_cvt_pk_bf16_f32 v12, v8, v9")
    k.e("v_lshlrev_b32 v14, 16, v12")
    k.e("v_and_b32 v13, 0xffff0000, v12")
    k.e("v_add_f32 v13, 0x3727c5ac, v13")
    k.e("v_cvt_pk_bf16_f32 v13, v13, v13")
    k.e("v_and_b32 v13, 0xffff0000, v13")
    k.e("v_sqrt_f32 v13, v13")
    k.e("v_cvt_pk_bf16_f32 v13, v13, v13")
    k.e("v_and_b32 v13, 0xffff0000, v13")
    k.e("v_rcp_f32 v15, v13")
    k.e("v_lshlrev_b32 v1, 3, v1")
    k.e(f"s_lshl_b32 s48, s{s_row0}, 3")
    k.e("v_cmp_eq_u32 vcc, 0, v3")
    k.e("s_and_saveexec_b64 s[50:51], vcc")
    k.e(f"buffer_store_dwordx2 v[14:15], v1, s[44:47], s48 offen{sc}")
    k.e("s_mov_b64 exec, s[50:51]")

def emit_prep(k, s_unit, s_lds=None, sc=""):
    srd(k, 40, P_K, NB_X)
    srd(k, 44, P_V, NB_X)
    srd(k, 52, P_SH, D * 8)
    srd(k, 56, P_WS, NB_T, UR_OFF)
    k.e(f"s_mul_i32 s48, s{s_unit}, 6554")
    k.e("s_lshr_b32 s48, s48, 16")
    k.e("s_mul_i32 s49, s48, 10")
    k.e(f"s_sub_u32 s49, s{s_unit}, s49")
    k.e("v_and_b32 v1, 7, v0")
    k.e("v_lshrrev_b32 v2, 3, v0")
    k.e("s_mul_i32 s51, s48, 81920")
    k.e("s_lshl_b32 s60, s49, 7")
    k.e("s_add_u32 s51, s51, s60")
    k.e("v_mul_u32_u24 v4, 10240, v2")
    k.e("v_lshl_add_u32 v4, v1, 4, v4")
    k.e("v_add_u32 v4, s51, v4")
    k.e("v_subrev_u32 v5, 3840, v4")
    k.e("s_movk_i32 s61, 5120")
    k.e("v_lshlrev_b32 v3, 4, v0")
    k.e("s_lshl_b32 s50, s49, 9")
    k.e(f"s_mov_b32 m0, s{s_lds}")
    k.e("buffer_load_dwordx4 v3, s[52:55], s50 offen lds")
    TR = 8
    KR = 24
    VR = 68
    def kload(j):
        so = "0" if j < 4 else "s61"
        k.e(f"buffer_load_dwordx4 v[{KR+12+4*j}:{KR+12+4*j+3}], v4, s[40:43], {so} offen offset:{1280*(j%4)}")
    def vload(j):
        so = "0" if j < 4 else "s61"
        k.e(f"buffer_load_dwordx4 v[{VR+4*j}:{VR+4*j+3}], v4, s[44:47], {so} offen offset:{1280*(j%4)}")
    for j in range(3):
        kload(5 + j)
        k.e(f"buffer_load_dwordx4 v[{KR+4*j}:{KR+4*j+3}], v5, s[40:43], 0 offen offset:{1280*j}")
    for j in range(8):
        if j < 5: kload(j)
        vload(j)
    k.e(f"v_lshl_add_u32 v6, v1, 6, s{s_lds}")
    k.e("s_waitcnt vmcnt(19)")
    for i in range(4):
        k.e(f"ds_read_b128 v[{TR+4*i}:{TR+4*i+3}], v6 offset:{16*i}")
    k.e("v_sub_u32 v7, 7, v2")
    k.e("v_xor_b32 v7, v7, v1")
    k.e("v_lshlrev_b32 v7, 4, v7")
    k.e("v_lshl_add_u32 v7, v1, 10, v7")
    k.e(f"v_add_u32 v7, s{s_lds}, v7")
    k.e("v_xor_b32 v6, v1, v2")
    k.e("v_lshlrev_b32 v6, 4, v6")
    k.e("v_lshl_add_u32 v6, v2, 10, v6")
    k.e(f"v_add_u32 v6, s{s_lds}, v6")
    k.e(f"v_mul_u32_u24 v3, {8*RS}, v2")
    k.e("v_lshl_add_u32 v3, v1, 4, v3")
    TP = 100
    k.e("s_waitcnt lgkmcnt(0)")
    for c in range(8):
        unpack(k, TP + 0*8 + c, TP + 1*8 + c, TR + 2*c)
        unpack(k, TP + 2*8 + c, TP + 3*8 + c, TR + 2*c + 1)
    KW = 132
    VU = 164
    KV = 172
    OUT = 188
    def unpack_row(dst, src):
        for i in range(4):
            unpack(k, dst + 2*i, dst + 2*i + 1, src + i)
    k.e("s_waitcnt vmcnt(13)")
    for j in range(3):
        unpack_row(KW + 8*j, KR + 4*j)
    for r in range(8):
        left = (13 - 2*(r+1)) if r < 5 else (7 - r)
        k.e(f"s_waitcnt vmcnt({left})")
        unpack_row(KW + 8*((r+3) % 4), KR + 12 + 4*r)
        unpack_row(VU, VR + 4*r)
        kv = KV + 8*(r & 1)
        for i in range(4):
            d = kv + 2*i
            for j in (3, 2, 1, 0):
                w = KW + 8*((r + 3 - j) % 4) + 2*i
                t = TP + 8*j + 2*i
                if j == 3:
                    k.e(f"v_pk_mul_f32 v[{d}:{d+1}], v[{w}:{w+1}], v[{t}:{t+1}]")
                else:
                    k.e(f"v_pk_fma_f32 v[{d}:{d+1}], v[{w}:{w+1}], v[{t}:{t+1}], v[{d}:{d+1}]")
        for i in range(4):
            d = kv + 2*i
            k.e(f"v_pk_mul_f32 v[{d}:{d+1}], v[{d}:{d+1}], v[{VU+2*i}:{VU+2*i+1}]")
        if r & 1:
            for c in range(8):
                k.e(f"v_cvt_pk_bf16_f32 v{OUT+4*c+3-r//2}, v{KV+8+c}, v{KV+c}")
    for c in range(8):
        k.e(f"ds_write_b128 v7, v[{OUT+4*c}:{OUT+4*c+3}] offset:{128*c}")
    k.e("s_lshl_b32 s60, s48, 7")
    k.e("s_sub_u32 s60, 3968, s60")
    k.e(f"s_mul_i32 s61, s49, {64*RS}")
    k.e("s_add_u32 s60, s60, s61")
    k.e("s_waitcnt lgkmcnt(0)")
    for c in range(8):
        k.e(f"ds_read_b128 v[{OUT+4*c}:{OUT+4*c+3}], v6 offset:{128*c}")
    for c in range(8):
        k.e(f"s_waitcnt lgkmcnt({7-c})")
        k.e(f"buffer_store_dwordx4 v[{OUT+4*c}:{OUT+4*c+3}], v3, s[56:59], s60 offen{sc}")
        if c < 7: k.e(f"s_add_u32 s60, s60, {RS}")

def emit_relayout(k, s_unit, s_lds, sc=""):
    srd(k, 40, P_W2, NB_W)
    srd(k, 44, P_WS, NB_W, W2_OFF)
    k.e(f"s_lshr_b32 s48, s{s_unit}, 2")
    k.e(f"s_and_b32 s49, s{s_unit}, 3")
    k.e("s_mul_i32 s50, s48, 40960")
    k.e("s_mul_i32 s51, s49, 320")
    k.e("s_add_u32 s50, s50, s51")
    for i in range(10):
        k.e(f"v_add_u32 v1, {64*i}, v0")
        k.e("v_mul_u32_u24 v2, 52429, v1")
        k.e("v_lshrrev_b32 v2, 20, v2")
        k.e("v_mul_u32_u24 v2, 960, v2")
        k.e("v_lshl_add_u32 v2, v1, 4, v2")
        k.e(f"s_add_u32 m0, s{s_lds}, {1024*i}")
        k.e("buffer_load_dwordx4 v2, s[40:43], s50 offen lds")
    k.e("v_lshrrev_b32 v3, 2, v0")
    k.e("v_mul_u32_u24 v3, 320, v3")
    k.e("v_and_b32 v4, 3, v0")
    k.e("v_lshl_add_u32 v3, v4, 3, v3")
    k.e(f"v_add_u32 v3, s{s_lds}, v3")
    k.e("v_lshlrev_b32 v5, 4, v0")
    k.e("s_mul_i32 s51, s49, 108")
    k.e("s_add_u32 s51, s51, s48")
    k.e("s_mul_i32 s51, s51, 5120")
    k.e(f"s_add_u32 s52, s51, {54*5120}")
    k.e("s_add_u32 s53, s51, 4096")
    k.e("s_add_u32 s54, s52, 4096")
    k.e("s_waitcnt vmcnt(0)")
    for b in range(10):
        r = 8 + 4*b
        k.e(f"ds_read_b64_tr_b16 v[{r}:{r+1}], v3 offset:{32*b}")
        k.e(f"ds_read_b64_tr_b16 v[{r+2}:{r+3}], v3 offset:{32*b+5120}")
    for b in range(10):
        r = 8 + 4*b
        k.e(f"s_waitcnt lgkmcnt({min(15,18-2*b)})")
        db = b % 5
        so = (51 if b < 5 else 52) if db < 4 else (53 if b < 5 else 54)
        k.e(f"buffer_store_dwordx4 v[{r}:{r+3}], v5, s[44:47], s{so} offen offset:{1024*(db%4)}{sc}")

def aux_kernel():
    k = Kern("aux_kernel")
    stamp_begin(k)
    k.e("s_cmp_ge_u32 s2, 256")
    k.e("s_cbranch_scc1 L_aux_end")
    load_ptrs(k)
    k.e("v_lshrrev_b32 v1, 6, v0")
    k.e("v_readfirstlane_b32 s3, v1")
    k.e("v_and_b32 v0, 63, v0")
    k.e("s_waitcnt lgkmcnt(0)")
    k.e("s_cmp_eq_u32 s3, 1")
    k.e("s_cbranch_scc1 L_aux_prep1")
    k.e("s_cmp_eq_u32 s3, 2")
    k.e("s_cbranch_scc1 L_aux_rel")
    k.e("s_cmp_eq_u32 s3, 3")
    k.e("s_cbranch_scc1 L_aux_prep2")
    k.e("s_lshl_b32 s4, s2, 3")
    emit_stats(k, 4)
    finish(k, 0)
    k.e("L_aux_prep2:")
    k.e("s_cmp_ge_u32 s2, 64")
    k.e("s_cbranch_scc1 L_aux_end")
    k.e("s_add_u32 s2, s2, 256")
    k.e("L_aux_prep1:")
    emit_prep(k, 2)
    finish(k, 0)
    k.e("L_aux_rel:")
    k.e("s_cmp_ge_u32 s2, 216")
    k.e("s_cbranch_scc1 L_aux_end")
    k.e("s_mov_b32 s4, 0")
    emit_relayout(k, 2, 4)
    finish(k, 0)
    k.e("L_aux_end:")
    k.e("s_endpgm")
    return k
```

```python
from common import *

CP = 4160
UROFF = 4 * CP
CONV_LDS = UROFF + 4608

C_ACC = 8
C_FR = 40

def conv_setup(k, s_ch, s_lds, sc=""):
    srd(k, 60, P_SK, D * S * 2)
    srd(k, 64, P_WS, D * S * 2, UR_OFF)
    srd(k, 68, P_WS, D * S * 2, YT_OFF)
    k.e(f"s_lshl_b32 s72, s{s_ch}, 12")
    k.e(f"s_and_b32 s73, s{s_ch}, 0xfffe")
    k.e("s_lshl_b32 s73, s73, 1")
    k.e(f"s_load_dword s74, s[{P_D}:{P_D+1}], s73")
    k.e("v_lshlrev_b32 v1, 4, v0")
    for c in range(4):
        for sh in range(3):
            r = C_FR + 12*c + 4*sh
            k.e(f"buffer_load_dwordx4 v[{r}:{r+3}], v1, s[60:63], s72 offen offset:{1024*c + 4*sh}")
    k.e(f"s_add_u32 m0, s{s_lds}, {UROFF}")
    for c in range(4):
        k.e(f"buffer_load_dwordx4 v1, s[64:67], s72 offen offset:{1024*c}{sc} lds")

def conv_setup_hk(k, s_ch, s_lds):
    srd(k, 60, P_SK, D * S * 2)
    srd(k, 64, P_WS, NB_T, UR_OFF)
    srd(k, 68, P_WS, NB_T, YT_OFF)
    k.e(f"s_lshl_b32 s72, s{s_ch}, 12")
    k.e(f"s_and_b32 s73, s{s_ch}, 0xfffe")
    k.e("s_lshl_b32 s73, s73, 1")
    k.e(f"s_load_dword s74, s[{P_D}:{P_D+1}], s73")
    k.e("v_lshlrev_b32 v1, 4, v0")
    for c in range(4):
        for sh in range(3):
            r = C_FR + 12*c + 4*sh
            k.e(f"buffer_load_dwordx4 v[{r}:{r+3}], v1, s[60:63], s72 offen offset:{1024*c + 4*sh}")
    k.e(f"s_mul_i32 s72, s{s_ch}, {RS}")

def conv_setup_u(k, s_ch, s_lds, sc=""):
    k.e(f"s_add_u32 m0, s{s_lds}, {UROFF}")
    for c in range(4):
        k.e(f"buffer_load_dwordx4 v1, s[64:67], s72 offen offset:{1024*c}{sc} lds")

def conv_stage(k, s_ch, s_lds, younger, hook=None):
    k.e(f"v_add_u32 v2, s{s_lds}, v1")
    for i in range(4): k.e(f"v_mov_b32 v{C_ACC+i}, 0")
    k.e(f"v_add_u32 v3, {UROFF + 4096}, v2")
    k.e("v_bfe_u32 v4, v0, 1, 2")
    k.e(f"v_mul_u32_u24 v4, {CP}, v4")
    k.e("v_and_b32 v5, 1, v0")
    k.e("v_lshl_add_u32 v4, v5, 4, v4")
    k.e(f"v_add_u32 v4, s{s_lds}, v4")
    k.e("v_cmp_gt_u32 vcc, 32, v0")
    k.e("v_cndmask_b32 v3, v4, v3, vcc")
    k.e(f"ds_write_b128 v3, v[{C_ACC}:{C_ACC+3}]")
    OD = C_FR + 48
    for c in range(4):
        k.e(f"s_waitcnt vmcnt({younger + 4 + 3*(3-c)})")
        d, e_, f = C_FR + 12*c, C_FR + 12*c + 4, C_FR + 12*c + 8
        o1, o3 = OD + 8*c, OD + 8*c + 4
        for i in range(4):
            k.e(f"v_alignbit_b32 v{o1+i}, v{e_+i}, v{d+i}, 16")
            k.e(f"v_alignbit_b32 v{o3+i}, v{f+i}, v{e_+i}, 16")
        for s, r in enumerate((d, o1, e_, o3)):
            k.e(f"ds_write_b128 v2, v[{r}:{r+3}] offset:{s*CP + 32 + 1024*c}")
        if c == 0:
            k.e(f"v_lshlrev_b32 v5, 16, v{d}")
            k.e("v_cmp_eq_u32 vcc, 0, v0")
            k.e("s_and_saveexec_b64 s[76:77], vcc")
            k.e(f"ds_write_b32 v2, v5 offset:{1*CP + 28}")
            k.e(f"ds_write_b32 v2, v{d} offset:{2*CP + 28}")
            k.e(f"ds_write_b32 v2, v5 offset:{3*CP + 24}")
            k.e(f"ds_write_b32 v2, v{o1} offset:{3*CP + 28}")
            k.e("s_mov_b64 exec, s[76:77]")
            if hook: hook()
    k.e("v_and_b32 v6, 15, v0")
    k.e("v_lshrrev_b32 v7, 4, v0")
    k.e("v_add_u32 v3, 1, v6")
    k.e("v_and_b32 v4, 3, v3")
    k.e(f"v_mul_u32_u24 v4, {CP}, v4")
    k.e("v_and_b32 v3, 0x1c, v3")
    k.e("v_lshl_add_u32 v3, v3, 1, v4")
    k.e("v_lshl_add_u32 v3, v7, 4, v3")
    k.e(f"v_add_u32 v3, s{s_lds}, v3")
    k.e("v_lshlrev_b32 v6, 5, v6")
    k.e(f"s_add_u32 s75, s{s_lds}, {UROFF + 480}")
    k.e("v_sub_u32 v4, s75, v6")
    k.e("v_lshlrev_b32 v5, 3, v7")
    k.e("v_sub_u32 v5, v4, v5")
    k.e("v_add_u32 v5, 24, v5")
    k.e("v_lshl_add_u32 v4, v7, 4, v4")
    k.e("v_and_b32 v2, 1, v7")
    k.e("v_lshl_add_u32 v6, v2, 9, v6")
    k.e("v_lshrrev_b32 v7, 1, v7")
    k.e("v_lshl_add_u32 v6, v7, 4, v6")
    for i in range(32): k.e(f"v_mov_b32 v{C_ACC+i}, 0")
    k.e(f"s_waitcnt vmcnt({younger}) lgkmcnt(0)")

def conv_reads(buf, roff):
    fa = C_FR + 64*buf; fb = fa + 32
    L = []
    for i in range(8):
        L.append(f"ds_read_b64 v[{fa+4*i}:{fa+4*i+1}], v3 offset:{512*i + roff}")
        L.append(f"ds_read_b64 v[{fa+4*i+2}:{fa+4*i+3}], v3 offset:{512*i + roff + 8}")
        L.append(f"ds_read_b128 v[{fb+4*i}:{fb+4*i+3}], v4 offset:{512*(7-i) + roff}")
    return L

def conv_mfmas(buf):
    fa = C_FR + 64*buf; fb = fa + 32
    L = []
    for a in range(8):
        for c in range(a, 8):
            y = C_ACC + 4*c
            L.append(f"v_mfma_f32_16x16x32_bf16 v[{y}:{y+3}], v[{fa+4*a}:{fa+4*a+3}], v[{fb+4*(c-a)}:{fb+4*(c-a)+3}], v[{y}:{y+3}]")
    return L

def interleave(main, fill, start=0):
    out = []; fi = 0
    for i, x in enumerate(main):
        out.append(x)
        if i >= start and fi < len(fill):
            out.append(fill[fi]); fi += 1
    out += fill[fi:]
    return out

def conv_main(k, tag):
    for x in conv_reads(0, 0): k.e(x)
    k.e("s_mov_b32 s75, 0")
    if flag("CAL", -1) >= 0:
        k.e(".p2align 6")
        for _ in range(flag("CAL")): k.e("s_nop 0")
    k.e(f"L_conv_loop_{tag}:")
    k.e("s_waitcnt lgkmcnt(0)")
    for x in interleave(conv_mfmas(0), conv_reads(1, 64)): k.e(x)
    k.e("s_waitcnt lgkmcnt(0)")
    for x in interleave(conv_mfmas(1), conv_reads(0, 128)): k.e(x)
    k.e("v_add_u32 v3, 128, v3")
    k.e("v_add_u32 v4, 128, v4")
    k.e("s_add_u32 s75, s75, 1")
    k.e("s_cmp_lt_u32 s75, 4")
    k.e(f"s_cbranch_scc1 L_conv_loop_{tag}")

def conv_epilogue(k, s_ch, sc=""):
    U = C_FR + 64
    T = C_FR + 80
    O = C_FR + 96
    k.e("s_waitcnt lgkmcnt(0)")
    for c in range(8):
        k.e(f"ds_read_b64 v[{U+2*c}:{U+2*c+1}], v5 offset:{512*(7-c)}")
    k.e(f"s_bitcmp1_b32 s{s_ch}, 0")
    k.e("s_lshl_b32 s73, s74, 16")
    k.e("s_and_b32 s74, s74, 0xffff0000")
    k.e(f"s_bitcmp1_b32 s{s_ch}, 0")
    k.e("s_cselect_b32 s74, s74, s73")
    for c in range(8):
        k.e(f"s_waitcnt lgkmcnt({7-c})")
        y = C_ACC + 4*c
        t = T + 4*(c & 1)
        k.e(f"v_and_b32 v{t}, 0xffff0000, v{U+2*c+1}")
        k.e(f"v_lshlrev_b32 v{t+1}, 16, v{U+2*c+1}")
        k.e(f"v_and_b32 v{t+2}, 0xffff0000, v{U+2*c}")
        k.e(f"v_lshlrev_b32 v{t+3}, 16, v{U+2*c}")
        for r in range(4):
            k.e(f"v_fmac_f32 v{y+r}, s74, v{t+r}")
        o = O + 4*(c >> 1) + 2*(c & 1)
        k.e(f"v_cvt_pk_bf16_f32 v{o}, v{y}, v{y+1}")
        k.e(f"v_cvt_pk_bf16_f32 v{o+1}, v{y+2}, v{y+3}")
        if c & 1:
            o = O + 4*(c >> 1)
            k.e(f"v_permlane16_swap_b32 v{o}, v{o+2}")
            k.e(f"v_permlane16_swap_b32 v{o+1}, v{o+3}")
            k.e(f"buffer_store_dwordx4 v[{o}:{o+3}], v6, s[68:71], s72 offen offset:{512*(c-1)}{sc}")

def conv_kernel():
    k = Kern("conv_kernel")
    stamp_begin(k)
    k.e("s_cmp_ge_u32 s2, 160")
    k.e("s_cbranch_scc1 L_conv_end")
    load_ptrs(k)
    k.e("v_lshrrev_b32 v1, 6, v0")
    k.e("v_readfirstlane_b32 s3, v1")
    k.e("v_and_b32 v0, 63, v0")
    k.e("s_lshl_b32 s4, s2, 2")
    k.e("s_add_u32 s4, s4, s3")
    k.e(f"s_mul_i32 s5, s3, {CONV_LDS}")
    k.e("s_waitcnt lgkmcnt(0)")
    conv_setup(k, 4, 5)
    conv_stage(k, 4, 5, 0)
    stamp_mid(k, 0)
    conv_main(k, "a")
    stamp_mid(k, 1)
    conv_epilogue(k, 4)
    finish(k, 2)
    k.e("L_conv_end:")
    k.e("s_endpgm")
    return k


def conv2_setup(k, s_ch):
    k.e(f"s_lshl_b32 s72, s{s_ch}, 12")
    k.e(f"s_add_u32 s60, s{P_SK}, s72")
    k.e(f"s_addc_u32 s61, s{P_SK+1}, 0")
    k.e(f"s_sub_u32 s62, {D * S * 2}, s72")
    k.e("s_mov_b32 s63, 0x20000")
    srd(k, 64, P_WS, NB_T, UR_OFF)
    srd(k, 68, P_WS, NB_T, YT_OFF)
    k.e(f"s_and_b32 s73, s{s_ch}, 0xfffe")
    k.e("s_lshl_b32 s73, s73, 1")
    k.e(f"s_load_dword s74, s[{P_D}:{P_D+1}], s73")
    k.e("v_lshlrev_b32 v1, 4, v0")
    k.e("v_and_b32 v2, 31, v0")
    k.e("v_lshlrev_b32 v2, 7, v2")
    k.e("buffer_load_dword v41, v2, s[60:63], 0 offen")
    k.e("v_and_b32 v6, 15, v0")
    k.e("v_lshrrev_b32 v7, 4, v0")
    k.e("v_add_u32 v2, v6, v7")
    k.e("v_lshlrev_b32 v2, 1, v2")
    k.e("v_subrev_u32 v2, 32, v2")
    k.e("buffer_load_ushort v40, v2, s[60:63], 0 offen")
    k.e(f"s_mul_i32 s72, s{s_ch}, {RS}")

def conv2_addr(k, s_lds):
    k.e(f"v_mul_u32_u24 v42, {CP}, v7")
    k.e("v_lshl_add_u32 v42, v6, 1, v42")
    k.e(f"v_add_u32 v42, s{s_lds}, v42")
    k.e("v_lshlrev_b32 v43, 3, v0")
    k.e(f"v_add_u32 v43, s{s_lds}, v43")
    k.e("v_add_u32 v3, 1, v6")
    k.e("v_and_b32 v4, 3, v3")
    k.e(f"v_mul_u32_u24 v4, {CP}, v4")
    k.e("v_and_b32 v3, 0x1c, v3")
    k.e("v_lshl_add_u32 v3, v3, 1, v4")
    k.e("v_lshl_add_u32 v3, v7, 4, v3")
    k.e(f"v_add_u32 v3, s{s_lds}, v3")
    k.e("v_lshlrev_b32 v6, 5, v6")
    k.e(f"s_add_u32 s75, s{s_lds}, {UROFF + 480}")
    k.e("v_sub_u32 v4, s75, v6")
    k.e("v_lshlrev_b32 v5, 3, v7")
    k.e("v_sub_u32 v5, v4, v5")
    k.e("v_add_u32 v5, 24, v5")
    k.e("v_lshl_add_u32 v4, v7, 4, v4")
    k.e("v_and_b32 v2, 1, v7")
    k.e("v_lshl_add_u32 v6, v2, 9, v6")
    k.e("v_lshrrev_b32 v7, 1, v7")
    k.e("v_lshl_add_u32 v6, v7, 4, v6")
    for i in range(32): k.e(f"v_mov_b32 v{C_ACC+i}, 0")

def conv2_dma(k, s_lds):
    for s in (0, 2, 1, 3):
        k.e(f"s_add_u32 m0, s{s_lds}, {s*CP + 32}")
        k.e(f"s_mov_b32 s75, {2*s}")
        for c in range(4):
            k.e(f"buffer_load_dwordx4 v1, s[60:63], s75 offen offset:{1024*c} lds")

def conv2_fix(k):
    k.e("ds_write_b16 v42, v40")
    k.e(f"ds_write_b64 v43, v[{C_ACC}:{C_ACC+1}] offset:{UROFF + 4096}")


def conv3_addr(k, s_lds):
    k.e(f"v_mul_u32_u24 v42, {CP}, v7")
    k.e("v_lshl_add_u32 v42, v6, 1, v42")
    k.e(f"v_add_u32 v42, s{s_lds}, v42")
    k.e("v_lshlrev_b32 v43, 3, v0")
    k.e(f"v_add_u32 v43, s{s_lds}, v43")
    k.e("v_add_u32 v3, 1, v6")
    k.e("v_and_b32 v4, 1, v3")
    k.e(f"v_mul_u32_u24 v4, {CP}, v4")
    k.e("v_and_b32 v3, 0x1e, v3")
    k.e("v_lshl_add_u32 v3, v3, 1, v4")
    k.e("v_lshl_add_u32 v3, v7, 4, v3")
    k.e(f"v_add_u32 v168, s{s_lds}, v3")
    for i in range(1, 4): k.e(f"v_add_u32 v{168+i}, {1024*i}, v168")
    k.e("v_lshlrev_b32 v6, 5, v6")
    k.e(f"s_add_u32 s75, s{s_lds}, {UROFF + 480}")
    k.e("v_sub_u32 v4, s75, v6")
    k.e("v_lshlrev_b32 v5, 3, v7")
    k.e("v_sub_u32 v5, v4, v5")
    k.e("v_add_u32 v5, 24, v5")
    k.e("v_lshl_add_u32 v4, v7, 4, v4")
    k.e("v_and_b32 v2, 1, v7")
    k.e("v_lshl_add_u32 v6, v2, 9, v6")
    k.e("v_lshrrev_b32 v7, 1, v7")
    k.e("v_lshl_add_u32 v6, v7, 4, v6")
    for i in range(32): k.e(f"v_mov_b32 v{C_ACC+i}, 0")

def conv3_dma(k, s_lds):
    for s in (0, 1):
        k.e(f"s_add_u32 m0, s{s_lds}, {s*CP + 32}")
        k.e(f"s_mov_b32 s75, {2*s}")
        for c in range(4):
            k.e(f"buffer_load_dwordx4 v1, s[60:63], s75 offen offset:{1024*c} lds")

def conv3_reads(buf, roff):
    fa = C_FR + 64*buf; fb = fa + 32
    L = []
    for i in range(8):
        o = (512*(i & 1) + roff) // 4
        L.append(f"ds_read2_b32 v[{fa+4*i}:{fa+4*i+1}], v{168+(i>>1)} offset0:{o} offset1:{o+1}")
        L.append(f"ds_read2_b32 v[{fa+4*i+2}:{fa+4*i+3}], v{168+(i>>1)} offset0:{o+2} offset1:{o+3}")
        L.append(f"ds_read_b128 v[{fb+4*i}:{fb+4*i+3}], v4 offset:{512*(7-i) + roff}")
    return L

def conv3_main(k, tag):
    for x in conv3_reads(0, 0): k.e(x)
    k.e("s_mov_b32 s75, 0")
    k.e(f"L_conv_loop_{tag}:")
    k.e("s_waitcnt lgkmcnt(0)")
    for x in interleave(conv_mfmas(0), conv3_reads(1, 64)): k.e(x)
    k.e("s_waitcnt lgkmcnt(0)")
    adv = [f"v_add_u32 v{r}, 128, v{r}" for r in (168, 169, 170, 171, 4)] + ["s_add_u32 s75, s75, 1", "s_cmp_lt_u32 s75, 4"]
    for x in interleave(conv_mfmas(1), conv3_reads(0, 128) + adv): k.e(x)
    k.e(f"s_cbranch_scc1 L_conv_loop_{tag}")
```

```python
from common import *
import aux

NSTAGE = 10
SLOT = 32768
WPART = 16384
REL_LDS = 4 * SLOT
K1_LDS = REL_LDS + 10240

class Vm:
    def __init__(self): self.n = 0
    def op(self): self.n += 1; return self.n - 1
    def wait(self, idx): return min(63, self.n - idx - 1)

def is_vmem(x): return x.startswith(("buffer_", "global_"))

def loader_setup(k, s_mt, s_ft, s_lw):
    srd(k, 64, P_Q, NB_X)
    srd(k, 68, P_W1, NB_W)
    XA, WA = 240, 244
    k.e("v_lshrrev_b32 v10, 3, v0")
    k.e(f"s_lshl_b32 s72, s{s_lw}, 5")
    k.e("v_add_u32 v10, s72, v10")
    k.e("v_mul_u32_u24 v10, 1280, v10")
    k.e("v_and_b32 v11, 7, v0")
    k.e("v_lshrrev_b32 v12, 4, v0")
    k.e("v_xor_b32 v13, v11, v12")
    k.e("v_xor_b32 v14, 4, v13")
    k.e(f"v_lshl_add_u32 v{XA}, v13, 4, v10")
    k.e(f"v_lshl_add_u32 v{XA+1}, v14, 4, v10")
    k.e(f"v_add_u32 v{XA+2}, {2*(10240-1024)}, v{XA}")
    k.e(f"v_add_u32 v{XA+3}, {3*(10240-1024)}, v{XA+1}")
    k.e(f"v_add_u32 v{XA+1}, {10240-1024}, v{XA+1}")
    k.e(f"s_lshl_b32 s72, s{s_lw}, 4")
    k.e("v_add_u32 v10, s72, v12")
    k.e("v_mul_u32_u24 v10, 3456, v10")
    k.e("v_and_b32 v11, 1, v0")
    k.e("v_lshl_add_u32 v10, v11, 4, v10")
    k.e("v_bfe_u32 v11, v0, 1, 3")
    k.e("v_xor_b32 v13, v11, v12")
    k.e("v_xor_b32 v14, 4, v13")
    k.e(f"v_lshl_add_u32 v{WA}, v13, 5, v10")
    k.e(f"v_lshl_add_u32 v{WA+2}, v14, 5, v10")
    k.e(f"s_cmp_eq_u32 s{s_ft}, 13")
    k.e("s_cselect_b32 s72, 0x40000000, 0")
    k.e("v_mov_b32 v15, s72")
    k.e("v_cmp_lt_u32 vcc, 3, v13")
    k.e("v_cndmask_b32 v16, 0, v15, vcc")
    k.e("v_sub_u32 v17, v15, v16")
    k.e(f"v_add_u32 v{WA}, v{WA}, v16")
    k.e(f"v_add_u32 v{WA+2}, v{WA+2}, v17")
    st = 4 * 3456 - 1024
    k.e(f"v_add_u32 v{WA+1}, {st}, v{WA}")
    k.e(f"v_add_u32 v{WA+3}, {3*st}, v{WA+2}")
    k.e(f"v_add_u32 v{WA+2}, {2*st}, v{WA+2}")
    k.e(f"s_mul_i32 s73, s{s_mt}, {128*1280}")
    k.e(f"s_lshl_b32 s74, s{s_ft}, 8")
    k.e(f"s_lshl_b32 s75, s{s_lw}, 12")
    if flag("ROT") == 5:
        orders = {0: [[0,4,1,2,3,8,5,6,7,9], [1,0,5,2,3,4,9,6,7,8], [2,3,0,6,1,4,5,7,8,9], [3,2,0,1,7,4,5,6,8,9]],
                  1: [[0,2,1,4,3,6,5,8,7,9], [1,0,3,2,5,4,7,6,9,8], [0,2,1,4,3,6,5,8,7,9], [1,0,3,2,5,4,7,6,9,8]],
                  2: [[0,2,1,3,6,4,5,7,8,9], [0,1,3,2,4,7,5,6,8,9], [1,0,2,4,3,5,8,6,7,9], [1,0,2,3,5,4,6,9,7,8]]}[flag("ORD", 0)]
        pk = [sum(c << (4*i) for i, c in enumerate(o)) for o in orders]
        k.e(f"s_and_b32 s76, s5, {1 if flag('MAP81') else 3}")
        k.e(f"s_lshr_b32 s77, s5, {1 if flag('MAP81') else 2}")
        k.e("s_add_u32 s76, s76, s77")
        k.e("s_and_b32 s76, s76, 3")
        k.e(f"s_mov_b32 s78, {pk[0] & 0xffffffff:#x}")
        k.e(f"s_mov_b32 s79, {pk[0] >> 32:#x}")
        for g in range(1, 4):
            k.e(f"s_cmp_eq_u32 s76, {g}")
            k.e(f"s_cselect_b32 s78, {pk[g] & 0xffffffff:#x}, s78")
            k.e(f"s_cselect_b32 s79, {pk[g] >> 32:#x}, s79")
        k.e(f"s_mul_i32 s80, s4, {flag('RX', 10)}")
        k.e("s_lshr_b32 s80, s80, 3")
    elif flag("ROT"):
        k.e("s_and_b32 s76, s5, 3")
        k.e(f"s_mul_i32 s76, s76, {flag('RA', 3)}")
        k.e("s_lshr_b32 s77, s5, 2")
        k.e(f"s_mul_i32 s77, s77, {flag('RB', 1)}")
        k.e("s_add_u32 s76, s76, s77")
        if flag("ROT") == 2:
            k.e("s_and_b32 s76, s5, 3")
            k.e("s_mul_i32 s76, s76, 5")
            k.e("s_add_u32 s76, s76, 1")
            k.e("s_lshr_b32 s76, s76, 1")
            k.e("s_lshr_b32 s77, s5, 2")
            k.e("s_mul_i32 s77, s77, 3")
            k.e("s_add_u32 s76, s76, s77")
            k.e("s_and_b32 s77, s4, 6")
            k.e("s_lshr_b32 s77, 0x64, s77")
            k.e("s_and_b32 s77, s77, 3")
            k.e("s_add_u32 s76, s76, s77")
            k.e("s_and_b32 s77, s4, 1")
            k.e("s_add_u32 s76, s76, s77")
        if flag("ROT") == 4:
            k.e("s_and_b32 s76, s5, 3")
            k.e("s_lshr_b32 s77, s5, 2")
            k.e("s_add_u32 s76, s76, s77")
            G = flag("RG", 2)
            if G == 3:
                k.e("s_mul_i32 s77, s76, 21846")
                k.e("s_lshr_b32 s77, s77, 16")
                k.e("s_mul_i32 s77, s77, 3")
                k.e("s_sub_u32 s76, s76, s77")
            else:
                k.e(f"s_and_b32 s76, s76, {G-1}")
            k.e(f"s_mul_i32 s76, s76, {flag('RA', 5)}")
            k.e(f"s_mul_i32 s77, s4, {flag('RX', 5)}")
            k.e("s_lshr_b32 s77, s77, 3")
            k.e("s_add_u32 s76, s76, s77")
        if flag("ROT") == 3:
            k.e("s_and_b32 s76, s5, 1")
            k.e("s_mul_i32 s76, s76, 5")
            k.e("s_lshr_b32 s77, s5, 1")
            k.e("s_mul_i32 s77, s77, 3")
            k.e("s_add_u32 s76, s76, s77")
            k.e("s_mul_i32 s77, s4, 5")
            k.e("s_lshr_b32 s77, s77, 3")
            k.e("s_add_u32 s76, s76, s77")
        k.e("s_mul_i32 s77, s76, 6554")
        k.e("s_lshr_b32 s77, s77, 16")
        k.e("s_mul_i32 s77, s77, 10")
        k.e("s_sub_u32 s76, s76, s77")
        k.e("s_lshl_b32 s77, s76, 7")
        k.e("s_add_u32 s73, s73, s77")
        k.e(f"s_mov_b32 s79, {64*3456}")
        k.e("s_movk_i32 s80, 128")
        k.e("s_mul_i32 s77, s76, s79")
        k.e("s_add_u32 s74, s74, s77")

def dma(stage):
    XA, WA = 240, 244
    slot = (stage % 4) * SLOT
    if flag("ROT") == 5:
        L = ["s_and_b32 s76, s78, 15", "s_lshr_b64 s[78:79], s[78:79], 4", "s_add_u32 s76, s76, s80", "s_sub_u32 s77, s76, 10",
             "s_cmp_ge_u32 s76, 10", "s_cselect_b32 s76, s77, s76", "s_lshl_b32 s72, s76, 7", "s_add_u32 s72, s72, s73",
             f"s_mul_i32 s77, s76, {64*3456}", "s_add_u32 s77, s77, s74", f"s_add_u32 m0, s75, {slot}"]
        for i in range(4):
            L.append(f"buffer_load_dwordx4 v{XA+i}, s[64:67], s72 offen offset:{1024*i} lds")
        L.append(f"s_add_u32 m0, s75, {slot + WPART}")
        for i in range(4):
            L.append(f"buffer_load_dwordx4 v{WA+i}, s[68:71], s77 offen offset:{1024*i} lds")
        return L
    L = [f"s_add_u32 m0, s75, {slot}"]
    for i in range(4):
        L.append(f"buffer_load_dwordx4 v{XA+i}, s[64:67], s73 offen offset:{1024*i} lds")
    L.append(f"s_add_u32 m0, s75, {slot + WPART}")
    for i in range(4):
        L.append(f"buffer_load_dwordx4 v{WA+i}, s[68:71], s74 offen offset:{1024*i} lds")
    if flag("ROT"):
        L.append("s_add_u32 s76, s76, 1")
        L.append("s_cmp_eq_u32 s76, 10")
        L.append("s_cselect_b32 s76, 0, s76")
        L.append(f"s_cselect_b32 s72, {(-9*128) & 0xffffffff:#x}, s80")
        L.append(f"s_cselect_b32 s77, {(-9*64*3456) & 0xffffffff:#x}, s79")
        L.append("s_add_u32 s73, s73, s72")
        L.append("s_add_u32 s74, s74, s77")
    else:
        L.append("s_add_u32 s73, s73, 128")
        L.append(f"s_add_u32 s74, s74, {64*3456}")
    return L

class Rec:
    def __init__(self): self.lines = []
    def e(self, s): self.lines.append(s.strip())
    def c(self, s): pass

def split_aux(emit):
    r = Rec(); emit(r)
    idx = next(i for i, x in enumerate(r.lines) if x.startswith("s_waitcnt vmcnt"))
    loads = r.lines[:idx]
    comp = [x for x in r.lines[idx:] if not x.startswith("s_waitcnt vmcnt")]
    return loads, comp

def loader_body(k, auxparts):
    AL = flag("AL", 3)
    vm = Vm(); last = {}
    for s in range(2):
        for _ in range(8): last[s] = vm.op()
    def put(x):
        k.e(x)
        return vm.op() if is_vmem(x) else None
    loads, comp = auxparts if auxparts else ([], [])
    if flag("NOAUX"): loads, comp = [], []
    if AL == 1:
        for x in loads: put(x)
    first = AL + 1
    nch = max(1, 9 - first)
    per = (len(comp) + nch - 1) // nch if comp else 0
    ci = 0
    for s in range(NSTAGE):
        k.e(f"s_waitcnt vmcnt({vm.wait(last[s])})")
        k.e("s_barrier")
        if s == NSTAGE - 1: break
        stages = [2, 3] if s == 0 else ([s + 3] if s + 3 < NSTAGE else [])
        chunk = comp[ci:ci + per] if s >= first else []
        ci += len(chunk)
        groups = []; cur = []; masked = False
        for x in chunk:
            cur.append(x)
            if "saveexec" in x: masked = True
            if x.startswith("s_mov_b64 exec"): masked = False
            if not masked:
                groups.append(cur); cur = []
        if cur:
            while True:
                x = comp[ci]; ci += 1; cur.append(x)
                if x.startswith("s_mov_b64 exec"): break
            groups.append(cur)
        gper = (len(groups) + 7) // 8
        gi = 0
        for st in stages:
            for x in dma(st):
                r = put(x)
                if r is not None:
                    last[st] = r
                    for g in groups[gi:gi + gper]:
                        for y in g: put(y)
                    gi += gper
            if st == AL:
                for x in loads: put(x)
        for g in groups[gi:]:
            for y in g: put(y)
    if AL == 9:
        k.e("s_barrier")
        k.e("s_waitcnt vmcnt(0)")
    for y in comp[ci:]: put(y)

def g1_compute(k, s_mt, s_ft, s_wave, lbl_end):
    srd(k, 48, P_WS, 32 * NT * 4096, H_OFF)
    k.e(f"s_and_b32 s52, s{s_wave}, 1")
    k.e(f"s_lshr_b32 s53, s{s_wave}, 1")
    k.e(f"s_lshl_b32 s57, s{s_wave}, 12")
    BA, AA = 10, 14
    k.e("v_and_b32 v18, 15, v0")
    k.e("v_lshrrev_b32 v19, 4, v0")
    k.e("v_lshrrev_b32 v20, 1, v18")
    k.e("v_xor_b32 v20, v20, v19")
    k.e("v_lshlrev_b32 v20, 4, v20")
    k.e("v_lshl_add_u32 v20, v18, 7, v20")
    k.e("s_lshl_b32 s58, s52, 13")
    k.e("s_lshl_b32 s59, s53, 12")
    k.e("s_add_u32 s58, s58, s59")
    k.e(f"v_add_u32 v{BA}, s58, v20")
    k.e(f"v_xor_b32 v{BA+1}, 64, v{BA}")
    k.e(f"v_xor_b32 v{BA+2}, 0x1000, v{BA}")
    k.e(f"v_xor_b32 v{BA+3}, 0x1040, v{BA}")
    k.e("v_lshrrev_b32 v20, 2, v18")
    k.e("v_and_b32 v21, 3, v18")
    k.e("v_lshl_add_u32 v22, v19, 3, v20")
    k.e("v_lshlrev_b32 v22, 8, v22")
    k.e("v_lshl_add_u32 v22, v21, 3, v22")
    k.e(f"v_add_u32 v22, {WPART}, v22")
    k.e("v_and_b32 v23, 1, v19")
    k.e("v_lshl_add_u32 v23, v23, 2, v20")
    k.e("s_lshl_b32 s58, s53, 2")
    k.e("s_lshl_b32 s59, s52, 1")
    k.e("s_add_u32 s58, s58, s59")
    k.e("v_xor_b32 v23, s58, v23")
    k.e(f"v_lshl_add_u32 v{AA}, v23, 5, v22")
    for fb in range(1, 4):
        k.e(f"v_xor_b32 v{AA+fb}, {32*fb}, v{AA}")
    ONE = 20
    for i in range(4): k.e(f"v_mov_b32 v{ONE+i}, 0x3f803f80")
    ACC, AR, AC, FR = 24, 88, 96, 112
    def reads(stage, ks, buf):
        so = (stage % 2) * SLOT
        L = []
        fa = FR + 32 * buf; fb_ = fa + 16
        for i in range(4):
            L.append(f"ds_read_b128 v[{fb_+4*i}:{fb_+4*i+3}], v{BA + 2*(i>>1) + ks} offset:{so + 2048*(i&1)}")
            L.append(f"ds_read_b64_tr_b16 v[{fa+4*i}:{fa+4*i+1}], v{AA+i} offset:{so + 8192*ks}")
            L.append(f"ds_read_b64_tr_b16 v[{fa+4*i+2}:{fa+4*i+3}], v{AA+i} offset:{so + 8192*ks + 1024}")
        if flag("NOREAD"): return L[:1]
        return L
    def mfmas(buf, first=False):
        fa = FR + 32 * buf; fb_ = fa + 16
        L = []
        def mm(d, a, b):
            c = "0" if first else f"v[{d}:{d+3}]"
            L.append(f"v_mfma_f32_16x16x32_bf16 v[{d}:{d+3}], v[{a}:{a+3}], v[{b}:{b+3}], {c}")
        for f in range(4):
            for m in range(4):
                mm(ACC + 16*f + 4*m, fa + 4*f, fb_ + 4*m)
        for i in range(2):
            mm(AR + 4*i, ONE, fb_ + 4*i)
            mm(AC + 4*i, fa + 4*i, ONE)
        if flag("NOMFMA"): return L[:1]
        if flag("NOSUM"): return L[:16]
        return L
    from conv import interleave
    for s in range(NSTAGE):
        k.c(f"---- stage {s}")
        k.e("s_waitcnt lgkmcnt(0)")
        k.e("s_barrier")
        if s == 0: stamp_mid(k, 0)
        if s == 3: stamp_mid(k, 1)
        if s == 6: stamp_mid(k, 2)
        tog = []
        if s > 0 and s % 2 == 0:
            tog = [f"v_xor_b32 v{r}, 0x10000, v{r}" for r in list(range(BA, BA+4)) + list(range(AA, AA+4))]
        if s == 0:
            for x in reads(s, 0, 0): k.e(x)
        else:
            for x in interleave(mfmas(1), reads(s, 0, 0)): k.e(x)
        k.e("s_waitcnt lgkmcnt(0)")
        nxt = []
        if (s + 1) % 2 == 0 and s + 1 < NSTAGE:
            nxt = [f"v_xor_b32 v{r}, 0x10000, v{r}" for r in list(range(BA, BA+4)) + list(range(AA, AA+4))]
        for x in interleave(mfmas(0, first=(s == 0)), reads(s, 1, 1) + nxt): k.e(x)
    k.e("s_waitcnt lgkmcnt(0)")
    for x in mfmas(1): k.e(x)
    stamp_mid(k, 3)
    k.c("exchange row/col sums")
    k.e("v_lshlrev_b32 v2, 4, v0")
    k.e("v_add_u32 v3, s57, v2")
    k.e(f"v_mov_b32 v{AR+1}, v{AR+4}")
    k.e(f"ds_write_b64 v3, v[{AR}:{AR+1}]")
    k.e(f"ds_write_b128 v3, v[{AC}:{AC+3}] offset:1024")
    k.e(f"ds_write_b128 v3, v[{AC+4}:{AC+7}] offset:2048")
    k.e("v_xor_b32 v4, 0x2000, v3")
    k.e("v_xor_b32 v5, 0x1000, v3")
    k.e("s_waitcnt lgkmcnt(0)")
    k.e("s_barrier")
    k.e(f"ds_read_b64 v[{AR+2}:{AR+3}], v4")
    k.e(f"ds_read_b128 v[{AC+8}:{AC+11}], v5 offset:1024")
    k.e(f"ds_read_b128 v[{AC+12}:{AC+15}], v5 offset:2048")
    k.e(f"s_lshl_b32 s58, s{s_ft}, 2")
    k.e("s_lshl_b32 s59, s53, 1")
    k.e("s_add_u32 s58, s58, s59")
    k.e(f"s_cmp_ge_u32 s58, {NT}")
    k.e(f"s_cbranch_scc1 {lbl_end}")
    k.e(f"s_lshl_b32 s59, s{s_mt}, 1")
    k.e("s_add_u32 s59, s59, s52")
    k.e(f"s_mul_i32 s59, s59, {NT}")
    k.e("s_add_u32 s58, s58, s59")
    k.e("s_lshl_b32 s58, s58, 12")
    k.e("s_lshl_b32 s60, s52, 12")
    k.e("s_add_u32 s61, s58, s60")
    k.e("s_xor_b32 s60, s60, 0x1000")
    k.e("s_add_u32 s62, s58, s60")
    k.e("s_lshl_b32 s60, s53, 11")
    k.e("v_add_u32 v6, s60, v2")
    k.e("v_xor_b32 v7, 0x800, v6")
    k.e("s_waitcnt lgkmcnt(0)")
    NM = FR
    for m in range(4):
        k.e(f"v_mul_f32 v{AR+m}, {-1.0/D!r}, v{AR+m}")
    k.e(f"v_cvt_pk_bf16_f32 v{AR+4}, v{AR}, v{AR+1}")
    k.e(f"v_cvt_pk_bf16_f32 v{AR+5}, v{AR+2}, v{AR+3}")
    for m in range(4):
        src = AR + 4 + (m >> 1)
        for h in range(2):
            if m & 1: k.e(f"v_and_b32 v{NM+2*m+h}, 0xffff0000, v{src}")
            else:     k.e(f"v_lshlrev_b32 v{NM+2*m+h}, 16, v{src}")
    OUT = FR + 8
    n = 0
    for p in range(2):
        for m in range(4):
            o = OUT + 4 * (n % 4); n += 1
            for ff in range(2):
                f = 2*p + ff
                a = ACC + 16*f + 4*m
                for h in range(2):
                    k.e(f"v_pk_fma_f32 v[{a+2*h}:{a+2*h+1}], v[{AC+4*f+2*h}:{AC+4*f+2*h+1}], v[{NM+2*m}:{NM+2*m+1}], v[{a+2*h}:{a+2*h+1}]")
                for h in range(2):
                    k.e(f"v_cvt_pk_bf16_f32 v{o+2*ff+h}, v{a+2*h}, v{a+2*h+1}")
            for i in range(4):
                k.e(f"v_pk_max_i16 v{o+i}, v{o+i}, 0")
            k.e(f"buffer_store_dwordx4 v[{o}:{o+3}], v{6+(m>>1)}, s[48:51], s{61+p} offen offset:{1024*(m&1)}")

def l2_prefetch(k):
    srd(k, 64, P_Q, NB_X)
    srd(k, 68, P_W1, NB_W)
    k.e("s_lshr_b32 s72, s5, 2")
    k.e("s_add_u32 s72, s72, 3")
    k.e("s_lshl_b32 s72, s72, 7")
    k.e(f"s_mul_i32 s73, s6, {128*1280}")
    k.e("s_add_u32 s72, s72, s73")
    k.e("s_and_b32 s73, s3, 1")
    k.e(f"s_mul_i32 s73, s73, {64*1280}")
    k.e("s_add_u32 s72, s72, s73")
    k.e("v_mul_u32_u24 v2, 1280, v0")
    k.e("s_and_b32 s74, s5, 3")
    k.e("s_mul_i32 s74, s74, 112")
    k.e("s_mul_i32 s75, s3, 28")
    k.e("s_add_u32 s74, s74, s75")
    k.e("s_add_u32 s74, s74, 192")
    k.e("s_mul_i32 s74, s74, 3456")
    k.e("s_lshl_b32 s75, s7, 8")
    k.e("s_add_u32 s74, s74, s75")
    k.e("v_min_u32 v3, 55, v0")
    k.e("v_lshrrev_b32 v4, 1, v3")
    k.e("v_mul_u32_u24 v4, 3456, v4")
    k.e("v_and_b32 v3, 1, v3")
    k.e("v_lshl_add_u32 v4, v3, 7, v4")
    if flag("PFD"): k.e(f"s_sleep {flag('PFD')}")
    k.e("buffer_load_dword v200, v4, s[68:71], s74 offen")
    k.e("s_cmp_ge_u32 s3, 2")
    k.e("s_cbranch_scc1 L_k1_nopfx")
    k.e("buffer_load_dword v201, v2, s[64:67], s72 offen")
    k.e("L_k1_nopfx:")

def k1_kernel():
    k = Kern("k1_kernel")
    stamp_begin(k)
    k.e("s_cmp_ge_u32 s2, 256")
    k.e("s_cbranch_scc1 L_k1_end")
    load_ptrs(k)
    k.e("v_lshrrev_b32 v1, 6, v0")
    k.e("v_readfirstlane_b32 s3, v1")
    k.e("v_and_b32 v0, 63, v0")
    k.e("s_and_b32 s4, s2, 7")
    k.e("s_lshr_b32 s5, s2, 3")
    k.e("s_lshr_b32 s6, s4, 1")
    k.e("s_lshl_b32 s6, s6, 2")
    k.e("s_and_b32 s7, s5, 3")
    k.e("s_add_u32 s6, s6, s7")
    k.e("s_and_b32 s7, s4, 1")
    k.e("s_mul_i32 s7, s7, 7")
    k.e("s_lshr_b32 s8, s5, 2")
    k.e("s_add_u32 s7, s7, s8")
    k.e("s_cmp_ge_u32 s2, 224")
    k.e("s_cbranch_scc1 L_k1_free")
    k.e("s_cmp_lt_u32 s3, 4")
    k.e("s_cbranch_scc1 L_k1_mfma")
    k.e("s_sub_u32 s9, s3, 4")
    if flag("PL"): k.e(f"s_setprio {flag('PL')}")
    k.e("s_waitcnt lgkmcnt(0)")
    loader_setup(k, 6, 7, 9)
    for s in range(2):
        for x in dma(s): k.e(x)
    k.e("s_cmp_eq_u32 s9, 0")
    k.e("s_cbranch_scc1 L_k1_stats")
    k.e("s_cmp_eq_u32 s9, 1")
    k.e("s_cbranch_scc1 L_k1_rel")
    k.e("s_cmp_eq_u32 s9, 2")
    k.e("s_cbranch_scc1 L_k1_plain")
    k.e("s_sub_u32 s10, s2, 64")
    k.e("s_cmp_lt_u32 s10, 32")
    k.e("s_cbranch_scc0 L_k1_w7")
    k.e("s_add_u32 s2, s10, 224")
    k.e("L_k1_stats:")
    k.e("s_and_b32 s10, s2, 6")
    k.e("s_lshl_b32 s10, s10, 8")
    k.e("s_lshr_b32 s11, s2, 3")
    k.e("s_lshl_b32 s11, s11, 4")
    k.e("s_add_u32 s10, s10, s11")
    k.e("s_and_b32 s11, s2, 1")
    k.e("s_lshl_b32 s11, s11, 3")
    k.e("s_add_u32 s78, s10, s11")
    loader_body(k, split_aux(lambda r: aux.emit_stats(r, 78)))
    finish(k, 0)
    k.e("L_k1_w7:")
    k.e("s_sub_u32 s10, s2, 96")
    k.e("s_cmp_lt_u32 s10, 3")
    k.e("s_cbranch_scc0 L_k1_plain")
    srd(k, 40, P_WS, 4096, FL_OFF)
    k.e("s_lshl_b32 s10, s10, 10")
    k.e("v_lshlrev_b32 v1, 4, v0")
    for i in range(4): k.e(f"v_mov_b32 v{4+i}, 0")
    k.e("buffer_store_dwordx4 v[4:7], v1, s[40:43], s10 offen")
    k.e("s_waitcnt vmcnt(0)")
    k.e("L_k1_plain:")
    loader_body(k, None)
    finish(k, 0)
    k.e("L_k1_rel:")
    k.e("s_cmp_ge_u32 s2, 216")
    k.e("s_cbranch_scc1 L_k1_plain")
    k.e(f"s_mov_b32 s78, {REL_LDS}")
    loader_body(k, split_aux(lambda r: aux.emit_relayout(r, 2, 78)))
    finish(k, 0)
    k.e("L_k1_free:")
    if flag("NOFREE"): k.e("s_endpgm")
    k.e("s_sub_u32 s78, s2, 224")
    k.e("s_lshl_b32 s78, s78, 3")
    k.e("s_add_u32 s78, s78, s3")
    k.e("s_lshl_b32 s79, s3, 13")
    k.e("s_waitcnt lgkmcnt(0)")
    k.e("L_k1_prep:")
    aux.emit_prep(k, 78, 79)
    k.e("s_cmp_ge_u32 s78, 256")
    k.e("s_cbranch_scc1 L_k1_prepdone")
    k.e("s_cmp_ge_u32 s3, 2")
    k.e("s_cbranch_scc1 L_k1_prepdone")
    k.e("s_sub_u32 s78, s2, 224")
    k.e("s_lshl_b32 s78, s78, 1")
    k.e("s_add_u32 s78, s78, s3")
    k.e("s_add_u32 s78, s78, 256")
    k.e("s_waitcnt vmcnt(0)")
    k.e("s_branch L_k1_prep")
    k.e("L_k1_prepdone:")
    finish(k, 2)
    k.e("L_k1_mfma:")
    k.e("s_waitcnt lgkmcnt(0)")
    if flag("PFL2"):
        l2_prefetch(k)
    g1_compute(k, 6, 7, 3, "L_k1_end")
    finish(k, 1)
    k.e("L_k1_end:")
    k.e("s_endpgm")
    return k
```

```python
from common import *
import aux, conv, k1
from conv import interleave, CONV_LDS
from k1 import Vm, is_vmem, SLOT, WPART, NSTAGE, Rec

NAME = "recurrent_scan__ssm_conv_h3__dense_activation_relu__prompt_kernel"
SC1 = " sc1"
OOB = 0x40000000
RB0 = 65536
EA = 131072
TOP = RB0 + 4 * CONV_LDS
RLB = 135168
CNT = 163776
LDS_BYTES = 163840
YCNT, YOK, AUXOK, UOK, PROG, PA, PB = 0, 4, 12, 16, 20, 32, 48
XO, YO, SO = 0, 3072, 6144
HSH = 7; YSH = flag("YSH", 3)
FA, EP, FB, FH = 0, 40960, 45056, 77824
FY = FH + (1024 << 7)
FL_BYTES = FY + (640 << 7)
TAG, FSRD = 90, 92
SPIN_MAX = 0x20000
NSTEP, NH, NW = 14, 4, 5
G_ACC, G_H = 8, 88
W_SL = [176, 196, 216, 236, 156]
C3 = flag("C3", 1)
ST = flag("ST", 0)
def stamp(k, setno, i):
    if ST == setno: stamp_mid(k, i)
def cstamp(k, name, i):
    if STAMP and os.environ.get("CK", "").split(",")[i:i+1] == [name]:
        stamp_mid(k, 2*i)
        k.e("s_memtime s[10:11]")
        k.e("s_waitcnt lgkmcnt(0)")
        k.e(f"s_mov_b32 s{13+2*i}, s10")
def cs(k, name):
    cstamp(k, name, 0); cstamp(k, name, 1)

def make_tag(k):
    k.e(f"s_mul_i32 s{TAG}, s{TAG}, 1664525")
    k.e(f"s_add_u32 s{TAG}, s{TAG}, 1013904223")
    k.e(f"s_mul_i32 s{TAG+1}, s{TAG+1}, 22695477")
    k.e(f"s_add_u32 s{TAG+1}, s{TAG+1}, 1")

def publish(k, s_off, va):
    k.e(f"v_mov_b32 v{va}, s{TAG}")
    k.e(f"v_mov_b32 v{va+1}, s{TAG+1}")
    k.e(f"v_mov_b32 v{va+2}, 0")
    k.e("s_mov_b64 exec, 1")
    k.e(f"buffer_store_dwordx2 v[{va}:{va+1}], v{va+2}, s[{FSRD}:{FSRD+3}], s{s_off} offen{SC1}")
    k.e("s_mov_b64 exec, -1")

def poll(k, lbl, vd, voff, s_off, s_cnt, nlanes, sleep=4, preloaded=False):
    so = f"s{s_off}" if s_off is not None else "0"
    k.e(f"s_mov_b32 s{s_cnt}, 0")
    if nlanes < 64: k.e(f"s_bfm_b64 exec, {nlanes}, 0")
    if preloaded: k.e(f"s_branch {lbl}_chk")
    k.e(f"{lbl}:")
    k.e(f"buffer_load_dwordx2 v[{vd}:{vd+1}], v{voff}, s[{FSRD}:{FSRD+3}], {so} offen{SC1}")
    k.e("s_waitcnt vmcnt(0)")
    k.e(f"{lbl}_chk:")
    k.e(f"v_cmp_ne_u64 vcc, s[{TAG}:{TAG+1}], v[{vd}:{vd+1}]")
    k.e("s_and_b64 exec, exec, vcc")
    k.e(f"s_cbranch_scc0 {lbl}_ok")
    k.e(f"s_sleep {sleep}")
    k.e(f"s_add_u32 s{s_cnt}, s{s_cnt}, 1")
    k.e(f"s_cmp_lt_u32 s{s_cnt}, {SPIN_MAX:#x}")
    k.e(f"s_cbranch_scc1 {lbl}")
    k.e(f"{lbl}_ok:")
    k.e("s_mov_b64 exec, -1")

def lds_wait(k, lbl, vaddr, vtmp, off, s_tmp, sleep=2):
    k.e(f"{lbl}:")
    k.e(f"ds_read_b32 v{vtmp}, v{vaddr} offset:{off}")
    k.e("s_waitcnt lgkmcnt(0)")
    k.e(f"v_readfirstlane_b32 s{s_tmp}, v{vtmp}")
    k.e(f"s_cmp_lg_u32 s{s_tmp}, 0")
    k.e(f"s_cbranch_scc1 {lbl}_ok")
    k.e(f"s_sleep {sleep}")
    k.e(f"s_branch {lbl}")
    k.e(f"{lbl}_ok:")

def prog_write(vaddr, vtmp, val):
    return [f"v_mov_b32 v{vtmp}, {val}", f"s_mov_b64 exec, 1\nds_write_b32 v{vaddr}, v{vtmp}\ns_mov_b64 exec, -1"]
def prog_min(vd, s_tmp):
    return [f"v_min3_u32 v{vd}, v{vd}, v{vd+1}, v{vd+2}", f"v_min_u32 v{vd}, v{vd}, v{vd+3}", f"v_readfirstlane_b32 s{s_tmp}, v{vd}"]
def prog_spin(k, lbl, vcnt, vd, off, s_tmp, need, sleep=0):
    k.e(f"s_cmp_ge_u32 s{s_tmp}, {need}")
    k.e(f"s_cbranch_scc1 {lbl}_ok")
    k.e(f"{lbl}:")
    if sleep: k.e(f"s_sleep {sleep}")
    k.e(f"ds_read_b128 v[{vd}:{vd+3}], v{vcnt} offset:{off}")
    k.e("s_waitcnt lgkmcnt(0)")
    for x in prog_min(vd, s_tmp): k.e(x)
    k.e(f"s_cmp_lt_u32 s{s_tmp}, {need}")
    k.e(f"s_cbranch_scc1 {lbl}")
    k.e(f"{lbl}_ok:")
def prog_wait(k, lbl, vcnt, vd, off, s_tmp, need, sleep=1):
    k.e(f"s_mov_b32 s{s_tmp}, 0")
    prog_spin(k, lbl, vcnt, vd, off, s_tmp, need, sleep)

def watch_addr(k, va, s_cha, s_chb):
    k.e("s_lshr_b32 s10, s9, 1")
    k.e(f"s_add_u32 s10, s10, {FB >> 7}")
    k.e(f"v_lshl_add_u32 v{va}, v0, 2, s10")
    k.e(f"v_mov_b32 v{va+1}, s10")
    k.e("v_cmp_gt_u32 vcc, 54, v0")
    k.e(f"v_cndmask_b32 v{va}, v{va+1}, v{va}, vcc")
    k.e(f"v_lshlrev_b32 v{va}, 7, v{va}")
    k.e(f"s_lshr_b32 s10, s{s_cha}, 6")
    k.e(f"s_lshr_b32 s11, s{s_chb}, 6")
    k.e(f"v_mov_b32 v{va+1}, s11")
    k.e(f"v_mov_b32 v{va+2}, s10")
    k.e("v_cmp_gt_u32 vcc, 32, v0")
    k.e(f"v_cndmask_b32 v{va+1}, v{va+1}, v{va+2}, vcc")
    k.e(f"v_and_b32 v{va+2}, 31, v0")
    k.e(f"v_mad_u32_u24 v{va+1}, v{va+2}, 10, v{va+1}")
    k.e(f"v_lshlrev_b32 v{va+1}, 7, v{va+1}")
def watch_pre(vd, va):
    return [f"buffer_load_dwordx2 v[{vd}:{vd+1}], v{va+1}, s[{FSRD}:{FSRD+3}], 0 offen{SC1}",
            f"buffer_load_dwordx2 v[{vd+2}:{vd+3}], v{va}, s[{FSRD}:{FSRD+3}], 0 offen{SC1}"]
def watch(k, lbl, vd, va):
    k.e("s_waitcnt vmcnt(0)")
    poll(k, lbl + "a", vd, va + 1, None, 10, 64, preloaded=True)
    k.e(f"v_mov_b32 v{vd}, {CNT}")
    k.e(f"v_mov_b32 v{vd+1}, 1")
    k.e(f"ds_write_b32 v{vd}, v{vd+1} offset:{UOK}")
    poll(k, lbl + "b", vd + 2, va, None, 10, 64, preloaded=True)
    k.e(f"ds_write_b32 v{vd}, v{vd+1} offset:{AUXOK}")

def xo_offsets(k, vb, t1, t2):
    k.e("s_lshl_b32 s53, s8, 2")
    k.e("s_add_u32 s53, s53, s101")
    k.e("s_mul_i32 s54, s53, 20480")
    k.e("s_mul_i32 s55, s9, 160")
    k.e("s_add_u32 s54, s54, s55")
    for i in range(3):
        k.e(f"v_add_u32 v{t1}, {64*i}, v0")
        k.e(f"v_mul_u32_u24 v{t2}, 6554, v{t1}")
        k.e(f"v_lshrrev_b32 v{t2}, 16, v{t2}")
        k.e(f"v_mul_u32_u24 v{t2}, 1120, v{t2}")
        k.e(f"v_lshl_add_u32 v{vb+i}, v{t1}, 4, v{t2}")
    k.e(f"v_mov_b32 v{t2}, {OOB}")
    k.e("v_cmp_gt_u32 vcc, 32, v0")
    k.e(f"v_cndmask_b32 v{vb+2}, v{t2}, v{vb+2}, vcc")

def unit_ids(k, s_rb, s_cgp):
    k.e(f"s_mul_i32 s{s_rb}, s2, 6554")
    k.e(f"s_lshr_b32 s{s_rb}, s{s_rb}, 16")
    k.e(f"s_mul_i32 s{s_cgp}, s{s_rb}, 10")
    k.e(f"s_sub_u32 s{s_cgp}, s2, s{s_cgp}")
def prep_addr(k):
    unit_ids(k, 52, 53)
    k.e("s_lshl_b32 s54, s52, 2")
    k.e("s_add_u32 s54, s54, s101")
    k.e("s_mul_i32 s54, s54, 20480")
    k.e("s_lshl_b32 s55, s53, 7")
    k.e("s_add_u32 s54, s54, s55")
    k.e("v_lshrrev_b32 v1, 3, v0")
    k.e("v_mul_u32_u24 v2, 1280, v1")
    k.e("v_and_b32 v3, 7, v0")
    k.e("v_lshl_add_u32 v2, v3, 4, v2")
    if flag("XNOPL"): k.e(f"s_mov_b32 s54, {OOB}")
    k.e("v_add_u32 v200, s54, v2")
    k.e("v_subrev_u32 v201, 3840, v200")
    k.e(f"v_add_u32 v202, {10240 - 3840 - 1024}, v200")
    k.e(f"v_add_u32 v203, {20480 - 3840 - 2048}, v200")
    k.e(f"v_mov_b32 v6, {OOB}")
    k.e("v_cmp_gt_u32 vcc, 24, v0")
    k.e("v_cndmask_b32 v203, v6, v203, vcc")
    k.e(f"v_add_u32 v204, {10240 - 1024}, v200")
    k.e("s_mul_i32 s56, s101, 5120")
    k.e(f"s_add_u32 s56, s56, {EA}")
    k.e("v_and_b32 v7, 31, v0")
    k.e("s_lshl_b32 s55, s53, 9")
    k.e("v_lshl_add_u32 v205, v7, 4, s55")
def prep_loads(k):
    srd(k, 40, P_K, NB_X)
    k.e("s_mov_b32 m0, s56")
    k.e("buffer_load_dwordx4 v201, s[40:43], 0 offen lds")
    k.e("buffer_load_dwordx4 v202, s[40:43], 0 offen offset:1024 lds")
    k.e("buffer_load_dwordx4 v203, s[40:43], 0 offen offset:2048 lds")
    srd(k, 44, P_V, NB_X)
    k.e("s_add_u32 m0, s56, 3072")
    k.e("buffer_load_dwordx4 v200, s[44:47], 0 offen lds")
    k.e("buffer_load_dwordx4 v204, s[44:47], 0 offen offset:1024 lds")
    srd(k, 48, P_SH, D * 8)
    k.e("buffer_load_dwordx4 v[212:215], v205, s[48:51], 0 offen")
    k.e("v_lshrrev_b32 v9, 5, v0")
    k.e("v_lshlrev_b32 v10, 10, v9")
    k.e("v_lshl_add_u32 v10, v7, 2, v10")
    k.e("v_add_u32 v209, s56, v10")
    k.e("v_sub_u32 v11, 1, v9")
    k.e("v_lshlrev_b32 v11, 4, v11")
    k.e("v_lshl_add_u32 v11, v7, 6, v11")
    k.e("v_add_u32 v210, s56, v11")
def prep_compute(k):
    KR, VR, TP, KU, VU, KV, OUT = 112, 124, 132, 140, 216, 180, 184
    k.e("s_waitcnt vmcnt(0)")
    for j in range(11): k.e(f"ds_read_b32 v{KR+j}, v209 offset:{128*j}")
    for j in range(8): k.e(f"ds_read_b32 v{VR+j}, v209 offset:{3072 + 128*j}")
    for c in range(2):
        unpack(k, TP + 0 + c, TP + 2 + c, 212 + 2*c)
        unpack(k, TP + 4 + c, TP + 6 + c, 213 + 2*c)
    k.e("s_waitcnt lgkmcnt(8)")
    for j in range(11): unpack(k, KU + 2*j, KU + 2*j + 1, KR + j)
    k.e("s_waitcnt lgkmcnt(0)")
    for j in range(8): unpack(k, VU + 2*j, VU + 2*j + 1, VR + j)
    for r in range(8):
        d = KV + 2*(r & 1)
        for j in (3, 2, 1, 0):
            w = KU + 2*(r + 3 - j); t = TP + 2*j
            if j == 3: k.e(f"v_pk_mul_f32 v[{d}:{d+1}], v[{w}:{w+1}], v[{t}:{t+1}]")
            else: k.e(f"v_pk_fma_f32 v[{d}:{d+1}], v[{w}:{w+1}], v[{t}:{t+1}], v[{d}:{d+1}]")
        k.e(f"v_pk_mul_f32 v[{d}:{d+1}], v[{d}:{d+1}], v[{VU+2*r}:{VU+2*r+1}]")
        if r & 1:
            for c in range(2):
                k.e(f"v_cvt_pk_bf16_f32 v{OUT+4*c+3-r//2}, v{KV+2+c}, v{KV+c}")
    for c in range(2):
        k.e(f"ds_write_b128 v210, v[{OUT+4*c}:{OUT+4*c+3}] offset:{32*c}")

def b_aux_addr(k):
    srd(k, 84, P_W2, NB_W)
    srd(k, 44, P_WS, NB_W, W2_OFF)
    srd(k, 40, P_WS, NB_T, UR_OFF)
    k.e("s_lshr_b32 s57, s2, 2")
    k.e("s_and_b32 s58, s2, 3")
    k.e("s_mul_i32 s59, s57, 40960")
    k.e("s_mul_i32 s60, s58, 320")
    k.e("s_add_u32 s59, s59, s60")
    k.e("s_lshl_b32 s60, s101, 6")
    k.e("s_lshl_b32 s61, s101, 10")
    for i in range(3):
        k.e("v_add_u32 v9, s60, v0")
        if i: k.e(f"v_add_u32 v9, {256*i}, v9")
        k.e("v_mul_u32_u24 v10, 52429, v9")
        k.e("v_lshrrev_b32 v10, 20, v10")
        k.e("v_mul_u32_u24 v10, 960, v10")
        k.e(f"v_lshl_add_u32 v{206+i}, v9, 4, v10")
    k.e("s_cmp_ge_u32 s101, 2")
    k.e(f"s_cselect_b32 s60, {OOB}, 0")
    k.e("v_add_u32 v208, s60, v208")
    k.e(f"s_add_u32 s62, s61, {EA + 20480 + 8192}")
    k.e("s_cmp_ge_u32 s101, 2")
    k.e(f"s_cselect_b32 s62, {EA + 30720}, s62")
def b_aux_addr2(k):
    k.e("s_lshr_b32 s10, s101, 1")
    k.e("s_and_b32 s11, s101, 1")
    k.e("s_mul_i32 s60, s10, 5")
    k.e("s_mul_i32 s54, s11, 3")
    k.e("s_add_u32 s60, s60, s54")
    k.e("s_lshl_b32 s60, s60, 5")
    k.e(f"s_add_u32 s60, s60, {EA + 20480}")
    k.e("v_lshrrev_b32 v11, 2, v0")
    k.e("v_mul_u32_u24 v11, 320, v11")
    k.e("v_and_b32 v12, 3, v0")
    k.e("v_lshl_add_u32 v11, v12, 3, v11")
    k.e("v_add_u32 v214, s60, v11")
    k.e("s_lshl_b32 s60, s58, 1")
    k.e("s_add_u32 s60, s60, s10")
    k.e(f"s_mul_i32 s89, s60, {NT}")
    k.e("s_add_u32 s89, s89, s57")
    k.e("s_mul_i32 s89, s89, 5120")
    k.e("s_lshl_b32 s54, s54, 10")
    k.e("s_add_u32 s89, s89, s54")
    k.e("s_cmp_ge_u32 s2, 216")
    k.e(f"s_cselect_b32 s89, {OOB}, s89")
    if flag("XNOW"): k.e(f"s_mov_b32 s89, {OOB}")
    k.e("v_lshlrev_b32 v215, 4, v0")
    k.e("s_cmp_eq_u32 s11, 1")
    k.e(f"s_cselect_b32 s54, {OOB}, 0")
    k.e("v_add_u32 v216, s54, v215")
    unit_ids(k, 52, 53)
    k.e("v_lshrrev_b32 v1, 3, v0")
    k.e("v_and_b32 v3, 7, v0")
    k.e("v_lshrrev_b32 v11, 1, v3")
    k.e("v_sub_u32 v11, 3, v11")
    k.e("v_mul_u32_u24 v11, 5120, v11")
    k.e("v_lshl_add_u32 v11, v1, 5, v11")
    k.e("v_and_b32 v12, 1, v3")
    k.e("v_lshl_add_u32 v11, v12, 4, v11")
    k.e("s_lshl_b32 s55, s101, 9")
    k.e(f"s_add_u32 s55, s55, {EA}")
    k.e("v_add_u32 v211, s55, v11")
    k.e(f"v_mul_u32_u24 v232, {RS}, v1")
    k.e("v_lshl_add_u32 v232, v3, 4, v232")
    k.e(f"v_add_u32 v233, {8*RS}, v232")
    k.e("s_lshl_b32 s63, s53, 2")
    k.e("s_add_u32 s63, s63, s101")
    k.e(f"s_mul_i32 s63, s63, {16*RS}")
    k.e("s_lshl_b32 s55, s52, 7")
    k.e("s_sub_u32 s55, 3968, s55")
    k.e("s_add_u32 s63, s63, s55")
    if flag("XNOST"):
        k.e(f"s_mov_b32 s63, {OOB}")
        k.e(f"s_mov_b32 s89, {OOB}")
def rel_loads():
    return [f"s_add_u32 m0, s61, {EA + 20480}",
            "buffer_load_dwordx4 v206, s[84:87], s59 offen lds",
            f"s_add_u32 m0, s61, {EA + 20480 + 4096}",
            "buffer_load_dwordx4 v207, s[84:87], s59 offen lds",
            "s_mov_b32 m0, s62",
            "buffer_load_dwordx4 v208, s[84:87], s59 offen lds"]
def aux_out():
    L = [f"ds_read_b128 v[{100+4*i}:{103+4*i}], v211 offset:{256*i}" for i in range(2)]
    for i in range(3):
        L.append(f"ds_read_b64_tr_b16 v[{188+4*i}:{189+4*i}], v214 offset:{32*i}")
        L.append(f"ds_read_b64_tr_b16 v[{190+4*i}:{191+4*i}], v214 offset:{32*i + 5120}")
    L.append("s_waitcnt lgkmcnt(0)")
    L += [f"buffer_store_dwordx4 v[{100+4*i}:{103+4*i}], v{232+i}, s[40:43], s63 offen{SC1}" for i in range(2)]
    L += [f"buffer_store_dwordx4 v[{188+4*i}:{191+4*i}], v{216 if i == 2 else 215}, s[44:47], s89 offen offset:{1024*i}{SC1}" for i in range(3)]
    return L

def rel1_addr(k):
    srd(k, 84, P_W2, NB_W)
    srd(k, 44, P_WS, NB_W, W2_OFF)
    k.e("s_lshr_b32 s57, s2, 2")
    k.e("s_and_b32 s58, s2, 3")
    k.e("s_mul_i32 s59, s57, 40960")
    k.e("s_mul_i32 s60, s58, 320")
    k.e("s_add_u32 s59, s59, s60")
    k.e("s_lshl_b32 s60, s101, 6")
    k.e("s_lshl_b32 s61, s101, 10")
    for i in range(3):
        k.e("v_add_u32 v9, s60, v0")
        if i: k.e(f"v_add_u32 v9, {256*i}, v9")
        k.e("v_mul_u32_u24 v10, 52429, v9")
        k.e("v_lshrrev_b32 v10, 20, v10")
        k.e("v_mul_u32_u24 v10, 960, v10")
        k.e(f"v_lshl_add_u32 v{110+i}, v9, 4, v10")
    k.e("s_cmp_ge_u32 s101, 2")
    k.e(f"s_cselect_b32 s60, {OOB}, 0")
    k.e("v_add_u32 v112, s60, v112")
    k.e("v_lshrrev_b32 v11, 2, v0")
    k.e("v_mul_u32_u24 v11, 320, v11")
    k.e("v_and_b32 v12, 3, v0")
    k.e("v_lshl_add_u32 v11, v12, 3, v11")
    k.e("s_lshr_b32 s10, s101, 1")
    k.e("s_and_b32 s11, s101, 1")
    k.e("s_mul_i32 s60, s10, 5")
    k.e("s_mul_i32 s54, s11, 3")
    k.e("s_add_u32 s60, s60, s54")
    k.e("s_lshl_b32 s60, s60, 5")
    k.e(f"s_add_u32 s60, s60, {RLB}")
    k.e("v_add_u32 v214, s60, v11")
    k.e("s_lshl_b32 s60, s58, 1")
    k.e("s_add_u32 s60, s60, s10")
    k.e(f"s_mul_i32 s89, s60, {NT}")
    k.e("s_add_u32 s89, s89, s57")
    k.e("s_mul_i32 s89, s89, 5120")
    k.e("s_lshl_b32 s54, s54, 10")
    k.e("s_add_u32 s89, s89, s54")
    k.e("s_cmp_ge_u32 s2, 216")
    k.e(f"s_cselect_b32 s89, {OOB}, s89")
    if flag("XNOW"): k.e(f"s_mov_b32 s89, {OOB}")
    k.e("v_lshlrev_b32 v215, 4, v0")
    k.e("s_cmp_eq_u32 s11, 1")
    k.e(f"s_cselect_b32 s54, {OOB}, 0")
    k.e("v_add_u32 v216, s54, v215")
def rel1_loads():
    L = []
    for i in range(3):
        L.append(f"s_add_u32 m0, s61, {RLB + 4096*i}")
        L.append(f"buffer_load_dwordx4 v{110+i}, s[84:87], s59 offen lds")
    return L
def rel1_reads():
    L = []
    for i in range(3):
        L.append(f"ds_read_b64_tr_b16 v[{188+4*i}:{189+4*i}], v214 offset:{32*i}")
        L.append(f"ds_read_b64_tr_b16 v[{190+4*i}:{191+4*i}], v214 offset:{32*i + 5120}")
    return L
def rel1_stores():
    return ["s_waitcnt lgkmcnt(0)"] + [f"buffer_store_dwordx4 v[{188+4*i}:{191+4*i}], v{216 if i == 2 else 215}, s[44:47], s89 offen offset:{1024*i}{SC1}" for i in range(3)]
def u_addr(k):
    srd(k, 40, P_WS, NB_T, UR_OFF)
    unit_ids(k, 52, 53)
    k.e("v_lshrrev_b32 v1, 3, v0")
    k.e("v_and_b32 v3, 7, v0")
    k.e("v_lshrrev_b32 v11, 1, v3")
    k.e("v_sub_u32 v11, 3, v11")
    k.e("v_mul_u32_u24 v11, 5120, v11")
    k.e("v_lshl_add_u32 v11, v1, 5, v11")
    k.e("v_and_b32 v12, 1, v3")
    k.e("v_lshl_add_u32 v11, v12, 4, v11")
    k.e("s_lshl_b32 s55, s101, 9")
    k.e(f"s_add_u32 s55, s55, {EA}")
    k.e("v_add_u32 v211, s55, v11")
    k.e(f"v_mul_u32_u24 v232, {RS}, v1")
    k.e("v_lshl_add_u32 v232, v3, 4, v232")
    k.e(f"v_add_u32 v233, {8*RS}, v232")
    k.e("s_lshl_b32 s63, s53, 2")
    k.e("s_add_u32 s63, s63, s101")
    k.e(f"s_mul_i32 s63, s63, {16*RS}")
    k.e("s_lshl_b32 s55, s52, 7")
    k.e("s_sub_u32 s55, 3968, s55")
    k.e("s_add_u32 s63, s63, s55")
def u_out():
    L = [f"ds_read_b128 v[{100+4*i}:{103+4*i}], v211 offset:{256*i}" for i in range(2)]
    L.append("s_waitcnt lgkmcnt(0)")
    L += [f"buffer_store_dwordx4 v[{100+4*i}:{103+4*i}], v{232+i}, s[40:43], s63 offen{SC1}" for i in range(2)]
    return L

def g2_offsets(k):
    k.e("s_mul_i32 s10, s101, 14")
    k.e("s_cmp_eq_u32 s101, 3")
    k.e("s_cselect_b32 s10, 41, s10")
    k.e(f"s_mul_i32 s11, s8, {NT}")
    k.e("s_add_u32 s11, s11, s10")
    k.e("s_lshl_b32 s76, s11, 12")
    k.e(f"s_mul_i32 s11, s9, {NT}")
    k.e("s_add_u32 s11, s11, s10")
    k.e("s_mul_i32 s77, s11, 5120")
    k.e("s_cmp_ge_u32 s101, 2")
    k.e(f"s_cselect_b32 s79, {OOB}, 0")
    k.e("s_mul_i32 s75, s101, 7")
    k.e("s_min_u32 s75, s75, 20")
    k.e("s_lshl_b32 s11, s8, 5")
    k.e("s_add_u32 s75, s75, s11")
    k.e(f"s_lshl_b32 s75, s75, {HSH}")
    k.e(f"s_add_u32 s75, s75, {FH}")
    k.e("s_lshl_b32 s74, s101, 14")
LSTEPS = [int(x) for x in os.environ.get("LSTEPS", "5,8,11").split(",")]
def soff(dst, base, step, mul):
    st = step
    if flag("XHIT") & 1 and mul == 4096: st = step % 2
    if flag("XHIT") & 2 and mul == 5120: st = step % 2
    L = [f"s_add_u32 s{dst}, s{base}, {st * mul}"]
    if step == NSTEP - 1: L.append(f"s_add_u32 s{dst}, s{dst}, s79")
    return L
def w_loads(step):
    b = W_SL[step % NW]
    L = soff(73, 77, step, 5120)
    L += [f"buffer_load_dwordx4 v[{b+4*d}:{b+4*d+3}], v1, s[44:47], s73 offen offset:{1024*d}{SC1}" for d in range(4)]
    L.append(f"buffer_load_dwordx4 v[{b+16}:{b+19}], v2, s[44:47], s73 offen{SC1}")
    return L
def h_loads(step):
    b = G_H + 16 * (step % NH)
    L = soff(72, 76, step, 4096)
    L += [f"buffer_load_dwordx4 v[{b+4*m}:{b+4*m+3}], v{3+m}, s[40:43], s72 offen{SC1}" for m in range(4)]
    return L
def w_lds_reads(step):
    b = W_SL[step % NW]
    return [f"ds_read_b128 v[{b+4*d}:{b+4*d+3}], v7 offset:{LSTEPS.index(step)*5120 + 1024*d}" for d in range(5)]
def g2_mfmas(step, order=None):
    b = G_H + 16 * (step % NH); wb = W_SL[step % NW]
    L = []
    for d, m in (order or [(d, m) for d in range(5) for m in range(4)]):
        a = G_ACC + 16*d + 4*m
        c = "0" if step == 0 else f"v[{a}:{a+3}]"
        L.append(f"v_mfma_f32_16x16x32_bf16 v[{a}:{a+3}], v[{wb+4*d}:{wb+4*d+3}], v[{b+4*m}:{b+4*m+3}], {c}")
    return L

def g2_phase(k):
    for s in range(flag("NP", 0), NW):
        for x in w_loads(s): k.e(x)
    srd(k, 40, P_WS, 32 * NT * 4096, H_OFF)
    k.e("s_lshl_b32 s52, s101, 10")
    k.e("v_add_u32 v3, s52, v1")
    for m in range(1, 4): k.e(f"v_xor_b32 v{3+m}, {1024*m}, v3")
    k.e(f"v_lshlrev_b32 v9, {HSH}, v0")
    EPOL = flag("EPOL", 8); left = 15
    for li, s in enumerate(LSTEPS):
        for x in soff(78, 77, s, 5120): k.e(x)
        for d in range(5):
            if left == EPOL:
                k.e("s_bfm_b64 exec, 7, 0")
                k.e(f"buffer_load_dwordx2 v[10:11], v9, s[{FSRD}:{FSRD+3}], s75 offen{SC1}")
                k.e("s_mov_b64 exec, -1")
            left -= 1
            if d in (0, 4): k.e(f"s_add_u32 m0, s74, {li*5120 + 1024*d}")
            if d < 4: k.e(f"buffer_load_dwordx4 v1, s[44:47], s78 offen offset:{1024*d}{SC1} lds")
            else: k.e(f"buffer_load_dwordx4 v2, s[44:47], s78 offen{SC1} lds")
    k.e("v_add_u32 v7, s74, v1")
    k.e(f"v_mov_b32 v152, {CNT}")
    k.e(f"s_waitcnt vmcnt({EPOL})")
    poll(k, "L_hpoll", 10, 9, 75, 58, 7, sleep=2, preloaded=True)
    stamp(k, 1, 2); cs(k, "rdy")
    vm = Vm(); need = {}
    NH0 = flag("NH0", 3)
    for s in range(NH0):
        for x in h_loads(s):
            k.e(x)
            if is_vmem(x): need[("h", s)] = vm.op()
    def groups(L):
        G = []; cur = []
        for x in L:
            cur.append(x)
            if is_vmem(x): G.append(cur); cur = []
        return G
    LA = flag("LA", 2); R = flag("RATE", 6)
    qh = [(s - (NH - 1), s - LA, "h", s, g) for s in range(NH0, NSTEP) for g in groups(h_loads(s))]
    qw = [(s - (NW - 1), s - LA, "w", s, g) for s in range(NW, NSTEP) if s not in LSTEPS for g in groups(w_loads(s))]
    for s in range(NSTEP):
        idx = max(need[("h", s)], need.get(("w", s), -1))
        lg = " lgkmcnt(0)" if (s in LSTEPS or s == NSTEP - 1) else ""
        k.e(f"s_waitcnt vmcnt({vm.wait(idx)}){lg}")
        if s in (0, 3, 7, 10): stamp(k, 4, (0, 3, 7, 10).index(s))
        if s in (10, 12, 13): stamp(k, 5, (10, 12, 13).index(s))
        if s == NSTEP - 1: break
        fill = []
        while (qh or qw):
            cand = [q for q in (qh, qw) if q and q[0][0] <= s]
            if not cand: break
            q = min(cand, key=lambda q: q[0][1])
            if len(fill) >= R and q[0][1] > s: break
            fill.append(q.pop(0))
        extra = []
        if s == flag("YAT", 5): extra.append(f"ds_write_b32 v152, v152 offset:{PROG}")
        if s + 2 in LSTEPS: extra += w_lds_reads(s + 2)
        if s == 12:
            r = Rec(); tail_addr(r); extra += ["\n".join(r.lines[i:i+2]) for i in range(0, len(r.lines), 2)]
        n = len(fill); fi = 0; ei = 0
        for i, x in enumerate(g2_mfmas(s)):
            k.e(x)
            if fi < n and i >= (fi * 18) // n:
                for y in fill[fi][4]: k.e(y)
                need[(fill[fi][2], fill[fi][3])] = vm.op(); fi += 1
            elif ei < len(extra):
                k.e(extra[ei]); ei += 1
        assert fi == n
        for y in extra[ei:]: k.e(y)
    assert not qh and not qw
    k.e("s_setprio 2")
    order = [(d, m) for m in (1, 2, 3, 0) for d in range(5)]
    wr = [f"ds_write_b128 v7, v[{G_ACC+16*d+4*m}:{G_ACC+16*d+4*m+3}] offset:{(m-1)*5120 + 1024*d}" for d, m in order[:15]]
    for x in interleave(g2_mfmas(NSTEP - 1, order), wr, start=6): k.e(x)
    stamp(k, 1, 3); cs(k, "mend")
    g2_tail(k)

T = 156
def tail_addr(k):
    srd(k, 48, P_OUT, NB_X)
    xo_offsets(k, T, T+3, T+4)
    for m in range(1, 4): k.e(f"v_xor_b32 v{T+4+m}, {16384*m}, v7")
    k.e(f"v_add_u32 v{T+8}, s81, v1")
    k.e(f"v_and_b32 v{T+9}, 15, v0")
    k.e(f"v_mul_u32_u24 v{T+9}, 160, v{T+9}")
    k.e(f"v_lshrrev_b32 v{T+10}, 4, v0")
    k.e(f"v_lshl_add_u32 v{T+9}, v{T+10}, 3, v{T+9}")
    k.e(f"v_add_u32 v{T+9}, s81, v{T+9}")
    k.e(f"v_mov_b32 v{T+12}, 1.0")
    k.e(f"v_mov_b32 v{T+13}, 1.0")
def g2_tail(k):
    k.e("s_waitcnt lgkmcnt(0)")
    stamp(k, 6, 0)
    k.e("s_barrier")
    stamp(k, 5, 3); stamp(k, 6, 1)
    SF, XF, CC = 88, 108, T + 14
    k.e(f"ds_read_b64 v[{CC}:{CC+1}], v{T+8} offset:{SO + 10240}")
    for d in range(5):
        for m in range(1, 4):
            a = G_ACC + 16*d + 4*m
            k.e(f"ds_read_b128 v[{a}:{a+3}], v{T+4+m} offset:{(m-1)*5120 + 1024*d}")
        k.e(f"ds_read_b128 v[{SF+4*d}:{SF+4*d+3}], v{T+8} offset:{SO + 1024*d}")
        k.e(f"ds_read_b128 v[{XF+4*d}:{XF+4*d+3}], v{T+8} offset:{SO + 5120 + 1024*d}")
    for d in range(5):
        k.e(f"s_waitcnt lgkmcnt({min(15, 20-5*d)})")
        a = G_ACC + 16*d
        for h in range(2):
            k.e(f"v_pk_add_f32 v[{a+2*h}:{a+2*h+1}], v[{a+2*h}:{a+2*h+1}], v[{a+4+2*h}:{a+4+2*h+1}]")
            k.e(f"v_pk_add_f32 v[{a+8+2*h}:{a+8+2*h+1}], v[{a+8+2*h}:{a+8+2*h+1}], v[{a+12+2*h}:{a+12+2*h+1}]")
        for h in range(2):
            k.e(f"v_pk_add_f32 v[{a+2*h}:{a+2*h+1}], v[{a+2*h}:{a+2*h+1}], v[{a+8+2*h}:{a+8+2*h+1}]")
        e = a + 4
        for h in range(2):
            k.e(f"v_pk_mul_f32 v[{e+2*h}:{e+2*h+1}], v[{a+2*h}:{a+2*h+1}], v[{CC}:{CC+1}]")
        for r in range(4): k.e(f"v_exp_f32 v{e+r}, v{e+r}")
        for h in range(2):
            s = SF + 4*d + 2*h
            k.e(f"v_pk_mul_f32 v[{a+2*h}:{a+2*h+1}], v[{a+2*h}:{a+2*h+1}], v[{s}:{s+1}]")
        for h in range(2):
            k.e(f"v_pk_add_f32 v[{e+2*h}:{e+2*h+1}], v[{e+2*h}:{e+2*h+1}], v[{T+12}:{T+13}]")
        for r in range(4): k.e(f"v_rcp_f32 v{e+r}, v{e+r}")
        for h in range(2):
            x = XF + 4*d + 2*h
            k.e(f"v_pk_fma_f32 v[{a+2*h}:{a+2*h+1}], v[{a+2*h}:{a+2*h+1}], v[{e+2*h}:{e+2*h+1}], v[{x}:{x+1}]")
        k.e(f"v_cvt_pk_bf16_f32 v{a+8}, v{a}, v{a+1}")
        k.e(f"v_cvt_pk_bf16_f32 v{a+9}, v{a+2}, v{a+3}")
    stamp(k, 6, 2)
    for d in range(5):
        a = G_ACC + 16*d
        k.e(f"ds_write_b64 v{T+9}, v[{a+8}:{a+9}] offset:{XO + 32*d}")
    k.e("s_waitcnt lgkmcnt(0)")
    O = 128
    for i in range(3): k.e(f"ds_read_b128 v[{O+4*i}:{O+4*i+3}], v{T+8} offset:{XO + 1024*i}")
    osc = {0: "", 1: " sc1", 2: " nt", 3: " sc0 sc1"}[flag("OSC", 0)]
    for i in range(3):
        k.e(f"s_waitcnt lgkmcnt({2-i})")
        k.e(f"buffer_store_dwordx4 v[{O+4*i}:{O+4*i+3}], v{T+i}, s[48:51], s54 offen{osc}")
    stamp(k, 6, 3)

BA, AA, ONE, ACC, AR, AC, FR = 10, 14, 20, 24, 88, 96, 112
def g1_setup(k):
    srd(k, 48, P_WS, 32 * NT * 4096, H_OFF)
    srd(k, 44, P_WS, NB_W, W2_OFF)
    k.e("s_and_b32 s52, s3, 1")
    k.e("s_lshr_b32 s53, s3, 1")
    k.e("v_lshlrev_b32 v1, 4, v0")
    k.e("v_add_u32 v2, 4096, v1")
    k.e("v_and_b32 v18, 15, v0")
    k.e("v_lshrrev_b32 v19, 4, v0")
    k.e("v_lshrrev_b32 v20, 1, v18")
    k.e("v_xor_b32 v20, v20, v19")
    k.e("v_lshlrev_b32 v20, 4, v20")
    k.e("v_lshl_add_u32 v20, v18, 7, v20")
    k.e("s_lshl_b32 s58, s52, 13")
    k.e("s_lshl_b32 s59, s53, 12")
    k.e("s_add_u32 s58, s58, s59")
    k.e(f"v_add_u32 v{BA}, s58, v20")
    k.e(f"v_xor_b32 v{BA+1}, 64, v{BA}")
    k.e(f"v_xor_b32 v{BA+2}, 0x1000, v{BA}")
    k.e(f"v_xor_b32 v{BA+3}, 0x1040, v{BA}")
    k.e("v_lshrrev_b32 v20, 2, v18")
    k.e("v_and_b32 v21, 3, v18")
    k.e("v_lshl_add_u32 v22, v19, 3, v20")
    k.e("v_lshlrev_b32 v22, 8, v22")
    k.e("v_lshl_add_u32 v22, v21, 3, v22")
    k.e(f"v_add_u32 v22, {WPART}, v22")
    k.e("v_and_b32 v23, 1, v19")
    k.e("v_lshl_add_u32 v23, v23, 2, v20")
    k.e("s_lshl_b32 s58, s53, 2")
    k.e("s_lshl_b32 s59, s52, 1")
    k.e("s_add_u32 s58, s58, s59")
    k.e("v_xor_b32 v23, s58, v23")
    k.e(f"v_lshl_add_u32 v{AA}, v23, 5, v22")
    for fb in range(1, 4): k.e(f"v_xor_b32 v{AA+fb}, {32*fb}, v{AA}")
    for i in range(4): k.e(f"v_mov_b32 v{ONE+i}, 0x3f803f80")
    for r, x in ((3, 0), (4, 2), (5, 1)):
        k.e(f"s_xor_b32 s58, s3, {x}")
        k.e("s_mul_i32 s58, s58, 3072")
        k.e(f"s_add_u32 s58, s58, {TOP}")
        k.e(f"v_add_u32 v{r}, s58, v1")
    k.e("s_lshl_b32 s58, s7, 1")
    k.e("s_add_u32 s57, s58, s53")
    k.e("s_lshl_b32 s59, s6, 1")
    k.e("s_add_u32 s59, s59, s52")
    k.e("s_lshl_b32 s56, s59, 5")
    k.e("s_add_u32 s56, s56, s57")
    k.e(f"s_lshl_b32 s56, s56, {HSH}")
    k.e(f"s_add_u32 s56, s56, {FH}")
    k.e(f"s_mul_i32 s59, s59, {NT}")
    k.e("s_lshl_b32 s58, s57, 1")
    k.e("s_add_u32 s58, s58, s59")
    k.e("s_lshl_b32 s58, s58, 12")
    k.e("s_lshl_b32 s59, s52, 12")
    k.e("s_add_u32 s60, s58, s59")
    k.e("s_xor_b32 s59, s59, 0x1000")
    k.e("s_add_u32 s61, s58, s59")
    k.e("s_lshl_b32 s59, s53, 11")
    k.e("v_add_u32 v6, s59, v1")
    k.e("v_xor_b32 v7, 0x800, v6")
    k.e(f"v_mov_b32 v18, {CNT}")
    k.e("s_lshl_b32 s58, s3, 2")
    k.e(f"s_add_u32 s58, s58, {CNT + PA}")
    k.e("v_mov_b32 v19, s58")

def g1_phase(k):
    PV = 176
    def reads(stage, ks, buf):
        so = (stage % 2) * SLOT
        L = []
        fa = FR + 32 * buf; fb_ = fa + 16
        for i in range(4):
            L.append(f"ds_read_b128 v[{fb_+4*i}:{fb_+4*i+3}], v{BA + 2*(i>>1) + ks} offset:{so + 2048*(i&1)}")
            L.append(f"ds_read_b64_tr_b16 v[{fa+4*i}:{fa+4*i+1}], v{AA+i} offset:{so + 8192*ks}")
            L.append(f"ds_read_b64_tr_b16 v[{fa+4*i+2}:{fa+4*i+3}], v{AA+i} offset:{so + 8192*ks + 1024}")
        return L
    def mfmas(buf, first=False, sums_first=False):
        fa = FR + 32 * buf; fb_ = fa + 16
        L = []; Sm = []
        def mm(Tg, d, a, b):
            c = "0" if first else f"v[{d}:{d+3}]"
            Tg.append(f"v_mfma_f32_16x16x32_bf16 v[{d}:{d+3}], v[{a}:{a+3}], v[{b}:{b+3}], {c}")
        for f in range(4):
            for m in range(4): mm(L, ACC + 16*f + 4*m, fa + 4*f, fb_ + 4*m)
        for i in range(2):
            mm(Sm, AR + 4*i, ONE, fb_ + 4*i)
            mm(Sm, AC + 4*i, fa + 4*i, ONE)
        if flag("QNOSUM") and not first and not sums_first: return L
        return Sm + L if sums_first else L + Sm
    def dense(L):
        n = flag("DEN", 2)
        return ["\n".join(L[i:i+n]) for i in range(0, len(L), n)]
    tog = [f"v_xor_b32 v{r}, 0x10000, v{r}" for r in list(range(BA, BA+4)) + list(range(AA, AA+4))]
    for s in range(NSTAGE):
        k.c(f"---- stage {s}")
        k.e("s_waitcnt lgkmcnt(0)")
        m1 = mfmas(1)
        if s < 9: k.e("s_barrier")
        else:
            for x in interleave(m1[:3], prog_min(PV, 58)): k.e(x)
            m1 = m1[3:]
            prog_spin(k, "L_a9", 18, PV, PB, 58, 1)
        if s == 0: stamp(k, 1, 0); stamp(k, 2, 0); cs(k, "b0")
        if s == 4: cs(k, "b4")
        if s == 4: stamp(k, 2, 1)
        if s == 8:
            stamp(k, 2, 2)
            k.e("s_setprio 2")
        for x in (reads(0, 0, 0) if s == 0 else interleave(m1, dense(reads(s, 0, 0)))): k.e(x)
        k.e("s_waitcnt lgkmcnt(0)")
        m0 = mfmas(0, first=(s == 0))
        nxt = tog if ((s + 1) % 2 == 0 and s + 1 < NSTAGE) else []
        if s == 8:
            body = interleave(m0[:-3], dense(reads(s, 1, 1))) + [f"ds_read_b128 v[{PV}:{PV+3}], v18 offset:{PB}"] + m0[-3:]
        else:
            body = interleave(m0, dense(reads(s, 1, 1)) + nxt)
        for x in body: k.e(x)
    k.e("s_waitcnt lgkmcnt(0)")
    fin = mfmas(1, sums_first=True)
    exch = [f"v_mov_b32 v{AR+1}, v{AR+4}",
            f"ds_write_b64 v3, v[{AR}:{AR+1}]",
            f"ds_write_b128 v3, v[{AC}:{AC+3}] offset:1024",
            f"ds_write_b128 v3, v[{AC+4}:{AC+7}] offset:2048"] + prog_write(19, 8, 11)
    for x in fin[:7] + interleave(fin[7:], exch): k.e(x)
    k.e("L_a_sync:")
    k.e(f"ds_read_b128 v[{PV}:{PV+3}], v18 offset:{PA}")
    k.e(f"ds_read_b64 v[{AR+2}:{AR+3}], v4")
    k.e(f"ds_read_b128 v[{AC+8}:{AC+11}], v5 offset:1024")
    k.e(f"ds_read_b128 v[{AC+12}:{AC+15}], v5 offset:2048")
    k.e("s_waitcnt lgkmcnt(0)")
    for x in prog_min(PV, 58): k.e(x)
    k.e("s_cmp_lt_u32 s58, 11")
    k.e("s_cbranch_scc1 L_a_sync")
    stamp(k, 2, 3); cs(k, "sync")
    k.e("s_cmp_ge_u32 s57, 27")
    k.e("s_cbranch_scc1 L_g2w")
    NM = FR
    for m in range(4): k.e(f"v_mul_f32 v{AR+m}, {-1.0/D!r}, v{AR+m}")
    k.e(f"v_cvt_pk_bf16_f32 v{AR+4}, v{AR}, v{AR+1}")
    k.e(f"v_cvt_pk_bf16_f32 v{AR+5}, v{AR+2}, v{AR+3}")
    for m in range(4):
        src = AR + 4 + (m >> 1)
        if m & 1: k.e(f"v_and_b32 v{NM+m}, 0xffff0000, v{src}")
        else:     k.e(f"v_lshlrev_b32 v{NM+m}, 16, v{src}")
    OUT = FR + 8
    n = 0
    for p in range(2):
        for m in range(4):
            o = OUT + 4 * (n % 4); n += 1
            for ff in range(2):
                f = 2*p + ff
                a = ACC + 16*f + 4*m
                for r in range(4): k.e(f"v_fmac_f32 v{a+r}, v{AC+4*f+r}, v{NM+m}")
                for h in range(2): k.e(f"v_cvt_pk_bf16_f32 v{o+2*ff+h}, v{a+2*h}, v{a+2*h+1}")
            if p == 1 and m == 2 and flag("NP", 0): k.e(f"ds_read_b32 v8, v18 offset:{AUXOK}")
            for i in range(4): k.e(f"v_pk_max_i16 v{o+i}, v{o+i}, 0")
            k.e(f"buffer_store_dwordx4 v[{o}:{o+3}], v{6+(m>>1)}, s[48:51], s{60+p} offen offset:{1024*(m&1)}{SC1}")
    NP = flag("NP", 0)
    if NP:
        k.e("s_waitcnt lgkmcnt(0)")
        k.e("v_readfirstlane_b32 s58, v8")
        k.e("s_cmp_eq_u32 s58, 0")
        k.e("s_cbranch_scc1 L_a_slow")
        for st in range(NP):
            for x in w_loads(st): k.e(x)
        k.e(f"s_waitcnt vmcnt({5*NP})")
        publish(k, 56, 12)
        stamp(k, 1, 1)
        k.e("s_setprio 0")
        k.e("s_branch L_g2b")
        k.e("L_a_slow:")
    k.e("s_waitcnt vmcnt(0)")
    publish(k, 56, 12)
    stamp(k, 1, 1)
    k.e("L_g2w:")
    k.e("s_setprio 0")
    k.e(f"v_mov_b32 v10, {CNT}")
    lds_wait(k, "L_aw2", 10, 11, AUXOK, 58, sleep=4)
    for st in range(NP):
        for x in w_loads(st): k.e(x)
    k.e("L_g2b:")

def b_aprep(k):
    srd(k, 40, P_Q, NB_X)
    srd(k, 44, P_WS, 16384, ST_OFF)
    srd(k, 68, P_WS, NB_T, YT_OFF)
    xo_offsets(k, 8, 1, 2)
    for i in range(3):
        k.e(f"s_add_u32 m0, s81, {XO + 1024*i}")
        k.e(f"buffer_load_dwordx4 v{8+i}, s[40:43], s54 offen lds")
    k.e("v_and_b32 v1, 15, v0")
    k.e("v_lshlrev_b32 v3, 3, v1")
    k.e("s_lshl_b32 s57, s53, 7")
    k.e("v_lshrrev_b32 v4, 3, v0")
    k.e(f"v_mul_u32_u24 v4, {RS}, v4")
    k.e("v_and_b32 v2, 7, v0")
    k.e("v_lshl_add_u32 v4, v2, 4, v4")
    k.e("s_mul_i32 s58, s9, 10")
    k.e("s_add_u32 s58, s58, s101")
    k.e(f"s_mul_i32 s58, s58, {8*RS}")
    k.e("s_lshl_b32 s59, s8, 7")
    k.e("s_add_u32 s58, s58, s59")
    k.e(f"v_mov_b32 v2, {CNT}")
    k.e("v_mul_u32_u24 v5, 160, v1")
    k.e("v_lshrrev_b32 v6, 4, v0")
    k.e("v_lshl_add_u32 v5, v6, 3, v5")
    k.e("v_add_u32 v5, s81, v5")
    k.e("v_lshrrev_b32 v36, 5, v0")
    k.e(f"v_mul_u32_u24 v36, {CONV_LDS}, v36")
    k.e("v_bfe_u32 v7, v0, 2, 3")
    k.e("v_lshl_add_u32 v36, v7, 7, v36")
    k.e("v_and_b32 v7, 3, v0")
    k.e("v_lshl_add_u32 v36, v7, 3, v36")
    k.e("s_lshl_b32 s59, s101, 5")
    k.e(f"s_add_u32 s59, s59, {RB0}")
    k.e("v_add_u32 v36, s59, v36")
    k.e("v_lshlrev_b32 v37, 4, v0")
    k.e("v_add_u32 v37, s81, v37")
    XR, YR, XF, SF = 16, 26, 40, 60
    k.e("s_waitcnt vmcnt(0)")
    for d in range(5): k.e(f"ds_read_b64 v[{XR+2*d}:{XR+2*d+1}], v5 offset:{XO + 32*d}")
    k.e("s_waitcnt lgkmcnt(0)")
    for d in range(5):
        for h in range(2): unpack(k, XF + 4*d + 2*h, XF + 4*d + 2*h + 1, XR + 2*d + h)
        k.e(f"ds_write_b128 v37, v[{XF+4*d}:{XF+4*d+3}] offset:{SO + 5120 + 1024*d}")
    k.e("s_setprio 0")
    k.e("s_cmp_eq_u32 s101, 0")
    k.e("s_cbranch_scc1 L_b_poller")
    lds_wait(k, "L_b_lw0", 2, 6, PROG, 60, sleep=flag("LSL", 16))
    lds_wait(k, "L_b_lwait", 2, 6, YOK, 60, sleep=2)
    k.e("s_setprio 3")
    k.e("s_branch L_b_go")
    k.e("L_b_poller:")
    k.e(f"s_mul_i32 s59, s9, {80 << YSH}")
    k.e(f"s_add_u32 s59, s59, {FY}")
    k.e(f"s_add_u32 s61, s59, {64 << YSH}")
    k.e(f"v_lshlrev_b32 v5, {YSH}, v0")
    k.e("v_add_u32 v7, s61, v5")
    k.e("s_lshr_b32 s10, s8, 3")
    k.e("s_lshl_b32 s10, s10, 1")
    k.e("s_and_b32 s11, s8, 1")
    k.e("s_add_u32 s10, s10, s11")
    k.e("s_and_b32 s11, s8, 6")
    k.e("s_lshl_b32 s11, s11, 2")
    k.e("s_add_u32 s10, s10, s11")
    k.e(f"s_add_u32 s10, s10, {224 + (FB >> 7)}")
    k.e("s_lshl_b32 s10, s10, 7")
    k.e("v_writelane_b32 v7, s10, 16")
    lds_wait(k, "L_b_aw", 2, 6, PROG, 60, sleep=flag("LSL2", 6))
    k.e("s_setprio 3")
    k.e("s_bfm_b64 exec, 17, 0")
    k.e(f"buffer_load_dwordx2 v[14:15], v7, s[{FSRD}:{FSRD+3}], 0 offen{SC1}")
    k.e("s_mov_b64 exec, -1")
    poll(k, "L_by", 12, 5, 59, 60, 64, sleep=8)
    poll(k, "L_by2", 14, 7, None, 60, 17, sleep=8, preloaded=True)
    k.e("v_mov_b32 v6, 1")
    k.e(f"ds_write_b32 v2, v6 offset:{YOK}")
    k.e("L_b_go:")
    stamp(k, 1, 3); stamp(k, 2, 3)
    k.e(f"buffer_load_dwordx2 v[12:13], v3, s[44:47], s57 offen{SC1}")
    for i in range(3):
        if i == 2:
            k.e("s_cmp_ge_u32 s101, 2")
            k.e("s_cbranch_scc1 L_b_noy")
        k.e(f"s_add_u32 m0, s81, {YO + 1024*i}")
        k.e(f"buffer_load_dwordx4 v4, s[68:71], s58 offen{SC1} lds")
        if i < 2: k.e(f"s_add_u32 s58, s58, {4*8*RS}")
    k.e("L_b_noy:")
    k.e("v_mov_b32 v3, 1")
    k.e("s_waitcnt vmcnt(2)")
    k.e("v_mul_f32 v38, 0xbfb8aa3b, v13")
    k.e("v_mul_f32 v39, 0xbfb8aa3b, v13")
    k.e(f"ds_write_b64 v37, v[38:39] offset:{SO + 10240}")
    for i in range(10):
        a, b = 80 + 2*i, 81 + 2*i
        k.e(f"v_sub_f32 v{a}, v{XF+2*i}, v12")
        k.e(f"v_sub_f32 v{b}, v{XF+2*i+1}, v12")
        k.e(f"v_cvt_pk_bf16_f32 v{b}, v{a}, v{b}")
        unpack(k, a, b, b)
        k.e(f"v_mul_f32 v{a}, v{a}, v13")
        k.e(f"v_mul_f32 v{b}, v{b}, v13")
        k.e(f"v_cvt_pk_bf16_f32 v{b}, v{a}, v{b}")
        unpack(k, a, b, b)
        k.e(f"v_mul_f32 v{a}, v{a}, v13")
        k.e(f"v_mul_f32 v{b}, v{b}, v13")
        if i == 4:
            k.e("s_waitcnt vmcnt(0)")
            k.e("s_mov_b64 exec, 1")
            k.e(f"ds_add_u32 v2, v3 offset:{YCNT}")
            k.e("s_mov_b64 exec, -1")
    k.e("L_b_cnt:")
    k.e(f"ds_read_b32 v3, v2 offset:{YCNT}")
    for d in range(5):
        k.e(f"ds_read_b64_tr_b16 v[{YR+2*d}:{YR+2*d+1}], v36 offset:{YO + 2*(d&1)*CONV_LDS + (d>>1)*1024}")
    k.e("s_waitcnt lgkmcnt(0)")
    k.e("v_readfirstlane_b32 s59, v3")
    k.e("s_cmp_lt_u32 s59, 4")
    k.e("s_cbranch_scc1 L_b_cnt")
    for d in range(5):
        for h in range(2):
            s = SF + 4*d + 2*h
            unpack(k, s, s+1, YR + 2*d + h)
            k.e(f"v_mul_f32 v{s}, v{s}, v{80+4*d+2*h}")
            k.e(f"v_mul_f32 v{s+1}, v{s+1}, v{81+4*d+2*h}")
        k.e(f"ds_write_b128 v37, v[{SF+4*d}:{SF+4*d+3}] offset:{SO + 1024*d}")
    k.e("s_waitcnt lgkmcnt(0)")

def stats_rows(k, s_idx):
    k.e("s_and_b32 s10, s84, 6")
    k.e("s_lshl_b32 s10, s10, 8")
    k.e("s_lshr_b32 s11, s84, 3")
    k.e("s_lshl_b32 s11, s11, 7")
    k.e("s_add_u32 s10, s10, s11")
    k.e("s_and_b32 s11, s84, 1")
    k.e("s_lshl_b32 s11, s11, 6")
    k.e("s_add_u32 s10, s10, s11")
    k.e(f"s_lshl_b32 s11, s{s_idx}, 3")
    k.e("s_add_u32 s52, s10, s11")

def kernel():
    STS = flag("STS", 1); RLD = flag("RLD", 2); RST = flag("RST", 7)
    assert STS < RLD and RLD + 3 <= RST <= 7
    k = Kern(NAME)
    stamp_begin(k)
    k.e("s_cmp_ge_u32 s2, 256")
    k.e("s_cbranch_scc1 L_end")
    load_ptrs(k)
    k.e("v_lshrrev_b32 v1, 6, v0")
    k.e("v_readfirstlane_b32 s3, v1")
    k.e("v_and_b32 v0, 63, v0")
    for i in range(4): k.e(f"v_mov_b32 v{4+i}, 0")
    k.e("v_and_b32 v1, 3, v0")
    k.e("v_lshlrev_b32 v1, 4, v1")
    k.e(f"v_add_u32 v1, {CNT}, v1")
    k.e("ds_write_b128 v1, v[4:7]")
    k.e("s_and_b32 s4, s2, 7")
    k.e("s_lshr_b32 s5, s2, 3")
    k.e("s_lshr_b32 s10, s4, 1")
    k.e("s_and_b32 s11, s4, 1")
    k.e("s_lshl_b32 s6, s10, 2")
    k.e("s_and_b32 s7, s5, 3")
    k.e("s_add_u32 s6, s6, s7")
    k.e("s_lshl_b32 s9, s11, 2")
    k.e("s_add_u32 s9, s9, s7")
    k.e("s_lshr_b32 s8, s5, 2")
    k.e("s_mul_i32 s7, s11, 7")
    k.e("s_add_u32 s7, s7, s8")
    k.e("s_lshl_b32 s10, s10, 3")
    k.e("s_add_u32 s8, s8, s10")
    k.e("s_and_b32 s101, s3, 3")
    k.e(f"s_mul_i32 s81, s101, {CONV_LDS}")
    k.e(f"s_add_u32 s81, s81, {RB0}")
    def flags_srd():
        srd(k, FSRD, P_WS, FL_BYTES, FL_OFF)
        k.e(f"s_load_dwordx2 s[{TAG}:{TAG+1}], s[{FSRD}:{FSRD+1}], {EP}")
    k.e("s_cmp_ge_u32 s2, 224")
    k.e("s_cbranch_scc1 L_free")
    k.e("s_cmp_lt_u32 s3, 4")
    k.e("s_cbranch_scc1 L_a")
    k.e(f"s_setprio {flag('PBL', 1)}")
    r = Rec(); k1.loader_setup(r, 6, 7, 101)
    for x in r.lines[8:]: k.e(x)
    k.e("s_waitcnt lgkmcnt(0)")
    for x in r.lines[:8]: k.e(x)
    vm = Vm(); last = {}
    def put(x):
        k.e(x)
        return vm.op() if is_vmem(x) else None
    def dma(st):
        for x in k1.dma(st):
            q = put(x)
            if q is not None: last[st] = q
    if flag("SB", 1): k.e("s_barrier")
    dma(0)
    flags_srd()
    k.e(f"v_mov_b32 v250, {CNT}")
    k.e("s_lshl_b32 s10, s101, 2")
    k.e(f"s_add_u32 s10, s10, {CNT + PB}")
    k.e("v_mov_b32 v248, s10")
    u_addr(k)
    rel1_addr(k)
    k.e("s_lshl_b32 s82, s2, 1")
    k.e("s_add_u32 s53, s2, 448")
    k.e("s_cmp_lt_u32 s2, 64")
    k.e("s_cselect_b32 s52, s53, 1000")
    k.e("s_cselect_b32 s53, s53, s82")
    watch_addr(k, 224, 82, 53)
    k.e("s_add_u32 s82, s82, s101")
    k.e("s_cmp_eq_u32 s101, 2")
    k.e("s_cselect_b32 s82, s52, s82")
    k.e("s_cmp_eq_u32 s101, 3")
    k.e("s_cselect_b32 s82, 1000, s82")
    k.e("s_lshl_b32 s83, s2, 7")
    k.e("s_waitcnt lgkmcnt(0)")
    make_tag(k)
    dma(1)
    PV = 252
    PUBS = STS + flag("PUBD", 3); st_idx = None
    k.e("s_cmp_eq_u32 s101, 2")
    k.e(f"s_cselect_b32 s83, s83, {OOB}")
    k.e("v_mov_b32 v249, 1")
    WPUB = RST + 2 if RST <= 5 else 99
    k.e("s_lshl_b32 s88, s2, 7")
    k.e(f"s_add_u32 s88, s88, {FB}")
    k.e("s_cmp_eq_u32 s101, 1")
    k.e(f"s_cselect_b32 s88, s88, {OOB}")
    for s in range(8):
        w = vm.wait(last[s])
        if s == PUBS: w = min(w, vm.wait(st_idx))
        if s == WPUB: w = min(w, vm.wait(rs_idx))
        k.e(f"s_waitcnt vmcnt({w})")
        k.e("s_barrier")
        if s == WPUB:
            publish(k, 88, 4); vm.op()
            stamp(k, 2, 1)
        if s == PUBS:
            publish(k, 83, 4); vm.op()
            stamp(k, 2, 0)
        if s == STS:
            for x in u_out():
                q = put(x)
                if q is not None: st_idx = q
        if s == RST:
            for x in rel1_reads(): k.e(x)
        dma(s + 2)
        if s == RST:
            for x in rel1_stores():
                q = put(x)
                if q is not None: rs_idx = q
        if s == RLD:
            for x in rel1_loads(): put(x)
    w8, w9 = vm.wait(last[8]), vm.wait(last[9]); wr = min(vm.wait(rs_idx), w9)
    k.e("s_cmp_lt_u32 s82, 640")
    k.e("s_cbranch_scc1 L_b_hasconv")
    k.e(f"s_waitcnt vmcnt({w8})")
    k.e("s_barrier")
    k.e("s_cmp_eq_u32 s101, 3")
    k.e("s_cbranch_scc1 L_b_w7")
    k.e(f"s_waitcnt vmcnt({w9})")
    for x in prog_write(248, 251, 1): k.e(x)
    k.e("s_waitcnt vmcnt(0)")
    for x in prog_write(248, 251, 2): k.e(x)
    k.e("s_branch L_b_aprep")
    k.e("L_b_w7:")
    pre = watch_pre(228, 224)
    k.e("s_setprio 3")
    k.e(pre[0])
    k.e(f"s_waitcnt vmcnt({w9 + 1})")
    for x in prog_write(248, 251, 1): k.e(x)
    k.e("s_waitcnt vmcnt(0)")
    for x in prog_write(248, 251, 2): k.e(x)
    k.e(f"v_cmp_ne_u64 vcc, s[{TAG}:{TAG+1}], v[228:229]")
    k.e("s_cmp_eq_u64 vcc, 0")
    k.e("s_cbranch_scc0 L_b_n1")
    k.e(f"ds_write_b32 v250, v249 offset:{UOK}")
    k.e("L_b_n1:")
    if WPUB == 99:
        k.e("s_lshl_b32 s83, s2, 7")
        k.e(f"s_add_u32 s83, s83, {FB}")
        prog_wait(k, "L_b_rs", 250, PV, PB, 10, 2)
        publish(k, 83, 4)
        stamp(k, 2, 1)
    for _ in range(flag("WSL", 1)): k.e("s_sleep 16")
    k.e(pre[1])
    watch(k, "L_bw", 228, 224)
    stamp(k, 2, 2)
    k.e("s_cmp_lg_u32 s2, 0")
    k.e("s_cbranch_scc1 L_b_aprep")
    k.e("s_setprio 0")
    k.e("v_lshlrev_b32 v1, 7, v0")
    k.e(f"s_mov_b32 s83, {FB}")
    k.e("L_ep_next:")
    poll(k, "L_ep", 4, 1, 83, 10, 64, sleep=16)
    k.e("s_add_u32 s83, s83, 8192")
    k.e(f"s_cmp_lt_u32 s83, {FB + 32768}")
    k.e("s_cbranch_scc1 L_ep_next")
    k.e(f"s_mov_b32 s83, {EP}")
    publish(k, 83, 4)
    k.e("s_branch L_b_aprep")
    k.e("L_b_hasconv:")
    conv.conv2_setup(k, 82)
    k.e(f"s_waitcnt vmcnt({w8 + 2})")
    k.e("s_barrier")
    (conv.conv3_addr if C3 else conv.conv2_addr)(k, 81)
    k.e(f"s_waitcnt vmcnt({w9 + 2})")
    for x in prog_write(248, 251, 1): k.e(x)
    k.e(f"s_waitcnt vmcnt({wr + 2})")
    for x in prog_write(248, 251, 2): k.e(x)
    k.e("L_b_conv:")
    k.e(f"v_mov_b32 v250, {CNT}")
    (conv.conv3_dma if C3 else conv.conv2_dma)(k, 81)
    k.e(f"s_waitcnt vmcnt({8 if C3 else 16})")
    conv.conv2_fix(k)
    stamp(k, 1, 0)
    lds_wait(k, "L_b_uw", 250, 251, UOK, 80)
    conv.conv_setup_u(k, 82, 81, SC1)
    k.e("s_waitcnt vmcnt(0)")
    stamp(k, 1, 1); stamp(k, 3, 3)
    k.e(f"s_setprio {flag('PC', 1)}")
    (conv.conv3_main if C3 else conv.conv_main)(k, "f")
    stamp(k, 3, 0)
    k.e("s_setprio 3")
    conv.conv_epilogue(k, 82, SC1)
    stamp(k, 3, 1)
    k.e(f"s_lshl_b32 s10, s82, {YSH}")
    k.e(f"s_add_u32 s83, s10, {FY}")
    k.e("s_waitcnt vmcnt(0)")
    stamp(k, 3, 2)
    publish(k, 83, 4)
    stamp(k, 1, 2)
    k.e("L_b_aprep:")
    k.e("s_setprio 1")
    b_aprep(k)
    finish(k, 1)
    k.e("L_free:")
    for _ in range(flag("XFREE")): k.e("s_sleep 64")
    k.e("s_waitcnt lgkmcnt(0)")
    flags_srd()
    k.e("s_sub_u32 s84, s2, 224")
    k.e("s_mov_b32 s85, s3")
    k.e("s_cmp_eq_u32 s3, 7")
    k.e("s_cbranch_scc1 L_free_code" if flag("CPF", 1) else "s_cbranch_scc1 L_free_sync")
    k.e("s_cmp_lt_u32 s3, 4")
    k.e("s_cbranch_scc1 L_free_stats")
    k.e("s_setprio 2")
    k.e("s_mul_i32 s85, s84, 3")
    k.e("s_add_u32 s85, s85, s101")
    k.e("s_add_u32 s85, s85, 224")
    aux.emit_prep(k, 85, 81, SC1)
    make_tag(k)
    k.e("s_lshl_b32 s85, s85, 7")
    k.e("s_waitcnt vmcnt(0)")
    publish(k, 85, 4)
    k.e("s_barrier")
    k.e("s_branch L_free_b")
    if flag("CPF", 1):
        k.e("L_free_code:")
        k.e("s_setprio 3")
        k.e("s_getpc_b64 s[40:41]")
        k.e("L_pc:")
        k.e(f"s_sub_u32 s40, s40, L_pc-{NAME}")
        k.e("s_subb_u32 s41, s41, 0")
        k.e(f"s_mov_b32 s42, L_end-{NAME}")
        k.e("s_mov_b32 s43, 0x20000")
        k.e("v_lshlrev_b32 v1, 7, v0")
        k.e("s_mov_b32 s44, 0")
        for i in range(4):
            k.e(f"buffer_load_dword v{8+i}, v1, s[40:43], s44 offen")
            k.e("s_add_u32 s44, s44, 8192")
        k.e("s_setprio 0")
        k.e("s_branch L_free_sync")
    k.e("L_free_stats:")
    stats_rows(k, 85)
    aux.emit_stats(k, 52, SC1)
    k.e("s_add_u32 s85, s85, 4")
    k.e("s_cmp_lt_u32 s85, 8")
    k.e("s_cbranch_scc1 L_free_stats")
    k.e("L_free_sync:")
    k.e("s_waitcnt vmcnt(0) lgkmcnt(0)")
    k.e("s_barrier")
    make_tag(k)
    k.e("s_cmp_lt_u32 s3, 4")
    k.e("s_cbranch_scc1 L_free_a")
    k.e("L_free_b:")
    k.e("s_setprio 1")
    k.e("s_lshl_b32 s82, s84, 2")
    k.e("s_add_u32 s82, s82, s101")
    k.e("s_add_u32 s82, s82, 512")
    conv.conv2_setup(k, 82)
    (conv.conv3_addr if C3 else conv.conv2_addr)(k, 81)
    k.e("s_branch L_b_conv")
    k.e("L_free_a:")
    g2_offsets(k)
    srd(k, 44, P_WS, NB_W, W2_OFF)
    k.e("v_lshlrev_b32 v1, 4, v0")
    k.e("v_add_u32 v2, 4096, v1")
    if flag("XLEAD"):
        k.e("v_lshlrev_b32 v30, 7, v0")
        k.e("s_mov_b32 s10, s77")
        for i in range(9):
            k.e(f"buffer_load_dword v{32+i}, v30, s[44:47], s10 offen{SC1}")
            k.e("s_add_u32 s10, s10, 8192")
    k.e("s_cmp_lg_u32 s3, 0")
    k.e("s_cbranch_scc1 L_g2w")
    k.e("s_lshl_b32 s83, s2, 7")
    k.e(f"s_add_u32 s83, s83, {FB}")
    publish(k, 83, 4)
    k.e("s_lshl_b32 s62, s84, 2")
    k.e("s_add_u32 s62, s62, 512")
    watch_addr(k, 16, 62, 62)
    for x in watch_pre(20, 16): k.e(x)
    watch(k, "L_fw", 20, 16)
    k.e("s_branch L_g2w")
    k.e("L_a:")
    k.e("s_setprio 3")
    prep_addr(k)
    k.e("s_waitcnt lgkmcnt(0)")
    prep_loads(k)
    if flag("SB", 1): k.e("s_barrier")
    k.e(f"s_setprio {flag('PAL', 0)}")
    flags_srd()
    g2_offsets(k)
    g1_setup(k)
    k.e("s_waitcnt lgkmcnt(0)")
    make_tag(k)
    prep_compute(k)
    g1_phase(k)
    g2_phase(k)
    finish(k, 0)
    k.e("L_end:")
    k.e("s_endpgm")
    return k

if __name__ == "__main__":
    import sys
    hdr = open("recurrent_scan__ssm_conv_h3__dense_activation_relu__prompt.s.ref").read().split("; Override")[0]
    k = kernel()
    out = hdr + f"; @launch grid=(256,1,1) block=(512,1,1) lds={LDS_BYTES}\n"
    out += '.amdgcn_target "amdgcn-amd-amdhsa--gfx950"\n.text\n' + k.body() + '.section .rodata,"a"\n' + k.desc()
    open(sys.argv[1], "w").write(out)
```

```python
from common import *
import aux, conv, k1
from conv import interleave, CONV_LDS
from k1 import Vm, is_vmem, SLOT, WPART, NSTAGE, Rec

NAME = "recurrent_scan__ssm_conv_h3__dense_activation_relu__prompt_kernel"
SC1 = " sc1"
OOB = 0x40000000
RB0 = 65536
EA = 131072
TOP = RB0 + 4 * CONV_LDS
RLB = 135168
CNT = 163776
LDS_BYTES = 163840
YCNT, YOK, AUXOK, UOK, PROG, PA, PB = 0, 4, 12, 16, 20, 32, 48
XO, YO, SO = 0, 3072, 6144
HSH = 7; YSH = flag("YSH", 3)
FA, EP, FB, FH = 0, 40960, 45056, 77824
FY = FH + (1024 << 7)
FL_BYTES = FY + (640 << 7)
TAG, FSRD = 90, 92
SPIN_MAX = 0x20000
NSTEP, NH, NW = 14, 4, 5
G_ACC, G_H = 8, 88
W_SL = [176, 196, 216, 236, 156]
C3 = flag("C3", 1)
EWI = flag("EWI", 0)
ST = flag("ST", 0)
def stamp(k, setno, i):
    if ST == setno: stamp_mid(k, i)
def cstamp(k, name, i):
    if STAMP and os.environ.get("CK", "").split(",")[i:i+1] == [name]:
        stamp_mid(k, 2*i)
        k.e("s_memtime s[10:11]")
        k.e("s_waitcnt lgkmcnt(0)")
        k.e(f"s_mov_b32 s{13+2*i}, s10")
def cs(k, name):
    cstamp(k, name, 0); cstamp(k, name, 1)

def make_tag(k):
    k.e(f"s_mul_i32 s{TAG}, s{TAG}, 1664525")
    k.e(f"s_add_u32 s{TAG}, s{TAG}, 1013904223")
    k.e(f"s_mul_i32 s{TAG+1}, s{TAG+1}, 22695477")
    k.e(f"s_add_u32 s{TAG+1}, s{TAG+1}, 1")

def publish(k, s_off, va):
    k.e(f"v_mov_b32 v{va}, s{TAG}")
    k.e(f"v_mov_b32 v{va+1}, s{TAG+1}")
    k.e(f"v_mov_b32 v{va+2}, 0")
    k.e("s_mov_b64 exec, 1")
    k.e(f"buffer_store_dwordx2 v[{va}:{va+1}], v{va+2}, s[{FSRD}:{FSRD+3}], s{s_off} offen{SC1}")
    k.e("s_mov_b64 exec, -1")

def poll(k, lbl, vd, voff, s_off, s_cnt, nlanes, sleep=4, preloaded=False):
    so = f"s{s_off}" if s_off is not None else "0"
    k.e(f"s_mov_b32 s{s_cnt}, 0")
    if nlanes < 64: k.e(f"s_bfm_b64 exec, {nlanes}, 0")
    if preloaded: k.e(f"s_branch {lbl}_chk")
    k.e(f"{lbl}:")
    k.e(f"buffer_load_dwordx2 v[{vd}:{vd+1}], v{voff}, s[{FSRD}:{FSRD+3}], {so} offen{SC1}")
    k.e("s_waitcnt vmcnt(0)")
    k.e(f"{lbl}_chk:")
    k.e(f"v_cmp_ne_u64 vcc, s[{TAG}:{TAG+1}], v[{vd}:{vd+1}]")
    k.e("s_and_b64 exec, exec, vcc")
    k.e(f"s_cbranch_scc0 {lbl}_ok")
    k.e(f"s_sleep {sleep}")
    k.e(f"s_add_u32 s{s_cnt}, s{s_cnt}, 1")
    k.e(f"s_cmp_lt_u32 s{s_cnt}, {SPIN_MAX:#x}")
    k.e(f"s_cbranch_scc1 {lbl}")
    k.e(f"{lbl}_ok:")
    k.e("s_mov_b64 exec, -1")

def lds_wait(k, lbl, vaddr, vtmp, off, s_tmp, sleep=2):
    k.e(f"{lbl}:")
    k.e(f"ds_read_b32 v{vtmp}, v{vaddr} offset:{off}")
    k.e("s_waitcnt lgkmcnt(0)")
    k.e(f"v_readfirstlane_b32 s{s_tmp}, v{vtmp}")
    k.e(f"s_cmp_lg_u32 s{s_tmp}, 0")
    k.e(f"s_cbranch_scc1 {lbl}_ok")
    k.e(f"s_sleep {sleep}")
    k.e(f"s_branch {lbl}")
    k.e(f"{lbl}_ok:")

def prog_write(vaddr, vtmp, val):
    return [f"v_mov_b32 v{vtmp}, {val}", f"s_mov_b64 exec, 1\nds_write_b32 v{vaddr}, v{vtmp}\ns_mov_b64 exec, -1"]
def prog_min(vd, s_tmp):
    return [f"v_min3_u32 v{vd}, v{vd}, v{vd+1}, v{vd+2}", f"v_min_u32 v{vd}, v{vd}, v{vd+3}", f"v_readfirstlane_b32 s{s_tmp}, v{vd}"]
def prog_spin(k, lbl, vcnt, vd, off, s_tmp, need, sleep=0):
    k.e(f"s_cmp_ge_u32 s{s_tmp}, {need}")
    k.e(f"s_cbranch_scc1 {lbl}_ok")
    k.e(f"{lbl}:")
    if sleep: k.e(f"s_sleep {sleep}")
    k.e(f"ds_read_b128 v[{vd}:{vd+3}], v{vcnt} offset:{off}")
    k.e("s_waitcnt lgkmcnt(0)")
    for x in prog_min(vd, s_tmp): k.e(x)
    k.e(f"s_cmp_lt_u32 s{s_tmp}, {need}")
    k.e(f"s_cbranch_scc1 {lbl}")
    k.e(f"{lbl}_ok:")
def prog_wait(k, lbl, vcnt, vd, off, s_tmp, need, sleep=1):
    k.e(f"s_mov_b32 s{s_tmp}, 0")
    prog_spin(k, lbl, vcnt, vd, off, s_tmp, need, sleep)

def watch_addr(k, va, s_cha, s_chb):
    k.e("s_lshr_b32 s10, s9, 1")
    k.e(f"s_add_u32 s10, s10, {FB >> 7}")
    k.e(f"v_lshl_add_u32 v{va}, v0, 2, s10")
    k.e(f"v_mov_b32 v{va+1}, s10")
    k.e("v_cmp_gt_u32 vcc, 54, v0")
    k.e(f"v_cndmask_b32 v{va}, v{va+1}, v{va}, vcc")
    k.e(f"v_lshlrev_b32 v{va}, 7, v{va}")
    k.e(f"s_lshr_b32 s10, s{s_cha}, 6")
    k.e(f"s_lshr_b32 s11, s{s_chb}, 6")
    k.e(f"v_mov_b32 v{va+1}, s11")
    k.e(f"v_mov_b32 v{va+2}, s10")
    k.e("v_cmp_gt_u32 vcc, 32, v0")
    k.e(f"v_cndmask_b32 v{va+1}, v{va+1}, v{va+2}, vcc")
    k.e(f"v_and_b32 v{va+2}, 31, v0")
    k.e(f"v_mad_u32_u24 v{va+1}, v{va+2}, 10, v{va+1}")
    k.e(f"v_lshlrev_b32 v{va+1}, 7, v{va+1}")
def watch_pre(vd, va):
    return [f"buffer_load_dwordx2 v[{vd}:{vd+1}], v{va+1}, s[{FSRD}:{FSRD+3}], 0 offen{SC1}",
            f"buffer_load_dwordx2 v[{vd+2}:{vd+3}], v{va}, s[{FSRD}:{FSRD+3}], 0 offen{SC1}"]
def watch(k, lbl, vd, va):
    k.e("s_waitcnt vmcnt(0)")
    poll(k, lbl + "a", vd, va + 1, None, 10, 64, preloaded=True)
    k.e(f"v_mov_b32 v{vd}, {CNT}")
    k.e(f"v_mov_b32 v{vd+1}, 1")
    k.e(f"ds_write_b32 v{vd}, v{vd+1} offset:{UOK}")
    poll(k, lbl + "b", vd + 2, va, None, 10, 64, preloaded=True)
    k.e(f"ds_write_b32 v{vd}, v{vd+1} offset:{AUXOK}")

def xo_offsets(k, vb, t1, t2):
    k.e("s_lshl_b32 s53, s8, 2")
    k.e("s_add_u32 s53, s53, s101")
    k.e("s_mul_i32 s54, s53, 20480")
    k.e("s_mul_i32 s55, s9, 160")
    k.e("s_add_u32 s54, s54, s55")
    for i in range(3):
        k.e(f"v_add_u32 v{t1}, {64*i}, v0")
        k.e(f"v_mul_u32_u24 v{t2}, 6554, v{t1}")
        k.e(f"v_lshrrev_b32 v{t2}, 16, v{t2}")
        k.e(f"v_mul_u32_u24 v{t2}, 1120, v{t2}")
        k.e(f"v_lshl_add_u32 v{vb+i}, v{t1}, 4, v{t2}")
    k.e(f"v_mov_b32 v{t2}, {OOB}")
    k.e("v_cmp_gt_u32 vcc, 32, v0")
    k.e(f"v_cndmask_b32 v{vb+2}, v{t2}, v{vb+2}, vcc")

def unit_ids(k, s_rb, s_cgp):
    k.e(f"s_mul_i32 s{s_rb}, s2, 6554")
    k.e(f"s_lshr_b32 s{s_rb}, s{s_rb}, 16")
    k.e(f"s_mul_i32 s{s_cgp}, s{s_rb}, 10")
    k.e(f"s_sub_u32 s{s_cgp}, s2, s{s_cgp}")
def prep_addr(k):
    unit_ids(k, 52, 53)
    k.e("s_lshl_b32 s54, s52, 2")
    k.e("s_add_u32 s54, s54, s101")
    k.e("s_mul_i32 s54, s54, 20480")
    k.e("s_lshl_b32 s55, s53, 7")
    k.e("s_add_u32 s54, s54, s55")
    k.e("v_lshrrev_b32 v1, 3, v0")
    k.e("v_mul_u32_u24 v2, 1280, v1")
    k.e("v_and_b32 v3, 7, v0")
    k.e("v_lshl_add_u32 v2, v3, 4, v2")
    if flag("XNOPL"): k.e(f"s_mov_b32 s54, {OOB}")
    k.e("v_add_u32 v200, s54, v2")
    k.e("v_subrev_u32 v201, 3840, v200")
    k.e(f"v_add_u32 v202, {10240 - 3840 - 1024}, v200")
    k.e(f"v_add_u32 v203, {20480 - 3840 - 2048}, v200")
    k.e(f"v_mov_b32 v6, {OOB}")
    k.e("v_cmp_gt_u32 vcc, 24, v0")
    k.e("v_cndmask_b32 v203, v6, v203, vcc")
    k.e(f"v_add_u32 v204, {10240 - 1024}, v200")
    k.e("s_mul_i32 s56, s101, 5120")
    k.e(f"s_add_u32 s56, s56, {EA}")
    k.e("v_and_b32 v7, 31, v0")
    k.e("s_lshl_b32 s55, s53, 9")
    k.e("v_lshl_add_u32 v205, v7, 4, s55")
def prep_loads(k):
    srd(k, 40, P_K, NB_X)
    k.e("s_mov_b32 m0, s56")
    k.e("buffer_load_dwordx4 v201, s[40:43], 0 offen lds")
    k.e("buffer_load_dwordx4 v202, s[40:43], 0 offen offset:1024 lds")
    k.e("buffer_load_dwordx4 v203, s[40:43], 0 offen offset:2048 lds")
    srd(k, 44, P_V, NB_X)
    k.e("s_add_u32 m0, s56, 3072")
    k.e("buffer_load_dwordx4 v200, s[44:47], 0 offen lds")
    k.e("buffer_load_dwordx4 v204, s[44:47], 0 offen offset:1024 lds")
    srd(k, 48, P_SH, D * 8)
    k.e("buffer_load_dwordx4 v[212:215], v205, s[48:51], 0 offen")
    k.e("v_lshrrev_b32 v9, 5, v0")
    k.e("v_lshlrev_b32 v10, 10, v9")
    k.e("v_lshl_add_u32 v10, v7, 2, v10")
    k.e("v_add_u32 v209, s56, v10")
    k.e("v_sub_u32 v11, 1, v9")
    k.e("v_lshlrev_b32 v11, 4, v11")
    k.e("v_lshl_add_u32 v11, v7, 6, v11")
    k.e("v_add_u32 v210, s56, v11")
def prep_compute(k):
    KR, VR, TP, KU, VU, KV, OUT = 112, 124, 132, 140, 216, 180, 184
    k.e("s_waitcnt vmcnt(0)")
    for j in range(11): k.e(f"ds_read_b32 v{KR+j}, v209 offset:{128*j}")
    for j in range(8): k.e(f"ds_read_b32 v{VR+j}, v209 offset:{3072 + 128*j}")
    for c in range(2):
        unpack(k, TP + 0 + c, TP + 2 + c, 212 + 2*c)
        unpack(k, TP + 4 + c, TP + 6 + c, 213 + 2*c)
    k.e("s_waitcnt lgkmcnt(8)")
    for j in range(11): unpack(k, KU + 2*j, KU + 2*j + 1, KR + j)
    k.e("s_waitcnt lgkmcnt(0)")
    for j in range(8): unpack(k, VU + 2*j, VU + 2*j + 1, VR + j)
    for r in range(8):
        d = KV + 2*(r & 1)
        for j in (3, 2, 1, 0):
            w = KU + 2*(r + 3 - j); t = TP + 2*j
            if j == 3: k.e(f"v_pk_mul_f32 v[{d}:{d+1}], v[{w}:{w+1}], v[{t}:{t+1}]")
            else: k.e(f"v_pk_fma_f32 v[{d}:{d+1}], v[{w}:{w+1}], v[{t}:{t+1}], v[{d}:{d+1}]")
        k.e(f"v_pk_mul_f32 v[{d}:{d+1}], v[{d}:{d+1}], v[{VU+2*r}:{VU+2*r+1}]")
        if r & 1:
            for c in range(2):
                k.e(f"v_cvt_pk_bf16_f32 v{OUT+4*c+3-r//2}, v{KV+2+c}, v{KV+c}")
    for c in range(2):
        k.e(f"ds_write_b128 v210, v[{OUT+4*c}:{OUT+4*c+3}] offset:{32*c}")

def b_aux_addr(k):
    srd(k, 84, P_W2, NB_W)
    srd(k, 44, P_WS, NB_W, W2_OFF)
    srd(k, 40, P_WS, NB_T, UR_OFF)
    k.e("s_lshr_b32 s57, s2, 2")
    k.e("s_and_b32 s58, s2, 3")
    k.e("s_mul_i32 s59, s57, 40960")
    k.e("s_mul_i32 s60, s58, 320")
    k.e("s_add_u32 s59, s59, s60")
    k.e("s_lshl_b32 s60, s101, 6")
    k.e("s_lshl_b32 s61, s101, 10")
    for i in range(3):
        k.e("v_add_u32 v9, s60, v0")
        if i: k.e(f"v_add_u32 v9, {256*i}, v9")
        k.e("v_mul_u32_u24 v10, 52429, v9")
        k.e("v_lshrrev_b32 v10, 20, v10")
        k.e("v_mul_u32_u24 v10, 960, v10")
        k.e(f"v_lshl_add_u32 v{206+i}, v9, 4, v10")
    k.e("s_cmp_ge_u32 s101, 2")
    k.e(f"s_cselect_b32 s60, {OOB}, 0")
    k.e("v_add_u32 v208, s60, v208")
    k.e(f"s_add_u32 s62, s61, {EA + 20480 + 8192}")
    k.e("s_cmp_ge_u32 s101, 2")
    k.e(f"s_cselect_b32 s62, {EA + 30720}, s62")
def b_aux_addr2(k):
    k.e("s_lshr_b32 s10, s101, 1")
    k.e("s_and_b32 s11, s101, 1")
    k.e("s_mul_i32 s60, s10, 5")
    k.e("s_mul_i32 s54, s11, 3")
    k.e("s_add_u32 s60, s60, s54")
    k.e("s_lshl_b32 s60, s60, 5")
    k.e(f"s_add_u32 s60, s60, {EA + 20480}")
    k.e("v_lshrrev_b32 v11, 2, v0")
    k.e("v_mul_u32_u24 v11, 320, v11")
    k.e("v_and_b32 v12, 3, v0")
    k.e("v_lshl_add_u32 v11, v12, 3, v11")
    k.e("v_add_u32 v214, s60, v11")
    k.e("s_lshl_b32 s60, s58, 1")
    k.e("s_add_u32 s60, s60, s10")
    k.e(f"s_mul_i32 s89, s60, {NT}")
    k.e("s_add_u32 s89, s89, s57")
    k.e("s_mul_i32 s89, s89, 5120")
    k.e("s_lshl_b32 s54, s54, 10")
    k.e("s_add_u32 s89, s89, s54")
    k.e("s_cmp_ge_u32 s2, 216")
    k.e(f"s_cselect_b32 s89, {OOB}, s89")
    if flag("XNOW"): k.e(f"s_mov_b32 s89, {OOB}")
    k.e("v_lshlrev_b32 v215, 4, v0")
    k.e("s_cmp_eq_u32 s11, 1")
    k.e(f"s_cselect_b32 s54, {OOB}, 0")
    k.e("v_add_u32 v216, s54, v215")
    unit_ids(k, 52, 53)
    k.e("v_lshrrev_b32 v1, 3, v0")
    k.e("v_and_b32 v3, 7, v0")
    k.e("v_lshrrev_b32 v11, 1, v3")
    k.e("v_sub_u32 v11, 3, v11")
    k.e("v_mul_u32_u24 v11, 5120, v11")
    k.e("v_lshl_add_u32 v11, v1, 5, v11")
    k.e("v_and_b32 v12, 1, v3")
    k.e("v_lshl_add_u32 v11, v12, 4, v11")
    k.e("s_lshl_b32 s55, s101, 9")
    k.e(f"s_add_u32 s55, s55, {EA}")
    k.e("v_add_u32 v211, s55, v11")
    k.e(f"v_mul_u32_u24 v232, {RS}, v1")
    k.e("v_lshl_add_u32 v232, v3, 4, v232")
    k.e(f"v_add_u32 v233, {8*RS}, v232")
    k.e("s_lshl_b32 s63, s53, 2")
    k.e("s_add_u32 s63, s63, s101")
    k.e(f"s_mul_i32 s63, s63, {16*RS}")
    k.e("s_lshl_b32 s55, s52, 7")
    k.e("s_sub_u32 s55, 3968, s55")
    k.e("s_add_u32 s63, s63, s55")
    if flag("XNOST"):
        k.e(f"s_mov_b32 s63, {OOB}")
        k.e(f"s_mov_b32 s89, {OOB}")
def rel_loads():
    return [f"s_add_u32 m0, s61, {EA + 20480}",
            "buffer_load_dwordx4 v206, s[84:87], s59 offen lds",
            f"s_add_u32 m0, s61, {EA + 20480 + 4096}",
            "buffer_load_dwordx4 v207, s[84:87], s59 offen lds",
            "s_mov_b32 m0, s62",
            "buffer_load_dwordx4 v208, s[84:87], s59 offen lds"]
def aux_out():
    L = [f"ds_read_b128 v[{100+4*i}:{103+4*i}], v211 offset:{256*i}" for i in range(2)]
    for i in range(3):
        L.append(f"ds_read_b64_tr_b16 v[{188+4*i}:{189+4*i}], v214 offset:{32*i}")
        L.append(f"ds_read_b64_tr_b16 v[{190+4*i}:{191+4*i}], v214 offset:{32*i + 5120}")
    L.append("s_waitcnt lgkmcnt(0)")
    L += [f"buffer_store_dwordx4 v[{100+4*i}:{103+4*i}], v{232+i}, s[40:43], s63 offen{SC1}" for i in range(2)]
    L += [f"buffer_store_dwordx4 v[{188+4*i}:{191+4*i}], v{216 if i == 2 else 215}, s[44:47], s89 offen offset:{1024*i}{SC1}" for i in range(3)]
    return L

def rel1_addr(k):
    srd(k, 84, P_W2, NB_W)
    srd(k, 44, P_WS, NB_W, W2_OFF)
    k.e("s_lshr_b32 s57, s2, 2")
    k.e("s_and_b32 s58, s2, 3")
    k.e("s_mul_i32 s59, s57, 40960")
    k.e("s_mul_i32 s60, s58, 320")
    k.e("s_add_u32 s59, s59, s60")
    k.e("s_lshl_b32 s60, s101, 6")
    k.e("s_lshl_b32 s61, s101, 10")
    for i in range(3):
        k.e("v_add_u32 v9, s60, v0")
        if i: k.e(f"v_add_u32 v9, {256*i}, v9")
        k.e("v_mul_u32_u24 v10, 52429, v9")
        k.e("v_lshrrev_b32 v10, 20, v10")
        k.e("v_mul_u32_u24 v10, 960, v10")
        k.e(f"v_lshl_add_u32 v{110+i}, v9, 4, v10")
    k.e("s_cmp_ge_u32 s101, 2")
    k.e(f"s_cselect_b32 s60, {OOB}, 0")
    k.e("v_add_u32 v112, s60, v112")
    k.e("v_lshrrev_b32 v11, 2, v0")
    k.e("v_mul_u32_u24 v11, 320, v11")
    k.e("v_and_b32 v12, 3, v0")
    k.e("v_lshl_add_u32 v11, v12, 3, v11")
    k.e("s_lshr_b32 s10, s101, 1")
    k.e("s_and_b32 s11, s101, 1")
    k.e("s_mul_i32 s60, s10, 5")
    k.e("s_mul_i32 s54, s11, 3")
    k.e("s_add_u32 s60, s60, s54")
    k.e("s_lshl_b32 s60, s60, 5")
    k.e(f"s_add_u32 s60, s60, {RLB}")
    k.e("v_add_u32 v214, s60, v11")
    k.e("s_lshl_b32 s60, s58, 1")
    k.e("s_add_u32 s60, s60, s10")
    k.e(f"s_mul_i32 s89, s60, {NT}")
    k.e("s_add_u32 s89, s89, s57")
    k.e("s_mul_i32 s89, s89, 5120")
    k.e("s_lshl_b32 s54, s54, 10")
    k.e("s_add_u32 s89, s89, s54")
    k.e("s_cmp_ge_u32 s2, 216")
    k.e(f"s_cselect_b32 s89, {OOB}, s89")
    if flag("XNOW"): k.e(f"s_mov_b32 s89, {OOB}")
    k.e("v_lshlrev_b32 v215, 4, v0")
    k.e("s_cmp_eq_u32 s11, 1")
    k.e(f"s_cselect_b32 s54, {OOB}, 0")
    k.e("v_add_u32 v216, s54, v215")
def rel1_loads():
    L = []
    for i in range(3):
        L.append(f"s_add_u32 m0, s61, {RLB + 4096*i}")
        L.append(f"buffer_load_dwordx4 v{110+i}, s[84:87], s59 offen lds")
    return L
def rel1_reads():
    L = []
    for i in range(3):
        L.append(f"ds_read_b64_tr_b16 v[{188+4*i}:{189+4*i}], v214 offset:{32*i}")
        L.append(f"ds_read_b64_tr_b16 v[{190+4*i}:{191+4*i}], v214 offset:{32*i + 5120}")
    return L
def rel1_stores():
    return ["s_waitcnt lgkmcnt(0)"] + [f"buffer_store_dwordx4 v[{188+4*i}:{191+4*i}], v{216 if i == 2 else 215}, s[44:47], s89 offen offset:{1024*i}{SC1}" for i in range(3)]
def u_addr(k):
    srd(k, 40, P_WS, NB_T, UR_OFF)
    unit_ids(k, 52, 53)
    k.e("v_lshrrev_b32 v1, 3, v0")
    k.e("v_and_b32 v3, 7, v0")
    k.e("v_lshrrev_b32 v11, 1, v3")
    k.e("v_sub_u32 v11, 3, v11")
    k.e("v_mul_u32_u24 v11, 5120, v11")
    k.e("v_lshl_add_u32 v11, v1, 5, v11")
    k.e("v_and_b32 v12, 1, v3")
    k.e("v_lshl_add_u32 v11, v12, 4, v11")
    k.e("s_lshl_b32 s55, s101, 9")
    k.e(f"s_add_u32 s55, s55, {EA}")
    k.e("v_add_u32 v211, s55, v11")
    k.e(f"v_mul_u32_u24 v232, {RS}, v1")
    k.e("v_lshl_add_u32 v232, v3, 4, v232")
    k.e(f"v_add_u32 v233, {8*RS}, v232")
    k.e("s_lshl_b32 s63, s53, 2")
    k.e("s_add_u32 s63, s63, s101")
    k.e(f"s_mul_i32 s63, s63, {16*RS}")
    k.e("s_lshl_b32 s55, s52, 7")
    k.e("s_sub_u32 s55, 3968, s55")
    k.e("s_add_u32 s63, s63, s55")
def u_out():
    L = [f"ds_read_b128 v[{100+4*i}:{103+4*i}], v211 offset:{256*i}" for i in range(2)]
    L.append("s_waitcnt lgkmcnt(0)")
    L += [f"buffer_store_dwordx4 v[{100+4*i}:{103+4*i}], v{232+i}, s[40:43], s63 offen{SC1}" for i in range(2)]
    return L

def g2_offsets(k):
    k.e("s_mul_i32 s10, s101, 14")
    k.e("s_cmp_eq_u32 s101, 3")
    k.e("s_cselect_b32 s10, 41, s10")
    k.e(f"s_mul_i32 s11, s8, {NT}")
    k.e("s_add_u32 s11, s11, s10")
    k.e("s_lshl_b32 s76, s11, 12")
    k.e(f"s_mul_i32 s11, s9, {NT}")
    k.e("s_add_u32 s11, s11, s10")
    k.e("s_mul_i32 s77, s11, 5120")
    k.e("s_cmp_ge_u32 s101, 2")
    k.e(f"s_cselect_b32 s79, {OOB}, 0")
    k.e("s_mul_i32 s75, s101, 7")
    k.e("s_min_u32 s75, s75, 20")
    k.e("s_lshl_b32 s11, s8, 5")
    k.e("s_add_u32 s75, s75, s11")
    k.e(f"s_lshl_b32 s75, s75, {HSH}")
    k.e(f"s_add_u32 s75, s75, {FH}")
    k.e("s_lshl_b32 s74, s101, 14")
LSTEPS = [int(x) for x in os.environ.get("LSTEPS", "5,8,11").split(",")]
def soff(dst, base, step, mul):
    st = step
    if flag("XHIT") & 1 and mul == 4096: st = step % 2
    if flag("XHIT") & 2 and mul == 5120: st = step % 2
    L = [f"s_add_u32 s{dst}, s{base}, {st * mul}"]
    if step == NSTEP - 1: L.append(f"s_add_u32 s{dst}, s{dst}, s79")
    return L
def w_loads(step):
    b = W_SL[step % NW]
    L = soff(73, 77, step, 5120)
    L += [f"buffer_load_dwordx4 v[{b+4*d}:{b+4*d+3}], v1, s[44:47], s73 offen offset:{1024*d}{SC1}" for d in range(4)]
    L.append(f"buffer_load_dwordx4 v[{b+16}:{b+19}], v2, s[44:47], s73 offen{SC1}")
    return L
def h_loads(step):
    b = G_H + 16 * (step % NH)
    L = soff(72, 76, step, 4096)
    L += [f"buffer_load_dwordx4 v[{b+4*m}:{b+4*m+3}], v{3+m}, s[40:43], s72 offen{SC1}" for m in range(4)]
    return L
def w_lds_reads(step):
    b = W_SL[step % NW]
    return [f"ds_read_b128 v[{b+4*d}:{b+4*d+3}], v7 offset:{LSTEPS.index(step)*5120 + 1024*d}" for d in range(5)]
def g2_mfmas(step, order=None):
    b = G_H + 16 * (step % NH); wb = W_SL[step % NW]
    L = []
    for d, m in (order or [(d, m) for d in range(5) for m in range(4)]):
        a = G_ACC + 16*d + 4*m
        c = "0" if step == 0 else f"v[{a}:{a+3}]"
        L.append(f"v_mfma_f32_16x16x32_bf16 v[{a}:{a+3}], v[{wb+4*d}:{wb+4*d+3}], v[{b+4*m}:{b+4*m+3}], {c}")
    return L

def g2_phase(k):
    for s in range(EWI or flag("NP", 0), NW):
        for x in w_loads(s): k.e(x)
    srd(k, 40, P_WS, 32 * NT * 4096, H_OFF)
    k.e("s_lshl_b32 s52, s101, 10")
    k.e("v_add_u32 v3, s52, v1")
    for m in range(1, 4): k.e(f"v_xor_b32 v{3+m}, {1024*m}, v3")
    k.e(f"v_lshlrev_b32 v9, {HSH}, v0")
    EPOL = flag("EPOL", 8); left = 15
    for li, s in enumerate(LSTEPS):
        for x in soff(78, 77, s, 5120): k.e(x)
        for d in range(5):
            if left == EPOL:
                k.e("s_bfm_b64 exec, 7, 0")
                k.e(f"buffer_load_dwordx2 v[10:11], v9, s[{FSRD}:{FSRD+3}], s75 offen{SC1}")
                k.e("s_mov_b64 exec, -1")
            left -= 1
            if d in (0, 4): k.e(f"s_add_u32 m0, s74, {li*5120 + 1024*d}")
            if d < 4: k.e(f"buffer_load_dwordx4 v1, s[44:47], s78 offen offset:{1024*d}{SC1} lds")
            else: k.e(f"buffer_load_dwordx4 v2, s[44:47], s78 offen{SC1} lds")
    k.e("v_add_u32 v7, s74, v1")
    k.e(f"v_mov_b32 v152, {CNT}")
    k.e(f"s_waitcnt vmcnt({EPOL})")
    poll(k, "L_hpoll", 10, 9, 75, 58, 7, sleep=2, preloaded=True)
    stamp(k, 1, 2); cs(k, "rdy")
    vm = Vm(); need = {}
    NH0 = flag("NH0", 3)
    for s in range(NH0):
        for x in h_loads(s):
            k.e(x)
            if is_vmem(x): need[("h", s)] = vm.op()
    def groups(L):
        G = []; cur = []
        for x in L:
            cur.append(x)
            if is_vmem(x): G.append(cur); cur = []
        return G
    LA = flag("LA", 2); R = flag("RATE", 6)
    qh = [(s - (NH - 1), s - LA, "h", s, g) for s in range(NH0, NSTEP) for g in groups(h_loads(s))]
    qw = [(s - (NW - 1), s - LA, "w", s, g) for s in range(NW, NSTEP) if s not in LSTEPS for g in groups(w_loads(s))]
    for s in range(NSTEP):
        idx = max(need[("h", s)], need.get(("w", s), -1))
        lg = " lgkmcnt(0)" if (s in LSTEPS or s == NSTEP - 1) else ""
        k.e(f"s_waitcnt vmcnt({vm.wait(idx)}){lg}")
        if s in (0, 3, 7, 10): stamp(k, 4, (0, 3, 7, 10).index(s))
        if s in (10, 12, 13): stamp(k, 5, (10, 12, 13).index(s))
        if s == NSTEP - 1: break
        fill = []
        while (qh or qw):
            cand = [q for q in (qh, qw) if q and q[0][0] <= s]
            if not cand: break
            q = min(cand, key=lambda q: q[0][1])
            if len(fill) >= R and q[0][1] > s: break
            fill.append(q.pop(0))
        extra = []
        if s == flag("YAT", 5): extra.append(f"ds_write_b32 v152, v152 offset:{PROG}")
        if s + 2 in LSTEPS: extra += w_lds_reads(s + 2)
        if s == 12:
            r = Rec(); tail_addr(r); extra += ["\n".join(r.lines[i:i+2]) for i in range(0, len(r.lines), 2)]
        n = len(fill); fi = 0; ei = 0
        for i, x in enumerate(g2_mfmas(s)):
            k.e(x)
            if fi < n and i >= (fi * 18) // n:
                for y in fill[fi][4]: k.e(y)
                need[(fill[fi][2], fill[fi][3])] = vm.op(); fi += 1
            elif ei < len(extra):
                k.e(extra[ei]); ei += 1
        assert fi == n
        for y in extra[ei:]: k.e(y)
    assert not qh and not qw
    k.e("s_setprio 2")
    order = [(3, 0), (4, 0)] + [(d, m) for m in (1, 2, 3) for d in range(5)] + [(0, 0), (1, 0), (2, 0)]
    wr = [f"ds_write_b128 v{T+8}, v[{G_ACC+16*d}:{G_ACC+16*d+3}] offset:{OWN + 1024*(d-3)}" for d in (3, 4)]
    wr += [f"ds_write_b128 v7, v[{G_ACC+16*d+4*m}:{G_ACC+16*d+4*m+3}] offset:{(m-1)*5120 + 1024*d}" for d, m in order[2:17]]
    k.e("s_cmp_ge_u32 s101, 2")
    k.e("s_cbranch_scc1 L_g2_short")
    for x in interleave(g2_mfmas(NSTEP - 1, order), wr, start=6): k.e(x)
    k.e("s_branch L_g2_join")
    k.e("L_g2_short:")
    k.e("s_nop 7")
    for x in wr: k.e(x)
    k.e("L_g2_join:")
    stamp(k, 1, 3); cs(k, "mend")
    g2_tail(k)

T = 156
OWN = SO + 3072
assert C3
def tail_addr(k):
    srd(k, 48, P_OUT, NB_X)
    k.e("s_lshl_b32 s53, s8, 2")
    k.e("s_add_u32 s53, s53, s101")
    k.e("s_mul_i32 s54, s53, 20480")
    k.e("s_mul_i32 s55, s9, 160")
    k.e("s_add_u32 s54, s54, s55")
    for i in range(2):
        k.e(f"v_add_u32 v{T+3}, {64*i}, v0")
        k.e(f"v_mul_u32_u24 v{T+4}, 10923, v{T+3}")
        k.e(f"v_lshrrev_b32 v{T+4}, 16, v{T+4}")
        k.e(f"v_mul_u32_u24 v{T+4}, {1280-96}, v{T+4}")
        k.e(f"v_lshl_add_u32 v{T+i}, v{T+3}, 4, v{T+4}")
    k.e(f"v_mov_b32 v{T+4}, {OOB}")
    k.e("v_cmp_gt_u32 vcc, 32, v0")
    k.e(f"v_cndmask_b32 v{T+1}, v{T+4}, v{T+1}, vcc")
    for m in range(1, 4): k.e(f"v_xor_b32 v{T+4+m}, {16384*m}, v7")
    k.e(f"v_add_u32 v{T+8}, s81, v1")
    k.e(f"v_and_b32 v{T+9}, 15, v0")
    k.e(f"v_mul_u32_u24 v{T+9}, 96, v{T+9}")
    k.e(f"v_lshrrev_b32 v{T+10}, 4, v0")
    k.e(f"v_lshl_add_u32 v{T+9}, v{T+10}, 3, v{T+9}")
    k.e(f"v_add_u32 v{T+9}, s81, v{T+9}")
    k.e(f"v_mov_b32 v{T+12}, 1.0")
    k.e(f"v_mov_b32 v{T+13}, 1.0")
def final_block(k, a, s, x, cc, one):
    for h in range(2):
        k.e(f"v_pk_add_f32 v[{a+2*h}:{a+2*h+1}], v[{a+2*h}:{a+2*h+1}], v[{a+4+2*h}:{a+4+2*h+1}]")
        k.e(f"v_pk_add_f32 v[{a+8+2*h}:{a+8+2*h+1}], v[{a+8+2*h}:{a+8+2*h+1}], v[{a+12+2*h}:{a+12+2*h+1}]")
    for h in range(2):
        k.e(f"v_pk_add_f32 v[{a+2*h}:{a+2*h+1}], v[{a+2*h}:{a+2*h+1}], v[{a+8+2*h}:{a+8+2*h+1}]")
    e = a + 4
    for h in range(2):
        k.e(f"v_pk_mul_f32 v[{e+2*h}:{e+2*h+1}], v[{a+2*h}:{a+2*h+1}], v[{cc}:{cc+1}]")
    for r in range(4): k.e(f"v_exp_f32 v{e+r}, v{e+r}")
    for h in range(2):
        k.e(f"v_pk_mul_f32 v[{a+2*h}:{a+2*h+1}], v[{a+2*h}:{a+2*h+1}], v[{s+2*h}:{s+2*h+1}]")
    for h in range(2):
        k.e(f"v_pk_add_f32 v[{e+2*h}:{e+2*h+1}], v[{e+2*h}:{e+2*h+1}], v[{one}:{one+1}]")
    for r in range(4): k.e(f"v_rcp_f32 v{e+r}, v{e+r}")
    for h in range(2):
        k.e(f"v_pk_fma_f32 v[{a+2*h}:{a+2*h+1}], v[{a+2*h}:{a+2*h+1}], v[{e+2*h}:{e+2*h+1}], v[{x+2*h}:{x+2*h+1}]")
    k.e(f"v_cvt_pk_bf16_f32 v{a+8}, v{a}, v{a+1}")
    k.e(f"v_cvt_pk_bf16_f32 v{a+9}, v{a+2}, v{a+3}")
def g2_tail(k):
    k.e("s_waitcnt lgkmcnt(0)")
    stamp(k, 6, 0)
    k.e("s_barrier")
    stamp(k, 5, 3); stamp(k, 6, 1)
    SF, XF, CC = 88, 108, T + 14
    k.e(f"ds_read_b64 v[{CC}:{CC+1}], v{T+8} offset:{SO + 10240}")
    for d in range(3):
        for m in range(1, 4):
            a = G_ACC + 16*d + 4*m
            k.e(f"ds_read_b128 v[{a}:{a+3}], v{T+4+m} offset:{(m-1)*5120 + 1024*d}")
        k.e(f"ds_read_b128 v[{SF+4*d}:{SF+4*d+3}], v{T+8} offset:{SO + 1024*d}")
        k.e(f"ds_read_b128 v[{XF+4*d}:{XF+4*d+3}], v{T+8} offset:{SO + 5120 + 1024*d}")
    for d in range(3):
        k.e(f"s_waitcnt lgkmcnt({10-5*d})")
        final_block(k, G_ACC + 16*d, SF + 4*d, XF + 4*d, CC, T + 12)
    stamp(k, 6, 2)
    for d in range(3):
        a = G_ACC + 16*d
        k.e(f"ds_write_b64 v{T+9}, v[{a+8}:{a+9}] offset:{XO + 32*d}")
    k.e("s_waitcnt lgkmcnt(0)")
    O = 128
    for i in range(2): k.e(f"ds_read_b128 v[{O+4*i}:{O+4*i+3}], v{T+8} offset:{XO + 1024*i}")
    for i in range(2):
        k.e(f"s_waitcnt lgkmcnt({1-i})")
        k.e(f"buffer_store_dwordx4 v[{O+4*i}:{O+4*i+3}], v{T+i}, s[48:51], s54 offen")
    stamp(k, 6, 3)
def b_tail(k):
    srd(k, 48, P_OUT, NB_X)
    k.e("v_lshlrev_b32 v8, 4, v0")
    k.e("s_lshl_b32 s59, s101, 14")
    k.e("v_add_u32 v8, s59, v8")
    for m in range(1, 4): k.e(f"v_xor_b32 v{8+m}, {16384*m}, v8")
    k.e("v_and_b32 v12, 15, v0")
    k.e("v_lshlrev_b32 v12, 6, v12")
    k.e("v_lshrrev_b32 v13, 4, v0")
    k.e("v_lshl_add_u32 v12, v13, 3, v12")
    k.e("v_add_u32 v12, s81, v12")
    k.e("v_lshrrev_b32 v13, 2, v0")
    k.e("v_mul_u32_u24 v13, 1280, v13")
    k.e("v_and_b32 v14, 3, v0")
    k.e("v_lshl_add_u32 v13, v14, 4, v13")
    k.e("v_mov_b32 v14, 1.0")
    k.e("v_mov_b32 v15, 1.0")
    k.e("s_waitcnt lgkmcnt(0)")
    k.e("s_barrier")
    P = 104
    for i, d in enumerate((3, 4)):
        k.e(f"ds_read_b128 v[{P+16*i}:{P+16*i+3}], v37 offset:{OWN + 1024*i}")
        for m in range(1, 4):
            k.e(f"ds_read_b128 v[{P+16*i+4*m}:{P+16*i+4*m+3}], v{8+m} offset:{(m-1)*5120 + 1024*d}")
    for i, d in enumerate((3, 4)):
        k.e(f"s_waitcnt lgkmcnt({4-4*i})")
        final_block(k, P + 16*i, 60 + 4*d, 40 + 4*d, 38, 14)
    for i in range(2): k.e(f"ds_write_b64 v12, v[{P+16*i+8}:{P+16*i+9}] offset:{YO + 32*i}")
    k.e("s_waitcnt lgkmcnt(0)")
    k.e(f"ds_read_b128 v[16:19], v37 offset:{YO}")
    k.e("s_waitcnt lgkmcnt(0)")
    k.e("buffer_store_dwordx4 v[16:19], v13, s[48:51], s54 offen offset:96")

BA, AA, ONE, ACC, AR, AC, FR = 10, 14, 20, 24, 88, 96, 112
def g1_setup(k):
    srd(k, 48, P_WS, 32 * NT * 4096, H_OFF)
    srd(k, 44, P_WS, NB_W, W2_OFF)
    k.e("s_and_b32 s52, s3, 1")
    k.e("s_lshr_b32 s53, s3, 1")
    k.e("v_lshlrev_b32 v1, 4, v0")
    k.e("v_add_u32 v2, 4096, v1")
    k.e("v_and_b32 v18, 15, v0")
    k.e("v_lshrrev_b32 v19, 4, v0")
    k.e("v_lshrrev_b32 v20, 1, v18")
    k.e("v_xor_b32 v20, v20, v19")
    k.e("v_lshlrev_b32 v20, 4, v20")
    k.e("v_lshl_add_u32 v20, v18, 7, v20")
    k.e("s_lshl_b32 s58, s52, 13")
    k.e("s_lshl_b32 s59, s53, 12")
    k.e("s_add_u32 s58, s58, s59")
    k.e(f"v_add_u32 v{BA}, s58, v20")
    k.e(f"v_xor_b32 v{BA+1}, 64, v{BA}")
    k.e(f"v_xor_b32 v{BA+2}, 0x1000, v{BA}")
    k.e(f"v_xor_b32 v{BA+3}, 0x1040, v{BA}")
    k.e("v_lshrrev_b32 v20, 2, v18")
    k.e("v_and_b32 v21, 3, v18")
    k.e("v_lshl_add_u32 v22, v19, 3, v20")
    k.e("v_lshlrev_b32 v22, 8, v22")
    k.e("v_lshl_add_u32 v22, v21, 3, v22")
    k.e(f"v_add_u32 v22, {WPART}, v22")
    k.e("v_and_b32 v23, 1, v19")
    k.e("v_lshl_add_u32 v23, v23, 2, v20")
    k.e("s_lshl_b32 s58, s53, 2")
    k.e("s_lshl_b32 s59, s52, 1")
    k.e("s_add_u32 s58, s58, s59")
    k.e("v_xor_b32 v23, s58, v23")
    k.e(f"v_lshl_add_u32 v{AA}, v23, 5, v22")
    for fb in range(1, 4): k.e(f"v_xor_b32 v{AA+fb}, {32*fb}, v{AA}")
    for i in range(4): k.e(f"v_mov_b32 v{ONE+i}, 0x3f803f80")
    for r, x in ((3, 0), (4, 2), (5, 1)):
        k.e(f"s_xor_b32 s58, s3, {x}")
        k.e("s_mul_i32 s58, s58, 3072")
        k.e(f"s_add_u32 s58, s58, {TOP}")
        k.e(f"v_add_u32 v{r}, s58, v1")
    k.e("s_lshl_b32 s58, s7, 1")
    k.e("s_add_u32 s57, s58, s53")
    k.e("s_lshl_b32 s59, s6, 1")
    k.e("s_add_u32 s59, s59, s52")
    k.e("s_lshl_b32 s56, s59, 5")
    k.e("s_add_u32 s56, s56, s57")
    k.e(f"s_lshl_b32 s56, s56, {HSH}")
    k.e(f"s_add_u32 s56, s56, {FH}")
    k.e(f"s_mul_i32 s59, s59, {NT}")
    k.e("s_lshl_b32 s58, s57, 1")
    k.e("s_add_u32 s58, s58, s59")
    k.e("s_lshl_b32 s58, s58, 12")
    k.e("s_lshl_b32 s59, s52, 12")
    k.e("s_add_u32 s60, s58, s59")
    k.e("s_xor_b32 s59, s59, 0x1000")
    k.e("s_add_u32 s61, s58, s59")
    k.e("s_lshl_b32 s59, s53, 11")
    k.e("v_add_u32 v6, s59, v1")
    k.e("v_xor_b32 v7, 0x800, v6")
    k.e(f"v_mov_b32 v18, {CNT}")
    k.e("s_lshl_b32 s58, s3, 2")
    k.e(f"s_add_u32 s58, s58, {CNT + PA}")
    k.e("v_mov_b32 v19, s58")

def g1_phase(k):
    PV = 176
    def reads(stage, ks, buf):
        so = (stage % 2) * SLOT
        L = []
        fa = FR + 32 * buf; fb_ = fa + 16
        for i in range(4):
            L.append(f"ds_read_b128 v[{fb_+4*i}:{fb_+4*i+3}], v{BA + 2*(i>>1) + ks} offset:{so + 2048*(i&1)}")
            L.append(f"ds_read_b64_tr_b16 v[{fa+4*i}:{fa+4*i+1}], v{AA+i} offset:{so + 8192*ks}")
            L.append(f"ds_read_b64_tr_b16 v[{fa+4*i+2}:{fa+4*i+3}], v{AA+i} offset:{so + 8192*ks + 1024}")
        return L
    def mfmas(buf, first=False, sums_first=False):
        fa = FR + 32 * buf; fb_ = fa + 16
        L = []; Sm = []
        def mm(Tg, d, a, b):
            c = "0" if first else f"v[{d}:{d+3}]"
            Tg.append(f"v_mfma_f32_16x16x32_bf16 v[{d}:{d+3}], v[{a}:{a+3}], v[{b}:{b+3}], {c}")
        for f in range(4):
            for m in range(4): mm(L, ACC + 16*f + 4*m, fa + 4*f, fb_ + 4*m)
        for i in range(2):
            mm(Sm, AR + 4*i, ONE, fb_ + 4*i)
            mm(Sm, AC + 4*i, fa + 4*i, ONE)
        if flag("QNOSUM") and not first and not sums_first: return L
        return Sm + L if sums_first else L + Sm
    def dense(L):
        n = flag("DEN", 2)
        return ["\n".join(L[i:i+n]) for i in range(0, len(L), n)]
    tog = [f"v_xor_b32 v{r}, 0x10000, v{r}" for r in list(range(BA, BA+4)) + list(range(AA, AA+4))]
    for s in range(NSTAGE):
        k.c(f"---- stage {s}")
        k.e("s_waitcnt lgkmcnt(0)")
        m1 = mfmas(1)
        if s < 9: k.e("s_barrier")
        else:
            for x in interleave(m1[:3], prog_min(PV, 58)): k.e(x)
            m1 = m1[3:]
            prog_spin(k, "L_a9", 18, PV, PB, 58, 1)
        if s == 0: stamp(k, 1, 0); stamp(k, 2, 0); cs(k, "b0")
        if s == 4: cs(k, "b4")
        if s == 4: stamp(k, 2, 1)
        if s == 8:
            stamp(k, 2, 2)
            k.e("s_setprio 2")
        for x in (reads(0, 0, 0) if s == 0 else interleave(m1, dense(reads(s, 0, 0)))): k.e(x)
        k.e("s_waitcnt lgkmcnt(0)")
        m0 = mfmas(0, first=(s == 0))
        nxt = tog if ((s + 1) % 2 == 0 and s + 1 < NSTAGE) else []
        if s == 8:
            body = interleave(m0[:-3], dense(reads(s, 1, 1))) + [f"ds_read_b128 v[{PV}:{PV+3}], v18 offset:{PB}"] + m0[-3:]
        else:
            body = interleave(m0, dense(reads(s, 1, 1)) + nxt)
        for x in body: k.e(x)
    k.e("s_waitcnt lgkmcnt(0)")
    fin = mfmas(1, sums_first=True)
    exch = [f"v_mov_b32 v{AR+1}, v{AR+4}",
            f"ds_write_b64 v3, v[{AR}:{AR+1}]",
            f"ds_write_b128 v3, v[{AC}:{AC+3}] offset:1024",
            f"ds_write_b128 v3, v[{AC+4}:{AC+7}] offset:2048"] + prog_write(19, 8, 11)
    for x in fin[:7] + interleave(fin[7:], exch): k.e(x)
    k.e("L_a_sync:")
    k.e(f"ds_read_b128 v[{PV}:{PV+3}], v18 offset:{PA}")
    k.e(f"ds_read_b64 v[{AR+2}:{AR+3}], v4")
    k.e(f"ds_read_b128 v[{AC+8}:{AC+11}], v5 offset:1024")
    k.e(f"ds_read_b128 v[{AC+12}:{AC+15}], v5 offset:2048")
    if EWI: k.e(f"ds_read_b32 v8, v18 offset:{AUXOK}")
    k.e("s_waitcnt lgkmcnt(0)")
    for x in prog_min(PV, 58): k.e(x)
    k.e("s_cmp_lt_u32 s58, 11")
    k.e("s_cbranch_scc1 L_a_sync")
    stamp(k, 2, 3); cs(k, "sync")
    k.e("s_cmp_ge_u32 s57, 27")
    k.e("s_cbranch_scc1 L_g2w")
    NM = FR
    wl = []
    if EWI:
        k.e("v_readfirstlane_b32 s71, v8")
        k.e("s_mov_b32 s70, s77")
        k.e("s_cmp_eq_u32 s71, 0")
        k.e(f"s_cselect_b32 s77, {OOB}, s77")
        cur = []
        for st in range(EWI):
            for x in w_loads(st):
                cur.append(x)
                if is_vmem(x): wl.append(cur); cur = []
    for m in range(4): k.e(f"v_mul_f32 v{AR+m}, {-1.0/D!r}, v{AR+m}")
    k.e(f"v_cvt_pk_bf16_f32 v{AR+4}, v{AR}, v{AR+1}")
    k.e(f"v_cvt_pk_bf16_f32 v{AR+5}, v{AR+2}, v{AR+3}")
    for m in range(4):
        src = AR + 4 + (m >> 1)
        if m & 1: k.e(f"v_and_b32 v{NM+m}, 0xffff0000, v{src}")
        else:     k.e(f"v_lshlrev_b32 v{NM+m}, 16, v{src}")
    OUT = FR + 8
    n = 0
    for p in range(2):
        for m in range(4):
            o = OUT + 4 * (n % 4); n += 1
            for ff in range(2):
                f = 2*p + ff
                a = ACC + 16*f + 4*m
                for r in range(4): k.e(f"v_fmac_f32 v{a+r}, v{AC+4*f+r}, v{NM+m}")
                for h in range(2): k.e(f"v_cvt_pk_bf16_f32 v{o+2*ff+h}, v{a+2*h}, v{a+2*h+1}")
            if p == 1 and m == 2 and flag("NP", 0): k.e(f"ds_read_b32 v8, v18 offset:{AUXOK}")
            for i in range(4): k.e(f"v_pk_max_i16 v{o+i}, v{o+i}, 0")
            k.e(f"buffer_store_dwordx4 v[{o}:{o+3}], v{6+(m>>1)}, s[48:51], s{60+p} offen offset:{1024*(m&1)}{SC1}")
            lo, hi = (len(wl) * (n - 1)) // 8, (len(wl) * n) // 8
            for g in wl[lo:hi]:
                for x in g: k.e(x)
    if EWI:
        k.e(f"s_waitcnt vmcnt({hi - lo})")
        publish(k, 56, 12)
        stamp(k, 1, 1)
        k.e("s_setprio 0")
        k.e("s_mov_b32 s77, s70")
        k.e("s_cmp_eq_u32 s71, 0")
        k.e("s_cbranch_scc0 L_g2b")
        k.e("s_branch L_g2w")
    NP = EWI or flag("NP", 0)
    if NP and not EWI:
        k.e("s_waitcnt lgkmcnt(0)")
        k.e("v_readfirstlane_b32 s58, v8")
        k.e("s_cmp_eq_u32 s58, 0")
        k.e("s_cbranch_scc1 L_a_slow")
        for st in range(NP):
            for x in w_loads(st): k.e(x)
        k.e(f"s_waitcnt vmcnt({5*NP})")
        publish(k, 56, 12)
        stamp(k, 1, 1)
        k.e("s_setprio 0")
        k.e("s_branch L_g2b")
        k.e("L_a_slow:")
    if not EWI:
        k.e("s_waitcnt vmcnt(0)")
        publish(k, 56, 12)
        stamp(k, 1, 1)
    k.e("L_g2w:")
    k.e("s_setprio 0")
    k.e(f"v_mov_b32 v10, {CNT}")
    lds_wait(k, "L_aw2", 10, 11, AUXOK, 58, sleep=4)
    for st in range(NP):
        for x in w_loads(st): k.e(x)
    k.e("L_g2b:")

def b_aprep(k):
    srd(k, 40, P_Q, NB_X)
    srd(k, 44, P_WS, 16384, ST_OFF)
    srd(k, 68, P_WS, NB_T, YT_OFF)
    xo_offsets(k, 8, 1, 2)
    for i in range(3):
        k.e(f"s_add_u32 m0, s81, {XO + 1024*i}")
        k.e(f"buffer_load_dwordx4 v{8+i}, s[40:43], s54 offen lds")
    k.e("v_and_b32 v1, 15, v0")
    k.e("v_lshlrev_b32 v3, 3, v1")
    k.e("s_lshl_b32 s57, s53, 7")
    k.e("v_lshrrev_b32 v4, 3, v0")
    k.e(f"v_mul_u32_u24 v4, {RS}, v4")
    k.e("v_and_b32 v2, 7, v0")
    k.e("v_lshl_add_u32 v4, v2, 4, v4")
    k.e("s_mul_i32 s58, s9, 10")
    k.e("s_add_u32 s58, s58, s101")
    k.e(f"s_mul_i32 s58, s58, {8*RS}")
    k.e("s_lshl_b32 s59, s8, 7")
    k.e("s_add_u32 s58, s58, s59")
    k.e(f"v_mov_b32 v2, {CNT}")
    k.e("v_mul_u32_u24 v5, 160, v1")
    k.e("v_lshrrev_b32 v6, 4, v0")
    k.e("v_lshl_add_u32 v5, v6, 3, v5")
    k.e("v_add_u32 v5, s81, v5")
    k.e("v_lshrrev_b32 v36, 5, v0")
    k.e(f"v_mul_u32_u24 v36, {CONV_LDS}, v36")
    k.e("v_bfe_u32 v7, v0, 2, 3")
    k.e("v_lshl_add_u32 v36, v7, 7, v36")
    k.e("v_and_b32 v7, 3, v0")
    k.e("v_lshl_add_u32 v36, v7, 3, v36")
    k.e("s_lshl_b32 s59, s101, 5")
    k.e(f"s_add_u32 s59, s59, {RB0}")
    k.e("v_add_u32 v36, s59, v36")
    k.e("v_lshlrev_b32 v37, 4, v0")
    k.e("v_add_u32 v37, s81, v37")
    XR, YR, XF, SF = 16, 26, 40, 60
    k.e("s_waitcnt vmcnt(0)")
    for d in range(5): k.e(f"ds_read_b64 v[{XR+2*d}:{XR+2*d+1}], v5 offset:{XO + 32*d}")
    k.e("s_waitcnt lgkmcnt(0)")
    for d in range(5):
        for h in range(2): unpack(k, XF + 4*d + 2*h, XF + 4*d + 2*h + 1, XR + 2*d + h)
        if d < 3: k.e(f"ds_write_b128 v37, v[{XF+4*d}:{XF+4*d+3}] offset:{SO + 5120 + 1024*d}")
    k.e("s_setprio 0")
    k.e("s_cmp_eq_u32 s101, 0")
    k.e("s_cbranch_scc1 L_b_poller")
    lds_wait(k, "L_b_lw0", 2, 6, PROG, 60, sleep=flag("LSL", 16))
    lds_wait(k, "L_b_lwait", 2, 6, YOK, 60, sleep=2)
    k.e("s_setprio 3")
    k.e("s_branch L_b_go")
    k.e("L_b_poller:")
    k.e(f"s_mul_i32 s59, s9, {80 << YSH}")
    k.e(f"s_add_u32 s59, s59, {FY}")
    k.e(f"s_add_u32 s61, s59, {64 << YSH}")
    k.e(f"v_lshlrev_b32 v5, {YSH}, v0")
    k.e("v_add_u32 v7, s61, v5")
    k.e("s_lshr_b32 s10, s8, 3")
    k.e("s_lshl_b32 s10, s10, 1")
    k.e("s_and_b32 s11, s8, 1")
    k.e("s_add_u32 s10, s10, s11")
    k.e("s_and_b32 s11, s8, 6")
    k.e("s_lshl_b32 s11, s11, 2")
    k.e("s_add_u32 s10, s10, s11")
    k.e(f"s_add_u32 s10, s10, {224 + (FB >> 7)}")
    k.e("s_lshl_b32 s10, s10, 7")
    k.e("v_writelane_b32 v7, s10, 16")
    lds_wait(k, "L_b_aw", 2, 6, PROG, 60, sleep=flag("LSL2", 6))
    k.e("s_setprio 3")
    k.e("s_bfm_b64 exec, 17, 0")
    k.e(f"buffer_load_dwordx2 v[14:15], v7, s[{FSRD}:{FSRD+3}], 0 offen{SC1}")
    k.e("s_mov_b64 exec, -1")
    poll(k, "L_by", 12, 5, 59, 60, 64, sleep=8)
    poll(k, "L_by2", 14, 7, None, 60, 17, sleep=8, preloaded=True)
    k.e("v_mov_b32 v6, 1")
    k.e(f"ds_write_b32 v2, v6 offset:{YOK}")
    k.e("L_b_go:")
    stamp(k, 1, 3); stamp(k, 2, 3)
    k.e(f"buffer_load_dwordx2 v[12:13], v3, s[44:47], s57 offen{SC1}")
    for i in range(3):
        if i == 2:
            k.e("s_cmp_ge_u32 s101, 2")
            k.e("s_cbranch_scc1 L_b_noy")
        k.e(f"s_add_u32 m0, s81, {YO + 1024*i}")
        k.e(f"buffer_load_dwordx4 v4, s[68:71], s58 offen{SC1} lds")
        if i < 2: k.e(f"s_add_u32 s58, s58, {4*8*RS}")
    k.e("L_b_noy:")
    k.e("v_mov_b32 v3, 1")
    k.e("s_waitcnt vmcnt(2)")
    k.e("v_mul_f32 v38, 0xbfb8aa3b, v13")
    k.e("v_mul_f32 v39, 0xbfb8aa3b, v13")
    k.e(f"ds_write_b64 v37, v[38:39] offset:{SO + 10240}")
    for i in range(10):
        a, b = 80 + 2*i, 81 + 2*i
        k.e(f"v_sub_f32 v{a}, v{XF+2*i}, v12")
        k.e(f"v_sub_f32 v{b}, v{XF+2*i+1}, v12")
        k.e(f"v_cvt_pk_bf16_f32 v{b}, v{a}, v{b}")
        unpack(k, a, b, b)
        k.e(f"v_mul_f32 v{a}, v{a}, v13")
        k.e(f"v_mul_f32 v{b}, v{b}, v13")
        k.e(f"v_cvt_pk_bf16_f32 v{b}, v{a}, v{b}")
        unpack(k, a, b, b)
        k.e(f"v_mul_f32 v{a}, v{a}, v13")
        k.e(f"v_mul_f32 v{b}, v{b}, v13")
        if i == 4:
            k.e("s_waitcnt vmcnt(0)")
            k.e("s_mov_b64 exec, 1")
            k.e(f"ds_add_u32 v2, v3 offset:{YCNT}")
            k.e("s_mov_b64 exec, -1")
    k.e("L_b_cnt:")
    k.e(f"ds_read_b32 v3, v2 offset:{YCNT}")
    for d in range(5):
        k.e(f"ds_read_b64_tr_b16 v[{YR+2*d}:{YR+2*d+1}], v36 offset:{YO + 2*(d&1)*CONV_LDS + (d>>1)*1024}")
    k.e("s_waitcnt lgkmcnt(0)")
    k.e("v_readfirstlane_b32 s59, v3")
    k.e("s_cmp_lt_u32 s59, 4")
    k.e("s_cbranch_scc1 L_b_cnt")
    for d in range(5):
        for h in range(2):
            s = SF + 4*d + 2*h
            unpack(k, s, s+1, YR + 2*d + h)
            k.e(f"v_mul_f32 v{s}, v{s}, v{80+4*d+2*h}")
            k.e(f"v_mul_f32 v{s+1}, v{s+1}, v{81+4*d+2*h}")
        if d < 3: k.e(f"ds_write_b128 v37, v[{SF+4*d}:{SF+4*d+3}] offset:{SO + 1024*d}")
    b_tail(k)

def stats_rows(k, s_idx):
    k.e("s_and_b32 s10, s84, 6")
    k.e("s_lshl_b32 s10, s10, 8")
    k.e("s_lshr_b32 s11, s84, 3")
    k.e("s_lshl_b32 s11, s11, 7")
    k.e("s_add_u32 s10, s10, s11")
    k.e("s_and_b32 s11, s84, 1")
    k.e("s_lshl_b32 s11, s11, 6")
    k.e("s_add_u32 s10, s10, s11")
    k.e(f"s_lshl_b32 s11, s{s_idx}, 3")
    k.e("s_add_u32 s52, s10, s11")

def kernel():
    STS = flag("STS", 1); RLD = flag("RLD", 2); RST = flag("RST", 7)
    assert STS < RLD and RLD + 3 <= RST <= 7
    k = Kern(NAME)
    stamp_begin(k)
    k.e("s_cmp_ge_u32 s2, 256")
    k.e("s_cbranch_scc1 L_end")
    load_ptrs(k)
    k.e("v_lshrrev_b32 v1, 6, v0")
    k.e("v_readfirstlane_b32 s3, v1")
    k.e("v_and_b32 v0, 63, v0")
    for i in range(4): k.e(f"v_mov_b32 v{4+i}, 0")
    k.e("v_and_b32 v1, 3, v0")
    k.e("v_lshlrev_b32 v1, 4, v1")
    k.e(f"v_add_u32 v1, {CNT}, v1")
    k.e("ds_write_b128 v1, v[4:7]")
    k.e("s_and_b32 s4, s2, 7")
    k.e("s_lshr_b32 s5, s2, 3")
    k.e("s_lshr_b32 s10, s4, 1")
    k.e("s_and_b32 s11, s4, 1")
    k.e("s_lshl_b32 s6, s10, 2")
    k.e("s_and_b32 s7, s5, 3")
    k.e("s_add_u32 s6, s6, s7")
    k.e("s_lshl_b32 s9, s11, 2")
    k.e("s_add_u32 s9, s9, s7")
    k.e("s_lshr_b32 s8, s5, 2")
    k.e("s_mul_i32 s7, s11, 7")
    k.e("s_add_u32 s7, s7, s8")
    k.e("s_lshl_b32 s10, s10, 3")
    k.e("s_add_u32 s8, s8, s10")
    k.e("s_and_b32 s101, s3, 3")
    k.e(f"s_mul_i32 s81, s101, {CONV_LDS}")
    k.e(f"s_add_u32 s81, s81, {RB0}")
    def flags_srd():
        srd(k, FSRD, P_WS, FL_BYTES, FL_OFF)
        k.e(f"s_load_dwordx2 s[{TAG}:{TAG+1}], s[{FSRD}:{FSRD+1}], {EP}")
    k.e("s_cmp_ge_u32 s2, 224")
    k.e("s_cbranch_scc1 L_free")
    k.e("s_cmp_lt_u32 s3, 4")
    k.e("s_cbranch_scc1 L_a")
    k.e(f"s_setprio {flag('PBL', 1)}")
    r = Rec(); k1.loader_setup(r, 6, 7, 101)
    for x in r.lines[8:]: k.e(x)
    k.e("s_waitcnt lgkmcnt(0)")
    for x in r.lines[:8]: k.e(x)
    vm = Vm(); last = {}
    def put(x):
        k.e(x)
        return vm.op() if is_vmem(x) else None
    def dma(st):
        for x in k1.dma(st):
            q = put(x)
            if q is not None: last[st] = q
    if flag("SB", 1): k.e("s_barrier")
    dma(0)
    flags_srd()
    k.e(f"v_mov_b32 v250, {CNT}")
    k.e("s_lshl_b32 s10, s101, 2")
    k.e(f"s_add_u32 s10, s10, {CNT + PB}")
    k.e("v_mov_b32 v248, s10")
    u_addr(k)
    rel1_addr(k)
    k.e("s_lshl_b32 s82, s2, 1")
    k.e("s_add_u32 s53, s2, 448")
    k.e("s_cmp_lt_u32 s2, 64")
    k.e("s_cselect_b32 s52, s53, 1000")
    k.e("s_cselect_b32 s53, s53, s82")
    watch_addr(k, 224, 82, 53)
    k.e("s_add_u32 s82, s82, s101")
    k.e("s_cmp_eq_u32 s101, 2")
    k.e("s_cselect_b32 s82, s52, s82")
    k.e("s_cmp_eq_u32 s101, 3")
    k.e("s_cselect_b32 s82, 1000, s82")
    k.e("s_lshl_b32 s83, s2, 7")
    k.e("s_waitcnt lgkmcnt(0)")
    make_tag(k)
    dma(1)
    PV = 252
    PUBS = STS + flag("PUBD", 3); st_idx = None
    k.e("s_cmp_eq_u32 s101, 2")
    k.e(f"s_cselect_b32 s83, s83, {OOB}")
    k.e("v_mov_b32 v249, 1")
    WPUB = RST + 2 if RST <= 5 else 99
    k.e("s_lshl_b32 s88, s2, 7")
    k.e(f"s_add_u32 s88, s88, {FB}")
    k.e("s_cmp_eq_u32 s101, 1")
    k.e(f"s_cselect_b32 s88, s88, {OOB}")
    for s in range(8):
        w = vm.wait(last[s])
        if s == PUBS: w = min(w, vm.wait(st_idx))
        if s == WPUB: w = min(w, vm.wait(rs_idx))
        k.e(f"s_waitcnt vmcnt({w})")
        k.e("s_barrier")
        if s == WPUB:
            publish(k, 88, 4); vm.op()
            stamp(k, 2, 1)
        if s == PUBS:
            publish(k, 83, 4); vm.op()
            stamp(k, 2, 0)
        if s == STS:
            for x in u_out():
                q = put(x)
                if q is not None: st_idx = q
        if s == RST:
            for x in rel1_reads(): k.e(x)
        dma(s + 2)
        if s == RST:
            for x in rel1_stores():
                q = put(x)
                if q is not None: rs_idx = q
        if s == RLD:
            for x in rel1_loads(): put(x)
    w8, w9 = vm.wait(last[8]), vm.wait(last[9]); wr = min(vm.wait(rs_idx), w9)
    k.e("s_cmp_lt_u32 s82, 640")
    k.e("s_cbranch_scc1 L_b_hasconv")
    k.e(f"s_waitcnt vmcnt({w8})")
    k.e("s_barrier")
    k.e("s_cmp_eq_u32 s101, 3")
    k.e("s_cbranch_scc1 L_b_w7")
    k.e(f"s_waitcnt vmcnt({w9})")
    for x in prog_write(248, 251, 1): k.e(x)
    k.e("s_waitcnt vmcnt(0)")
    for x in prog_write(248, 251, 2): k.e(x)
    k.e("s_branch L_b_aprep")
    k.e("L_b_w7:")
    pre = watch_pre(228, 224)
    k.e("s_setprio 3")
    k.e(pre[0])
    k.e(f"s_waitcnt vmcnt({w9 + 1})")
    for x in prog_write(248, 251, 1): k.e(x)
    k.e("s_waitcnt vmcnt(0)")
    for x in prog_write(248, 251, 2): k.e(x)
    k.e(f"v_cmp_ne_u64 vcc, s[{TAG}:{TAG+1}], v[228:229]")
    k.e("s_cmp_eq_u64 vcc, 0")
    k.e("s_cbranch_scc0 L_b_n1")
    k.e(f"ds_write_b32 v250, v249 offset:{UOK}")
    k.e("L_b_n1:")
    if WPUB == 99:
        k.e("s_lshl_b32 s83, s2, 7")
        k.e(f"s_add_u32 s83, s83, {FB}")
        prog_wait(k, "L_b_rs", 250, PV, PB, 10, 2)
        publish(k, 83, 4)
        stamp(k, 2, 1)
    for _ in range(flag("WSL", 1)): k.e("s_sleep 16")
    k.e(pre[1])
    watch(k, "L_bw", 228, 224)
    stamp(k, 2, 2)
    k.e("s_cmp_lg_u32 s2, 0")
    k.e("s_cbranch_scc1 L_b_aprep")
    k.e("s_setprio 0")
    k.e("v_lshlrev_b32 v1, 7, v0")
    k.e(f"s_mov_b32 s83, {FB}")
    k.e("L_ep_next:")
    poll(k, "L_ep", 4, 1, 83, 10, 64, sleep=16)
    k.e("s_add_u32 s83, s83, 8192")
    k.e(f"s_cmp_lt_u32 s83, {FB + 32768}")
    k.e("s_cbranch_scc1 L_ep_next")
    k.e(f"s_mov_b32 s83, {EP}")
    publish(k, 83, 4)
    k.e("s_branch L_b_aprep")
    k.e("L_b_hasconv:")
    conv.conv2_setup(k, 82)
    k.e(f"s_waitcnt vmcnt({w8 + 2})")
    k.e("s_barrier")
    (conv.conv3_addr if C3 else conv.conv2_addr)(k, 81)
    k.e(f"s_waitcnt vmcnt({w9 + 2})")
    for x in prog_write(248, 251, 1): k.e(x)
    k.e(f"s_waitcnt vmcnt({wr + 2})")
    for x in prog_write(248, 251, 2): k.e(x)
    k.e("L_b_conv:")
    k.e(f"v_mov_b32 v250, {CNT}")
    (conv.conv3_dma if C3 else conv.conv2_dma)(k, 81)
    k.e(f"s_waitcnt vmcnt({8 if C3 else 16})")
    conv.conv2_fix(k)
    stamp(k, 1, 0)
    lds_wait(k, "L_b_uw", 250, 251, UOK, 80)
    conv.conv_setup_u(k, 82, 81, SC1)
    k.e("s_waitcnt vmcnt(0)")
    stamp(k, 1, 1); stamp(k, 3, 3)
    k.e(f"s_setprio {flag('PC', 1)}")
    (conv.conv3_main if C3 else conv.conv_main)(k, "f")
    stamp(k, 3, 0)
    k.e("s_setprio 3")
    conv.conv_epilogue(k, 82, SC1)
    stamp(k, 3, 1)
    k.e(f"s_lshl_b32 s10, s82, {YSH}")
    k.e(f"s_add_u32 s83, s10, {FY}")
    k.e("s_waitcnt vmcnt(0)")
    stamp(k, 3, 2)
    publish(k, 83, 4)
    stamp(k, 1, 2)
    k.e("L_b_aprep:")
    k.e("s_setprio 1")
    b_aprep(k)
    finish(k, 1)
    k.e("L_free:")
    for _ in range(flag("XFREE")): k.e("s_sleep 64")
    k.e("s_waitcnt lgkmcnt(0)")
    flags_srd()
    k.e("s_sub_u32 s84, s2, 224")
    k.e("s_mov_b32 s85, s3")
    k.e("s_cmp_eq_u32 s3, 7")
    k.e("s_cbranch_scc1 L_free_code" if flag("CPF", 1) else "s_cbranch_scc1 L_free_sync")
    k.e("s_cmp_lt_u32 s3, 4")
    k.e("s_cbranch_scc1 L_free_stats")
    k.e("s_setprio 2")
    k.e("s_mul_i32 s85, s84, 3")
    k.e("s_add_u32 s85, s85, s101")
    k.e("s_add_u32 s85, s85, 224")
    aux.emit_prep(k, 85, 81, SC1)
    make_tag(k)
    k.e("s_lshl_b32 s85, s85, 7")
    k.e("s_waitcnt vmcnt(0)")
    publish(k, 85, 4)
    k.e("s_barrier")
    k.e("s_branch L_free_b")
    if flag("CPF", 1):
        k.e("L_free_code:")
        k.e("s_setprio 3")
        k.e("s_getpc_b64 s[40:41]")
        k.e("L_pc:")
        k.e(f"s_sub_u32 s40, s40, L_pc-{NAME}")
        k.e("s_subb_u32 s41, s41, 0")
        k.e(f"s_mov_b32 s42, L_end-{NAME}")
        k.e("s_mov_b32 s43, 0x20000")
        k.e("v_lshlrev_b32 v1, 7, v0")
        k.e("s_mov_b32 s44, 0")
        for i in range(4):
            k.e(f"buffer_load_dword v{8+i}, v1, s[40:43], s44 offen")
            k.e("s_add_u32 s44, s44, 8192")
        k.e("s_setprio 0")
        k.e("s_branch L_free_sync")
    k.e("L_free_stats:")
    stats_rows(k, 85)
    aux.emit_stats(k, 52, SC1)
    k.e("s_add_u32 s85, s85, 4")
    k.e("s_cmp_lt_u32 s85, 8")
    k.e("s_cbranch_scc1 L_free_stats")
    k.e("L_free_sync:")
    k.e("s_waitcnt vmcnt(0) lgkmcnt(0)")
    k.e("s_barrier")
    make_tag(k)
    k.e("s_cmp_lt_u32 s3, 4")
    k.e("s_cbranch_scc1 L_free_a")
    k.e("L_free_b:")
    k.e("s_setprio 1")
    k.e("s_lshl_b32 s82, s84, 2")
    k.e("s_add_u32 s82, s82, s101")
    k.e("s_add_u32 s82, s82, 512")
    conv.conv2_setup(k, 82)
    (conv.conv3_addr if C3 else conv.conv2_addr)(k, 81)
    k.e("s_branch L_b_conv")
    k.e("L_free_a:")
    g2_offsets(k)
    srd(k, 44, P_WS, NB_W, W2_OFF)
    k.e("v_lshlrev_b32 v1, 4, v0")
    k.e("v_add_u32 v2, 4096, v1")
    if flag("XLEAD"):
        k.e("v_lshlrev_b32 v30, 7, v0")
        k.e("s_mov_b32 s10, s77")
        for i in range(9):
            k.e(f"buffer_load_dword v{32+i}, v30, s[44:47], s10 offen{SC1}")
            k.e("s_add_u32 s10, s10, 8192")
    k.e("s_cmp_lg_u32 s3, 0")
    k.e("s_cbranch_scc1 L_g2w")
    k.e("s_lshl_b32 s83, s2, 7")
    k.e(f"s_add_u32 s83, s83, {FB}")
    publish(k, 83, 4)
    k.e("s_lshl_b32 s62, s84, 2")
    k.e("s_add_u32 s62, s62, 512")
    watch_addr(k, 16, 62, 62)
    for x in watch_pre(20, 16): k.e(x)
    watch(k, "L_fw", 20, 16)
    k.e("s_branch L_g2w")
    k.e("L_a:")
    k.e("s_setprio 3")
    prep_addr(k)
    k.e("s_waitcnt lgkmcnt(0)")
    prep_loads(k)
    if flag("SB", 1): k.e("s_barrier")
    k.e(f"s_setprio {flag('PAL', 0)}")
    flags_srd()
    g2_offsets(k)
    g1_setup(k)
    k.e("s_waitcnt lgkmcnt(0)")
    make_tag(k)
    prep_compute(k)
    g1_phase(k)
    g2_phase(k)
    finish(k, 0)
    k.e("L_end:")
    k.e("s_endpgm")
    return k

if __name__ == "__main__":
    import sys
    hdr = open("recurrent_scan__ssm_conv_h3__dense_activation_relu__prompt.s.ref").read().split("; Override")[0]
    k = kernel()
    out = hdr + f"; @launch grid=(256,1,1) block=(512,1,1) lds={LDS_BYTES}\n"
    out += '.amdgcn_target "amdgcn-amd-amdhsa--gfx950"\n.text\n' + k.body() + '.section .rodata,"a"\n' + k.desc()
    open(sys.argv[1], "w").write(out)
```

```python
from common import *
import aux, conv, k1
from conv import interleave, CONV_LDS
from k1 import Vm, is_vmem, SLOT, WPART, NSTAGE, Rec

NAME = "recurrent_scan__ssm_conv_h3__dense_activation_relu__prompt_kernel"
SC1 = " sc1"
OOB = 0x40000000
RB0 = 65536
EA = 131072
TOP = RB0 + 4 * CONV_LDS
RLB = 135168
CNT = 163776
LDS_BYTES = 163840
YCNT, YOK, AUXOK, UOK, PROG, PA, PB = 0, 4, 12, 16, 20, 32, 48
XO, YO, SO = 0, 3072, 6144
HSH = 7; YSH = flag("YSH", 3)
FA, EP, FB, FH = 0, 40960, 45056, 77824
FY = FH + (1024 << 7)
FS = FY + (640 << 7)
FL_BYTES = FS + (16 << 7)
AGG = flag('AGG', 0)
TAG, FSRD = 90, 92
SPIN_MAX = 0x20000
NSTEP, NH, NW = 14, 4, 5
G_ACC, G_H = 8, 88
W_SL = [176, 196, 216, 236, 156]
C3 = flag("C3", 1)
EWI = flag("EWI", 0)
ST = flag("ST", 0)
def stamp(k, setno, i):
    if ST == setno: stamp_mid(k, i)
def cstamp(k, name, i):
    if STAMP and os.environ.get("CK", "").split(",")[i:i+1] == [name]:
        stamp_mid(k, 2*i)
        k.e("s_memtime s[10:11]")
        k.e("s_waitcnt lgkmcnt(0)")
        k.e(f"s_mov_b32 s{13+2*i}, s10")
def cs(k, name):
    cstamp(k, name, 0); cstamp(k, name, 1)

def make_tag(k):
    k.e(f"s_mul_i32 s{TAG}, s{TAG}, 1664525")
    k.e(f"s_add_u32 s{TAG}, s{TAG}, 1013904223")
    k.e(f"s_mul_i32 s{TAG+1}, s{TAG+1}, 22695477")
    k.e(f"s_add_u32 s{TAG+1}, s{TAG+1}, 1")

HSC = '' if flag('HPLAIN') else SC1
def publish(k, s_off, va, SC1=SC1):
    k.e(f"v_mov_b32 v{va}, s{TAG}")
    k.e(f"v_mov_b32 v{va+1}, s{TAG+1}")
    k.e(f"v_mov_b32 v{va+2}, 0")
    k.e("s_mov_b64 exec, 1")
    k.e(f"buffer_store_dwordx2 v[{va}:{va+1}], v{va+2}, s[{FSRD}:{FSRD+3}], s{s_off} offen{SC1}")
    k.e("s_mov_b64 exec, -1")

def poll(k, lbl, vd, voff, s_off, s_cnt, nlanes, sleep=4, preloaded=False):
    so = f"s{s_off}" if s_off is not None else "0"
    k.e(f"s_mov_b32 s{s_cnt}, 0")
    if nlanes < 64: k.e(f"s_bfm_b64 exec, {nlanes}, 0")
    if preloaded: k.e(f"s_branch {lbl}_chk")
    k.e(f"{lbl}:")
    k.e(f"buffer_load_dwordx2 v[{vd}:{vd+1}], v{voff}, s[{FSRD}:{FSRD+3}], {so} offen{SC1}")
    k.e("s_waitcnt vmcnt(0)")
    k.e(f"{lbl}_chk:")
    k.e(f"v_cmp_ne_u64 vcc, s[{TAG}:{TAG+1}], v[{vd}:{vd+1}]")
    k.e("s_and_b64 exec, exec, vcc")
    k.e(f"s_cbranch_scc0 {lbl}_ok")
    k.e(f"s_sleep {sleep}")
    k.e(f"s_add_u32 s{s_cnt}, s{s_cnt}, 1")
    k.e(f"s_cmp_lt_u32 s{s_cnt}, {SPIN_MAX:#x}")
    k.e(f"s_cbranch_scc1 {lbl}")
    k.e(f"{lbl}_ok:")
    k.e("s_mov_b64 exec, -1")

def lds_wait(k, lbl, vaddr, vtmp, off, s_tmp, sleep=2):
    k.e(f"{lbl}:")
    k.e(f"ds_read_b32 v{vtmp}, v{vaddr} offset:{off}")
    k.e("s_waitcnt lgkmcnt(0)")
    k.e(f"v_readfirstlane_b32 s{s_tmp}, v{vtmp}")
    k.e(f"s_cmp_lg_u32 s{s_tmp}, 0")
    k.e(f"s_cbranch_scc1 {lbl}_ok")
    k.e(f"s_sleep {sleep}")
    k.e(f"s_branch {lbl}")
    k.e(f"{lbl}_ok:")

def prog_write(vaddr, vtmp, val):
    return [f"v_mov_b32 v{vtmp}, {val}", f"s_mov_b64 exec, 1\nds_write_b32 v{vaddr}, v{vtmp}\ns_mov_b64 exec, -1"]
def prog_min(vd, s_tmp):
    return [f"v_min3_u32 v{vd}, v{vd}, v{vd+1}, v{vd+2}", f"v_min_u32 v{vd}, v{vd}, v{vd+3}", f"v_readfirstlane_b32 s{s_tmp}, v{vd}"]
def prog_spin(k, lbl, vcnt, vd, off, s_tmp, need, sleep=0):
    k.e(f"s_cmp_ge_u32 s{s_tmp}, {need}")
    k.e(f"s_cbranch_scc1 {lbl}_ok")
    k.e(f"{lbl}:")
    if sleep: k.e(f"s_sleep {sleep}")
    k.e(f"ds_read_b128 v[{vd}:{vd+3}], v{vcnt} offset:{off}")
    k.e("s_waitcnt lgkmcnt(0)")
    for x in prog_min(vd, s_tmp): k.e(x)
    k.e(f"s_cmp_lt_u32 s{s_tmp}, {need}")
    k.e(f"s_cbranch_scc1 {lbl}")
    k.e(f"{lbl}_ok:")
def prog_wait(k, lbl, vcnt, vd, off, s_tmp, need, sleep=1):
    k.e(f"s_mov_b32 s{s_tmp}, 0")
    prog_spin(k, lbl, vcnt, vd, off, s_tmp, need, sleep)

def watch_addr(k, va, s_cha, s_chb):
    if AGG:
        k.e("s_lshr_b32 s10, s9, 1")
        k.e(f"s_add_u32 s10, s10, {10 + (FS >> 7)}")
        k.e("s_lshl_b32 s10, s10, 7")
        k.e(f"v_mov_b32 v{va}, s10")
        k.e(f"s_lshr_b32 s10, s{s_cha}, 6")
        k.e(f"s_lshr_b32 s11, s{s_chb}, 6")
        k.e(f"v_mov_b32 v{va+1}, s11")
        k.e(f"v_writelane_b32 v{va+1}, s10, 0")
        k.e(f"v_lshlrev_b32 v{va+1}, 7, v{va+1}")
        k.e(f"v_add_u32 v{va+1}, {FS}, v{va+1}")
        return
    k.e("s_lshr_b32 s10, s9, 1")
    k.e(f"s_add_u32 s10, s10, {FB >> 7}")
    k.e(f"v_lshl_add_u32 v{va}, v0, 2, s10")
    k.e(f"v_mov_b32 v{va+1}, s10")
    k.e("v_cmp_gt_u32 vcc, 54, v0")
    k.e(f"v_cndmask_b32 v{va}, v{va+1}, v{va}, vcc")
    k.e(f"v_lshlrev_b32 v{va}, 7, v{va}")
    k.e(f"s_lshr_b32 s10, s{s_cha}, 6")
    k.e(f"s_lshr_b32 s11, s{s_chb}, 6")
    k.e(f"v_mov_b32 v{va+1}, s11")
    k.e(f"v_mov_b32 v{va+2}, s10")
    k.e("v_cmp_gt_u32 vcc, 32, v0")
    k.e(f"v_cndmask_b32 v{va+1}, v{va+1}, v{va+2}, vcc")
    k.e(f"v_and_b32 v{va+2}, 31, v0")
    k.e(f"v_mad_u32_u24 v{va+1}, v{va+2}, 10, v{va+1}")
    k.e(f"v_lshlrev_b32 v{va+1}, 7, v{va+1}")
def watch_pre(vd, va):
    return [f"buffer_load_dwordx2 v[{vd}:{vd+1}], v{va+1}, s[{FSRD}:{FSRD+3}], 0 offen{SC1}",
            f"buffer_load_dwordx2 v[{vd+2}:{vd+3}], v{va}, s[{FSRD}:{FSRD+3}], 0 offen{SC1}"]
def watch(k, lbl, vd, va, sl=4, late=None):
    k.e("s_waitcnt vmcnt(0)")
    poll(k, lbl + "a", vd, va + 1, None, 10, 64, sleep=sl, preloaded=True)
    k.e(f"v_mov_b32 v{vd}, {CNT}")
    k.e(f"v_mov_b32 v{vd+1}, 1")
    k.e(f"ds_write_b32 v{vd}, v{vd+1} offset:{UOK}")
    if late: late()
    poll(k, lbl + "b", vd + 2, va, None, 10, 64, sleep=sl, preloaded=not late)
    k.e(f"ds_write_b32 v{vd}, v{vd+1} offset:{AUXOK}")

def xo_offsets(k, vb, t1, t2):
    k.e("s_lshl_b32 s53, s8, 2")
    k.e("s_add_u32 s53, s53, s101")
    k.e("s_mul_i32 s54, s53, 20480")
    k.e("s_mul_i32 s55, s9, 160")
    k.e("s_add_u32 s54, s54, s55")
    for i in range(3):
        k.e(f"v_add_u32 v{t1}, {64*i}, v0")
        k.e(f"v_mul_u32_u24 v{t2}, 6554, v{t1}")
        k.e(f"v_lshrrev_b32 v{t2}, 16, v{t2}")
        k.e(f"v_mul_u32_u24 v{t2}, 1120, v{t2}")
        k.e(f"v_lshl_add_u32 v{vb+i}, v{t1}, 4, v{t2}")
    k.e(f"v_mov_b32 v{t2}, {OOB}")
    k.e("v_cmp_gt_u32 vcc, 32, v0")
    k.e(f"v_cndmask_b32 v{vb+2}, v{t2}, v{vb+2}, vcc")

def unit_ids(k, s_rb, s_cgp):
    k.e(f"s_mul_i32 s{s_rb}, s2, 6554")
    k.e(f"s_lshr_b32 s{s_rb}, s{s_rb}, 16")
    k.e(f"s_mul_i32 s{s_cgp}, s{s_rb}, 10")
    k.e(f"s_sub_u32 s{s_cgp}, s2, s{s_cgp}")
def prep_addr(k):
    unit_ids(k, 52, 53)
    k.e("s_lshl_b32 s54, s52, 2")
    k.e("s_add_u32 s54, s54, s101")
    k.e("s_mul_i32 s54, s54, 20480")
    k.e("s_lshl_b32 s55, s53, 7")
    k.e("s_add_u32 s54, s54, s55")
    k.e("v_lshrrev_b32 v1, 3, v0")
    k.e("v_mul_u32_u24 v2, 1280, v1")
    k.e("v_and_b32 v3, 7, v0")
    k.e("v_lshl_add_u32 v2, v3, 4, v2")
    if flag("XNOPL"): k.e(f"s_mov_b32 s54, {OOB}")
    k.e("v_add_u32 v200, s54, v2")
    k.e("v_subrev_u32 v201, 3840, v200")
    k.e(f"v_add_u32 v202, {10240 - 3840 - 1024}, v200")
    k.e(f"v_add_u32 v203, {20480 - 3840 - 2048}, v200")
    k.e(f"v_mov_b32 v6, {OOB}")
    k.e("v_cmp_gt_u32 vcc, 24, v0")
    k.e("v_cndmask_b32 v203, v6, v203, vcc")
    k.e(f"v_add_u32 v204, {10240 - 1024}, v200")
    k.e("s_mul_i32 s56, s101, 5120")
    k.e(f"s_add_u32 s56, s56, {EA}")
    k.e("v_and_b32 v7, 31, v0")
    k.e("s_lshl_b32 s55, s53, 9")
    k.e("v_lshl_add_u32 v205, v7, 4, s55")
def prep_loads(k):
    srd(k, 40, P_K, NB_X)
    k.e("s_mov_b32 m0, s56")
    k.e("buffer_load_dwordx4 v201, s[40:43], 0 offen lds")
    k.e("buffer_load_dwordx4 v202, s[40:43], 0 offen offset:1024 lds")
    k.e("buffer_load_dwordx4 v203, s[40:43], 0 offen offset:2048 lds")
    srd(k, 44, P_V, NB_X)
    k.e("s_add_u32 m0, s56, 3072")
    k.e("buffer_load_dwordx4 v200, s[44:47], 0 offen lds")
    k.e("buffer_load_dwordx4 v204, s[44:47], 0 offen offset:1024 lds")
    srd(k, 48, P_SH, D * 8)
    k.e("buffer_load_dwordx4 v[212:215], v205, s[48:51], 0 offen")
    k.e("v_lshrrev_b32 v9, 5, v0")
    k.e("v_lshlrev_b32 v10, 10, v9")
    k.e("v_lshl_add_u32 v10, v7, 2, v10")
    k.e("v_add_u32 v209, s56, v10")
    k.e("v_sub_u32 v11, 1, v9")
    k.e("v_lshlrev_b32 v11, 4, v11")
    k.e("v_lshl_add_u32 v11, v7, 6, v11")
    k.e("v_add_u32 v210, s56, v11")
def prep_compute(k):
    KR, VR, TP, KU, VU, KV, OUT = 112, 124, 132, 140, 216, 180, 184
    k.e("s_waitcnt vmcnt(0)")
    for j in range(11): k.e(f"ds_read_b32 v{KR+j}, v209 offset:{128*j}")
    for j in range(8): k.e(f"ds_read_b32 v{VR+j}, v209 offset:{3072 + 128*j}")
    for c in range(2):
        unpack(k, TP + 0 + c, TP + 2 + c, 212 + 2*c)
        unpack(k, TP + 4 + c, TP + 6 + c, 213 + 2*c)
    k.e("s_waitcnt lgkmcnt(8)")
    for j in range(11): unpack(k, KU + 2*j, KU + 2*j + 1, KR + j)
    k.e("s_waitcnt lgkmcnt(0)")
    for j in range(8): unpack(k, VU + 2*j, VU + 2*j + 1, VR + j)
    for r in range(8):
        d = KV + 2*(r & 1)
        for j in (3, 2, 1, 0):
            w = KU + 2*(r + 3 - j); t = TP + 2*j
            if j == 3: k.e(f"v_pk_mul_f32 v[{d}:{d+1}], v[{w}:{w+1}], v[{t}:{t+1}]")
            else: k.e(f"v_pk_fma_f32 v[{d}:{d+1}], v[{w}:{w+1}], v[{t}:{t+1}], v[{d}:{d+1}]")
        k.e(f"v_pk_mul_f32 v[{d}:{d+1}], v[{d}:{d+1}], v[{VU+2*r}:{VU+2*r+1}]")
        if r & 1:
            for c in range(2):
                k.e(f"v_cvt_pk_bf16_f32 v{OUT+4*c+3-r//2}, v{KV+2+c}, v{KV+c}")
    for c in range(2):
        k.e(f"ds_write_b128 v210, v[{OUT+4*c}:{OUT+4*c+3}] offset:{32*c}")

def b_aux_addr(k):
    srd(k, 84, P_W2, NB_W)
    srd(k, 44, P_WS, NB_W, W2_OFF)
    srd(k, 40, P_WS, NB_T, UR_OFF)
    k.e("s_lshr_b32 s57, s2, 2")
    k.e("s_and_b32 s58, s2, 3")
    k.e("s_mul_i32 s59, s57, 40960")
    k.e("s_mul_i32 s60, s58, 320")
    k.e("s_add_u32 s59, s59, s60")
    k.e("s_lshl_b32 s60, s101, 6")
    k.e("s_lshl_b32 s61, s101, 10")
    for i in range(3):
        k.e("v_add_u32 v9, s60, v0")
        if i: k.e(f"v_add_u32 v9, {256*i}, v9")
        k.e("v_mul_u32_u24 v10, 52429, v9")
        k.e("v_lshrrev_b32 v10, 20, v10")
        k.e("v_mul_u32_u24 v10, 960, v10")
        k.e(f"v_lshl_add_u32 v{206+i}, v9, 4, v10")
    k.e("s_cmp_ge_u32 s101, 2")
    k.e(f"s_cselect_b32 s60, {OOB}, 0")
    k.e("v_add_u32 v208, s60, v208")
    k.e(f"s_add_u32 s62, s61, {EA + 20480 + 8192}")
    k.e("s_cmp_ge_u32 s101, 2")
    k.e(f"s_cselect_b32 s62, {EA + 30720}, s62")
def b_aux_addr2(k):
    k.e("s_lshr_b32 s10, s101, 1")
    k.e("s_and_b32 s11, s101, 1")
    k.e("s_mul_i32 s60, s10, 5")
    k.e("s_mul_i32 s54, s11, 3")
    k.e("s_add_u32 s60, s60, s54")
    k.e("s_lshl_b32 s60, s60, 5")
    k.e(f"s_add_u32 s60, s60, {EA + 20480}")
    k.e("v_lshrrev_b32 v11, 2, v0")
    k.e("v_mul_u32_u24 v11, 320, v11")
    k.e("v_and_b32 v12, 3, v0")
    k.e("v_lshl_add_u32 v11, v12, 3, v11")
    k.e("v_add_u32 v214, s60, v11")
    k.e("s_lshl_b32 s60, s58, 1")
    k.e("s_add_u32 s60, s60, s10")
    k.e(f"s_mul_i32 s89, s60, {NT}")
    k.e("s_add_u32 s89, s89, s57")
    k.e("s_mul_i32 s89, s89, 5120")
    k.e("s_lshl_b32 s54, s54, 10")
    k.e("s_add_u32 s89, s89, s54")
    k.e("s_cmp_ge_u32 s2, 216")
    k.e(f"s_cselect_b32 s89, {OOB}, s89")
    if flag("XNOW"): k.e(f"s_mov_b32 s89, {OOB}")
    k.e("v_lshlrev_b32 v215, 4, v0")
    k.e("s_cmp_eq_u32 s11, 1")
    k.e(f"s_cselect_b32 s54, {OOB}, 0")
    k.e("v_add_u32 v216, s54, v215")
    unit_ids(k, 52, 53)
    k.e("v_lshrrev_b32 v1, 3, v0")
    k.e("v_and_b32 v3, 7, v0")
    k.e("v_lshrrev_b32 v11, 1, v3")
    k.e("v_sub_u32 v11, 3, v11")
    k.e("v_mul_u32_u24 v11, 5120, v11")
    k.e("v_lshl_add_u32 v11, v1, 5, v11")
    k.e("v_and_b32 v12, 1, v3")
    k.e("v_lshl_add_u32 v11, v12, 4, v11")
    k.e("s_lshl_b32 s55, s101, 9")
    k.e(f"s_add_u32 s55, s55, {EA}")
    k.e("v_add_u32 v211, s55, v11")
    k.e(f"v_mul_u32_u24 v232, {RS}, v1")
    k.e("v_lshl_add_u32 v232, v3, 4, v232")
    k.e(f"v_add_u32 v233, {8*RS}, v232")
    k.e("s_lshl_b32 s63, s53, 2")
    k.e("s_add_u32 s63, s63, s101")
    k.e(f"s_mul_i32 s63, s63, {16*RS}")
    k.e("s_lshl_b32 s55, s52, 7")
    k.e("s_sub_u32 s55, 3968, s55")
    k.e("s_add_u32 s63, s63, s55")
    if flag("XNOST"):
        k.e(f"s_mov_b32 s63, {OOB}")
        k.e(f"s_mov_b32 s89, {OOB}")
def rel_loads():
    return [f"s_add_u32 m0, s61, {EA + 20480}",
            "buffer_load_dwordx4 v206, s[84:87], s59 offen lds",
            f"s_add_u32 m0, s61, {EA + 20480 + 4096}",
            "buffer_load_dwordx4 v207, s[84:87], s59 offen lds",
            "s_mov_b32 m0, s62",
            "buffer_load_dwordx4 v208, s[84:87], s59 offen lds"]
def aux_out():
    L = [f"ds_read_b128 v[{100+4*i}:{103+4*i}], v211 offset:{256*i}" for i in range(2)]
    for i in range(3):
        L.append(f"ds_read_b64_tr_b16 v[{188+4*i}:{189+4*i}], v214 offset:{32*i}")
        L.append(f"ds_read_b64_tr_b16 v[{190+4*i}:{191+4*i}], v214 offset:{32*i + 5120}")
    L.append("s_waitcnt lgkmcnt(0)")
    L += [f"buffer_store_dwordx4 v[{100+4*i}:{103+4*i}], v{232+i}, s[40:43], s63 offen{SC1}" for i in range(2)]
    L += [f"buffer_store_dwordx4 v[{188+4*i}:{191+4*i}], v{216 if i == 2 else 215}, s[44:47], s89 offen offset:{1024*i}{SC1}" for i in range(3)]
    return L

def rel1_addr(k):
    srd(k, 84, P_W2, NB_W)
    srd(k, 44, P_WS, NB_W, W2_OFF)
    k.e("s_lshr_b32 s57, s2, 2")
    k.e("s_and_b32 s58, s2, 3")
    k.e("s_mul_i32 s59, s57, 40960")
    k.e("s_mul_i32 s60, s58, 320")
    k.e("s_add_u32 s59, s59, s60")
    k.e("s_lshl_b32 s60, s101, 6")
    k.e("s_lshl_b32 s61, s101, 10")
    for i in range(3):
        k.e("v_add_u32 v9, s60, v0")
        if i: k.e(f"v_add_u32 v9, {256*i}, v9")
        k.e("v_mul_u32_u24 v10, 52429, v9")
        k.e("v_lshrrev_b32 v10, 20, v10")
        k.e("v_mul_u32_u24 v10, 960, v10")
        k.e(f"v_lshl_add_u32 v{110+i}, v9, 4, v10")
    k.e("s_cmp_ge_u32 s101, 2")
    k.e(f"s_cselect_b32 s60, {OOB}, 0")
    k.e("v_add_u32 v112, s60, v112")
    k.e("v_lshrrev_b32 v11, 2, v0")
    k.e("v_mul_u32_u24 v11, 320, v11")
    k.e("v_and_b32 v12, 3, v0")
    k.e("v_lshl_add_u32 v11, v12, 3, v11")
    k.e("s_lshr_b32 s10, s101, 1")
    k.e("s_and_b32 s11, s101, 1")
    k.e("s_mul_i32 s60, s10, 5")
    k.e("s_mul_i32 s54, s11, 3")
    k.e("s_add_u32 s60, s60, s54")
    k.e("s_lshl_b32 s60, s60, 5")
    k.e(f"s_add_u32 s60, s60, {RLB}")
    k.e("v_add_u32 v214, s60, v11")
    k.e("s_lshl_b32 s60, s58, 1")
    k.e("s_add_u32 s60, s60, s10")
    k.e(f"s_mul_i32 s89, s60, {NT}")
    k.e("s_add_u32 s89, s89, s57")
    k.e("s_mul_i32 s89, s89, 5120")
    k.e("s_lshl_b32 s54, s54, 10")
    k.e("s_add_u32 s89, s89, s54")
    k.e("s_cmp_ge_u32 s2, 216")
    k.e(f"s_cselect_b32 s89, {OOB}, s89")
    if flag("XNOW"): k.e(f"s_mov_b32 s89, {OOB}")
    k.e("v_lshlrev_b32 v215, 4, v0")
    k.e("s_cmp_eq_u32 s11, 1")
    k.e(f"s_cselect_b32 s54, {OOB}, 0")
    k.e("v_add_u32 v216, s54, v215")
def rel1_loads():
    L = []
    for i in range(3):
        L.append(f"s_add_u32 m0, s61, {RLB + 4096*i}")
        L.append(f"buffer_load_dwordx4 v{110+i}, s[84:87], s59 offen lds")
    return L
def rel1_reads():
    L = []
    for i in range(3):
        L.append(f"ds_read_b64_tr_b16 v[{188+4*i}:{189+4*i}], v214 offset:{32*i}")
        L.append(f"ds_read_b64_tr_b16 v[{190+4*i}:{191+4*i}], v214 offset:{32*i + 5120}")
    return L
def rel1_stores():
    return ["s_waitcnt lgkmcnt(0)"] + [f"buffer_store_dwordx4 v[{188+4*i}:{191+4*i}], v{216 if i == 2 else 215}, s[44:47], s89 offen offset:{1024*i}{SC1}" for i in range(3)]
def u_addr(k):
    srd(k, 40, P_WS, NB_T, UR_OFF)
    unit_ids(k, 52, 53)
    k.e("v_lshrrev_b32 v1, 3, v0")
    k.e("v_and_b32 v3, 7, v0")
    k.e("v_lshrrev_b32 v11, 1, v3")
    k.e("v_sub_u32 v11, 3, v11")
    k.e("v_mul_u32_u24 v11, 5120, v11")
    k.e("v_lshl_add_u32 v11, v1, 5, v11")
    k.e("v_and_b32 v12, 1, v3")
    k.e("v_lshl_add_u32 v11, v12, 4, v11")
    k.e("s_lshl_b32 s55, s101, 9")
    k.e(f"s_add_u32 s55, s55, {EA}")
    k.e("v_add_u32 v211, s55, v11")
    k.e(f"v_mul_u32_u24 v232, {RS}, v1")
    k.e("v_lshl_add_u32 v232, v3, 4, v232")
    k.e(f"v_add_u32 v233, {8*RS}, v232")
    k.e("s_lshl_b32 s63, s53, 2")
    k.e("s_add_u32 s63, s63, s101")
    k.e(f"s_mul_i32 s63, s63, {16*RS}")
    k.e("s_lshl_b32 s55, s52, 7")
    k.e("s_sub_u32 s55, 3968, s55")
    k.e("s_add_u32 s63, s63, s55")
def u_out():
    L = [f"ds_read_b128 v[{100+4*i}:{103+4*i}], v211 offset:{256*i}" for i in range(2)]
    L.append("s_waitcnt lgkmcnt(0)")
    L += [f"buffer_store_dwordx4 v[{100+4*i}:{103+4*i}], v{232+i}, s[40:43], s63 offen{SC1}" for i in range(2)]
    return L

def g2_offsets(k):
    k.e("s_mul_i32 s10, s101, 14")
    k.e("s_cmp_eq_u32 s101, 3")
    k.e("s_cselect_b32 s10, 41, s10")
    k.e(f"s_mul_i32 s11, s8, {NT}")
    k.e("s_add_u32 s11, s11, s10")
    k.e("s_lshl_b32 s76, s11, 12")
    k.e(f"s_mul_i32 s11, s9, {NT}")
    k.e("s_add_u32 s11, s11, s10")
    k.e("s_mul_i32 s77, s11, 5120")
    k.e("s_cmp_ge_u32 s101, 2")
    k.e(f"s_cselect_b32 s79, {OOB}, 0")
    k.e("s_mul_i32 s75, s101, 7")
    k.e("s_min_u32 s75, s75, 20")
    k.e("s_lshl_b32 s11, s8, 5")
    k.e("s_add_u32 s75, s75, s11")
    k.e(f"s_lshl_b32 s75, s75, {HSH}")
    k.e(f"s_add_u32 s75, s75, {FH}")
    k.e("s_lshl_b32 s74, s101, 14")
LSTEPS = [int(x) for x in os.environ.get("LSTEPS", "5,8,11").split(",")]
def soff(dst, base, step, mul):
    st = step
    if flag("XHIT") & 1 and mul == 4096: st = step % 2
    if flag("XHIT") & 2 and mul == 5120: st = step % 2
    L = [f"s_add_u32 s{dst}, s{base}, {st * mul}"]
    if step == NSTEP - 1: L.append(f"s_add_u32 s{dst}, s{dst}, s79")
    return L
def w_loads(step):
    b = W_SL[step % NW]
    L = soff(73, 77, step, 5120)
    L += [f"buffer_load_dwordx4 v[{b+4*d}:{b+4*d+3}], v1, s[44:47], s73 offen offset:{1024*d}{SC1}" for d in range(4)]
    L.append(f"buffer_load_dwordx4 v[{b+16}:{b+19}], v2, s[44:47], s73 offen{SC1}")
    return L
def h_loads(step):
    b = G_H + 16 * (step % NH)
    L = soff(72, 76, step, 4096)
    L += [f"buffer_load_dwordx4 v[{b+4*m}:{b+4*m+3}], v{3+m}, s[40:43], s72 offen{SC1}" for m in range(4)]
    return L
def w_lds_reads(step):
    b = W_SL[step % NW]
    return [f"ds_read_b128 v[{b+4*d}:{b+4*d+3}], v7 offset:{LSTEPS.index(step)*5120 + 1024*d}" for d in range(5)]
def g2_mfmas(step, order=None):
    b = G_H + 16 * (step % NH); wb = W_SL[step % NW]
    L = []
    for d, m in (order or [(d, m) for d in range(5) for m in range(4)]):
        a = G_ACC + 16*d + 4*m
        c = "0" if step == 0 else f"v[{a}:{a+3}]"
        L.append(f"v_mfma_f32_16x16x32_bf16 v[{a}:{a+3}], v[{wb+4*d}:{wb+4*d+3}], v[{b+4*m}:{b+4*m+3}], {c}")
    return L

def g2_phase(k):
    for s in range(EWI or flag("NP", 0), NW):
        for x in w_loads(s): k.e(x)
    srd(k, 40, P_WS, 32 * NT * 4096, H_OFF)
    k.e("s_lshl_b32 s52, s101, 10")
    k.e("v_add_u32 v3, s52, v1")
    for m in range(1, 4): k.e(f"v_xor_b32 v{3+m}, {1024*m}, v3")
    k.e(f"v_lshlrev_b32 v9, {HSH}, v0")
    EPOL = flag("EPOL", 8); left = 15
    for li, s in enumerate(LSTEPS):
        for x in soff(78, 77, s, 5120): k.e(x)
        for d in range(5):
            if left == EPOL:
                k.e("s_bfm_b64 exec, 7, 0")
                k.e(f"buffer_load_dwordx2 v[10:11], v9, s[{FSRD}:{FSRD+3}], s75 offen{SC1}")
                k.e("s_mov_b64 exec, -1")
            left -= 1
            if d in (0, 4): k.e(f"s_add_u32 m0, s74, {li*5120 + 1024*d}")
            if d < 4: k.e(f"buffer_load_dwordx4 v1, s[44:47], s78 offen offset:{1024*d}{SC1} lds")
            else: k.e(f"buffer_load_dwordx4 v2, s[44:47], s78 offen{SC1} lds")
    k.e("v_add_u32 v7, s74, v1")
    k.e(f"v_mov_b32 v152, {CNT}")
    k.e(f"s_waitcnt vmcnt({EPOL})")
    poll(k, "L_hpoll", 10, 9, 75, 58, 7, sleep=2, preloaded=True)
    stamp(k, 1, 2); cs(k, "rdy")
    vm = Vm(); need = {}
    NH0 = flag("NH0", 3)
    for s in range(NH0):
        for x in h_loads(s):
            k.e(x)
            if is_vmem(x): need[("h", s)] = vm.op()
    def groups(L):
        G = []; cur = []
        for x in L:
            cur.append(x)
            if is_vmem(x): G.append(cur); cur = []
        return G
    LA = flag("LA", 2); R = flag("RATE", 6)
    qh = [(s - (NH - 1), s - LA, "h", s, g) for s in range(NH0, NSTEP) for g in groups(h_loads(s))]
    qw = [(s - (NW - 1), s - LA, "w", s, g) for s in range(NW, NSTEP) if s not in LSTEPS for g in groups(w_loads(s))]
    for s in range(NSTEP):
        idx = max(need[("h", s)], need.get(("w", s), -1))
        lg = " lgkmcnt(0)" if (s in LSTEPS or s == NSTEP - 1) else ""
        k.e(f"s_waitcnt vmcnt({vm.wait(idx)}){lg}")
        if s in (0, 3, 7, 10): stamp(k, 4, (0, 3, 7, 10).index(s))
        if s in (10, 12, 13): stamp(k, 5, (10, 12, 13).index(s))
        if s == NSTEP - 1: break
        fill = []
        while (qh or qw):
            cand = [q for q in (qh, qw) if q and q[0][0] <= s]
            if not cand: break
            q = min(cand, key=lambda q: q[0][1])
            if len(fill) >= R and q[0][1] > s: break
            fill.append(q.pop(0))
        extra = []
        if s == flag("YAT", 5): extra.append(f"ds_write_b32 v152, v152 offset:{PROG}")
        if s + 2 in LSTEPS: extra += w_lds_reads(s + 2)
        if s == 12:
            r = Rec(); tail_addr(r); extra += ["\n".join(r.lines[i:i+2]) for i in range(0, len(r.lines), 2)]
        n = len(fill); fi = 0; ei = 0
        for i, x in enumerate(g2_mfmas(s)):
            k.e(x)
            if fi < n and i >= (fi * 18) // n:
                for y in fill[fi][4]: k.e(y)
                need[(fill[fi][2], fill[fi][3])] = vm.op(); fi += 1
            elif ei < len(extra):
                k.e(extra[ei]); ei += 1
        assert fi == n
        for y in extra[ei:]: k.e(y)
    assert not qh and not qw
    k.e("s_setprio 2")
    order = [(3, 0), (4, 0)] + [(d, m) for m in (1, 2, 3) for d in range(5)] + [(0, 0), (1, 0), (2, 0)]
    wr = [f"ds_write_b128 v{T+8}, v[{G_ACC+16*d}:{G_ACC+16*d+3}] offset:{OWN + 1024*(d-3)}" for d in (3, 4)]
    wr += [f"ds_write_b128 v7, v[{G_ACC+16*d+4*m}:{G_ACC+16*d+4*m+3}] offset:{(m-1)*5120 + 1024*d}" for d, m in order[2:17]]
    k.e("s_cmp_ge_u32 s101, 2")
    k.e("s_cbranch_scc1 L_g2_short")
    for x in interleave(g2_mfmas(NSTEP - 1, order), wr, start=6): k.e(x)
    k.e("s_branch L_g2_join")
    k.e("L_g2_short:")
    k.e("s_nop 7")
    for x in wr: k.e(x)
    k.e("L_g2_join:")
    stamp(k, 1, 3); cs(k, "mend")
    g2_tail(k)

T = 156
OWN = SO + 3072
assert C3
def tail_addr(k):
    srd(k, 48, P_OUT, NB_X)
    k.e("s_lshl_b32 s53, s8, 2")
    k.e("s_add_u32 s53, s53, s101")
    k.e("s_mul_i32 s54, s53, 20480")
    k.e("s_mul_i32 s55, s9, 160")
    k.e("s_add_u32 s54, s54, s55")
    for i in range(2):
        k.e(f"v_add_u32 v{T+3}, {64*i}, v0")
        k.e(f"v_mul_u32_u24 v{T+4}, 10923, v{T+3}")
        k.e(f"v_lshrrev_b32 v{T+4}, 16, v{T+4}")
        k.e(f"v_mul_u32_u24 v{T+4}, {1280-96}, v{T+4}")
        k.e(f"v_lshl_add_u32 v{T+i}, v{T+3}, 4, v{T+4}")
    k.e(f"v_mov_b32 v{T+4}, {OOB}")
    k.e("v_cmp_gt_u32 vcc, 32, v0")
    k.e(f"v_cndmask_b32 v{T+1}, v{T+4}, v{T+1}, vcc")
    for m in range(1, 4): k.e(f"v_xor_b32 v{T+4+m}, {16384*m}, v7")
    k.e(f"v_add_u32 v{T+8}, s81, v1")
    k.e(f"v_and_b32 v{T+9}, 15, v0")
    k.e(f"v_mul_u32_u24 v{T+9}, 96, v{T+9}")
    k.e(f"v_lshrrev_b32 v{T+10}, 4, v0")
    k.e(f"v_lshl_add_u32 v{T+9}, v{T+10}, 3, v{T+9}")
    k.e(f"v_add_u32 v{T+9}, s81, v{T+9}")
    k.e(f"v_mov_b32 v{T+12}, 1.0")
    k.e(f"v_mov_b32 v{T+13}, 1.0")
def final_block(k, a, s, x, cc, one):
    for h in range(2):
        k.e(f"v_pk_add_f32 v[{a+2*h}:{a+2*h+1}], v[{a+2*h}:{a+2*h+1}], v[{a+4+2*h}:{a+4+2*h+1}]")
        k.e(f"v_pk_add_f32 v[{a+8+2*h}:{a+8+2*h+1}], v[{a+8+2*h}:{a+8+2*h+1}], v[{a+12+2*h}:{a+12+2*h+1}]")
    for h in range(2):
        k.e(f"v_pk_add_f32 v[{a+2*h}:{a+2*h+1}], v[{a+2*h}:{a+2*h+1}], v[{a+8+2*h}:{a+8+2*h+1}]")
    e = a + 4
    for h in range(2):
        k.e(f"v_pk_mul_f32 v[{e+2*h}:{e+2*h+1}], v[{a+2*h}:{a+2*h+1}], v[{cc}:{cc+1}]")
    for r in range(4): k.e(f"v_exp_f32 v{e+r}, v{e+r}")
    for h in range(2):
        k.e(f"v_pk_mul_f32 v[{a+2*h}:{a+2*h+1}], v[{a+2*h}:{a+2*h+1}], v[{s+2*h}:{s+2*h+1}]")
    for h in range(2):
        k.e(f"v_pk_add_f32 v[{e+2*h}:{e+2*h+1}], v[{e+2*h}:{e+2*h+1}], v[{one}:{one+1}]")
    for r in range(4): k.e(f"v_rcp_f32 v{e+r}, v{e+r}")
    for h in range(2):
        k.e(f"v_pk_fma_f32 v[{a+2*h}:{a+2*h+1}], v[{a+2*h}:{a+2*h+1}], v[{e+2*h}:{e+2*h+1}], v[{x+2*h}:{x+2*h+1}]")
    k.e(f"v_cvt_pk_bf16_f32 v{a+8}, v{a}, v{a+1}")
    k.e(f"v_cvt_pk_bf16_f32 v{a+9}, v{a+2}, v{a+3}")
def g2_tail(k):
    k.e("s_waitcnt lgkmcnt(0)")
    stamp(k, 6, 0)
    k.e("s_barrier")
    stamp(k, 5, 3); stamp(k, 6, 1)
    SF, XF, CC = 88, 108, T + 14
    k.e(f"ds_read_b64 v[{CC}:{CC+1}], v{T+8} offset:{SO + 10240}")
    for d in range(3):
        for m in range(1, 4):
            a = G_ACC + 16*d + 4*m
            k.e(f"ds_read_b128 v[{a}:{a+3}], v{T+4+m} offset:{(m-1)*5120 + 1024*d}")
        k.e(f"ds_read_b128 v[{SF+4*d}:{SF+4*d+3}], v{T+8} offset:{SO + 1024*d}")
        k.e(f"ds_read_b128 v[{XF+4*d}:{XF+4*d+3}], v{T+8} offset:{SO + 5120 + 1024*d}")
    for d in range(3):
        k.e(f"s_waitcnt lgkmcnt({10-5*d})")
        final_block(k, G_ACC + 16*d, SF + 4*d, XF + 4*d, CC, T + 12)
    stamp(k, 6, 2)
    for d in range(3):
        a = G_ACC + 16*d
        k.e(f"ds_write_b64 v{T+9}, v[{a+8}:{a+9}] offset:{XO + 32*d}")
    k.e("s_waitcnt lgkmcnt(0)")
    O = 128
    for i in range(2): k.e(f"ds_read_b128 v[{O+4*i}:{O+4*i+3}], v{T+8} offset:{XO + 1024*i}")
    for i in range(2):
        k.e(f"s_waitcnt lgkmcnt({1-i})")
        k.e(f"buffer_store_dwordx4 v[{O+4*i}:{O+4*i+3}], v{T+i}, s[48:51], s54 offen")
    stamp(k, 6, 3)
def b_tail(k):
    srd(k, 48, P_OUT, NB_X)
    k.e("v_lshlrev_b32 v8, 4, v0")
    k.e("s_lshl_b32 s59, s101, 14")
    k.e("v_add_u32 v8, s59, v8")
    for m in range(1, 4): k.e(f"v_xor_b32 v{8+m}, {16384*m}, v8")
    k.e("v_and_b32 v12, 15, v0")
    k.e("v_lshlrev_b32 v12, 6, v12")
    k.e("v_lshrrev_b32 v13, 4, v0")
    k.e("v_lshl_add_u32 v12, v13, 3, v12")
    k.e("v_add_u32 v12, s81, v12")
    k.e("v_lshrrev_b32 v13, 2, v0")
    k.e("v_mul_u32_u24 v13, 1280, v13")
    k.e("v_and_b32 v14, 3, v0")
    k.e("v_lshl_add_u32 v13, v14, 4, v13")
    k.e("v_mov_b32 v14, 1.0")
    k.e("v_mov_b32 v15, 1.0")
    k.e("s_waitcnt lgkmcnt(0)")
    k.e("s_barrier")
    P = 104
    for i, d in enumerate((3, 4)):
        k.e(f"ds_read_b128 v[{P+16*i}:{P+16*i+3}], v37 offset:{OWN + 1024*i}")
        for m in range(1, 4):
            k.e(f"ds_read_b128 v[{P+16*i+4*m}:{P+16*i+4*m+3}], v{8+m} offset:{(m-1)*5120 + 1024*d}")
    for i, d in enumerate((3, 4)):
        k.e(f"s_waitcnt lgkmcnt({4-4*i})")
        final_block(k, P + 16*i, 60 + 4*d, 40 + 4*d, 38, 14)
    for i in range(2): k.e(f"ds_write_b64 v12, v[{P+16*i+8}:{P+16*i+9}] offset:{YO + 32*i}")
    k.e("s_waitcnt lgkmcnt(0)")
    k.e(f"ds_read_b128 v[16:19], v37 offset:{YO}")
    k.e("s_waitcnt lgkmcnt(0)")
    k.e("buffer_store_dwordx4 v[16:19], v13, s[48:51], s54 offen offset:96")

BA, AA, ONE, ACC, AR, AC, FR = 10, 14, 20, 24, 88, 96, 112
def g1_setup(k):
    srd(k, 48, P_WS, 32 * NT * 4096, H_OFF)
    srd(k, 44, P_WS, NB_W, W2_OFF)
    k.e("s_and_b32 s52, s3, 1")
    k.e("s_lshr_b32 s53, s3, 1")
    k.e("v_lshlrev_b32 v1, 4, v0")
    k.e("v_add_u32 v2, 4096, v1")
    k.e("v_and_b32 v18, 15, v0")
    k.e("v_lshrrev_b32 v19, 4, v0")
    k.e("v_lshrrev_b32 v20, 1, v18")
    k.e("v_xor_b32 v20, v20, v19")
    k.e("v_lshlrev_b32 v20, 4, v20")
    k.e("v_lshl_add_u32 v20, v18, 7, v20")
    k.e("s_lshl_b32 s58, s52, 13")
    k.e("s_lshl_b32 s59, s53, 12")
    k.e("s_add_u32 s58, s58, s59")
    k.e(f"v_add_u32 v{BA}, s58, v20")
    k.e(f"v_xor_b32 v{BA+1}, 64, v{BA}")
    k.e(f"v_xor_b32 v{BA+2}, 0x1000, v{BA}")
    k.e(f"v_xor_b32 v{BA+3}, 0x1040, v{BA}")
    k.e("v_lshrrev_b32 v20, 2, v18")
    k.e("v_and_b32 v21, 3, v18")
    k.e("v_lshl_add_u32 v22, v19, 3, v20")
    k.e("v_lshlrev_b32 v22, 8, v22")
    k.e("v_lshl_add_u32 v22, v21, 3, v22")
    k.e(f"v_add_u32 v22, {WPART}, v22")
    k.e("v_and_b32 v23, 1, v19")
    k.e("v_lshl_add_u32 v23, v23, 2, v20")
    k.e("s_lshl_b32 s58, s53, 2")
    k.e("s_lshl_b32 s59, s52, 1")
    k.e("s_add_u32 s58, s58, s59")
    k.e("v_xor_b32 v23, s58, v23")
    k.e(f"v_lshl_add_u32 v{AA}, v23, 5, v22")
    for fb in range(1, 4): k.e(f"v_xor_b32 v{AA+fb}, {32*fb}, v{AA}")
    for i in range(4): k.e(f"v_mov_b32 v{ONE+i}, 0x3f803f80")
    for r, x in ((3, 0), (4, 2), (5, 1)):
        k.e(f"s_xor_b32 s58, s3, {x}")
        k.e("s_mul_i32 s58, s58, 3072")
        k.e(f"s_add_u32 s58, s58, {TOP}")
        k.e(f"v_add_u32 v{r}, s58, v1")
    k.e("s_lshl_b32 s58, s7, 1")
    k.e("s_add_u32 s57, s58, s53")
    k.e("s_lshl_b32 s59, s6, 1")
    k.e("s_add_u32 s59, s59, s52")
    k.e("s_lshl_b32 s56, s59, 5")
    k.e("s_add_u32 s56, s56, s57")
    k.e(f"s_lshl_b32 s56, s56, {HSH}")
    k.e(f"s_add_u32 s56, s56, {FH}")
    k.e(f"s_mul_i32 s59, s59, {NT}")
    k.e("s_lshl_b32 s58, s57, 1")
    k.e("s_add_u32 s58, s58, s59")
    k.e("s_lshl_b32 s58, s58, 12")
    k.e("s_lshl_b32 s59, s52, 12")
    k.e("s_add_u32 s60, s58, s59")
    k.e("s_xor_b32 s59, s59, 0x1000")
    k.e("s_add_u32 s61, s58, s59")
    k.e("s_lshl_b32 s59, s53, 11")
    k.e("v_add_u32 v6, s59, v1")
    k.e("v_xor_b32 v7, 0x800, v6")
    k.e(f"v_mov_b32 v18, {CNT}")
    k.e("s_lshl_b32 s58, s3, 2")
    k.e(f"s_add_u32 s58, s58, {CNT + PA}")
    k.e("v_mov_b32 v19, s58")

def g1_phase(k):
    PV = 176
    def reads(stage, ks, buf):
        so = (stage % 2) * SLOT
        L = []
        fa = FR + 32 * buf; fb_ = fa + 16
        for i in range(4):
            L.append(f"ds_read_b128 v[{fb_+4*i}:{fb_+4*i+3}], v{BA + 2*(i>>1) + ks} offset:{so + 2048*(i&1)}")
            L.append(f"ds_read_b64_tr_b16 v[{fa+4*i}:{fa+4*i+1}], v{AA+i} offset:{so + 8192*ks}")
            L.append(f"ds_read_b64_tr_b16 v[{fa+4*i+2}:{fa+4*i+3}], v{AA+i} offset:{so + 8192*ks + 1024}")
        return L
    def mfmas(buf, first=False, sums_first=False):
        fa = FR + 32 * buf; fb_ = fa + 16
        L = []; Sm = []
        def mm(Tg, d, a, b):
            c = "0" if first else f"v[{d}:{d+3}]"
            Tg.append(f"v_mfma_f32_16x16x32_bf16 v[{d}:{d+3}], v[{a}:{a+3}], v[{b}:{b+3}], {c}")
        for f in range(4):
            for m in range(4): mm(L, ACC + 16*f + 4*m, fa + 4*f, fb_ + 4*m)
        for i in range(2):
            mm(Sm, AR + 4*i, ONE, fb_ + 4*i)
            mm(Sm, AC + 4*i, fa + 4*i, ONE)
        if flag("QNOSUM") and not first and not sums_first: return L
        return Sm + L if sums_first else L + Sm
    def dense(L):
        n = flag("DEN", 2)
        return ["\n".join(L[i:i+n]) for i in range(0, len(L), n)]
    tog = [f"v_xor_b32 v{r}, 0x10000, v{r}" for r in list(range(BA, BA+4)) + list(range(AA, AA+4))]
    for s in range(NSTAGE):
        k.c(f"---- stage {s}")
        k.e("s_waitcnt lgkmcnt(0)")
        m1 = mfmas(1)
        if s < 9: k.e("s_barrier")
        else:
            for x in interleave(m1[:3], prog_min(PV, 58)): k.e(x)
            m1 = m1[3:]
            prog_spin(k, "L_a9", 18, PV, PB, 58, 1)
        if s == 0: stamp(k, 1, 0); stamp(k, 2, 0); cs(k, "b0")
        if s == 4: cs(k, "b4")
        if s == 4: stamp(k, 2, 1)
        if s == 8:
            stamp(k, 2, 2)
            k.e("s_setprio 2")
        for x in (reads(0, 0, 0) if s == 0 else interleave(m1, dense(reads(s, 0, 0)))): k.e(x)
        k.e("s_waitcnt lgkmcnt(0)")
        m0 = mfmas(0, first=(s == 0))
        nxt = tog if ((s + 1) % 2 == 0 and s + 1 < NSTAGE) else []
        if s == 8:
            body = interleave(m0[:-3], dense(reads(s, 1, 1))) + [f"ds_read_b128 v[{PV}:{PV+3}], v18 offset:{PB}"] + m0[-3:]
        else:
            body = interleave(m0, dense(reads(s, 1, 1)) + nxt)
        for x in body: k.e(x)
    k.e("s_waitcnt lgkmcnt(0)")
    fin = mfmas(1, sums_first=True)
    exch = [f"v_mov_b32 v{AR+1}, v{AR+4}",
            f"ds_write_b64 v3, v[{AR}:{AR+1}]",
            f"ds_write_b128 v3, v[{AC}:{AC+3}] offset:1024",
            f"ds_write_b128 v3, v[{AC+4}:{AC+7}] offset:2048"] + prog_write(19, 8, 11)
    for x in fin[:7] + interleave(fin[7:], exch): k.e(x)
    k.e("L_a_sync:")
    k.e(f"ds_read_b128 v[{PV}:{PV+3}], v18 offset:{PA}")
    k.e(f"ds_read_b64 v[{AR+2}:{AR+3}], v4")
    k.e(f"ds_read_b128 v[{AC+8}:{AC+11}], v5 offset:1024")
    k.e(f"ds_read_b128 v[{AC+12}:{AC+15}], v5 offset:2048")
    if EWI: k.e(f"ds_read_b32 v8, v18 offset:{AUXOK}")
    k.e("s_waitcnt lgkmcnt(0)")
    for x in prog_min(PV, 58): k.e(x)
    k.e("s_cmp_lt_u32 s58, 11")
    k.e("s_cbranch_scc1 L_a_sync")
    stamp(k, 2, 3); cs(k, "sync")
    if flag("HTF", 1):
        k.e("s_cmp_ge_u32 s57, 27")
        for r in (56, 60, 61): k.e(f"s_cselect_b32 s{r}, {OOB}, s{r}")
    else:
        k.e("s_cmp_ge_u32 s57, 27")
        k.e("s_cbranch_scc1 L_g2w")
    NM = FR
    wl = []
    if EWI:
        k.e("v_readfirstlane_b32 s71, v8")
        k.e("s_mov_b32 s70, s77")
        k.e("s_cmp_eq_u32 s71, 0")
        k.e(f"s_cselect_b32 s77, {OOB}, s77")
        cur = []
        for st in range(EWI):
            for x in w_loads(st):
                cur.append(x)
                if is_vmem(x): wl.append(cur); cur = []
    for m in range(4): k.e(f"v_mul_f32 v{AR+m}, {-1.0/D!r}, v{AR+m}")
    k.e(f"v_cvt_pk_bf16_f32 v{AR+4}, v{AR}, v{AR+1}")
    k.e(f"v_cvt_pk_bf16_f32 v{AR+5}, v{AR+2}, v{AR+3}")
    for m in range(4):
        src = AR + 4 + (m >> 1)
        if m & 1: k.e(f"v_and_b32 v{NM+m}, 0xffff0000, v{src}")
        else:     k.e(f"v_lshlrev_b32 v{NM+m}, 16, v{src}")
    OUT = FR + 8
    n = 0
    for p in range(2):
        for m in range(4):
            o = OUT + 4 * (n % 4); n += 1
            for ff in range(2):
                f = 2*p + ff
                a = ACC + 16*f + 4*m
                for r in range(4): k.e(f"v_fmac_f32 v{a+r}, v{AC+4*f+r}, v{NM+m}")
                for h in range(2): k.e(f"v_cvt_pk_bf16_f32 v{o+2*ff+h}, v{a+2*h}, v{a+2*h+1}")
            if p == 1 and m == 2 and flag("NP", 0): k.e(f"ds_read_b32 v8, v18 offset:{AUXOK}")
            for i in range(4): k.e(f"v_pk_max_i16 v{o+i}, v{o+i}, 0")
            k.e(f"buffer_store_dwordx4 v[{o}:{o+3}], v{6+(m>>1)}, s[48:51], s{60+p} offen offset:{1024*(m&1)}{HSC}")
            lo, hi = (len(wl) * (n - 1)) // 8, (len(wl) * n) // 8
            for g in wl[lo:hi]:
                for x in g: k.e(x)
    if EWI:
        k.e(f"s_waitcnt vmcnt({hi - lo})")
        publish(k, 56, 12, HSC)
        stamp(k, 1, 1)
        k.e("s_setprio 0")
        k.e("s_mov_b32 s77, s70")
        k.e("s_cmp_eq_u32 s71, 0")
        k.e("s_cbranch_scc0 L_g2b")
        k.e("s_branch L_g2w")
    NP = EWI or flag("NP", 0)
    if NP and not EWI:
        k.e("s_waitcnt lgkmcnt(0)")
        k.e("v_readfirstlane_b32 s58, v8")
        k.e("s_cmp_eq_u32 s58, 0")
        k.e("s_cbranch_scc1 L_a_slow")
        for st in range(NP):
            for x in w_loads(st): k.e(x)
        k.e(f"s_waitcnt vmcnt({5*NP})")
        publish(k, 56, 12, HSC)
        stamp(k, 1, 1)
        k.e("s_setprio 0")
        k.e("s_branch L_g2b")
        k.e("L_a_slow:")
    if not EWI:
        k.e("s_waitcnt vmcnt(0)")
        publish(k, 56, 12, HSC)
        stamp(k, 1, 1)
    k.e("L_g2w:")
    k.e("s_setprio 0")
    k.e(f"v_mov_b32 v10, {CNT}")
    lds_wait(k, "L_aw2", 10, 11, AUXOK, 58, sleep=4)
    for st in range(NP):
        for x in w_loads(st): k.e(x)
    k.e("L_g2b:")

def b_aprep(k):
    srd(k, 40, P_Q, NB_X)
    srd(k, 44, P_WS, 16384, ST_OFF)
    srd(k, 68, P_WS, NB_T, YT_OFF)
    xo_offsets(k, 8, 1, 2)
    for i in range(3):
        k.e(f"s_add_u32 m0, s81, {XO + 1024*i}")
        k.e(f"buffer_load_dwordx4 v{8+i}, s[40:43], s54 offen lds")
    k.e("v_and_b32 v1, 15, v0")
    k.e("v_lshlrev_b32 v3, 3, v1")
    k.e("s_lshl_b32 s57, s53, 7")
    k.e("v_lshrrev_b32 v4, 3, v0")
    k.e(f"v_mul_u32_u24 v4, {RS}, v4")
    k.e("v_and_b32 v2, 7, v0")
    k.e("v_lshl_add_u32 v4, v2, 4, v4")
    k.e("s_mul_i32 s58, s9, 10")
    k.e("s_add_u32 s58, s58, s101")
    k.e(f"s_mul_i32 s58, s58, {8*RS}")
    k.e("s_lshl_b32 s59, s8, 7")
    k.e("s_add_u32 s58, s58, s59")
    k.e(f"v_mov_b32 v2, {CNT}")
    k.e("v_mul_u32_u24 v5, 160, v1")
    k.e("v_lshrrev_b32 v6, 4, v0")
    k.e("v_lshl_add_u32 v5, v6, 3, v5")
    k.e("v_add_u32 v5, s81, v5")
    k.e("v_lshrrev_b32 v36, 5, v0")
    k.e(f"v_mul_u32_u24 v36, {CONV_LDS}, v36")
    k.e("v_bfe_u32 v7, v0, 2, 3")
    k.e("v_lshl_add_u32 v36, v7, 7, v36")
    k.e("v_and_b32 v7, 3, v0")
    k.e("v_lshl_add_u32 v36, v7, 3, v36")
    k.e("s_lshl_b32 s59, s101, 5")
    k.e(f"s_add_u32 s59, s59, {RB0}")
    k.e("v_add_u32 v36, s59, v36")
    k.e("v_lshlrev_b32 v37, 4, v0")
    k.e("v_add_u32 v37, s81, v37")
    XR, YR, XF, SF = 16, 26, 40, 60
    k.e("s_waitcnt vmcnt(0)")
    for d in range(5): k.e(f"ds_read_b64 v[{XR+2*d}:{XR+2*d+1}], v5 offset:{XO + 32*d}")
    k.e("s_waitcnt lgkmcnt(0)")
    for d in range(5):
        for h in range(2): unpack(k, XF + 4*d + 2*h, XF + 4*d + 2*h + 1, XR + 2*d + h)
        if d < 3: k.e(f"ds_write_b128 v37, v[{XF+4*d}:{XF+4*d+3}] offset:{SO + 5120 + 1024*d}")
    k.e("s_setprio 0")
    k.e("s_cmp_eq_u32 s101, 0")
    k.e("s_cbranch_scc1 L_b_poller")
    lds_wait(k, "L_b_lw0", 2, 6, PROG, 60, sleep=flag("LSL", 16))
    lds_wait(k, "L_b_lwait", 2, 6, YOK, 60, sleep=2)
    k.e("s_setprio 3")
    k.e("s_branch L_b_go")
    k.e("L_b_poller:")
    k.e(f"s_mul_i32 s59, s9, {80 << YSH}")
    k.e(f"s_add_u32 s59, s59, {FY}")
    k.e(f"s_add_u32 s61, s59, {64 << YSH}")
    k.e(f"v_lshlrev_b32 v5, {YSH}, v0")
    k.e("v_add_u32 v7, s61, v5")
    k.e("s_lshr_b32 s10, s8, 3")
    k.e("s_lshl_b32 s10, s10, 1")
    k.e("s_and_b32 s11, s8, 1")
    k.e("s_add_u32 s10, s10, s11")
    k.e("s_and_b32 s11, s8, 6")
    k.e("s_lshl_b32 s11, s11, 2")
    k.e("s_add_u32 s10, s10, s11")
    k.e(f"s_add_u32 s10, s10, {224 + (FB >> 7)}")
    k.e("s_lshl_b32 s10, s10, 7")
    k.e("v_writelane_b32 v7, s10, 16")
    lds_wait(k, "L_b_aw", 2, 6, PROG, 60, sleep=flag("LSL2", 6))
    k.e("s_setprio 3")
    k.e("s_bfm_b64 exec, 17, 0")
    k.e(f"buffer_load_dwordx2 v[14:15], v7, s[{FSRD}:{FSRD+3}], 0 offen{SC1}")
    k.e("s_mov_b64 exec, -1")
    poll(k, "L_by", 12, 5, 59, 60, 64, sleep=8)
    poll(k, "L_by2", 14, 7, None, 60, 17, sleep=8, preloaded=True)
    k.e("v_mov_b32 v6, 1")
    k.e(f"ds_write_b32 v2, v6 offset:{YOK}")
    k.e("L_b_go:")
    stamp(k, 1, 3); stamp(k, 2, 3)
    k.e(f"buffer_load_dwordx2 v[12:13], v3, s[44:47], s57 offen{SC1}")
    for i in range(3):
        if i == 2:
            k.e("s_cmp_ge_u32 s101, 2")
            k.e("s_cbranch_scc1 L_b_noy")
        k.e(f"s_add_u32 m0, s81, {YO + 1024*i}")
        k.e(f"buffer_load_dwordx4 v4, s[68:71], s58 offen{SC1} lds")
        if i < 2: k.e(f"s_add_u32 s58, s58, {4*8*RS}")
    k.e("L_b_noy:")
    k.e("v_mov_b32 v3, 1")
    k.e("s_waitcnt vmcnt(2)")
    k.e("v_mul_f32 v38, 0xbfb8aa3b, v13")
    k.e("v_mul_f32 v39, 0xbfb8aa3b, v13")
    k.e(f"ds_write_b64 v37, v[38:39] offset:{SO + 10240}")
    for i in range(10):
        a, b = 80 + 2*i, 81 + 2*i
        k.e(f"v_sub_f32 v{a}, v{XF+2*i}, v12")
        k.e(f"v_sub_f32 v{b}, v{XF+2*i+1}, v12")
        k.e(f"v_cvt_pk_bf16_f32 v{b}, v{a}, v{b}")
        unpack(k, a, b, b)
        k.e(f"v_mul_f32 v{a}, v{a}, v13")
        k.e(f"v_mul_f32 v{b}, v{b}, v13")
        k.e(f"v_cvt_pk_bf16_f32 v{b}, v{a}, v{b}")
        unpack(k, a, b, b)
        k.e(f"v_mul_f32 v{a}, v{a}, v13")
        k.e(f"v_mul_f32 v{b}, v{b}, v13")
        if i == 4:
            k.e("s_waitcnt vmcnt(0)")
            k.e("s_mov_b64 exec, 1")
            k.e(f"ds_add_u32 v2, v3 offset:{YCNT}")
            k.e("s_mov_b64 exec, -1")
    k.e("L_b_cnt:")
    k.e(f"ds_read_b32 v3, v2 offset:{YCNT}")
    for d in range(5):
        k.e(f"ds_read_b64_tr_b16 v[{YR+2*d}:{YR+2*d+1}], v36 offset:{YO + 2*(d&1)*CONV_LDS + (d>>1)*1024}")
    k.e("s_waitcnt lgkmcnt(0)")
    k.e("v_readfirstlane_b32 s59, v3")
    k.e("s_cmp_lt_u32 s59, 4")
    k.e("s_cbranch_scc1 L_b_cnt")
    for d in range(5):
        for h in range(2):
            s = SF + 4*d + 2*h
            unpack(k, s, s+1, YR + 2*d + h)
            k.e(f"v_mul_f32 v{s}, v{s}, v{80+4*d+2*h}")
            k.e(f"v_mul_f32 v{s+1}, v{s+1}, v{81+4*d+2*h}")
        if d < 3: k.e(f"ds_write_b128 v37, v[{SF+4*d}:{SF+4*d+3}] offset:{SO + 1024*d}")
    b_tail(k)

def stats_rows(k, s_idx):
    k.e("s_and_b32 s10, s84, 6")
    k.e("s_lshl_b32 s10, s10, 8")
    k.e("s_lshr_b32 s11, s84, 3")
    k.e("s_lshl_b32 s11, s11, 7")
    k.e("s_add_u32 s10, s10, s11")
    k.e("s_and_b32 s11, s84, 1")
    k.e("s_lshl_b32 s11, s11, 6")
    k.e("s_add_u32 s10, s10, s11")
    k.e(f"s_lshl_b32 s11, s{s_idx}, 3")
    k.e("s_add_u32 s52, s10, s11")

def kernel():
    STS = flag("STS", 1); RLD = flag("RLD", 2); RST = flag("RST", 6)
    assert STS < RLD and RLD + (3 if flag('LKS', 99) > RLD else 4) <= RST <= 7
    k = Kern(NAME)
    stamp_begin(k)
    if flag("FIXT"): k.e("s_memrealtime s[96:97]")
    k.e("s_cmp_ge_u32 s2, 256")
    k.e("s_cbranch_scc1 L_end")
    load_ptrs(k)
    k.e("v_lshrrev_b32 v1, 6, v0")
    k.e("v_readfirstlane_b32 s3, v1")
    k.e("v_and_b32 v0, 63, v0")
    for i in range(4): k.e(f"v_mov_b32 v{4+i}, 0")
    k.e("v_and_b32 v1, 3, v0")
    k.e("v_lshlrev_b32 v1, 4, v1")
    k.e(f"v_add_u32 v1, {CNT}, v1")
    k.e("ds_write_b128 v1, v[4:7]")
    k.e("s_and_b32 s4, s2, 7")
    k.e("s_lshr_b32 s5, s2, 3")
    k.e("s_lshr_b32 s10, s4, 1")
    k.e("s_and_b32 s11, s4, 1")
    k.e("s_lshl_b32 s6, s10, 2")
    k.e("s_and_b32 s7, s5, 3")
    k.e("s_add_u32 s6, s6, s7")
    k.e("s_lshl_b32 s9, s11, 2")
    k.e("s_add_u32 s9, s9, s7")
    k.e("s_lshr_b32 s8, s5, 2")
    k.e("s_mul_i32 s7, s11, 7")
    k.e("s_add_u32 s7, s7, s8")
    k.e("s_lshl_b32 s10, s10, 3")
    k.e("s_add_u32 s8, s8, s10")
    if flag("MAP81"):
        k.e("s_lshl_b32 s6, s4, 1")
        k.e("s_and_b32 s7, s5, 1")
        k.e("s_add_u32 s6, s6, s7")
        k.e("s_lshr_b32 s7, s5, 1")
        k.e("s_lshl_b32 s8, s4, 2")
        k.e("s_lshr_b32 s9, s5, 3")
        k.e("s_add_u32 s8, s8, s9")
        k.e("s_and_b32 s9, s5, 7")
    k.e("s_and_b32 s101, s3, 3")
    k.e(f"s_mul_i32 s81, s101, {CONV_LDS}")
    k.e(f"s_add_u32 s81, s81, {RB0}")
    def flags_srd():
        srd(k, FSRD, P_WS, FL_BYTES, FL_OFF)
        k.e(f"s_load_dwordx2 s[{TAG}:{TAG+1}], s[{FSRD}:{FSRD+1}], {EP}")
    k.e("s_cmp_ge_u32 s2, 224")
    k.e("s_cbranch_scc1 L_free")
    k.e("s_cmp_lt_u32 s3, 4")
    k.e("s_cbranch_scc1 L_a")
    k.e(f"s_setprio {flag('PBL', 1)}")
    r = Rec(); k1.loader_setup(r, 6, 7, 101)
    for x in r.lines[8:]: k.e(x)
    k.e("s_waitcnt lgkmcnt(0)")
    for x in r.lines[:8]: k.e(x)
    vm = Vm(); last = {}
    def put(x):
        k.e(x)
        return vm.op() if is_vmem(x) else None
    def dma(st):
        for x in k1.dma(st):
            q = put(x)
            if q is not None: last[st] = q
    if flag("SB", 1): k.e("s_barrier")
    dma(0)
    flags_srd()
    k.e(f"v_mov_b32 v250, {CNT}")
    k.e("s_lshl_b32 s10, s101, 2")
    k.e(f"s_add_u32 s10, s10, {CNT + PB}")
    k.e("v_mov_b32 v248, s10")
    u_addr(k)
    rel1_addr(k)
    k.e("s_lshl_b32 s82, s2, 1")
    k.e("s_add_u32 s53, s2, 448")
    k.e("s_cmp_lt_u32 s2, 64")
    k.e("s_cselect_b32 s52, s53, 1000")
    k.e("s_cselect_b32 s53, s53, s82")
    watch_addr(k, 224, 82, 53)
    k.e("s_add_u32 s82, s82, s101")
    k.e("s_cmp_eq_u32 s101, 2")
    k.e("s_cselect_b32 s82, s52, s82")
    k.e("s_cmp_eq_u32 s101, 3")
    k.e("s_cselect_b32 s82, 1000, s82")
    k.e("s_lshl_b32 s83, s2, 7")
    k.e("s_waitcnt lgkmcnt(0)")
    make_tag(k)
    dma(1)
    PV = 252
    PUBS = STS + flag("PUBD", 3); st_idx = None
    k.e("s_cmp_eq_u32 s101, 2")
    k.e(f"s_cselect_b32 s83, s83, {OOB}")
    k.e("v_mov_b32 v249, 1")
    WPUB = RST + 2 if RST <= 5 else 99
    k.e("s_lshl_b32 s88, s2, 7")
    k.e(f"s_add_u32 s88, s88, {FB}")
    k.e("s_cmp_eq_u32 s101, 1")
    k.e(f"s_cselect_b32 s88, s88, {OOB}")
    for s in range(8):
        w = vm.wait(last[s])
        if s == PUBS: w = min(w, vm.wait(st_idx))
        if s == WPUB: w = min(w, vm.wait(rs_idx))
        k.e(f"s_waitcnt vmcnt({w})")
        k.e("s_barrier")
        if s == WPUB:
            publish(k, 88, 4); vm.op()
            stamp(k, 2, 1)
        if s == PUBS:
            publish(k, 83, 4); vm.op()
            stamp(k, 2, 0)
        if s == STS:
            for x in u_out():
                q = put(x)
                if q is not None: st_idx = q
        if s == RST:
            for x in rel1_reads(): k.e(x)
        LKS = flag("LKS", 99)
        if s < LKS: dma(s + 2)
        elif s == LKS:
            dma(s + 2); dma(s + 3)
        elif s + 3 < NSTAGE: dma(s + 3)
        if s == RST:
            for x in rel1_stores():
                q = put(x)
                if q is not None: rs_idx = q
        if s == RLD:
            for x in rel1_loads(): put(x)
    w8, w9 = vm.wait(last[8]), vm.wait(last[9]); wr = min(vm.wait(rs_idx), w9)
    W8P = flag('W8P', 0) and RST == 6
    if W8P: w8 = min(w8, vm.wait(rs_idx))
    k.e("s_cmp_lt_u32 s82, 640")
    k.e("s_cbranch_scc1 L_b_hasconv")
    k.e(f"s_waitcnt vmcnt({w8})")
    k.e("s_barrier")
    k.e("s_cmp_eq_u32 s101, 3")
    k.e("s_cbranch_scc1 L_b_w7")
    k.e(f"s_waitcnt vmcnt({w9})")
    for x in prog_write(248, 251, 1): k.e(x)
    k.e("s_waitcnt vmcnt(0)")
    for x in prog_write(248, 251, 2): k.e(x)
    k.e("s_branch L_b_aprep")
    k.e("L_b_w7:")
    pre = watch_pre(228, 224)
    k.e("s_setprio 3")
    if W8P:
        k.e("s_lshl_b32 s83, s2, 7")
        k.e(f"s_add_u32 s83, s83, {FB}")
        publish(k, 83, 4)
        stamp(k, 2, 1)
    k.e(pre[0])
    k.e(f"s_waitcnt vmcnt({w9 + 1 + W8P})")
    for x in prog_write(248, 251, 1): k.e(x)
    k.e("s_waitcnt vmcnt(0)")
    for x in prog_write(248, 251, 2): k.e(x)
    k.e(f"v_cmp_ne_u64 vcc, s[{TAG}:{TAG+1}], v[228:229]")
    k.e("s_cmp_eq_u64 vcc, 0")
    k.e("s_cbranch_scc0 L_b_n1")
    k.e(f"ds_write_b32 v250, v249 offset:{UOK}")
    k.e("L_b_n1:")
    if WPUB == 99 and not W8P:
        k.e("s_lshl_b32 s83, s2, 7")
        k.e(f"s_add_u32 s83, s83, {FB}")
        prog_wait(k, "L_b_rs", 250, PV, PB, 10, 2)
        publish(k, 83, 4)
        stamp(k, 2, 1)
    for _ in range(flag("WSL", 1)): k.e("s_sleep 16")
    k.e(pre[1])
    watch(k, "L_bw", 228, 224, flag("BSL", 4))
    stamp(k, 2, 2)
    k.e("s_cmp_lg_u32 s2, 0")
    k.e("s_cbranch_scc1 L_b_aprep")
    k.e("s_setprio 0")
    k.e("v_lshlrev_b32 v1, 7, v0")
    k.e(f"s_mov_b32 s83, {FB}")
    k.e("L_ep_next:")
    poll(k, "L_ep", 4, 1, 83, 10, 64, sleep=16)
    k.e("s_add_u32 s83, s83, 8192")
    k.e(f"s_cmp_lt_u32 s83, {FB + 32768}")
    k.e("s_cbranch_scc1 L_ep_next")
    k.e(f"s_mov_b32 s83, {EP}")
    publish(k, 83, 4)
    k.e("s_branch L_b_aprep")
    k.e("L_b_hasconv:")
    conv.conv2_setup(k, 82)
    k.e(f"s_waitcnt vmcnt({w8 + 2})")
    k.e("s_barrier")
    (conv.conv3_addr if C3 else conv.conv2_addr)(k, 81)
    k.e(f"s_waitcnt vmcnt({w9 + 2})")
    for x in prog_write(248, 251, 1): k.e(x)
    k.e(f"s_waitcnt vmcnt({wr + 2})")
    for x in prog_write(248, 251, 2): k.e(x)
    k.e("L_b_conv:")
    k.e(f"v_mov_b32 v250, {CNT}")
    (conv.conv3_dma if C3 else conv.conv2_dma)(k, 81)
    k.e(f"s_waitcnt vmcnt({8 if C3 else 16})")
    conv.conv2_fix(k)
    stamp(k, 1, 0)
    lds_wait(k, "L_b_uw", 250, 251, UOK, 80)
    conv.conv_setup_u(k, 82, 81, SC1)
    k.e("s_waitcnt vmcnt(0)")
    stamp(k, 1, 1); stamp(k, 3, 3)
    k.e(f"s_setprio {flag('PC', 1)}")
    (conv.conv3_main if C3 else conv.conv_main)(k, "f")
    stamp(k, 3, 0)
    k.e("s_setprio 3")
    conv.conv_epilogue(k, 82, SC1)
    stamp(k, 3, 1)
    k.e(f"s_lshl_b32 s10, s82, {YSH}")
    k.e(f"s_add_u32 s83, s10, {FY}")
    k.e("s_waitcnt vmcnt(0)")
    stamp(k, 3, 2)
    publish(k, 83, 4)
    stamp(k, 1, 2)
    k.e("L_b_aprep:")
    k.e("s_setprio 1")
    b_aprep(k)
    finish(k, 1)
    k.e("L_free:")
    for _ in range(flag("XFREE")): k.e("s_sleep 64")
    k.e("s_waitcnt lgkmcnt(0)")
    flags_srd()
    k.e("s_sub_u32 s84, s2, 224")
    k.e("s_mov_b32 s85, s3")
    k.e("s_cmp_eq_u32 s3, 7")
    k.e("s_cbranch_scc1 L_free_code" if flag("CPF", 1) else "s_cbranch_scc1 L_free_sync")
    k.e("s_cmp_lt_u32 s3, 4")
    k.e("s_cbranch_scc1 L_free_stats")
    k.e("s_setprio 2")
    k.e("s_mul_i32 s85, s84, 3")
    k.e("s_add_u32 s85, s85, s101")
    k.e("s_add_u32 s85, s85, 224")
    aux.emit_prep(k, 85, 81, SC1)
    make_tag(k)
    k.e("s_lshl_b32 s85, s85, 7")
    k.e("s_waitcnt vmcnt(0)")
    publish(k, 85, 4)
    k.e("s_barrier")
    k.e("s_branch L_free_b")
    if flag("CPF", 1):
        k.e("L_free_code:")
        k.e("s_setprio 3")
        k.e("s_getpc_b64 s[40:41]")
        k.e("L_pc:")
        k.e(f"s_sub_u32 s40, s40, L_pc-{NAME}")
        k.e("s_subb_u32 s41, s41, 0")
        k.e(f"s_mov_b32 s42, L_end-{NAME}")
        k.e("s_mov_b32 s43, 0x20000")
        k.e("v_lshlrev_b32 v1, 7, v0")
        k.e("s_mov_b32 s44, 0")
        for i in range(4):
            k.e(f"buffer_load_dword v{8+i}, v1, s[40:43], s44 offen")
            k.e("s_add_u32 s44, s44, 8192")
        k.e("s_setprio 0")
        if AGG:
            k.e("s_waitcnt lgkmcnt(0)")
            make_tag(k)
            k.e("s_cmp_ge_u32 s84, 10")
            k.e("s_cbranch_scc1 L_free_noagg")
            k.e("v_mul_u32_u24 v2, 1280, v0")
            k.e("s_lshl_b32 s85, s84, 7")
            for _ in range(flag("UAGS", 3)): k.e("s_sleep 40")
            k.e("s_setprio 3")
            poll(k, "L_agu", 4, 2, 85, 10, 32, sleep=8)
            k.e(f"s_add_u32 s85, s85, {FS}")
            publish(k, 85, 4)
            k.e("L_free_noagg:")
            k.e("s_barrier")
            k.e("s_branch L_free_b")
        k.e("s_branch L_free_sync")
    k.e("L_free_stats:")
    stats_rows(k, 85)
    aux.emit_stats(k, 52, SC1)
    k.e("s_add_u32 s85, s85, 4")
    k.e("s_cmp_lt_u32 s85, 8")
    k.e("s_cbranch_scc1 L_free_stats")
    k.e("L_free_sync:")
    k.e("s_waitcnt vmcnt(0) lgkmcnt(0)")
    k.e("s_barrier")
    make_tag(k)
    k.e("s_cmp_lt_u32 s3, 4")
    k.e("s_cbranch_scc1 L_free_a")
    k.e("L_free_b:")
    k.e("s_setprio 1")
    k.e("s_lshl_b32 s82, s84, 2")
    k.e("s_add_u32 s82, s82, s101")
    k.e("s_add_u32 s82, s82, 512")
    conv.conv2_setup(k, 82)
    (conv.conv3_addr if C3 else conv.conv2_addr)(k, 81)
    k.e("s_branch L_b_conv")
    k.e("L_free_a:")
    g2_offsets(k)
    srd(k, 44, P_WS, NB_W, W2_OFF)
    k.e("v_lshlrev_b32 v1, 4, v0")
    k.e("v_add_u32 v2, 4096, v1")
    if flag("XLEAD"):
        k.e("v_lshlrev_b32 v30, 7, v0")
        k.e("s_mov_b32 s10, s77")
        for i in range(9):
            k.e(f"buffer_load_dword v{32+i}, v30, s[44:47], s10 offen{SC1}")
            k.e("s_add_u32 s10, s10, 8192")
    if AGG:
        k.e("s_sub_u32 s85, s84, 10")
        k.e("s_cmp_lt_u32 s85, 4")
        k.e("s_cselect_b32 s10, s3, 0")
        k.e("s_cmp_lg_u32 s10, 1")
        k.e("s_cbranch_scc1 L_free_noaw")
        k.e("s_setprio 3")
        k.e("v_lshlrev_b32 v8, 9, v0")
        k.e("s_lshl_b32 s85, s85, 7")
        k.e(f"s_add_u32 s86, s85, {FB}")
        poll(k, "L_agw", 10, 8, 86, 10, 54, sleep=flag("WAGS", 4))
        k.e(f"s_add_u32 s85, s85, {FS + 1280}")
        publish(k, 85, 10)
        k.e("L_free_noaw:")
    k.e("s_cmp_lg_u32 s3, 0")
    k.e("s_cbranch_scc1 L_g2w")
    k.e("s_lshl_b32 s83, s2, 7")
    k.e(f"s_add_u32 s83, s83, {FB}")
    publish(k, 83, 4)
    k.e("s_lshl_b32 s62, s84, 2")
    k.e("s_add_u32 s62, s62, 512")
    watch_addr(k, 16, 62, 62)
    if flag("FLATE"):
        k.e(watch_pre(20, 16)[0])
        watch(k, "L_fw", 20, 16, flag("FSL", 4), lambda: [k.e("s_sleep 32") for _ in range(flag("FLATE"))])
    else:
        for x in watch_pre(20, 16): k.e(x)
        watch(k, "L_fw", 20, 16, flag("FSL", 4))
    k.e("s_branch L_g2w")
    k.e("L_a:")
    k.e("s_setprio 3")
    prep_addr(k)
    k.e("s_waitcnt lgkmcnt(0)")
    prep_loads(k)
    if flag("SB", 1): k.e("s_barrier")
    k.e(f"s_setprio {flag('PAL', 0)}")
    flags_srd()
    g2_offsets(k)
    g1_setup(k)
    k.e("s_waitcnt lgkmcnt(0)")
    make_tag(k)
    prep_compute(k)
    if flag("FIXG"):
        srd(k, 12, P_DBG, 256)
        k.e("s_not_b32 s98, s96")
        k.e("v_mov_b32 v240, s98")
        k.e("v_mov_b32 v241, 0")
        k.e("s_cmp_lg_u32 s3, 0")
        k.e("s_cbranch_scc1 L_nog")
        k.e("s_mov_b64 exec, 1")
        k.e("buffer_atomic_umax v240, v241, s[12:15], 0 offen sc1")
        k.e("s_mov_b64 exec, -1")
        k.e("L_nog:")
    g1_phase(k)
    g2_phase(k)
    if flag("FIXT"):
        if flag("FIXG"):
            srd(k, 12, P_DBG, 256)
            k.e("v_mov_b32 v241, 0")
            k.e("buffer_load_dword v240, v241, s[12:15], 0 offen sc1")
            k.e("s_waitcnt vmcnt(0)")
            k.e("v_readfirstlane_b32 s96, v240")
            k.e("s_not_b32 s96, s96")
        k.e("L_fix:")
        k.e("s_memrealtime s[98:99]")
        k.e("s_waitcnt lgkmcnt(0)")
        k.e("s_sub_u32 s98, s98, s96")
        k.e(f"s_cmp_lt_u32 s98, {flag('FIXT')}")
        k.e("s_cbranch_scc1 L_fix")
    finish(k, 0)
    k.e("L_end:")
    k.e("s_endpgm")
    return k

if __name__ == "__main__":
    import sys
    hdr = open("recurrent_scan__ssm_conv_h3__dense_activation_relu__prompt.s.ref").read().split("; Override")[0]
    k = kernel()
    out = hdr + f"; @launch grid=(256,1,1) block=(512,1,1) lds={LDS_BYTES}\n"
    out += '.amdgcn_target "amdgcn-amd-amdhsa--gfx950"\n.text\n' + k.body() + '.section .rodata,"a"\n' + k.desc()
    open(sys.argv[1], "w").write(out)
```

```python
from common import *
import aux, conv, k1
from conv import interleave, CONV_LDS
from k1 import Vm, is_vmem, SLOT, WPART, NSTAGE, Rec

NAME = "recurrent_scan__ssm_conv_h3__dense_activation_relu__prompt_kernel"
SC1 = " sc1"
OOB = 0x40000000
RB0 = 65536
EA = 131072
TOP = RB0 + 4 * CONV_LDS
RLB = 135168
CNT = 163776
LDS_BYTES = 163840
YCNT, YOK, AUXOK, UOK, PROG, PA, PB = 0, 4, 12, 16, 20, 32, 48
XO, YO, SO = 0, 3072, 6144
HSH = 7; YSH = flag("YSH", 3)
FA, EP, FB, FH = 0, 40960, 45056, 77824
FY = FH + (1024 << 7)
FS = FY + (640 << 7)
FL_BYTES = FS + (16 << 7)
AGG = flag('AGG', 0)
TAG, FSRD = 90, 92
SPIN_MAX = 0x20000
NSTEP, NH, NW = 14, 4, 5
G_ACC, G_H = 8, 88
W_SL = [176, 196, 216, 236, 156]
C3 = flag("C3", 1)
EWI = flag("EWI", 0)
EPI = flag("EPI", 1)
AWP = flag("AWP", 0)
ST = flag("ST", 0)
def stamp(k, setno, i):
    if ST == setno: stamp_mid(k, i)
def cstamp(k, name, i):
    if STAMP and os.environ.get("CK", "").split(",")[i:i+1] == [name]:
        stamp_mid(k, 2*i)
        k.e("s_memtime s[10:11]")
        k.e("s_waitcnt lgkmcnt(0)")
        k.e(f"s_mov_b32 s{13+2*i}, s10")
def cs(k, name):
    cstamp(k, name, 0); cstamp(k, name, 1)

def make_tag(k):
    k.e(f"s_mul_i32 s{TAG}, s{TAG}, 1664525")
    k.e(f"s_add_u32 s{TAG}, s{TAG}, 1013904223")
    k.e(f"s_mul_i32 s{TAG+1}, s{TAG+1}, 22695477")
    k.e(f"s_add_u32 s{TAG+1}, s{TAG+1}, 1")

HSC = '' if flag('HPLAIN') else SC1
def publish(k, s_off, va, SC1=SC1):
    k.e(f"v_mov_b32 v{va}, s{TAG}")
    k.e(f"v_mov_b32 v{va+1}, s{TAG+1}")
    k.e(f"v_mov_b32 v{va+2}, 0")
    k.e("s_mov_b64 exec, 1")
    k.e(f"buffer_store_dwordx2 v[{va}:{va+1}], v{va+2}, s[{FSRD}:{FSRD+3}], s{s_off} offen{SC1}")
    k.e("s_mov_b64 exec, -1")

def poll(k, lbl, vd, voff, s_off, s_cnt, nlanes, sleep=4, preloaded=False):
    so = f"s{s_off}" if s_off is not None else "0"
    k.e(f"s_mov_b32 s{s_cnt}, 0")
    if nlanes < 64: k.e(f"s_bfm_b64 exec, {nlanes}, 0")
    if preloaded: k.e(f"s_branch {lbl}_chk")
    k.e(f"{lbl}:")
    k.e(f"buffer_load_dwordx2 v[{vd}:{vd+1}], v{voff}, s[{FSRD}:{FSRD+3}], {so} offen{SC1}")
    k.e("s_waitcnt vmcnt(0)")
    k.e(f"{lbl}_chk:")
    k.e(f"v_cmp_ne_u64 vcc, s[{TAG}:{TAG+1}], v[{vd}:{vd+1}]")
    k.e("s_and_b64 exec, exec, vcc")
    k.e(f"s_cbranch_scc0 {lbl}_ok")
    k.e(f"s_sleep {sleep}")
    k.e(f"s_add_u32 s{s_cnt}, s{s_cnt}, 1")
    k.e(f"s_cmp_lt_u32 s{s_cnt}, {SPIN_MAX:#x}")
    k.e(f"s_cbranch_scc1 {lbl}")
    k.e(f"{lbl}_ok:")
    k.e("s_mov_b64 exec, -1")

def lds_wait(k, lbl, vaddr, vtmp, off, s_tmp, sleep=2):
    k.e(f"{lbl}:")
    k.e(f"ds_read_b32 v{vtmp}, v{vaddr} offset:{off}")
    k.e("s_waitcnt lgkmcnt(0)")
    k.e(f"v_readfirstlane_b32 s{s_tmp}, v{vtmp}")
    k.e(f"s_cmp_lg_u32 s{s_tmp}, 0")
    k.e(f"s_cbranch_scc1 {lbl}_ok")
    k.e(f"s_sleep {sleep}")
    k.e(f"s_branch {lbl}")
    k.e(f"{lbl}_ok:")

def prog_write(vaddr, vtmp, val):
    return [f"v_mov_b32 v{vtmp}, {val}", f"s_mov_b64 exec, 1\nds_write_b32 v{vaddr}, v{vtmp}\ns_mov_b64 exec, -1"]
def prog_min(vd, s_tmp):
    return [f"v_min3_u32 v{vd}, v{vd}, v{vd+1}, v{vd+2}", f"v_min_u32 v{vd}, v{vd}, v{vd+3}", f"v_readfirstlane_b32 s{s_tmp}, v{vd}"]
def prog_spin(k, lbl, vcnt, vd, off, s_tmp, need, sleep=0):
    k.e(f"s_cmp_ge_u32 s{s_tmp}, {need}")
    k.e(f"s_cbranch_scc1 {lbl}_ok")
    k.e(f"{lbl}:")
    if sleep: k.e(f"s_sleep {sleep}")
    k.e(f"ds_read_b128 v[{vd}:{vd+3}], v{vcnt} offset:{off}")
    k.e("s_waitcnt lgkmcnt(0)")
    for x in prog_min(vd, s_tmp): k.e(x)
    k.e(f"s_cmp_lt_u32 s{s_tmp}, {need}")
    k.e(f"s_cbranch_scc1 {lbl}")
    k.e(f"{lbl}_ok:")
def prog_wait(k, lbl, vcnt, vd, off, s_tmp, need, sleep=1):
    k.e(f"s_mov_b32 s{s_tmp}, 0")
    prog_spin(k, lbl, vcnt, vd, off, s_tmp, need, sleep)

def watch_addr(k, va, s_cha, s_chb):
    if AGG:
        k.e("s_lshr_b32 s10, s9, 1")
        k.e(f"s_add_u32 s10, s10, {10 + (FS >> 7)}")
        k.e("s_lshl_b32 s10, s10, 7")
        k.e(f"v_mov_b32 v{va}, s10")
        k.e(f"s_lshr_b32 s10, s{s_cha}, 6")
        k.e(f"s_lshr_b32 s11, s{s_chb}, 6")
        k.e(f"v_mov_b32 v{va+1}, s11")
        k.e(f"v_writelane_b32 v{va+1}, s10, 0")
        k.e(f"v_lshlrev_b32 v{va+1}, 7, v{va+1}")
        k.e(f"v_add_u32 v{va+1}, {FS}, v{va+1}")
        return
    k.e("s_lshr_b32 s10, s9, 1")
    k.e(f"s_add_u32 s10, s10, {FB >> 7}")
    k.e(f"v_lshl_add_u32 v{va}, v0, 2, s10")
    k.e(f"v_mov_b32 v{va+1}, s10")
    k.e("v_cmp_gt_u32 vcc, 54, v0")
    k.e(f"v_cndmask_b32 v{va}, v{va+1}, v{va}, vcc")
    k.e(f"v_lshlrev_b32 v{va}, 7, v{va}")
    k.e(f"s_lshr_b32 s10, s{s_cha}, 6")
    k.e(f"s_lshr_b32 s11, s{s_chb}, 6")
    k.e(f"v_mov_b32 v{va+1}, s11")
    k.e(f"v_mov_b32 v{va+2}, s10")
    k.e("v_cmp_gt_u32 vcc, 32, v0")
    k.e(f"v_cndmask_b32 v{va+1}, v{va+1}, v{va+2}, vcc")
    k.e(f"v_and_b32 v{va+2}, 31, v0")
    k.e(f"v_mad_u32_u24 v{va+1}, v{va+2}, 10, v{va+1}")
    k.e(f"v_lshlrev_b32 v{va+1}, 7, v{va+1}")
def watch_pre(vd, va):
    return [f"buffer_load_dwordx2 v[{vd}:{vd+1}], v{va+1}, s[{FSRD}:{FSRD+3}], 0 offen{SC1}",
            f"buffer_load_dwordx2 v[{vd+2}:{vd+3}], v{va}, s[{FSRD}:{FSRD+3}], 0 offen{SC1}"]
def watch(k, lbl, vd, va, sl=4, late=None):
    k.e("s_waitcnt vmcnt(0)")
    poll(k, lbl + "a", vd, va + 1, None, 10, 64, sleep=sl, preloaded=True)
    k.e(f"v_mov_b32 v{vd}, {CNT}")
    k.e(f"v_mov_b32 v{vd+1}, 1")
    k.e(f"ds_write_b32 v{vd}, v{vd+1} offset:{UOK}")
    if late: late()
    poll(k, lbl + "b", vd + 2, va, None, 10, 64, sleep=sl, preloaded=not late)
    k.e(f"ds_write_b32 v{vd}, v{vd+1} offset:{AUXOK}")

def xo_offsets(k, vb, t1, t2):
    k.e("s_lshl_b32 s53, s8, 2")
    k.e("s_add_u32 s53, s53, s101")
    k.e("s_mul_i32 s54, s53, 20480")
    k.e("s_mul_i32 s55, s9, 160")
    k.e("s_add_u32 s54, s54, s55")
    for i in range(3):
        k.e(f"v_add_u32 v{t1}, {64*i}, v0")
        k.e(f"v_mul_u32_u24 v{t2}, 6554, v{t1}")
        k.e(f"v_lshrrev_b32 v{t2}, 16, v{t2}")
        k.e(f"v_mul_u32_u24 v{t2}, 1120, v{t2}")
        k.e(f"v_lshl_add_u32 v{vb+i}, v{t1}, 4, v{t2}")
    k.e(f"v_mov_b32 v{t2}, {OOB}")
    k.e("v_cmp_gt_u32 vcc, 32, v0")
    k.e(f"v_cndmask_b32 v{vb+2}, v{t2}, v{vb+2}, vcc")

def unit_ids(k, s_rb, s_cgp):
    k.e(f"s_mul_i32 s{s_rb}, s2, 6554")
    k.e(f"s_lshr_b32 s{s_rb}, s{s_rb}, 16")
    k.e(f"s_mul_i32 s{s_cgp}, s{s_rb}, 10")
    k.e(f"s_sub_u32 s{s_cgp}, s2, s{s_cgp}")
def prep_addr(k):
    unit_ids(k, 52, 53)
    k.e("s_lshl_b32 s54, s52, 2")
    k.e("s_add_u32 s54, s54, s101")
    k.e("s_mul_i32 s54, s54, 20480")
    k.e("s_lshl_b32 s55, s53, 7")
    k.e("s_add_u32 s54, s54, s55")
    k.e("v_lshrrev_b32 v1, 3, v0")
    k.e("v_mul_u32_u24 v2, 1280, v1")
    k.e("v_and_b32 v3, 7, v0")
    k.e("v_lshl_add_u32 v2, v3, 4, v2")
    if flag("XNOPL"): k.e(f"s_mov_b32 s54, {OOB}")
    k.e("v_add_u32 v200, s54, v2")
    k.e("v_subrev_u32 v201, 3840, v200")
    k.e(f"v_add_u32 v202, {10240 - 3840 - 1024}, v200")
    k.e(f"v_add_u32 v203, {20480 - 3840 - 2048}, v200")
    k.e(f"v_mov_b32 v6, {OOB}")
    k.e("v_cmp_gt_u32 vcc, 24, v0")
    k.e("v_cndmask_b32 v203, v6, v203, vcc")
    k.e(f"v_add_u32 v204, {10240 - 1024}, v200")
    k.e("s_mul_i32 s56, s101, 5120")
    k.e(f"s_add_u32 s56, s56, {EA}")
    k.e("v_and_b32 v7, 31, v0")
    k.e("s_lshl_b32 s55, s53, 9")
    k.e("v_lshl_add_u32 v205, v7, 4, s55")
def prep_loads(k):
    srd(k, 40, P_K, NB_X)
    k.e("s_mov_b32 m0, s56")
    k.e("buffer_load_dwordx4 v201, s[40:43], 0 offen lds")
    k.e("buffer_load_dwordx4 v202, s[40:43], 0 offen offset:1024 lds")
    k.e("buffer_load_dwordx4 v203, s[40:43], 0 offen offset:2048 lds")
    srd(k, 44, P_V, NB_X)
    k.e("s_add_u32 m0, s56, 3072")
    k.e("buffer_load_dwordx4 v200, s[44:47], 0 offen lds")
    k.e("buffer_load_dwordx4 v204, s[44:47], 0 offen offset:1024 lds")
    srd(k, 48, P_SH, D * 8)
    k.e("buffer_load_dwordx4 v[212:215], v205, s[48:51], 0 offen")
    k.e("v_lshrrev_b32 v9, 5, v0")
    k.e("v_lshlrev_b32 v10, 10, v9")
    k.e("v_lshl_add_u32 v10, v7, 2, v10")
    k.e("v_add_u32 v209, s56, v10")
    k.e("v_sub_u32 v11, 1, v9")
    k.e("v_lshlrev_b32 v11, 4, v11")
    k.e("v_lshl_add_u32 v11, v7, 6, v11")
    k.e("v_add_u32 v210, s56, v11")
def prep_compute(k):
    KR, VR, TP, KU, VU, KV, OUT = 112, 124, 132, 140, 216, 180, 184
    k.e("s_waitcnt vmcnt(0)")
    for j in range(11): k.e(f"ds_read_b32 v{KR+j}, v209 offset:{128*j}")
    for j in range(8): k.e(f"ds_read_b32 v{VR+j}, v209 offset:{3072 + 128*j}")
    for c in range(2):
        unpack(k, TP + 0 + c, TP + 2 + c, 212 + 2*c)
        unpack(k, TP + 4 + c, TP + 6 + c, 213 + 2*c)
    k.e("s_waitcnt lgkmcnt(8)")
    for j in range(11): unpack(k, KU + 2*j, KU + 2*j + 1, KR + j)
    k.e("s_waitcnt lgkmcnt(0)")
    for j in range(8): unpack(k, VU + 2*j, VU + 2*j + 1, VR + j)
    for r in range(8):
        d = KV + 2*(r & 1)
        for j in (3, 2, 1, 0):
            w = KU + 2*(r + 3 - j); t = TP + 2*j
            if j == 3: k.e(f"v_pk_mul_f32 v[{d}:{d+1}], v[{w}:{w+1}], v[{t}:{t+1}]")
            else: k.e(f"v_pk_fma_f32 v[{d}:{d+1}], v[{w}:{w+1}], v[{t}:{t+1}], v[{d}:{d+1}]")
        k.e(f"v_pk_mul_f32 v[{d}:{d+1}], v[{d}:{d+1}], v[{VU+2*r}:{VU+2*r+1}]")
        if r & 1:
            for c in range(2):
                k.e(f"v_cvt_pk_bf16_f32 v{OUT+4*c+3-r//2}, v{KV+2+c}, v{KV+c}")
    for c in range(2):
        k.e(f"ds_write_b128 v210, v[{OUT+4*c}:{OUT+4*c+3}] offset:{32*c}")

def b_aux_addr(k):
    srd(k, 84, P_W2, NB_W)
    srd(k, 44, P_WS, NB_W, W2_OFF)
    srd(k, 40, P_WS, NB_T, UR_OFF)
    k.e("s_lshr_b32 s57, s2, 2")
    k.e("s_and_b32 s58, s2, 3")
    k.e("s_mul_i32 s59, s57, 40960")
    k.e("s_mul_i32 s60, s58, 320")
    k.e("s_add_u32 s59, s59, s60")
    k.e("s_lshl_b32 s60, s101, 6")
    k.e("s_lshl_b32 s61, s101, 10")
    for i in range(3):
        k.e("v_add_u32 v9, s60, v0")
        if i: k.e(f"v_add_u32 v9, {256*i}, v9")
        k.e("v_mul_u32_u24 v10, 52429, v9")
        k.e("v_lshrrev_b32 v10, 20, v10")
        k.e("v_mul_u32_u24 v10, 960, v10")
        k.e(f"v_lshl_add_u32 v{206+i}, v9, 4, v10")
    k.e("s_cmp_ge_u32 s101, 2")
    k.e(f"s_cselect_b32 s60, {OOB}, 0")
    k.e("v_add_u32 v208, s60, v208")
    k.e(f"s_add_u32 s62, s61, {EA + 20480 + 8192}")
    k.e("s_cmp_ge_u32 s101, 2")
    k.e(f"s_cselect_b32 s62, {EA + 30720}, s62")
def b_aux_addr2(k):
    k.e("s_lshr_b32 s10, s101, 1")
    k.e("s_and_b32 s11, s101, 1")
    k.e("s_mul_i32 s60, s10, 5")
    k.e("s_mul_i32 s54, s11, 3")
    k.e("s_add_u32 s60, s60, s54")
    k.e("s_lshl_b32 s60, s60, 5")
    k.e(f"s_add_u32 s60, s60, {EA + 20480}")
    k.e("v_lshrrev_b32 v11, 2, v0")
    k.e("v_mul_u32_u24 v11, 320, v11")
    k.e("v_and_b32 v12, 3, v0")
    k.e("v_lshl_add_u32 v11, v12, 3, v11")
    k.e("v_add_u32 v214, s60, v11")
    k.e("s_lshl_b32 s60, s58, 1")
    k.e("s_add_u32 s60, s60, s10")
    k.e(f"s_mul_i32 s89, s60, {NT}")
    k.e("s_add_u32 s89, s89, s57")
    k.e("s_mul_i32 s89, s89, 5120")
    k.e("s_lshl_b32 s54, s54, 10")
    k.e("s_add_u32 s89, s89, s54")
    k.e("s_cmp_ge_u32 s2, 216")
    k.e(f"s_cselect_b32 s89, {OOB}, s89")
    if flag("XNOW"): k.e(f"s_mov_b32 s89, {OOB}")
    k.e("v_lshlrev_b32 v215, 4, v0")
    k.e("s_cmp_eq_u32 s11, 1")
    k.e(f"s_cselect_b32 s54, {OOB}, 0")
    k.e("v_add_u32 v216, s54, v215")
    unit_ids(k, 52, 53)
    k.e("v_lshrrev_b32 v1, 3, v0")
    k.e("v_and_b32 v3, 7, v0")
    k.e("v_lshrrev_b32 v11, 1, v3")
    k.e("v_sub_u32 v11, 3, v11")
    k.e("v_mul_u32_u24 v11, 5120, v11")
    k.e("v_lshl_add_u32 v11, v1, 5, v11")
    k.e("v_and_b32 v12, 1, v3")
    k.e("v_lshl_add_u32 v11, v12, 4, v11")
    k.e("s_lshl_b32 s55, s101, 9")
    k.e(f"s_add_u32 s55, s55, {EA}")
    k.e("v_add_u32 v211, s55, v11")
    k.e(f"v_mul_u32_u24 v232, {RS}, v1")
    k.e("v_lshl_add_u32 v232, v3, 4, v232")
    k.e(f"v_add_u32 v233, {8*RS}, v232")
    k.e("s_lshl_b32 s63, s53, 2")
    k.e("s_add_u32 s63, s63, s101")
    k.e(f"s_mul_i32 s63, s63, {16*RS}")
    k.e("s_lshl_b32 s55, s52, 7")
    k.e("s_sub_u32 s55, 3968, s55")
    k.e("s_add_u32 s63, s63, s55")
    if flag("XNOST"):
        k.e(f"s_mov_b32 s63, {OOB}")
        k.e(f"s_mov_b32 s89, {OOB}")
def rel_loads():
    return [f"s_add_u32 m0, s61, {EA + 20480}",
            "buffer_load_dwordx4 v206, s[84:87], s59 offen lds",
            f"s_add_u32 m0, s61, {EA + 20480 + 4096}",
            "buffer_load_dwordx4 v207, s[84:87], s59 offen lds",
            "s_mov_b32 m0, s62",
            "buffer_load_dwordx4 v208, s[84:87], s59 offen lds"]
def aux_out():
    L = [f"ds_read_b128 v[{100+4*i}:{103+4*i}], v211 offset:{256*i}" for i in range(2)]
    for i in range(3):
        L.append(f"ds_read_b64_tr_b16 v[{188+4*i}:{189+4*i}], v214 offset:{32*i}")
        L.append(f"ds_read_b64_tr_b16 v[{190+4*i}:{191+4*i}], v214 offset:{32*i + 5120}")
    L.append("s_waitcnt lgkmcnt(0)")
    L += [f"buffer_store_dwordx4 v[{100+4*i}:{103+4*i}], v{232+i}, s[40:43], s63 offen{SC1}" for i in range(2)]
    L += [f"buffer_store_dwordx4 v[{188+4*i}:{191+4*i}], v{216 if i == 2 else 215}, s[44:47], s89 offen offset:{1024*i}{SC1}" for i in range(3)]
    return L

def rel1_addr(k):
    srd(k, 84, P_W2, NB_W)
    srd(k, 44, P_WS, NB_W, W2_OFF)
    k.e("s_lshr_b32 s57, s2, 2")
    k.e("s_and_b32 s58, s2, 3")
    k.e("s_mul_i32 s59, s57, 40960")
    k.e("s_mul_i32 s60, s58, 320")
    k.e("s_add_u32 s59, s59, s60")
    k.e("s_lshl_b32 s60, s101, 6")
    k.e("s_lshl_b32 s61, s101, 10")
    for i in range(3):
        k.e("v_add_u32 v9, s60, v0")
        if i: k.e(f"v_add_u32 v9, {256*i}, v9")
        k.e("v_mul_u32_u24 v10, 52429, v9")
        k.e("v_lshrrev_b32 v10, 20, v10")
        k.e("v_mul_u32_u24 v10, 960, v10")
        k.e(f"v_lshl_add_u32 v{110+i}, v9, 4, v10")
    k.e("s_cmp_ge_u32 s101, 2")
    k.e(f"s_cselect_b32 s60, {OOB}, 0")
    k.e("v_add_u32 v112, s60, v112")
    k.e("v_lshrrev_b32 v11, 2, v0")
    k.e("v_mul_u32_u24 v11, 320, v11")
    k.e("v_and_b32 v12, 3, v0")
    k.e("v_lshl_add_u32 v11, v12, 3, v11")
    k.e("s_lshr_b32 s10, s101, 1")
    k.e("s_and_b32 s11, s101, 1")
    k.e("s_mul_i32 s60, s10, 5")
    k.e("s_mul_i32 s54, s11, 3")
    k.e("s_add_u32 s60, s60, s54")
    k.e("s_lshl_b32 s60, s60, 5")
    k.e(f"s_add_u32 s60, s60, {RLB}")
    k.e("v_add_u32 v214, s60, v11")
    k.e("s_lshl_b32 s60, s58, 1")
    k.e("s_add_u32 s60, s60, s10")
    k.e(f"s_mul_i32 s89, s60, {NT}")
    k.e("s_add_u32 s89, s89, s57")
    k.e("s_mul_i32 s89, s89, 5120")
    k.e("s_lshl_b32 s54, s54, 10")
    k.e("s_add_u32 s89, s89, s54")
    k.e("s_cmp_ge_u32 s2, 216")
    k.e(f"s_cselect_b32 s89, {OOB}, s89")
    if flag("XNOW"): k.e(f"s_mov_b32 s89, {OOB}")
    k.e("v_lshlrev_b32 v215, 4, v0")
    k.e("s_cmp_eq_u32 s11, 1")
    k.e(f"s_cselect_b32 s54, {OOB}, 0")
    k.e("v_add_u32 v216, s54, v215")
def rel1_loads():
    L = []
    for i in range(3):
        L.append(f"s_add_u32 m0, s61, {RLB + 4096*i}")
        L.append(f"buffer_load_dwordx4 v{110+i}, s[84:87], s59 offen lds")
    return L
def rel1_reads():
    L = []
    for i in range(3):
        L.append(f"ds_read_b64_tr_b16 v[{188+4*i}:{189+4*i}], v214 offset:{32*i}")
        L.append(f"ds_read_b64_tr_b16 v[{190+4*i}:{191+4*i}], v214 offset:{32*i + 5120}")
    return L
def rel1_stores():
    return ["s_waitcnt lgkmcnt(0)"] + [f"buffer_store_dwordx4 v[{188+4*i}:{191+4*i}], v{216 if i == 2 else 215}, s[44:47], s89 offen offset:{1024*i}{SC1}" for i in range(3)]
def u_addr(k):
    srd(k, 40, P_WS, NB_T, UR_OFF)
    unit_ids(k, 52, 53)
    k.e("v_lshrrev_b32 v1, 3, v0")
    k.e("v_and_b32 v3, 7, v0")
    k.e("v_lshrrev_b32 v11, 1, v3")
    k.e("v_sub_u32 v11, 3, v11")
    k.e("v_mul_u32_u24 v11, 5120, v11")
    k.e("v_lshl_add_u32 v11, v1, 5, v11")
    k.e("v_and_b32 v12, 1, v3")
    k.e("v_lshl_add_u32 v11, v12, 4, v11")
    k.e("s_lshl_b32 s55, s101, 9")
    k.e(f"s_add_u32 s55, s55, {EA}")
    k.e("v_add_u32 v211, s55, v11")
    k.e(f"v_mul_u32_u24 v232, {RS}, v1")
    k.e("v_lshl_add_u32 v232, v3, 4, v232")
    k.e(f"v_add_u32 v233, {8*RS}, v232")
    k.e("s_lshl_b32 s63, s53, 2")
    k.e("s_add_u32 s63, s63, s101")
    k.e(f"s_mul_i32 s63, s63, {16*RS}")
    k.e("s_lshl_b32 s55, s52, 7")
    k.e("s_sub_u32 s55, 3968, s55")
    k.e("s_add_u32 s63, s63, s55")
def u_out():
    L = [f"ds_read_b128 v[{100+4*i}:{103+4*i}], v211 offset:{256*i}" for i in range(2)]
    L.append("s_waitcnt lgkmcnt(0)")
    L += [f"buffer_store_dwordx4 v[{100+4*i}:{103+4*i}], v{232+i}, s[40:43], s63 offen{SC1}" for i in range(2)]
    return L

def g2_offsets(k):
    k.e("s_mul_i32 s10, s101, 14")
    k.e("s_cmp_eq_u32 s101, 3")
    k.e("s_cselect_b32 s10, 41, s10")
    k.e(f"s_mul_i32 s11, s8, {NT}")
    k.e("s_add_u32 s11, s11, s10")
    k.e("s_lshl_b32 s76, s11, 12")
    k.e(f"s_mul_i32 s11, s9, {NT}")
    k.e("s_add_u32 s11, s11, s10")
    k.e("s_mul_i32 s77, s11, 5120")
    k.e("s_cmp_ge_u32 s101, 2")
    k.e(f"s_cselect_b32 s79, {OOB}, 0")
    k.e("s_mul_i32 s75, s101, 7")
    k.e("s_min_u32 s75, s75, 20")
    k.e("s_lshl_b32 s11, s8, 5")
    k.e("s_add_u32 s75, s75, s11")
    k.e(f"s_lshl_b32 s75, s75, {HSH}")
    k.e(f"s_add_u32 s75, s75, {FH}")
    k.e("s_lshl_b32 s74, s101, 14")
    k.e("s_min_u32 s10, s10, 40")
    k.e("s_lshl_b32 s10, s10, 2")
    k.e("s_lshr_b32 s11, s9, 1")
    k.e("s_add_u32 s10, s10, s11")
    k.e("s_lshl_b32 s10, s10, 7")
    k.e(f"s_add_u32 s71, s10, {FB}")
LSTEPS = [int(x) for x in os.environ.get("LSTEPS", "5,8,11").split(",")]
def soff(dst, base, step, mul):
    st = step
    if flag("XHIT") & 1 and mul == 4096: st = step % 2
    if flag("XHIT") & 2 and mul == 5120: st = step % 2
    L = [f"s_add_u32 s{dst}, s{base}, {st * mul}"]
    if step == NSTEP - 1: L.append(f"s_add_u32 s{dst}, s{dst}, s79")
    return L
def w_loads(step):
    b = W_SL[step % NW]
    L = soff(73, 77, step, 5120)
    L += [f"buffer_load_dwordx4 v[{b+4*d}:{b+4*d+3}], v1, s[44:47], s73 offen offset:{1024*d}{SC1}" for d in range(4)]
    L.append(f"buffer_load_dwordx4 v[{b+16}:{b+19}], v2, s[44:47], s73 offen{SC1}")
    return L
def h_loads(step):
    b = G_H + 16 * (step % NH)
    L = soff(72, 76, step, 4096)
    L += [f"buffer_load_dwordx4 v[{b+4*m}:{b+4*m+3}], v{3+m}, s[40:43], s72 offen{SC1}" for m in range(4)]
    return L
def w_lds_reads(step):
    b = W_SL[step % NW]
    return [f"ds_read_b128 v[{b+4*d}:{b+4*d+3}], v7 offset:{LSTEPS.index(step)*5120 + 1024*d}" for d in range(5)]
def g2_mfmas(step, order=None):
    b = G_H + 16 * (step % NH); wb = W_SL[step % NW]
    L = []
    for d, m in (order or [(d, m) for d in range(5) for m in range(4)]):
        a = G_ACC + 16*d + 4*m
        c = "0" if step == 0 else f"v[{a}:{a+3}]"
        L.append(f"v_mfma_f32_16x16x32_bf16 v[{a}:{a+3}], v[{wb+4*d}:{wb+4*d+3}], v[{b+4*m}:{b+4*m+3}], {c}")
    return L

def g2_phase(k):
    for s in range(EWI or flag("NP", 0), NW):
        for x in w_loads(s): k.e(x)
    srd(k, 40, P_WS, 32 * NT * 4096, H_OFF)
    k.e("s_lshl_b32 s52, s101, 10")
    k.e("v_add_u32 v3, s52, v1")
    for m in range(1, 4): k.e(f"v_xor_b32 v{3+m}, {1024*m}, v3")
    k.e(f"v_lshlrev_b32 v9, {HSH}, v0")
    EPOL = flag("EPOL", 8); left = 15
    for li, s in enumerate(LSTEPS):
        for x in soff(78, 77, s, 5120): k.e(x)
        for d in range(5):
            if left == EPOL:
                k.e("s_bfm_b64 exec, 7, 0")
                k.e(f"buffer_load_dwordx2 v[10:11], v9, s[{FSRD}:{FSRD+3}], s75 offen{SC1}")
                k.e("s_mov_b64 exec, -1")
            left -= 1
            if d in (0, 4): k.e(f"s_add_u32 m0, s74, {li*5120 + 1024*d}")
            if d < 4: k.e(f"buffer_load_dwordx4 v1, s[44:47], s78 offen offset:{1024*d}{SC1} lds")
            else: k.e(f"buffer_load_dwordx4 v2, s[44:47], s78 offen{SC1} lds")
    k.e("v_add_u32 v7, s74, v1")
    k.e(f"v_mov_b32 v152, {CNT}")
    k.e(f"s_waitcnt vmcnt({EPOL})")
    poll(k, "L_hpoll", 10, 9, 75, 58, 7, sleep=2, preloaded=True)
    stamp(k, 1, 2); cs(k, "rdy")
    vm = Vm(); need = {}
    NH0 = flag("NH0", 3)
    for s in range(NH0):
        for x in h_loads(s):
            k.e(x)
            if is_vmem(x): need[("h", s)] = vm.op()
    def groups(L):
        G = []; cur = []
        for x in L:
            cur.append(x)
            if is_vmem(x): G.append(cur); cur = []
        return G
    LA = flag("LA", 2); R = flag("RATE", 6)
    qh = [(s - (NH - 1), s - LA, "h", s, g) for s in range(NH0, NSTEP) for g in groups(h_loads(s))]
    qw = [(s - (NW - 1), s - LA, "w", s, g) for s in range(NW, NSTEP) if s not in LSTEPS for g in groups(w_loads(s))]
    for s in range(NSTEP):
        idx = max(need[("h", s)], need.get(("w", s), -1))
        lg = " lgkmcnt(0)" if (s in LSTEPS or s == NSTEP - 1) else ""
        k.e(f"s_waitcnt vmcnt({vm.wait(idx)}){lg}")
        if s in (0, 3, 7, 10): stamp(k, 4, (0, 3, 7, 10).index(s))
        if s in (10, 12, 13): stamp(k, 5, (10, 12, 13).index(s))
        if s == NSTEP - 1: break
        fill = []
        while (qh or qw):
            cand = [q for q in (qh, qw) if q and q[0][0] <= s]
            if not cand: break
            q = min(cand, key=lambda q: q[0][1])
            if len(fill) >= R and q[0][1] > s: break
            fill.append(q.pop(0))
        extra = []
        if s == flag("YAT", 5): extra.append(f"ds_write_b32 v152, v152 offset:{PROG}")
        if s + 2 in LSTEPS: extra += w_lds_reads(s + 2)
        if s == 12:
            r = Rec(); tail_addr(r); extra += ["\n".join(r.lines[i:i+2]) for i in range(0, len(r.lines), 2)]
        n = len(fill); fi = 0; ei = 0
        for i, x in enumerate(g2_mfmas(s)):
            k.e(x)
            if fi < n and i >= (fi * 18) // n:
                for y in fill[fi][4]: k.e(y)
                need[(fill[fi][2], fill[fi][3])] = vm.op(); fi += 1
            elif ei < len(extra):
                k.e(extra[ei]); ei += 1
        assert fi == n
        for y in extra[ei:]: k.e(y)
    assert not qh and not qw
    k.e("s_setprio 2")
    order = [(3, 0), (4, 0)] + [(d, m) for m in (1, 2, 3) for d in range(5)] + [(0, 0), (1, 0), (2, 0)]
    wr = [f"ds_write_b128 v{T+8}, v[{G_ACC+16*d}:{G_ACC+16*d+3}] offset:{OWN + 1024*(d-3)}" for d in (3, 4)]
    wr += [f"ds_write_b128 v7, v[{G_ACC+16*d+4*m}:{G_ACC+16*d+4*m+3}] offset:{(m-1)*5120 + 1024*d}" for d, m in order[2:17]]
    k.e("s_cmp_ge_u32 s101, 2")
    k.e("s_cbranch_scc1 L_g2_short")
    for x in interleave(g2_mfmas(NSTEP - 1, order), wr, start=6): k.e(x)
    k.e("s_branch L_g2_join")
    k.e("L_g2_short:")
    k.e("s_nop 7")
    for x in wr: k.e(x)
    k.e("L_g2_join:")
    stamp(k, 1, 3); cs(k, "mend")
    g2_tail(k)

T = 156
OWN = SO + 3072
assert C3
def tail_addr(k):
    srd(k, 48, P_OUT, NB_X)
    k.e("s_lshl_b32 s53, s8, 2")
    k.e("s_add_u32 s53, s53, s101")
    k.e("s_mul_i32 s54, s53, 20480")
    k.e("s_mul_i32 s55, s9, 160")
    k.e("s_add_u32 s54, s54, s55")
    for i in range(2):
        k.e(f"v_add_u32 v{T+3}, {64*i}, v0")
        k.e(f"v_mul_u32_u24 v{T+4}, 10923, v{T+3}")
        k.e(f"v_lshrrev_b32 v{T+4}, 16, v{T+4}")
        k.e(f"v_mul_u32_u24 v{T+4}, {1280-96}, v{T+4}")
        k.e(f"v_lshl_add_u32 v{T+i}, v{T+3}, 4, v{T+4}")
    k.e(f"v_mov_b32 v{T+4}, {OOB}")
    k.e("v_cmp_gt_u32 vcc, 32, v0")
    k.e(f"v_cndmask_b32 v{T+1}, v{T+4}, v{T+1}, vcc")
    for m in range(1, 4): k.e(f"v_xor_b32 v{T+4+m}, {16384*m}, v7")
    k.e(f"v_add_u32 v{T+8}, s81, v1")
    k.e(f"v_and_b32 v{T+9}, 15, v0")
    k.e(f"v_mul_u32_u24 v{T+9}, 96, v{T+9}")
    k.e(f"v_lshrrev_b32 v{T+10}, 4, v0")
    k.e(f"v_lshl_add_u32 v{T+9}, v{T+10}, 3, v{T+9}")
    k.e(f"v_add_u32 v{T+9}, s81, v{T+9}")
    k.e(f"v_mov_b32 v{T+12}, 1.0")
    k.e(f"v_mov_b32 v{T+13}, 1.0")
def final_block(k, a, s, x, cc, one):
    for h in range(2):
        k.e(f"v_pk_add_f32 v[{a+2*h}:{a+2*h+1}], v[{a+2*h}:{a+2*h+1}], v[{a+4+2*h}:{a+4+2*h+1}]")
        k.e(f"v_pk_add_f32 v[{a+8+2*h}:{a+8+2*h+1}], v[{a+8+2*h}:{a+8+2*h+1}], v[{a+12+2*h}:{a+12+2*h+1}]")
    for h in range(2):
        k.e(f"v_pk_add_f32 v[{a+2*h}:{a+2*h+1}], v[{a+2*h}:{a+2*h+1}], v[{a+8+2*h}:{a+8+2*h+1}]")
    e = a + 4
    for h in range(2):
        k.e(f"v_pk_mul_f32 v[{e+2*h}:{e+2*h+1}], v[{a+2*h}:{a+2*h+1}], v[{cc}:{cc+1}]")
    for r in range(4): k.e(f"v_exp_f32 v{e+r}, v{e+r}")
    for h in range(2):
        k.e(f"v_pk_mul_f32 v[{a+2*h}:{a+2*h+1}], v[{a+2*h}:{a+2*h+1}], v[{s+2*h}:{s+2*h+1}]")
    for h in range(2):
        k.e(f"v_pk_add_f32 v[{e+2*h}:{e+2*h+1}], v[{e+2*h}:{e+2*h+1}], v[{one}:{one+1}]")
    for r in range(4): k.e(f"v_rcp_f32 v{e+r}, v{e+r}")
    for h in range(2):
        k.e(f"v_pk_fma_f32 v[{a+2*h}:{a+2*h+1}], v[{a+2*h}:{a+2*h+1}], v[{e+2*h}:{e+2*h+1}], v[{x+2*h}:{x+2*h+1}]")
    k.e(f"v_cvt_pk_bf16_f32 v{a+8}, v{a}, v{a+1}")
    k.e(f"v_cvt_pk_bf16_f32 v{a+9}, v{a+2}, v{a+3}")
def g2_tail(k):
    k.e("s_waitcnt lgkmcnt(0)")
    stamp(k, 6, 0)
    k.e("s_barrier")
    stamp(k, 5, 3); stamp(k, 6, 1)
    SF, XF, CC = 88, 108, T + 14
    k.e(f"ds_read_b64 v[{CC}:{CC+1}], v{T+8} offset:{SO + 10240}")
    for d in range(3):
        for m in range(1, 4):
            a = G_ACC + 16*d + 4*m
            k.e(f"ds_read_b128 v[{a}:{a+3}], v{T+4+m} offset:{(m-1)*5120 + 1024*d}")
        k.e(f"ds_read_b128 v[{SF+4*d}:{SF+4*d+3}], v{T+8} offset:{SO + 1024*d}")
        k.e(f"ds_read_b128 v[{XF+4*d}:{XF+4*d+3}], v{T+8} offset:{SO + 5120 + 1024*d}")
    for d in range(3):
        k.e(f"s_waitcnt lgkmcnt({10-5*d})")
        final_block(k, G_ACC + 16*d, SF + 4*d, XF + 4*d, CC, T + 12)
    stamp(k, 6, 2)
    for d in range(3):
        a = G_ACC + 16*d
        k.e(f"ds_write_b64 v{T+9}, v[{a+8}:{a+9}] offset:{XO + 32*d}")
    k.e("s_waitcnt lgkmcnt(0)")
    O = 128
    for i in range(2): k.e(f"ds_read_b128 v[{O+4*i}:{O+4*i+3}], v{T+8} offset:{XO + 1024*i}")
    for i in range(2):
        k.e(f"s_waitcnt lgkmcnt({1-i})")
        k.e(f"buffer_store_dwordx4 v[{O+4*i}:{O+4*i+3}], v{T+i}, s[48:51], s54 offen")
    stamp(k, 6, 3)
def b_tail(k):
    srd(k, 48, P_OUT, NB_X)
    k.e("v_lshlrev_b32 v8, 4, v0")
    k.e("s_lshl_b32 s59, s101, 14")
    k.e("v_add_u32 v8, s59, v8")
    for m in range(1, 4): k.e(f"v_xor_b32 v{8+m}, {16384*m}, v8")
    k.e("v_and_b32 v12, 15, v0")
    k.e("v_lshlrev_b32 v12, 6, v12")
    k.e("v_lshrrev_b32 v13, 4, v0")
    k.e("v_lshl_add_u32 v12, v13, 3, v12")
    k.e("v_add_u32 v12, s81, v12")
    k.e("v_lshrrev_b32 v13, 2, v0")
    k.e("v_mul_u32_u24 v13, 1280, v13")
    k.e("v_and_b32 v14, 3, v0")
    k.e("v_lshl_add_u32 v13, v14, 4, v13")
    k.e("v_mov_b32 v14, 1.0")
    k.e("v_mov_b32 v15, 1.0")
    k.e("s_waitcnt lgkmcnt(0)")
    k.e("s_barrier")
    P = 104
    for i, d in enumerate((3, 4)):
        k.e(f"ds_read_b128 v[{P+16*i}:{P+16*i+3}], v37 offset:{OWN + 1024*i}")
        for m in range(1, 4):
            k.e(f"ds_read_b128 v[{P+16*i+4*m}:{P+16*i+4*m+3}], v{8+m} offset:{(m-1)*5120 + 1024*d}")
    for i, d in enumerate((3, 4)):
        k.e(f"s_waitcnt lgkmcnt({4-4*i})")
        final_block(k, P + 16*i, 60 + 4*d, 40 + 4*d, 38, 14)
    for i in range(2): k.e(f"ds_write_b64 v12, v[{P+16*i+8}:{P+16*i+9}] offset:{YO + 32*i}")
    k.e("s_waitcnt lgkmcnt(0)")
    k.e(f"ds_read_b128 v[16:19], v37 offset:{YO}")
    k.e("s_waitcnt lgkmcnt(0)")
    k.e("buffer_store_dwordx4 v[16:19], v13, s[48:51], s54 offen offset:96")

BA, AA, ONE, ACC, AR, AC, FR = 10, 14, 20, 24, 88, 96, 112
def g1_setup(k):
    srd(k, 48, P_WS, 32 * NT * 4096, H_OFF)
    srd(k, 44, P_WS, NB_W, W2_OFF)
    k.e("s_and_b32 s52, s3, 1")
    k.e("s_lshr_b32 s53, s3, 1")
    k.e("v_lshlrev_b32 v1, 4, v0")
    k.e("v_add_u32 v2, 4096, v1")
    k.e("v_and_b32 v18, 15, v0")
    k.e("v_lshrrev_b32 v19, 4, v0")
    k.e("v_lshrrev_b32 v20, 1, v18")
    k.e("v_xor_b32 v20, v20, v19")
    k.e("v_lshlrev_b32 v20, 4, v20")
    k.e("v_lshl_add_u32 v20, v18, 7, v20")
    k.e("s_lshl_b32 s58, s52, 13")
    k.e("s_lshl_b32 s59, s53, 12")
    k.e("s_add_u32 s58, s58, s59")
    k.e(f"v_add_u32 v{BA}, s58, v20")
    k.e(f"v_xor_b32 v{BA+1}, 64, v{BA}")
    k.e(f"v_xor_b32 v{BA+2}, 0x1000, v{BA}")
    k.e(f"v_xor_b32 v{BA+3}, 0x1040, v{BA}")
    k.e("v_lshrrev_b32 v20, 2, v18")
    k.e("v_and_b32 v21, 3, v18")
    k.e("v_lshl_add_u32 v22, v19, 3, v20")
    k.e("v_lshlrev_b32 v22, 8, v22")
    k.e("v_lshl_add_u32 v22, v21, 3, v22")
    k.e(f"v_add_u32 v22, {WPART}, v22")
    k.e("v_and_b32 v23, 1, v19")
    k.e("v_lshl_add_u32 v23, v23, 2, v20")
    k.e("s_lshl_b32 s58, s53, 2")
    k.e("s_lshl_b32 s59, s52, 1")
    k.e("s_add_u32 s58, s58, s59")
    k.e("v_xor_b32 v23, s58, v23")
    k.e(f"v_lshl_add_u32 v{AA}, v23, 5, v22")
    for fb in range(1, 4): k.e(f"v_xor_b32 v{AA+fb}, {32*fb}, v{AA}")
    for i in range(4): k.e(f"v_mov_b32 v{ONE+i}, 0x3f803f80")
    for r, x in ((3, 0), (4, 2), (5, 1)):
        k.e(f"s_xor_b32 s58, s3, {x}")
        k.e("s_mul_i32 s58, s58, 3072")
        k.e(f"s_add_u32 s58, s58, {TOP}")
        k.e(f"v_add_u32 v{r}, s58, v1")
    k.e("s_lshl_b32 s58, s7, 1")
    k.e("s_add_u32 s57, s58, s53")
    k.e("s_lshl_b32 s59, s6, 1")
    k.e("s_add_u32 s59, s59, s52")
    k.e("s_lshl_b32 s56, s59, 5")
    k.e("s_add_u32 s56, s56, s57")
    k.e(f"s_lshl_b32 s56, s56, {HSH}")
    k.e(f"s_add_u32 s56, s56, {FH}")
    k.e(f"s_mul_i32 s59, s59, {NT}")
    k.e("s_lshl_b32 s58, s57, 1")
    k.e("s_add_u32 s58, s58, s59")
    k.e("s_lshl_b32 s58, s58, 12")
    k.e("s_lshl_b32 s59, s52, 12")
    k.e("s_add_u32 s60, s58, s59")
    k.e("s_xor_b32 s59, s59, 0x1000")
    k.e("s_add_u32 s61, s58, s59")
    k.e("s_lshl_b32 s59, s53, 11")
    k.e("v_add_u32 v6, s59, v1")
    k.e("v_xor_b32 v7, 0x800, v6")
    k.e(f"v_mov_b32 v18, {CNT}")
    k.e("s_lshl_b32 s58, s3, 2")
    k.e(f"s_add_u32 s58, s58, {CNT + PA}")
    k.e("v_mov_b32 v19, s58")

def g1_phase(k):
    PV = 176
    def reads(stage, ks, buf):
        so = (stage % 2) * SLOT
        L = []
        fa = FR + 32 * buf; fb_ = fa + 16
        for i in range(4):
            L.append(f"ds_read_b128 v[{fb_+4*i}:{fb_+4*i+3}], v{BA + 2*(i>>1) + ks} offset:{so + 2048*(i&1)}")
            L.append(f"ds_read_b64_tr_b16 v[{fa+4*i}:{fa+4*i+1}], v{AA+i} offset:{so + 8192*ks}")
            L.append(f"ds_read_b64_tr_b16 v[{fa+4*i+2}:{fa+4*i+3}], v{AA+i} offset:{so + 8192*ks + 1024}")
        return L
    def mfmas(buf, first=False, sums_first=False):
        fa = FR + 32 * buf; fb_ = fa + 16
        L = []; Sm = []
        def mm(Tg, d, a, b):
            c = "0" if first else f"v[{d}:{d+3}]"
            Tg.append(f"v_mfma_f32_16x16x32_bf16 v[{d}:{d+3}], v[{a}:{a+3}], v[{b}:{b+3}], {c}")
        for f in range(4):
            for m in range(4): mm(L, ACC + 16*f + 4*m, fa + 4*f, fb_ + 4*m)
        for i in range(2):
            mm(Sm, AR + 4*i, ONE, fb_ + 4*i)
            mm(Sm, AC + 4*i, fa + 4*i, ONE)
        if flag("QNOSUM") and not first and not sums_first: return L
        return Sm + L if sums_first else L + Sm
    def dense(L):
        n = flag("DEN", 2)
        return ["\n".join(L[i:i+n]) for i in range(0, len(L), n)]
    tog = [f"v_xor_b32 v{r}, 0x10000, v{r}" for r in list(range(BA, BA+4)) + list(range(AA, AA+4))]
    for s in range(NSTAGE):
        k.c(f"---- stage {s}")
        k.e("s_waitcnt lgkmcnt(0)")
        m1 = mfmas(1)
        if s < 9: k.e("s_barrier")
        else:
            for x in interleave(m1[:3], prog_min(PV, 58)): k.e(x)
            m1 = m1[3:]
            prog_spin(k, "L_a9", 18, PV, PB, 58, 1)
        if s == 0: stamp(k, 1, 0); stamp(k, 2, 0); cs(k, "b0")
        if s == 4: cs(k, "b4")
        if s == 4: stamp(k, 2, 1)
        if s == 8:
            stamp(k, 2, 2)
            k.e("s_setprio 2")
        for x in (reads(0, 0, 0) if s == 0 else interleave(m1, dense(reads(s, 0, 0)))): k.e(x)
        k.e("s_waitcnt lgkmcnt(0)")
        m0 = mfmas(0, first=(s == 0))
        nxt = tog if ((s + 1) % 2 == 0 and s + 1 < NSTAGE) else []
        if s == 9 and EPI:
            m0 = mfmas(0, sums_first=True)
            exch = [f"v_mov_b32 v{AR+1}, v{AR+4}",
                    f"ds_write_b64 v3, v[{AR}:{AR+1}]",
                    f"ds_write_b128 v3, v[{AC}:{AC+3}] offset:1024",
                    f"ds_write_b128 v3, v[{AC+4}:{AC+7}] offset:2048"] + prog_write(19, 8, 11)
            body = (interleave(m0[:10], dense(reads(s, 1, 1))) + ["s_waitcnt lgkmcnt(0)"] + mfmas(1, sums_first=True)[:4]
                    + m0[10:14] + interleave(m0[14:], exch))
        elif s == 8:
            body = interleave(m0[:-3], dense(reads(s, 1, 1))) + [f"ds_read_b128 v[{PV}:{PV+3}], v18 offset:{PB}"] + m0[-3:]
        else:
            body = interleave(m0, dense(reads(s, 1, 1)) + nxt)
        for x in body: k.e(x)
    if EPI:
        allm = mfmas(1, sums_first=True)[4:]
        fin = [allm[4*(2*p+ff) + m] for p in range(2) for m in range(4) for ff in range(2)]
        sync_reads = [f"ds_read_b128 v[{PV}:{PV+3}], v18 offset:{PA}",
                      f"ds_read_b64 v[{AR+2}:{AR+3}], v4",
                      f"ds_read_b128 v[{AC+8}:{AC+11}], v5 offset:1024",
                      f"ds_read_b128 v[{AC+12}:{AC+15}], v5 offset:2048"]
        k.e("s_cmp_ge_u32 s57, 27")
        for r in (56, 60, 61): k.e(f"s_cselect_b32 s{r}, {OOB}, s{r}")
        for x in fin[:2] + interleave(fin[2:8], sync_reads): k.e(x)
        k.e("s_branch L_a_chk")
        k.e("L_a_sync:")
        for x in sync_reads: k.e(x)
        k.e("L_a_chk:")
        k.e("s_waitcnt lgkmcnt(0)")
        for x in prog_min(PV, 58): k.e(x)
        k.e("s_cmp_lt_u32 s58, 11")
        k.e("s_cbranch_scc1 L_a_sync")
        stamp(k, 2, 3); cs(k, "sync")
        NM = FR; OUT = FR + 8
        V = [f"v_mul_f32 v{AR+m}, {-1.0/D!r}, v{AR+m}" for m in range(4)]
        V += [f"v_cvt_pk_bf16_f32 v{AR+4}, v{AR}, v{AR+1}", f"v_cvt_pk_bf16_f32 v{AR+5}, v{AR+2}, v{AR+3}"]
        for m in range(4):
            src = AR + 4 + (m >> 1)
            V.append(f"v_and_b32 v{NM+m}, 0xffff0000, v{src}" if m & 1 else f"v_lshlrev_b32 v{NM+m}, 16, v{src}")
        n = 0
        for p in range(2):
            for m in range(4):
                o = OUT + 4 * (n % 4); n += 1
                for ff in range(2):
                    f = 2*p + ff
                    a = ACC + 16*f + 4*m
                    V += [f"v_fmac_f32 v{a+r}, v{AC+4*f+r}, v{NM+m}" for r in range(4)]
                    V += [f"v_cvt_pk_bf16_f32 v{o+2*ff+h}, v{a+2*h}, v{a+2*h+1}" for h in range(2)]
                if p == 1 and m == 2 and flag("NP", 0): V.append(f"ds_read_b32 v8, v18 offset:{AUXOK}")
                V += [f"v_pk_max_i16 v{o+i}, v{o+i}, 0" for i in range(4)]
                V.append(f"buffer_store_dwordx4 v[{o}:{o+3}], v{6+(m>>1)}, s[48:51], s{60+p} offen offset:{1024*(m&1)}{HSC}")
        rest = fin[8:]
        for i, x in enumerate(V):
            if i % 3 == 0 and rest: k.e(rest.pop(0))
            k.e(x)
    else:
        k.e("s_waitcnt lgkmcnt(0)")
        fin = mfmas(1, sums_first=True)
        exch = [f"v_mov_b32 v{AR+1}, v{AR+4}",
                f"ds_write_b64 v3, v[{AR}:{AR+1}]",
                f"ds_write_b128 v3, v[{AC}:{AC+3}] offset:1024",
                f"ds_write_b128 v3, v[{AC+4}:{AC+7}] offset:2048"] + prog_write(19, 8, 11)
        for x in fin[:7] + interleave(fin[7:], exch): k.e(x)
        k.e("L_a_sync:")
        k.e(f"ds_read_b128 v[{PV}:{PV+3}], v18 offset:{PA}")
        k.e(f"ds_read_b64 v[{AR+2}:{AR+3}], v4")
        k.e(f"ds_read_b128 v[{AC+8}:{AC+11}], v5 offset:1024")
        k.e(f"ds_read_b128 v[{AC+12}:{AC+15}], v5 offset:2048")
        if EWI: k.e(f"ds_read_b32 v8, v18 offset:{AUXOK}")
        k.e("s_waitcnt lgkmcnt(0)")
        for x in prog_min(PV, 58): k.e(x)
        k.e("s_cmp_lt_u32 s58, 11")
        k.e("s_cbranch_scc1 L_a_sync")
        stamp(k, 2, 3); cs(k, "sync")
        if flag("HTF", 1):
            k.e("s_cmp_ge_u32 s57, 27")
            for r in (56, 60, 61): k.e(f"s_cselect_b32 s{r}, {OOB}, s{r}")
        else:
            k.e("s_cmp_ge_u32 s57, 27")
            k.e("s_cbranch_scc1 L_g2w")
        NM = FR
        wl = []
        if EWI:
            k.e("v_readfirstlane_b32 s71, v8")
            k.e("s_mov_b32 s70, s77")
            k.e("s_cmp_eq_u32 s71, 0")
            k.e(f"s_cselect_b32 s77, {OOB}, s77")
            cur = []
            for st in range(EWI):
                for x in w_loads(st):
                    cur.append(x)
                    if is_vmem(x): wl.append(cur); cur = []
        for m in range(4): k.e(f"v_mul_f32 v{AR+m}, {-1.0/D!r}, v{AR+m}")
        k.e(f"v_cvt_pk_bf16_f32 v{AR+4}, v{AR}, v{AR+1}")
        k.e(f"v_cvt_pk_bf16_f32 v{AR+5}, v{AR+2}, v{AR+3}")
        for m in range(4):
            src = AR + 4 + (m >> 1)
            if m & 1: k.e(f"v_and_b32 v{NM+m}, 0xffff0000, v{src}")
            else:     k.e(f"v_lshlrev_b32 v{NM+m}, 16, v{src}")
        OUT = FR + 8
        n = 0
        for p in range(2):
            for m in range(4):
                o = OUT + 4 * (n % 4); n += 1
                for ff in range(2):
                    f = 2*p + ff
                    a = ACC + 16*f + 4*m
                    for r in range(4): k.e(f"v_fmac_f32 v{a+r}, v{AC+4*f+r}, v{NM+m}")
                    for h in range(2): k.e(f"v_cvt_pk_bf16_f32 v{o+2*ff+h}, v{a+2*h}, v{a+2*h+1}")
                if p == 1 and m == 2 and flag("NP", 0): k.e(f"ds_read_b32 v8, v18 offset:{AUXOK}")
                for i in range(4): k.e(f"v_pk_max_i16 v{o+i}, v{o+i}, 0")
                k.e(f"buffer_store_dwordx4 v[{o}:{o+3}], v{6+(m>>1)}, s[48:51], s{60+p} offen offset:{1024*(m&1)}{HSC}")
                lo, hi = (len(wl) * (n - 1)) // 8, (len(wl) * n) // 8
                for g in wl[lo:hi]:
                    for x in g: k.e(x)
        if EWI:
            k.e(f"s_waitcnt vmcnt({hi - lo})")
            publish(k, 56, 12, HSC)
            stamp(k, 1, 1)
            k.e("s_setprio 0")
            k.e("s_mov_b32 s77, s70")
            k.e("s_cmp_eq_u32 s71, 0")
            k.e("s_cbranch_scc0 L_g2b")
            k.e("s_branch L_g2w")
    NP = EWI or flag("NP", 0)
    if NP and not EWI:
        k.e("s_waitcnt lgkmcnt(0)")
        k.e("v_readfirstlane_b32 s58, v8")
        k.e("s_cmp_eq_u32 s58, 0")
        k.e("s_cbranch_scc1 L_a_slow")
        for st in range(NP):
            for x in w_loads(st): k.e(x)
        k.e(f"s_waitcnt vmcnt({5*NP})")
        publish(k, 56, 12, HSC)
        stamp(k, 1, 1)
        k.e("s_setprio 0")
        k.e("s_branch L_g2b")
        k.e("L_a_slow:")
    if AWP:
        k.e("v_lshlrev_b32 v9, 9, v0")
        k.e("s_bfm_b64 exec, 14, 0")
        k.e(f"buffer_load_dwordx2 v[10:11], v9, s[{FSRD}:{FSRD+3}], s71 offen{SC1}")
        k.e("s_mov_b64 exec, -1")
        k.e("s_waitcnt vmcnt(1)")
        publish(k, 56, 12, HSC)
        stamp(k, 1, 1)
        k.e("s_waitcnt vmcnt(1)")
        k.e("s_setprio 0")
        poll(k, "L_aw", 10, 9, 71, 58, 14, preloaded=True)
        k.e("s_branch L_g2b")
        k.e("L_g2w:")
        k.e("s_setprio 0")
        k.e(f"v_mov_b32 v10, {CNT}")
        lds_wait(k, "L_aw2", 10, 11, AUXOK, 58, sleep=4)
    else:
        if not EWI:
            k.e("s_waitcnt vmcnt(0)")
            publish(k, 56, 12, HSC)
            stamp(k, 1, 1)
        k.e("L_g2w:")
        k.e("s_setprio 0")
        k.e(f"v_mov_b32 v10, {CNT}")
        lds_wait(k, "L_aw2", 10, 11, AUXOK, 58, sleep=4)
    for st in range(NP):
        for x in w_loads(st): k.e(x)
    k.e("L_g2b:")

def b_aprep(k):
    srd(k, 40, P_Q, NB_X)
    srd(k, 44, P_WS, 16384, ST_OFF)
    srd(k, 68, P_WS, NB_T, YT_OFF)
    xo_offsets(k, 8, 1, 2)
    for i in range(3):
        k.e(f"s_add_u32 m0, s81, {XO + 1024*i}")
        k.e(f"buffer_load_dwordx4 v{8+i}, s[40:43], s54 offen lds")
    k.e("v_and_b32 v1, 15, v0")
    k.e("v_lshlrev_b32 v3, 3, v1")
    k.e("s_lshl_b32 s57, s53, 7")
    k.e("v_lshrrev_b32 v4, 3, v0")
    k.e(f"v_mul_u32_u24 v4, {RS}, v4")
    k.e("v_and_b32 v2, 7, v0")
    k.e("v_lshl_add_u32 v4, v2, 4, v4")
    k.e("s_mul_i32 s58, s9, 10")
    k.e("s_add_u32 s58, s58, s101")
    k.e(f"s_mul_i32 s58, s58, {8*RS}")
    k.e("s_lshl_b32 s59, s8, 7")
    k.e("s_add_u32 s58, s58, s59")
    k.e(f"v_mov_b32 v2, {CNT}")
    k.e("v_mul_u32_u24 v5, 160, v1")
    k.e("v_lshrrev_b32 v6, 4, v0")
    k.e("v_lshl_add_u32 v5, v6, 3, v5")
    k.e("v_add_u32 v5, s81, v5")
    k.e("v_lshrrev_b32 v36, 5, v0")
    k.e(f"v_mul_u32_u24 v36, {CONV_LDS}, v36")
    k.e("v_bfe_u32 v7, v0, 2, 3")
    k.e("v_lshl_add_u32 v36, v7, 7, v36")
    k.e("v_and_b32 v7, 3, v0")
    k.e("v_lshl_add_u32 v36, v7, 3, v36")
    k.e("s_lshl_b32 s59, s101, 5")
    k.e(f"s_add_u32 s59, s59, {RB0}")
    k.e("v_add_u32 v36, s59, v36")
    k.e("v_lshlrev_b32 v37, 4, v0")
    k.e("v_add_u32 v37, s81, v37")
    XR, YR, XF, SF = 16, 26, 40, 60
    k.e("s_waitcnt vmcnt(0)")
    for d in range(5): k.e(f"ds_read_b64 v[{XR+2*d}:{XR+2*d+1}], v5 offset:{XO + 32*d}")
    k.e("s_waitcnt lgkmcnt(0)")
    for d in range(5):
        for h in range(2): unpack(k, XF + 4*d + 2*h, XF + 4*d + 2*h + 1, XR + 2*d + h)
        if d < 3: k.e(f"ds_write_b128 v37, v[{XF+4*d}:{XF+4*d+3}] offset:{SO + 5120 + 1024*d}")
    k.e("s_setprio 0")
    k.e("s_cmp_eq_u32 s101, 0")
    k.e("s_cbranch_scc1 L_b_poller")
    lds_wait(k, "L_b_lw0", 2, 6, PROG, 60, sleep=flag("LSL", 16))
    lds_wait(k, "L_b_lwait", 2, 6, YOK, 60, sleep=2)
    k.e("s_setprio 3")
    k.e("s_branch L_b_go")
    k.e("L_b_poller:")
    k.e(f"s_mul_i32 s59, s9, {80 << YSH}")
    k.e(f"s_add_u32 s59, s59, {FY}")
    k.e(f"s_add_u32 s61, s59, {64 << YSH}")
    k.e(f"v_lshlrev_b32 v5, {YSH}, v0")
    k.e("v_add_u32 v7, s61, v5")
    k.e("s_lshr_b32 s10, s8, 3")
    k.e("s_lshl_b32 s10, s10, 1")
    k.e("s_and_b32 s11, s8, 1")
    k.e("s_add_u32 s10, s10, s11")
    k.e("s_and_b32 s11, s8, 6")
    k.e("s_lshl_b32 s11, s11, 2")
    k.e("s_add_u32 s10, s10, s11")
    k.e(f"s_add_u32 s10, s10, {224 + (FB >> 7)}")
    k.e("s_lshl_b32 s10, s10, 7")
    k.e("v_writelane_b32 v7, s10, 16")
    lds_wait(k, "L_b_aw", 2, 6, PROG, 60, sleep=flag("LSL2", 6))
    k.e("s_setprio 3")
    k.e("s_bfm_b64 exec, 17, 0")
    k.e(f"buffer_load_dwordx2 v[14:15], v7, s[{FSRD}:{FSRD+3}], 0 offen{SC1}")
    k.e("s_mov_b64 exec, -1")
    poll(k, "L_by", 12, 5, 59, 60, 64, sleep=8)
    poll(k, "L_by2", 14, 7, None, 60, 17, sleep=8, preloaded=True)
    k.e("v_mov_b32 v6, 1")
    k.e(f"ds_write_b32 v2, v6 offset:{YOK}")
    k.e("L_b_go:")
    stamp(k, 1, 3); stamp(k, 2, 3)
    k.e(f"buffer_load_dwordx2 v[12:13], v3, s[44:47], s57 offen{SC1}")
    for i in range(3):
        if i == 2:
            k.e("s_cmp_ge_u32 s101, 2")
            k.e("s_cbranch_scc1 L_b_noy")
        k.e(f"s_add_u32 m0, s81, {YO + 1024*i}")
        k.e(f"buffer_load_dwordx4 v4, s[68:71], s58 offen{SC1} lds")
        if i < 2: k.e(f"s_add_u32 s58, s58, {4*8*RS}")
    k.e("L_b_noy:")
    k.e("v_mov_b32 v3, 1")
    k.e("s_waitcnt vmcnt(2)")
    k.e("v_mul_f32 v38, 0xbfb8aa3b, v13")
    k.e("v_mul_f32 v39, 0xbfb8aa3b, v13")
    k.e(f"ds_write_b64 v37, v[38:39] offset:{SO + 10240}")
    for i in range(10):
        a, b = 80 + 2*i, 81 + 2*i
        k.e(f"v_sub_f32 v{a}, v{XF+2*i}, v12")
        k.e(f"v_sub_f32 v{b}, v{XF+2*i+1}, v12")
        k.e(f"v_cvt_pk_bf16_f32 v{b}, v{a}, v{b}")
        unpack(k, a, b, b)
        k.e(f"v_mul_f32 v{a}, v{a}, v13")
        k.e(f"v_mul_f32 v{b}, v{b}, v13")
        k.e(f"v_cvt_pk_bf16_f32 v{b}, v{a}, v{b}")
        unpack(k, a, b, b)
        k.e(f"v_mul_f32 v{a}, v{a}, v13")
        k.e(f"v_mul_f32 v{b}, v{b}, v13")
        if i == 4:
            k.e("s_waitcnt vmcnt(0)")
            k.e("s_mov_b64 exec, 1")
            k.e(f"ds_add_u32 v2, v3 offset:{YCNT}")
            k.e("s_mov_b64 exec, -1")
    k.e("L_b_cnt:")
    k.e(f"ds_read_b32 v3, v2 offset:{YCNT}")
    for d in range(5):
        k.e(f"ds_read_b64_tr_b16 v[{YR+2*d}:{YR+2*d+1}], v36 offset:{YO + 2*(d&1)*CONV_LDS + (d>>1)*1024}")
    k.e("s_waitcnt lgkmcnt(0)")
    k.e("v_readfirstlane_b32 s59, v3")
    k.e("s_cmp_lt_u32 s59, 4")
    k.e("s_cbranch_scc1 L_b_cnt")
    for d in range(5):
        for h in range(2):
            s = SF + 4*d + 2*h
            unpack(k, s, s+1, YR + 2*d + h)
            k.e(f"v_mul_f32 v{s}, v{s}, v{80+4*d+2*h}")
            k.e(f"v_mul_f32 v{s+1}, v{s+1}, v{81+4*d+2*h}")
        if d < 3: k.e(f"ds_write_b128 v37, v[{SF+4*d}:{SF+4*d+3}] offset:{SO + 1024*d}")
    b_tail(k)

def stats_rows(k, s_idx):
    k.e("s_and_b32 s10, s84, 6")
    k.e("s_lshl_b32 s10, s10, 8")
    k.e("s_lshr_b32 s11, s84, 3")
    k.e("s_lshl_b32 s11, s11, 7")
    k.e("s_add_u32 s10, s10, s11")
    k.e("s_and_b32 s11, s84, 1")
    k.e("s_lshl_b32 s11, s11, 6")
    k.e("s_add_u32 s10, s10, s11")
    k.e(f"s_lshl_b32 s11, s{s_idx}, 3")
    k.e("s_add_u32 s52, s10, s11")

def kernel():
    STS = flag("STS", 1); RLD = flag("RLD", 2); RST = flag("RST", 6)
    assert STS < RLD and RLD + (3 if flag('LKS', 99) > RLD else 4) <= RST <= 7
    k = Kern(NAME)
    stamp_begin(k)
    if flag("FIXT"): k.e("s_memrealtime s[96:97]")
    k.e("s_cmp_ge_u32 s2, 256")
    k.e("s_cbranch_scc1 L_end")
    load_ptrs(k)
    k.e("v_lshrrev_b32 v1, 6, v0")
    k.e("v_readfirstlane_b32 s3, v1")
    k.e("v_and_b32 v0, 63, v0")
    for i in range(4): k.e(f"v_mov_b32 v{4+i}, 0")
    k.e("v_and_b32 v1, 3, v0")
    k.e("v_lshlrev_b32 v1, 4, v1")
    k.e(f"v_add_u32 v1, {CNT}, v1")
    k.e("ds_write_b128 v1, v[4:7]")
    k.e("s_and_b32 s4, s2, 7")
    k.e("s_lshr_b32 s5, s2, 3")
    k.e("s_lshr_b32 s10, s4, 1")
    k.e("s_and_b32 s11, s4, 1")
    k.e("s_lshl_b32 s6, s10, 2")
    k.e("s_and_b32 s7, s5, 3")
    k.e("s_add_u32 s6, s6, s7")
    k.e("s_lshl_b32 s9, s11, 2")
    k.e("s_add_u32 s9, s9, s7")
    k.e("s_lshr_b32 s8, s5, 2")
    k.e("s_mul_i32 s7, s11, 7")
    k.e("s_add_u32 s7, s7, s8")
    k.e("s_lshl_b32 s10, s10, 3")
    k.e("s_add_u32 s8, s8, s10")
    if flag("MAP81"):
        k.e("s_lshl_b32 s6, s4, 1")
        k.e("s_and_b32 s7, s5, 1")
        k.e("s_add_u32 s6, s6, s7")
        k.e("s_lshr_b32 s7, s5, 1")
        k.e("s_lshl_b32 s8, s4, 2")
        k.e("s_lshr_b32 s9, s5, 3")
        k.e("s_add_u32 s8, s8, s9")
        k.e("s_and_b32 s9, s5, 7")
    k.e("s_and_b32 s101, s3, 3")
    k.e(f"s_mul_i32 s81, s101, {CONV_LDS}")
    k.e(f"s_add_u32 s81, s81, {RB0}")
    def flags_srd():
        srd(k, FSRD, P_WS, FL_BYTES, FL_OFF)
        k.e(f"s_load_dwordx2 s[{TAG}:{TAG+1}], s[{FSRD}:{FSRD+1}], {EP}")
    k.e("s_cmp_ge_u32 s2, 224")
    k.e("s_cbranch_scc1 L_free")
    k.e("s_cmp_lt_u32 s3, 4")
    k.e("s_cbranch_scc1 L_a")
    k.e(f"s_setprio {flag('PBL', 1)}")
    r = Rec(); k1.loader_setup(r, 6, 7, 101)
    for x in r.lines[8:]: k.e(x)
    k.e("s_waitcnt lgkmcnt(0)")
    for x in r.lines[:8]: k.e(x)
    vm = Vm(); last = {}
    def put(x):
        k.e(x)
        return vm.op() if is_vmem(x) else None
    def dma(st):
        for x in k1.dma(st):
            q = put(x)
            if q is not None: last[st] = q
    if flag("SB", 1): k.e("s_barrier")
    dma(0)
    flags_srd()
    k.e(f"v_mov_b32 v250, {CNT}")
    k.e("s_lshl_b32 s10, s101, 2")
    k.e(f"s_add_u32 s10, s10, {CNT + PB}")
    k.e("v_mov_b32 v248, s10")
    u_addr(k)
    rel1_addr(k)
    k.e("s_lshl_b32 s82, s2, 1")
    k.e("s_add_u32 s53, s2, 448")
    k.e("s_cmp_lt_u32 s2, 64")
    k.e("s_cselect_b32 s52, s53, 1000")
    k.e("s_cselect_b32 s53, s53, s82")
    watch_addr(k, 224, 82, 53)
    k.e("s_add_u32 s82, s82, s101")
    k.e("s_cmp_eq_u32 s101, 2")
    k.e("s_cselect_b32 s82, s52, s82")
    k.e("s_cmp_eq_u32 s101, 3")
    k.e("s_cselect_b32 s82, 1000, s82")
    k.e("s_lshl_b32 s83, s2, 7")
    k.e("s_waitcnt lgkmcnt(0)")
    make_tag(k)
    dma(1)
    PV = 252
    PUBS = STS + flag("PUBD", 3); st_idx = None
    k.e("s_cmp_eq_u32 s101, 2")
    k.e(f"s_cselect_b32 s83, s83, {OOB}")
    k.e("v_mov_b32 v249, 1")
    WPUB = RST + 2 if RST <= 5 else 99
    k.e("s_lshl_b32 s88, s2, 7")
    k.e(f"s_add_u32 s88, s88, {FB}")
    k.e("s_cmp_eq_u32 s101, 1")
    k.e(f"s_cselect_b32 s88, s88, {OOB}")
    for s in range(8):
        w = vm.wait(last[s])
        if s == PUBS: w = min(w, vm.wait(st_idx))
        if s == WPUB: w = min(w, vm.wait(rs_idx))
        k.e(f"s_waitcnt vmcnt({w})")
        k.e("s_barrier")
        if s == WPUB:
            publish(k, 88, 4); vm.op()
            stamp(k, 2, 1)
        if s == PUBS:
            publish(k, 83, 4); vm.op()
            stamp(k, 2, 0)
        if s == STS:
            for x in u_out():
                q = put(x)
                if q is not None: st_idx = q
        if s == RST:
            for x in rel1_reads(): k.e(x)
        LKS = flag("LKS", 99)
        if s < LKS: dma(s + 2)
        elif s == LKS:
            dma(s + 2); dma(s + 3)
        elif s + 3 < NSTAGE: dma(s + 3)
        if s == RST:
            for x in rel1_stores():
                q = put(x)
                if q is not None: rs_idx = q
        if s == RLD:
            for x in rel1_loads(): put(x)
    w8, w9 = vm.wait(last[8]), vm.wait(last[9]); wr = min(vm.wait(rs_idx), w9)
    W8P = flag('W8P', 0) and RST == 6
    if W8P: w8 = min(w8, vm.wait(rs_idx))
    k.e("s_cmp_lt_u32 s82, 640")
    k.e("s_cbranch_scc1 L_b_hasconv")
    k.e(f"s_waitcnt vmcnt({w8})")
    k.e("s_barrier")
    k.e("s_cmp_eq_u32 s101, 3")
    k.e("s_cbranch_scc1 L_b_w7")
    k.e(f"s_waitcnt vmcnt({w9})")
    for x in prog_write(248, 251, 1): k.e(x)
    k.e("s_waitcnt vmcnt(0)")
    for x in prog_write(248, 251, 2): k.e(x)
    k.e("s_branch L_b_aprep")
    k.e("L_b_w7:")
    pre = watch_pre(228, 224)
    k.e("s_setprio 3")
    if W8P:
        k.e("s_lshl_b32 s83, s2, 7")
        k.e(f"s_add_u32 s83, s83, {FB}")
        publish(k, 83, 4)
        stamp(k, 2, 1)
    k.e(pre[0])
    k.e(f"s_waitcnt vmcnt({w9 + 1 + W8P})")
    for x in prog_write(248, 251, 1): k.e(x)
    k.e("s_waitcnt vmcnt(0)")
    for x in prog_write(248, 251, 2): k.e(x)
    k.e(f"v_cmp_ne_u64 vcc, s[{TAG}:{TAG+1}], v[228:229]")
    k.e("s_cmp_eq_u64 vcc, 0")
    k.e("s_cbranch_scc0 L_b_n1")
    k.e(f"ds_write_b32 v250, v249 offset:{UOK}")
    k.e("L_b_n1:")
    if WPUB == 99 and not W8P:
        k.e("s_lshl_b32 s83, s2, 7")
        k.e(f"s_add_u32 s83, s83, {FB}")
        prog_wait(k, "L_b_rs", 250, PV, PB, 10, 2)
        publish(k, 83, 4)
        stamp(k, 2, 1)
    if AWP:
        poll(k, "L_bwa", 228, 225, None, 10, 64, preloaded=True)
        k.e(f"ds_write_b32 v250, v249 offset:{UOK}")
    else:
        for _ in range(flag("WSL", 1)): k.e("s_sleep 16")
        k.e(pre[1])
        watch(k, "L_bw", 228, 224, flag("BSL", 4))
    stamp(k, 2, 2)
    k.e("s_cmp_lg_u32 s2, 0")
    k.e("s_cbranch_scc1 L_b_aprep")
    k.e("s_setprio 0")
    k.e("v_lshlrev_b32 v1, 7, v0")
    k.e(f"s_mov_b32 s83, {FB}")
    k.e("L_ep_next:")
    poll(k, "L_ep", 4, 1, 83, 10, 64, sleep=16)
    k.e("s_add_u32 s83, s83, 8192")
    k.e(f"s_cmp_lt_u32 s83, {FB + 32768}")
    k.e("s_cbranch_scc1 L_ep_next")
    k.e(f"s_mov_b32 s83, {EP}")
    publish(k, 83, 4)
    k.e("s_branch L_b_aprep")
    k.e("L_b_hasconv:")
    conv.conv2_setup(k, 82)
    k.e(f"s_waitcnt vmcnt({w8 + 2})")
    k.e("s_barrier")
    (conv.conv3_addr if C3 else conv.conv2_addr)(k, 81)
    k.e(f"s_waitcnt vmcnt({w9 + 2})")
    for x in prog_write(248, 251, 1): k.e(x)
    k.e(f"s_waitcnt vmcnt({wr + 2})")
    for x in prog_write(248, 251, 2): k.e(x)
    k.e("L_b_conv:")
    k.e(f"v_mov_b32 v250, {CNT}")
    (conv.conv3_dma if C3 else conv.conv2_dma)(k, 81)
    k.e(f"s_waitcnt vmcnt({8 if C3 else 16})")
    conv.conv2_fix(k)
    stamp(k, 1, 0)
    lds_wait(k, "L_b_uw", 250, 251, UOK, 80)
    conv.conv_setup_u(k, 82, 81, SC1)
    k.e("s_waitcnt vmcnt(0)")
    stamp(k, 1, 1); stamp(k, 3, 3)
    k.e(f"s_setprio {flag('PC', 1)}")
    (conv.conv3_main if C3 else conv.conv_main)(k, "f")
    stamp(k, 3, 0)
    k.e("s_setprio 3")
    conv.conv_epilogue(k, 82, SC1)
    stamp(k, 3, 1)
    k.e(f"s_lshl_b32 s10, s82, {YSH}")
    k.e(f"s_add_u32 s83, s10, {FY}")
    k.e("s_waitcnt vmcnt(0)")
    stamp(k, 3, 2)
    publish(k, 83, 4)
    stamp(k, 1, 2)
    k.e("L_b_aprep:")
    k.e("s_setprio 1")
    b_aprep(k)
    finish(k, 1)
    k.e("L_free:")
    for _ in range(flag("XFREE")): k.e("s_sleep 64")
    k.e("s_waitcnt lgkmcnt(0)")
    flags_srd()
    k.e("s_sub_u32 s84, s2, 224")
    k.e("s_mov_b32 s85, s3")
    k.e("s_cmp_eq_u32 s3, 7")
    k.e("s_cbranch_scc1 L_free_code" if flag("CPF", 1) else "s_cbranch_scc1 L_free_sync")
    k.e("s_cmp_lt_u32 s3, 4")
    k.e("s_cbranch_scc1 L_free_stats")
    k.e("s_setprio 2")
    k.e("s_mul_i32 s85, s84, 3")
    k.e("s_add_u32 s85, s85, s101")
    k.e("s_add_u32 s85, s85, 224")
    aux.emit_prep(k, 85, 81, SC1)
    make_tag(k)
    k.e("s_lshl_b32 s85, s85, 7")
    k.e("s_waitcnt vmcnt(0)")
    publish(k, 85, 4)
    k.e("s_barrier")
    k.e("s_branch L_free_b")
    if flag("CPF", 1):
        k.e("L_free_code:")
        k.e("s_setprio 3")
        k.e("s_getpc_b64 s[40:41]")
        k.e("L_pc:")
        k.e(f"s_sub_u32 s40, s40, L_pc-{NAME}")
        k.e("s_subb_u32 s41, s41, 0")
        k.e(f"s_mov_b32 s42, L_end-{NAME}")
        k.e("s_mov_b32 s43, 0x20000")
        k.e("v_lshlrev_b32 v1, 7, v0")
        k.e("s_mov_b32 s44, 0")
        for i in range(4):
            k.e(f"buffer_load_dword v{8+i}, v1, s[40:43], s44 offen")
            k.e("s_add_u32 s44, s44, 8192")
        k.e("s_setprio 0")
        if AGG:
            k.e("s_waitcnt lgkmcnt(0)")
            make_tag(k)
            k.e("s_cmp_ge_u32 s84, 10")
            k.e("s_cbranch_scc1 L_free_noagg")
            k.e("v_mul_u32_u24 v2, 1280, v0")
            k.e("s_lshl_b32 s85, s84, 7")
            for _ in range(flag("UAGS", 3)): k.e("s_sleep 40")
            k.e("s_setprio 3")
            poll(k, "L_agu", 4, 2, 85, 10, 32, sleep=8)
            k.e(f"s_add_u32 s85, s85, {FS}")
            publish(k, 85, 4)
            k.e("L_free_noagg:")
            k.e("s_barrier")
            k.e("s_branch L_free_b")
        k.e("s_branch L_free_sync")
    k.e("L_free_stats:")
    stats_rows(k, 85)
    aux.emit_stats(k, 52, SC1)
    k.e("s_add_u32 s85, s85, 4")
    k.e("s_cmp_lt_u32 s85, 8")
    k.e("s_cbranch_scc1 L_free_stats")
    k.e("L_free_sync:")
    k.e("s_waitcnt vmcnt(0) lgkmcnt(0)")
    k.e("s_barrier")
    make_tag(k)
    k.e("s_cmp_lt_u32 s3, 4")
    k.e("s_cbranch_scc1 L_free_a")
    k.e("L_free_b:")
    k.e("s_setprio 1")
    k.e("s_lshl_b32 s82, s84, 2")
    k.e("s_add_u32 s82, s82, s101")
    k.e("s_add_u32 s82, s82, 512")
    conv.conv2_setup(k, 82)
    (conv.conv3_addr if C3 else conv.conv2_addr)(k, 81)
    k.e("s_branch L_b_conv")
    k.e("L_free_a:")
    g2_offsets(k)
    srd(k, 44, P_WS, NB_W, W2_OFF)
    k.e("v_lshlrev_b32 v1, 4, v0")
    k.e("v_add_u32 v2, 4096, v1")
    if flag("XLEAD"):
        k.e("v_lshlrev_b32 v30, 7, v0")
        k.e("s_mov_b32 s10, s77")
        for i in range(9):
            k.e(f"buffer_load_dword v{32+i}, v30, s[44:47], s10 offen{SC1}")
            k.e("s_add_u32 s10, s10, 8192")
    if AGG:
        k.e("s_sub_u32 s85, s84, 10")
        k.e("s_cmp_lt_u32 s85, 4")
        k.e("s_cselect_b32 s10, s3, 0")
        k.e("s_cmp_lg_u32 s10, 1")
        k.e("s_cbranch_scc1 L_free_noaw")
        k.e("s_setprio 3")
        k.e("v_lshlrev_b32 v8, 9, v0")
        k.e("s_lshl_b32 s85, s85, 7")
        k.e(f"s_add_u32 s86, s85, {FB}")
        poll(k, "L_agw", 10, 8, 86, 10, 54, sleep=flag("WAGS", 4))
        k.e(f"s_add_u32 s85, s85, {FS + 1280}")
        publish(k, 85, 10)
        k.e("L_free_noaw:")
    k.e("s_cmp_lg_u32 s3, 0")
    k.e("s_cbranch_scc1 L_g2w")
    k.e("s_lshl_b32 s83, s2, 7")
    k.e(f"s_add_u32 s83, s83, {FB}")
    publish(k, 83, 4)
    k.e("s_lshl_b32 s62, s84, 2")
    k.e("s_add_u32 s62, s62, 512")
    watch_addr(k, 16, 62, 62)
    if flag("FLATE"):
        k.e(watch_pre(20, 16)[0])
        watch(k, "L_fw", 20, 16, flag("FSL", 4), lambda: [k.e("s_sleep 32") for _ in range(flag("FLATE"))])
    else:
        for x in watch_pre(20, 16): k.e(x)
        watch(k, "L_fw", 20, 16, flag("FSL", 4))
    k.e("s_branch L_g2w")
    k.e("L_a:")
    k.e("s_setprio 3")
    prep_addr(k)
    k.e("s_waitcnt lgkmcnt(0)")
    prep_loads(k)
    if flag("SB", 1): k.e("s_barrier")
    k.e(f"s_setprio {flag('PAL', 0)}")
    flags_srd()
    g2_offsets(k)
    g1_setup(k)
    k.e("s_waitcnt lgkmcnt(0)")
    make_tag(k)
    prep_compute(k)
    if flag("FIXG"):
        srd(k, 12, P_DBG, 256)
        k.e("s_not_b32 s98, s96")
        k.e("v_mov_b32 v240, s98")
        k.e("v_mov_b32 v241, 0")
        k.e("s_cmp_lg_u32 s3, 0")
        k.e("s_cbranch_scc1 L_nog")
        k.e("s_mov_b64 exec, 1")
        k.e("buffer_atomic_umax v240, v241, s[12:15], 0 offen sc1")
        k.e("s_mov_b64 exec, -1")
        k.e("L_nog:")
    g1_phase(k)
    g2_phase(k)
    if flag("FIXT"):
        if flag("FIXG"):
            srd(k, 12, P_DBG, 256)
            k.e("v_mov_b32 v241, 0")
            k.e("buffer_load_dword v240, v241, s[12:15], 0 offen sc1")
            k.e("s_waitcnt vmcnt(0)")
            k.e("v_readfirstlane_b32 s96, v240")
            k.e("s_not_b32 s96, s96")
        k.e("L_fix:")
        k.e("s_memrealtime s[98:99]")
        k.e("s_waitcnt lgkmcnt(0)")
        k.e("s_sub_u32 s98, s98, s96")
        k.e(f"s_cmp_lt_u32 s98, {flag('FIXT')}")
        k.e("s_cbranch_scc1 L_fix")
    finish(k, 0)
    k.e("L_end:")
    k.e("s_endpgm")
    return k

if __name__ == "__main__":
    import sys
    hdr = open("recurrent_scan__ssm_conv_h3__dense_activation_relu__prompt.s.ref").read().split("; Override")[0]
    k = kernel()
    out = hdr + f"; @launch grid=(256,1,1) block=(512,1,1) lds={LDS_BYTES}\n"
    out += '.amdgcn_target "amdgcn-amd-amdhsa--gfx950"\n.text\n' + k.body() + '.section .rodata,"a"\n' + k.desc()
    open(sys.argv[1], "w").write(out)
```

```python
from common import *
import aux

NSTAGE = 10
SLOT = 32768
WPART = 16384
REL_LDS = 4 * SLOT
K1_LDS = REL_LDS + 10240

class Vm:
    def __init__(self): self.n = 0
    def op(self): self.n += 1; return self.n - 1
    def wait(self, idx): return min(63, self.n - idx - 1)

def is_vmem(x): return x.startswith(("buffer_", "global_"))

def loader_setup(k, s_mt, s_ft, s_lw):
    srd(k, 64, P_Q, NB_X)
    srd(k, 68, P_W1, NB_W)
    XA, WA = 240, 244
    k.e("v_lshrrev_b32 v10, 3, v0")
    k.e(f"s_lshl_b32 s72, s{s_lw}, 5")
    k.e("v_add_u32 v10, s72, v10")
    k.e("v_mul_u32_u24 v10, 1280, v10")
    k.e("v_and_b32 v11, 7, v0")
    k.e("v_lshrrev_b32 v12, 4, v0")
    k.e("v_xor_b32 v13, v11, v12")
    k.e("v_xor_b32 v14, 4, v13")
    k.e(f"v_lshl_add_u32 v{XA}, v13, 4, v10")
    k.e(f"v_lshl_add_u32 v{XA+1}, v14, 4, v10")
    k.e(f"v_add_u32 v{XA+2}, {2*(10240-1024)}, v{XA}")
    k.e(f"v_add_u32 v{XA+3}, {3*(10240-1024)}, v{XA+1}")
    k.e(f"v_add_u32 v{XA+1}, {10240-1024}, v{XA+1}")
    k.e(f"s_lshl_b32 s72, s{s_lw}, 4")
    k.e("v_add_u32 v10, s72, v12")
    k.e("v_mul_u32_u24 v10, 3456, v10")
    k.e("v_and_b32 v11, 1, v0")
    k.e("v_lshl_add_u32 v10, v11, 4, v10")
    k.e("v_bfe_u32 v11, v0, 1, 3")
    k.e("v_xor_b32 v13, v11, v12")
    k.e("v_xor_b32 v14, 4, v13")
    k.e(f"v_lshl_add_u32 v{WA}, v13, 5, v10")
    k.e(f"v_lshl_add_u32 v{WA+2}, v14, 5, v10")
    k.e(f"s_cmp_eq_u32 s{s_ft}, 13")
    k.e("s_cselect_b32 s72, 0x40000000, 0")
    k.e("v_mov_b32 v15, s72")
    k.e("v_cmp_lt_u32 vcc, 3, v13")
    k.e("v_cndmask_b32 v16, 0, v15, vcc")
    k.e("v_sub_u32 v17, v15, v16")
    k.e(f"v_add_u32 v{WA}, v{WA}, v16")
    k.e(f"v_add_u32 v{WA+2}, v{WA+2}, v17")
    st = 4 * 3456 - 1024
    k.e(f"v_add_u32 v{WA+1}, {st}, v{WA}")
    k.e(f"v_add_u32 v{WA+3}, {3*st}, v{WA+2}")
    k.e(f"v_add_u32 v{WA+2}, {2*st}, v{WA+2}")
    k.e(f"s_mul_i32 s73, s{s_mt}, {128*1280}")
    k.e(f"s_lshl_b32 s74, s{s_ft}, 8")
    k.e(f"s_lshl_b32 s75, s{s_lw}, 12")
    if flag("ROT") == 5:
        orders = {0: [[0,4,1,2,3,8,5,6,7,9], [1,0,5,2,3,4,9,6,7,8], [2,3,0,6,1,4,5,7,8,9], [3,2,0,1,7,4,5,6,8,9]],
                  1: [[0,2,1,4,3,6,5,8,7,9], [1,0,3,2,5,4,7,6,9,8], [0,2,1,4,3,6,5,8,7,9], [1,0,3,2,5,4,7,6,9,8]],
                  2: [[0,2,1,3,6,4,5,7,8,9], [0,1,3,2,4,7,5,6,8,9], [1,0,2,4,3,5,8,6,7,9], [1,0,2,3,5,4,6,9,7,8]]}[flag("ORD", 0)]
        pk = [sum(c << (4*i) for i, c in enumerate(o)) for o in orders]
        k.e(f"s_and_b32 s76, s5, {1 if flag('MAP81') else 3}")
        k.e(f"s_lshr_b32 s77, s5, {1 if flag('MAP81') else 2}")
        k.e("s_add_u32 s76, s76, s77")
        k.e("s_and_b32 s76, s76, 3")
        k.e(f"s_mov_b32 s78, {pk[0] & 0xffffffff:#x}")
        k.e(f"s_mov_b32 s79, {pk[0] >> 32:#x}")
        for g in range(1, 4):
            k.e(f"s_cmp_eq_u32 s76, {g}")
            k.e(f"s_cselect_b32 s78, {pk[g] & 0xffffffff:#x}, s78")
            k.e(f"s_cselect_b32 s79, {pk[g] >> 32:#x}, s79")
        if flag("RXT"):
            tbl = {1: [0,5,3,8,5,0,8,3], 2: [0,4,2,6,5,9,7,1], 3: [0,2,3,5,5,7,8,0]}[flag("RXT")]
            k.e("s_lshl_b32 s80, s4, 2")
            k.e(f"s_lshr_b32 s80, {sum(v << (4*i) for i, v in enumerate(tbl)):#x}, s80")
            k.e("s_and_b32 s80, s80, 15")
        else:
            k.e(f"s_mul_i32 s80, s4, {flag('RX', 10)}")
            k.e("s_lshr_b32 s80, s80, 3")
    elif flag("ROT"):
        k.e("s_and_b32 s76, s5, 3")
        k.e(f"s_mul_i32 s76, s76, {flag('RA', 3)}")
        k.e("s_lshr_b32 s77, s5, 2")
        k.e(f"s_mul_i32 s77, s77, {flag('RB', 1)}")
        k.e("s_add_u32 s76, s76, s77")
        if flag("ROT") == 2:
            k.e("s_and_b32 s76, s5, 3")
            k.e("s_mul_i32 s76, s76, 5")
            k.e("s_add_u32 s76, s76, 1")
            k.e("s_lshr_b32 s76, s76, 1")
            k.e("s_lshr_b32 s77, s5, 2")
            k.e("s_mul_i32 s77, s77, 3")
            k.e("s_add_u32 s76, s76, s77")
            k.e("s_and_b32 s77, s4, 6")
            k.e("s_lshr_b32 s77, 0x64, s77")
            k.e("s_and_b32 s77, s77, 3")
            k.e("s_add_u32 s76, s76, s77")
            k.e("s_and_b32 s77, s4, 1")
            k.e("s_add_u32 s76, s76, s77")
        if flag("ROT") == 4:
            k.e("s_and_b32 s76, s5, 3")
            k.e("s_lshr_b32 s77, s5, 2")
            k.e("s_add_u32 s76, s76, s77")
            G = flag("RG", 2)
            if G == 3:
                k.e("s_mul_i32 s77, s76, 21846")
                k.e("s_lshr_b32 s77, s77, 16")
                k.e("s_mul_i32 s77, s77, 3")
                k.e("s_sub_u32 s76, s76, s77")
            else:
                k.e(f"s_and_b32 s76, s76, {G-1}")
            k.e(f"s_mul_i32 s76, s76, {flag('RA', 5)}")
            k.e(f"s_mul_i32 s77, s4, {flag('RX', 5)}")
            k.e("s_lshr_b32 s77, s77, 3")
            k.e("s_add_u32 s76, s76, s77")
        if flag("ROT") == 3:
            k.e("s_and_b32 s76, s5, 1")
            k.e("s_mul_i32 s76, s76, 5")
            k.e("s_lshr_b32 s77, s5, 1")
            k.e("s_mul_i32 s77, s77, 3")
            k.e("s_add_u32 s76, s76, s77")
            k.e("s_mul_i32 s77, s4, 5")
            k.e("s_lshr_b32 s77, s77, 3")
            k.e("s_add_u32 s76, s76, s77")
        k.e("s_mul_i32 s77, s76, 6554")
        k.e("s_lshr_b32 s77, s77, 16")
        k.e("s_mul_i32 s77, s77, 10")
        k.e("s_sub_u32 s76, s76, s77")
        k.e("s_lshl_b32 s77, s76, 7")
        k.e("s_add_u32 s73, s73, s77")
        k.e(f"s_mov_b32 s79, {64*3456}")
        k.e("s_movk_i32 s80, 128")
        k.e("s_mul_i32 s77, s76, s79")
        k.e("s_add_u32 s74, s74, s77")

def dma(stage):
    XA, WA = 240, 244
    slot = (stage % 4) * SLOT
    if flag("ROT") == 5:
        L = ["s_and_b32 s76, s78, 15", "s_lshr_b64 s[78:79], s[78:79], 4", "s_add_u32 s76, s76, s80", "s_sub_u32 s77, s76, 10",
             "s_cmp_ge_u32 s76, 10", "s_cselect_b32 s76, s77, s76", "s_lshl_b32 s72, s76, 7", "s_add_u32 s72, s72, s73",
             f"s_mul_i32 s77, s76, {64*3456}", "s_add_u32 s77, s77, s74", f"s_add_u32 m0, s75, {slot}"]
        for i in range(4):
            L.append(f"buffer_load_dwordx4 v{XA+i}, s[64:67], s72 offen offset:{1024*i} lds")
        L.append(f"s_add_u32 m0, s75, {slot + WPART}")
        for i in range(4):
            L.append(f"buffer_load_dwordx4 v{WA+i}, s[68:71], s77 offen offset:{1024*i} lds")
        return L
    L = [f"s_add_u32 m0, s75, {slot}"]
    for i in range(4):
        L.append(f"buffer_load_dwordx4 v{XA+i}, s[64:67], s73 offen offset:{1024*i} lds")
    L.append(f"s_add_u32 m0, s75, {slot + WPART}")
    for i in range(4):
        L.append(f"buffer_load_dwordx4 v{WA+i}, s[68:71], s74 offen offset:{1024*i} lds")
    if flag("ROT"):
        L.append("s_add_u32 s76, s76, 1")
        L.append("s_cmp_eq_u32 s76, 10")
        L.append("s_cselect_b32 s76, 0, s76")
        L.append(f"s_cselect_b32 s72, {(-9*128) & 0xffffffff:#x}, s80")
        L.append(f"s_cselect_b32 s77, {(-9*64*3456) & 0xffffffff:#x}, s79")
        L.append("s_add_u32 s73, s73, s72")
        L.append("s_add_u32 s74, s74, s77")
    else:
        L.append("s_add_u32 s73, s73, 128")
        L.append(f"s_add_u32 s74, s74, {64*3456}")
    return L

class Rec:
    def __init__(self): self.lines = []
    def e(self, s): self.lines.append(s.strip())
    def c(self, s): pass

def split_aux(emit):
    r = Rec(); emit(r)
    idx = next(i for i, x in enumerate(r.lines) if x.startswith("s_waitcnt vmcnt"))
    loads = r.lines[:idx]
    comp = [x for x in r.lines[idx:] if not x.startswith("s_waitcnt vmcnt")]
    return loads, comp

def loader_body(k, auxparts):
    AL = flag("AL", 3)
    vm = Vm(); last = {}
    for s in range(2):
        for _ in range(8): last[s] = vm.op()
    def put(x):
        k.e(x)
        return vm.op() if is_vmem(x) else None
    loads, comp = auxparts if auxparts else ([], [])
    if flag("NOAUX"): loads, comp = [], []
    if AL == 1:
        for x in loads: put(x)
    first = AL + 1
    nch = max(1, 9 - first)
    per = (len(comp) + nch - 1) // nch if comp else 0
    ci = 0
    for s in range(NSTAGE):
        k.e(f"s_waitcnt vmcnt({vm.wait(last[s])})")
        k.e("s_barrier")
        if s == NSTAGE - 1: break
        stages = [2, 3] if s == 0 else ([s + 3] if s + 3 < NSTAGE else [])
        chunk = comp[ci:ci + per] if s >= first else []
        ci += len(chunk)
        groups = []; cur = []; masked = False
        for x in chunk:
            cur.append(x)
            if "saveexec" in x: masked = True
            if x.startswith("s_mov_b64 exec"): masked = False
            if not masked:
                groups.append(cur); cur = []
        if cur:
            while True:
                x = comp[ci]; ci += 1; cur.append(x)
                if x.startswith("s_mov_b64 exec"): break
            groups.append(cur)
        gper = (len(groups) + 7) // 8
        gi = 0
        for st in stages:
            for x in dma(st):
                r = put(x)
                if r is not None:
                    last[st] = r
                    for g in groups[gi:gi + gper]:
                        for y in g: put(y)
                    gi += gper
            if st == AL:
                for x in loads: put(x)
        for g in groups[gi:]:
            for y in g: put(y)
    if AL == 9:
        k.e("s_barrier")
        k.e("s_waitcnt vmcnt(0)")
    for y in comp[ci:]: put(y)

def g1_compute(k, s_mt, s_ft, s_wave, lbl_end):
    srd(k, 48, P_WS, 32 * NT * 4096, H_OFF)
    k.e(f"s_and_b32 s52, s{s_wave}, 1")
    k.e(f"s_lshr_b32 s53, s{s_wave}, 1")
    k.e(f"s_lshl_b32 s57, s{s_wave}, 12")
    BA, AA = 10, 14
    k.e("v_and_b32 v18, 15, v0")
    k.e("v_lshrrev_b32 v19, 4, v0")
    k.e("v_lshrrev_b32 v20, 1, v18")
    k.e("v_xor_b32 v20, v20, v19")
    k.e("v_lshlrev_b32 v20, 4, v20")
    k.e("v_lshl_add_u32 v20, v18, 7, v20")
    k.e("s_lshl_b32 s58, s52, 13")
    k.e("s_lshl_b32 s59, s53, 12")
    k.e("s_add_u32 s58, s58, s59")
    k.e(f"v_add_u32 v{BA}, s58, v20")
    k.e(f"v_xor_b32 v{BA+1}, 64, v{BA}")
    k.e(f"v_xor_b32 v{BA+2}, 0x1000, v{BA}")
    k.e(f"v_xor_b32 v{BA+3}, 0x1040, v{BA}")
    k.e("v_lshrrev_b32 v20, 2, v18")
    k.e("v_and_b32 v21, 3, v18")
    k.e("v_lshl_add_u32 v22, v19, 3, v20")
    k.e("v_lshlrev_b32 v22, 8, v22")
    k.e("v_lshl_add_u32 v22, v21, 3, v22")
    k.e(f"v_add_u32 v22, {WPART}, v22")
    k.e("v_and_b32 v23, 1, v19")
    k.e("v_lshl_add_u32 v23, v23, 2, v20")
    k.e("s_lshl_b32 s58, s53, 2")
    k.e("s_lshl_b32 s59, s52, 1")
    k.e("s_add_u32 s58, s58, s59")
    k.e("v_xor_b32 v23, s58, v23")
    k.e(f"v_lshl_add_u32 v{AA}, v23, 5, v22")
    for fb in range(1, 4):
        k.e(f"v_xor_b32 v{AA+fb}, {32*fb}, v{AA}")
    ONE = 20
    for i in range(4): k.e(f"v_mov_b32 v{ONE+i}, 0x3f803f80")
    ACC, AR, AC, FR = 24, 88, 96, 112
    def reads(stage, ks, buf):
        so = (stage % 2) * SLOT
        L = []
        fa = FR + 32 * buf; fb_ = fa + 16
        for i in range(4):
            L.append(f"ds_read_b128 v[{fb_+4*i}:{fb_+4*i+3}], v{BA + 2*(i>>1) + ks} offset:{so + 2048*(i&1)}")
            L.append(f"ds_read_b64_tr_b16 v[{fa+4*i}:{fa+4*i+1}], v{AA+i} offset:{so + 8192*ks}")
            L.append(f"ds_read_b64_tr_b16 v[{fa+4*i+2}:{fa+4*i+3}], v{AA+i} offset:{so + 8192*ks + 1024}")
        if flag("NOREAD"): return L[:1]
        return L
    def mfmas(buf, first=False):
        fa = FR + 32 * buf; fb_ = fa + 16
        L = []
        def mm(d, a, b):
            c = "0" if first else f"v[{d}:{d+3}]"
            L.append(f"v_mfma_f32_16x16x32_bf16 v[{d}:{d+3}], v[{a}:{a+3}], v[{b}:{b+3}], {c}")
        for f in range(4):
            for m in range(4):
                mm(ACC + 16*f + 4*m, fa + 4*f, fb_ + 4*m)
        for i in range(2):
            mm(AR + 4*i, ONE, fb_ + 4*i)
            mm(AC + 4*i, fa + 4*i, ONE)
        if flag("NOMFMA"): return L[:1]
        if flag("NOSUM"): return L[:16]
        return L
    from conv import interleave
    for s in range(NSTAGE):
        k.c(f"---- stage {s}")
        k.e("s_waitcnt lgkmcnt(0)")
        k.e("s_barrier")
        if s == 0: stamp_mid(k, 0)
        if s == 3: stamp_mid(k, 1)
        if s == 6: stamp_mid(k, 2)
        tog = []
        if s > 0 and s % 2 == 0:
            tog = [f"v_xor_b32 v{r}, 0x10000, v{r}" for r in list(range(BA, BA+4)) + list(range(AA, AA+4))]
        if s == 0:
            for x in reads(s, 0, 0): k.e(x)
        else:
            for x in interleave(mfmas(1), reads(s, 0, 0)): k.e(x)
        k.e("s_waitcnt lgkmcnt(0)")
        nxt = []
        if (s + 1) % 2 == 0 and s + 1 < NSTAGE:
            nxt = [f"v_xor_b32 v{r}, 0x10000, v{r}" for r in list(range(BA, BA+4)) + list(range(AA, AA+4))]
        for x in interleave(mfmas(0, first=(s == 0)), reads(s, 1, 1) + nxt): k.e(x)
    k.e("s_waitcnt lgkmcnt(0)")
    for x in mfmas(1): k.e(x)
    stamp_mid(k, 3)
    k.c("exchange row/col sums")
    k.e("v_lshlrev_b32 v2, 4, v0")
    k.e("v_add_u32 v3, s57, v2")
    k.e(f"v_mov_b32 v{AR+1}, v{AR+4}")
    k.e(f"ds_write_b64 v3, v[{AR}:{AR+1}]")
    k.e(f"ds_write_b128 v3, v[{AC}:{AC+3}] offset:1024")
    k.e(f"ds_write_b128 v3, v[{AC+4}:{AC+7}] offset:2048")
    k.e("v_xor_b32 v4, 0x2000, v3")
    k.e("v_xor_b32 v5, 0x1000, v3")
    k.e("s_waitcnt lgkmcnt(0)")
    k.e("s_barrier")
    k.e(f"ds_read_b64 v[{AR+2}:{AR+3}], v4")
    k.e(f"ds_read_b128 v[{AC+8}:{AC+11}], v5 offset:1024")
    k.e(f"ds_read_b128 v[{AC+12}:{AC+15}], v5 offset:2048")
    k.e(f"s_lshl_b32 s58, s{s_ft}, 2")
    k.e("s_lshl_b32 s59, s53, 1")
    k.e("s_add_u32 s58, s58, s59")
    k.e(f"s_cmp_ge_u32 s58, {NT}")
    k.e(f"s_cbranch_scc1 {lbl_end}")
    k.e(f"s_lshl_b32 s59, s{s_mt}, 1")
    k.e("s_add_u32 s59, s59, s52")
    k.e(f"s_mul_i32 s59, s59, {NT}")
    k.e("s_add_u32 s58, s58, s59")
    k.e("s_lshl_b32 s58, s58, 12")
    k.e("s_lshl_b32 s60, s52, 12")
    k.e("s_add_u32 s61, s58, s60")
    k.e("s_xor_b32 s60, s60, 0x1000")
    k.e("s_add_u32 s62, s58, s60")
    k.e("s_lshl_b32 s60, s53, 11")
    k.e("v_add_u32 v6, s60, v2")
    k.e("v_xor_b32 v7, 0x800, v6")
    k.e("s_waitcnt lgkmcnt(0)")
    NM = FR
    for m in range(4):
        k.e(f"v_mul_f32 v{AR+m}, {-1.0/D!r}, v{AR+m}")
    k.e(f"v_cvt_pk_bf16_f32 v{AR+4}, v{AR}, v{AR+1}")
    k.e(f"v_cvt_pk_bf16_f32 v{AR+5}, v{AR+2}, v{AR+3}")
    for m in range(4):
        src = AR + 4 + (m >> 1)
        for h in range(2):
            if m & 1: k.e(f"v_and_b32 v{NM+2*m+h}, 0xffff0000, v{src}")
            else:     k.e(f"v_lshlrev_b32 v{NM+2*m+h}, 16, v{src}")
    OUT = FR + 8
    n = 0
    for p in range(2):
        for m in range(4):
            o = OUT + 4 * (n % 4); n += 1
            for ff in range(2):
                f = 2*p + ff
                a = ACC + 16*f + 4*m
                for h in range(2):
                    k.e(f"v_pk_fma_f32 v[{a+2*h}:{a+2*h+1}], v[{AC+4*f+2*h}:{AC+4*f+2*h+1}], v[{NM+2*m}:{NM+2*m+1}], v[{a+2*h}:{a+2*h+1}]")
                for h in range(2):
                    k.e(f"v_cvt_pk_bf16_f32 v{o+2*ff+h}, v{a+2*h}, v{a+2*h+1}")
            for i in range(4):
                k.e(f"v_pk_max_i16 v{o+i}, v{o+i}, 0")
            k.e(f"buffer_store_dwordx4 v[{o}:{o+3}], v{6+(m>>1)}, s[48:51], s{61+p} offen offset:{1024*(m&1)}")

def l2_prefetch(k):
    srd(k, 64, P_Q, NB_X)
    srd(k, 68, P_W1, NB_W)
    k.e("s_lshr_b32 s72, s5, 2")
    k.e("s_add_u32 s72, s72, 3")
    k.e("s_lshl_b32 s72, s72, 7")
    k.e(f"s_mul_i32 s73, s6, {128*1280}")
    k.e("s_add_u32 s72, s72, s73")
    k.e("s_and_b32 s73, s3, 1")
    k.e(f"s_mul_i32 s73, s73, {64*1280}")
    k.e("s_add_u32 s72, s72, s73")
    k.e("v_mul_u32_u24 v2, 1280, v0")
    k.e("s_and_b32 s74, s5, 3")
    k.e("s_mul_i32 s74, s74, 112")
    k.e("s_mul_i32 s75, s3, 28")
    k.e("s_add_u32 s74, s74, s75")
    k.e("s_add_u32 s74, s74, 192")
    k.e("s_mul_i32 s74, s74, 3456")
    k.e("s_lshl_b32 s75, s7, 8")
    k.e("s_add_u32 s74, s74, s75")
    k.e("v_min_u32 v3, 55, v0")
    k.e("v_lshrrev_b32 v4, 1, v3")
    k.e("v_mul_u32_u24 v4, 3456, v4")
    k.e("v_and_b32 v3, 1, v3")
    k.e("v_lshl_add_u32 v4, v3, 7, v4")
    if flag("PFD"): k.e(f"s_sleep {flag('PFD')}")
    k.e("buffer_load_dword v200, v4, s[68:71], s74 offen")
    k.e("s_cmp_ge_u32 s3, 2")
    k.e("s_cbranch_scc1 L_k1_nopfx")
    k.e("buffer_load_dword v201, v2, s[64:67], s72 offen")
    k.e("L_k1_nopfx:")

def k1_kernel():
    k = Kern("k1_kernel")
    stamp_begin(k)
    k.e("s_cmp_ge_u32 s2, 256")
    k.e("s_cbranch_scc1 L_k1_end")
    load_ptrs(k)
    k.e("v_lshrrev_b32 v1, 6, v0")
    k.e("v_readfirstlane_b32 s3, v1")
    k.e("v_and_b32 v0, 63, v0")
    k.e("s_and_b32 s4, s2, 7")
    k.e("s_lshr_b32 s5, s2, 3")
    k.e("s_lshr_b32 s6, s4, 1")
    k.e("s_lshl_b32 s6, s6, 2")
    k.e("s_and_b32 s7, s5, 3")
    k.e("s_add_u32 s6, s6, s7")
    k.e("s_and_b32 s7, s4, 1")
    k.e("s_mul_i32 s7, s7, 7")
    k.e("s_lshr_b32 s8, s5, 2")
    k.e("s_add_u32 s7, s7, s8")
    k.e("s_cmp_ge_u32 s2, 224")
    k.e("s_cbranch_scc1 L_k1_free")
    k.e("s_cmp_lt_u32 s3, 4")
    k.e("s_cbranch_scc1 L_k1_mfma")
    k.e("s_sub_u32 s9, s3, 4")
    if flag("PL"): k.e(f"s_setprio {flag('PL')}")
    k.e("s_waitcnt lgkmcnt(0)")
    loader_setup(k, 6, 7, 9)
    for s in range(2):
        for x in dma(s): k.e(x)
    k.e("s_cmp_eq_u32 s9, 0")
    k.e("s_cbranch_scc1 L_k1_stats")
    k.e("s_cmp_eq_u32 s9, 1")
    k.e("s_cbranch_scc1 L_k1_rel")
    k.e("s_cmp_eq_u32 s9, 2")
    k.e("s_cbranch_scc1 L_k1_plain")
    k.e("s_sub_u32 s10, s2, 64")
    k.e("s_cmp_lt_u32 s10, 32")
    k.e("s_cbranch_scc0 L_k1_w7")
    k.e("s_add_u32 s2, s10, 224")
    k.e("L_k1_stats:")
    k.e("s_and_b32 s10, s2, 6")
    k.e("s_lshl_b32 s10, s10, 8")
    k.e("s_lshr_b32 s11, s2, 3")
    k.e("s_lshl_b32 s11, s11, 4")
    k.e("s_add_u32 s10, s10, s11")
    k.e("s_and_b32 s11, s2, 1")
    k.e("s_lshl_b32 s11, s11, 3")
    k.e("s_add_u32 s78, s10, s11")
    loader_body(k, split_aux(lambda r: aux.emit_stats(r, 78)))
    finish(k, 0)
    k.e("L_k1_w7:")
    k.e("s_sub_u32 s10, s2, 96")
    k.e("s_cmp_lt_u32 s10, 3")
    k.e("s_cbranch_scc0 L_k1_plain")
    srd(k, 40, P_WS, 4096, FL_OFF)
    k.e("s_lshl_b32 s10, s10, 10")
    k.e("v_lshlrev_b32 v1, 4, v0")
    for i in range(4): k.e(f"v_mov_b32 v{4+i}, 0")
    k.e("buffer_store_dwordx4 v[4:7], v1, s[40:43], s10 offen")
    k.e("s_waitcnt vmcnt(0)")
    k.e("L_k1_plain:")
    loader_body(k, None)
    finish(k, 0)
    k.e("L_k1_rel:")
    k.e("s_cmp_ge_u32 s2, 216")
    k.e("s_cbranch_scc1 L_k1_plain")
    k.e(f"s_mov_b32 s78, {REL_LDS}")
    loader_body(k, split_aux(lambda r: aux.emit_relayout(r, 2, 78)))
    finish(k, 0)
    k.e("L_k1_free:")
    if flag("NOFREE"): k.e("s_endpgm")
    k.e("s_sub_u32 s78, s2, 224")
    k.e("s_lshl_b32 s78, s78, 3")
    k.e("s_add_u32 s78, s78, s3")
    k.e("s_lshl_b32 s79, s3, 13")
    k.e("s_waitcnt lgkmcnt(0)")
    k.e("L_k1_prep:")
    aux.emit_prep(k, 78, 79)
    k.e("s_cmp_ge_u32 s78, 256")
    k.e("s_cbranch_scc1 L_k1_prepdone")
    k.e("s_cmp_ge_u32 s3, 2")
    k.e("s_cbranch_scc1 L_k1_prepdone")
    k.e("s_sub_u32 s78, s2, 224")
    k.e("s_lshl_b32 s78, s78, 1")
    k.e("s_add_u32 s78, s78, s3")
    k.e("s_add_u32 s78, s78, 256")
    k.e("s_waitcnt vmcnt(0)")
    k.e("s_branch L_k1_prep")
    k.e("L_k1_prepdone:")
    finish(k, 2)
    k.e("L_k1_mfma:")
    k.e("s_waitcnt lgkmcnt(0)")
    if flag("PFL2"):
        l2_prefetch(k)
    g1_compute(k, 6, 7, 3, "L_k1_end")
    finish(k, 1)
    k.e("L_k1_end:")
    k.e("s_endpgm")
    return k
```

```python
from common import *
import aux, conv, k1
from conv import interleave, CONV_LDS
from k1 import Vm, is_vmem, SLOT, WPART, NSTAGE, Rec

NAME = "recurrent_scan__ssm_conv_h3__dense_activation_relu__prompt_kernel"
SC1 = " sc1"
OOB = 0x40000000
RB0 = 65536
EA = 131072
TOP = RB0 + 4 * CONV_LDS
RLB = 135168
CNT = 163776
LDS_BYTES = 163840
YCNT, YOK, AUXOK, UOK, PROG, PA, PB = 0, 4, 12, 16, 20, 32, 48
XO, YO, SO = 0, 3072, 6144
HSH = 7; YSH = flag("YSH", 3)
FA, EP, FB, FH = 0, 40960, 45056, 77824
FY = FH + (1024 << 7)
FS = FY + (640 << 7)
FL_BYTES = FS + (16 << 7)
AGG = flag('AGG', 0)
TAG, FSRD = 90, 92
SPIN_MAX = 0x20000
NSTEP, NH, NW = 14, 4, 5
G_ACC, G_H = 8, 88
W_SL = [176, 196, 216, 236, 156]
C3 = flag("C3", 1)
EWI = flag("EWI", 0)
EPI = flag("EPI", 1)
AWP = flag("AWP", 0)
ST = flag("ST", 0)
def stamp(k, setno, i):
    if ST == setno: stamp_mid(k, i)
def cstamp(k, name, i):
    if STAMP and os.environ.get("CK", "").split(",")[i:i+1] == [name]:
        stamp_mid(k, 2*i)
        k.e("s_memtime s[10:11]")
        k.e("s_waitcnt lgkmcnt(0)")
        k.e(f"s_mov_b32 s{13+2*i}, s10")
def cs(k, name):
    cstamp(k, name, 0); cstamp(k, name, 1)

def make_tag(k):
    k.e(f"s_mul_i32 s{TAG}, s{TAG}, 1664525")
    k.e(f"s_add_u32 s{TAG}, s{TAG}, 1013904223")
    k.e(f"s_mul_i32 s{TAG+1}, s{TAG+1}, 22695477")
    k.e(f"s_add_u32 s{TAG+1}, s{TAG+1}, 1")

HSC = '' if flag('HPLAIN') else SC1
def publish(k, s_off, va, SC1=SC1):
    k.e(f"v_mov_b32 v{va}, s{TAG}")
    k.e(f"v_mov_b32 v{va+1}, s{TAG+1}")
    k.e(f"v_mov_b32 v{va+2}, 0")
    k.e("s_mov_b64 exec, 1")
    k.e(f"buffer_store_dwordx2 v[{va}:{va+1}], v{va+2}, s[{FSRD}:{FSRD+3}], s{s_off} offen{SC1}")
    k.e("s_mov_b64 exec, -1")

def poll(k, lbl, vd, voff, s_off, s_cnt, nlanes, sleep=4, preloaded=False):
    so = f"s{s_off}" if s_off is not None else "0"
    k.e(f"s_mov_b32 s{s_cnt}, 0")
    if nlanes < 64: k.e(f"s_bfm_b64 exec, {nlanes}, 0")
    if preloaded: k.e(f"s_branch {lbl}_chk")
    k.e(f"{lbl}:")
    k.e(f"buffer_load_dwordx2 v[{vd}:{vd+1}], v{voff}, s[{FSRD}:{FSRD+3}], {so} offen{SC1}")
    k.e("s_waitcnt vmcnt(0)")
    k.e(f"{lbl}_chk:")
    k.e(f"v_cmp_ne_u64 vcc, s[{TAG}:{TAG+1}], v[{vd}:{vd+1}]")
    k.e("s_and_b64 exec, exec, vcc")
    k.e(f"s_cbranch_scc0 {lbl}_ok")
    k.e(f"s_sleep {sleep}")
    k.e(f"s_add_u32 s{s_cnt}, s{s_cnt}, 1")
    k.e(f"s_cmp_lt_u32 s{s_cnt}, {SPIN_MAX:#x}")
    k.e(f"s_cbranch_scc1 {lbl}")
    k.e(f"{lbl}_ok:")
    k.e("s_mov_b64 exec, -1")

def lds_wait(k, lbl, vaddr, vtmp, off, s_tmp, sleep=2):
    k.e(f"{lbl}:")
    k.e(f"ds_read_b32 v{vtmp}, v{vaddr} offset:{off}")
    k.e("s_waitcnt lgkmcnt(0)")
    k.e(f"v_readfirstlane_b32 s{s_tmp}, v{vtmp}")
    k.e(f"s_cmp_lg_u32 s{s_tmp}, 0")
    k.e(f"s_cbranch_scc1 {lbl}_ok")
    k.e(f"s_sleep {sleep}")
    k.e(f"s_branch {lbl}")
    k.e(f"{lbl}_ok:")

def prog_write(vaddr, vtmp, val):
    return [f"v_mov_b32 v{vtmp}, {val}", f"s_mov_b64 exec, 1\nds_write_b32 v{vaddr}, v{vtmp}\ns_mov_b64 exec, -1"]
def prog_min(vd, s_tmp):
    return [f"v_min3_u32 v{vd}, v{vd}, v{vd+1}, v{vd+2}", f"v_min_u32 v{vd}, v{vd}, v{vd+3}", f"v_readfirstlane_b32 s{s_tmp}, v{vd}"]
def prog_spin(k, lbl, vcnt, vd, off, s_tmp, need, sleep=0):
    k.e(f"s_cmp_ge_u32 s{s_tmp}, {need}")
    k.e(f"s_cbranch_scc1 {lbl}_ok")
    k.e(f"{lbl}:")
    if sleep: k.e(f"s_sleep {sleep}")
    k.e(f"ds_read_b128 v[{vd}:{vd+3}], v{vcnt} offset:{off}")
    k.e("s_waitcnt lgkmcnt(0)")
    for x in prog_min(vd, s_tmp): k.e(x)
    k.e(f"s_cmp_lt_u32 s{s_tmp}, {need}")
    k.e(f"s_cbranch_scc1 {lbl}")
    k.e(f"{lbl}_ok:")
def prog_wait(k, lbl, vcnt, vd, off, s_tmp, need, sleep=1):
    k.e(f"s_mov_b32 s{s_tmp}, 0")
    prog_spin(k, lbl, vcnt, vd, off, s_tmp, need, sleep)

def watch_addr(k, va, s_cha, s_chb):
    if AGG:
        k.e("s_lshr_b32 s10, s9, 1")
        k.e(f"s_add_u32 s10, s10, {10 + (FS >> 7)}")
        k.e("s_lshl_b32 s10, s10, 7")
        k.e(f"v_mov_b32 v{va}, s10")
        k.e(f"s_lshr_b32 s10, s{s_cha}, 6")
        k.e(f"s_lshr_b32 s11, s{s_chb}, 6")
        k.e(f"v_mov_b32 v{va+1}, s11")
        k.e(f"v_writelane_b32 v{va+1}, s10, 0")
        k.e(f"v_lshlrev_b32 v{va+1}, 7, v{va+1}")
        k.e(f"v_add_u32 v{va+1}, {FS}, v{va+1}")
        return
    k.e("s_lshr_b32 s10, s9, 1")
    k.e(f"s_add_u32 s10, s10, {FB >> 7}")
    k.e(f"v_lshl_add_u32 v{va}, v0, 2, s10")
    k.e(f"v_mov_b32 v{va+1}, s10")
    k.e("v_cmp_gt_u32 vcc, 54, v0")
    k.e(f"v_cndmask_b32 v{va}, v{va+1}, v{va}, vcc")
    k.e(f"v_lshlrev_b32 v{va}, 7, v{va}")
    k.e(f"s_lshr_b32 s10, s{s_cha}, 6")
    k.e(f"s_lshr_b32 s11, s{s_chb}, 6")
    k.e(f"v_mov_b32 v{va+1}, s11")
    k.e(f"v_mov_b32 v{va+2}, s10")
    k.e("v_cmp_gt_u32 vcc, 32, v0")
    k.e(f"v_cndmask_b32 v{va+1}, v{va+1}, v{va+2}, vcc")
    k.e(f"v_and_b32 v{va+2}, 31, v0")
    k.e(f"v_mad_u32_u24 v{va+1}, v{va+2}, 10, v{va+1}")
    k.e(f"v_lshlrev_b32 v{va+1}, 7, v{va+1}")
def watch_pre(vd, va):
    return [f"buffer_load_dwordx2 v[{vd}:{vd+1}], v{va+1}, s[{FSRD}:{FSRD+3}], 0 offen{SC1}",
            f"buffer_load_dwordx2 v[{vd+2}:{vd+3}], v{va}, s[{FSRD}:{FSRD+3}], 0 offen{SC1}"]
def watch(k, lbl, vd, va, sl=4, late=None):
    k.e("s_waitcnt vmcnt(0)")
    poll(k, lbl + "a", vd, va + 1, None, 10, 64, sleep=sl, preloaded=True)
    k.e(f"v_mov_b32 v{vd}, {CNT}")
    k.e(f"v_mov_b32 v{vd+1}, 1")
    k.e(f"ds_write_b32 v{vd}, v{vd+1} offset:{UOK}")
    if late: late()
    poll(k, lbl + "b", vd + 2, va, None, 10, 64, sleep=sl, preloaded=not late)
    k.e(f"ds_write_b32 v{vd}, v{vd+1} offset:{AUXOK}")

def xo_offsets(k, vb, t1, t2):
    k.e("s_lshl_b32 s53, s8, 2")
    k.e("s_add_u32 s53, s53, s101")
    k.e("s_mul_i32 s54, s53, 20480")
    k.e("s_mul_i32 s55, s9, 160")
    k.e("s_add_u32 s54, s54, s55")
    for i in range(3):
        k.e(f"v_add_u32 v{t1}, {64*i}, v0")
        k.e(f"v_mul_u32_u24 v{t2}, 6554, v{t1}")
        k.e(f"v_lshrrev_b32 v{t2}, 16, v{t2}")
        k.e(f"v_mul_u32_u24 v{t2}, 1120, v{t2}")
        k.e(f"v_lshl_add_u32 v{vb+i}, v{t1}, 4, v{t2}")
    k.e(f"v_mov_b32 v{t2}, {OOB}")
    k.e("v_cmp_gt_u32 vcc, 32, v0")
    k.e(f"v_cndmask_b32 v{vb+2}, v{t2}, v{vb+2}, vcc")

def unit_ids(k, s_rb, s_cgp):
    k.e(f"s_mul_i32 s{s_rb}, s2, 6554")
    k.e(f"s_lshr_b32 s{s_rb}, s{s_rb}, 16")
    k.e(f"s_mul_i32 s{s_cgp}, s{s_rb}, 10")
    k.e(f"s_sub_u32 s{s_cgp}, s2, s{s_cgp}")
def prep_addr(k):
    unit_ids(k, 52, 53)
    k.e("s_lshl_b32 s54, s52, 2")
    k.e("s_add_u32 s54, s54, s101")
    k.e("s_mul_i32 s54, s54, 20480")
    k.e("s_lshl_b32 s55, s53, 7")
    k.e("s_add_u32 s54, s54, s55")
    k.e("v_lshrrev_b32 v1, 3, v0")
    k.e("v_mul_u32_u24 v2, 1280, v1")
    k.e("v_and_b32 v3, 7, v0")
    k.e("v_lshl_add_u32 v2, v3, 4, v2")
    if flag("XNOPL"): k.e(f"s_mov_b32 s54, {OOB}")
    k.e("v_add_u32 v200, s54, v2")
    k.e("v_subrev_u32 v201, 3840, v200")
    k.e(f"v_add_u32 v202, {10240 - 3840 - 1024}, v200")
    k.e(f"v_add_u32 v203, {20480 - 3840 - 2048}, v200")
    k.e(f"v_mov_b32 v6, {OOB}")
    k.e("v_cmp_gt_u32 vcc, 24, v0")
    k.e("v_cndmask_b32 v203, v6, v203, vcc")
    k.e(f"v_add_u32 v204, {10240 - 1024}, v200")
    k.e("s_mul_i32 s56, s101, 5120")
    k.e(f"s_add_u32 s56, s56, {EA}")
    k.e("v_and_b32 v7, 31, v0")
    k.e("s_lshl_b32 s55, s53, 9")
    k.e("v_lshl_add_u32 v205, v7, 4, s55")
def prep_loads(k):
    srd(k, 40, P_K, NB_X)
    k.e("s_mov_b32 m0, s56")
    k.e("buffer_load_dwordx4 v201, s[40:43], 0 offen lds")
    k.e("buffer_load_dwordx4 v202, s[40:43], 0 offen offset:1024 lds")
    k.e("buffer_load_dwordx4 v203, s[40:43], 0 offen offset:2048 lds")
    srd(k, 44, P_V, NB_X)
    k.e("s_add_u32 m0, s56, 3072")
    k.e("buffer_load_dwordx4 v200, s[44:47], 0 offen lds")
    k.e("buffer_load_dwordx4 v204, s[44:47], 0 offen offset:1024 lds")
    srd(k, 48, P_SH, D * 8)
    k.e("buffer_load_dwordx4 v[212:215], v205, s[48:51], 0 offen")
    k.e("v_lshrrev_b32 v9, 5, v0")
    k.e("v_lshlrev_b32 v10, 10, v9")
    k.e("v_lshl_add_u32 v10, v7, 2, v10")
    k.e("v_add_u32 v209, s56, v10")
    k.e("v_sub_u32 v11, 1, v9")
    k.e("v_lshlrev_b32 v11, 4, v11")
    k.e("v_lshl_add_u32 v11, v7, 6, v11")
    k.e("v_add_u32 v210, s56, v11")
def prep_compute(k):
    KR, VR, TP, KU, VU, KV, OUT = 112, 124, 132, 140, 216, 180, 184
    k.e("s_waitcnt vmcnt(0)")
    for j in range(11): k.e(f"ds_read_b32 v{KR+j}, v209 offset:{128*j}")
    for j in range(8): k.e(f"ds_read_b32 v{VR+j}, v209 offset:{3072 + 128*j}")
    for c in range(2):
        unpack(k, TP + 0 + c, TP + 2 + c, 212 + 2*c)
        unpack(k, TP + 4 + c, TP + 6 + c, 213 + 2*c)
    k.e("s_waitcnt lgkmcnt(8)")
    for j in range(11): unpack(k, KU + 2*j, KU + 2*j + 1, KR + j)
    k.e("s_waitcnt lgkmcnt(0)")
    for j in range(8): unpack(k, VU + 2*j, VU + 2*j + 1, VR + j)
    for r in range(8):
        d = KV + 2*(r & 1)
        for j in (3, 2, 1, 0):
            w = KU + 2*(r + 3 - j); t = TP + 2*j
            if j == 3: k.e(f"v_pk_mul_f32 v[{d}:{d+1}], v[{w}:{w+1}], v[{t}:{t+1}]")
            else: k.e(f"v_pk_fma_f32 v[{d}:{d+1}], v[{w}:{w+1}], v[{t}:{t+1}], v[{d}:{d+1}]")
        k.e(f"v_pk_mul_f32 v[{d}:{d+1}], v[{d}:{d+1}], v[{VU+2*r}:{VU+2*r+1}]")
        if r & 1:
            for c in range(2):
                k.e(f"v_cvt_pk_bf16_f32 v{OUT+4*c+3-r//2}, v{KV+2+c}, v{KV+c}")
    for c in range(2):
        k.e(f"ds_write_b128 v210, v[{OUT+4*c}:{OUT+4*c+3}] offset:{32*c}")

def b_aux_addr(k):
    srd(k, 84, P_W2, NB_W)
    srd(k, 44, P_WS, NB_W, W2_OFF)
    srd(k, 40, P_WS, NB_T, UR_OFF)
    k.e("s_lshr_b32 s57, s2, 2")
    k.e("s_and_b32 s58, s2, 3")
    k.e("s_mul_i32 s59, s57, 40960")
    k.e("s_mul_i32 s60, s58, 320")
    k.e("s_add_u32 s59, s59, s60")
    k.e("s_lshl_b32 s60, s101, 6")
    k.e("s_lshl_b32 s61, s101, 10")
    for i in range(3):
        k.e("v_add_u32 v9, s60, v0")
        if i: k.e(f"v_add_u32 v9, {256*i}, v9")
        k.e("v_mul_u32_u24 v10, 52429, v9")
        k.e("v_lshrrev_b32 v10, 20, v10")
        k.e("v_mul_u32_u24 v10, 960, v10")
        k.e(f"v_lshl_add_u32 v{206+i}, v9, 4, v10")
    k.e("s_cmp_ge_u32 s101, 2")
    k.e(f"s_cselect_b32 s60, {OOB}, 0")
    k.e("v_add_u32 v208, s60, v208")
    k.e(f"s_add_u32 s62, s61, {EA + 20480 + 8192}")
    k.e("s_cmp_ge_u32 s101, 2")
    k.e(f"s_cselect_b32 s62, {EA + 30720}, s62")
def b_aux_addr2(k):
    k.e("s_lshr_b32 s10, s101, 1")
    k.e("s_and_b32 s11, s101, 1")
    k.e("s_mul_i32 s60, s10, 5")
    k.e("s_mul_i32 s54, s11, 3")
    k.e("s_add_u32 s60, s60, s54")
    k.e("s_lshl_b32 s60, s60, 5")
    k.e(f"s_add_u32 s60, s60, {EA + 20480}")
    k.e("v_lshrrev_b32 v11, 2, v0")
    k.e("v_mul_u32_u24 v11, 320, v11")
    k.e("v_and_b32 v12, 3, v0")
    k.e("v_lshl_add_u32 v11, v12, 3, v11")
    k.e("v_add_u32 v214, s60, v11")
    k.e("s_lshl_b32 s60, s58, 1")
    k.e("s_add_u32 s60, s60, s10")
    k.e(f"s_mul_i32 s89, s60, {NT}")
    k.e("s_add_u32 s89, s89, s57")
    k.e("s_mul_i32 s89, s89, 5120")
    k.e("s_lshl_b32 s54, s54, 10")
    k.e("s_add_u32 s89, s89, s54")
    k.e("s_cmp_ge_u32 s2, 216")
    k.e(f"s_cselect_b32 s89, {OOB}, s89")
    if flag("XNOW"): k.e(f"s_mov_b32 s89, {OOB}")
    k.e("v_lshlrev_b32 v215, 4, v0")
    k.e("s_cmp_eq_u32 s11, 1")
    k.e(f"s_cselect_b32 s54, {OOB}, 0")
    k.e("v_add_u32 v216, s54, v215")
    unit_ids(k, 52, 53)
    k.e("v_lshrrev_b32 v1, 3, v0")
    k.e("v_and_b32 v3, 7, v0")
    k.e("v_lshrrev_b32 v11, 1, v3")
    k.e("v_sub_u32 v11, 3, v11")
    k.e("v_mul_u32_u24 v11, 5120, v11")
    k.e("v_lshl_add_u32 v11, v1, 5, v11")
    k.e("v_and_b32 v12, 1, v3")
    k.e("v_lshl_add_u32 v11, v12, 4, v11")
    k.e("s_lshl_b32 s55, s101, 9")
    k.e(f"s_add_u32 s55, s55, {EA}")
    k.e("v_add_u32 v211, s55, v11")
    k.e(f"v_mul_u32_u24 v232, {RS}, v1")
    k.e("v_lshl_add_u32 v232, v3, 4, v232")
    k.e(f"v_add_u32 v233, {8*RS}, v232")
    k.e("s_lshl_b32 s63, s53, 2")
    k.e("s_add_u32 s63, s63, s101")
    k.e(f"s_mul_i32 s63, s63, {16*RS}")
    k.e("s_lshl_b32 s55, s52, 7")
    k.e("s_sub_u32 s55, 3968, s55")
    k.e("s_add_u32 s63, s63, s55")
    if flag("XNOST"):
        k.e(f"s_mov_b32 s63, {OOB}")
        k.e(f"s_mov_b32 s89, {OOB}")
def rel_loads():
    return [f"s_add_u32 m0, s61, {EA + 20480}",
            "buffer_load_dwordx4 v206, s[84:87], s59 offen lds",
            f"s_add_u32 m0, s61, {EA + 20480 + 4096}",
            "buffer_load_dwordx4 v207, s[84:87], s59 offen lds",
            "s_mov_b32 m0, s62",
            "buffer_load_dwordx4 v208, s[84:87], s59 offen lds"]
def aux_out():
    L = [f"ds_read_b128 v[{100+4*i}:{103+4*i}], v211 offset:{256*i}" for i in range(2)]
    for i in range(3):
        L.append(f"ds_read_b64_tr_b16 v[{188+4*i}:{189+4*i}], v214 offset:{32*i}")
        L.append(f"ds_read_b64_tr_b16 v[{190+4*i}:{191+4*i}], v214 offset:{32*i + 5120}")
    L.append("s_waitcnt lgkmcnt(0)")
    L += [f"buffer_store_dwordx4 v[{100+4*i}:{103+4*i}], v{232+i}, s[40:43], s63 offen{SC1}" for i in range(2)]
    L += [f"buffer_store_dwordx4 v[{188+4*i}:{191+4*i}], v{216 if i == 2 else 215}, s[44:47], s89 offen offset:{1024*i}{SC1}" for i in range(3)]
    return L

def rel1_addr(k):
    srd(k, 84, P_W2, NB_W)
    srd(k, 44, P_WS, NB_W, W2_OFF)
    k.e("s_lshr_b32 s57, s2, 2")
    k.e("s_and_b32 s58, s2, 3")
    k.e("s_mul_i32 s59, s57, 40960")
    k.e("s_mul_i32 s60, s58, 320")
    k.e("s_add_u32 s59, s59, s60")
    k.e("s_lshl_b32 s60, s101, 6")
    k.e("s_lshl_b32 s61, s101, 10")
    for i in range(3):
        k.e("v_add_u32 v9, s60, v0")
        if i: k.e(f"v_add_u32 v9, {256*i}, v9")
        k.e("v_mul_u32_u24 v10, 52429, v9")
        k.e("v_lshrrev_b32 v10, 20, v10")
        k.e("v_mul_u32_u24 v10, 960, v10")
        k.e(f"v_lshl_add_u32 v{110+i}, v9, 4, v10")
    k.e("s_cmp_ge_u32 s101, 2")
    k.e(f"s_cselect_b32 s60, {OOB}, 0")
    k.e("v_add_u32 v112, s60, v112")
    k.e("v_lshrrev_b32 v11, 2, v0")
    k.e("v_mul_u32_u24 v11, 320, v11")
    k.e("v_and_b32 v12, 3, v0")
    k.e("v_lshl_add_u32 v11, v12, 3, v11")
    k.e("s_lshr_b32 s10, s101, 1")
    k.e("s_and_b32 s11, s101, 1")
    k.e("s_mul_i32 s60, s10, 5")
    k.e("s_mul_i32 s54, s11, 3")
    k.e("s_add_u32 s60, s60, s54")
    k.e("s_lshl_b32 s60, s60, 5")
    k.e(f"s_add_u32 s60, s60, {RLB}")
    k.e("v_add_u32 v214, s60, v11")
    k.e("s_lshl_b32 s60, s58, 1")
    k.e("s_add_u32 s60, s60, s10")
    k.e(f"s_mul_i32 s89, s60, {NT}")
    k.e("s_add_u32 s89, s89, s57")
    k.e("s_mul_i32 s89, s89, 5120")
    k.e("s_lshl_b32 s54, s54, 10")
    k.e("s_add_u32 s89, s89, s54")
    k.e("s_cmp_ge_u32 s2, 216")
    k.e(f"s_cselect_b32 s89, {OOB}, s89")
    if flag("XNOW"): k.e(f"s_mov_b32 s89, {OOB}")
    k.e("v_lshlrev_b32 v215, 4, v0")
    k.e("s_cmp_eq_u32 s11, 1")
    k.e(f"s_cselect_b32 s54, {OOB}, 0")
    k.e("v_add_u32 v216, s54, v215")
def rel1_loads():
    L = []
    for i in range(3):
        L.append(f"s_add_u32 m0, s61, {RLB + 4096*i}")
        L.append(f"buffer_load_dwordx4 v{110+i}, s[84:87], s59 offen lds")
    return L
def rel1_reads():
    L = []
    for i in range(3):
        L.append(f"ds_read_b64_tr_b16 v[{188+4*i}:{189+4*i}], v214 offset:{32*i}")
        L.append(f"ds_read_b64_tr_b16 v[{190+4*i}:{191+4*i}], v214 offset:{32*i + 5120}")
    return L
def rel1_stores():
    return ["s_waitcnt lgkmcnt(0)"] + [f"buffer_store_dwordx4 v[{188+4*i}:{191+4*i}], v{216 if i == 2 else 215}, s[44:47], s89 offen offset:{1024*i}{SC1}" for i in range(3)]
def u_addr(k):
    srd(k, 40, P_WS, NB_T, UR_OFF)
    unit_ids(k, 52, 53)
    k.e("v_lshrrev_b32 v1, 3, v0")
    k.e("v_and_b32 v3, 7, v0")
    k.e("v_lshrrev_b32 v11, 1, v3")
    k.e("v_sub_u32 v11, 3, v11")
    k.e("v_mul_u32_u24 v11, 5120, v11")
    k.e("v_lshl_add_u32 v11, v1, 5, v11")
    k.e("v_and_b32 v12, 1, v3")
    k.e("v_lshl_add_u32 v11, v12, 4, v11")
    k.e("s_lshl_b32 s55, s101, 9")
    k.e(f"s_add_u32 s55, s55, {EA}")
    k.e("v_add_u32 v211, s55, v11")
    k.e(f"v_mul_u32_u24 v232, {RS}, v1")
    k.e("v_lshl_add_u32 v232, v3, 4, v232")
    k.e(f"v_add_u32 v233, {8*RS}, v232")
    k.e("s_lshl_b32 s63, s53, 2")
    k.e("s_add_u32 s63, s63, s101")
    k.e(f"s_mul_i32 s63, s63, {16*RS}")
    k.e("s_lshl_b32 s55, s52, 7")
    k.e("s_sub_u32 s55, 3968, s55")
    k.e("s_add_u32 s63, s63, s55")
def u_out():
    L = [f"ds_read_b128 v[{100+4*i}:{103+4*i}], v211 offset:{256*i}" for i in range(2)]
    L.append("s_waitcnt lgkmcnt(0)")
    L += [f"buffer_store_dwordx4 v[{100+4*i}:{103+4*i}], v{232+i}, s[40:43], s63 offen{SC1}" for i in range(2)]
    return L

def g2_offsets(k):
    k.e("s_mul_i32 s10, s101, 14")
    k.e("s_cmp_eq_u32 s101, 3")
    k.e("s_cselect_b32 s10, 41, s10")
    k.e(f"s_mul_i32 s11, s8, {NT}")
    k.e("s_add_u32 s11, s11, s10")
    k.e("s_lshl_b32 s76, s11, 12")
    k.e(f"s_mul_i32 s11, s9, {NT}")
    k.e("s_add_u32 s11, s11, s10")
    k.e("s_mul_i32 s77, s11, 5120")
    k.e("s_cmp_ge_u32 s101, 2")
    k.e(f"s_cselect_b32 s79, {OOB}, 0")
    k.e("s_mul_i32 s75, s101, 7")
    k.e("s_min_u32 s75, s75, 20")
    k.e("s_lshl_b32 s11, s8, 5")
    k.e("s_add_u32 s75, s75, s11")
    k.e(f"s_lshl_b32 s75, s75, {HSH}")
    k.e(f"s_add_u32 s75, s75, {FH}")
    k.e("s_lshl_b32 s74, s101, 14")
    k.e("s_min_u32 s10, s10, 40")
    k.e("s_lshl_b32 s10, s10, 2")
    k.e("s_lshr_b32 s11, s9, 1")
    k.e("s_add_u32 s10, s10, s11")
    k.e("s_lshl_b32 s10, s10, 7")
    k.e(f"s_add_u32 s71, s10, {FB}")
LSTEPS = [int(x) for x in os.environ.get("LSTEPS", "5,8,11").split(",")]
def soff(dst, base, step, mul):
    st = step
    if flag("XHIT") & 1 and mul == 4096: st = step % 2
    if flag("XHIT") & 2 and mul == 5120: st = step % 2
    L = [f"s_add_u32 s{dst}, s{base}, {st * mul}"]
    if step == NSTEP - 1: L.append(f"s_add_u32 s{dst}, s{dst}, s79")
    return L
def w_loads(step):
    b = W_SL[step % NW]
    L = soff(73, 77, step, 5120)
    L += [f"buffer_load_dwordx4 v[{b+4*d}:{b+4*d+3}], v1, s[44:47], s73 offen offset:{1024*d}{SC1}" for d in range(4)]
    L.append(f"buffer_load_dwordx4 v[{b+16}:{b+19}], v2, s[44:47], s73 offen{SC1}")
    return L
def h_loads(step):
    b = G_H + 16 * (step % NH)
    L = soff(72, 76, step, 4096)
    L += [f"buffer_load_dwordx4 v[{b+4*m}:{b+4*m+3}], v{3+m}, s[40:43], s72 offen{SC1}" for m in range(4)]
    return L
def w_lds_reads(step):
    b = W_SL[step % NW]
    return [f"ds_read_b128 v[{b+4*d}:{b+4*d+3}], v7 offset:{LSTEPS.index(step)*5120 + 1024*d}" for d in range(5)]
def g2_mfmas(step, order=None):
    b = G_H + 16 * (step % NH); wb = W_SL[step % NW]
    L = []
    for d, m in (order or [(d, m) for d in range(5) for m in range(4)]):
        a = G_ACC + 16*d + 4*m
        c = "0" if step == 0 else f"v[{a}:{a+3}]"
        L.append(f"v_mfma_f32_16x16x32_bf16 v[{a}:{a+3}], v[{wb+4*d}:{wb+4*d+3}], v[{b+4*m}:{b+4*m+3}], {c}")
    return L

def g2_phase(k):
    for s in range(EWI or flag("NP", 0), NW):
        for x in w_loads(s): k.e(x)
    srd(k, 40, P_WS, 32 * NT * 4096, H_OFF)
    k.e("s_lshl_b32 s52, s101, 10")
    k.e("v_add_u32 v3, s52, v1")
    for m in range(1, 4): k.e(f"v_xor_b32 v{3+m}, {1024*m}, v3")
    k.e(f"v_lshlrev_b32 v9, {HSH}, v0")
    EPOL = flag("EPOL", 8); left = 15
    for li, s in enumerate(LSTEPS):
        for x in soff(78, 77, s, 5120): k.e(x)
        for d in range(5):
            if left == EPOL:
                k.e("s_bfm_b64 exec, 7, 0")
                k.e(f"buffer_load_dwordx2 v[10:11], v9, s[{FSRD}:{FSRD+3}], s75 offen{SC1}")
                k.e("s_mov_b64 exec, -1")
            left -= 1
            if d in (0, 4): k.e(f"s_add_u32 m0, s74, {li*5120 + 1024*d}")
            if d < 4: k.e(f"buffer_load_dwordx4 v1, s[44:47], s78 offen offset:{1024*d}{SC1} lds")
            else: k.e(f"buffer_load_dwordx4 v2, s[44:47], s78 offen{SC1} lds")
    k.e("v_add_u32 v7, s74, v1")
    k.e(f"v_mov_b32 v152, {CNT}")
    k.e(f"s_waitcnt vmcnt({EPOL})")
    poll(k, "L_hpoll", 10, 9, 75, 58, 7, sleep=2, preloaded=True)
    stamp(k, 1, 2); cs(k, "rdy")
    vm = Vm(); need = {}
    NH0 = flag("NH0", 3)
    for s in range(NH0):
        for x in h_loads(s):
            k.e(x)
            if is_vmem(x): need[("h", s)] = vm.op()
    def groups(L):
        G = []; cur = []
        for x in L:
            cur.append(x)
            if is_vmem(x): G.append(cur); cur = []
        return G
    LA = flag("LA", 2); R = flag("RATE", 6)
    qh = [(s - (NH - 1), s - LA, "h", s, g) for s in range(NH0, NSTEP) for g in groups(h_loads(s))]
    qw = [(s - (NW - 1), s - LA, "w", s, g) for s in range(NW, NSTEP) if s not in LSTEPS for g in groups(w_loads(s))]
    for s in range(NSTEP):
        idx = max(need[("h", s)], need.get(("w", s), -1))
        lg = " lgkmcnt(0)" if (s in LSTEPS or s == NSTEP - 1) else ""
        k.e(f"s_waitcnt vmcnt({vm.wait(idx)}){lg}")
        if s in (0, 3, 7, 10): stamp(k, 4, (0, 3, 7, 10).index(s))
        if s in (10, 12, 13): stamp(k, 5, (10, 12, 13).index(s))
        if s == NSTEP - 1: break
        fill = []
        while (qh or qw):
            cand = [q for q in (qh, qw) if q and q[0][0] <= s]
            if not cand: break
            q = min(cand, key=lambda q: q[0][1])
            if len(fill) >= R and q[0][1] > s: break
            fill.append(q.pop(0))
        extra = []
        if s == flag("YAT", 5): extra.append(f"ds_write_b32 v152, v152 offset:{PROG}")
        if s + 2 in LSTEPS: extra += w_lds_reads(s + 2)
        if s == 12:
            r = Rec(); tail_addr(r); extra += ["\n".join(r.lines[i:i+2]) for i in range(0, len(r.lines), 2)]
        n = len(fill); fi = 0; ei = 0
        for i, x in enumerate(g2_mfmas(s)):
            k.e(x)
            if fi < n and i >= (fi * 18) // n:
                for y in fill[fi][4]: k.e(y)
                need[(fill[fi][2], fill[fi][3])] = vm.op(); fi += 1
            elif ei < len(extra):
                k.e(extra[ei]); ei += 1
        assert fi == n
        for y in extra[ei:]: k.e(y)
    assert not qh and not qw
    k.e("s_setprio 2")
    order = [(3, 0), (4, 0)] + [(d, m) for m in (1, 2, 3) for d in range(5)] + [(0, 0), (1, 0), (2, 0)]
    wr = [f"ds_write_b128 v{T+8}, v[{G_ACC+16*d}:{G_ACC+16*d+3}] offset:{OWN + 1024*(d-3)}" for d in (3, 4)]
    wr += [f"ds_write_b128 v7, v[{G_ACC+16*d+4*m}:{G_ACC+16*d+4*m+3}] offset:{(m-1)*5120 + 1024*d}" for d, m in order[2:17]]
    k.e("s_cmp_ge_u32 s101, 2")
    k.e("s_cbranch_scc1 L_g2_short")
    for x in interleave(g2_mfmas(NSTEP - 1, order), wr, start=6): k.e(x)
    k.e("s_branch L_g2_join")
    k.e("L_g2_short:")
    k.e("s_nop 7")
    for x in wr: k.e(x)
    k.e("L_g2_join:")
    stamp(k, 1, 3); cs(k, "mend")
    g2_tail(k)

T = 156
OWN = SO + 3072
assert C3
def tail_addr(k):
    srd(k, 48, P_OUT, NB_X)
    k.e("s_lshl_b32 s53, s8, 2")
    k.e("s_add_u32 s53, s53, s101")
    k.e("s_mul_i32 s54, s53, 20480")
    k.e("s_mul_i32 s55, s9, 160")
    k.e("s_add_u32 s54, s54, s55")
    for i in range(2):
        k.e(f"v_add_u32 v{T+3}, {64*i}, v0")
        k.e(f"v_mul_u32_u24 v{T+4}, 10923, v{T+3}")
        k.e(f"v_lshrrev_b32 v{T+4}, 16, v{T+4}")
        k.e(f"v_mul_u32_u24 v{T+4}, {1280-96}, v{T+4}")
        k.e(f"v_lshl_add_u32 v{T+i}, v{T+3}, 4, v{T+4}")
    k.e(f"v_mov_b32 v{T+4}, {OOB}")
    k.e("v_cmp_gt_u32 vcc, 32, v0")
    k.e(f"v_cndmask_b32 v{T+1}, v{T+4}, v{T+1}, vcc")
    for m in range(1, 4): k.e(f"v_xor_b32 v{T+4+m}, {16384*m}, v7")
    k.e(f"v_add_u32 v{T+8}, s81, v1")
    k.e(f"v_and_b32 v{T+9}, 15, v0")
    k.e(f"v_mul_u32_u24 v{T+9}, 96, v{T+9}")
    k.e(f"v_lshrrev_b32 v{T+10}, 4, v0")
    k.e(f"v_lshl_add_u32 v{T+9}, v{T+10}, 3, v{T+9}")
    k.e(f"v_add_u32 v{T+9}, s81, v{T+9}")
    k.e(f"v_mov_b32 v{T+12}, 1.0")
    k.e(f"v_mov_b32 v{T+13}, 1.0")
def final_block(k, a, s, x, cc, one):
    for h in range(2):
        k.e(f"v_pk_add_f32 v[{a+2*h}:{a+2*h+1}], v[{a+2*h}:{a+2*h+1}], v[{a+4+2*h}:{a+4+2*h+1}]")
        k.e(f"v_pk_add_f32 v[{a+8+2*h}:{a+8+2*h+1}], v[{a+8+2*h}:{a+8+2*h+1}], v[{a+12+2*h}:{a+12+2*h+1}]")
    for h in range(2):
        k.e(f"v_pk_add_f32 v[{a+2*h}:{a+2*h+1}], v[{a+2*h}:{a+2*h+1}], v[{a+8+2*h}:{a+8+2*h+1}]")
    e = a + 4
    for h in range(2):
        k.e(f"v_pk_mul_f32 v[{e+2*h}:{e+2*h+1}], v[{a+2*h}:{a+2*h+1}], v[{cc}:{cc+1}]")
    for r in range(4): k.e(f"v_exp_f32 v{e+r}, v{e+r}")
    for h in range(2):
        k.e(f"v_pk_mul_f32 v[{a+2*h}:{a+2*h+1}], v[{a+2*h}:{a+2*h+1}], v[{s+2*h}:{s+2*h+1}]")
    for h in range(2):
        k.e(f"v_pk_add_f32 v[{e+2*h}:{e+2*h+1}], v[{e+2*h}:{e+2*h+1}], v[{one}:{one+1}]")
    for r in range(4): k.e(f"v_rcp_f32 v{e+r}, v{e+r}")
    for h in range(2):
        k.e(f"v_pk_fma_f32 v[{a+2*h}:{a+2*h+1}], v[{a+2*h}:{a+2*h+1}], v[{e+2*h}:{e+2*h+1}], v[{x+2*h}:{x+2*h+1}]")
    k.e(f"v_cvt_pk_bf16_f32 v{a+8}, v{a}, v{a+1}")
    k.e(f"v_cvt_pk_bf16_f32 v{a+9}, v{a+2}, v{a+3}")
def g2_tail(k):
    k.e("s_waitcnt lgkmcnt(0)")
    stamp(k, 6, 0)
    k.e("s_barrier")
    stamp(k, 5, 3); stamp(k, 6, 1)
    SF, XF, CC = 88, 108, T + 14
    k.e(f"ds_read_b64 v[{CC}:{CC+1}], v{T+8} offset:{SO + 10240}")
    for d in range(3):
        for m in range(1, 4):
            a = G_ACC + 16*d + 4*m
            k.e(f"ds_read_b128 v[{a}:{a+3}], v{T+4+m} offset:{(m-1)*5120 + 1024*d}")
        k.e(f"ds_read_b128 v[{SF+4*d}:{SF+4*d+3}], v{T+8} offset:{SO + 1024*d}")
        k.e(f"ds_read_b128 v[{XF+4*d}:{XF+4*d+3}], v{T+8} offset:{SO + 5120 + 1024*d}")
    for d in range(3):
        k.e(f"s_waitcnt lgkmcnt({10-5*d})")
        final_block(k, G_ACC + 16*d, SF + 4*d, XF + 4*d, CC, T + 12)
    stamp(k, 6, 2)
    for d in range(3):
        a = G_ACC + 16*d
        k.e(f"ds_write_b64 v{T+9}, v[{a+8}:{a+9}] offset:{XO + 32*d}")
    k.e("s_waitcnt lgkmcnt(0)")
    O = 128
    for i in range(2): k.e(f"ds_read_b128 v[{O+4*i}:{O+4*i+3}], v{T+8} offset:{XO + 1024*i}")
    for i in range(2):
        k.e(f"s_waitcnt lgkmcnt({1-i})")
        k.e(f"buffer_store_dwordx4 v[{O+4*i}:{O+4*i+3}], v{T+i}, s[48:51], s54 offen")
    stamp(k, 6, 3)
def b_tail(k):
    srd(k, 48, P_OUT, NB_X)
    k.e("v_lshlrev_b32 v8, 4, v0")
    k.e("s_lshl_b32 s59, s101, 14")
    k.e("v_add_u32 v8, s59, v8")
    for m in range(1, 4): k.e(f"v_xor_b32 v{8+m}, {16384*m}, v8")
    k.e("v_and_b32 v12, 15, v0")
    k.e("v_lshlrev_b32 v12, 6, v12")
    k.e("v_lshrrev_b32 v13, 4, v0")
    k.e("v_lshl_add_u32 v12, v13, 3, v12")
    k.e("v_add_u32 v12, s81, v12")
    k.e("v_lshrrev_b32 v13, 2, v0")
    k.e("v_mul_u32_u24 v13, 1280, v13")
    k.e("v_and_b32 v14, 3, v0")
    k.e("v_lshl_add_u32 v13, v14, 4, v13")
    k.e("v_mov_b32 v14, 1.0")
    k.e("v_mov_b32 v15, 1.0")
    k.e("s_waitcnt lgkmcnt(0)")
    k.e("s_barrier")
    P = 104
    for i, d in enumerate((3, 4)):
        k.e(f"ds_read_b128 v[{P+16*i}:{P+16*i+3}], v37 offset:{OWN + 1024*i}")
        for m in range(1, 4):
            k.e(f"ds_read_b128 v[{P+16*i+4*m}:{P+16*i+4*m+3}], v{8+m} offset:{(m-1)*5120 + 1024*d}")
    for i, d in enumerate((3, 4)):
        k.e(f"s_waitcnt lgkmcnt({4-4*i})")
        final_block(k, P + 16*i, 60 + 4*d, 40 + 4*d, 38, 14)
    for i in range(2): k.e(f"ds_write_b64 v12, v[{P+16*i+8}:{P+16*i+9}] offset:{YO + 32*i}")
    k.e("s_waitcnt lgkmcnt(0)")
    k.e(f"ds_read_b128 v[16:19], v37 offset:{YO}")
    k.e("s_waitcnt lgkmcnt(0)")
    k.e("buffer_store_dwordx4 v[16:19], v13, s[48:51], s54 offen offset:96")

BA, AA, ONE, ACC, AR, AC, FR = 10, 14, 20, 24, 88, 96, 112
def g1_setup(k):
    srd(k, 48, P_WS, 32 * NT * 4096, H_OFF)
    srd(k, 44, P_WS, NB_W, W2_OFF)
    k.e("s_and_b32 s52, s3, 1")
    k.e("s_lshr_b32 s53, s3, 1")
    k.e("v_lshlrev_b32 v1, 4, v0")
    k.e("v_add_u32 v2, 4096, v1")
    k.e("v_and_b32 v18, 15, v0")
    k.e("v_lshrrev_b32 v19, 4, v0")
    k.e("v_lshrrev_b32 v20, 1, v18")
    k.e("v_xor_b32 v20, v20, v19")
    k.e("v_lshlrev_b32 v20, 4, v20")
    k.e("v_lshl_add_u32 v20, v18, 7, v20")
    k.e("s_lshl_b32 s58, s52, 13")
    k.e("s_lshl_b32 s59, s53, 12")
    k.e("s_add_u32 s58, s58, s59")
    k.e(f"v_add_u32 v{BA}, s58, v20")
    k.e(f"v_xor_b32 v{BA+1}, 64, v{BA}")
    k.e(f"v_xor_b32 v{BA+2}, 0x1000, v{BA}")
    k.e(f"v_xor_b32 v{BA+3}, 0x1040, v{BA}")
    k.e("v_lshrrev_b32 v20, 2, v18")
    k.e("v_and_b32 v21, 3, v18")
    k.e("v_lshl_add_u32 v22, v19, 3, v20")
    k.e("v_lshlrev_b32 v22, 8, v22")
    k.e("v_lshl_add_u32 v22, v21, 3, v22")
    k.e(f"v_add_u32 v22, {WPART}, v22")
    k.e("v_and_b32 v23, 1, v19")
    k.e("v_lshl_add_u32 v23, v23, 2, v20")
    k.e("s_lshl_b32 s58, s53, 2")
    k.e("s_lshl_b32 s59, s52, 1")
    k.e("s_add_u32 s58, s58, s59")
    k.e("v_xor_b32 v23, s58, v23")
    k.e(f"v_lshl_add_u32 v{AA}, v23, 5, v22")
    for fb in range(1, 4): k.e(f"v_xor_b32 v{AA+fb}, {32*fb}, v{AA}")
    for i in range(4): k.e(f"v_mov_b32 v{ONE+i}, 0x3f803f80")
    for r, x in ((3, 0), (4, 2), (5, 1)):
        k.e(f"s_xor_b32 s58, s3, {x}")
        k.e("s_mul_i32 s58, s58, 3072")
        k.e(f"s_add_u32 s58, s58, {TOP}")
        k.e(f"v_add_u32 v{r}, s58, v1")
    k.e("s_lshl_b32 s58, s7, 1")
    k.e("s_add_u32 s57, s58, s53")
    k.e("s_lshl_b32 s59, s6, 1")
    k.e("s_add_u32 s59, s59, s52")
    k.e("s_lshl_b32 s56, s59, 5")
    k.e("s_add_u32 s56, s56, s57")
    k.e(f"s_lshl_b32 s56, s56, {HSH}")
    k.e(f"s_add_u32 s56, s56, {FH}")
    k.e(f"s_mul_i32 s59, s59, {NT}")
    k.e("s_lshl_b32 s58, s57, 1")
    k.e("s_add_u32 s58, s58, s59")
    k.e("s_lshl_b32 s58, s58, 12")
    k.e("s_lshl_b32 s59, s52, 12")
    k.e("s_add_u32 s60, s58, s59")
    k.e("s_xor_b32 s59, s59, 0x1000")
    k.e("s_add_u32 s61, s58, s59")
    k.e("s_lshl_b32 s59, s53, 11")
    k.e("v_add_u32 v6, s59, v1")
    k.e("v_xor_b32 v7, 0x800, v6")
    k.e(f"v_mov_b32 v18, {CNT}")
    k.e("s_lshl_b32 s58, s3, 2")
    k.e(f"s_add_u32 s58, s58, {CNT + PA}")
    k.e("v_mov_b32 v19, s58")

def g1_phase(k):
    PV = 176
    def reads(stage, ks, buf):
        so = (stage % 2) * SLOT
        L = []
        fa = FR + 32 * buf; fb_ = fa + 16
        for i in range(4):
            L.append(f"ds_read_b128 v[{fb_+4*i}:{fb_+4*i+3}], v{BA + 2*(i>>1) + ks} offset:{so + 2048*(i&1)}")
            L.append(f"ds_read_b64_tr_b16 v[{fa+4*i}:{fa+4*i+1}], v{AA+i} offset:{so + 8192*ks}")
            L.append(f"ds_read_b64_tr_b16 v[{fa+4*i+2}:{fa+4*i+3}], v{AA+i} offset:{so + 8192*ks + 1024}")
        return L
    def mfmas(buf, first=False, sums_first=False):
        fa = FR + 32 * buf; fb_ = fa + 16
        L = []; Sm = []
        def mm(Tg, d, a, b):
            c = "0" if first else f"v[{d}:{d+3}]"
            Tg.append(f"v_mfma_f32_16x16x32_bf16 v[{d}:{d+3}], v[{a}:{a+3}], v[{b}:{b+3}], {c}")
        for f in range(4):
            for m in range(4): mm(L, ACC + 16*f + 4*m, fa + 4*f, fb_ + 4*m)
        for i in range(2):
            mm(Sm, AR + 4*i, ONE, fb_ + 4*i)
            mm(Sm, AC + 4*i, fa + 4*i, ONE)
        if flag("QNOSUM") and not first and not sums_first: return L
        return Sm + L if sums_first else L + Sm
    def dense(L):
        n = flag("DEN", 2)
        return ["\n".join(L[i:i+n]) for i in range(0, len(L), n)]
    tog = [f"v_xor_b32 v{r}, 0x10000, v{r}" for r in list(range(BA, BA+4)) + list(range(AA, AA+4))]
    for s in range(NSTAGE):
        k.c(f"---- stage {s}")
        k.e("s_waitcnt lgkmcnt(0)")
        m1 = mfmas(1)
        if s < 9: k.e("s_barrier")
        else:
            for x in interleave(m1[:3], prog_min(PV, 58)): k.e(x)
            m1 = m1[3:]
            prog_spin(k, "L_a9", 18, PV, PB, 58, 1)
        if s == 0: stamp(k, 1, 0); stamp(k, 2, 0); cs(k, "b0")
        if s == 4: cs(k, "b4")
        if s == 4: stamp(k, 2, 1)
        if s == 8:
            stamp(k, 2, 2)
            k.e("s_setprio 2")
        for x in (reads(0, 0, 0) if s == 0 else interleave(m1, dense(reads(s, 0, 0)))): k.e(x)
        k.e("s_waitcnt lgkmcnt(0)")
        m0 = mfmas(0, first=(s == 0))
        nxt = tog if ((s + 1) % 2 == 0 and s + 1 < NSTAGE) else []
        if s == 9 and EPI:
            m0 = mfmas(0, sums_first=True)
            exch = [f"v_mov_b32 v{AR+1}, v{AR+4}",
                    f"ds_write_b64 v3, v[{AR}:{AR+1}]",
                    f"ds_write_b128 v3, v[{AC}:{AC+3}] offset:1024",
                    f"ds_write_b128 v3, v[{AC+4}:{AC+7}] offset:2048"] + prog_write(19, 8, 11)
            body = (interleave(m0[:10], dense(reads(s, 1, 1))) + ["s_waitcnt lgkmcnt(0)"] + mfmas(1, sums_first=True)[:4]
                    + m0[10:14] + interleave(m0[14:], exch))
        elif s == 8:
            body = interleave(m0[:-3], dense(reads(s, 1, 1))) + [f"ds_read_b128 v[{PV}:{PV+3}], v18 offset:{PB}"] + m0[-3:]
        else:
            body = interleave(m0, dense(reads(s, 1, 1)) + nxt)
        for x in body: k.e(x)
    if EPI:
        allm = mfmas(1, sums_first=True)[4:]
        fin = [allm[4*(2*p+ff) + m] for p in range(2) for m in range(4) for ff in range(2)]
        sync_reads = [f"ds_read_b128 v[{PV}:{PV+3}], v18 offset:{PA}",
                      f"ds_read_b64 v[{AR+2}:{AR+3}], v4",
                      f"ds_read_b128 v[{AC+8}:{AC+11}], v5 offset:1024",
                      f"ds_read_b128 v[{AC+12}:{AC+15}], v5 offset:2048"]
        k.e("s_cmp_ge_u32 s57, 27")
        for r in (56, 60, 61): k.e(f"s_cselect_b32 s{r}, {OOB}, s{r}")
        for x in fin[:2] + interleave(fin[2:8], sync_reads): k.e(x)
        k.e("s_branch L_a_chk")
        k.e("L_a_sync:")
        for x in sync_reads: k.e(x)
        k.e("L_a_chk:")
        k.e("s_waitcnt lgkmcnt(0)")
        for x in prog_min(PV, 58): k.e(x)
        k.e("s_cmp_lt_u32 s58, 11")
        k.e("s_cbranch_scc1 L_a_sync")
        stamp(k, 2, 3); cs(k, "sync")
        NM = FR; OUT = FR + 8
        V = [f"v_mul_f32 v{AR+m}, {-1.0/D!r}, v{AR+m}" for m in range(4)]
        V += [f"v_cvt_pk_bf16_f32 v{AR+4}, v{AR}, v{AR+1}", f"v_cvt_pk_bf16_f32 v{AR+5}, v{AR+2}, v{AR+3}"]
        for m in range(4):
            src = AR + 4 + (m >> 1)
            V.append(f"v_and_b32 v{NM+m}, 0xffff0000, v{src}" if m & 1 else f"v_lshlrev_b32 v{NM+m}, 16, v{src}")
        n = 0
        for p in range(2):
            for m in range(4):
                o = OUT + 4 * (n % 4); n += 1
                for ff in range(2):
                    f = 2*p + ff
                    a = ACC + 16*f + 4*m
                    V += [f"v_fmac_f32 v{a+r}, v{AC+4*f+r}, v{NM+m}" for r in range(4)]
                    V += [f"v_cvt_pk_bf16_f32 v{o+2*ff+h}, v{a+2*h}, v{a+2*h+1}" for h in range(2)]
                if p == 1 and m == 2 and flag("NP", 0): V.append(f"ds_read_b32 v8, v18 offset:{AUXOK}")
                V += [f"v_pk_max_i16 v{o+i}, v{o+i}, 0" for i in range(4)]
                V.append(f"buffer_store_dwordx4 v[{o}:{o+3}], v{6+(m>>1)}, s[48:51], s{60+p} offen offset:{1024*(m&1)}{HSC}")
        pos = len(V) - flag("EVP", 40)
        V = V[:pos] + prog_write(19, 8, 12) + V[pos:]
        rest = fin[8:]
        for i, x in enumerate(V):
            if i % 3 == 0 and rest: k.e(rest.pop(0))
            k.e(x)
    else:
        k.e("s_waitcnt lgkmcnt(0)")
        fin = mfmas(1, sums_first=True)
        exch = [f"v_mov_b32 v{AR+1}, v{AR+4}",
                f"ds_write_b64 v3, v[{AR}:{AR+1}]",
                f"ds_write_b128 v3, v[{AC}:{AC+3}] offset:1024",
                f"ds_write_b128 v3, v[{AC+4}:{AC+7}] offset:2048"] + prog_write(19, 8, 11)
        for x in fin[:7] + interleave(fin[7:], exch): k.e(x)
        k.e("L_a_sync:")
        k.e(f"ds_read_b128 v[{PV}:{PV+3}], v18 offset:{PA}")
        k.e(f"ds_read_b64 v[{AR+2}:{AR+3}], v4")
        k.e(f"ds_read_b128 v[{AC+8}:{AC+11}], v5 offset:1024")
        k.e(f"ds_read_b128 v[{AC+12}:{AC+15}], v5 offset:2048")
        if EWI: k.e(f"ds_read_b32 v8, v18 offset:{AUXOK}")
        k.e("s_waitcnt lgkmcnt(0)")
        for x in prog_min(PV, 58): k.e(x)
        k.e("s_cmp_lt_u32 s58, 11")
        k.e("s_cbranch_scc1 L_a_sync")
        stamp(k, 2, 3); cs(k, "sync")
        if flag("HTF", 1):
            k.e("s_cmp_ge_u32 s57, 27")
            for r in (56, 60, 61): k.e(f"s_cselect_b32 s{r}, {OOB}, s{r}")
        else:
            k.e("s_cmp_ge_u32 s57, 27")
            k.e("s_cbranch_scc1 L_g2w")
        NM = FR
        wl = []
        if EWI:
            k.e("v_readfirstlane_b32 s71, v8")
            k.e("s_mov_b32 s70, s77")
            k.e("s_cmp_eq_u32 s71, 0")
            k.e(f"s_cselect_b32 s77, {OOB}, s77")
            cur = []
            for st in range(EWI):
                for x in w_loads(st):
                    cur.append(x)
                    if is_vmem(x): wl.append(cur); cur = []
        for m in range(4): k.e(f"v_mul_f32 v{AR+m}, {-1.0/D!r}, v{AR+m}")
        k.e(f"v_cvt_pk_bf16_f32 v{AR+4}, v{AR}, v{AR+1}")
        k.e(f"v_cvt_pk_bf16_f32 v{AR+5}, v{AR+2}, v{AR+3}")
        for m in range(4):
            src = AR + 4 + (m >> 1)
            if m & 1: k.e(f"v_and_b32 v{NM+m}, 0xffff0000, v{src}")
            else:     k.e(f"v_lshlrev_b32 v{NM+m}, 16, v{src}")
        OUT = FR + 8
        n = 0
        for p in range(2):
            for m in range(4):
                o = OUT + 4 * (n % 4); n += 1
                for ff in range(2):
                    f = 2*p + ff
                    a = ACC + 16*f + 4*m
                    for r in range(4): k.e(f"v_fmac_f32 v{a+r}, v{AC+4*f+r}, v{NM+m}")
                    for h in range(2): k.e(f"v_cvt_pk_bf16_f32 v{o+2*ff+h}, v{a+2*h}, v{a+2*h+1}")
                if p == 1 and m == 2 and flag("NP", 0): k.e(f"ds_read_b32 v8, v18 offset:{AUXOK}")
                for i in range(4): k.e(f"v_pk_max_i16 v{o+i}, v{o+i}, 0")
                k.e(f"buffer_store_dwordx4 v[{o}:{o+3}], v{6+(m>>1)}, s[48:51], s{60+p} offen offset:{1024*(m&1)}{HSC}")
                lo, hi = (len(wl) * (n - 1)) // 8, (len(wl) * n) // 8
                for g in wl[lo:hi]:
                    for x in g: k.e(x)
        if EWI:
            k.e(f"s_waitcnt vmcnt({hi - lo})")
            publish(k, 56, 12, HSC)
            stamp(k, 1, 1)
            k.e("s_setprio 0")
            k.e("s_mov_b32 s77, s70")
            k.e("s_cmp_eq_u32 s71, 0")
            k.e("s_cbranch_scc0 L_g2b")
            k.e("s_branch L_g2w")
    NP = EWI or flag("NP", 0)
    if NP and not EWI:
        k.e("s_waitcnt lgkmcnt(0)")
        k.e("v_readfirstlane_b32 s58, v8")
        k.e("s_cmp_eq_u32 s58, 0")
        k.e("s_cbranch_scc1 L_a_slow")
        for st in range(NP):
            for x in w_loads(st): k.e(x)
        k.e(f"s_waitcnt vmcnt({5*NP})")
        publish(k, 56, 12, HSC)
        stamp(k, 1, 1)
        k.e("s_setprio 0")
        k.e("s_branch L_g2b")
        k.e("L_a_slow:")
    if AWP:
        k.e("v_lshlrev_b32 v9, 9, v0")
        k.e("s_bfm_b64 exec, 14, 0")
        k.e(f"buffer_load_dwordx2 v[10:11], v9, s[{FSRD}:{FSRD+3}], s71 offen{SC1}")
        k.e("s_mov_b64 exec, -1")
        k.e("s_waitcnt vmcnt(1)")
        publish(k, 56, 12, HSC)
        stamp(k, 1, 1)
        k.e("s_waitcnt vmcnt(1)")
        k.e("s_setprio 0")
        poll(k, "L_aw", 10, 9, 71, 58, 14, preloaded=True)
        k.e("s_branch L_g2b")
        k.e("L_g2w:")
        k.e("s_setprio 0")
        k.e(f"v_mov_b32 v10, {CNT}")
        lds_wait(k, "L_aw2", 10, 11, AUXOK, 58, sleep=4)
    else:
        if not EWI:
            k.e("s_waitcnt vmcnt(0)")
            publish(k, 56, 12, HSC)
            stamp(k, 1, 1)
        k.e("L_g2w:")
        k.e("s_setprio 0")
        k.e(f"v_mov_b32 v10, {CNT}")
        lds_wait(k, "L_aw2", 10, 11, AUXOK, 58, sleep=4)
    for st in range(NP):
        for x in w_loads(st): k.e(x)
    k.e("L_g2b:")

def b_aprep(k):
    srd(k, 40, P_Q, NB_X)
    srd(k, 44, P_WS, 16384, ST_OFF)
    srd(k, 68, P_WS, NB_T, YT_OFF)
    xo_offsets(k, 8, 1, 2)
    for i in range(3):
        k.e(f"s_add_u32 m0, s81, {XO + 1024*i}")
        k.e(f"buffer_load_dwordx4 v{8+i}, s[40:43], s54 offen lds")
    k.e("v_and_b32 v1, 15, v0")
    k.e("v_lshlrev_b32 v3, 3, v1")
    k.e("s_lshl_b32 s57, s53, 7")
    k.e("v_lshrrev_b32 v4, 3, v0")
    k.e(f"v_mul_u32_u24 v4, {RS}, v4")
    k.e("v_and_b32 v2, 7, v0")
    k.e("v_lshl_add_u32 v4, v2, 4, v4")
    k.e("s_mul_i32 s58, s9, 10")
    k.e("s_add_u32 s58, s58, s101")
    k.e(f"s_mul_i32 s58, s58, {8*RS}")
    k.e("s_lshl_b32 s59, s8, 7")
    k.e("s_add_u32 s58, s58, s59")
    k.e(f"v_mov_b32 v2, {CNT}")
    k.e("v_mul_u32_u24 v5, 160, v1")
    k.e("v_lshrrev_b32 v6, 4, v0")
    k.e("v_lshl_add_u32 v5, v6, 3, v5")
    k.e("v_add_u32 v5, s81, v5")
    k.e("v_lshrrev_b32 v36, 5, v0")
    k.e(f"v_mul_u32_u24 v36, {CONV_LDS}, v36")
    k.e("v_bfe_u32 v7, v0, 2, 3")
    k.e("v_lshl_add_u32 v36, v7, 7, v36")
    k.e("v_and_b32 v7, 3, v0")
    k.e("v_lshl_add_u32 v36, v7, 3, v36")
    k.e("s_lshl_b32 s59, s101, 5")
    k.e(f"s_add_u32 s59, s59, {RB0}")
    k.e("v_add_u32 v36, s59, v36")
    k.e("v_lshlrev_b32 v37, 4, v0")
    k.e("v_add_u32 v37, s81, v37")
    XR, YR, XF, SF = 16, 26, 40, 60
    k.e("s_waitcnt vmcnt(0)")
    for d in range(5): k.e(f"ds_read_b64 v[{XR+2*d}:{XR+2*d+1}], v5 offset:{XO + 32*d}")
    k.e("s_waitcnt lgkmcnt(0)")
    for d in range(5):
        for h in range(2): unpack(k, XF + 4*d + 2*h, XF + 4*d + 2*h + 1, XR + 2*d + h)
        if d < 3: k.e(f"ds_write_b128 v37, v[{XF+4*d}:{XF+4*d+3}] offset:{SO + 5120 + 1024*d}")
    k.e("s_setprio 0")
    k.e("s_cmp_eq_u32 s101, 0")
    k.e("s_cbranch_scc1 L_b_poller")
    lds_wait(k, "L_b_lw0", 2, 6, PROG, 60, sleep=flag("LSL", 16))
    lds_wait(k, "L_b_lwait", 2, 6, YOK, 60, sleep=2)
    k.e("s_setprio 3")
    k.e("s_branch L_b_go")
    k.e("L_b_poller:")
    k.e(f"s_mul_i32 s59, s9, {80 << YSH}")
    k.e(f"s_add_u32 s59, s59, {FY}")
    k.e(f"s_add_u32 s61, s59, {64 << YSH}")
    k.e(f"v_lshlrev_b32 v5, {YSH}, v0")
    k.e("v_add_u32 v7, s61, v5")
    k.e("s_lshr_b32 s10, s8, 3")
    k.e("s_lshl_b32 s10, s10, 1")
    k.e("s_and_b32 s11, s8, 1")
    k.e("s_add_u32 s10, s10, s11")
    k.e("s_and_b32 s11, s8, 6")
    k.e("s_lshl_b32 s11, s11, 2")
    k.e("s_add_u32 s10, s10, s11")
    k.e(f"s_add_u32 s10, s10, {224 + (FB >> 7)}")
    k.e("s_lshl_b32 s10, s10, 7")
    k.e("v_writelane_b32 v7, s10, 16")
    lds_wait(k, "L_b_aw", 2, 6, PROG, 60, sleep=flag("LSL2", 6))
    k.e("s_setprio 3")
    k.e("s_bfm_b64 exec, 17, 0")
    k.e(f"buffer_load_dwordx2 v[14:15], v7, s[{FSRD}:{FSRD+3}], 0 offen{SC1}")
    k.e("s_mov_b64 exec, -1")
    poll(k, "L_by", 12, 5, 59, 60, 64, sleep=8)
    poll(k, "L_by2", 14, 7, None, 60, 17, sleep=8, preloaded=True)
    k.e("v_mov_b32 v6, 1")
    k.e(f"ds_write_b32 v2, v6 offset:{YOK}")
    k.e("L_b_go:")
    stamp(k, 1, 3); stamp(k, 2, 3)
    k.e(f"buffer_load_dwordx2 v[12:13], v3, s[44:47], s57 offen{SC1}")
    for i in range(3):
        if i == 2:
            k.e("s_cmp_ge_u32 s101, 2")
            k.e("s_cbranch_scc1 L_b_noy")
        k.e(f"s_add_u32 m0, s81, {YO + 1024*i}")
        k.e(f"buffer_load_dwordx4 v4, s[68:71], s58 offen{SC1} lds")
        if i < 2: k.e(f"s_add_u32 s58, s58, {4*8*RS}")
    k.e("L_b_noy:")
    k.e("v_mov_b32 v3, 1")
    k.e("s_waitcnt vmcnt(2)")
    k.e("v_mul_f32 v38, 0xbfb8aa3b, v13")
    k.e("v_mul_f32 v39, 0xbfb8aa3b, v13")
    k.e(f"ds_write_b64 v37, v[38:39] offset:{SO + 10240}")
    for i in range(10):
        a, b = 80 + 2*i, 81 + 2*i
        k.e(f"v_sub_f32 v{a}, v{XF+2*i}, v12")
        k.e(f"v_sub_f32 v{b}, v{XF+2*i+1}, v12")
        k.e(f"v_cvt_pk_bf16_f32 v{b}, v{a}, v{b}")
        unpack(k, a, b, b)
        k.e(f"v_mul_f32 v{a}, v{a}, v13")
        k.e(f"v_mul_f32 v{b}, v{b}, v13")
        k.e(f"v_cvt_pk_bf16_f32 v{b}, v{a}, v{b}")
        unpack(k, a, b, b)
        k.e(f"v_mul_f32 v{a}, v{a}, v13")
        k.e(f"v_mul_f32 v{b}, v{b}, v13")
        if i == 4:
            k.e("s_waitcnt vmcnt(0)")
            k.e("s_mov_b64 exec, 1")
            k.e(f"ds_add_u32 v2, v3 offset:{YCNT}")
            k.e("s_mov_b64 exec, -1")
    k.e("L_b_cnt:")
    k.e(f"ds_read_b32 v3, v2 offset:{YCNT}")
    for d in range(5):
        k.e(f"ds_read_b64_tr_b16 v[{YR+2*d}:{YR+2*d+1}], v36 offset:{YO + 2*(d&1)*CONV_LDS + (d>>1)*1024}")
    k.e("s_waitcnt lgkmcnt(0)")
    k.e("v_readfirstlane_b32 s59, v3")
    k.e("s_cmp_lt_u32 s59, 4")
    k.e("s_cbranch_scc1 L_b_cnt")
    for d in range(5):
        for h in range(2):
            s = SF + 4*d + 2*h
            unpack(k, s, s+1, YR + 2*d + h)
            k.e(f"v_mul_f32 v{s}, v{s}, v{80+4*d+2*h}")
            k.e(f"v_mul_f32 v{s+1}, v{s+1}, v{81+4*d+2*h}")
        if d < 3: k.e(f"ds_write_b128 v37, v[{SF+4*d}:{SF+4*d+3}] offset:{SO + 1024*d}")
    b_tail(k)

def stats_rows(k, s_idx):
    k.e("s_and_b32 s10, s84, 6")
    k.e("s_lshl_b32 s10, s10, 8")
    k.e("s_lshr_b32 s11, s84, 3")
    k.e("s_lshl_b32 s11, s11, 7")
    k.e("s_add_u32 s10, s10, s11")
    k.e("s_and_b32 s11, s84, 1")
    k.e("s_lshl_b32 s11, s11, 6")
    k.e("s_add_u32 s10, s10, s11")
    k.e(f"s_lshl_b32 s11, s{s_idx}, 3")
    k.e("s_add_u32 s52, s10, s11")

def kernel():
    STS = flag("STS", 1); RLD = flag("RLD", 2); RST = flag("RST", 6)
    assert STS < RLD and RLD + (3 if flag('LKS', 99) > RLD else 4) <= RST <= 7
    k = Kern(NAME)
    stamp_begin(k)
    if flag("FIXT"): k.e("s_memrealtime s[96:97]")
    k.e("s_cmp_ge_u32 s2, 256")
    k.e("s_cbranch_scc1 L_end")
    load_ptrs(k)
    k.e("v_lshrrev_b32 v1, 6, v0")
    k.e("v_readfirstlane_b32 s3, v1")
    k.e("v_and_b32 v0, 63, v0")
    for i in range(4): k.e(f"v_mov_b32 v{4+i}, 0")
    k.e("v_and_b32 v1, 3, v0")
    k.e("v_lshlrev_b32 v1, 4, v1")
    k.e(f"v_add_u32 v1, {CNT}, v1")
    k.e("ds_write_b128 v1, v[4:7]")
    k.e("s_and_b32 s4, s2, 7")
    k.e("s_lshr_b32 s5, s2, 3")
    k.e("s_lshr_b32 s10, s4, 1")
    k.e("s_and_b32 s11, s4, 1")
    k.e("s_lshl_b32 s6, s10, 2")
    k.e("s_and_b32 s7, s5, 3")
    k.e("s_add_u32 s6, s6, s7")
    k.e("s_lshl_b32 s9, s11, 2")
    k.e("s_add_u32 s9, s9, s7")
    k.e("s_lshr_b32 s8, s5, 2")
    k.e("s_mul_i32 s7, s11, 7")
    k.e("s_add_u32 s7, s7, s8")
    k.e("s_lshl_b32 s10, s10, 3")
    k.e("s_add_u32 s8, s8, s10")
    if flag("MAP81"):
        k.e("s_lshl_b32 s6, s4, 1")
        k.e("s_and_b32 s7, s5, 1")
        k.e("s_add_u32 s6, s6, s7")
        k.e("s_lshr_b32 s7, s5, 1")
        k.e("s_lshl_b32 s8, s4, 2")
        k.e("s_lshr_b32 s9, s5, 3")
        k.e("s_add_u32 s8, s8, s9")
        k.e("s_and_b32 s9, s5, 7")
    k.e("s_and_b32 s101, s3, 3")
    k.e(f"s_mul_i32 s81, s101, {CONV_LDS}")
    k.e(f"s_add_u32 s81, s81, {RB0}")
    def flags_srd():
        srd(k, FSRD, P_WS, FL_BYTES, FL_OFF)
        k.e(f"s_load_dwordx2 s[{TAG}:{TAG+1}], s[{FSRD}:{FSRD+1}], {EP}")
    k.e("s_cmp_ge_u32 s2, 224")
    k.e("s_cbranch_scc1 L_free")
    k.e("s_cmp_lt_u32 s3, 4")
    k.e("s_cbranch_scc1 L_a")
    k.e(f"s_setprio {flag('PBL', 1)}")
    r = Rec(); k1.loader_setup(r, 6, 7, 101)
    for x in r.lines[8:]: k.e(x)
    k.e("s_waitcnt lgkmcnt(0)")
    for x in r.lines[:8]: k.e(x)
    vm = Vm(); last = {}
    def put(x):
        k.e(x)
        return vm.op() if is_vmem(x) else None
    def dma(st):
        for x in k1.dma(st):
            q = put(x)
            if q is not None: last[st] = q
    if flag("SB", 1): k.e("s_barrier")
    dma(0)
    flags_srd()
    k.e(f"v_mov_b32 v250, {CNT}")
    k.e("s_lshl_b32 s10, s101, 2")
    k.e(f"s_add_u32 s10, s10, {CNT + PB}")
    k.e("v_mov_b32 v248, s10")
    u_addr(k)
    rel1_addr(k)
    k.e("s_lshl_b32 s82, s2, 1")
    k.e("s_add_u32 s53, s2, 448")
    k.e("s_cmp_lt_u32 s2, 64")
    k.e("s_cselect_b32 s52, s53, 1000")
    k.e("s_cselect_b32 s53, s53, s82")
    watch_addr(k, 224, 82, 53)
    k.e("s_add_u32 s82, s82, s101")
    k.e("s_cmp_eq_u32 s101, 2")
    k.e("s_cselect_b32 s82, s52, s82")
    k.e("s_cmp_eq_u32 s101, 3")
    k.e("s_cselect_b32 s82, 1000, s82")
    k.e("s_lshl_b32 s83, s2, 7")
    k.e("s_waitcnt lgkmcnt(0)")
    make_tag(k)
    dma(1)
    PV = 252
    PUBS = STS + flag("PUBD", 3); st_idx = None
    k.e("s_cmp_eq_u32 s101, 2")
    k.e(f"s_cselect_b32 s83, s83, {OOB}")
    k.e("v_mov_b32 v249, 1")
    WPUB = RST + 2 if RST <= 5 else 99
    k.e("s_lshl_b32 s88, s2, 7")
    k.e(f"s_add_u32 s88, s88, {FB}")
    k.e("s_cmp_eq_u32 s101, 1")
    k.e(f"s_cselect_b32 s88, s88, {OOB}")
    for s in range(8):
        w = vm.wait(last[s])
        if s == PUBS: w = min(w, vm.wait(st_idx))
        if s == WPUB: w = min(w, vm.wait(rs_idx))
        k.e(f"s_waitcnt vmcnt({w})")
        k.e("s_barrier")
        if s == WPUB:
            publish(k, 88, 4); vm.op()
            stamp(k, 2, 1)
        if s == PUBS:
            publish(k, 83, 4); vm.op()
            stamp(k, 2, 0)
        if s == STS:
            for x in u_out():
                q = put(x)
                if q is not None: st_idx = q
        if s == RST:
            for x in rel1_reads(): k.e(x)
        LKS = flag("LKS", 99)
        if s < LKS: dma(s + 2)
        elif s == LKS:
            dma(s + 2); dma(s + 3)
        elif s + 3 < NSTAGE: dma(s + 3)
        if s == RST:
            for x in rel1_stores():
                q = put(x)
                if q is not None: rs_idx = q
        if s == RLD:
            for x in rel1_loads(): put(x)
    w8, w9 = vm.wait(last[8]), vm.wait(last[9]); wr = min(vm.wait(rs_idx), w9)
    W8P = flag('W8P', 0) and RST == 6
    if W8P: w8 = min(w8, vm.wait(rs_idx))
    k.e("s_cmp_lt_u32 s82, 640")
    k.e("s_cbranch_scc1 L_b_hasconv")
    k.e(f"s_waitcnt vmcnt({w8})")
    k.e("s_barrier")
    k.e("s_cmp_eq_u32 s101, 3")
    k.e("s_cbranch_scc1 L_b_w7")
    k.e(f"s_waitcnt vmcnt({w9})")
    for x in prog_write(248, 251, 1): k.e(x)
    k.e("s_waitcnt vmcnt(0)")
    for x in prog_write(248, 251, 2): k.e(x)
    k.e("s_branch L_b_aprep")
    k.e("L_b_w7:")
    pre = watch_pre(228, 224)
    k.e("s_setprio 3")
    if W8P:
        k.e("s_lshl_b32 s83, s2, 7")
        k.e(f"s_add_u32 s83, s83, {FB}")
        publish(k, 83, 4)
        stamp(k, 2, 1)
    k.e(pre[0])
    k.e(f"s_waitcnt vmcnt({w9 + 1 + W8P})")
    for x in prog_write(248, 251, 1): k.e(x)
    k.e("s_waitcnt vmcnt(0)")
    for x in prog_write(248, 251, 2): k.e(x)
    k.e(f"v_cmp_ne_u64 vcc, s[{TAG}:{TAG+1}], v[228:229]")
    k.e("s_cmp_eq_u64 vcc, 0")
    k.e("s_cbranch_scc0 L_b_n1")
    k.e(f"ds_write_b32 v250, v249 offset:{UOK}")
    k.e("L_b_n1:")
    if WPUB == 99 and not W8P:
        k.e("s_lshl_b32 s83, s2, 7")
        k.e(f"s_add_u32 s83, s83, {FB}")
        prog_wait(k, "L_b_rs", 250, PV, PB, 10, 2)
        publish(k, 83, 4)
        stamp(k, 2, 1)
    if AWP:
        poll(k, "L_bwa", 228, 225, None, 10, 64, preloaded=True)
        k.e(f"ds_write_b32 v250, v249 offset:{UOK}")
    else:
        for _ in range(flag("WSL", 0)): k.e("s_sleep 16")
        if flag("EVT", 12):
            poll(k, "L_bw0", 228, 225, None, 10, 64, preloaded=True)
            k.e(f"ds_write_b32 v250, v249 offset:{UOK}")
            prog_wait(k, "L_b_evt", 250, PV, PA, 10, flag("EVT", 12), sleep=2)
        k.e(pre[1])
        watch(k, "L_bw", 228, 224, flag("BSL", 4))
    stamp(k, 2, 2)
    k.e("s_cmp_lg_u32 s2, 0")
    k.e("s_cbranch_scc1 L_b_aprep")
    k.e("s_setprio 0")
    k.e("v_lshlrev_b32 v1, 7, v0")
    k.e(f"s_mov_b32 s83, {FB}")
    k.e("L_ep_next:")
    poll(k, "L_ep", 4, 1, 83, 10, 64, sleep=16)
    k.e("s_add_u32 s83, s83, 8192")
    k.e(f"s_cmp_lt_u32 s83, {FB + 32768}")
    k.e("s_cbranch_scc1 L_ep_next")
    k.e(f"s_mov_b32 s83, {EP}")
    publish(k, 83, 4)
    k.e("s_branch L_b_aprep")
    k.e("L_b_hasconv:")
    conv.conv2_setup(k, 82)
    k.e(f"s_waitcnt vmcnt({w8 + 2})")
    k.e("s_barrier")
    (conv.conv3_addr if C3 else conv.conv2_addr)(k, 81)
    k.e(f"s_waitcnt vmcnt({w9 + 2})")
    for x in prog_write(248, 251, 1): k.e(x)
    k.e(f"s_waitcnt vmcnt({wr + 2})")
    for x in prog_write(248, 251, 2): k.e(x)
    k.e("L_b_conv:")
    k.e(f"v_mov_b32 v250, {CNT}")
    (conv.conv3_dma if C3 else conv.conv2_dma)(k, 81)
    k.e(f"s_waitcnt vmcnt({8 if C3 else 16})")
    conv.conv2_fix(k)
    stamp(k, 1, 0)
    lds_wait(k, "L_b_uw", 250, 251, UOK, 80)
    conv.conv_setup_u(k, 82, 81, SC1)
    k.e("s_waitcnt vmcnt(0)")
    if flag("FEV"): k.e(f"ds_write_b32 v250, v250 offset:24")
    stamp(k, 1, 1); stamp(k, 3, 3)
    k.e(f"s_setprio {flag('PC', 1)}")
    (conv.conv3_main if C3 else conv.conv_main)(k, "f")
    stamp(k, 3, 0)
    k.e("s_setprio 3")
    conv.conv_epilogue(k, 82, SC1)
    stamp(k, 3, 1)
    k.e(f"s_lshl_b32 s10, s82, {YSH}")
    k.e(f"s_add_u32 s83, s10, {FY}")
    k.e("s_waitcnt vmcnt(0)")
    stamp(k, 3, 2)
    publish(k, 83, 4)
    stamp(k, 1, 2)
    k.e("L_b_aprep:")
    k.e("s_setprio 1")
    b_aprep(k)
    finish(k, 1)
    k.e("L_free:")
    for _ in range(flag("XFREE")): k.e("s_sleep 64")
    k.e("s_waitcnt lgkmcnt(0)")
    flags_srd()
    k.e("s_sub_u32 s84, s2, 224")
    k.e("s_mov_b32 s85, s3")
    k.e("s_cmp_eq_u32 s3, 7")
    k.e("s_cbranch_scc1 L_free_code" if flag("CPF", 1) else "s_cbranch_scc1 L_free_sync")
    k.e("s_cmp_lt_u32 s3, 4")
    k.e("s_cbranch_scc1 L_free_stats")
    k.e("s_setprio 2")
    k.e("s_mul_i32 s85, s84, 3")
    k.e("s_add_u32 s85, s85, s101")
    k.e("s_add_u32 s85, s85, 224")
    aux.emit_prep(k, 85, 81, SC1)
    make_tag(k)
    k.e("s_lshl_b32 s85, s85, 7")
    k.e("s_waitcnt vmcnt(0)")
    publish(k, 85, 4)
    k.e("s_barrier")
    k.e("s_branch L_free_b")
    if flag("CPF", 1):
        k.e("L_free_code:")
        k.e("s_setprio 3")
        k.e("s_getpc_b64 s[40:41]")
        k.e("L_pc:")
        k.e(f"s_sub_u32 s40, s40, L_pc-{NAME}")
        k.e("s_subb_u32 s41, s41, 0")
        k.e(f"s_mov_b32 s42, L_end-{NAME}")
        k.e("s_mov_b32 s43, 0x20000")
        k.e("v_lshlrev_b32 v1, 7, v0")
        k.e("s_mov_b32 s44, 0")
        for i in range(4):
            k.e(f"buffer_load_dword v{8+i}, v1, s[40:43], s44 offen")
            k.e("s_add_u32 s44, s44, 8192")
        k.e("s_setprio 0")
        if AGG:
            k.e("s_waitcnt lgkmcnt(0)")
            make_tag(k)
            k.e("s_cmp_ge_u32 s84, 10")
            k.e("s_cbranch_scc1 L_free_noagg")
            k.e("v_mul_u32_u24 v2, 1280, v0")
            k.e("s_lshl_b32 s85, s84, 7")
            for _ in range(flag("UAGS", 3)): k.e("s_sleep 40")
            k.e("s_setprio 3")
            poll(k, "L_agu", 4, 2, 85, 10, 32, sleep=8)
            k.e(f"s_add_u32 s85, s85, {FS}")
            publish(k, 85, 4)
            k.e("L_free_noagg:")
            k.e("s_barrier")
            k.e("s_branch L_free_b")
        k.e("s_branch L_free_sync")
    k.e("L_free_stats:")
    stats_rows(k, 85)
    aux.emit_stats(k, 52, SC1)
    k.e("s_add_u32 s85, s85, 4")
    k.e("s_cmp_lt_u32 s85, 8")
    k.e("s_cbranch_scc1 L_free_stats")
    k.e("L_free_sync:")
    k.e("s_waitcnt vmcnt(0) lgkmcnt(0)")
    k.e("s_barrier")
    make_tag(k)
    k.e("s_cmp_lt_u32 s3, 4")
    k.e("s_cbranch_scc1 L_free_a")
    k.e("L_free_b:")
    k.e("s_setprio 1")
    k.e("s_lshl_b32 s82, s84, 2")
    k.e("s_add_u32 s82, s82, s101")
    k.e("s_add_u32 s82, s82, 512")
    conv.conv2_setup(k, 82)
    (conv.conv3_addr if C3 else conv.conv2_addr)(k, 81)
    k.e("s_branch L_b_conv")
    k.e("L_free_a:")
    g2_offsets(k)
    srd(k, 44, P_WS, NB_W, W2_OFF)
    k.e("v_lshlrev_b32 v1, 4, v0")
    k.e("v_add_u32 v2, 4096, v1")
    if flag("XLEAD"):
        k.e("v_lshlrev_b32 v30, 7, v0")
        k.e("s_mov_b32 s10, s77")
        for i in range(9):
            k.e(f"buffer_load_dword v{32+i}, v30, s[44:47], s10 offen{SC1}")
            k.e("s_add_u32 s10, s10, 8192")
    if AGG:
        k.e("s_sub_u32 s85, s84, 10")
        k.e("s_cmp_lt_u32 s85, 4")
        k.e("s_cselect_b32 s10, s3, 0")
        k.e("s_cmp_lg_u32 s10, 1")
        k.e("s_cbranch_scc1 L_free_noaw")
        k.e("s_setprio 3")
        k.e("v_lshlrev_b32 v8, 9, v0")
        k.e("s_lshl_b32 s85, s85, 7")
        k.e(f"s_add_u32 s86, s85, {FB}")
        poll(k, "L_agw", 10, 8, 86, 10, 54, sleep=flag("WAGS", 4))
        k.e(f"s_add_u32 s85, s85, {FS + 1280}")
        publish(k, 85, 10)
        k.e("L_free_noaw:")
    k.e("s_cmp_lg_u32 s3, 0")
    k.e("s_cbranch_scc1 L_g2w")
    k.e("s_lshl_b32 s83, s2, 7")
    k.e(f"s_add_u32 s83, s83, {FB}")
    publish(k, 83, 4)
    k.e("s_lshl_b32 s62, s84, 2")
    k.e("s_add_u32 s62, s62, 512")
    watch_addr(k, 16, 62, 62)
    if flag("FEV"):
        k.e(watch_pre(20, 16)[0])
        watch(k, "L_fw", 20, 16, 4, lambda: lds_wait(k, "L_fev", 20, 24, 24, 10, sleep=4))
    elif flag("FLATE"):
        k.e(watch_pre(20, 16)[0])
        watch(k, "L_fw", 20, 16, flag("FSL", 4), lambda: [k.e("s_sleep 32") for _ in range(flag("FLATE"))])
    else:
        for x in watch_pre(20, 16): k.e(x)
        watch(k, "L_fw", 20, 16, flag("FSL", 4))
    k.e("s_branch L_g2w")
    k.e("L_a:")
    k.e("s_setprio 3")
    prep_addr(k)
    k.e("s_waitcnt lgkmcnt(0)")
    prep_loads(k)
    if flag("SB", 1): k.e("s_barrier")
    k.e(f"s_setprio {flag('PAL', 0)}")
    flags_srd()
    g2_offsets(k)
    g1_setup(k)
    k.e("s_waitcnt lgkmcnt(0)")
    make_tag(k)
    prep_compute(k)
    if flag("FIXG"):
        srd(k, 12, P_DBG, 256)
        k.e("s_not_b32 s98, s96")
        k.e("v_mov_b32 v240, s98")
        k.e("v_mov_b32 v241, 0")
        k.e("s_cmp_lg_u32 s3, 0")
        k.e("s_cbranch_scc1 L_nog")
        k.e("s_mov_b64 exec, 1")
        k.e("buffer_atomic_umax v240, v241, s[12:15], 0 offen sc1")
        k.e("s_mov_b64 exec, -1")
        k.e("L_nog:")
    g1_phase(k)
    g2_phase(k)
    if flag("FIXT"):
        if flag("FIXG"):
            srd(k, 12, P_DBG, 256)
            k.e("v_mov_b32 v241, 0")
            k.e("buffer_load_dword v240, v241, s[12:15], 0 offen sc1")
            k.e("s_waitcnt vmcnt(0)")
            k.e("v_readfirstlane_b32 s96, v240")
            k.e("s_not_b32 s96, s96")
        k.e("L_fix:")
        k.e("s_memrealtime s[98:99]")
        k.e("s_waitcnt lgkmcnt(0)")
        k.e("s_sub_u32 s98, s98, s96")
        k.e(f"s_cmp_lt_u32 s98, {flag('FIXT')}")
        k.e("s_cbranch_scc1 L_fix")
    finish(k, 0)
    k.e("L_end:")
    k.e("s_endpgm")
    return k

if __name__ == "__main__":
    import sys
    hdr = open("recurrent_scan__ssm_conv_h3__dense_activation_relu__prompt.s.ref").read().split("; Override")[0]
    k = kernel()
    out = hdr + f"; @launch grid=(256,1,1) block=(512,1,1) lds={LDS_BYTES}\n"
    out += '.amdgcn_target "amdgcn-amd-amdhsa--gfx950"\n.text\n' + k.body() + '.section .rodata,"a"\n' + k.desc()
    open(sys.argv[1], "w").write(out)
```

```python
from common import *
import aux, conv, k1
from conv import interleave, CONV_LDS
from k1 import Vm, is_vmem, SLOT, WPART, NSTAGE, Rec

NAME = "recurrent_scan__ssm_conv_h3__dense_activation_relu__prompt_kernel"
SC1 = " sc1"
OOB = 0x40000000
RB0 = 65536
EA = 131072
TOP = RB0 + 4 * CONV_LDS
RLB = 135168
CNT = 163776
LDS_BYTES = 163840
YCNT, YOK, AUXOK, UOK, PROG, PA, PB = 0, 4, 12, 16, 20, 32, 48
XO, YO, SO = 0, 3072, 6144
HSH = 7; YSH = flag("YSH", 3)
FA, EP, FB, FH = 0, 40960, 45056, 77824
FY = FH + (1024 << 7)
FS = FY + (640 << 7)
FL_BYTES = FS + (16 << 7)
AGG = flag('AGG', 0)
TAG, FSRD = 90, 92
SPIN_MAX = 0x20000
NSTEP, NH, NW = 14, 4, 5
G_ACC, G_H = 8, 88
W_SL = [176, 196, 216, 236, 156]
C3 = flag("C3", 1)
EWI = flag("EWI", 0)
EPI = flag("EPI", 1)
AWP = flag("AWP", 0)
ST = flag("ST", 0)
def stamp(k, setno, i):
    if ST == setno: stamp_mid(k, i)
def cstamp(k, name, i):
    if STAMP and os.environ.get("CK", "").split(",")[i:i+1] == [name]:
        stamp_mid(k, 2*i)
        k.e("s_memtime s[10:11]")
        k.e("s_waitcnt lgkmcnt(0)")
        k.e(f"s_mov_b32 s{13+2*i}, s10")
def cs(k, name):
    cstamp(k, name, 0); cstamp(k, name, 1)

def make_tag(k):
    k.e(f"s_mul_i32 s{TAG}, s{TAG}, 1664525")
    k.e(f"s_add_u32 s{TAG}, s{TAG}, 1013904223")
    k.e(f"s_mul_i32 s{TAG+1}, s{TAG+1}, 22695477")
    k.e(f"s_add_u32 s{TAG+1}, s{TAG+1}, 1")

HSC = '' if flag('HPLAIN') else SC1
def publish(k, s_off, va, SC1=SC1, nbytes=128):
    if not flag("FULLF", 1): nbytes = 8
    k.e(f"v_mov_b32 v{va}, s{TAG}")
    k.e(f"v_mov_b32 v{va+1}, s{TAG+1}")
    if nbytes == 8:
        k.e(f"v_mov_b32 v{va+2}, 0")
        k.e("s_mov_b64 exec, 1")
    else:
        k.e(f"v_lshlrev_b32 v{va+2}, 3, v0")
        k.e(f"s_bfm_b64 exec, {nbytes // 8}, 0")
    k.e(f"buffer_store_dwordx2 v[{va}:{va+1}], v{va+2}, s[{FSRD}:{FSRD+3}], s{s_off} offen{SC1}")
    k.e("s_mov_b64 exec, -1")

def poll(k, lbl, vd, voff, s_off, s_cnt, nlanes, sleep=4, preloaded=False):
    so = f"s{s_off}" if s_off is not None else "0"
    k.e(f"s_mov_b32 s{s_cnt}, 0")
    if nlanes < 64: k.e(f"s_bfm_b64 exec, {nlanes}, 0")
    if preloaded: k.e(f"s_branch {lbl}_chk")
    k.e(f"{lbl}:")
    k.e(f"buffer_load_dwordx2 v[{vd}:{vd+1}], v{voff}, s[{FSRD}:{FSRD+3}], {so} offen{SC1}")
    k.e("s_waitcnt vmcnt(0)")
    k.e(f"{lbl}_chk:")
    k.e(f"v_cmp_ne_u64 vcc, s[{TAG}:{TAG+1}], v[{vd}:{vd+1}]")
    k.e("s_and_b64 exec, exec, vcc")
    k.e(f"s_cbranch_scc0 {lbl}_ok")
    k.e(f"s_sleep {sleep}")
    k.e(f"s_add_u32 s{s_cnt}, s{s_cnt}, 1")
    k.e(f"s_cmp_lt_u32 s{s_cnt}, {SPIN_MAX:#x}")
    k.e(f"s_cbranch_scc1 {lbl}")
    k.e(f"{lbl}_ok:")
    k.e("s_mov_b64 exec, -1")

def lds_wait(k, lbl, vaddr, vtmp, off, s_tmp, sleep=2):
    k.e(f"{lbl}:")
    k.e(f"ds_read_b32 v{vtmp}, v{vaddr} offset:{off}")
    k.e("s_waitcnt lgkmcnt(0)")
    k.e(f"v_readfirstlane_b32 s{s_tmp}, v{vtmp}")
    k.e(f"s_cmp_lg_u32 s{s_tmp}, 0")
    k.e(f"s_cbranch_scc1 {lbl}_ok")
    k.e(f"s_sleep {sleep}")
    k.e(f"s_branch {lbl}")
    k.e(f"{lbl}_ok:")

def prog_write(vaddr, vtmp, val):
    return [f"v_mov_b32 v{vtmp}, {val}", f"s_mov_b64 exec, 1\nds_write_b32 v{vaddr}, v{vtmp}\ns_mov_b64 exec, -1"]
def prog_min(vd, s_tmp):
    return [f"v_min3_u32 v{vd}, v{vd}, v{vd+1}, v{vd+2}", f"v_min_u32 v{vd}, v{vd}, v{vd+3}", f"v_readfirstlane_b32 s{s_tmp}, v{vd}"]
def prog_spin(k, lbl, vcnt, vd, off, s_tmp, need, sleep=0):
    k.e(f"s_cmp_ge_u32 s{s_tmp}, {need}")
    k.e(f"s_cbranch_scc1 {lbl}_ok")
    k.e(f"{lbl}:")
    if sleep: k.e(f"s_sleep {sleep}")
    k.e(f"ds_read_b128 v[{vd}:{vd+3}], v{vcnt} offset:{off}")
    k.e("s_waitcnt lgkmcnt(0)")
    for x in prog_min(vd, s_tmp): k.e(x)
    k.e(f"s_cmp_lt_u32 s{s_tmp}, {need}")
    k.e(f"s_cbranch_scc1 {lbl}")
    k.e(f"{lbl}_ok:")
def prog_wait(k, lbl, vcnt, vd, off, s_tmp, need, sleep=1):
    k.e(f"s_mov_b32 s{s_tmp}, 0")
    prog_spin(k, lbl, vcnt, vd, off, s_tmp, need, sleep)

def watch_addr(k, va, s_cha, s_chb):
    if AGG:
        k.e("s_lshr_b32 s10, s9, 1")
        k.e(f"s_add_u32 s10, s10, {10 + (FS >> 7)}")
        k.e("s_lshl_b32 s10, s10, 7")
        k.e(f"v_mov_b32 v{va}, s10")
        k.e(f"s_lshr_b32 s10, s{s_cha}, 6")
        k.e(f"s_lshr_b32 s11, s{s_chb}, 6")
        k.e(f"v_mov_b32 v{va+1}, s11")
        k.e(f"v_writelane_b32 v{va+1}, s10, 0")
        k.e(f"v_lshlrev_b32 v{va+1}, 7, v{va+1}")
        k.e(f"v_add_u32 v{va+1}, {FS}, v{va+1}")
        return
    k.e("s_lshr_b32 s10, s9, 1")
    k.e(f"s_add_u32 s10, s10, {FB >> 7}")
    k.e(f"v_lshl_add_u32 v{va}, v0, 2, s10")
    k.e(f"v_mov_b32 v{va+1}, s10")
    k.e("v_cmp_gt_u32 vcc, 54, v0")
    k.e(f"v_cndmask_b32 v{va}, v{va+1}, v{va}, vcc")
    k.e(f"v_lshlrev_b32 v{va}, 7, v{va}")
    k.e(f"s_lshr_b32 s10, s{s_cha}, 6")
    k.e(f"s_lshr_b32 s11, s{s_chb}, 6")
    k.e(f"v_mov_b32 v{va+1}, s11")
    k.e(f"v_mov_b32 v{va+2}, s10")
    k.e("v_cmp_gt_u32 vcc, 32, v0")
    k.e(f"v_cndmask_b32 v{va+1}, v{va+1}, v{va+2}, vcc")
    k.e(f"v_and_b32 v{va+2}, 31, v0")
    k.e(f"v_mad_u32_u24 v{va+1}, v{va+2}, 10, v{va+1}")
    k.e(f"v_lshlrev_b32 v{va+1}, 7, v{va+1}")
def watch_pre(vd, va):
    return [f"buffer_load_dwordx2 v[{vd}:{vd+1}], v{va+1}, s[{FSRD}:{FSRD+3}], 0 offen{SC1}",
            f"buffer_load_dwordx2 v[{vd+2}:{vd+3}], v{va}, s[{FSRD}:{FSRD+3}], 0 offen{SC1}"]
def watch(k, lbl, vd, va, sl=4, late=None):
    k.e("s_waitcnt vmcnt(0)")
    poll(k, lbl + "a", vd, va + 1, None, 10, 64, sleep=sl, preloaded=True)
    k.e(f"v_mov_b32 v{vd}, {CNT}")
    k.e(f"v_mov_b32 v{vd+1}, 1")
    k.e(f"ds_write_b32 v{vd}, v{vd+1} offset:{UOK}")
    if late: late()
    poll(k, lbl + "b", vd + 2, va, None, 10, 64, sleep=sl, preloaded=not late)
    k.e(f"ds_write_b32 v{vd}, v{vd+1} offset:{AUXOK}")

def xo_offsets(k, vb, t1, t2):
    k.e("s_lshl_b32 s53, s8, 2")
    k.e("s_add_u32 s53, s53, s101")
    k.e("s_mul_i32 s54, s53, 20480")
    k.e("s_mul_i32 s55, s9, 160")
    k.e("s_add_u32 s54, s54, s55")
    for i in range(3):
        k.e(f"v_add_u32 v{t1}, {64*i}, v0")
        k.e(f"v_mul_u32_u24 v{t2}, 6554, v{t1}")
        k.e(f"v_lshrrev_b32 v{t2}, 16, v{t2}")
        k.e(f"v_mul_u32_u24 v{t2}, 1120, v{t2}")
        k.e(f"v_lshl_add_u32 v{vb+i}, v{t1}, 4, v{t2}")
    k.e(f"v_mov_b32 v{t2}, {OOB}")
    k.e("v_cmp_gt_u32 vcc, 32, v0")
    k.e(f"v_cndmask_b32 v{vb+2}, v{t2}, v{vb+2}, vcc")

def unit_ids(k, s_rb, s_cgp):
    k.e(f"s_mul_i32 s{s_rb}, s2, 6554")
    k.e(f"s_lshr_b32 s{s_rb}, s{s_rb}, 16")
    k.e(f"s_mul_i32 s{s_cgp}, s{s_rb}, 10")
    k.e(f"s_sub_u32 s{s_cgp}, s2, s{s_cgp}")
def prep_addr(k):
    unit_ids(k, 52, 53)
    k.e("s_lshl_b32 s54, s52, 2")
    k.e("s_add_u32 s54, s54, s101")
    k.e("s_mul_i32 s54, s54, 20480")
    k.e("s_lshl_b32 s55, s53, 7")
    k.e("s_add_u32 s54, s54, s55")
    k.e("v_lshrrev_b32 v1, 3, v0")
    k.e("v_mul_u32_u24 v2, 1280, v1")
    k.e("v_and_b32 v3, 7, v0")
    k.e("v_lshl_add_u32 v2, v3, 4, v2")
    if flag("XNOPL"): k.e(f"s_mov_b32 s54, {OOB}")
    k.e("v_add_u32 v200, s54, v2")
    k.e("v_subrev_u32 v201, 3840, v200")
    k.e(f"v_add_u32 v202, {10240 - 3840 - 1024}, v200")
    k.e(f"v_add_u32 v203, {20480 - 3840 - 2048}, v200")
    k.e(f"v_mov_b32 v6, {OOB}")
    k.e("v_cmp_gt_u32 vcc, 24, v0")
    k.e("v_cndmask_b32 v203, v6, v203, vcc")
    k.e(f"v_add_u32 v204, {10240 - 1024}, v200")
    k.e("s_mul_i32 s56, s101, 5120")
    k.e(f"s_add_u32 s56, s56, {EA}")
    k.e("v_and_b32 v7, 31, v0")
    k.e("s_lshl_b32 s55, s53, 9")
    k.e("v_lshl_add_u32 v205, v7, 4, s55")
def prep_loads(k):
    srd(k, 40, P_K, NB_X)
    k.e("s_mov_b32 m0, s56")
    k.e("buffer_load_dwordx4 v201, s[40:43], 0 offen lds")
    k.e("buffer_load_dwordx4 v202, s[40:43], 0 offen offset:1024 lds")
    k.e("buffer_load_dwordx4 v203, s[40:43], 0 offen offset:2048 lds")
    srd(k, 44, P_V, NB_X)
    k.e("s_add_u32 m0, s56, 3072")
    k.e("buffer_load_dwordx4 v200, s[44:47], 0 offen lds")
    k.e("buffer_load_dwordx4 v204, s[44:47], 0 offen offset:1024 lds")
    srd(k, 48, P_SH, D * 8)
    k.e("buffer_load_dwordx4 v[212:215], v205, s[48:51], 0 offen")
    k.e("v_lshrrev_b32 v9, 5, v0")
    k.e("v_lshlrev_b32 v10, 10, v9")
    k.e("v_lshl_add_u32 v10, v7, 2, v10")
    k.e("v_add_u32 v209, s56, v10")
    k.e("v_sub_u32 v11, 1, v9")
    k.e("v_lshlrev_b32 v11, 4, v11")
    k.e("v_lshl_add_u32 v11, v7, 6, v11")
    k.e("v_add_u32 v210, s56, v11")
def prep_compute(k):
    KR, VR, TP, KU, VU, KV, OUT = 112, 124, 132, 140, 216, 180, 184
    k.e("s_waitcnt vmcnt(0)")
    for j in range(11): k.e(f"ds_read_b32 v{KR+j}, v209 offset:{128*j}")
    for j in range(8): k.e(f"ds_read_b32 v{VR+j}, v209 offset:{3072 + 128*j}")
    for c in range(2):
        unpack(k, TP + 0 + c, TP + 2 + c, 212 + 2*c)
        unpack(k, TP + 4 + c, TP + 6 + c, 213 + 2*c)
    k.e("s_waitcnt lgkmcnt(8)")
    for j in range(11): unpack(k, KU + 2*j, KU + 2*j + 1, KR + j)
    k.e("s_waitcnt lgkmcnt(0)")
    for j in range(8): unpack(k, VU + 2*j, VU + 2*j + 1, VR + j)
    for r in range(8):
        d = KV + 2*(r & 1)
        for j in (3, 2, 1, 0):
            w = KU + 2*(r + 3 - j); t = TP + 2*j
            if j == 3: k.e(f"v_pk_mul_f32 v[{d}:{d+1}], v[{w}:{w+1}], v[{t}:{t+1}]")
            else: k.e(f"v_pk_fma_f32 v[{d}:{d+1}], v[{w}:{w+1}], v[{t}:{t+1}], v[{d}:{d+1}]")
        k.e(f"v_pk_mul_f32 v[{d}:{d+1}], v[{d}:{d+1}], v[{VU+2*r}:{VU+2*r+1}]")
        if r & 1:
            for c in range(2):
                k.e(f"v_cvt_pk_bf16_f32 v{OUT+4*c+3-r//2}, v{KV+2+c}, v{KV+c}")
    for c in range(2):
        k.e(f"ds_write_b128 v210, v[{OUT+4*c}:{OUT+4*c+3}] offset:{32*c}")

def b_aux_addr(k):
    srd(k, 84, P_W2, NB_W)
    srd(k, 44, P_WS, NB_W, W2_OFF)
    srd(k, 40, P_WS, NB_T, UR_OFF)
    k.e("s_lshr_b32 s57, s2, 2")
    k.e("s_and_b32 s58, s2, 3")
    k.e("s_mul_i32 s59, s57, 40960")
    k.e("s_mul_i32 s60, s58, 320")
    k.e("s_add_u32 s59, s59, s60")
    k.e("s_lshl_b32 s60, s101, 6")
    k.e("s_lshl_b32 s61, s101, 10")
    for i in range(3):
        k.e("v_add_u32 v9, s60, v0")
        if i: k.e(f"v_add_u32 v9, {256*i}, v9")
        k.e("v_mul_u32_u24 v10, 52429, v9")
        k.e("v_lshrrev_b32 v10, 20, v10")
        k.e("v_mul_u32_u24 v10, 960, v10")
        k.e(f"v_lshl_add_u32 v{206+i}, v9, 4, v10")
    k.e("s_cmp_ge_u32 s101, 2")
    k.e(f"s_cselect_b32 s60, {OOB}, 0")
    k.e("v_add_u32 v208, s60, v208")
    k.e(f"s_add_u32 s62, s61, {EA + 20480 + 8192}")
    k.e("s_cmp_ge_u32 s101, 2")
    k.e(f"s_cselect_b32 s62, {EA + 30720}, s62")
def b_aux_addr2(k):
    k.e("s_lshr_b32 s10, s101, 1")
    k.e("s_and_b32 s11, s101, 1")
    k.e("s_mul_i32 s60, s10, 5")
    k.e("s_mul_i32 s54, s11, 3")
    k.e("s_add_u32 s60, s60, s54")
    k.e("s_lshl_b32 s60, s60, 5")
    k.e(f"s_add_u32 s60, s60, {EA + 20480}")
    k.e("v_lshrrev_b32 v11, 2, v0")
    k.e("v_mul_u32_u24 v11, 320, v11")
    k.e("v_and_b32 v12, 3, v0")
    k.e("v_lshl_add_u32 v11, v12, 3, v11")
    k.e("v_add_u32 v214, s60, v11")
    k.e("s_lshl_b32 s60, s58, 1")
    k.e("s_add_u32 s60, s60, s10")
    k.e(f"s_mul_i32 s89, s60, {NT}")
    k.e("s_add_u32 s89, s89, s57")
    k.e("s_mul_i32 s89, s89, 5120")
    k.e("s_lshl_b32 s54, s54, 10")
    k.e("s_add_u32 s89, s89, s54")
    k.e("s_cmp_ge_u32 s2, 216")
    k.e(f"s_cselect_b32 s89, {OOB}, s89")
    if flag("XNOW"): k.e(f"s_mov_b32 s89, {OOB}")
    k.e("v_lshlrev_b32 v215, 4, v0")
    k.e("s_cmp_eq_u32 s11, 1")
    k.e(f"s_cselect_b32 s54, {OOB}, 0")
    k.e("v_add_u32 v216, s54, v215")
    unit_ids(k, 52, 53)
    k.e("v_lshrrev_b32 v1, 3, v0")
    k.e("v_and_b32 v3, 7, v0")
    k.e("v_lshrrev_b32 v11, 1, v3")
    k.e("v_sub_u32 v11, 3, v11")
    k.e("v_mul_u32_u24 v11, 5120, v11")
    k.e("v_lshl_add_u32 v11, v1, 5, v11")
    k.e("v_and_b32 v12, 1, v3")
    k.e("v_lshl_add_u32 v11, v12, 4, v11")
    k.e("s_lshl_b32 s55, s101, 9")
    k.e(f"s_add_u32 s55, s55, {EA}")
    k.e("v_add_u32 v211, s55, v11")
    k.e(f"v_mul_u32_u24 v232, {RS}, v1")
    k.e("v_lshl_add_u32 v232, v3, 4, v232")
    k.e(f"v_add_u32 v233, {8*RS}, v232")
    k.e("s_lshl_b32 s63, s53, 2")
    k.e("s_add_u32 s63, s63, s101")
    k.e(f"s_mul_i32 s63, s63, {16*RS}")
    k.e("s_lshl_b32 s55, s52, 7")
    k.e("s_sub_u32 s55, 3968, s55")
    k.e("s_add_u32 s63, s63, s55")
    if flag("XNOST"):
        k.e(f"s_mov_b32 s63, {OOB}")
        k.e(f"s_mov_b32 s89, {OOB}")
def rel_loads():
    return [f"s_add_u32 m0, s61, {EA + 20480}",
            "buffer_load_dwordx4 v206, s[84:87], s59 offen lds",
            f"s_add_u32 m0, s61, {EA + 20480 + 4096}",
            "buffer_load_dwordx4 v207, s[84:87], s59 offen lds",
            "s_mov_b32 m0, s62",
            "buffer_load_dwordx4 v208, s[84:87], s59 offen lds"]
def aux_out():
    L = [f"ds_read_b128 v[{100+4*i}:{103+4*i}], v211 offset:{256*i}" for i in range(2)]
    for i in range(3):
        L.append(f"ds_read_b64_tr_b16 v[{188+4*i}:{189+4*i}], v214 offset:{32*i}")
        L.append(f"ds_read_b64_tr_b16 v[{190+4*i}:{191+4*i}], v214 offset:{32*i + 5120}")
    L.append("s_waitcnt lgkmcnt(0)")
    L += [f"buffer_store_dwordx4 v[{100+4*i}:{103+4*i}], v{232+i}, s[40:43], s63 offen{SC1}" for i in range(2)]
    L += [f"buffer_store_dwordx4 v[{188+4*i}:{191+4*i}], v{216 if i == 2 else 215}, s[44:47], s89 offen offset:{1024*i}{SC1}" for i in range(3)]
    return L

def rel1_addr(k):
    srd(k, 84, P_W2, NB_W)
    srd(k, 44, P_WS, NB_W, W2_OFF)
    k.e("s_lshr_b32 s57, s2, 2")
    k.e("s_and_b32 s58, s2, 3")
    k.e("s_mul_i32 s59, s57, 40960")
    k.e("s_mul_i32 s60, s58, 320")
    k.e("s_add_u32 s59, s59, s60")
    k.e("s_lshl_b32 s60, s101, 6")
    k.e("s_lshl_b32 s61, s101, 10")
    for i in range(3):
        k.e("v_add_u32 v9, s60, v0")
        if i: k.e(f"v_add_u32 v9, {256*i}, v9")
        k.e("v_mul_u32_u24 v10, 52429, v9")
        k.e("v_lshrrev_b32 v10, 20, v10")
        k.e("v_mul_u32_u24 v10, 960, v10")
        k.e(f"v_lshl_add_u32 v{110+i}, v9, 4, v10")
    k.e("s_cmp_ge_u32 s101, 2")
    k.e(f"s_cselect_b32 s60, {OOB}, 0")
    k.e("v_add_u32 v112, s60, v112")
    k.e("v_lshrrev_b32 v11, 2, v0")
    k.e("v_mul_u32_u24 v11, 320, v11")
    k.e("v_and_b32 v12, 3, v0")
    k.e("v_lshl_add_u32 v11, v12, 3, v11")
    k.e("s_lshr_b32 s10, s101, 1")
    k.e("s_and_b32 s11, s101, 1")
    k.e("s_mul_i32 s60, s10, 5")
    k.e("s_mul_i32 s54, s11, 3")
    k.e("s_add_u32 s60, s60, s54")
    k.e("s_lshl_b32 s60, s60, 5")
    k.e(f"s_add_u32 s60, s60, {RLB}")
    k.e("v_add_u32 v214, s60, v11")
    k.e("s_lshl_b32 s60, s58, 1")
    k.e("s_add_u32 s60, s60, s10")
    k.e(f"s_mul_i32 s89, s60, {NT}")
    k.e("s_add_u32 s89, s89, s57")
    k.e("s_mul_i32 s89, s89, 5120")
    k.e("s_lshl_b32 s54, s54, 10")
    k.e("s_add_u32 s89, s89, s54")
    k.e("s_cmp_ge_u32 s2, 216")
    k.e(f"s_cselect_b32 s89, {OOB}, s89")
    if flag("XNOW"): k.e(f"s_mov_b32 s89, {OOB}")
    k.e("v_lshlrev_b32 v215, 4, v0")
    k.e("s_cmp_eq_u32 s11, 1")
    k.e(f"s_cselect_b32 s54, {OOB}, 0")
    k.e("v_add_u32 v216, s54, v215")
def rel1_loads():
    L = []
    for i in range(3):
        L.append(f"s_add_u32 m0, s61, {RLB + 4096*i}")
        L.append(f"buffer_load_dwordx4 v{110+i}, s[84:87], s59 offen lds")
    return L
def rel1_reads():
    L = []
    for i in range(3):
        L.append(f"ds_read_b64_tr_b16 v[{188+4*i}:{189+4*i}], v214 offset:{32*i}")
        L.append(f"ds_read_b64_tr_b16 v[{190+4*i}:{191+4*i}], v214 offset:{32*i + 5120}")
    return L
def rel1_stores():
    return ["s_waitcnt lgkmcnt(0)"] + [f"buffer_store_dwordx4 v[{188+4*i}:{191+4*i}], v{216 if i == 2 else 215}, s[44:47], s89 offen offset:{1024*i}{SC1}" for i in range(3)]
def u_addr(k):
    srd(k, 40, P_WS, NB_T, UR_OFF)
    unit_ids(k, 52, 53)
    k.e("v_lshrrev_b32 v1, 3, v0")
    k.e("v_and_b32 v3, 7, v0")
    k.e("v_lshrrev_b32 v11, 1, v3")
    k.e("v_sub_u32 v11, 3, v11")
    k.e("v_mul_u32_u24 v11, 5120, v11")
    k.e("v_lshl_add_u32 v11, v1, 5, v11")
    k.e("v_and_b32 v12, 1, v3")
    k.e("v_lshl_add_u32 v11, v12, 4, v11")
    k.e("s_lshl_b32 s55, s101, 9")
    k.e(f"s_add_u32 s55, s55, {EA}")
    k.e("v_add_u32 v211, s55, v11")
    k.e(f"v_mul_u32_u24 v232, {RS}, v1")
    k.e("v_lshl_add_u32 v232, v3, 4, v232")
    k.e(f"v_add_u32 v233, {8*RS}, v232")
    k.e("s_lshl_b32 s63, s53, 2")
    k.e("s_add_u32 s63, s63, s101")
    k.e(f"s_mul_i32 s63, s63, {16*RS}")
    k.e("s_lshl_b32 s55, s52, 7")
    k.e("s_sub_u32 s55, 3968, s55")
    k.e("s_add_u32 s63, s63, s55")
def u_out():
    L = [f"ds_read_b128 v[{100+4*i}:{103+4*i}], v211 offset:{256*i}" for i in range(2)]
    L.append("s_waitcnt lgkmcnt(0)")
    L += [f"buffer_store_dwordx4 v[{100+4*i}:{103+4*i}], v{232+i}, s[40:43], s63 offen{SC1}" for i in range(2)]
    return L

def g2_offsets(k):
    k.e("s_mul_i32 s10, s101, 14")
    k.e("s_cmp_eq_u32 s101, 3")
    k.e("s_cselect_b32 s10, 41, s10")
    k.e(f"s_mul_i32 s11, s8, {NT}")
    k.e("s_add_u32 s11, s11, s10")
    k.e("s_lshl_b32 s76, s11, 12")
    k.e(f"s_mul_i32 s11, s9, {NT}")
    k.e("s_add_u32 s11, s11, s10")
    k.e("s_mul_i32 s77, s11, 5120")
    k.e("s_cmp_ge_u32 s101, 2")
    k.e(f"s_cselect_b32 s79, {OOB}, 0")
    k.e("s_mul_i32 s75, s101, 7")
    k.e("s_min_u32 s75, s75, 20")
    k.e("s_lshl_b32 s11, s8, 5")
    k.e("s_add_u32 s75, s75, s11")
    k.e(f"s_lshl_b32 s75, s75, {HSH}")
    k.e(f"s_add_u32 s75, s75, {FH}")
    k.e("s_lshl_b32 s74, s101, 14")
    k.e("s_min_u32 s10, s10, 40")
    k.e("s_lshl_b32 s10, s10, 2")
    k.e("s_lshr_b32 s11, s9, 1")
    k.e("s_add_u32 s10, s10, s11")
    k.e("s_lshl_b32 s10, s10, 7")
    k.e(f"s_add_u32 s71, s10, {FB}")
LSTEPS = [int(x) for x in os.environ.get("LSTEPS", "5,8,11").split(",")]
def soff(dst, base, step, mul):
    st = step
    if flag("XHIT") & 1 and mul == 4096: st = step % 2
    if flag("XHIT") & 2 and mul == 5120: st = step % 2
    L = [f"s_add_u32 s{dst}, s{base}, {st * mul}"]
    if step == NSTEP - 1: L.append(f"s_add_u32 s{dst}, s{dst}, s79")
    return L
def w_loads(step):
    b = W_SL[step % NW]
    L = soff(73, 77, step, 5120)
    L += [f"buffer_load_dwordx4 v[{b+4*d}:{b+4*d+3}], v1, s[44:47], s73 offen offset:{1024*d}{SC1}" for d in range(4)]
    L.append(f"buffer_load_dwordx4 v[{b+16}:{b+19}], v2, s[44:47], s73 offen{SC1}")
    return L
def h_loads(step):
    b = G_H + 16 * (step % NH)
    L = soff(72, 76, step, 4096)
    L += [f"buffer_load_dwordx4 v[{b+4*m}:{b+4*m+3}], v{3+m}, s[40:43], s72 offen{SC1}" for m in range(4)]
    return L
def w_lds_reads(step):
    b = W_SL[step % NW]
    return [f"ds_read_b128 v[{b+4*d}:{b+4*d+3}], v7 offset:{LSTEPS.index(step)*5120 + 1024*d}" for d in range(5)]
def g2_mfmas(step, order=None):
    b = G_H + 16 * (step % NH); wb = W_SL[step % NW]
    L = []
    for d, m in (order or [(d, m) for d in range(5) for m in range(4)]):
        a = G_ACC + 16*d + 4*m
        c = "0" if step == 0 else f"v[{a}:{a+3}]"
        L.append(f"v_mfma_f32_16x16x32_bf16 v[{a}:{a+3}], v[{wb+4*d}:{wb+4*d+3}], v[{b+4*m}:{b+4*m+3}], {c}")
    return L

def g2_phase(k):
    for s in range(EWI or flag("NP", 0), NW):
        for x in w_loads(s): k.e(x)
    srd(k, 40, P_WS, 32 * NT * 4096, H_OFF)
    k.e("s_lshl_b32 s52, s101, 10")
    k.e("v_add_u32 v3, s52, v1")
    for m in range(1, 4): k.e(f"v_xor_b32 v{3+m}, {1024*m}, v3")
    k.e(f"v_lshlrev_b32 v9, {HSH}, v0")
    EPOL = flag("EPOL", 8); left = 15
    for li, s in enumerate(LSTEPS):
        for x in soff(78, 77, s, 5120): k.e(x)
        for d in range(5):
            if left == EPOL:
                k.e("s_bfm_b64 exec, 7, 0")
                k.e(f"buffer_load_dwordx2 v[10:11], v9, s[{FSRD}:{FSRD+3}], s75 offen{SC1}")
                k.e("s_mov_b64 exec, -1")
            left -= 1
            if d in (0, 4): k.e(f"s_add_u32 m0, s74, {li*5120 + 1024*d}")
            if d < 4: k.e(f"buffer_load_dwordx4 v1, s[44:47], s78 offen offset:{1024*d}{SC1} lds")
            else: k.e(f"buffer_load_dwordx4 v2, s[44:47], s78 offen{SC1} lds")
    k.e("v_add_u32 v7, s74, v1")
    k.e(f"v_mov_b32 v152, {CNT}")
    k.e(f"s_waitcnt vmcnt({EPOL})")
    poll(k, "L_hpoll", 10, 9, 75, 58, 7, sleep=2, preloaded=True)
    stamp(k, 1, 2); cs(k, "rdy")
    vm = Vm(); need = {}
    NH0 = flag("NH0", 3)
    for s in range(NH0):
        for x in h_loads(s):
            k.e(x)
            if is_vmem(x): need[("h", s)] = vm.op()
    def groups(L):
        G = []; cur = []
        for x in L:
            cur.append(x)
            if is_vmem(x): G.append(cur); cur = []
        return G
    LA = flag("LA", 2); R = flag("RATE", 6)
    qh = [(s - (NH - 1), s - LA, "h", s, g) for s in range(NH0, NSTEP) for g in groups(h_loads(s))]
    qw = [(s - (NW - 1), s - LA, "w", s, g) for s in range(NW, NSTEP) if s not in LSTEPS for g in groups(w_loads(s))]
    for s in range(NSTEP):
        idx = max(need[("h", s)], need.get(("w", s), -1))
        lg = " lgkmcnt(0)" if (s in LSTEPS or s == NSTEP - 1) else ""
        k.e(f"s_waitcnt vmcnt({vm.wait(idx)}){lg}")
        if s in (0, 3, 7, 10): stamp(k, 4, (0, 3, 7, 10).index(s))
        if s in (10, 12, 13): stamp(k, 5, (10, 12, 13).index(s))
        if s == NSTEP - 1: break
        fill = []
        while (qh or qw):
            cand = [q for q in (qh, qw) if q and q[0][0] <= s]
            if not cand: break
            q = min(cand, key=lambda q: q[0][1])
            if len(fill) >= R and q[0][1] > s: break
            fill.append(q.pop(0))
        extra = []
        if s == flag("YAT", 5): extra.append(f"ds_write_b32 v152, v152 offset:{PROG}")
        if s + 2 in LSTEPS: extra += w_lds_reads(s + 2)
        if s == 12:
            r = Rec(); tail_addr(r); extra += ["\n".join(r.lines[i:i+2]) for i in range(0, len(r.lines), 2)]
        n = len(fill); fi = 0; ei = 0
        for i, x in enumerate(g2_mfmas(s)):
            k.e(x)
            if fi < n and i >= (fi * 18) // n:
                for y in fill[fi][4]: k.e(y)
                need[(fill[fi][2], fill[fi][3])] = vm.op(); fi += 1
            elif ei < len(extra):
                k.e(extra[ei]); ei += 1
        assert fi == n
        for y in extra[ei:]: k.e(y)
    assert not qh and not qw
    k.e("s_setprio 2")
    order = [(3, 0), (4, 0)] + [(d, m) for m in (1, 2, 3) for d in range(5)] + [(0, 0), (1, 0), (2, 0)]
    wr = [f"ds_write_b128 v{T+8}, v[{G_ACC+16*d}:{G_ACC+16*d+3}] offset:{OWN + 1024*(d-3)}" for d in (3, 4)]
    wr += [f"ds_write_b128 v7, v[{G_ACC+16*d+4*m}:{G_ACC+16*d+4*m+3}] offset:{(m-1)*5120 + 1024*d}" for d, m in order[2:17]]
    k.e("s_cmp_ge_u32 s101, 2")
    k.e("s_cbranch_scc1 L_g2_short")
    for x in interleave(g2_mfmas(NSTEP - 1, order), wr, start=6): k.e(x)
    k.e("s_branch L_g2_join")
    k.e("L_g2_short:")
    k.e("s_nop 7")
    for x in wr: k.e(x)
    k.e("L_g2_join:")
    stamp(k, 1, 3); cs(k, "mend")
    g2_tail(k)

T = 156
OWN = SO + 3072
assert C3
def tail_addr(k):
    srd(k, 48, P_OUT, NB_X)
    k.e("s_lshl_b32 s53, s8, 2")
    k.e("s_add_u32 s53, s53, s101")
    k.e("s_mul_i32 s54, s53, 20480")
    k.e("s_mul_i32 s55, s9, 160")
    k.e("s_add_u32 s54, s54, s55")
    for i in range(2):
        k.e(f"v_add_u32 v{T+3}, {64*i}, v0")
        k.e(f"v_mul_u32_u24 v{T+4}, 10923, v{T+3}")
        k.e(f"v_lshrrev_b32 v{T+4}, 16, v{T+4}")
        k.e(f"v_mul_u32_u24 v{T+4}, {1280-96}, v{T+4}")
        k.e(f"v_lshl_add_u32 v{T+i}, v{T+3}, 4, v{T+4}")
    k.e(f"v_mov_b32 v{T+4}, {OOB}")
    k.e("v_cmp_gt_u32 vcc, 32, v0")
    k.e(f"v_cndmask_b32 v{T+1}, v{T+4}, v{T+1}, vcc")
    for m in range(1, 4): k.e(f"v_xor_b32 v{T+4+m}, {16384*m}, v7")
    k.e(f"v_add_u32 v{T+8}, s81, v1")
    k.e(f"v_and_b32 v{T+9}, 15, v0")
    k.e(f"v_mul_u32_u24 v{T+9}, 96, v{T+9}")
    k.e(f"v_lshrrev_b32 v{T+10}, 4, v0")
    k.e(f"v_lshl_add_u32 v{T+9}, v{T+10}, 3, v{T+9}")
    k.e(f"v_add_u32 v{T+9}, s81, v{T+9}")
    k.e(f"v_mov_b32 v{T+12}, 1.0")
    k.e(f"v_mov_b32 v{T+13}, 1.0")
def final_block(k, a, s, x, cc, one):
    for h in range(2):
        k.e(f"v_pk_add_f32 v[{a+2*h}:{a+2*h+1}], v[{a+2*h}:{a+2*h+1}], v[{a+4+2*h}:{a+4+2*h+1}]")
        k.e(f"v_pk_add_f32 v[{a+8+2*h}:{a+8+2*h+1}], v[{a+8+2*h}:{a+8+2*h+1}], v[{a+12+2*h}:{a+12+2*h+1}]")
    for h in range(2):
        k.e(f"v_pk_add_f32 v[{a+2*h}:{a+2*h+1}], v[{a+2*h}:{a+2*h+1}], v[{a+8+2*h}:{a+8+2*h+1}]")
    e = a + 4
    for h in range(2):
        k.e(f"v_pk_mul_f32 v[{e+2*h}:{e+2*h+1}], v[{a+2*h}:{a+2*h+1}], v[{cc}:{cc+1}]")
    for r in range(4): k.e(f"v_exp_f32 v{e+r}, v{e+r}")
    for h in range(2):
        k.e(f"v_pk_mul_f32 v[{a+2*h}:{a+2*h+1}], v[{a+2*h}:{a+2*h+1}], v[{s+2*h}:{s+2*h+1}]")
    for h in range(2):
        k.e(f"v_pk_add_f32 v[{e+2*h}:{e+2*h+1}], v[{e+2*h}:{e+2*h+1}], v[{one}:{one+1}]")
    for r in range(4): k.e(f"v_rcp_f32 v{e+r}, v{e+r}")
    for h in range(2):
        k.e(f"v_pk_fma_f32 v[{a+2*h}:{a+2*h+1}], v[{a+2*h}:{a+2*h+1}], v[{e+2*h}:{e+2*h+1}], v[{x+2*h}:{x+2*h+1}]")
    k.e(f"v_cvt_pk_bf16_f32 v{a+8}, v{a}, v{a+1}")
    k.e(f"v_cvt_pk_bf16_f32 v{a+9}, v{a+2}, v{a+3}")
def g2_tail(k):
    k.e("s_waitcnt lgkmcnt(0)")
    stamp(k, 6, 0)
    k.e("s_barrier")
    stamp(k, 5, 3); stamp(k, 6, 1)
    SF, XF, CC = 88, 108, T + 14
    k.e(f"ds_read_b64 v[{CC}:{CC+1}], v{T+8} offset:{SO + 10240}")
    for d in range(3):
        for m in range(1, 4):
            a = G_ACC + 16*d + 4*m
            k.e(f"ds_read_b128 v[{a}:{a+3}], v{T+4+m} offset:{(m-1)*5120 + 1024*d}")
        k.e(f"ds_read_b128 v[{SF+4*d}:{SF+4*d+3}], v{T+8} offset:{SO + 1024*d}")
        k.e(f"ds_read_b128 v[{XF+4*d}:{XF+4*d+3}], v{T+8} offset:{SO + 5120 + 1024*d}")
    for d in range(3):
        k.e(f"s_waitcnt lgkmcnt({10-5*d})")
        final_block(k, G_ACC + 16*d, SF + 4*d, XF + 4*d, CC, T + 12)
    stamp(k, 6, 2)
    for d in range(3):
        a = G_ACC + 16*d
        k.e(f"ds_write_b64 v{T+9}, v[{a+8}:{a+9}] offset:{XO + 32*d}")
    k.e("s_waitcnt lgkmcnt(0)")
    O = 128
    for i in range(2): k.e(f"ds_read_b128 v[{O+4*i}:{O+4*i+3}], v{T+8} offset:{XO + 1024*i}")
    for i in range(2):
        k.e(f"s_waitcnt lgkmcnt({1-i})")
        k.e(f"buffer_store_dwordx4 v[{O+4*i}:{O+4*i+3}], v{T+i}, s[48:51], s54 offen")
    stamp(k, 6, 3)
def b_tail(k):
    srd(k, 48, P_OUT, NB_X)
    k.e("v_lshlrev_b32 v8, 4, v0")
    k.e("s_lshl_b32 s59, s101, 14")
    k.e("v_add_u32 v8, s59, v8")
    for m in range(1, 4): k.e(f"v_xor_b32 v{8+m}, {16384*m}, v8")
    k.e("v_and_b32 v12, 15, v0")
    k.e("v_lshlrev_b32 v12, 6, v12")
    k.e("v_lshrrev_b32 v13, 4, v0")
    k.e("v_lshl_add_u32 v12, v13, 3, v12")
    k.e("v_add_u32 v12, s81, v12")
    k.e("v_lshrrev_b32 v13, 2, v0")
    k.e("v_mul_u32_u24 v13, 1280, v13")
    k.e("v_and_b32 v14, 3, v0")
    k.e("v_lshl_add_u32 v13, v14, 4, v13")
    k.e("v_mov_b32 v14, 1.0")
    k.e("v_mov_b32 v15, 1.0")
    k.e("s_waitcnt lgkmcnt(0)")
    k.e("s_barrier")
    P = 104
    for i, d in enumerate((3, 4)):
        k.e(f"ds_read_b128 v[{P+16*i}:{P+16*i+3}], v37 offset:{OWN + 1024*i}")
        for m in range(1, 4):
            k.e(f"ds_read_b128 v[{P+16*i+4*m}:{P+16*i+4*m+3}], v{8+m} offset:{(m-1)*5120 + 1024*d}")
    for i, d in enumerate((3, 4)):
        k.e(f"s_waitcnt lgkmcnt({4-4*i})")
        final_block(k, P + 16*i, 60 + 4*d, 40 + 4*d, 38, 14)
    for i in range(2): k.e(f"ds_write_b64 v12, v[{P+16*i+8}:{P+16*i+9}] offset:{YO + 32*i}")
    k.e("s_waitcnt lgkmcnt(0)")
    k.e(f"ds_read_b128 v[16:19], v37 offset:{YO}")
    k.e("s_waitcnt lgkmcnt(0)")
    k.e("buffer_store_dwordx4 v[16:19], v13, s[48:51], s54 offen offset:96")

BA, AA, ONE, ACC, AR, AC, FR = 10, 14, 20, 24, 88, 96, 112
def g1_setup(k):
    srd(k, 48, P_WS, 32 * NT * 4096, H_OFF)
    srd(k, 44, P_WS, NB_W, W2_OFF)
    k.e("s_and_b32 s52, s3, 1")
    k.e("s_lshr_b32 s53, s3, 1")
    k.e("v_lshlrev_b32 v1, 4, v0")
    k.e("v_add_u32 v2, 4096, v1")
    k.e("v_and_b32 v18, 15, v0")
    k.e("v_lshrrev_b32 v19, 4, v0")
    k.e("v_lshrrev_b32 v20, 1, v18")
    k.e("v_xor_b32 v20, v20, v19")
    k.e("v_lshlrev_b32 v20, 4, v20")
    k.e("v_lshl_add_u32 v20, v18, 7, v20")
    k.e("s_lshl_b32 s58, s52, 13")
    k.e("s_lshl_b32 s59, s53, 12")
    k.e("s_add_u32 s58, s58, s59")
    k.e(f"v_add_u32 v{BA}, s58, v20")
    k.e(f"v_xor_b32 v{BA+1}, 64, v{BA}")
    k.e(f"v_xor_b32 v{BA+2}, 0x1000, v{BA}")
    k.e(f"v_xor_b32 v{BA+3}, 0x1040, v{BA}")
    k.e("v_lshrrev_b32 v20, 2, v18")
    k.e("v_and_b32 v21, 3, v18")
    k.e("v_lshl_add_u32 v22, v19, 3, v20")
    k.e("v_lshlrev_b32 v22, 8, v22")
    k.e("v_lshl_add_u32 v22, v21, 3, v22")
    k.e(f"v_add_u32 v22, {WPART}, v22")
    k.e("v_and_b32 v23, 1, v19")
    k.e("v_lshl_add_u32 v23, v23, 2, v20")
    k.e("s_lshl_b32 s58, s53, 2")
    k.e("s_lshl_b32 s59, s52, 1")
    k.e("s_add_u32 s58, s58, s59")
    k.e("v_xor_b32 v23, s58, v23")
    k.e(f"v_lshl_add_u32 v{AA}, v23, 5, v22")
    for fb in range(1, 4): k.e(f"v_xor_b32 v{AA+fb}, {32*fb}, v{AA}")
    for i in range(4): k.e(f"v_mov_b32 v{ONE+i}, 0x3f803f80")
    for r, x in ((3, 0), (4, 2), (5, 1)):
        k.e(f"s_xor_b32 s58, s3, {x}")
        k.e("s_mul_i32 s58, s58, 3072")
        k.e(f"s_add_u32 s58, s58, {TOP}")
        k.e(f"v_add_u32 v{r}, s58, v1")
    k.e("s_lshl_b32 s58, s7, 1")
    k.e("s_add_u32 s57, s58, s53")
    k.e("s_lshl_b32 s59, s6, 1")
    k.e("s_add_u32 s59, s59, s52")
    k.e("s_lshl_b32 s56, s59, 5")
    k.e("s_add_u32 s56, s56, s57")
    k.e(f"s_lshl_b32 s56, s56, {HSH}")
    k.e(f"s_add_u32 s56, s56, {FH}")
    k.e(f"s_mul_i32 s59, s59, {NT}")
    k.e("s_lshl_b32 s58, s57, 1")
    k.e("s_add_u32 s58, s58, s59")
    k.e("s_lshl_b32 s58, s58, 12")
    k.e("s_lshl_b32 s59, s52, 12")
    k.e("s_add_u32 s60, s58, s59")
    k.e("s_xor_b32 s59, s59, 0x1000")
    k.e("s_add_u32 s61, s58, s59")
    k.e("s_lshl_b32 s59, s53, 11")
    k.e("v_add_u32 v6, s59, v1")
    k.e("v_xor_b32 v7, 0x800, v6")
    k.e(f"v_mov_b32 v18, {CNT}")
    k.e("s_lshl_b32 s58, s3, 2")
    k.e(f"s_add_u32 s58, s58, {CNT + PA}")
    k.e("v_mov_b32 v19, s58")

def g1_phase(k):
    PV = 176
    def reads(stage, ks, buf):
        so = (stage % 2) * SLOT
        L = []
        fa = FR + 32 * buf; fb_ = fa + 16
        for i in range(4):
            L.append(f"ds_read_b128 v[{fb_+4*i}:{fb_+4*i+3}], v{BA + 2*(i>>1) + ks} offset:{so + 2048*(i&1)}")
            L.append(f"ds_read_b64_tr_b16 v[{fa+4*i}:{fa+4*i+1}], v{AA+i} offset:{so + 8192*ks}")
            L.append(f"ds_read_b64_tr_b16 v[{fa+4*i+2}:{fa+4*i+3}], v{AA+i} offset:{so + 8192*ks + 1024}")
        return L
    def mfmas(buf, first=False, sums_first=False):
        fa = FR + 32 * buf; fb_ = fa + 16
        L = []; Sm = []
        def mm(Tg, d, a, b):
            c = "0" if first else f"v[{d}:{d+3}]"
            Tg.append(f"v_mfma_f32_16x16x32_bf16 v[{d}:{d+3}], v[{a}:{a+3}], v[{b}:{b+3}], {c}")
        for f in range(4):
            for m in range(4): mm(L, ACC + 16*f + 4*m, fa + 4*f, fb_ + 4*m)
        for i in range(2):
            mm(Sm, AR + 4*i, ONE, fb_ + 4*i)
            mm(Sm, AC + 4*i, fa + 4*i, ONE)
        if flag("QNOSUM") and not first and not sums_first: return L
        return Sm + L if sums_first else L + Sm
    def dense(L):
        n = flag("DEN", 2)
        return ["\n".join(L[i:i+n]) for i in range(0, len(L), n)]
    tog = [f"v_xor_b32 v{r}, 0x10000, v{r}" for r in list(range(BA, BA+4)) + list(range(AA, AA+4))]
    for s in range(NSTAGE):
        k.c(f"---- stage {s}")
        k.e("s_waitcnt lgkmcnt(0)")
        m1 = mfmas(1)
        if s < 9: k.e("s_barrier")
        else:
            for x in interleave(m1[:3], prog_min(PV, 58)): k.e(x)
            m1 = m1[3:]
            prog_spin(k, "L_a9", 18, PV, PB, 58, 1)
        if s == 0: stamp(k, 1, 0); stamp(k, 2, 0); cs(k, "b0")
        if s == 4: cs(k, "b4")
        if s == 4: stamp(k, 2, 1)
        if s == 8:
            stamp(k, 2, 2)
            k.e("s_setprio 2")
        for x in (reads(0, 0, 0) if s == 0 else interleave(m1, dense(reads(s, 0, 0)))): k.e(x)
        k.e("s_waitcnt lgkmcnt(0)")
        m0 = mfmas(0, first=(s == 0))
        nxt = tog if ((s + 1) % 2 == 0 and s + 1 < NSTAGE) else []
        if s == 9 and EPI:
            m0 = mfmas(0, sums_first=True)
            exch = [f"v_mov_b32 v{AR+1}, v{AR+4}",
                    f"ds_write_b64 v3, v[{AR}:{AR+1}]",
                    f"ds_write_b128 v3, v[{AC}:{AC+3}] offset:1024",
                    f"ds_write_b128 v3, v[{AC+4}:{AC+7}] offset:2048"] + prog_write(19, 8, 11)
            body = (interleave(m0[:10], dense(reads(s, 1, 1))) + ["s_waitcnt lgkmcnt(0)"] + mfmas(1, sums_first=True)[:4]
                    + m0[10:14] + interleave(m0[14:], exch))
        elif s == 8:
            body = interleave(m0[:-3], dense(reads(s, 1, 1))) + [f"ds_read_b128 v[{PV}:{PV+3}], v18 offset:{PB}"] + m0[-3:]
        else:
            body = interleave(m0, dense(reads(s, 1, 1)) + nxt)
        for x in body: k.e(x)
    if EPI:
        allm = mfmas(1, sums_first=True)[4:]
        fin = [allm[4*(2*p+ff) + m] for p in range(2) for m in range(4) for ff in range(2)]
        sync_reads = [f"ds_read_b128 v[{PV}:{PV+3}], v18 offset:{PA}",
                      f"ds_read_b64 v[{AR+2}:{AR+3}], v4",
                      f"ds_read_b128 v[{AC+8}:{AC+11}], v5 offset:1024",
                      f"ds_read_b128 v[{AC+12}:{AC+15}], v5 offset:2048"]
        k.e("s_cmp_ge_u32 s57, 27")
        for r in (56, 60, 61): k.e(f"s_cselect_b32 s{r}, {OOB}, s{r}")
        for x in fin[:2] + interleave(fin[2:8], sync_reads): k.e(x)
        k.e("s_branch L_a_chk")
        k.e("L_a_sync:")
        for x in sync_reads: k.e(x)
        k.e("L_a_chk:")
        k.e("s_waitcnt lgkmcnt(0)")
        for x in prog_min(PV, 58): k.e(x)
        k.e("s_cmp_lt_u32 s58, 11")
        k.e("s_cbranch_scc1 L_a_sync")
        stamp(k, 2, 3); cs(k, "sync")
        NM = FR; OUT = FR + 8
        V = [f"v_mul_f32 v{AR+m}, {-1.0/D!r}, v{AR+m}" for m in range(4)]
        V += [f"v_cvt_pk_bf16_f32 v{AR+4}, v{AR}, v{AR+1}", f"v_cvt_pk_bf16_f32 v{AR+5}, v{AR+2}, v{AR+3}"]
        for m in range(4):
            src = AR + 4 + (m >> 1)
            V.append(f"v_and_b32 v{NM+m}, 0xffff0000, v{src}" if m & 1 else f"v_lshlrev_b32 v{NM+m}, 16, v{src}")
        n = 0
        for p in range(2):
            for m in range(4):
                o = OUT + 4 * (n % 4); n += 1
                for ff in range(2):
                    f = 2*p + ff
                    a = ACC + 16*f + 4*m
                    V += [f"v_fmac_f32 v{a+r}, v{AC+4*f+r}, v{NM+m}" for r in range(4)]
                    V += [f"v_cvt_pk_bf16_f32 v{o+2*ff+h}, v{a+2*h}, v{a+2*h+1}" for h in range(2)]
                if p == 1 and m == 2 and flag("NP", 0): V.append(f"ds_read_b32 v8, v18 offset:{AUXOK}")
                V += [f"v_pk_max_i16 v{o+i}, v{o+i}, 0" for i in range(4)]
                V.append(f"buffer_store_dwordx4 v[{o}:{o+3}], v{6+(m>>1)}, s[48:51], s{60+p} offen offset:{1024*(m&1)}{HSC}")
        pos = len(V) - flag("EVP", 40)
        V = V[:pos] + prog_write(19, 8, 12) + V[pos:]
        rest = fin[8:]
        for i, x in enumerate(V):
            if i % 3 == 0 and rest: k.e(rest.pop(0))
            k.e(x)
    else:
        k.e("s_waitcnt lgkmcnt(0)")
        fin = mfmas(1, sums_first=True)
        exch = [f"v_mov_b32 v{AR+1}, v{AR+4}",
                f"ds_write_b64 v3, v[{AR}:{AR+1}]",
                f"ds_write_b128 v3, v[{AC}:{AC+3}] offset:1024",
                f"ds_write_b128 v3, v[{AC+4}:{AC+7}] offset:2048"] + prog_write(19, 8, 11)
        for x in fin[:7] + interleave(fin[7:], exch): k.e(x)
        k.e("L_a_sync:")
        k.e(f"ds_read_b128 v[{PV}:{PV+3}], v18 offset:{PA}")
        k.e(f"ds_read_b64 v[{AR+2}:{AR+3}], v4")
        k.e(f"ds_read_b128 v[{AC+8}:{AC+11}], v5 offset:1024")
        k.e(f"ds_read_b128 v[{AC+12}:{AC+15}], v5 offset:2048")
        if EWI: k.e(f"ds_read_b32 v8, v18 offset:{AUXOK}")
        k.e("s_waitcnt lgkmcnt(0)")
        for x in prog_min(PV, 58): k.e(x)
        k.e("s_cmp_lt_u32 s58, 11")
        k.e("s_cbranch_scc1 L_a_sync")
        stamp(k, 2, 3); cs(k, "sync")
        if flag("HTF", 1):
            k.e("s_cmp_ge_u32 s57, 27")
            for r in (56, 60, 61): k.e(f"s_cselect_b32 s{r}, {OOB}, s{r}")
        else:
            k.e("s_cmp_ge_u32 s57, 27")
            k.e("s_cbranch_scc1 L_g2w")
        NM = FR
        wl = []
        if EWI:
            k.e("v_readfirstlane_b32 s71, v8")
            k.e("s_mov_b32 s70, s77")
            k.e("s_cmp_eq_u32 s71, 0")
            k.e(f"s_cselect_b32 s77, {OOB}, s77")
            cur = []
            for st in range(EWI):
                for x in w_loads(st):
                    cur.append(x)
                    if is_vmem(x): wl.append(cur); cur = []
        for m in range(4): k.e(f"v_mul_f32 v{AR+m}, {-1.0/D!r}, v{AR+m}")
        k.e(f"v_cvt_pk_bf16_f32 v{AR+4}, v{AR}, v{AR+1}")
        k.e(f"v_cvt_pk_bf16_f32 v{AR+5}, v{AR+2}, v{AR+3}")
        for m in range(4):
            src = AR + 4 + (m >> 1)
            if m & 1: k.e(f"v_and_b32 v{NM+m}, 0xffff0000, v{src}")
            else:     k.e(f"v_lshlrev_b32 v{NM+m}, 16, v{src}")
        OUT = FR + 8
        n = 0
        for p in range(2):
            for m in range(4):
                o = OUT + 4 * (n % 4); n += 1
                for ff in range(2):
                    f = 2*p + ff
                    a = ACC + 16*f + 4*m
                    for r in range(4): k.e(f"v_fmac_f32 v{a+r}, v{AC+4*f+r}, v{NM+m}")
                    for h in range(2): k.e(f"v_cvt_pk_bf16_f32 v{o+2*ff+h}, v{a+2*h}, v{a+2*h+1}")
                if p == 1 and m == 2 and flag("NP", 0): k.e(f"ds_read_b32 v8, v18 offset:{AUXOK}")
                for i in range(4): k.e(f"v_pk_max_i16 v{o+i}, v{o+i}, 0")
                k.e(f"buffer_store_dwordx4 v[{o}:{o+3}], v{6+(m>>1)}, s[48:51], s{60+p} offen offset:{1024*(m&1)}{HSC}")
                lo, hi = (len(wl) * (n - 1)) // 8, (len(wl) * n) // 8
                for g in wl[lo:hi]:
                    for x in g: k.e(x)
        if EWI:
            k.e(f"s_waitcnt vmcnt({hi - lo})")
            publish(k, 56, 12, HSC)
            stamp(k, 1, 1)
            k.e("s_setprio 0")
            k.e("s_mov_b32 s77, s70")
            k.e("s_cmp_eq_u32 s71, 0")
            k.e("s_cbranch_scc0 L_g2b")
            k.e("s_branch L_g2w")
    NP = EWI or flag("NP", 0)
    if NP and not EWI:
        k.e("s_waitcnt lgkmcnt(0)")
        k.e("v_readfirstlane_b32 s58, v8")
        k.e("s_cmp_eq_u32 s58, 0")
        k.e("s_cbranch_scc1 L_a_slow")
        for st in range(NP):
            for x in w_loads(st): k.e(x)
        k.e(f"s_waitcnt vmcnt({5*NP})")
        publish(k, 56, 12, HSC)
        stamp(k, 1, 1)
        k.e("s_setprio 0")
        k.e("s_branch L_g2b")
        k.e("L_a_slow:")
    if AWP:
        k.e("v_lshlrev_b32 v9, 9, v0")
        k.e("s_bfm_b64 exec, 14, 0")
        k.e(f"buffer_load_dwordx2 v[10:11], v9, s[{FSRD}:{FSRD+3}], s71 offen{SC1}")
        k.e("s_mov_b64 exec, -1")
        k.e("s_waitcnt vmcnt(1)")
        publish(k, 56, 12, HSC)
        stamp(k, 1, 1)
        k.e("s_waitcnt vmcnt(1)")
        k.e("s_setprio 0")
        poll(k, "L_aw", 10, 9, 71, 58, 14, preloaded=True)
        k.e("s_branch L_g2b")
        k.e("L_g2w:")
        k.e("s_setprio 0")
        k.e(f"v_mov_b32 v10, {CNT}")
        lds_wait(k, "L_aw2", 10, 11, AUXOK, 58, sleep=4)
    else:
        if not EWI:
            k.e("s_waitcnt vmcnt(0)")
            publish(k, 56, 12, HSC)
            stamp(k, 1, 1)
        k.e("L_g2w:")
        k.e("s_setprio 0")
        k.e(f"v_mov_b32 v10, {CNT}")
        lds_wait(k, "L_aw2", 10, 11, AUXOK, 58, sleep=4)
    for st in range(NP):
        for x in w_loads(st): k.e(x)
    k.e("L_g2b:")

def b_aprep(k):
    srd(k, 40, P_Q, NB_X)
    srd(k, 44, P_WS, 16384, ST_OFF)
    srd(k, 68, P_WS, NB_T, YT_OFF)
    xo_offsets(k, 8, 1, 2)
    for i in range(3):
        k.e(f"s_add_u32 m0, s81, {XO + 1024*i}")
        k.e(f"buffer_load_dwordx4 v{8+i}, s[40:43], s54 offen lds")
    k.e("v_and_b32 v1, 15, v0")
    k.e("v_lshlrev_b32 v3, 3, v1")
    k.e("s_lshl_b32 s57, s53, 7")
    k.e("v_lshrrev_b32 v4, 3, v0")
    k.e(f"v_mul_u32_u24 v4, {RS}, v4")
    k.e("v_and_b32 v2, 7, v0")
    k.e("v_lshl_add_u32 v4, v2, 4, v4")
    k.e("s_mul_i32 s58, s9, 10")
    k.e("s_add_u32 s58, s58, s101")
    k.e(f"s_mul_i32 s58, s58, {8*RS}")
    k.e("s_lshl_b32 s59, s8, 7")
    k.e("s_add_u32 s58, s58, s59")
    k.e(f"v_mov_b32 v2, {CNT}")
    k.e("v_mul_u32_u24 v5, 160, v1")
    k.e("v_lshrrev_b32 v6, 4, v0")
    k.e("v_lshl_add_u32 v5, v6, 3, v5")
    k.e("v_add_u32 v5, s81, v5")
    k.e("v_lshrrev_b32 v36, 5, v0")
    k.e(f"v_mul_u32_u24 v36, {CONV_LDS}, v36")
    k.e("v_bfe_u32 v7, v0, 2, 3")
    k.e("v_lshl_add_u32 v36, v7, 7, v36")
    k.e("v_and_b32 v7, 3, v0")
    k.e("v_lshl_add_u32 v36, v7, 3, v36")
    k.e("s_lshl_b32 s59, s101, 5")
    k.e(f"s_add_u32 s59, s59, {RB0}")
    k.e("v_add_u32 v36, s59, v36")
    k.e("v_lshlrev_b32 v37, 4, v0")
    k.e("v_add_u32 v37, s81, v37")
    XR, YR, XF, SF = 16, 26, 40, 60
    k.e("s_waitcnt vmcnt(0)")
    for d in range(5): k.e(f"ds_read_b64 v[{XR+2*d}:{XR+2*d+1}], v5 offset:{XO + 32*d}")
    k.e("s_waitcnt lgkmcnt(0)")
    for d in range(5):
        for h in range(2): unpack(k, XF + 4*d + 2*h, XF + 4*d + 2*h + 1, XR + 2*d + h)
        if d < 3: k.e(f"ds_write_b128 v37, v[{XF+4*d}:{XF+4*d+3}] offset:{SO + 5120 + 1024*d}")
    k.e("s_setprio 0")
    k.e("s_cmp_eq_u32 s101, 0")
    k.e("s_cbranch_scc1 L_b_poller")
    lds_wait(k, "L_b_lw0", 2, 6, PROG, 60, sleep=flag("LSL", 16))
    lds_wait(k, "L_b_lwait", 2, 6, YOK, 60, sleep=2)
    k.e("s_setprio 3")
    k.e("s_branch L_b_go")
    k.e("L_b_poller:")
    k.e(f"s_mul_i32 s59, s9, {80 << YSH}")
    k.e(f"s_add_u32 s59, s59, {FY}")
    k.e(f"s_add_u32 s61, s59, {64 << YSH}")
    k.e(f"v_lshlrev_b32 v5, {YSH}, v0")
    k.e("v_add_u32 v7, s61, v5")
    k.e("s_lshr_b32 s10, s8, 3")
    k.e("s_lshl_b32 s10, s10, 1")
    k.e("s_and_b32 s11, s8, 1")
    k.e("s_add_u32 s10, s10, s11")
    k.e("s_and_b32 s11, s8, 6")
    k.e("s_lshl_b32 s11, s11, 2")
    k.e("s_add_u32 s10, s10, s11")
    k.e(f"s_add_u32 s10, s10, {224 + (FB >> 7)}")
    k.e("s_lshl_b32 s10, s10, 7")
    k.e("v_writelane_b32 v7, s10, 16")
    lds_wait(k, "L_b_aw", 2, 6, PROG, 60, sleep=flag("LSL2", 6))
    k.e("s_setprio 3")
    k.e("s_bfm_b64 exec, 17, 0")
    k.e(f"buffer_load_dwordx2 v[14:15], v7, s[{FSRD}:{FSRD+3}], 0 offen{SC1}")
    k.e("s_mov_b64 exec, -1")
    poll(k, "L_by", 12, 5, 59, 60, 64, sleep=8)
    poll(k, "L_by2", 14, 7, None, 60, 17, sleep=8, preloaded=True)
    k.e("v_mov_b32 v6, 1")
    k.e(f"ds_write_b32 v2, v6 offset:{YOK}")
    k.e("L_b_go:")
    stamp(k, 1, 3); stamp(k, 2, 3)
    k.e(f"buffer_load_dwordx2 v[12:13], v3, s[44:47], s57 offen{SC1}")
    for i in range(3):
        if i == 2:
            k.e("s_cmp_ge_u32 s101, 2")
            k.e("s_cbranch_scc1 L_b_noy")
        k.e(f"s_add_u32 m0, s81, {YO + 1024*i}")
        k.e(f"buffer_load_dwordx4 v4, s[68:71], s58 offen{SC1} lds")
        if i < 2: k.e(f"s_add_u32 s58, s58, {4*8*RS}")
    k.e("L_b_noy:")
    k.e("v_mov_b32 v3, 1")
    k.e("s_waitcnt vmcnt(2)")
    k.e("v_mul_f32 v38, 0xbfb8aa3b, v13")
    k.e("v_mul_f32 v39, 0xbfb8aa3b, v13")
    k.e(f"ds_write_b64 v37, v[38:39] offset:{SO + 10240}")
    for i in range(10):
        a, b = 80 + 2*i, 81 + 2*i
        k.e(f"v_sub_f32 v{a}, v{XF+2*i}, v12")
        k.e(f"v_sub_f32 v{b}, v{XF+2*i+1}, v12")
        k.e(f"v_cvt_pk_bf16_f32 v{b}, v{a}, v{b}")
        unpack(k, a, b, b)
        k.e(f"v_mul_f32 v{a}, v{a}, v13")
        k.e(f"v_mul_f32 v{b}, v{b}, v13")
        k.e(f"v_cvt_pk_bf16_f32 v{b}, v{a}, v{b}")
        unpack(k, a, b, b)
        k.e(f"v_mul_f32 v{a}, v{a}, v13")
        k.e(f"v_mul_f32 v{b}, v{b}, v13")
        if i == 4:
            k.e("s_waitcnt vmcnt(0)")
            k.e("s_mov_b64 exec, 1")
            k.e(f"ds_add_u32 v2, v3 offset:{YCNT}")
            k.e("s_mov_b64 exec, -1")
    k.e("L_b_cnt:")
    k.e(f"ds_read_b32 v3, v2 offset:{YCNT}")
    for d in range(5):
        k.e(f"ds_read_b64_tr_b16 v[{YR+2*d}:{YR+2*d+1}], v36 offset:{YO + 2*(d&1)*CONV_LDS + (d>>1)*1024}")
    k.e("s_waitcnt lgkmcnt(0)")
    k.e("v_readfirstlane_b32 s59, v3")
    k.e("s_cmp_lt_u32 s59, 4")
    k.e("s_cbranch_scc1 L_b_cnt")
    for d in range(5):
        for h in range(2):
            s = SF + 4*d + 2*h
            unpack(k, s, s+1, YR + 2*d + h)
            k.e(f"v_mul_f32 v{s}, v{s}, v{80+4*d+2*h}")
            k.e(f"v_mul_f32 v{s+1}, v{s+1}, v{81+4*d+2*h}")
        if d < 3: k.e(f"ds_write_b128 v37, v[{SF+4*d}:{SF+4*d+3}] offset:{SO + 1024*d}")
    b_tail(k)

def stats_rows(k, s_idx):
    k.e("s_and_b32 s10, s84, 6")
    k.e("s_lshl_b32 s10, s10, 8")
    k.e("s_lshr_b32 s11, s84, 3")
    k.e("s_lshl_b32 s11, s11, 7")
    k.e("s_add_u32 s10, s10, s11")
    k.e("s_and_b32 s11, s84, 1")
    k.e("s_lshl_b32 s11, s11, 6")
    k.e("s_add_u32 s10, s10, s11")
    k.e(f"s_lshl_b32 s11, s{s_idx}, 3")
    k.e("s_add_u32 s52, s10, s11")

def kernel():
    STS = flag("STS", 1); RLD = flag("RLD", 2); RST = flag("RST", 6)
    assert STS < RLD and RLD + (3 if flag('LKS', 99) > RLD else 4) <= RST <= 7
    k = Kern(NAME)
    stamp_begin(k)
    if flag("FIXT"): k.e("s_memrealtime s[96:97]")
    k.e("s_cmp_ge_u32 s2, 256")
    k.e("s_cbranch_scc1 L_end")
    load_ptrs(k)
    k.e("v_lshrrev_b32 v1, 6, v0")
    k.e("v_readfirstlane_b32 s3, v1")
    k.e("v_and_b32 v0, 63, v0")
    for i in range(4): k.e(f"v_mov_b32 v{4+i}, 0")
    k.e("v_and_b32 v1, 3, v0")
    k.e("v_lshlrev_b32 v1, 4, v1")
    k.e(f"v_add_u32 v1, {CNT}, v1")
    k.e("ds_write_b128 v1, v[4:7]")
    k.e("s_and_b32 s4, s2, 7")
    k.e("s_lshr_b32 s5, s2, 3")
    k.e("s_lshr_b32 s10, s4, 1")
    k.e("s_and_b32 s11, s4, 1")
    k.e("s_lshl_b32 s6, s10, 2")
    k.e("s_and_b32 s7, s5, 3")
    k.e("s_add_u32 s6, s6, s7")
    k.e("s_lshl_b32 s9, s11, 2")
    k.e("s_add_u32 s9, s9, s7")
    k.e("s_lshr_b32 s8, s5, 2")
    k.e("s_mul_i32 s7, s11, 7")
    k.e("s_add_u32 s7, s7, s8")
    k.e("s_lshl_b32 s10, s10, 3")
    k.e("s_add_u32 s8, s8, s10")
    if flag("MAP81"):
        k.e("s_lshl_b32 s6, s4, 1")
        k.e("s_and_b32 s7, s5, 1")
        k.e("s_add_u32 s6, s6, s7")
        k.e("s_lshr_b32 s7, s5, 1")
        k.e("s_lshl_b32 s8, s4, 2")
        k.e("s_lshr_b32 s9, s5, 3")
        k.e("s_add_u32 s8, s8, s9")
        k.e("s_and_b32 s9, s5, 7")
    k.e("s_and_b32 s101, s3, 3")
    k.e(f"s_mul_i32 s81, s101, {CONV_LDS}")
    k.e(f"s_add_u32 s81, s81, {RB0}")
    def flags_srd():
        srd(k, FSRD, P_WS, FL_BYTES, FL_OFF)
        k.e(f"s_load_dwordx2 s[{TAG}:{TAG+1}], s[{FSRD}:{FSRD+1}], {EP}")
    k.e("s_cmp_ge_u32 s2, 224")
    k.e("s_cbranch_scc1 L_free")
    k.e("s_cmp_lt_u32 s3, 4")
    k.e("s_cbranch_scc1 L_a")
    k.e(f"s_setprio {flag('PBL', 1)}")
    r = Rec(); k1.loader_setup(r, 6, 7, 101)
    for x in r.lines[8:]: k.e(x)
    k.e("s_waitcnt lgkmcnt(0)")
    for x in r.lines[:8]: k.e(x)
    vm = Vm(); last = {}
    def put(x):
        k.e(x)
        return vm.op() if is_vmem(x) else None
    def dma(st):
        for x in k1.dma(st):
            q = put(x)
            if q is not None: last[st] = q
    if flag("SB", 1): k.e("s_barrier")
    dma(0)
    flags_srd()
    k.e(f"v_mov_b32 v250, {CNT}")
    k.e("s_lshl_b32 s10, s101, 2")
    k.e(f"s_add_u32 s10, s10, {CNT + PB}")
    k.e("v_mov_b32 v248, s10")
    u_addr(k)
    rel1_addr(k)
    k.e("s_lshl_b32 s82, s2, 1")
    k.e("s_add_u32 s53, s2, 448")
    k.e("s_cmp_lt_u32 s2, 64")
    k.e("s_cselect_b32 s52, s53, 1000")
    k.e("s_cselect_b32 s53, s53, s82")
    watch_addr(k, 224, 82, 53)
    k.e("s_add_u32 s82, s82, s101")
    k.e("s_cmp_eq_u32 s101, 2")
    k.e("s_cselect_b32 s82, s52, s82")
    k.e("s_cmp_eq_u32 s101, 3")
    k.e("s_cselect_b32 s82, 1000, s82")
    k.e("s_lshl_b32 s83, s2, 7")
    k.e("s_waitcnt lgkmcnt(0)")
    make_tag(k)
    dma(1)
    PV = 252
    PUBS = STS + flag("PUBD", 3); st_idx = None
    k.e("s_cmp_eq_u32 s101, 2")
    k.e(f"s_cselect_b32 s83, s83, {OOB}")
    k.e("v_mov_b32 v249, 1")
    WPUB = RST + 2 if RST <= 5 else 99
    k.e("s_lshl_b32 s88, s2, 7")
    k.e(f"s_add_u32 s88, s88, {FB}")
    k.e("s_cmp_eq_u32 s101, 1")
    k.e(f"s_cselect_b32 s88, s88, {OOB}")
    for s in range(8):
        w = vm.wait(last[s])
        if s == PUBS: w = min(w, vm.wait(st_idx))
        if s == WPUB: w = min(w, vm.wait(rs_idx))
        k.e(f"s_waitcnt vmcnt({w})")
        k.e("s_barrier")
        if s == WPUB:
            publish(k, 88, 4); vm.op()
            stamp(k, 2, 1)
        if s == PUBS:
            publish(k, 83, 4); vm.op()
            stamp(k, 2, 0)
        if s == STS:
            for x in u_out():
                q = put(x)
                if q is not None: st_idx = q
        if s == RST:
            for x in rel1_reads(): k.e(x)
        LKS = flag("LKS", 99)
        if s < LKS: dma(s + 2)
        elif s == LKS:
            dma(s + 2); dma(s + 3)
        elif s + 3 < NSTAGE: dma(s + 3)
        if s == RST:
            for x in rel1_stores():
                q = put(x)
                if q is not None: rs_idx = q
        if s == RLD:
            for x in rel1_loads(): put(x)
    w8, w9 = vm.wait(last[8]), vm.wait(last[9]); wr = min(vm.wait(rs_idx), w9)
    W8P = flag('W8P', 0) and RST == 6
    if W8P: w8 = min(w8, vm.wait(rs_idx))
    k.e("s_cmp_lt_u32 s82, 640")
    k.e("s_cbranch_scc1 L_b_hasconv")
    k.e(f"s_waitcnt vmcnt({w8})")
    k.e("s_barrier")
    k.e("s_cmp_eq_u32 s101, 3")
    k.e("s_cbranch_scc1 L_b_w7")
    k.e(f"s_waitcnt vmcnt({w9})")
    for x in prog_write(248, 251, 1): k.e(x)
    k.e("s_waitcnt vmcnt(0)")
    for x in prog_write(248, 251, 2): k.e(x)
    k.e("s_branch L_b_aprep")
    k.e("L_b_w7:")
    pre = watch_pre(228, 224)
    k.e("s_setprio 3")
    if W8P:
        k.e("s_lshl_b32 s83, s2, 7")
        k.e(f"s_add_u32 s83, s83, {FB}")
        publish(k, 83, 4)
        stamp(k, 2, 1)
    k.e(pre[0])
    k.e(f"s_waitcnt vmcnt({w9 + 1 + W8P})")
    for x in prog_write(248, 251, 1): k.e(x)
    k.e("s_waitcnt vmcnt(0)")
    for x in prog_write(248, 251, 2): k.e(x)
    k.e(f"v_cmp_ne_u64 vcc, s[{TAG}:{TAG+1}], v[228:229]")
    k.e("s_cmp_eq_u64 vcc, 0")
    k.e("s_cbranch_scc0 L_b_n1")
    k.e(f"ds_write_b32 v250, v249 offset:{UOK}")
    k.e("L_b_n1:")
    if WPUB == 99 and not W8P:
        k.e("s_lshl_b32 s83, s2, 7")
        k.e(f"s_add_u32 s83, s83, {FB}")
        prog_wait(k, "L_b_rs", 250, PV, PB, 10, 2)
        publish(k, 83, 4)
        stamp(k, 2, 1)
    if AWP:
        poll(k, "L_bwa", 228, 225, None, 10, 64, preloaded=True)
        k.e(f"ds_write_b32 v250, v249 offset:{UOK}")
    else:
        for _ in range(flag("WSL", 0)): k.e("s_sleep 16")
        if flag("EVT", 12):
            poll(k, "L_bw0", 228, 225, None, 10, 64, preloaded=True)
            k.e(f"ds_write_b32 v250, v249 offset:{UOK}")
            prog_wait(k, "L_b_evt", 250, PV, PA, 10, flag("EVT", 12), sleep=2)
        k.e(pre[1])
        watch(k, "L_bw", 228, 224, flag("BSL", 4))
    stamp(k, 2, 2)
    k.e("s_cmp_lg_u32 s2, 0")
    k.e("s_cbranch_scc1 L_b_aprep")
    k.e("s_setprio 0")
    k.e("v_lshlrev_b32 v1, 7, v0")
    k.e(f"s_mov_b32 s83, {FB}")
    k.e("L_ep_next:")
    poll(k, "L_ep", 4, 1, 83, 10, 64, sleep=16)
    k.e("s_add_u32 s83, s83, 8192")
    k.e(f"s_cmp_lt_u32 s83, {FB + 32768}")
    k.e("s_cbranch_scc1 L_ep_next")
    k.e(f"s_mov_b32 s83, {EP}")
    publish(k, 83, 4)
    k.e("s_branch L_b_aprep")
    k.e("L_b_hasconv:")
    conv.conv2_setup(k, 82)
    k.e(f"s_waitcnt vmcnt({w8 + 2})")
    k.e("s_barrier")
    (conv.conv3_addr if C3 else conv.conv2_addr)(k, 81)
    k.e(f"s_waitcnt vmcnt({w9 + 2})")
    for x in prog_write(248, 251, 1): k.e(x)
    k.e(f"s_waitcnt vmcnt({wr + 2})")
    for x in prog_write(248, 251, 2): k.e(x)
    k.e("L_b_conv:")
    k.e(f"v_mov_b32 v250, {CNT}")
    (conv.conv3_dma if C3 else conv.conv2_dma)(k, 81)
    k.e(f"s_waitcnt vmcnt({8 if C3 else 16})")
    conv.conv2_fix(k)
    stamp(k, 1, 0)
    lds_wait(k, "L_b_uw", 250, 251, UOK, 80)
    conv.conv_setup_u(k, 82, 81, SC1)
    k.e("s_waitcnt vmcnt(0)")
    if flag("FEV"): k.e(f"ds_write_b32 v250, v250 offset:24")
    stamp(k, 1, 1); stamp(k, 3, 3)
    k.e(f"s_setprio {flag('PC', 1)}")
    (conv.conv3_main if C3 else conv.conv_main)(k, "f")
    stamp(k, 3, 0)
    k.e("s_setprio 3")
    conv.conv_epilogue(k, 82, SC1)
    stamp(k, 3, 1)
    k.e(f"s_lshl_b32 s10, s82, {YSH}")
    k.e(f"s_add_u32 s83, s10, {FY}")
    k.e("s_waitcnt vmcnt(0)")
    stamp(k, 3, 2)
    publish(k, 83, 4, nbytes=1 << YSH)
    stamp(k, 1, 2)
    k.e("L_b_aprep:")
    k.e("s_setprio 1")
    b_aprep(k)
    finish(k, 1)
    k.e("L_free:")
    for _ in range(flag("XFREE")): k.e("s_sleep 64")
    k.e("s_waitcnt lgkmcnt(0)")
    flags_srd()
    k.e("s_sub_u32 s84, s2, 224")
    k.e("s_mov_b32 s85, s3")
    k.e("s_cmp_eq_u32 s3, 7")
    k.e("s_cbranch_scc1 L_free_code" if flag("CPF", 1) else "s_cbranch_scc1 L_free_sync")
    k.e("s_cmp_lt_u32 s3, 4")
    k.e("s_cbranch_scc1 L_free_stats")
    k.e("s_setprio 2")
    k.e("s_mul_i32 s85, s84, 3")
    k.e("s_add_u32 s85, s85, s101")
    k.e("s_add_u32 s85, s85, 224")
    aux.emit_prep(k, 85, 81, SC1)
    make_tag(k)
    k.e("s_lshl_b32 s85, s85, 7")
    k.e("s_waitcnt vmcnt(0)")
    publish(k, 85, 4)
    k.e("s_barrier")
    k.e("s_branch L_free_b")
    if flag("CPF", 1):
        k.e("L_free_code:")
        k.e("s_setprio 3")
        k.e("s_getpc_b64 s[40:41]")
        k.e("L_pc:")
        k.e(f"s_sub_u32 s40, s40, L_pc-{NAME}")
        k.e("s_subb_u32 s41, s41, 0")
        k.e(f"s_mov_b32 s42, L_end-{NAME}")
        k.e("s_mov_b32 s43, 0x20000")
        k.e("v_lshlrev_b32 v1, 7, v0")
        k.e("s_mov_b32 s44, 0")
        for i in range(4):
            k.e(f"buffer_load_dword v{8+i}, v1, s[40:43], s44 offen")
            k.e("s_add_u32 s44, s44, 8192")
        k.e("s_setprio 0")
        if AGG:
            k.e("s_waitcnt lgkmcnt(0)")
            make_tag(k)
            k.e("s_cmp_ge_u32 s84, 10")
            k.e("s_cbranch_scc1 L_free_noagg")
            k.e("v_mul_u32_u24 v2, 1280, v0")
            k.e("s_lshl_b32 s85, s84, 7")
            for _ in range(flag("UAGS", 3)): k.e("s_sleep 40")
            k.e("s_setprio 3")
            poll(k, "L_agu", 4, 2, 85, 10, 32, sleep=8)
            k.e(f"s_add_u32 s85, s85, {FS}")
            publish(k, 85, 4)
            k.e("L_free_noagg:")
            k.e("s_barrier")
            k.e("s_branch L_free_b")
        k.e("s_branch L_free_sync")
    k.e("L_free_stats:")
    stats_rows(k, 85)
    aux.emit_stats(k, 52, SC1)
    k.e("s_add_u32 s85, s85, 4")
    k.e("s_cmp_lt_u32 s85, 8")
    k.e("s_cbranch_scc1 L_free_stats")
    k.e("L_free_sync:")
    k.e("s_waitcnt vmcnt(0) lgkmcnt(0)")
    k.e("s_barrier")
    make_tag(k)
    k.e("s_cmp_lt_u32 s3, 4")
    k.e("s_cbranch_scc1 L_free_a")
    k.e("L_free_b:")
    k.e("s_setprio 1")
    k.e("s_lshl_b32 s82, s84, 2")
    k.e("s_add_u32 s82, s82, s101")
    k.e("s_add_u32 s82, s82, 512")
    conv.conv2_setup(k, 82)
    (conv.conv3_addr if C3 else conv.conv2_addr)(k, 81)
    k.e("s_branch L_b_conv")
    k.e("L_free_a:")
    g2_offsets(k)
    srd(k, 44, P_WS, NB_W, W2_OFF)
    k.e("v_lshlrev_b32 v1, 4, v0")
    k.e("v_add_u32 v2, 4096, v1")
    if flag("XLEAD"):
        k.e("v_lshlrev_b32 v30, 7, v0")
        k.e("s_mov_b32 s10, s77")
        for i in range(9):
            k.e(f"buffer_load_dword v{32+i}, v30, s[44:47], s10 offen{SC1}")
            k.e("s_add_u32 s10, s10, 8192")
    if AGG:
        k.e("s_sub_u32 s85, s84, 10")
        k.e("s_cmp_lt_u32 s85, 4")
        k.e("s_cselect_b32 s10, s3, 0")
        k.e("s_cmp_lg_u32 s10, 1")
        k.e("s_cbranch_scc1 L_free_noaw")
        k.e("s_setprio 3")
        k.e("v_lshlrev_b32 v8, 9, v0")
        k.e("s_lshl_b32 s85, s85, 7")
        k.e(f"s_add_u32 s86, s85, {FB}")
        poll(k, "L_agw", 10, 8, 86, 10, 54, sleep=flag("WAGS", 4))
        k.e(f"s_add_u32 s85, s85, {FS + 1280}")
        publish(k, 85, 10)
        k.e("L_free_noaw:")
    k.e("s_cmp_lg_u32 s3, 0")
    k.e("s_cbranch_scc1 L_g2w")
    k.e("s_lshl_b32 s83, s2, 7")
    k.e(f"s_add_u32 s83, s83, {FB}")
    publish(k, 83, 4)
    k.e("s_lshl_b32 s62, s84, 2")
    k.e("s_add_u32 s62, s62, 512")
    watch_addr(k, 16, 62, 62)
    if flag("FEV"):
        k.e(watch_pre(20, 16)[0])
        watch(k, "L_fw", 20, 16, 4, lambda: lds_wait(k, "L_fev", 20, 24, 24, 10, sleep=4))
    elif flag("FLATE"):
        k.e(watch_pre(20, 16)[0])
        watch(k, "L_fw", 20, 16, flag("FSL", 4), lambda: [k.e("s_sleep 32") for _ in range(flag("FLATE"))])
    else:
        for x in watch_pre(20, 16): k.e(x)
        watch(k, "L_fw", 20, 16, flag("FSL", 4))
    k.e("s_branch L_g2w")
    k.e("L_a:")
    k.e("s_setprio 3")
    prep_addr(k)
    k.e("s_waitcnt lgkmcnt(0)")
    prep_loads(k)
    if flag("SB", 1): k.e("s_barrier")
    k.e(f"s_setprio {flag('PAL', 0)}")
    flags_srd()
    g2_offsets(k)
    g1_setup(k)
    k.e("s_waitcnt lgkmcnt(0)")
    make_tag(k)
    prep_compute(k)
    if flag("FIXG"):
        srd(k, 12, P_DBG, 256)
        k.e("s_not_b32 s98, s96")
        k.e("v_mov_b32 v240, s98")
        k.e("v_mov_b32 v241, 0")
        k.e("s_cmp_lg_u32 s3, 0")
        k.e("s_cbranch_scc1 L_nog")
        k.e("s_mov_b64 exec, 1")
        k.e("buffer_atomic_umax v240, v241, s[12:15], 0 offen sc1")
        k.e("s_mov_b64 exec, -1")
        k.e("L_nog:")
    g1_phase(k)
    g2_phase(k)
    if flag("FIXT"):
        if flag("FIXG"):
            srd(k, 12, P_DBG, 256)
            k.e("v_mov_b32 v241, 0")
            k.e("buffer_load_dword v240, v241, s[12:15], 0 offen sc1")
            k.e("s_waitcnt vmcnt(0)")
            k.e("v_readfirstlane_b32 s96, v240")
            k.e("s_not_b32 s96, s96")
        k.e("L_fix:")
        k.e("s_memrealtime s[98:99]")
        k.e("s_waitcnt lgkmcnt(0)")
        k.e("s_sub_u32 s98, s98, s96")
        k.e(f"s_cmp_lt_u32 s98, {flag('FIXT')}")
        k.e("s_cbranch_scc1 L_fix")
    finish(k, 0)
    k.e("L_end:")
    k.e("s_endpgm")
    return k

if __name__ == "__main__":
    import sys
    hdr = open("recurrent_scan__ssm_conv_h3__dense_activation_relu__prompt.s.ref").read().split("; Override")[0]
    k = kernel()
    out = hdr + f"; @launch grid=(256,1,1) block=(512,1,1) lds={LDS_BYTES}\n"
    out += '.amdgcn_target "amdgcn-amd-amdhsa--gfx950"\n.text\n' + k.body() + '.section .rodata,"a"\n' + k.desc()
    open(sys.argv[1], "w").write(out)
```

```python
from common import *

CP = 4160
UROFF = 4 * CP
CONV_LDS = UROFF + 4608

C_ACC = 8
C_FR = 40

def conv_setup(k, s_ch, s_lds, sc=""):
    srd(k, 60, P_SK, D * S * 2)
    srd(k, 64, P_WS, D * S * 2, UR_OFF)
    srd(k, 68, P_WS, D * S * 2, YT_OFF)
    k.e(f"s_lshl_b32 s72, s{s_ch}, 12")
    k.e(f"s_and_b32 s73, s{s_ch}, 0xfffe")
    k.e("s_lshl_b32 s73, s73, 1")
    k.e(f"s_load_dword s74, s[{P_D}:{P_D+1}], s73")
    k.e("v_lshlrev_b32 v1, 4, v0")
    for c in range(4):
        for sh in range(3):
            r = C_FR + 12*c + 4*sh
            k.e(f"buffer_load_dwordx4 v[{r}:{r+3}], v1, s[60:63], s72 offen offset:{1024*c + 4*sh}")
    k.e(f"s_add_u32 m0, s{s_lds}, {UROFF}")
    for c in range(4):
        k.e(f"buffer_load_dwordx4 v1, s[64:67], s72 offen offset:{1024*c}{sc} lds")

def conv_setup_hk(k, s_ch, s_lds):
    srd(k, 60, P_SK, D * S * 2)
    srd(k, 64, P_WS, NB_T, UR_OFF)
    srd(k, 68, P_WS, NB_T, YT_OFF)
    k.e(f"s_lshl_b32 s72, s{s_ch}, 12")
    k.e(f"s_and_b32 s73, s{s_ch}, 0xfffe")
    k.e("s_lshl_b32 s73, s73, 1")
    k.e(f"s_load_dword s74, s[{P_D}:{P_D+1}], s73")
    k.e("v_lshlrev_b32 v1, 4, v0")
    for c in range(4):
        for sh in range(3):
            r = C_FR + 12*c + 4*sh
            k.e(f"buffer_load_dwordx4 v[{r}:{r+3}], v1, s[60:63], s72 offen offset:{1024*c + 4*sh}")
    k.e(f"s_mul_i32 s72, s{s_ch}, {RS}")

def conv_setup_u(k, s_ch, s_lds, sc=""):
    k.e(f"s_add_u32 m0, s{s_lds}, {UROFF}")
    for c in range(4):
        k.e(f"buffer_load_dwordx4 v1, s[64:67], s72 offen offset:{1024*c}{sc} lds")

def conv_stage(k, s_ch, s_lds, younger, hook=None):
    k.e(f"v_add_u32 v2, s{s_lds}, v1")
    for i in range(4): k.e(f"v_mov_b32 v{C_ACC+i}, 0")
    k.e(f"v_add_u32 v3, {UROFF + 4096}, v2")
    k.e("v_bfe_u32 v4, v0, 1, 2")
    k.e(f"v_mul_u32_u24 v4, {CP}, v4")
    k.e("v_and_b32 v5, 1, v0")
    k.e("v_lshl_add_u32 v4, v5, 4, v4")
    k.e(f"v_add_u32 v4, s{s_lds}, v4")
    k.e("v_cmp_gt_u32 vcc, 32, v0")
    k.e("v_cndmask_b32 v3, v4, v3, vcc")
    k.e(f"ds_write_b128 v3, v[{C_ACC}:{C_ACC+3}]")
    OD = C_FR + 48
    for c in range(4):
        k.e(f"s_waitcnt vmcnt({younger + 4 + 3*(3-c)})")
        d, e_, f = C_FR + 12*c, C_FR + 12*c + 4, C_FR + 12*c + 8
        o1, o3 = OD + 8*c, OD + 8*c + 4
        for i in range(4):
            k.e(f"v_alignbit_b32 v{o1+i}, v{e_+i}, v{d+i}, 16")
            k.e(f"v_alignbit_b32 v{o3+i}, v{f+i}, v{e_+i}, 16")
        for s, r in enumerate((d, o1, e_, o3)):
            k.e(f"ds_write_b128 v2, v[{r}:{r+3}] offset:{s*CP + 32 + 1024*c}")
        if c == 0:
            k.e(f"v_lshlrev_b32 v5, 16, v{d}")
            k.e("v_cmp_eq_u32 vcc, 0, v0")
            k.e("s_and_saveexec_b64 s[76:77], vcc")
            k.e(f"ds_write_b32 v2, v5 offset:{1*CP + 28}")
            k.e(f"ds_write_b32 v2, v{d} offset:{2*CP + 28}")
            k.e(f"ds_write_b32 v2, v5 offset:{3*CP + 24}")
            k.e(f"ds_write_b32 v2, v{o1} offset:{3*CP + 28}")
            k.e("s_mov_b64 exec, s[76:77]")
            if hook: hook()
    k.e("v_and_b32 v6, 15, v0")
    k.e("v_lshrrev_b32 v7, 4, v0")
    k.e("v_add_u32 v3, 1, v6")
    k.e("v_and_b32 v4, 3, v3")
    k.e(f"v_mul_u32_u24 v4, {CP}, v4")
    k.e("v_and_b32 v3, 0x1c, v3")
    k.e("v_lshl_add_u32 v3, v3, 1, v4")
    k.e("v_lshl_add_u32 v3, v7, 4, v3")
    k.e(f"v_add_u32 v3, s{s_lds}, v3")
    k.e("v_lshlrev_b32 v6, 5, v6")
    k.e(f"s_add_u32 s75, s{s_lds}, {UROFF + 480}")
    k.e("v_sub_u32 v4, s75, v6")
    k.e("v_lshlrev_b32 v5, 3, v7")
    k.e("v_sub_u32 v5, v4, v5")
    k.e("v_add_u32 v5, 24, v5")
    k.e("v_lshl_add_u32 v4, v7, 4, v4")
    k.e("v_and_b32 v2, 1, v7")
    k.e("v_lshl_add_u32 v6, v2, 9, v6")
    k.e("v_lshrrev_b32 v7, 1, v7")
    k.e("v_lshl_add_u32 v6, v7, 4, v6")
    for i in range(32): k.e(f"v_mov_b32 v{C_ACC+i}, 0")
    k.e(f"s_waitcnt vmcnt({younger}) lgkmcnt(0)")

def conv_reads(buf, roff):
    fa = C_FR + 64*buf; fb = fa + 32
    L = []
    for i in range(8):
        L.append(f"ds_read_b64 v[{fa+4*i}:{fa+4*i+1}], v3 offset:{512*i + roff}")
        L.append(f"ds_read_b64 v[{fa+4*i+2}:{fa+4*i+3}], v3 offset:{512*i + roff + 8}")
        L.append(f"ds_read_b128 v[{fb+4*i}:{fb+4*i+3}], v4 offset:{512*(7-i) + roff}")
    return L

def conv_mfmas(buf):
    fa = C_FR + 64*buf; fb = fa + 32
    L = []
    for a in range(8):
        for c in range(a, 8):
            y = C_ACC + 4*c
            L.append(f"v_mfma_f32_16x16x32_bf16 v[{y}:{y+3}], v[{fa+4*a}:{fa+4*a+3}], v[{fb+4*(c-a)}:{fb+4*(c-a)+3}], v[{y}:{y+3}]")
    return L

def interleave(main, fill, start=0):
    out = []; fi = 0
    for i, x in enumerate(main):
        out.append(x)
        if i >= start and fi < len(fill):
            out.append(fill[fi]); fi += 1
    out += fill[fi:]
    return out

def conv_main(k, tag):
    for x in conv_reads(0, 0): k.e(x)
    k.e("s_mov_b32 s75, 0")
    if flag("CAL", -1) >= 0:
        k.e(".p2align 6")
        for _ in range(flag("CAL")): k.e("s_nop 0")
    k.e(f"L_conv_loop_{tag}:")
    k.e("s_waitcnt lgkmcnt(0)")
    for x in interleave(conv_mfmas(0), conv_reads(1, 64)): k.e(x)
    k.e("s_waitcnt lgkmcnt(0)")
    for x in interleave(conv_mfmas(1), conv_reads(0, 128)): k.e(x)
    k.e("v_add_u32 v3, 128, v3")
    k.e("v_add_u32 v4, 128, v4")
    k.e("s_add_u32 s75, s75, 1")
    k.e("s_cmp_lt_u32 s75, 4")
    k.e(f"s_cbranch_scc1 L_conv_loop_{tag}")

def conv_epilogue(k, s_ch, sc=""):
    U = C_FR + 64
    T = C_FR + 80
    O = C_FR + 96
    k.e("s_waitcnt lgkmcnt(0)")
    for c in range(8):
        k.e(f"ds_read_b64 v[{U+2*c}:{U+2*c+1}], v5 offset:{512*(7-c)}")
    k.e(f"s_bitcmp1_b32 s{s_ch}, 0")
    k.e("s_lshl_b32 s73, s74, 16")
    k.e("s_and_b32 s74, s74, 0xffff0000")
    k.e(f"s_bitcmp1_b32 s{s_ch}, 0")
    k.e("s_cselect_b32 s74, s74, s73")
    for c in range(8):
        k.e(f"s_waitcnt lgkmcnt({7-c})")
        y = C_ACC + 4*c
        t = T + 4*(c & 1)
        k.e(f"v_and_b32 v{t}, 0xffff0000, v{U+2*c+1}")
        k.e(f"v_lshlrev_b32 v{t+1}, 16, v{U+2*c+1}")
        k.e(f"v_and_b32 v{t+2}, 0xffff0000, v{U+2*c}")
        k.e(f"v_lshlrev_b32 v{t+3}, 16, v{U+2*c}")
        for r in range(4):
            k.e(f"v_fmac_f32 v{y+r}, s74, v{t+r}")
        o = O + 4*(c >> 1) + 2*(c & 1)
        k.e(f"v_cvt_pk_bf16_f32 v{o}, v{y}, v{y+1}")
        k.e(f"v_cvt_pk_bf16_f32 v{o+1}, v{y+2}, v{y+3}")
        if c & 1:
            o = O + 4*(c >> 1)
            k.e(f"v_permlane16_swap_b32 v{o}, v{o+2}")
            k.e(f"v_permlane16_swap_b32 v{o+1}, v{o+3}")
            k.e(f"buffer_store_dwordx4 v[{o}:{o+3}], v6, s[68:71], s72 offen offset:{512*(c-1)}{sc}")

def conv_kernel():
    k = Kern("conv_kernel")
    stamp_begin(k)
    k.e("s_cmp_ge_u32 s2, 160")
    k.e("s_cbranch_scc1 L_conv_end")
    load_ptrs(k)
    k.e("v_lshrrev_b32 v1, 6, v0")
    k.e("v_readfirstlane_b32 s3, v1")
    k.e("v_and_b32 v0, 63, v0")
    k.e("s_lshl_b32 s4, s2, 2")
    k.e("s_add_u32 s4, s4, s3")
    k.e(f"s_mul_i32 s5, s3, {CONV_LDS}")
    k.e("s_waitcnt lgkmcnt(0)")
    conv_setup(k, 4, 5)
    conv_stage(k, 4, 5, 0)
    stamp_mid(k, 0)
    conv_main(k, "a")
    stamp_mid(k, 1)
    conv_epilogue(k, 4)
    finish(k, 2)
    k.e("L_conv_end:")
    k.e("s_endpgm")
    return k


def conv2_setup(k, s_ch):
    k.e(f"s_lshl_b32 s72, s{s_ch}, 12")
    k.e(f"s_add_u32 s60, s{P_SK}, s72")
    k.e(f"s_addc_u32 s61, s{P_SK+1}, 0")
    k.e(f"s_sub_u32 s62, {D * S * 2}, s72")
    k.e("s_mov_b32 s63, 0x20000")
    srd(k, 64, P_WS, NB_T, UR_OFF)
    srd(k, 68, P_WS, NB_T, YT_OFF)
    k.e(f"s_and_b32 s73, s{s_ch}, 0xfffe")
    k.e("s_lshl_b32 s73, s73, 1")
    k.e(f"s_load_dword s74, s[{P_D}:{P_D+1}], s73")
    k.e("v_lshlrev_b32 v1, 4, v0")
    k.e("v_and_b32 v2, 31, v0")
    k.e("v_lshlrev_b32 v2, 7, v2")
    k.e("buffer_load_dword v41, v2, s[60:63], 0 offen")
    k.e("v_and_b32 v6, 15, v0")
    k.e("v_lshrrev_b32 v7, 4, v0")
    k.e("v_add_u32 v2, v6, v7")
    k.e("v_lshlrev_b32 v2, 1, v2")
    k.e("v_subrev_u32 v2, 32, v2")
    k.e("buffer_load_ushort v40, v2, s[60:63], 0 offen")
    k.e(f"s_mul_i32 s72, s{s_ch}, {RS}")

def conv2_addr(k, s_lds):
    k.e(f"v_mul_u32_u24 v42, {CP}, v7")
    k.e("v_lshl_add_u32 v42, v6, 1, v42")
    k.e(f"v_add_u32 v42, s{s_lds}, v42")
    k.e("v_lshlrev_b32 v43, 3, v0")
    k.e(f"v_add_u32 v43, s{s_lds}, v43")
    k.e("v_add_u32 v3, 1, v6")
    k.e("v_and_b32 v4, 3, v3")
    k.e(f"v_mul_u32_u24 v4, {CP}, v4")
    k.e("v_and_b32 v3, 0x1c, v3")
    k.e("v_lshl_add_u32 v3, v3, 1, v4")
    k.e("v_lshl_add_u32 v3, v7, 4, v3")
    k.e(f"v_add_u32 v3, s{s_lds}, v3")
    k.e("v_lshlrev_b32 v6, 5, v6")
    k.e(f"s_add_u32 s75, s{s_lds}, {UROFF + 480}")
    k.e("v_sub_u32 v4, s75, v6")
    k.e("v_lshlrev_b32 v5, 3, v7")
    k.e("v_sub_u32 v5, v4, v5")
    k.e("v_add_u32 v5, 24, v5")
    k.e("v_lshl_add_u32 v4, v7, 4, v4")
    k.e("v_and_b32 v2, 1, v7")
    k.e("v_lshl_add_u32 v6, v2, 9, v6")
    k.e("v_lshrrev_b32 v7, 1, v7")
    k.e("v_lshl_add_u32 v6, v7, 4, v6")
    for i in range(32): k.e(f"v_mov_b32 v{C_ACC+i}, 0")

def conv2_dma(k, s_lds):
    for s in (0, 2, 1, 3):
        k.e(f"s_add_u32 m0, s{s_lds}, {s*CP + 32}")
        k.e(f"s_mov_b32 s75, {2*s}")
        for c in range(4):
            k.e(f"buffer_load_dwordx4 v1, s[60:63], s75 offen offset:{1024*c} lds")

def conv2_fix(k):
    k.e("ds_write_b16 v42, v40")
    k.e(f"ds_write_b64 v43, v[{C_ACC}:{C_ACC+1}] offset:{UROFF + 4096}")


def conv3_addr(k, s_lds):
    k.e(f"v_mul_u32_u24 v42, {CP}, v7")
    k.e("v_lshl_add_u32 v42, v6, 1, v42")
    k.e(f"v_add_u32 v42, s{s_lds}, v42")
    k.e("v_lshlrev_b32 v43, 3, v0")
    k.e(f"v_add_u32 v43, s{s_lds}, v43")
    k.e("v_add_u32 v3, 1, v6")
    k.e("v_and_b32 v4, 1, v3")
    k.e(f"v_mul_u32_u24 v4, {CP}, v4")
    k.e("v_and_b32 v3, 0x1e, v3")
    k.e("v_lshl_add_u32 v3, v3, 1, v4")
    k.e("v_lshl_add_u32 v3, v7, 4, v3")
    k.e(f"v_add_u32 v168, s{s_lds}, v3")
    for i in range(1, 4): k.e(f"v_add_u32 v{168+i}, {1024*i}, v168")
    k.e("v_lshlrev_b32 v6, 5, v6")
    k.e(f"s_add_u32 s75, s{s_lds}, {UROFF + 480}")
    k.e("v_sub_u32 v4, s75, v6")
    k.e("v_lshlrev_b32 v5, 3, v7")
    k.e("v_sub_u32 v5, v4, v5")
    k.e("v_add_u32 v5, 24, v5")
    k.e("v_lshl_add_u32 v4, v7, 4, v4")
    k.e("v_and_b32 v2, 1, v7")
    k.e("v_lshl_add_u32 v6, v2, 9, v6")
    k.e("v_lshrrev_b32 v7, 1, v7")
    k.e("v_lshl_add_u32 v6, v7, 4, v6")
    for i in range(32): k.e(f"v_mov_b32 v{C_ACC+i}, 0")

def conv3_dma(k, s_lds):
    for s in (0, 1):
        k.e(f"s_add_u32 m0, s{s_lds}, {s*CP + 32}")
        k.e(f"s_mov_b32 s75, {2*s}")
        for c in range(4):
            k.e(f"buffer_load_dwordx4 v1, s[60:63], s75 offen offset:{1024*c} lds")

def conv3_reads(buf, roff):
    fa = C_FR + 64*buf; fb = fa + 32
    L = []
    for i in range(8):
        o = (512*(i & 1) + roff) // 4
        L.append(f"ds_read2_b32 v[{fa+4*i}:{fa+4*i+1}], v{168+(i>>1)} offset0:{o} offset1:{o+1}")
        L.append(f"ds_read2_b32 v[{fa+4*i+2}:{fa+4*i+3}], v{168+(i>>1)} offset0:{o+2} offset1:{o+3}")
        L.append(f"ds_read_b128 v[{fb+4*i}:{fb+4*i+3}], v4 offset:{512*(7-i) + roff}")
    return L

def conv3_main(k, tag):
    for x in conv3_reads(0, 0): k.e(x)
    k.e("s_mov_b32 s75, 0")
    k.e(f"L_conv_loop_{tag}:")
    k.e("s_waitcnt lgkmcnt(0)")
    for x in interleave(conv_mfmas(0), conv3_reads(1, 64)): k.e(x)
    k.e("s_waitcnt lgkmcnt(0)")
    adv = [f"v_add_u32 v{r}, 128, v{r}" for r in (168, 169, 170, 171, 4)] + ["s_add_u32 s75, s75, 1", "s_cmp_lt_u32 s75, 4"]
    if flag("FEV", 1) == 2: adv.append("ds_write_b32 v250, v250 offset:24")
    for x in interleave(conv_mfmas(1), conv3_reads(0, 128) + adv): k.e(x)
    k.e(f"s_cbranch_scc1 L_conv_loop_{tag}")


def conv4_early(k, s_ch, srd0=48):
    k.e(f"s_lshl_b32 s10, s{s_ch}, 12")
    k.e(f"s_add_u32 s{srd0}, s{P_SK}, s10")
    k.e(f"s_addc_u32 s{srd0+1}, s{P_SK+1}, 0")
    k.e(f"s_sub_u32 s{srd0+2}, {D * S * 2}, s10")
    k.e(f"s_mov_b32 s{srd0+3}, 0x20000")
    k.e("v_and_b32 v2, 31, v0")
    k.e("v_lshlrev_b32 v2, 7, v2")
    k.e(f"buffer_load_dword v41, v2, s[{srd0}:{srd0+3}], 0 offen")
    k.e("v_and_b32 v6, 15, v0")
    k.e("v_lshrrev_b32 v7, 4, v0")
    k.e("v_add_u32 v2, v6, v7")
    k.e("v_lshlrev_b32 v2, 1, v2")
    k.e("v_subrev_u32 v2, 32, v2")
    k.e(f"buffer_load_ushort v40, v2, s[{srd0}:{srd0+3}], 0 offen")

def conv4_late(k, s_ch, srd0=48):
    for i in range(3): k.e(f"s_mov_b32 s{60+i}, s{srd0+i}")
    k.e("s_mov_b32 s63, 0x20000")
    srd(k, 64, P_WS, NB_T, UR_OFF)
    srd(k, 68, P_WS, NB_T, YT_OFF)
    k.e(f"s_and_b32 s73, s{s_ch}, 0xfffe")
    k.e("s_lshl_b32 s73, s73, 1")
    k.e(f"s_load_dword s74, s[{P_D}:{P_D+1}], s73")
    k.e("v_lshlrev_b32 v1, 4, v0")
    k.e("v_and_b32 v6, 15, v0")
    k.e("v_lshrrev_b32 v7, 4, v0")
    k.e(f"s_mul_i32 s72, s{s_ch}, {RS}")
```

```python
from common import *
import aux, conv, k1
from conv import interleave, CONV_LDS
from k1 import Vm, is_vmem, SLOT, WPART, NSTAGE, Rec

NAME = "recurrent_scan__ssm_conv_h3__dense_activation_relu__prompt_kernel"
SC1 = " sc1"
OOB = 0x40000000
RB0 = 65536
EA = 131072
TOP = RB0 + 4 * CONV_LDS
RLB = 135168
CNT = 163776
LDS_BYTES = 163840
YCNT, YOK, AUXOK, UOK, PROG, PA, PB = 0, 4, 12, 16, 20, 32, 48
XO, YO, SO = 0, 3072, 6144
HSH = 7; YSH = flag("YSH", 3)
FA, EP, FB, FH = 0, 40960, 45056, 77824
FY = FH + (1024 << 7)
FS = FY + (640 << 7)
FL_BYTES = FS + (16 << 7)
AGG = flag('AGG', 0)
TAG, FSRD = 90, 92
SPIN_MAX = 0x20000
NSTEP, NH, NW = 14, 4, 5
G_ACC, G_H = 8, 88
W_SL = [176, 196, 216, 236, 156]
C3 = flag("C3", 1)
EWI = flag("EWI", 0)
EPI = flag("EPI", 1)
AWP = flag("AWP", 0)
ST = flag("ST", 0)
def stamp(k, setno, i):
    if ST == setno: stamp_mid(k, i)
def cstamp(k, name, i):
    if STAMP and os.environ.get("CK", "").split(",")[i:i+1] == [name]:
        stamp_mid(k, 2*i)
        k.e("s_memtime s[10:11]")
        k.e("s_waitcnt lgkmcnt(0)")
        k.e(f"s_mov_b32 s{13+2*i}, s10")
def cs(k, name):
    cstamp(k, name, 0); cstamp(k, name, 1)

def make_tag(k):
    k.e(f"s_mul_i32 s{TAG}, s{TAG}, 1664525")
    k.e(f"s_add_u32 s{TAG}, s{TAG}, 1013904223")
    k.e(f"s_mul_i32 s{TAG+1}, s{TAG+1}, 22695477")
    k.e(f"s_add_u32 s{TAG+1}, s{TAG+1}, 1")

HSC = '' if flag('HPLAIN') else SC1
def publish(k, s_off, va, SC1=SC1, nbytes=128):
    if not flag("FULLF", 1): nbytes = 8
    k.e(f"v_mov_b32 v{va}, s{TAG}")
    k.e(f"v_mov_b32 v{va+1}, s{TAG+1}")
    if nbytes == 8:
        k.e(f"v_mov_b32 v{va+2}, 0")
        k.e("s_mov_b64 exec, 1")
    else:
        k.e(f"v_lshlrev_b32 v{va+2}, 3, v0")
        k.e(f"s_bfm_b64 exec, {nbytes // 8}, 0")
    k.e(f"buffer_store_dwordx2 v[{va}:{va+1}], v{va+2}, s[{FSRD}:{FSRD+3}], s{s_off} offen{SC1}")
    k.e("s_mov_b64 exec, -1")

def poll(k, lbl, vd, voff, s_off, s_cnt, nlanes, sleep=4, preloaded=False):
    so = f"s{s_off}" if s_off is not None else "0"
    k.e(f"s_mov_b32 s{s_cnt}, 0")
    if nlanes < 64: k.e(f"s_bfm_b64 exec, {nlanes}, 0")
    if preloaded: k.e(f"s_branch {lbl}_chk")
    k.e(f"{lbl}:")
    k.e(f"buffer_load_dwordx2 v[{vd}:{vd+1}], v{voff}, s[{FSRD}:{FSRD+3}], {so} offen{SC1}")
    k.e("s_waitcnt vmcnt(0)")
    k.e(f"{lbl}_chk:")
    k.e(f"v_cmp_ne_u64 vcc, s[{TAG}:{TAG+1}], v[{vd}:{vd+1}]")
    k.e("s_and_b64 exec, exec, vcc")
    k.e(f"s_cbranch_scc0 {lbl}_ok")
    k.e(f"s_sleep {sleep}")
    k.e(f"s_add_u32 s{s_cnt}, s{s_cnt}, 1")
    k.e(f"s_cmp_lt_u32 s{s_cnt}, {SPIN_MAX:#x}")
    k.e(f"s_cbranch_scc1 {lbl}")
    k.e(f"{lbl}_ok:")
    k.e("s_mov_b64 exec, -1")

def lds_wait(k, lbl, vaddr, vtmp, off, s_tmp, sleep=2):
    k.e(f"{lbl}:")
    k.e(f"ds_read_b32 v{vtmp}, v{vaddr} offset:{off}")
    k.e("s_waitcnt lgkmcnt(0)")
    k.e(f"v_readfirstlane_b32 s{s_tmp}, v{vtmp}")
    k.e(f"s_cmp_lg_u32 s{s_tmp}, 0")
    k.e(f"s_cbranch_scc1 {lbl}_ok")
    k.e(f"s_sleep {sleep}")
    k.e(f"s_branch {lbl}")
    k.e(f"{lbl}_ok:")

def prog_write(vaddr, vtmp, val):
    return [f"v_mov_b32 v{vtmp}, {val}", f"s_mov_b64 exec, 1\nds_write_b32 v{vaddr}, v{vtmp}\ns_mov_b64 exec, -1"]
def prog_min(vd, s_tmp):
    return [f"v_min3_u32 v{vd}, v{vd}, v{vd+1}, v{vd+2}", f"v_min_u32 v{vd}, v{vd}, v{vd+3}", f"v_readfirstlane_b32 s{s_tmp}, v{vd}"]
def prog_spin(k, lbl, vcnt, vd, off, s_tmp, need, sleep=0):
    k.e(f"s_cmp_ge_u32 s{s_tmp}, {need}")
    k.e(f"s_cbranch_scc1 {lbl}_ok")
    k.e(f"{lbl}:")
    if sleep: k.e(f"s_sleep {sleep}")
    k.e(f"ds_read_b128 v[{vd}:{vd+3}], v{vcnt} offset:{off}")
    k.e("s_waitcnt lgkmcnt(0)")
    for x in prog_min(vd, s_tmp): k.e(x)
    k.e(f"s_cmp_lt_u32 s{s_tmp}, {need}")
    k.e(f"s_cbranch_scc1 {lbl}")
    k.e(f"{lbl}_ok:")
def prog_wait(k, lbl, vcnt, vd, off, s_tmp, need, sleep=1):
    k.e(f"s_mov_b32 s{s_tmp}, 0")
    prog_spin(k, lbl, vcnt, vd, off, s_tmp, need, sleep)

def watch_addr(k, va, s_cha, s_chb):
    if AGG:
        k.e("s_lshr_b32 s10, s9, 1")
        k.e(f"s_add_u32 s10, s10, {10 + (FS >> 7)}")
        k.e("s_lshl_b32 s10, s10, 7")
        k.e(f"v_mov_b32 v{va}, s10")
        k.e(f"s_lshr_b32 s10, s{s_cha}, 6")
        k.e(f"s_lshr_b32 s11, s{s_chb}, 6")
        k.e(f"v_mov_b32 v{va+1}, s11")
        k.e(f"v_writelane_b32 v{va+1}, s10, 0")
        k.e(f"v_lshlrev_b32 v{va+1}, 7, v{va+1}")
        k.e(f"v_add_u32 v{va+1}, {FS}, v{va+1}")
        return
    k.e("s_lshr_b32 s10, s9, 1")
    k.e(f"s_add_u32 s10, s10, {FB >> 7}")
    k.e(f"v_lshl_add_u32 v{va}, v0, 2, s10")
    k.e(f"v_mov_b32 v{va+1}, s10")
    k.e("v_cmp_gt_u32 vcc, 54, v0")
    k.e(f"v_cndmask_b32 v{va}, v{va+1}, v{va}, vcc")
    k.e(f"v_lshlrev_b32 v{va}, 7, v{va}")
    k.e(f"s_lshr_b32 s10, s{s_cha}, 6")
    k.e(f"s_lshr_b32 s11, s{s_chb}, 6")
    k.e(f"v_mov_b32 v{va+1}, s11")
    k.e(f"v_mov_b32 v{va+2}, s10")
    k.e("v_cmp_gt_u32 vcc, 32, v0")
    k.e(f"v_cndmask_b32 v{va+1}, v{va+1}, v{va+2}, vcc")
    k.e(f"v_and_b32 v{va+2}, 31, v0")
    k.e(f"v_mad_u32_u24 v{va+1}, v{va+2}, 10, v{va+1}")
    k.e(f"v_lshlrev_b32 v{va+1}, 7, v{va+1}")
def watch_pre(vd, va):
    return [f"buffer_load_dwordx2 v[{vd}:{vd+1}], v{va+1}, s[{FSRD}:{FSRD+3}], 0 offen{SC1}",
            f"buffer_load_dwordx2 v[{vd+2}:{vd+3}], v{va}, s[{FSRD}:{FSRD+3}], 0 offen{SC1}"]
def watch(k, lbl, vd, va, sl=4, late=None):
    k.e("s_waitcnt vmcnt(0)")
    poll(k, lbl + "a", vd, va + 1, None, 10, 64, sleep=sl, preloaded=True)
    k.e(f"v_mov_b32 v{vd}, {CNT}")
    k.e(f"v_mov_b32 v{vd+1}, 1")
    k.e(f"ds_write_b32 v{vd}, v{vd+1} offset:{UOK}")
    if late: late()
    poll(k, lbl + "b", vd + 2, va, None, 10, 64, sleep=sl, preloaded=not late)
    k.e(f"ds_write_b32 v{vd}, v{vd+1} offset:{AUXOK}")

def xo_offsets(k, vb, t1, t2):
    k.e("s_lshl_b32 s53, s8, 2")
    k.e("s_add_u32 s53, s53, s101")
    k.e("s_mul_i32 s54, s53, 20480")
    k.e("s_mul_i32 s55, s9, 160")
    k.e("s_add_u32 s54, s54, s55")
    for i in range(3):
        k.e(f"v_add_u32 v{t1}, {64*i}, v0")
        k.e(f"v_mul_u32_u24 v{t2}, 6554, v{t1}")
        k.e(f"v_lshrrev_b32 v{t2}, 16, v{t2}")
        k.e(f"v_mul_u32_u24 v{t2}, 1120, v{t2}")
        k.e(f"v_lshl_add_u32 v{vb+i}, v{t1}, 4, v{t2}")
    k.e(f"v_mov_b32 v{t2}, {OOB}")
    k.e("v_cmp_gt_u32 vcc, 32, v0")
    k.e(f"v_cndmask_b32 v{vb+2}, v{t2}, v{vb+2}, vcc")

def unit_ids(k, s_rb, s_cgp):
    k.e(f"s_mul_i32 s{s_rb}, s2, 6554")
    k.e(f"s_lshr_b32 s{s_rb}, s{s_rb}, 16")
    k.e(f"s_mul_i32 s{s_cgp}, s{s_rb}, 10")
    k.e(f"s_sub_u32 s{s_cgp}, s2, s{s_cgp}")
def prep_addr(k):
    unit_ids(k, 52, 53)
    k.e("s_lshl_b32 s54, s52, 2")
    k.e("s_add_u32 s54, s54, s101")
    k.e("s_mul_i32 s54, s54, 20480")
    k.e("s_lshl_b32 s55, s53, 7")
    k.e("s_add_u32 s54, s54, s55")
    k.e("v_lshrrev_b32 v1, 3, v0")
    k.e("v_mul_u32_u24 v2, 1280, v1")
    k.e("v_and_b32 v3, 7, v0")
    k.e("v_lshl_add_u32 v2, v3, 4, v2")
    if flag("XNOPL"): k.e(f"s_mov_b32 s54, {OOB}")
    k.e("v_add_u32 v200, s54, v2")
    k.e("v_subrev_u32 v201, 3840, v200")
    k.e(f"v_add_u32 v202, {10240 - 3840 - 1024}, v200")
    k.e(f"v_add_u32 v203, {20480 - 3840 - 2048}, v200")
    k.e(f"v_mov_b32 v6, {OOB}")
    k.e("v_cmp_gt_u32 vcc, 24, v0")
    k.e("v_cndmask_b32 v203, v6, v203, vcc")
    k.e(f"v_add_u32 v204, {10240 - 1024}, v200")
    k.e("s_mul_i32 s56, s101, 5120")
    k.e(f"s_add_u32 s56, s56, {EA}")
    k.e("v_and_b32 v7, 31, v0")
    k.e("s_lshl_b32 s55, s53, 9")
    k.e("v_lshl_add_u32 v205, v7, 4, s55")
def prep_loads(k):
    srd(k, 40, P_K, NB_X)
    k.e("s_mov_b32 m0, s56")
    k.e("buffer_load_dwordx4 v201, s[40:43], 0 offen lds")
    k.e("buffer_load_dwordx4 v202, s[40:43], 0 offen offset:1024 lds")
    k.e("buffer_load_dwordx4 v203, s[40:43], 0 offen offset:2048 lds")
    srd(k, 44, P_V, NB_X)
    k.e("s_add_u32 m0, s56, 3072")
    k.e("buffer_load_dwordx4 v200, s[44:47], 0 offen lds")
    k.e("buffer_load_dwordx4 v204, s[44:47], 0 offen offset:1024 lds")
    srd(k, 48, P_SH, D * 8)
    k.e("buffer_load_dwordx4 v[212:215], v205, s[48:51], 0 offen")
    k.e("v_lshrrev_b32 v9, 5, v0")
    k.e("v_lshlrev_b32 v10, 10, v9")
    k.e("v_lshl_add_u32 v10, v7, 2, v10")
    k.e("v_add_u32 v209, s56, v10")
    k.e("v_sub_u32 v11, 1, v9")
    k.e("v_lshlrev_b32 v11, 4, v11")
    k.e("v_lshl_add_u32 v11, v7, 6, v11")
    k.e("v_add_u32 v210, s56, v11")
def prep_compute(k):
    KR, VR, TP, KU, VU, KV, OUT = 112, 124, 132, 140, 216, 180, 184
    k.e("s_waitcnt vmcnt(0)")
    for j in range(11): k.e(f"ds_read_b32 v{KR+j}, v209 offset:{128*j}")
    for j in range(8): k.e(f"ds_read_b32 v{VR+j}, v209 offset:{3072 + 128*j}")
    for c in range(2):
        unpack(k, TP + 0 + c, TP + 2 + c, 212 + 2*c)
        unpack(k, TP + 4 + c, TP + 6 + c, 213 + 2*c)
    k.e("s_waitcnt lgkmcnt(8)")
    for j in range(11): unpack(k, KU + 2*j, KU + 2*j + 1, KR + j)
    k.e("s_waitcnt lgkmcnt(0)")
    for j in range(8): unpack(k, VU + 2*j, VU + 2*j + 1, VR + j)
    for r in range(8):
        d = KV + 2*(r & 1)
        for j in (3, 2, 1, 0):
            w = KU + 2*(r + 3 - j); t = TP + 2*j
            if j == 3: k.e(f"v_pk_mul_f32 v[{d}:{d+1}], v[{w}:{w+1}], v[{t}:{t+1}]")
            else: k.e(f"v_pk_fma_f32 v[{d}:{d+1}], v[{w}:{w+1}], v[{t}:{t+1}], v[{d}:{d+1}]")
        k.e(f"v_pk_mul_f32 v[{d}:{d+1}], v[{d}:{d+1}], v[{VU+2*r}:{VU+2*r+1}]")
        if r & 1:
            for c in range(2):
                k.e(f"v_cvt_pk_bf16_f32 v{OUT+4*c+3-r//2}, v{KV+2+c}, v{KV+c}")
    for c in range(2):
        k.e(f"ds_write_b128 v210, v[{OUT+4*c}:{OUT+4*c+3}] offset:{32*c}")

def b_aux_addr(k):
    srd(k, 84, P_W2, NB_W)
    srd(k, 44, P_WS, NB_W, W2_OFF)
    srd(k, 40, P_WS, NB_T, UR_OFF)
    k.e("s_lshr_b32 s57, s2, 2")
    k.e("s_and_b32 s58, s2, 3")
    k.e("s_mul_i32 s59, s57, 40960")
    k.e("s_mul_i32 s60, s58, 320")
    k.e("s_add_u32 s59, s59, s60")
    k.e("s_lshl_b32 s60, s101, 6")
    k.e("s_lshl_b32 s61, s101, 10")
    for i in range(3):
        k.e("v_add_u32 v9, s60, v0")
        if i: k.e(f"v_add_u32 v9, {256*i}, v9")
        k.e("v_mul_u32_u24 v10, 52429, v9")
        k.e("v_lshrrev_b32 v10, 20, v10")
        k.e("v_mul_u32_u24 v10, 960, v10")
        k.e(f"v_lshl_add_u32 v{206+i}, v9, 4, v10")
    k.e("s_cmp_ge_u32 s101, 2")
    k.e(f"s_cselect_b32 s60, {OOB}, 0")
    k.e("v_add_u32 v208, s60, v208")
    k.e(f"s_add_u32 s62, s61, {EA + 20480 + 8192}")
    k.e("s_cmp_ge_u32 s101, 2")
    k.e(f"s_cselect_b32 s62, {EA + 30720}, s62")
def b_aux_addr2(k):
    k.e("s_lshr_b32 s10, s101, 1")
    k.e("s_and_b32 s11, s101, 1")
    k.e("s_mul_i32 s60, s10, 5")
    k.e("s_mul_i32 s54, s11, 3")
    k.e("s_add_u32 s60, s60, s54")
    k.e("s_lshl_b32 s60, s60, 5")
    k.e(f"s_add_u32 s60, s60, {EA + 20480}")
    k.e("v_lshrrev_b32 v11, 2, v0")
    k.e("v_mul_u32_u24 v11, 320, v11")
    k.e("v_and_b32 v12, 3, v0")
    k.e("v_lshl_add_u32 v11, v12, 3, v11")
    k.e("v_add_u32 v214, s60, v11")
    k.e("s_lshl_b32 s60, s58, 1")
    k.e("s_add_u32 s60, s60, s10")
    k.e(f"s_mul_i32 s89, s60, {NT}")
    k.e("s_add_u32 s89, s89, s57")
    k.e("s_mul_i32 s89, s89, 5120")
    k.e("s_lshl_b32 s54, s54, 10")
    k.e("s_add_u32 s89, s89, s54")
    k.e("s_cmp_ge_u32 s2, 216")
    k.e(f"s_cselect_b32 s89, {OOB}, s89")
    if flag("XNOW"): k.e(f"s_mov_b32 s89, {OOB}")
    k.e("v_lshlrev_b32 v215, 4, v0")
    k.e("s_cmp_eq_u32 s11, 1")
    k.e(f"s_cselect_b32 s54, {OOB}, 0")
    k.e("v_add_u32 v216, s54, v215")
    unit_ids(k, 52, 53)
    k.e("v_lshrrev_b32 v1, 3, v0")
    k.e("v_and_b32 v3, 7, v0")
    k.e("v_lshrrev_b32 v11, 1, v3")
    k.e("v_sub_u32 v11, 3, v11")
    k.e("v_mul_u32_u24 v11, 5120, v11")
    k.e("v_lshl_add_u32 v11, v1, 5, v11")
    k.e("v_and_b32 v12, 1, v3")
    k.e("v_lshl_add_u32 v11, v12, 4, v11")
    k.e("s_lshl_b32 s55, s101, 9")
    k.e(f"s_add_u32 s55, s55, {EA}")
    k.e("v_add_u32 v211, s55, v11")
    k.e(f"v_mul_u32_u24 v232, {RS}, v1")
    k.e("v_lshl_add_u32 v232, v3, 4, v232")
    k.e(f"v_add_u32 v233, {8*RS}, v232")
    k.e("s_lshl_b32 s63, s53, 2")
    k.e("s_add_u32 s63, s63, s101")
    k.e(f"s_mul_i32 s63, s63, {16*RS}")
    k.e("s_lshl_b32 s55, s52, 7")
    k.e("s_sub_u32 s55, 3968, s55")
    k.e("s_add_u32 s63, s63, s55")
    if flag("XNOST"):
        k.e(f"s_mov_b32 s63, {OOB}")
        k.e(f"s_mov_b32 s89, {OOB}")
def rel_loads():
    return [f"s_add_u32 m0, s61, {EA + 20480}",
            "buffer_load_dwordx4 v206, s[84:87], s59 offen lds",
            f"s_add_u32 m0, s61, {EA + 20480 + 4096}",
            "buffer_load_dwordx4 v207, s[84:87], s59 offen lds",
            "s_mov_b32 m0, s62",
            "buffer_load_dwordx4 v208, s[84:87], s59 offen lds"]
def aux_out():
    L = [f"ds_read_b128 v[{100+4*i}:{103+4*i}], v211 offset:{256*i}" for i in range(2)]
    for i in range(3):
        L.append(f"ds_read_b64_tr_b16 v[{188+4*i}:{189+4*i}], v214 offset:{32*i}")
        L.append(f"ds_read_b64_tr_b16 v[{190+4*i}:{191+4*i}], v214 offset:{32*i + 5120}")
    L.append("s_waitcnt lgkmcnt(0)")
    L += [f"buffer_store_dwordx4 v[{100+4*i}:{103+4*i}], v{232+i}, s[40:43], s63 offen{SC1}" for i in range(2)]
    L += [f"buffer_store_dwordx4 v[{188+4*i}:{191+4*i}], v{216 if i == 2 else 215}, s[44:47], s89 offen offset:{1024*i}{SC1}" for i in range(3)]
    return L

def rel1_addr(k):
    srd(k, 84, P_W2, NB_W)
    srd(k, 44, P_WS, NB_W, W2_OFF)
    k.e("s_lshr_b32 s57, s2, 2")
    k.e("s_and_b32 s58, s2, 3")
    k.e("s_mul_i32 s59, s57, 40960")
    k.e("s_mul_i32 s60, s58, 320")
    k.e("s_add_u32 s59, s59, s60")
    k.e("s_lshl_b32 s60, s101, 6")
    k.e("s_lshl_b32 s61, s101, 10")
    for i in range(3):
        k.e("v_add_u32 v9, s60, v0")
        if i: k.e(f"v_add_u32 v9, {256*i}, v9")
        k.e("v_mul_u32_u24 v10, 52429, v9")
        k.e("v_lshrrev_b32 v10, 20, v10")
        k.e("v_mul_u32_u24 v10, 960, v10")
        k.e(f"v_lshl_add_u32 v{110+i}, v9, 4, v10")
    k.e("s_cmp_ge_u32 s101, 2")
    k.e(f"s_cselect_b32 s60, {OOB}, 0")
    k.e("v_add_u32 v112, s60, v112")
    k.e("v_lshrrev_b32 v11, 2, v0")
    k.e("v_mul_u32_u24 v11, 320, v11")
    k.e("v_and_b32 v12, 3, v0")
    k.e("v_lshl_add_u32 v11, v12, 3, v11")
    k.e("s_lshr_b32 s10, s101, 1")
    k.e("s_and_b32 s11, s101, 1")
    k.e("s_mul_i32 s60, s10, 5")
    k.e("s_mul_i32 s54, s11, 3")
    k.e("s_add_u32 s60, s60, s54")
    k.e("s_lshl_b32 s60, s60, 5")
    k.e(f"s_add_u32 s60, s60, {RLB}")
    k.e("v_add_u32 v214, s60, v11")
    k.e("s_lshl_b32 s60, s58, 1")
    k.e("s_add_u32 s60, s60, s10")
    k.e(f"s_mul_i32 s89, s60, {NT}")
    k.e("s_add_u32 s89, s89, s57")
    k.e("s_mul_i32 s89, s89, 5120")
    k.e("s_lshl_b32 s54, s54, 10")
    k.e("s_add_u32 s89, s89, s54")
    k.e("s_cmp_ge_u32 s2, 216")
    k.e(f"s_cselect_b32 s89, {OOB}, s89")
    if flag("XNOW"): k.e(f"s_mov_b32 s89, {OOB}")
    k.e("v_lshlrev_b32 v215, 4, v0")
    k.e("s_cmp_eq_u32 s11, 1")
    k.e(f"s_cselect_b32 s54, {OOB}, 0")
    k.e("v_add_u32 v216, s54, v215")
def rel1_loads():
    L = []
    for i in range(3):
        L.append(f"s_add_u32 m0, s61, {RLB + 4096*i}")
        L.append(f"buffer_load_dwordx4 v{110+i}, s[84:87], s59 offen lds")
    return L
def rel1_reads():
    L = []
    for i in range(3):
        L.append(f"ds_read_b64_tr_b16 v[{188+4*i}:{189+4*i}], v214 offset:{32*i}")
        L.append(f"ds_read_b64_tr_b16 v[{190+4*i}:{191+4*i}], v214 offset:{32*i + 5120}")
    return L
def rel1_stores():
    return ["s_waitcnt lgkmcnt(0)"] + [f"buffer_store_dwordx4 v[{188+4*i}:{191+4*i}], v{216 if i == 2 else 215}, s[44:47], s89 offen offset:{1024*i}{SC1}" for i in range(3)]
def u_addr(k):
    srd(k, 40, P_WS, NB_T, UR_OFF)
    unit_ids(k, 52, 53)
    k.e("v_lshrrev_b32 v1, 3, v0")
    k.e("v_and_b32 v3, 7, v0")
    k.e("v_lshrrev_b32 v11, 1, v3")
    k.e("v_sub_u32 v11, 3, v11")
    k.e("v_mul_u32_u24 v11, 5120, v11")
    k.e("v_lshl_add_u32 v11, v1, 5, v11")
    k.e("v_and_b32 v12, 1, v3")
    k.e("v_lshl_add_u32 v11, v12, 4, v11")
    k.e("s_lshl_b32 s55, s101, 9")
    k.e(f"s_add_u32 s55, s55, {EA}")
    k.e("v_add_u32 v211, s55, v11")
    k.e(f"v_mul_u32_u24 v232, {RS}, v1")
    k.e("v_lshl_add_u32 v232, v3, 4, v232")
    k.e(f"v_add_u32 v233, {8*RS}, v232")
    k.e("s_lshl_b32 s63, s53, 2")
    k.e("s_add_u32 s63, s63, s101")
    k.e(f"s_mul_i32 s63, s63, {16*RS}")
    k.e("s_lshl_b32 s55, s52, 7")
    k.e("s_sub_u32 s55, 3968, s55")
    k.e("s_add_u32 s63, s63, s55")
def u_out():
    L = [f"ds_read_b128 v[{100+4*i}:{103+4*i}], v211 offset:{256*i}" for i in range(2)]
    L.append("s_waitcnt lgkmcnt(0)")
    L += [f"buffer_store_dwordx4 v[{100+4*i}:{103+4*i}], v{232+i}, s[40:43], s63 offen{SC1}" for i in range(2)]
    return L

def g2_offsets(k):
    k.e("s_mul_i32 s10, s101, 14")
    k.e("s_cmp_eq_u32 s101, 3")
    k.e("s_cselect_b32 s10, 41, s10")
    k.e(f"s_mul_i32 s11, s8, {NT}")
    k.e("s_add_u32 s11, s11, s10")
    k.e("s_lshl_b32 s76, s11, 12")
    k.e(f"s_mul_i32 s11, s9, {NT}")
    k.e("s_add_u32 s11, s11, s10")
    k.e("s_mul_i32 s77, s11, 5120")
    k.e("s_cmp_ge_u32 s101, 2")
    k.e(f"s_cselect_b32 s79, {OOB}, 0")
    k.e("s_mul_i32 s75, s101, 7")
    k.e("s_min_u32 s75, s75, 20")
    k.e("s_lshl_b32 s11, s8, 5")
    k.e("s_add_u32 s75, s75, s11")
    k.e(f"s_lshl_b32 s75, s75, {HSH}")
    k.e(f"s_add_u32 s75, s75, {FH}")
    k.e("s_lshl_b32 s74, s101, 14")
    k.e("s_min_u32 s10, s10, 40")
    k.e("s_lshl_b32 s10, s10, 2")
    k.e("s_lshr_b32 s11, s9, 1")
    k.e("s_add_u32 s10, s10, s11")
    k.e("s_lshl_b32 s10, s10, 7")
    k.e(f"s_add_u32 s71, s10, {FB}")
LSTEPS = [int(x) for x in os.environ.get("LSTEPS", "5,8,11").split(",")]
def soff(dst, base, step, mul):
    st = step
    if flag("XHIT") & 1 and mul == 4096: st = step % 2
    if flag("XHIT") & 2 and mul == 5120: st = step % 2
    L = [f"s_add_u32 s{dst}, s{base}, {st * mul}"]
    if step == NSTEP - 1: L.append(f"s_add_u32 s{dst}, s{dst}, s79")
    return L
def w_loads(step):
    b = W_SL[step % NW]
    L = soff(73, 77, step, 5120)
    L += [f"buffer_load_dwordx4 v[{b+4*d}:{b+4*d+3}], v1, s[44:47], s73 offen offset:{1024*d}{SC1}" for d in range(4)]
    L.append(f"buffer_load_dwordx4 v[{b+16}:{b+19}], v2, s[44:47], s73 offen{SC1}")
    return L
def h_loads(step):
    b = G_H + 16 * (step % NH)
    L = soff(72, 76, step, 4096)
    L += [f"buffer_load_dwordx4 v[{b+4*m}:{b+4*m+3}], v{3+m}, s[40:43], s72 offen{SC1}" for m in range(4)]
    return L
def w_lds_reads(step):
    b = W_SL[step % NW]
    return [f"ds_read_b128 v[{b+4*d}:{b+4*d+3}], v7 offset:{LSTEPS.index(step)*5120 + 1024*d}" for d in range(5)]
def g2_mfmas(step, order=None):
    b = G_H + 16 * (step % NH); wb = W_SL[step % NW]
    L = []
    for d, m in (order or [(d, m) for d in range(5) for m in range(4)]):
        a = G_ACC + 16*d + 4*m
        c = "0" if step == 0 else f"v[{a}:{a+3}]"
        L.append(f"v_mfma_f32_16x16x32_bf16 v[{a}:{a+3}], v[{wb+4*d}:{wb+4*d+3}], v[{b+4*m}:{b+4*m+3}], {c}")
    return L

def g2_phase(k):
    for s in range(EWI or flag("NP", 0), NW):
        for x in w_loads(s): k.e(x)
    srd(k, 40, P_WS, 32 * NT * 4096, H_OFF)
    k.e("s_lshl_b32 s52, s101, 10")
    k.e("v_add_u32 v3, s52, v1")
    for m in range(1, 4): k.e(f"v_xor_b32 v{3+m}, {1024*m}, v3")
    k.e(f"v_lshlrev_b32 v9, {HSH}, v0")
    EPOL = flag("EPOL", 8); left = 15
    for li, s in enumerate(LSTEPS):
        for x in soff(78, 77, s, 5120): k.e(x)
        for d in range(5):
            if left == EPOL:
                k.e("s_bfm_b64 exec, 7, 0")
                k.e(f"buffer_load_dwordx2 v[10:11], v9, s[{FSRD}:{FSRD+3}], s75 offen{SC1}")
                k.e("s_mov_b64 exec, -1")
            left -= 1
            if d in (0, 4): k.e(f"s_add_u32 m0, s74, {li*5120 + 1024*d}")
            if d < 4: k.e(f"buffer_load_dwordx4 v1, s[44:47], s78 offen offset:{1024*d}{SC1} lds")
            else: k.e(f"buffer_load_dwordx4 v2, s[44:47], s78 offen{SC1} lds")
    k.e("v_add_u32 v7, s74, v1")
    k.e(f"v_mov_b32 v152, {CNT}")
    k.e(f"s_waitcnt vmcnt({EPOL})")
    poll(k, "L_hpoll", 10, 9, 75, 58, 7, sleep=2, preloaded=True)
    stamp(k, 1, 2); cs(k, "rdy")
    vm = Vm(); need = {}
    NH0 = flag("NH0", 3)
    for s in range(NH0):
        for x in h_loads(s):
            k.e(x)
            if is_vmem(x): need[("h", s)] = vm.op()
    def groups(L):
        G = []; cur = []
        for x in L:
            cur.append(x)
            if is_vmem(x): G.append(cur); cur = []
        return G
    LA = flag("LA", 2); R = flag("RATE", 6)
    qh = [(s - (NH - 1), s - LA, "h", s, g) for s in range(NH0, NSTEP) for g in groups(h_loads(s))]
    qw = [(s - (NW - 1), s - LA, "w", s, g) for s in range(NW, NSTEP) if s not in LSTEPS for g in groups(w_loads(s))]
    for s in range(NSTEP):
        idx = max(need[("h", s)], need.get(("w", s), -1))
        lg = " lgkmcnt(0)" if (s in LSTEPS or s == NSTEP - 1) else ""
        k.e(f"s_waitcnt vmcnt({vm.wait(idx)}){lg}")
        if s in (0, 3, 7, 10): stamp(k, 4, (0, 3, 7, 10).index(s))
        if s in (10, 12, 13): stamp(k, 5, (10, 12, 13).index(s))
        if s == NSTEP - 1: break
        fill = []
        while (qh or qw):
            cand = [q for q in (qh, qw) if q and q[0][0] <= s]
            if not cand: break
            q = min(cand, key=lambda q: q[0][1])
            if len(fill) >= R and q[0][1] > s: break
            fill.append(q.pop(0))
        extra = []
        if s == flag("YAT", 7): extra.append(f"ds_write_b32 v152, v152 offset:{PROG}")
        if s + 2 in LSTEPS: extra += w_lds_reads(s + 2)
        if s == 12:
            r = Rec(); tail_addr(r); extra += ["\n".join(r.lines[i:i+2]) for i in range(0, len(r.lines), 2)]
        n = len(fill); fi = 0; ei = 0
        for i, x in enumerate(g2_mfmas(s)):
            k.e(x)
            if fi < n and i >= (fi * 18) // n:
                for y in fill[fi][4]: k.e(y)
                need[(fill[fi][2], fill[fi][3])] = vm.op(); fi += 1
            elif ei < len(extra):
                k.e(extra[ei]); ei += 1
        assert fi == n
        for y in extra[ei:]: k.e(y)
    assert not qh and not qw
    k.e("s_setprio 2")
    order = [(3, 0), (4, 0)] + [(d, m) for m in (1, 2, 3) for d in range(5)] + [(0, 0), (1, 0), (2, 0)]
    wr = [f"ds_write_b128 v{T+8}, v[{G_ACC+16*d}:{G_ACC+16*d+3}] offset:{OWN + 1024*(d-3)}" for d in (3, 4)]
    wr += [f"ds_write_b128 v7, v[{G_ACC+16*d+4*m}:{G_ACC+16*d+4*m+3}] offset:{(m-1)*5120 + 1024*d}" for d, m in order[2:17]]
    k.e("s_cmp_ge_u32 s101, 2")
    k.e("s_cbranch_scc1 L_g2_short")
    for x in interleave(g2_mfmas(NSTEP - 1, order), wr, start=6): k.e(x)
    k.e("s_branch L_g2_join")
    k.e("L_g2_short:")
    k.e("s_nop 7")
    for x in wr: k.e(x)
    k.e("L_g2_join:")
    stamp(k, 1, 3); cs(k, "mend")
    g2_tail(k)

T = 156
OWN = SO + 3072
assert C3
def tail_addr(k):
    srd(k, 48, P_OUT, NB_X)
    k.e("s_lshl_b32 s53, s8, 2")
    k.e("s_add_u32 s53, s53, s101")
    k.e("s_mul_i32 s54, s53, 20480")
    k.e("s_mul_i32 s55, s9, 160")
    k.e("s_add_u32 s54, s54, s55")
    for i in range(2):
        k.e(f"v_add_u32 v{T+3}, {64*i}, v0")
        k.e(f"v_mul_u32_u24 v{T+4}, 10923, v{T+3}")
        k.e(f"v_lshrrev_b32 v{T+4}, 16, v{T+4}")
        k.e(f"v_mul_u32_u24 v{T+4}, {1280-96}, v{T+4}")
        k.e(f"v_lshl_add_u32 v{T+i}, v{T+3}, 4, v{T+4}")
    k.e(f"v_mov_b32 v{T+4}, {OOB}")
    k.e("v_cmp_gt_u32 vcc, 32, v0")
    k.e(f"v_cndmask_b32 v{T+1}, v{T+4}, v{T+1}, vcc")
    for m in range(1, 4): k.e(f"v_xor_b32 v{T+4+m}, {16384*m}, v7")
    k.e(f"v_add_u32 v{T+8}, s81, v1")
    k.e(f"v_and_b32 v{T+9}, 15, v0")
    k.e(f"v_mul_u32_u24 v{T+9}, 96, v{T+9}")
    k.e(f"v_lshrrev_b32 v{T+10}, 4, v0")
    k.e(f"v_lshl_add_u32 v{T+9}, v{T+10}, 3, v{T+9}")
    k.e(f"v_add_u32 v{T+9}, s81, v{T+9}")
    k.e(f"v_mov_b32 v{T+12}, 1.0")
    k.e(f"v_mov_b32 v{T+13}, 1.0")
def final_block(k, a, s, x, cc, one):
    for h in range(2):
        k.e(f"v_pk_add_f32 v[{a+2*h}:{a+2*h+1}], v[{a+2*h}:{a+2*h+1}], v[{a+4+2*h}:{a+4+2*h+1}]")
        k.e(f"v_pk_add_f32 v[{a+8+2*h}:{a+8+2*h+1}], v[{a+8+2*h}:{a+8+2*h+1}], v[{a+12+2*h}:{a+12+2*h+1}]")
    for h in range(2):
        k.e(f"v_pk_add_f32 v[{a+2*h}:{a+2*h+1}], v[{a+2*h}:{a+2*h+1}], v[{a+8+2*h}:{a+8+2*h+1}]")
    e = a + 4
    for h in range(2):
        k.e(f"v_pk_mul_f32 v[{e+2*h}:{e+2*h+1}], v[{a+2*h}:{a+2*h+1}], v[{cc}:{cc+1}]")
    for r in range(4): k.e(f"v_exp_f32 v{e+r}, v{e+r}")
    for h in range(2):
        k.e(f"v_pk_mul_f32 v[{a+2*h}:{a+2*h+1}], v[{a+2*h}:{a+2*h+1}], v[{s+2*h}:{s+2*h+1}]")
    for h in range(2):
        k.e(f"v_pk_add_f32 v[{e+2*h}:{e+2*h+1}], v[{e+2*h}:{e+2*h+1}], v[{one}:{one+1}]")
    for r in range(4): k.e(f"v_rcp_f32 v{e+r}, v{e+r}")
    for h in range(2):
        k.e(f"v_pk_fma_f32 v[{a+2*h}:{a+2*h+1}], v[{a+2*h}:{a+2*h+1}], v[{e+2*h}:{e+2*h+1}], v[{x+2*h}:{x+2*h+1}]")
    k.e(f"v_cvt_pk_bf16_f32 v{a+8}, v{a}, v{a+1}")
    k.e(f"v_cvt_pk_bf16_f32 v{a+9}, v{a+2}, v{a+3}")
def g2_tail(k):
    k.e("s_waitcnt lgkmcnt(0)")
    stamp(k, 6, 0)
    k.e("s_barrier")
    stamp(k, 5, 3); stamp(k, 6, 1)
    SF, XF, CC = 88, 108, T + 14
    k.e(f"ds_read_b64 v[{CC}:{CC+1}], v{T+8} offset:{SO + 10240}")
    for d in range(3):
        for m in range(1, 4):
            a = G_ACC + 16*d + 4*m
            k.e(f"ds_read_b128 v[{a}:{a+3}], v{T+4+m} offset:{(m-1)*5120 + 1024*d}")
        k.e(f"ds_read_b128 v[{SF+4*d}:{SF+4*d+3}], v{T+8} offset:{SO + 1024*d}")
        k.e(f"ds_read_b128 v[{XF+4*d}:{XF+4*d+3}], v{T+8} offset:{SO + 5120 + 1024*d}")
    for d in range(3):
        k.e(f"s_waitcnt lgkmcnt({10-5*d})")
        final_block(k, G_ACC + 16*d, SF + 4*d, XF + 4*d, CC, T + 12)
    stamp(k, 6, 2)
    for d in range(3):
        a = G_ACC + 16*d
        k.e(f"ds_write_b64 v{T+9}, v[{a+8}:{a+9}] offset:{XO + 32*d}")
    k.e("s_waitcnt lgkmcnt(0)")
    O = 128
    for i in range(2): k.e(f"ds_read_b128 v[{O+4*i}:{O+4*i+3}], v{T+8} offset:{XO + 1024*i}")
    for i in range(2):
        k.e(f"s_waitcnt lgkmcnt({1-i})")
        k.e(f"buffer_store_dwordx4 v[{O+4*i}:{O+4*i+3}], v{T+i}, s[48:51], s54 offen")
    stamp(k, 6, 3)
def b_tail(k):
    srd(k, 48, P_OUT, NB_X)
    k.e("v_lshlrev_b32 v8, 4, v0")
    k.e("s_lshl_b32 s59, s101, 14")
    k.e("v_add_u32 v8, s59, v8")
    for m in range(1, 4): k.e(f"v_xor_b32 v{8+m}, {16384*m}, v8")
    k.e("v_and_b32 v12, 15, v0")
    k.e("v_lshlrev_b32 v12, 6, v12")
    k.e("v_lshrrev_b32 v13, 4, v0")
    k.e("v_lshl_add_u32 v12, v13, 3, v12")
    k.e("v_add_u32 v12, s81, v12")
    k.e("v_lshrrev_b32 v13, 2, v0")
    k.e("v_mul_u32_u24 v13, 1280, v13")
    k.e("v_and_b32 v14, 3, v0")
    k.e("v_lshl_add_u32 v13, v14, 4, v13")
    k.e("v_mov_b32 v14, 1.0")
    k.e("v_mov_b32 v15, 1.0")
    k.e("s_waitcnt lgkmcnt(0)")
    k.e("s_barrier")
    P = 104
    for i, d in enumerate((3, 4)):
        k.e(f"ds_read_b128 v[{P+16*i}:{P+16*i+3}], v37 offset:{OWN + 1024*i}")
        for m in range(1, 4):
            k.e(f"ds_read_b128 v[{P+16*i+4*m}:{P+16*i+4*m+3}], v{8+m} offset:{(m-1)*5120 + 1024*d}")
    for i, d in enumerate((3, 4)):
        k.e(f"s_waitcnt lgkmcnt({4-4*i})")
        final_block(k, P + 16*i, 60 + 4*d, 40 + 4*d, 38, 14)
    for i in range(2): k.e(f"ds_write_b64 v12, v[{P+16*i+8}:{P+16*i+9}] offset:{YO + 32*i}")
    k.e("s_waitcnt lgkmcnt(0)")
    k.e(f"ds_read_b128 v[16:19], v37 offset:{YO}")
    k.e("s_waitcnt lgkmcnt(0)")
    k.e("buffer_store_dwordx4 v[16:19], v13, s[48:51], s54 offen offset:96")

BA, AA, ONE, ACC, AR, AC, FR = 10, 14, 20, 24, 88, 96, 112
def g1_setup(k):
    srd(k, 48, P_WS, 32 * NT * 4096, H_OFF)
    srd(k, 44, P_WS, NB_W, W2_OFF)
    k.e("s_and_b32 s52, s3, 1")
    k.e("s_lshr_b32 s53, s3, 1")
    k.e("v_lshlrev_b32 v1, 4, v0")
    k.e("v_add_u32 v2, 4096, v1")
    k.e("v_and_b32 v18, 15, v0")
    k.e("v_lshrrev_b32 v19, 4, v0")
    k.e("v_lshrrev_b32 v20, 1, v18")
    k.e("v_xor_b32 v20, v20, v19")
    k.e("v_lshlrev_b32 v20, 4, v20")
    k.e("v_lshl_add_u32 v20, v18, 7, v20")
    k.e("s_lshl_b32 s58, s52, 13")
    k.e("s_lshl_b32 s59, s53, 12")
    k.e("s_add_u32 s58, s58, s59")
    k.e(f"v_add_u32 v{BA}, s58, v20")
    k.e(f"v_xor_b32 v{BA+1}, 64, v{BA}")
    k.e(f"v_xor_b32 v{BA+2}, 0x1000, v{BA}")
    k.e(f"v_xor_b32 v{BA+3}, 0x1040, v{BA}")
    k.e("v_lshrrev_b32 v20, 2, v18")
    k.e("v_and_b32 v21, 3, v18")
    k.e("v_lshl_add_u32 v22, v19, 3, v20")
    k.e("v_lshlrev_b32 v22, 8, v22")
    k.e("v_lshl_add_u32 v22, v21, 3, v22")
    k.e(f"v_add_u32 v22, {WPART}, v22")
    k.e("v_and_b32 v23, 1, v19")
    k.e("v_lshl_add_u32 v23, v23, 2, v20")
    k.e("s_lshl_b32 s58, s53, 2")
    k.e("s_lshl_b32 s59, s52, 1")
    k.e("s_add_u32 s58, s58, s59")
    k.e("v_xor_b32 v23, s58, v23")
    k.e(f"v_lshl_add_u32 v{AA}, v23, 5, v22")
    for fb in range(1, 4): k.e(f"v_xor_b32 v{AA+fb}, {32*fb}, v{AA}")
    for i in range(4): k.e(f"v_mov_b32 v{ONE+i}, 0x3f803f80")
    for r, x in ((3, 0), (4, 2), (5, 1)):
        k.e(f"s_xor_b32 s58, s3, {x}")
        k.e("s_mul_i32 s58, s58, 3072")
        k.e(f"s_add_u32 s58, s58, {TOP}")
        k.e(f"v_add_u32 v{r}, s58, v1")
    k.e("s_lshl_b32 s58, s7, 1")
    k.e("s_add_u32 s57, s58, s53")
    k.e("s_lshl_b32 s59, s6, 1")
    k.e("s_add_u32 s59, s59, s52")
    k.e("s_lshl_b32 s56, s59, 5")
    k.e("s_add_u32 s56, s56, s57")
    k.e(f"s_lshl_b32 s56, s56, {HSH}")
    k.e(f"s_add_u32 s56, s56, {FH}")
    k.e(f"s_mul_i32 s59, s59, {NT}")
    k.e("s_lshl_b32 s58, s57, 1")
    k.e("s_add_u32 s58, s58, s59")
    k.e("s_lshl_b32 s58, s58, 12")
    k.e("s_lshl_b32 s59, s52, 12")
    k.e("s_add_u32 s60, s58, s59")
    k.e("s_xor_b32 s59, s59, 0x1000")
    k.e("s_add_u32 s61, s58, s59")
    k.e("s_lshl_b32 s59, s53, 11")
    k.e("v_add_u32 v6, s59, v1")
    k.e("v_xor_b32 v7, 0x800, v6")
    k.e(f"v_mov_b32 v18, {CNT}")
    k.e("s_lshl_b32 s58, s3, 2")
    k.e(f"s_add_u32 s58, s58, {CNT + PA}")
    k.e("v_mov_b32 v19, s58")

def g1_phase(k):
    PV = 176
    def reads(stage, ks, buf):
        so = (stage % 2) * SLOT
        L = []
        fa = FR + 32 * buf; fb_ = fa + 16
        for i in range(4):
            L.append(f"ds_read_b128 v[{fb_+4*i}:{fb_+4*i+3}], v{BA + 2*(i>>1) + ks} offset:{so + 2048*(i&1)}")
            L.append(f"ds_read_b64_tr_b16 v[{fa+4*i}:{fa+4*i+1}], v{AA+i} offset:{so + 8192*ks}")
            L.append(f"ds_read_b64_tr_b16 v[{fa+4*i+2}:{fa+4*i+3}], v{AA+i} offset:{so + 8192*ks + 1024}")
        return L
    def mfmas(buf, first=False, sums_first=False):
        fa = FR + 32 * buf; fb_ = fa + 16
        L = []; Sm = []
        def mm(Tg, d, a, b):
            c = "0" if first else f"v[{d}:{d+3}]"
            Tg.append(f"v_mfma_f32_16x16x32_bf16 v[{d}:{d+3}], v[{a}:{a+3}], v[{b}:{b+3}], {c}")
        for f in range(4):
            for m in range(4): mm(L, ACC + 16*f + 4*m, fa + 4*f, fb_ + 4*m)
        for i in range(2):
            mm(Sm, AR + 4*i, ONE, fb_ + 4*i)
            mm(Sm, AC + 4*i, fa + 4*i, ONE)
        if flag("QNOSUM") and not first and not sums_first: return L
        return Sm + L if sums_first else L + Sm
    def dense(L):
        n = flag("DEN", 2)
        return ["\n".join(L[i:i+n]) for i in range(0, len(L), n)]
    tog = [f"v_xor_b32 v{r}, 0x10000, v{r}" for r in list(range(BA, BA+4)) + list(range(AA, AA+4))]
    for s in range(NSTAGE):
        k.c(f"---- stage {s}")
        k.e("s_waitcnt lgkmcnt(0)")
        m1 = mfmas(1)
        if s < 9: k.e("s_barrier")
        else:
            for x in interleave(m1[:3], prog_min(PV, 58)): k.e(x)
            m1 = m1[3:]
            prog_spin(k, "L_a9", 18, PV, PB, 58, 1)
        if s == 0: stamp(k, 1, 0); stamp(k, 2, 0); cs(k, "b0")
        if s == 4: cs(k, "b4")
        if s == 4: stamp(k, 2, 1)
        if s == 8:
            stamp(k, 2, 2)
            k.e("s_setprio 2")
        for x in (reads(0, 0, 0) if s == 0 else interleave(m1, dense(reads(s, 0, 0)))): k.e(x)
        k.e("s_waitcnt lgkmcnt(0)")
        m0 = mfmas(0, first=(s == 0))
        nxt = tog if ((s + 1) % 2 == 0 and s + 1 < NSTAGE) else []
        if s == 9 and EPI:
            m0 = mfmas(0, sums_first=True)
            exch = [f"v_mov_b32 v{AR+1}, v{AR+4}",
                    f"ds_write_b64 v3, v[{AR}:{AR+1}]",
                    f"ds_write_b128 v3, v[{AC}:{AC+3}] offset:1024",
                    f"ds_write_b128 v3, v[{AC+4}:{AC+7}] offset:2048"] + prog_write(19, 8, 11)
            body = (interleave(m0[:10], dense(reads(s, 1, 1))) + ["s_waitcnt lgkmcnt(0)"] + mfmas(1, sums_first=True)[:4]
                    + m0[10:14] + interleave(m0[14:], exch))
        elif s == 8:
            body = interleave(m0[:-3], dense(reads(s, 1, 1))) + [f"ds_read_b128 v[{PV}:{PV+3}], v18 offset:{PB}"] + m0[-3:]
        else:
            body = interleave(m0, dense(reads(s, 1, 1)) + nxt)
        for x in body: k.e(x)
    if EPI:
        allm = mfmas(1, sums_first=True)[4:]
        fin = [allm[4*(2*p+ff) + m] for p in range(2) for m in range(4) for ff in range(2)]
        sync_reads = [f"ds_read_b128 v[{PV}:{PV+3}], v18 offset:{PA}",
                      f"ds_read_b64 v[{AR+2}:{AR+3}], v4",
                      f"ds_read_b128 v[{AC+8}:{AC+11}], v5 offset:1024",
                      f"ds_read_b128 v[{AC+12}:{AC+15}], v5 offset:2048"]
        k.e("s_cmp_ge_u32 s57, 27")
        for r in (56, 60, 61): k.e(f"s_cselect_b32 s{r}, {OOB}, s{r}")
        for x in fin[:2] + interleave(fin[2:8], sync_reads): k.e(x)
        k.e("s_branch L_a_chk")
        k.e("L_a_sync:")
        for x in sync_reads: k.e(x)
        k.e("L_a_chk:")
        k.e("s_waitcnt lgkmcnt(0)")
        for x in prog_min(PV, 58): k.e(x)
        k.e("s_cmp_lt_u32 s58, 11")
        k.e("s_cbranch_scc1 L_a_sync")
        stamp(k, 2, 3); cs(k, "sync")
        NM = FR; OUT = FR + 8
        V = [f"v_mul_f32 v{AR+m}, {-1.0/D!r}, v{AR+m}" for m in range(4)]
        V += [f"v_cvt_pk_bf16_f32 v{AR+4}, v{AR}, v{AR+1}", f"v_cvt_pk_bf16_f32 v{AR+5}, v{AR+2}, v{AR+3}"]
        for m in range(4):
            src = AR + 4 + (m >> 1)
            V.append(f"v_and_b32 v{NM+m}, 0xffff0000, v{src}" if m & 1 else f"v_lshlrev_b32 v{NM+m}, 16, v{src}")
        n = 0
        for p in range(2):
            for m in range(4):
                o = OUT + 4 * (n % 4); n += 1
                for ff in range(2):
                    f = 2*p + ff
                    a = ACC + 16*f + 4*m
                    V += [f"v_fmac_f32 v{a+r}, v{AC+4*f+r}, v{NM+m}" for r in range(4)]
                    V += [f"v_cvt_pk_bf16_f32 v{o+2*ff+h}, v{a+2*h}, v{a+2*h+1}" for h in range(2)]
                if p == 1 and m == 2 and flag("NP", 0): V.append(f"ds_read_b32 v8, v18 offset:{AUXOK}")
                V += [f"v_pk_max_i16 v{o+i}, v{o+i}, 0" for i in range(4)]
                V.append(f"buffer_store_dwordx4 v[{o}:{o+3}], v{6+(m>>1)}, s[48:51], s{60+p} offen offset:{1024*(m&1)}{HSC}")
        pos = len(V) - flag("EVP", 40)
        V = V[:pos] + prog_write(19, 8, 12) + V[pos:]
        rest = fin[8:]
        for i, x in enumerate(V):
            if i % 3 == 0 and rest: k.e(rest.pop(0))
            k.e(x)
    else:
        k.e("s_waitcnt lgkmcnt(0)")
        fin = mfmas(1, sums_first=True)
        exch = [f"v_mov_b32 v{AR+1}, v{AR+4}",
                f"ds_write_b64 v3, v[{AR}:{AR+1}]",
                f"ds_write_b128 v3, v[{AC}:{AC+3}] offset:1024",
                f"ds_write_b128 v3, v[{AC+4}:{AC+7}] offset:2048"] + prog_write(19, 8, 11)
        for x in fin[:7] + interleave(fin[7:], exch): k.e(x)
        k.e("L_a_sync:")
        k.e(f"ds_read_b128 v[{PV}:{PV+3}], v18 offset:{PA}")
        k.e(f"ds_read_b64 v[{AR+2}:{AR+3}], v4")
        k.e(f"ds_read_b128 v[{AC+8}:{AC+11}], v5 offset:1024")
        k.e(f"ds_read_b128 v[{AC+12}:{AC+15}], v5 offset:2048")
        if EWI: k.e(f"ds_read_b32 v8, v18 offset:{AUXOK}")
        k.e("s_waitcnt lgkmcnt(0)")
        for x in prog_min(PV, 58): k.e(x)
        k.e("s_cmp_lt_u32 s58, 11")
        k.e("s_cbranch_scc1 L_a_sync")
        stamp(k, 2, 3); cs(k, "sync")
        if flag("HTF", 1):
            k.e("s_cmp_ge_u32 s57, 27")
            for r in (56, 60, 61): k.e(f"s_cselect_b32 s{r}, {OOB}, s{r}")
        else:
            k.e("s_cmp_ge_u32 s57, 27")
            k.e("s_cbranch_scc1 L_g2w")
        NM = FR
        wl = []
        if EWI:
            k.e("v_readfirstlane_b32 s71, v8")
            k.e("s_mov_b32 s70, s77")
            k.e("s_cmp_eq_u32 s71, 0")
            k.e(f"s_cselect_b32 s77, {OOB}, s77")
            cur = []
            for st in range(EWI):
                for x in w_loads(st):
                    cur.append(x)
                    if is_vmem(x): wl.append(cur); cur = []
        for m in range(4): k.e(f"v_mul_f32 v{AR+m}, {-1.0/D!r}, v{AR+m}")
        k.e(f"v_cvt_pk_bf16_f32 v{AR+4}, v{AR}, v{AR+1}")
        k.e(f"v_cvt_pk_bf16_f32 v{AR+5}, v{AR+2}, v{AR+3}")
        for m in range(4):
            src = AR + 4 + (m >> 1)
            if m & 1: k.e(f"v_and_b32 v{NM+m}, 0xffff0000, v{src}")
            else:     k.e(f"v_lshlrev_b32 v{NM+m}, 16, v{src}")
        OUT = FR + 8
        n = 0
        for p in range(2):
            for m in range(4):
                o = OUT + 4 * (n % 4); n += 1
                for ff in range(2):
                    f = 2*p + ff
                    a = ACC + 16*f + 4*m
                    for r in range(4): k.e(f"v_fmac_f32 v{a+r}, v{AC+4*f+r}, v{NM+m}")
                    for h in range(2): k.e(f"v_cvt_pk_bf16_f32 v{o+2*ff+h}, v{a+2*h}, v{a+2*h+1}")
                if p == 1 and m == 2 and flag("NP", 0): k.e(f"ds_read_b32 v8, v18 offset:{AUXOK}")
                for i in range(4): k.e(f"v_pk_max_i16 v{o+i}, v{o+i}, 0")
                k.e(f"buffer_store_dwordx4 v[{o}:{o+3}], v{6+(m>>1)}, s[48:51], s{60+p} offen offset:{1024*(m&1)}{HSC}")
                lo, hi = (len(wl) * (n - 1)) // 8, (len(wl) * n) // 8
                for g in wl[lo:hi]:
                    for x in g: k.e(x)
        if EWI:
            k.e(f"s_waitcnt vmcnt({hi - lo})")
            publish(k, 56, 12, HSC)
            stamp(k, 1, 1)
            k.e("s_setprio 0")
            k.e("s_mov_b32 s77, s70")
            k.e("s_cmp_eq_u32 s71, 0")
            k.e("s_cbranch_scc0 L_g2b")
            k.e("s_branch L_g2w")
    NP = EWI or flag("NP", 0)
    if NP and not EWI:
        k.e("s_waitcnt lgkmcnt(0)")
        k.e("v_readfirstlane_b32 s58, v8")
        k.e("s_cmp_eq_u32 s58, 0")
        k.e("s_cbranch_scc1 L_a_slow")
        for st in range(NP):
            for x in w_loads(st): k.e(x)
        k.e(f"s_waitcnt vmcnt({5*NP})")
        publish(k, 56, 12, HSC)
        stamp(k, 1, 1)
        k.e("s_setprio 0")
        k.e("s_branch L_g2b")
        k.e("L_a_slow:")
    if AWP:
        k.e("v_lshlrev_b32 v9, 9, v0")
        k.e("s_bfm_b64 exec, 14, 0")
        k.e(f"buffer_load_dwordx2 v[10:11], v9, s[{FSRD}:{FSRD+3}], s71 offen{SC1}")
        k.e("s_mov_b64 exec, -1")
        k.e("s_waitcnt vmcnt(1)")
        publish(k, 56, 12, HSC)
        stamp(k, 1, 1)
        k.e("s_waitcnt vmcnt(1)")
        k.e("s_setprio 0")
        poll(k, "L_aw", 10, 9, 71, 58, 14, preloaded=True)
        k.e("s_branch L_g2b")
        k.e("L_g2w:")
        k.e("s_setprio 0")
        k.e(f"v_mov_b32 v10, {CNT}")
        lds_wait(k, "L_aw2", 10, 11, AUXOK, 58, sleep=4)
    else:
        if not EWI:
            k.e("s_waitcnt vmcnt(0)")
            publish(k, 56, 12, HSC)
            stamp(k, 1, 1)
        k.e("L_g2w:")
        k.e("s_setprio 0")
        k.e(f"v_mov_b32 v10, {CNT}")
        lds_wait(k, "L_aw2", 10, 11, AUXOK, 58, sleep=4)
    for st in range(NP):
        for x in w_loads(st): k.e(x)
    k.e("L_g2b:")

def b_aprep(k):
    srd(k, 40, P_Q, NB_X)
    srd(k, 44, P_WS, 16384, ST_OFF)
    srd(k, 68, P_WS, NB_T, YT_OFF)
    xo_offsets(k, 8, 1, 2)
    for i in range(3):
        k.e(f"s_add_u32 m0, s81, {XO + 1024*i}")
        k.e(f"buffer_load_dwordx4 v{8+i}, s[40:43], s54 offen lds")
    k.e("v_and_b32 v1, 15, v0")
    k.e("v_lshlrev_b32 v3, 3, v1")
    k.e("s_lshl_b32 s57, s53, 7")
    k.e("v_lshrrev_b32 v4, 3, v0")
    k.e(f"v_mul_u32_u24 v4, {RS}, v4")
    k.e("v_and_b32 v2, 7, v0")
    k.e("v_lshl_add_u32 v4, v2, 4, v4")
    k.e("s_mul_i32 s58, s9, 10")
    k.e("s_add_u32 s58, s58, s101")
    k.e(f"s_mul_i32 s58, s58, {8*RS}")
    k.e("s_lshl_b32 s59, s8, 7")
    k.e("s_add_u32 s58, s58, s59")
    k.e(f"v_mov_b32 v2, {CNT}")
    k.e("v_mul_u32_u24 v5, 160, v1")
    k.e("v_lshrrev_b32 v6, 4, v0")
    k.e("v_lshl_add_u32 v5, v6, 3, v5")
    k.e("v_add_u32 v5, s81, v5")
    k.e("v_lshrrev_b32 v36, 5, v0")
    k.e(f"v_mul_u32_u24 v36, {CONV_LDS}, v36")
    k.e("v_bfe_u32 v7, v0, 2, 3")
    k.e("v_lshl_add_u32 v36, v7, 7, v36")
    k.e("v_and_b32 v7, 3, v0")
    k.e("v_lshl_add_u32 v36, v7, 3, v36")
    k.e("s_lshl_b32 s59, s101, 5")
    k.e(f"s_add_u32 s59, s59, {RB0}")
    k.e("v_add_u32 v36, s59, v36")
    k.e("v_lshlrev_b32 v37, 4, v0")
    k.e("v_add_u32 v37, s81, v37")
    XR, YR, XF, SF = 16, 26, 40, 60
    k.e("s_waitcnt vmcnt(0)")
    for d in range(5): k.e(f"ds_read_b64 v[{XR+2*d}:{XR+2*d+1}], v5 offset:{XO + 32*d}")
    k.e("s_waitcnt lgkmcnt(0)")
    for d in range(5):
        for h in range(2): unpack(k, XF + 4*d + 2*h, XF + 4*d + 2*h + 1, XR + 2*d + h)
        if d < 3: k.e(f"ds_write_b128 v37, v[{XF+4*d}:{XF+4*d+3}] offset:{SO + 5120 + 1024*d}")
    k.e("s_setprio 0")
    k.e("s_cmp_eq_u32 s101, 0")
    k.e("s_cbranch_scc1 L_b_poller")
    lds_wait(k, "L_b_lw0", 2, 6, PROG, 60, sleep=flag("LSL", 16))
    lds_wait(k, "L_b_lwait", 2, 6, YOK, 60, sleep=2)
    k.e("s_setprio 3")
    k.e("s_branch L_b_go")
    k.e("L_b_poller:")
    k.e(f"s_mul_i32 s59, s9, {80 << YSH}")
    k.e(f"s_add_u32 s59, s59, {FY}")
    k.e(f"s_add_u32 s61, s59, {64 << YSH}")
    k.e(f"v_lshlrev_b32 v5, {YSH}, v0")
    k.e("v_add_u32 v7, s61, v5")
    k.e("s_lshr_b32 s10, s8, 3")
    k.e("s_lshl_b32 s10, s10, 1")
    k.e("s_and_b32 s11, s8, 1")
    k.e("s_add_u32 s10, s10, s11")
    k.e("s_and_b32 s11, s8, 6")
    k.e("s_lshl_b32 s11, s11, 2")
    k.e("s_add_u32 s10, s10, s11")
    k.e(f"s_add_u32 s10, s10, {224 + (FB >> 7)}")
    k.e("s_lshl_b32 s10, s10, 7")
    k.e("v_writelane_b32 v7, s10, 16")
    lds_wait(k, "L_b_aw", 2, 6, PROG, 60, sleep=flag("LSL2", 6))
    k.e("s_setprio 3")
    k.e("s_bfm_b64 exec, 17, 0")
    k.e(f"buffer_load_dwordx2 v[14:15], v7, s[{FSRD}:{FSRD+3}], 0 offen{SC1}")
    k.e("s_mov_b64 exec, -1")
    poll(k, "L_by", 12, 5, 59, 60, 64, sleep=8)
    poll(k, "L_by2", 14, 7, None, 60, 17, sleep=8, preloaded=True)
    k.e("v_mov_b32 v6, 1")
    k.e(f"ds_write_b32 v2, v6 offset:{YOK}")
    k.e("L_b_go:")
    stamp(k, 1, 3); stamp(k, 2, 3)
    k.e(f"buffer_load_dwordx2 v[12:13], v3, s[44:47], s57 offen{SC1}")
    for i in range(3):
        if i == 2:
            k.e("s_cmp_ge_u32 s101, 2")
            k.e("s_cbranch_scc1 L_b_noy")
        k.e(f"s_add_u32 m0, s81, {YO + 1024*i}")
        k.e(f"buffer_load_dwordx4 v4, s[68:71], s58 offen{SC1} lds")
        if i < 2: k.e(f"s_add_u32 s58, s58, {4*8*RS}")
    k.e("L_b_noy:")
    k.e("v_mov_b32 v3, 1")
    k.e("s_waitcnt vmcnt(2)")
    k.e("v_mul_f32 v38, 0xbfb8aa3b, v13")
    k.e("v_mul_f32 v39, 0xbfb8aa3b, v13")
    k.e(f"ds_write_b64 v37, v[38:39] offset:{SO + 10240}")
    for i in range(10):
        a, b = 80 + 2*i, 81 + 2*i
        k.e(f"v_sub_f32 v{a}, v{XF+2*i}, v12")
        k.e(f"v_sub_f32 v{b}, v{XF+2*i+1}, v12")
        k.e(f"v_cvt_pk_bf16_f32 v{b}, v{a}, v{b}")
        unpack(k, a, b, b)
        k.e(f"v_mul_f32 v{a}, v{a}, v13")
        k.e(f"v_mul_f32 v{b}, v{b}, v13")
        k.e(f"v_cvt_pk_bf16_f32 v{b}, v{a}, v{b}")
        unpack(k, a, b, b)
        k.e(f"v_mul_f32 v{a}, v{a}, v13")
        k.e(f"v_mul_f32 v{b}, v{b}, v13")
        if i == 4:
            k.e("s_waitcnt vmcnt(0)")
            k.e("s_mov_b64 exec, 1")
            k.e(f"ds_add_u32 v2, v3 offset:{YCNT}")
            k.e("s_mov_b64 exec, -1")
    k.e("L_b_cnt:")
    k.e(f"ds_read_b32 v3, v2 offset:{YCNT}")
    for d in range(5):
        k.e(f"ds_read_b64_tr_b16 v[{YR+2*d}:{YR+2*d+1}], v36 offset:{YO + 2*(d&1)*CONV_LDS + (d>>1)*1024}")
    k.e("s_waitcnt lgkmcnt(0)")
    k.e("v_readfirstlane_b32 s59, v3")
    k.e("s_cmp_lt_u32 s59, 4")
    k.e("s_cbranch_scc1 L_b_cnt")
    for d in range(5):
        for h in range(2):
            s = SF + 4*d + 2*h
            unpack(k, s, s+1, YR + 2*d + h)
            k.e(f"v_mul_f32 v{s}, v{s}, v{80+4*d+2*h}")
            k.e(f"v_mul_f32 v{s+1}, v{s+1}, v{81+4*d+2*h}")
        if d < 3: k.e(f"ds_write_b128 v37, v[{SF+4*d}:{SF+4*d+3}] offset:{SO + 1024*d}")
    b_tail(k)

def stats_rows(k, s_idx):
    k.e("s_and_b32 s10, s84, 6")
    k.e("s_lshl_b32 s10, s10, 8")
    k.e("s_lshr_b32 s11, s84, 3")
    k.e("s_lshl_b32 s11, s11, 7")
    k.e("s_add_u32 s10, s10, s11")
    k.e("s_and_b32 s11, s84, 1")
    k.e("s_lshl_b32 s11, s11, 6")
    k.e("s_add_u32 s10, s10, s11")
    k.e(f"s_lshl_b32 s11, s{s_idx}, 3")
    k.e("s_add_u32 s52, s10, s11")

def kernel():
    STS = flag("STS", 1); RLD = flag("RLD", 2); RST = flag("RST", 6)
    assert STS < RLD and RLD + (3 if flag('LKS', 99) > RLD else 4) <= RST <= 7
    k = Kern(NAME)
    stamp_begin(k)
    if flag("FIXT"): k.e("s_memrealtime s[96:97]")
    k.e("s_cmp_ge_u32 s2, 256")
    k.e("s_cbranch_scc1 L_end")
    load_ptrs(k)
    k.e("v_lshrrev_b32 v1, 6, v0")
    k.e("v_readfirstlane_b32 s3, v1")
    k.e("v_and_b32 v0, 63, v0")
    for i in range(4): k.e(f"v_mov_b32 v{4+i}, 0")
    k.e("v_and_b32 v1, 3, v0")
    k.e("v_lshlrev_b32 v1, 4, v1")
    k.e(f"v_add_u32 v1, {CNT}, v1")
    k.e("ds_write_b128 v1, v[4:7]")
    k.e("s_and_b32 s4, s2, 7")
    k.e("s_lshr_b32 s5, s2, 3")
    k.e("s_lshr_b32 s10, s4, 1")
    k.e("s_and_b32 s11, s4, 1")
    k.e("s_lshl_b32 s6, s10, 2")
    k.e("s_and_b32 s7, s5, 3")
    k.e("s_add_u32 s6, s6, s7")
    k.e("s_lshl_b32 s9, s11, 2")
    k.e("s_add_u32 s9, s9, s7")
    k.e("s_lshr_b32 s8, s5, 2")
    k.e("s_mul_i32 s7, s11, 7")
    k.e("s_add_u32 s7, s7, s8")
    k.e("s_lshl_b32 s10, s10, 3")
    k.e("s_add_u32 s8, s8, s10")
    if flag("MAP81"):
        k.e("s_lshl_b32 s6, s4, 1")
        k.e("s_and_b32 s7, s5, 1")
        k.e("s_add_u32 s6, s6, s7")
        k.e("s_lshr_b32 s7, s5, 1")
        k.e("s_lshl_b32 s8, s4, 2")
        k.e("s_lshr_b32 s9, s5, 3")
        k.e("s_add_u32 s8, s8, s9")
        k.e("s_and_b32 s9, s5, 7")
    k.e("s_and_b32 s101, s3, 3")
    k.e(f"s_mul_i32 s81, s101, {CONV_LDS}")
    k.e(f"s_add_u32 s81, s81, {RB0}")
    def flags_srd():
        srd(k, FSRD, P_WS, FL_BYTES, FL_OFF)
        k.e(f"s_load_dwordx2 s[{TAG}:{TAG+1}], s[{FSRD}:{FSRD+1}], {EP}")
    k.e("s_cmp_ge_u32 s2, 224")
    k.e("s_cbranch_scc1 L_free")
    k.e("s_cmp_lt_u32 s3, 4")
    k.e("s_cbranch_scc1 L_a")
    k.e(f"s_setprio {flag('PBL', 1)}")
    r = Rec(); k1.loader_setup(r, 6, 7, 101)
    for x in r.lines[8:]: k.e(x)
    k.e("s_waitcnt lgkmcnt(0)")
    for x in r.lines[:8]: k.e(x)
    vm = Vm(); last = {}
    def put(x):
        k.e(x)
        return vm.op() if is_vmem(x) else None
    def dma(st):
        for x in k1.dma(st):
            q = put(x)
            if q is not None: last[st] = q
    if flag("SB", 1): k.e("s_barrier")
    dma(0)
    flags_srd()
    k.e(f"v_mov_b32 v250, {CNT}")
    k.e("s_lshl_b32 s10, s101, 2")
    k.e(f"s_add_u32 s10, s10, {CNT + PB}")
    k.e("v_mov_b32 v248, s10")
    u_addr(k)
    rel1_addr(k)
    k.e("s_lshl_b32 s82, s2, 1")
    k.e("s_add_u32 s53, s2, 448")
    k.e("s_cmp_lt_u32 s2, 64")
    k.e("s_cselect_b32 s52, s53, 1000")
    k.e("s_cselect_b32 s53, s53, s82")
    watch_addr(k, 224, 82, 53)
    k.e("s_add_u32 s82, s82, s101")
    k.e("s_cmp_eq_u32 s101, 2")
    k.e("s_cselect_b32 s82, s52, s82")
    k.e("s_cmp_eq_u32 s101, 3")
    k.e("s_cselect_b32 s82, 1000, s82")
    k.e("s_lshl_b32 s83, s2, 7")
    k.e("s_waitcnt lgkmcnt(0)")
    make_tag(k)
    dma(1)
    PV = 252
    PUBS = STS + flag("PUBD", 3); st_idx = None
    k.e("s_cmp_eq_u32 s101, 2")
    k.e(f"s_cselect_b32 s83, s83, {OOB}")
    k.e("v_mov_b32 v249, 1")
    HKE = flag("HKE", 2); hk = 0 if HKE < 8 else 2
    WPUB = RST + 2 if RST <= 5 else 99
    k.e("s_lshl_b32 s88, s2, 7")
    k.e(f"s_add_u32 s88, s88, {FB}")
    k.e("s_cmp_eq_u32 s101, 1")
    k.e(f"s_cselect_b32 s88, s88, {OOB}")
    for s in range(8):
        w = vm.wait(last[s])
        if s == PUBS: w = min(w, vm.wait(st_idx))
        if s == WPUB: w = min(w, vm.wait(rs_idx))
        k.e(f"s_waitcnt vmcnt({w})")
        k.e("s_barrier")
        if s == WPUB:
            publish(k, 88, 4); vm.op()
            stamp(k, 2, 1)
        if s == PUBS:
            publish(k, 83, 4); vm.op()
            stamp(k, 2, 0)
        if s == STS:
            for x in u_out():
                q = put(x)
                if q is not None: st_idx = q
        if s == RST:
            for x in rel1_reads(): k.e(x)
        LKS = flag("LKS", 99)
        if s < LKS: dma(s + 2)
        elif s == LKS:
            dma(s + 2); dma(s + 3)
        elif s + 3 < NSTAGE: dma(s + 3)
        if s == RST:
            for x in rel1_stores():
                q = put(x)
                if q is not None: rs_idx = q
        if s == RLD:
            for x in rel1_loads(): put(x)
        if s == HKE:
            k.e("s_min_u32 s11, s82, 640")
            conv.conv4_early(k, 11); vm.op(); vm.op()
    w8, w9 = vm.wait(last[8]), vm.wait(last[9]); wr = min(vm.wait(rs_idx), w9)
    W8P = flag('W8P', 1) and RST == 6
    if W8P: w8 = min(w8, vm.wait(rs_idx))
    k.e("s_cmp_lt_u32 s82, 640")
    k.e("s_cbranch_scc1 L_b_hasconv")
    k.e(f"s_waitcnt vmcnt({w8})")
    k.e("s_barrier")
    k.e("s_cmp_eq_u32 s101, 3")
    k.e("s_cbranch_scc1 L_b_w7")
    k.e(f"s_waitcnt vmcnt({w9})")
    for x in prog_write(248, 251, 1): k.e(x)
    k.e("s_waitcnt vmcnt(0)")
    for x in prog_write(248, 251, 2): k.e(x)
    k.e("s_branch L_b_aprep")
    k.e("L_b_w7:")
    pre = watch_pre(228, 224)
    k.e("s_setprio 3")
    if W8P:
        k.e("s_lshl_b32 s83, s2, 7")
        k.e(f"s_add_u32 s83, s83, {FB}")
        publish(k, 83, 4)
        stamp(k, 2, 1)
    k.e(pre[0])
    k.e(f"s_waitcnt vmcnt({w9 + 1 + W8P})")
    for x in prog_write(248, 251, 1): k.e(x)
    k.e("s_waitcnt vmcnt(0)")
    for x in prog_write(248, 251, 2): k.e(x)
    k.e(f"v_cmp_ne_u64 vcc, s[{TAG}:{TAG+1}], v[228:229]")
    k.e("s_cmp_eq_u64 vcc, 0")
    k.e("s_cbranch_scc0 L_b_n1")
    k.e(f"ds_write_b32 v250, v249 offset:{UOK}")
    k.e("L_b_n1:")
    if WPUB == 99 and not W8P:
        k.e("s_lshl_b32 s83, s2, 7")
        k.e(f"s_add_u32 s83, s83, {FB}")
        prog_wait(k, "L_b_rs", 250, PV, PB, 10, 2)
        publish(k, 83, 4)
        stamp(k, 2, 1)
    if AWP:
        poll(k, "L_bwa", 228, 225, None, 10, 64, preloaded=True)
        k.e(f"ds_write_b32 v250, v249 offset:{UOK}")
    else:
        for _ in range(flag("WSL", 0)): k.e("s_sleep 16")
        if flag("EVT", 12):
            poll(k, "L_bw0", 228, 225, None, 10, 64, preloaded=True)
            k.e(f"ds_write_b32 v250, v249 offset:{UOK}")
            prog_wait(k, "L_b_evt", 250, PV, PA, 10, flag("EVT", 12), sleep=2)
        k.e(pre[1])
        watch(k, "L_bw", 228, 224, flag("BSL", 4))
    stamp(k, 2, 2)
    k.e("s_cmp_lg_u32 s2, 0")
    k.e("s_cbranch_scc1 L_b_aprep")
    k.e("s_setprio 0")
    k.e("v_lshlrev_b32 v1, 7, v0")
    k.e(f"s_mov_b32 s83, {FB}")
    k.e("L_ep_next:")
    poll(k, "L_ep", 4, 1, 83, 10, 64, sleep=16)
    k.e("s_add_u32 s83, s83, 8192")
    k.e(f"s_cmp_lt_u32 s83, {FB + 32768}")
    k.e("s_cbranch_scc1 L_ep_next")
    k.e(f"s_mov_b32 s83, {EP}")
    publish(k, 83, 4)
    k.e("s_branch L_b_aprep")
    k.e("L_b_hasconv:")
    if hk: conv.conv2_setup(k, 82)
    else: conv.conv4_late(k, 82)
    k.e(f"s_waitcnt vmcnt({w8 + hk})")
    k.e("s_barrier")
    (conv.conv3_addr if C3 else conv.conv2_addr)(k, 81)
    k.e(f"s_waitcnt vmcnt({w9 + hk})")
    for x in prog_write(248, 251, 1): k.e(x)
    k.e(f"s_waitcnt vmcnt({wr + hk})")
    for x in prog_write(248, 251, 2): k.e(x)
    k.e("L_b_conv:")
    k.e(f"v_mov_b32 v250, {CNT}")
    (conv.conv3_dma if C3 else conv.conv2_dma)(k, 81)
    k.e(f"s_waitcnt vmcnt({8 if C3 else 16})")
    conv.conv2_fix(k)
    k.e("L_b_c2:")
    stamp(k, 1, 0)
    lds_wait(k, "L_b_uw", 250, 251, UOK, 80)
    conv.conv_setup_u(k, 82, 81, SC1)
    k.e("s_waitcnt vmcnt(0)")
    if flag("FEV", 1) == 1: k.e(f"ds_write_b32 v250, v250 offset:24")
    stamp(k, 1, 1); stamp(k, 3, 3)
    k.e(f"s_setprio {flag('PC', 1)}")
    (conv.conv3_main if C3 else conv.conv_main)(k, "f")
    stamp(k, 3, 0)
    k.e("s_setprio 3")
    conv.conv_epilogue(k, 82, SC1)
    stamp(k, 3, 1)
    k.e(f"s_lshl_b32 s10, s82, {YSH}")
    k.e(f"s_add_u32 s83, s10, {FY}")
    k.e("s_waitcnt vmcnt(0)")
    stamp(k, 3, 2)
    publish(k, 83, 4, nbytes=1 << YSH)
    stamp(k, 1, 2)
    k.e("L_b_aprep:")
    k.e("s_setprio 1")
    b_aprep(k)
    finish(k, 1)
    k.e("L_free:")
    for _ in range(flag("XFREE")): k.e("s_sleep 64")
    k.e("s_waitcnt lgkmcnt(0)")
    flags_srd()
    k.e("s_sub_u32 s84, s2, 224")
    k.e("s_mov_b32 s85, s3")
    k.e("s_cmp_eq_u32 s3, 7")
    k.e("s_cbranch_scc1 L_free_code" if flag("CPF", 1) else "s_cbranch_scc1 L_free_sync")
    k.e("s_cmp_lt_u32 s3, 4")
    k.e("s_cbranch_scc1 L_free_stats")
    k.e("s_setprio 2")
    k.e("s_mul_i32 s85, s84, 3")
    k.e("s_add_u32 s85, s85, s101")
    k.e("s_add_u32 s85, s85, 224")
    aux.emit_prep(k, 85, 81, SC1)
    make_tag(k)
    k.e("s_lshl_b32 s85, s85, 7")
    k.e("s_waitcnt vmcnt(0)")
    publish(k, 85, 4)
    k.e("s_branch L_free_b")
    if flag("CPF", 1):
        k.e("L_free_code:")
        k.e("s_setprio 3")
        k.e("s_getpc_b64 s[40:41]")
        k.e("L_pc:")
        k.e(f"s_sub_u32 s40, s40, L_pc-{NAME}")
        k.e("s_subb_u32 s41, s41, 0")
        k.e(f"s_mov_b32 s42, L_end-{NAME}")
        k.e("s_mov_b32 s43, 0x20000")
        k.e("v_lshlrev_b32 v1, 7, v0")
        k.e("s_mov_b32 s44, 0")
        for i in range(4):
            k.e(f"buffer_load_dword v{200+i}, v1, s[40:43], s44 offen")
            k.e("s_add_u32 s44, s44, 8192")
        k.e("s_setprio 0")
        if AGG:
            k.e("s_waitcnt lgkmcnt(0)")
            make_tag(k)
            k.e("s_cmp_ge_u32 s84, 10")
            k.e("s_cbranch_scc1 L_free_noagg")
            k.e("v_mul_u32_u24 v2, 1280, v0")
            k.e("s_lshl_b32 s85, s84, 7")
            for _ in range(flag("UAGS", 3)): k.e("s_sleep 40")
            k.e("s_setprio 3")
            poll(k, "L_agu", 4, 2, 85, 10, 32, sleep=8)
            k.e(f"s_add_u32 s85, s85, {FS}")
            publish(k, 85, 4)
            k.e("L_free_noagg:")
            k.e("s_barrier")
            k.e("s_branch L_free_b")
        k.e("s_waitcnt lgkmcnt(0)")
        make_tag(k)
        k.e("s_branch L_free_b")
    k.e("L_free_stats:")
    stats_rows(k, 85)
    aux.emit_stats(k, 52, SC1)
    k.e("s_add_u32 s85, s85, 4")
    k.e("s_cmp_lt_u32 s85, 8")
    k.e("s_cbranch_scc1 L_free_stats")
    k.e("L_free_sync:")
    k.e("s_waitcnt vmcnt(0) lgkmcnt(0)")
    k.e("s_barrier")
    make_tag(k)
    k.e("s_branch L_free_a")
    k.e("L_free_b:")
    k.e("s_setprio 0")
    k.e("s_lshl_b32 s82, s84, 2")
    k.e("s_add_u32 s82, s82, s101")
    k.e("s_add_u32 s82, s82, 512")
    conv.conv2_setup(k, 82)
    conv.conv3_addr(k, 81)
    k.e(f"v_mov_b32 v250, {CNT}")
    conv.conv3_dma(k, 81)
    k.e("s_waitcnt vmcnt(8)")
    conv.conv2_fix(k)
    k.e("s_barrier")
    k.e("s_setprio 1")
    k.e("s_branch L_b_c2")
    k.e("L_free_a:")
    g2_offsets(k)
    srd(k, 44, P_WS, NB_W, W2_OFF)
    k.e("v_lshlrev_b32 v1, 4, v0")
    k.e("v_add_u32 v2, 4096, v1")
    if flag("XLEAD"):
        k.e("v_lshlrev_b32 v30, 7, v0")
        k.e("s_mov_b32 s10, s77")
        for i in range(9):
            k.e(f"buffer_load_dword v{32+i}, v30, s[44:47], s10 offen{SC1}")
            k.e("s_add_u32 s10, s10, 8192")
    if AGG:
        k.e("s_sub_u32 s85, s84, 10")
        k.e("s_cmp_lt_u32 s85, 4")
        k.e("s_cselect_b32 s10, s3, 0")
        k.e("s_cmp_lg_u32 s10, 1")
        k.e("s_cbranch_scc1 L_free_noaw")
        k.e("s_setprio 3")
        k.e("v_lshlrev_b32 v8, 9, v0")
        k.e("s_lshl_b32 s85, s85, 7")
        k.e(f"s_add_u32 s86, s85, {FB}")
        poll(k, "L_agw", 10, 8, 86, 10, 54, sleep=flag("WAGS", 4))
        k.e(f"s_add_u32 s85, s85, {FS + 1280}")
        publish(k, 85, 10)
        k.e("L_free_noaw:")
    k.e("s_cmp_lg_u32 s3, 0")
    k.e("s_cbranch_scc1 L_g2w")
    k.e("s_lshl_b32 s83, s2, 7")
    k.e(f"s_add_u32 s83, s83, {FB}")
    publish(k, 83, 4)
    k.e("s_lshl_b32 s62, s84, 2")
    k.e("s_add_u32 s62, s62, 512")
    watch_addr(k, 16, 62, 62)
    if flag("FEV", 1):
        k.e(watch_pre(20, 16)[0])
        watch(k, "L_fw", 20, 16, 4, lambda: lds_wait(k, "L_fev", 20, 24, 24, 10, sleep=4))
    elif flag("FLATE"):
        k.e(watch_pre(20, 16)[0])
        watch(k, "L_fw", 20, 16, flag("FSL", 4), lambda: [k.e("s_sleep 32") for _ in range(flag("FLATE"))])
    else:
        for x in watch_pre(20, 16): k.e(x)
        watch(k, "L_fw", 20, 16, flag("FSL", 4))
    k.e("s_branch L_g2w")
    k.e("L_a:")
    k.e("s_setprio 3")
    prep_addr(k)
    k.e("s_waitcnt lgkmcnt(0)")
    prep_loads(k)
    if flag("SB", 1): k.e("s_barrier")
    k.e(f"s_setprio {flag('PAL', 0)}")
    flags_srd()
    g2_offsets(k)
    g1_setup(k)
    k.e("s_waitcnt lgkmcnt(0)")
    make_tag(k)
    prep_compute(k)
    if flag("FIXG"):
        srd(k, 12, P_DBG, 256)
        k.e("s_not_b32 s98, s96")
        k.e("v_mov_b32 v240, s98")
        k.e("v_mov_b32 v241, 0")
        k.e("s_cmp_lg_u32 s3, 0")
        k.e("s_cbranch_scc1 L_nog")
        k.e("s_mov_b64 exec, 1")
        k.e("buffer_atomic_umax v240, v241, s[12:15], 0 offen sc1")
        k.e("s_mov_b64 exec, -1")
        k.e("L_nog:")
    g1_phase(k)
    g2_phase(k)
    if flag("FIXT"):
        if flag("FIXG"):
            srd(k, 12, P_DBG, 256)
            k.e("v_mov_b32 v241, 0")
            k.e("buffer_load_dword v240, v241, s[12:15], 0 offen sc1")
            k.e("s_waitcnt vmcnt(0)")
            k.e("v_readfirstlane_b32 s96, v240")
            k.e("s_not_b32 s96, s96")
        k.e("L_fix:")
        k.e("s_memrealtime s[98:99]")
        k.e("s_waitcnt lgkmcnt(0)")
        k.e("s_sub_u32 s98, s98, s96")
        k.e(f"s_cmp_lt_u32 s98, {flag('FIXT')}")
        k.e("s_cbranch_scc1 L_fix")
    finish(k, 0)
    k.e("L_end:")
    k.e("s_endpgm")
    return k

if __name__ == "__main__":
    import sys
    hdr = open("recurrent_scan__ssm_conv_h3__dense_activation_relu__prompt.s.ref").read().split("; Override")[0]
    k = kernel()
    out = hdr + f"; @launch grid=(256,1,1) block=(512,1,1) lds={LDS_BYTES}\n"
    out += '.amdgcn_target "amdgcn-amd-amdhsa--gfx950"\n.text\n' + k.body() + '.section .rodata,"a"\n' + k.desc()
    open(sys.argv[1], "w").write(out)
```

```python
from common import *
import aux, conv, k1
from conv import interleave, CONV_LDS
from k1 import Vm, is_vmem, SLOT, WPART, NSTAGE, Rec

NAME = "recurrent_scan__ssm_conv_h3__dense_activation_relu__prompt_kernel"
SC1 = " sc1"
OOB = 0x40000000
RB0 = 65536
EA = 131072
TOP = RB0 + 4 * CONV_LDS
RLB = 135168
CNT = 163776
LDS_BYTES = 163840
YCNT, YOK, AUXOK, UOK, PROG, PA, PB = 0, 4, 12, 16, 20, 32, 48
XO, YO, SO = 0, 3072, 6144
HSH = 7; YSH = flag("YSH", 3)
FA, EP, FB, FH = 0, 40960, 45056, 77824
FY = FH + (1024 << 7)
FS = FY + (640 << 7)
FL_BYTES = FS + (16 << 7)
AGG = flag('AGG', 0)
TAG, FSRD = 90, 92
SPIN_MAX = 0x20000
NSTEP, NH, NW = 14, 4, 5
G_ACC, G_H = 8, 88
W_SL = [176, 196, 216, 236, 156]
C3 = flag("C3", 1)
EWI = flag("EWI", 0)
EPI = flag("EPI", 1)
AWP = flag("AWP", 0)
ST = flag("ST", 0)
MS = os.environ.get("MS", "")
ROLE = [None]
def stamp(k, setno, i):
    if ST == setno: stamp_mid(k, i)
    if MS == f"{setno}:{i}:{ROLE[0]}":
        k.e("s_memrealtime s[10:11]")
        k.e("s_waitcnt lgkmcnt(0)")
        k.e("s_sub_u32 s12, s10, s96")
def ms_end(k, tag):
    if not MS: return
    srd(k, 40, P_DBG, 256)
    k.e("v_mov_b32 v240, s12")
    k.e("v_mov_b32 v241, 0")
    k.e("s_mov_b64 exec, 1")
    k.e("buffer_atomic_umax v240, v241, s[40:43], 0 offen sc1")
    k.e("s_mov_b64 exec, -1")
    k.e("s_cmp_lg_u32 s100, 0")
    k.e(f"s_cbranch_scc1 L_mse{tag}")
    k.e("s_mov_b32 s13, 6000")
    for ph in range(2):
        k.e(f"L_ms{tag}{ph}:")
        k.e("s_memrealtime s[98:99]")
        k.e("s_waitcnt lgkmcnt(0)")
        k.e("s_sub_u32 s98, s98, s96")
        k.e("s_cmp_lt_u32 s98, s13")
        k.e(f"s_cbranch_scc1 L_ms{tag}{ph}")
        if ph == 0:
            k.e("buffer_load_dword v240, v241, s[40:43], 0 offen sc1")
            k.e("s_waitcnt vmcnt(0)")
            k.e("v_readfirstlane_b32 s14, v240")
            k.e("s_add_u32 s13, s13, s14")
    k.e(f"L_mse{tag}:")
def cstamp(k, name, i):
    if STAMP and os.environ.get("CK", "").split(",")[i:i+1] == [name]:
        stamp_mid(k, 2*i)
        k.e("s_memtime s[10:11]")
        k.e("s_waitcnt lgkmcnt(0)")
        k.e(f"s_mov_b32 s{13+2*i}, s10")
def cs(k, name):
    cstamp(k, name, 0); cstamp(k, name, 1)

def make_tag(k):
    k.e(f"s_mul_i32 s{TAG}, s{TAG}, 1664525")
    k.e(f"s_add_u32 s{TAG}, s{TAG}, 1013904223")
    k.e(f"s_mul_i32 s{TAG+1}, s{TAG+1}, 22695477")
    k.e(f"s_add_u32 s{TAG+1}, s{TAG+1}, 1")

HSC = '' if flag('HPLAIN') else SC1
def publish(k, s_off, va, SC1=SC1, nbytes=128):
    if not flag("FULLF", 1): nbytes = 8
    k.e(f"v_mov_b32 v{va}, s{TAG}")
    k.e(f"v_mov_b32 v{va+1}, s{TAG+1}")
    if nbytes == 8:
        k.e(f"v_mov_b32 v{va+2}, 0")
        k.e("s_mov_b64 exec, 1")
    else:
        k.e(f"v_lshlrev_b32 v{va+2}, 3, v0")
        k.e(f"s_bfm_b64 exec, {nbytes // 8}, 0")
    k.e(f"buffer_store_dwordx2 v[{va}:{va+1}], v{va+2}, s[{FSRD}:{FSRD+3}], s{s_off} offen{SC1}")
    k.e("s_mov_b64 exec, -1")

def poll(k, lbl, vd, voff, s_off, s_cnt, nlanes, sleep=4, preloaded=False):
    so = f"s{s_off}" if s_off is not None else "0"
    k.e(f"s_mov_b32 s{s_cnt}, 0")
    if nlanes < 64: k.e(f"s_bfm_b64 exec, {nlanes}, 0")
    if preloaded: k.e(f"s_branch {lbl}_chk")
    k.e(f"{lbl}:")
    k.e(f"buffer_load_dwordx2 v[{vd}:{vd+1}], v{voff}, s[{FSRD}:{FSRD+3}], {so} offen{SC1}")
    k.e("s_waitcnt vmcnt(0)")
    k.e(f"{lbl}_chk:")
    k.e(f"v_cmp_ne_u64 vcc, s[{TAG}:{TAG+1}], v[{vd}:{vd+1}]")
    k.e("s_and_b64 exec, exec, vcc")
    k.e(f"s_cbranch_scc0 {lbl}_ok")
    k.e(f"s_sleep {sleep}")
    k.e(f"s_add_u32 s{s_cnt}, s{s_cnt}, 1")
    k.e(f"s_cmp_lt_u32 s{s_cnt}, {SPIN_MAX:#x}")
    k.e(f"s_cbranch_scc1 {lbl}")
    k.e(f"{lbl}_ok:")
    k.e("s_mov_b64 exec, -1")

def lds_wait(k, lbl, vaddr, vtmp, off, s_tmp, sleep=2):
    k.e(f"{lbl}:")
    k.e(f"ds_read_b32 v{vtmp}, v{vaddr} offset:{off}")
    k.e("s_waitcnt lgkmcnt(0)")
    k.e(f"v_readfirstlane_b32 s{s_tmp}, v{vtmp}")
    k.e(f"s_cmp_lg_u32 s{s_tmp}, 0")
    k.e(f"s_cbranch_scc1 {lbl}_ok")
    k.e(f"s_sleep {sleep}")
    k.e(f"s_branch {lbl}")
    k.e(f"{lbl}_ok:")

def prog_write(vaddr, vtmp, val):
    return [f"v_mov_b32 v{vtmp}, {val}", f"s_mov_b64 exec, 1\nds_write_b32 v{vaddr}, v{vtmp}\ns_mov_b64 exec, -1"]
def prog_min(vd, s_tmp):
    return [f"v_min3_u32 v{vd}, v{vd}, v{vd+1}, v{vd+2}", f"v_min_u32 v{vd}, v{vd}, v{vd+3}", f"v_readfirstlane_b32 s{s_tmp}, v{vd}"]
def prog_spin(k, lbl, vcnt, vd, off, s_tmp, need, sleep=0):
    k.e(f"s_cmp_ge_u32 s{s_tmp}, {need}")
    k.e(f"s_cbranch_scc1 {lbl}_ok")
    k.e(f"{lbl}:")
    if sleep: k.e(f"s_sleep {sleep}")
    k.e(f"ds_read_b128 v[{vd}:{vd+3}], v{vcnt} offset:{off}")
    k.e("s_waitcnt lgkmcnt(0)")
    for x in prog_min(vd, s_tmp): k.e(x)
    k.e(f"s_cmp_lt_u32 s{s_tmp}, {need}")
    k.e(f"s_cbranch_scc1 {lbl}")
    k.e(f"{lbl}_ok:")
def prog_wait(k, lbl, vcnt, vd, off, s_tmp, need, sleep=1):
    k.e(f"s_mov_b32 s{s_tmp}, 0")
    prog_spin(k, lbl, vcnt, vd, off, s_tmp, need, sleep)

def watch_addr(k, va, s_cha, s_chb):
    if AGG:
        k.e("s_lshr_b32 s10, s9, 1")
        k.e(f"s_add_u32 s10, s10, {10 + (FS >> 7)}")
        k.e("s_lshl_b32 s10, s10, 7")
        k.e(f"v_mov_b32 v{va}, s10")
        k.e(f"s_lshr_b32 s10, s{s_cha}, 6")
        k.e(f"s_lshr_b32 s11, s{s_chb}, 6")
        k.e(f"v_mov_b32 v{va+1}, s11")
        k.e(f"v_writelane_b32 v{va+1}, s10, 0")
        k.e(f"v_lshlrev_b32 v{va+1}, 7, v{va+1}")
        k.e(f"v_add_u32 v{va+1}, {FS}, v{va+1}")
        return
    k.e("s_lshr_b32 s10, s9, 1")
    k.e(f"s_add_u32 s10, s10, {FB >> 7}")
    k.e(f"v_lshl_add_u32 v{va}, v0, 2, s10")
    k.e(f"v_mov_b32 v{va+1}, s10")
    k.e("v_cmp_gt_u32 vcc, 54, v0")
    k.e(f"v_cndmask_b32 v{va}, v{va+1}, v{va}, vcc")
    k.e(f"v_lshlrev_b32 v{va}, 7, v{va}")
    k.e(f"s_lshr_b32 s10, s{s_cha}, 6")
    k.e(f"s_lshr_b32 s11, s{s_chb}, 6")
    k.e(f"v_mov_b32 v{va+1}, s11")
    k.e(f"v_mov_b32 v{va+2}, s10")
    k.e("v_cmp_gt_u32 vcc, 32, v0")
    k.e(f"v_cndmask_b32 v{va+1}, v{va+1}, v{va+2}, vcc")
    k.e(f"v_and_b32 v{va+2}, 31, v0")
    k.e(f"v_mad_u32_u24 v{va+1}, v{va+2}, 10, v{va+1}")
    k.e(f"v_lshlrev_b32 v{va+1}, 7, v{va+1}")
def watch_pre(vd, va):
    return [f"buffer_load_dwordx2 v[{vd}:{vd+1}], v{va+1}, s[{FSRD}:{FSRD+3}], 0 offen{SC1}",
            f"buffer_load_dwordx2 v[{vd+2}:{vd+3}], v{va}, s[{FSRD}:{FSRD+3}], 0 offen{SC1}"]
def watch(k, lbl, vd, va, sl=4, late=None):
    k.e("s_waitcnt vmcnt(0)")
    poll(k, lbl + "a", vd, va + 1, None, 10, 64, sleep=sl, preloaded=True)
    k.e(f"v_mov_b32 v{vd}, {CNT}")
    k.e(f"v_mov_b32 v{vd+1}, 1")
    k.e(f"ds_write_b32 v{vd}, v{vd+1} offset:{UOK}")
    if late: late()
    poll(k, lbl + "b", vd + 2, va, None, 10, 64, sleep=sl, preloaded=not late)
    k.e(f"ds_write_b32 v{vd}, v{vd+1} offset:{AUXOK}")

def xo_offsets(k, vb, t1, t2):
    k.e("s_lshl_b32 s53, s8, 2")
    k.e("s_add_u32 s53, s53, s101")
    k.e("s_mul_i32 s54, s53, 20480")
    k.e("s_mul_i32 s55, s9, 160")
    k.e("s_add_u32 s54, s54, s55")
    for i in range(3):
        k.e(f"v_add_u32 v{t1}, {64*i}, v0")
        k.e(f"v_mul_u32_u24 v{t2}, 6554, v{t1}")
        k.e(f"v_lshrrev_b32 v{t2}, 16, v{t2}")
        k.e(f"v_mul_u32_u24 v{t2}, 1120, v{t2}")
        k.e(f"v_lshl_add_u32 v{vb+i}, v{t1}, 4, v{t2}")
    k.e(f"v_mov_b32 v{t2}, {OOB}")
    k.e("v_cmp_gt_u32 vcc, 32, v0")
    k.e(f"v_cndmask_b32 v{vb+2}, v{t2}, v{vb+2}, vcc")

def unit_ids(k, s_rb, s_cgp):
    k.e(f"s_mul_i32 s{s_rb}, s2, 6554")
    k.e(f"s_lshr_b32 s{s_rb}, s{s_rb}, 16")
    k.e(f"s_mul_i32 s{s_cgp}, s{s_rb}, 10")
    k.e(f"s_sub_u32 s{s_cgp}, s2, s{s_cgp}")
def prep_addr(k):
    unit_ids(k, 52, 53)
    k.e("s_lshl_b32 s54, s52, 2")
    k.e("s_add_u32 s54, s54, s101")
    k.e("s_mul_i32 s54, s54, 20480")
    k.e("s_lshl_b32 s55, s53, 7")
    k.e("s_add_u32 s54, s54, s55")
    k.e("v_lshrrev_b32 v1, 3, v0")
    k.e("v_mul_u32_u24 v2, 1280, v1")
    k.e("v_and_b32 v3, 7, v0")
    k.e("v_lshl_add_u32 v2, v3, 4, v2")
    if flag("XNOPL"): k.e(f"s_mov_b32 s54, {OOB}")
    k.e("v_add_u32 v200, s54, v2")
    k.e("v_subrev_u32 v201, 3840, v200")
    k.e(f"v_add_u32 v202, {10240 - 3840 - 1024}, v200")
    k.e(f"v_add_u32 v203, {20480 - 3840 - 2048}, v200")
    k.e(f"v_mov_b32 v6, {OOB}")
    k.e("v_cmp_gt_u32 vcc, 24, v0")
    k.e("v_cndmask_b32 v203, v6, v203, vcc")
    k.e(f"v_add_u32 v204, {10240 - 1024}, v200")
    k.e("s_mul_i32 s56, s101, 5120")
    k.e(f"s_add_u32 s56, s56, {EA}")
    k.e("v_and_b32 v7, 31, v0")
    k.e("s_lshl_b32 s55, s53, 9")
    k.e("v_lshl_add_u32 v205, v7, 4, s55")
def prep_loads(k):
    srd(k, 40, P_K, NB_X)
    k.e("s_mov_b32 m0, s56")
    k.e("buffer_load_dwordx4 v201, s[40:43], 0 offen lds")
    k.e("buffer_load_dwordx4 v202, s[40:43], 0 offen offset:1024 lds")
    k.e("buffer_load_dwordx4 v203, s[40:43], 0 offen offset:2048 lds")
    srd(k, 44, P_V, NB_X)
    k.e("s_add_u32 m0, s56, 3072")
    k.e("buffer_load_dwordx4 v200, s[44:47], 0 offen lds")
    k.e("buffer_load_dwordx4 v204, s[44:47], 0 offen offset:1024 lds")
    srd(k, 48, P_SH, D * 8)
    k.e("buffer_load_dwordx4 v[212:215], v205, s[48:51], 0 offen")
    k.e("v_lshrrev_b32 v9, 5, v0")
    k.e("v_lshlrev_b32 v10, 10, v9")
    k.e("v_lshl_add_u32 v10, v7, 2, v10")
    k.e("v_add_u32 v209, s56, v10")
    k.e("v_sub_u32 v11, 1, v9")
    k.e("v_lshlrev_b32 v11, 4, v11")
    k.e("v_lshl_add_u32 v11, v7, 6, v11")
    k.e("v_add_u32 v210, s56, v11")
def prep_compute(k):
    KR, VR, TP, KU, VU, KV, OUT = 112, 124, 132, 140, 216, 180, 184
    k.e("s_waitcnt vmcnt(0)")
    for j in range(11): k.e(f"ds_read_b32 v{KR+j}, v209 offset:{128*j}")
    for j in range(8): k.e(f"ds_read_b32 v{VR+j}, v209 offset:{3072 + 128*j}")
    for c in range(2):
        unpack(k, TP + 0 + c, TP + 2 + c, 212 + 2*c)
        unpack(k, TP + 4 + c, TP + 6 + c, 213 + 2*c)
    k.e("s_waitcnt lgkmcnt(8)")
    for j in range(11): unpack(k, KU + 2*j, KU + 2*j + 1, KR + j)
    k.e("s_waitcnt lgkmcnt(0)")
    for j in range(8): unpack(k, VU + 2*j, VU + 2*j + 1, VR + j)
    for r in range(8):
        d = KV + 2*(r & 1)
        for j in (3, 2, 1, 0):
            w = KU + 2*(r + 3 - j); t = TP + 2*j
            if j == 3: k.e(f"v_pk_mul_f32 v[{d}:{d+1}], v[{w}:{w+1}], v[{t}:{t+1}]")
            else: k.e(f"v_pk_fma_f32 v[{d}:{d+1}], v[{w}:{w+1}], v[{t}:{t+1}], v[{d}:{d+1}]")
        k.e(f"v_pk_mul_f32 v[{d}:{d+1}], v[{d}:{d+1}], v[{VU+2*r}:{VU+2*r+1}]")
        if r & 1:
            for c in range(2):
                k.e(f"v_cvt_pk_bf16_f32 v{OUT+4*c+3-r//2}, v{KV+2+c}, v{KV+c}")
    for c in range(2):
        k.e(f"ds_write_b128 v210, v[{OUT+4*c}:{OUT+4*c+3}] offset:{32*c}")

def b_aux_addr(k):
    srd(k, 84, P_W2, NB_W)
    srd(k, 44, P_WS, NB_W, W2_OFF)
    srd(k, 40, P_WS, NB_T, UR_OFF)
    k.e("s_lshr_b32 s57, s2, 2")
    k.e("s_and_b32 s58, s2, 3")
    k.e("s_mul_i32 s59, s57, 40960")
    k.e("s_mul_i32 s60, s58, 320")
    k.e("s_add_u32 s59, s59, s60")
    k.e("s_lshl_b32 s60, s101, 6")
    k.e("s_lshl_b32 s61, s101, 10")
    for i in range(3):
        k.e("v_add_u32 v9, s60, v0")
        if i: k.e(f"v_add_u32 v9, {256*i}, v9")
        k.e("v_mul_u32_u24 v10, 52429, v9")
        k.e("v_lshrrev_b32 v10, 20, v10")
        k.e("v_mul_u32_u24 v10, 960, v10")
        k.e(f"v_lshl_add_u32 v{206+i}, v9, 4, v10")
    k.e("s_cmp_ge_u32 s101, 2")
    k.e(f"s_cselect_b32 s60, {OOB}, 0")
    k.e("v_add_u32 v208, s60, v208")
    k.e(f"s_add_u32 s62, s61, {EA + 20480 + 8192}")
    k.e("s_cmp_ge_u32 s101, 2")
    k.e(f"s_cselect_b32 s62, {EA + 30720}, s62")
def b_aux_addr2(k):
    k.e("s_lshr_b32 s10, s101, 1")
    k.e("s_and_b32 s11, s101, 1")
    k.e("s_mul_i32 s60, s10, 5")
    k.e("s_mul_i32 s54, s11, 3")
    k.e("s_add_u32 s60, s60, s54")
    k.e("s_lshl_b32 s60, s60, 5")
    k.e(f"s_add_u32 s60, s60, {EA + 20480}")
    k.e("v_lshrrev_b32 v11, 2, v0")
    k.e("v_mul_u32_u24 v11, 320, v11")
    k.e("v_and_b32 v12, 3, v0")
    k.e("v_lshl_add_u32 v11, v12, 3, v11")
    k.e("v_add_u32 v214, s60, v11")
    k.e("s_lshl_b32 s60, s58, 1")
    k.e("s_add_u32 s60, s60, s10")
    k.e(f"s_mul_i32 s89, s60, {NT}")
    k.e("s_add_u32 s89, s89, s57")
    k.e("s_mul_i32 s89, s89, 5120")
    k.e("s_lshl_b32 s54, s54, 10")
    k.e("s_add_u32 s89, s89, s54")
    k.e("s_cmp_ge_u32 s2, 216")
    k.e(f"s_cselect_b32 s89, {OOB}, s89")
    if flag("XNOW"): k.e(f"s_mov_b32 s89, {OOB}")
    k.e("v_lshlrev_b32 v215, 4, v0")
    k.e("s_cmp_eq_u32 s11, 1")
    k.e(f"s_cselect_b32 s54, {OOB}, 0")
    k.e("v_add_u32 v216, s54, v215")
    unit_ids(k, 52, 53)
    k.e("v_lshrrev_b32 v1, 3, v0")
    k.e("v_and_b32 v3, 7, v0")
    k.e("v_lshrrev_b32 v11, 1, v3")
    k.e("v_sub_u32 v11, 3, v11")
    k.e("v_mul_u32_u24 v11, 5120, v11")
    k.e("v_lshl_add_u32 v11, v1, 5, v11")
    k.e("v_and_b32 v12, 1, v3")
    k.e("v_lshl_add_u32 v11, v12, 4, v11")
    k.e("s_lshl_b32 s55, s101, 9")
    k.e(f"s_add_u32 s55, s55, {EA}")
    k.e("v_add_u32 v211, s55, v11")
    k.e(f"v_mul_u32_u24 v232, {RS}, v1")
    k.e("v_lshl_add_u32 v232, v3, 4, v232")
    k.e(f"v_add_u32 v233, {8*RS}, v232")
    k.e("s_lshl_b32 s63, s53, 2")
    k.e("s_add_u32 s63, s63, s101")
    k.e(f"s_mul_i32 s63, s63, {16*RS}")
    k.e("s_lshl_b32 s55, s52, 7")
    k.e("s_sub_u32 s55, 3968, s55")
    k.e("s_add_u32 s63, s63, s55")
    if flag("XNOST"):
        k.e(f"s_mov_b32 s63, {OOB}")
        k.e(f"s_mov_b32 s89, {OOB}")
def rel_loads():
    return [f"s_add_u32 m0, s61, {EA + 20480}",
            "buffer_load_dwordx4 v206, s[84:87], s59 offen lds",
            f"s_add_u32 m0, s61, {EA + 20480 + 4096}",
            "buffer_load_dwordx4 v207, s[84:87], s59 offen lds",
            "s_mov_b32 m0, s62",
            "buffer_load_dwordx4 v208, s[84:87], s59 offen lds"]
def aux_out():
    L = [f"ds_read_b128 v[{100+4*i}:{103+4*i}], v211 offset:{256*i}" for i in range(2)]
    for i in range(3):
        L.append(f"ds_read_b64_tr_b16 v[{188+4*i}:{189+4*i}], v214 offset:{32*i}")
        L.append(f"ds_read_b64_tr_b16 v[{190+4*i}:{191+4*i}], v214 offset:{32*i + 5120}")
    L.append("s_waitcnt lgkmcnt(0)")
    L += [f"buffer_store_dwordx4 v[{100+4*i}:{103+4*i}], v{232+i}, s[40:43], s63 offen{SC1}" for i in range(2)]
    L += [f"buffer_store_dwordx4 v[{188+4*i}:{191+4*i}], v{216 if i == 2 else 215}, s[44:47], s89 offen offset:{1024*i}{SC1}" for i in range(3)]
    return L

def rel1_addr(k):
    srd(k, 84, P_W2, NB_W)
    srd(k, 44, P_WS, NB_W, W2_OFF)
    k.e("s_lshr_b32 s57, s2, 2")
    k.e("s_and_b32 s58, s2, 3")
    k.e("s_mul_i32 s59, s57, 40960")
    k.e("s_mul_i32 s60, s58, 320")
    k.e("s_add_u32 s59, s59, s60")
    k.e("s_lshl_b32 s60, s101, 6")
    k.e("s_lshl_b32 s61, s101, 10")
    for i in range(3):
        k.e("v_add_u32 v9, s60, v0")
        if i: k.e(f"v_add_u32 v9, {256*i}, v9")
        k.e("v_mul_u32_u24 v10, 52429, v9")
        k.e("v_lshrrev_b32 v10, 20, v10")
        k.e("v_mul_u32_u24 v10, 960, v10")
        k.e(f"v_lshl_add_u32 v{110+i}, v9, 4, v10")
    k.e("s_cmp_ge_u32 s101, 2")
    k.e(f"s_cselect_b32 s60, {OOB}, 0")
    k.e("v_add_u32 v112, s60, v112")
    k.e("v_lshrrev_b32 v11, 2, v0")
    k.e("v_mul_u32_u24 v11, 320, v11")
    k.e("v_and_b32 v12, 3, v0")
    k.e("v_lshl_add_u32 v11, v12, 3, v11")
    k.e("s_lshr_b32 s10, s101, 1")
    k.e("s_and_b32 s11, s101, 1")
    k.e("s_mul_i32 s60, s10, 5")
    k.e("s_mul_i32 s54, s11, 3")
    k.e("s_add_u32 s60, s60, s54")
    k.e("s_lshl_b32 s60, s60, 5")
    k.e(f"s_add_u32 s60, s60, {RLB}")
    k.e("v_add_u32 v214, s60, v11")
    k.e("s_lshl_b32 s60, s58, 1")
    k.e("s_add_u32 s60, s60, s10")
    k.e(f"s_mul_i32 s89, s60, {NT}")
    k.e("s_add_u32 s89, s89, s57")
    k.e("s_mul_i32 s89, s89, 5120")
    k.e("s_lshl_b32 s54, s54, 10")
    k.e("s_add_u32 s89, s89, s54")
    k.e("s_cmp_ge_u32 s2, 216")
    k.e(f"s_cselect_b32 s89, {OOB}, s89")
    if flag("XNOW"): k.e(f"s_mov_b32 s89, {OOB}")
    k.e("v_lshlrev_b32 v215, 4, v0")
    k.e("s_cmp_eq_u32 s11, 1")
    k.e(f"s_cselect_b32 s54, {OOB}, 0")
    k.e("v_add_u32 v216, s54, v215")
def rel1_loads():
    L = []
    for i in range(3):
        L.append(f"s_add_u32 m0, s61, {RLB + 4096*i}")
        L.append(f"buffer_load_dwordx4 v{110+i}, s[84:87], s59 offen lds")
    return L
def rel1_reads():
    L = []
    for i in range(3):
        L.append(f"ds_read_b64_tr_b16 v[{188+4*i}:{189+4*i}], v214 offset:{32*i}")
        L.append(f"ds_read_b64_tr_b16 v[{190+4*i}:{191+4*i}], v214 offset:{32*i + 5120}")
    return L
def rel1_stores():
    return ["s_waitcnt lgkmcnt(0)"] + [f"buffer_store_dwordx4 v[{188+4*i}:{191+4*i}], v{216 if i == 2 else 215}, s[44:47], s89 offen offset:{1024*i}{SC1}" for i in range(3)]
def u_addr(k):
    srd(k, 40, P_WS, NB_T, UR_OFF)
    unit_ids(k, 52, 53)
    k.e("v_lshrrev_b32 v1, 3, v0")
    k.e("v_and_b32 v3, 7, v0")
    k.e("v_lshrrev_b32 v11, 1, v3")
    k.e("v_sub_u32 v11, 3, v11")
    k.e("v_mul_u32_u24 v11, 5120, v11")
    k.e("v_lshl_add_u32 v11, v1, 5, v11")
    k.e("v_and_b32 v12, 1, v3")
    k.e("v_lshl_add_u32 v11, v12, 4, v11")
    k.e("s_lshl_b32 s55, s101, 9")
    k.e(f"s_add_u32 s55, s55, {EA}")
    k.e("v_add_u32 v211, s55, v11")
    k.e(f"v_mul_u32_u24 v232, {RS}, v1")
    k.e("v_lshl_add_u32 v232, v3, 4, v232")
    k.e(f"v_add_u32 v233, {8*RS}, v232")
    k.e("s_lshl_b32 s63, s53, 2")
    k.e("s_add_u32 s63, s63, s101")
    k.e(f"s_mul_i32 s63, s63, {16*RS}")
    k.e("s_lshl_b32 s55, s52, 7")
    k.e("s_sub_u32 s55, 3968, s55")
    k.e("s_add_u32 s63, s63, s55")
def u_out():
    L = [f"ds_read_b128 v[{100+4*i}:{103+4*i}], v211 offset:{256*i}" for i in range(2)]
    L.append("s_waitcnt lgkmcnt(0)")
    L += [f"buffer_store_dwordx4 v[{100+4*i}:{103+4*i}], v{232+i}, s[40:43], s63 offen{SC1}" for i in range(2)]
    return L

def g2_offsets(k):
    k.e("s_mul_i32 s10, s101, 14")
    k.e("s_cmp_eq_u32 s101, 3")
    k.e("s_cselect_b32 s10, 41, s10")
    k.e(f"s_mul_i32 s11, s8, {NT}")
    k.e("s_add_u32 s11, s11, s10")
    k.e("s_lshl_b32 s76, s11, 12")
    k.e(f"s_mul_i32 s11, s9, {NT}")
    k.e("s_add_u32 s11, s11, s10")
    k.e("s_mul_i32 s77, s11, 5120")
    k.e("s_cmp_ge_u32 s101, 2")
    k.e(f"s_cselect_b32 s79, {OOB}, 0")
    k.e("s_mul_i32 s75, s101, 7")
    k.e("s_min_u32 s75, s75, 20")
    k.e("s_lshl_b32 s11, s8, 5")
    k.e("s_add_u32 s75, s75, s11")
    k.e(f"s_lshl_b32 s75, s75, {HSH}")
    k.e(f"s_add_u32 s75, s75, {FH}")
    k.e("s_lshl_b32 s74, s101, 14")
    k.e("s_min_u32 s10, s10, 40")
    k.e("s_lshl_b32 s10, s10, 2")
    k.e("s_lshr_b32 s11, s9, 1")
    k.e("s_add_u32 s10, s10, s11")
    k.e("s_lshl_b32 s10, s10, 7")
    k.e(f"s_add_u32 s71, s10, {FB}")
LSTEPS = [int(x) for x in os.environ.get("LSTEPS", "5,8,11").split(",")]
def soff(dst, base, step, mul):
    st = step
    if flag("XHIT") & 1 and mul == 4096: st = step % 2
    if flag("XHIT") & 2 and mul == 5120: st = step % 2
    L = [f"s_add_u32 s{dst}, s{base}, {st * mul}"]
    if step == NSTEP - 1: L.append(f"s_add_u32 s{dst}, s{dst}, s79")
    return L
def w_loads(step):
    b = W_SL[step % NW]
    L = soff(73, 77, step, 5120)
    L += [f"buffer_load_dwordx4 v[{b+4*d}:{b+4*d+3}], v1, s[44:47], s73 offen offset:{1024*d}{SC1}" for d in range(4)]
    L.append(f"buffer_load_dwordx4 v[{b+16}:{b+19}], v2, s[44:47], s73 offen{SC1}")
    return L
def h_loads(step):
    b = G_H + 16 * (step % NH)
    L = soff(72, 76, step, 4096)
    L += [f"buffer_load_dwordx4 v[{b+4*m}:{b+4*m+3}], v{3+m}, s[40:43], s72 offen{SC1}" for m in range(4)]
    return L
def w_lds_reads(step):
    b = W_SL[step % NW]
    return [f"ds_read_b128 v[{b+4*d}:{b+4*d+3}], v7 offset:{LSTEPS.index(step)*5120 + 1024*d}" for d in range(5)]
def g2_mfmas(step, order=None):
    b = G_H + 16 * (step % NH); wb = W_SL[step % NW]
    L = []
    for d, m in (order or [(d, m) for d in range(5) for m in range(4)]):
        a = G_ACC + 16*d + 4*m
        c = "0" if step == 0 else f"v[{a}:{a+3}]"
        L.append(f"v_mfma_f32_16x16x32_bf16 v[{a}:{a+3}], v[{wb+4*d}:{wb+4*d+3}], v[{b+4*m}:{b+4*m+3}], {c}")
    return L

def g2_phase(k):
    for s in range(EWI or flag("NP", 0), NW):
        for x in w_loads(s): k.e(x)
    srd(k, 40, P_WS, 32 * NT * 4096, H_OFF)
    k.e("s_lshl_b32 s52, s101, 10")
    k.e("v_add_u32 v3, s52, v1")
    for m in range(1, 4): k.e(f"v_xor_b32 v{3+m}, {1024*m}, v3")
    k.e(f"v_lshlrev_b32 v9, {HSH}, v0")
    EPOL = flag("EPOL", 8); left = 15
    for li, s in enumerate(LSTEPS):
        for x in soff(78, 77, s, 5120): k.e(x)
        for d in range(5):
            if left == EPOL:
                k.e("s_bfm_b64 exec, 7, 0")
                k.e(f"buffer_load_dwordx2 v[10:11], v9, s[{FSRD}:{FSRD+3}], s75 offen{SC1}")
                k.e("s_mov_b64 exec, -1")
            left -= 1
            if d in (0, 4): k.e(f"s_add_u32 m0, s74, {li*5120 + 1024*d}")
            if d < 4: k.e(f"buffer_load_dwordx4 v1, s[44:47], s78 offen offset:{1024*d}{SC1} lds")
            else: k.e(f"buffer_load_dwordx4 v2, s[44:47], s78 offen{SC1} lds")
    k.e("v_add_u32 v7, s74, v1")
    k.e(f"v_mov_b32 v152, {CNT}")
    k.e(f"s_waitcnt vmcnt({EPOL})")
    poll(k, "L_hpoll", 10, 9, 75, 58, 7, sleep=2, preloaded=True)
    stamp(k, 1, 2); cs(k, "rdy")
    vm = Vm(); need = {}
    NH0 = flag("NH0", 3)
    for s in range(NH0):
        for x in h_loads(s):
            k.e(x)
            if is_vmem(x): need[("h", s)] = vm.op()
    def groups(L):
        G = []; cur = []
        for x in L:
            cur.append(x)
            if is_vmem(x): G.append(cur); cur = []
        return G
    LA = flag("LA", 2); R = flag("RATE", 6)
    qh = [(s - (NH - 1), s - LA, "h", s, g) for s in range(NH0, NSTEP) for g in groups(h_loads(s))]
    qw = [(s - (NW - 1), s - LA, "w", s, g) for s in range(NW, NSTEP) if s not in LSTEPS for g in groups(w_loads(s))]
    for s in range(NSTEP):
        idx = max(need[("h", s)], need.get(("w", s), -1))
        lg = " lgkmcnt(0)" if (s in LSTEPS or s == NSTEP - 1) else ""
        k.e(f"s_waitcnt vmcnt({vm.wait(idx)}){lg}")
        if s in (0, 3, 7, 10): stamp(k, 4, (0, 3, 7, 10).index(s))
        if s in (10, 12, 13): stamp(k, 5, (10, 12, 13).index(s))
        if s == NSTEP - 1: break
        fill = []
        while (qh or qw):
            cand = [q for q in (qh, qw) if q and q[0][0] <= s]
            if not cand: break
            q = min(cand, key=lambda q: q[0][1])
            if len(fill) >= R and q[0][1] > s: break
            fill.append(q.pop(0))
        extra = []
        if s == flag("YAT", 7): extra.append(f"ds_write_b32 v152, v152 offset:{PROG}")
        if s + 2 in LSTEPS: extra += w_lds_reads(s + 2)
        if s == 12:
            r = Rec(); tail_addr(r); extra += ["\n".join(r.lines[i:i+2]) for i in range(0, len(r.lines), 2)]
        n = len(fill); fi = 0; ei = 0
        for i, x in enumerate(g2_mfmas(s)):
            k.e(x)
            if fi < n and i >= (fi * 18) // n:
                for y in fill[fi][4]: k.e(y)
                need[(fill[fi][2], fill[fi][3])] = vm.op(); fi += 1
            elif ei < len(extra):
                k.e(extra[ei]); ei += 1
        assert fi == n
        for y in extra[ei:]: k.e(y)
    assert not qh and not qw
    k.e("s_setprio 2")
    order = [(3, 0), (4, 0)] + [(d, m) for m in (1, 2, 3) for d in range(5)] + [(0, 0), (1, 0), (2, 0)]
    wr = [f"ds_write_b128 v{T+8}, v[{G_ACC+16*d}:{G_ACC+16*d+3}] offset:{OWN + 1024*(d-3)}" for d in (3, 4)]
    wr += [f"ds_write_b128 v7, v[{G_ACC+16*d+4*m}:{G_ACC+16*d+4*m+3}] offset:{(m-1)*5120 + 1024*d}" for d, m in order[2:17]]
    k.e("s_cmp_ge_u32 s101, 2")
    k.e("s_cbranch_scc1 L_g2_short")
    for x in interleave(g2_mfmas(NSTEP - 1, order), wr, start=6): k.e(x)
    k.e("s_branch L_g2_join")
    k.e("L_g2_short:")
    k.e("s_nop 7")
    for x in wr: k.e(x)
    k.e("L_g2_join:")
    stamp(k, 1, 3); cs(k, "mend")
    g2_tail(k)

T = 156
OWN = SO + 3072
assert C3
def tail_addr(k):
    srd(k, 48, P_OUT, NB_X)
    k.e("s_lshl_b32 s53, s8, 2")
    k.e("s_add_u32 s53, s53, s101")
    k.e("s_mul_i32 s54, s53, 20480")
    k.e("s_mul_i32 s55, s9, 160")
    k.e("s_add_u32 s54, s54, s55")
    for i in range(2):
        k.e(f"v_add_u32 v{T+3}, {64*i}, v0")
        k.e(f"v_mul_u32_u24 v{T+4}, 10923, v{T+3}")
        k.e(f"v_lshrrev_b32 v{T+4}, 16, v{T+4}")
        k.e(f"v_mul_u32_u24 v{T+4}, {1280-96}, v{T+4}")
        k.e(f"v_lshl_add_u32 v{T+i}, v{T+3}, 4, v{T+4}")
    k.e(f"v_mov_b32 v{T+4}, {OOB}")
    k.e("v_cmp_gt_u32 vcc, 32, v0")
    k.e(f"v_cndmask_b32 v{T+1}, v{T+4}, v{T+1}, vcc")
    for m in range(1, 4): k.e(f"v_xor_b32 v{T+4+m}, {16384*m}, v7")
    k.e(f"v_add_u32 v{T+8}, s81, v1")
    k.e(f"v_and_b32 v{T+9}, 15, v0")
    k.e(f"v_mul_u32_u24 v{T+9}, 96, v{T+9}")
    k.e(f"v_lshrrev_b32 v{T+10}, 4, v0")
    k.e(f"v_lshl_add_u32 v{T+9}, v{T+10}, 3, v{T+9}")
    k.e(f"v_add_u32 v{T+9}, s81, v{T+9}")
    k.e(f"v_mov_b32 v{T+12}, 1.0")
    k.e(f"v_mov_b32 v{T+13}, 1.0")
def final_block(k, a, s, x, cc, one):
    for h in range(2):
        k.e(f"v_pk_add_f32 v[{a+2*h}:{a+2*h+1}], v[{a+2*h}:{a+2*h+1}], v[{a+4+2*h}:{a+4+2*h+1}]")
        k.e(f"v_pk_add_f32 v[{a+8+2*h}:{a+8+2*h+1}], v[{a+8+2*h}:{a+8+2*h+1}], v[{a+12+2*h}:{a+12+2*h+1}]")
    for h in range(2):
        k.e(f"v_pk_add_f32 v[{a+2*h}:{a+2*h+1}], v[{a+2*h}:{a+2*h+1}], v[{a+8+2*h}:{a+8+2*h+1}]")
    e = a + 4
    for h in range(2):
        k.e(f"v_pk_mul_f32 v[{e+2*h}:{e+2*h+1}], v[{a+2*h}:{a+2*h+1}], v[{cc}:{cc+1}]")
    for r in range(4): k.e(f"v_exp_f32 v{e+r}, v{e+r}")
    for h in range(2):
        k.e(f"v_pk_mul_f32 v[{a+2*h}:{a+2*h+1}], v[{a+2*h}:{a+2*h+1}], v[{s+2*h}:{s+2*h+1}]")
    for h in range(2):
        k.e(f"v_pk_add_f32 v[{e+2*h}:{e+2*h+1}], v[{e+2*h}:{e+2*h+1}], v[{one}:{one+1}]")
    for r in range(4): k.e(f"v_rcp_f32 v{e+r}, v{e+r}")
    for h in range(2):
        k.e(f"v_pk_fma_f32 v[{a+2*h}:{a+2*h+1}], v[{a+2*h}:{a+2*h+1}], v[{e+2*h}:{e+2*h+1}], v[{x+2*h}:{x+2*h+1}]")
    k.e(f"v_cvt_pk_bf16_f32 v{a+8}, v{a}, v{a+1}")
    k.e(f"v_cvt_pk_bf16_f32 v{a+9}, v{a+2}, v{a+3}")
def g2_tail(k):
    k.e("s_waitcnt lgkmcnt(0)")
    stamp(k, 6, 0)
    k.e("s_barrier")
    stamp(k, 5, 3); stamp(k, 6, 1)
    SF, XF, CC = 88, 108, T + 14
    k.e(f"ds_read_b64 v[{CC}:{CC+1}], v{T+8} offset:{SO + 10240}")
    for d in range(3):
        for m in range(1, 4):
            a = G_ACC + 16*d + 4*m
            k.e(f"ds_read_b128 v[{a}:{a+3}], v{T+4+m} offset:{(m-1)*5120 + 1024*d}")
        k.e(f"ds_read_b128 v[{SF+4*d}:{SF+4*d+3}], v{T+8} offset:{SO + 1024*d}")
        k.e(f"ds_read_b128 v[{XF+4*d}:{XF+4*d+3}], v{T+8} offset:{SO + 5120 + 1024*d}")
    for d in range(3):
        k.e(f"s_waitcnt lgkmcnt({10-5*d})")
        final_block(k, G_ACC + 16*d, SF + 4*d, XF + 4*d, CC, T + 12)
    stamp(k, 6, 2)
    for d in range(3):
        a = G_ACC + 16*d
        k.e(f"ds_write_b64 v{T+9}, v[{a+8}:{a+9}] offset:{XO + 32*d}")
    k.e("s_waitcnt lgkmcnt(0)")
    O = 128
    for i in range(2): k.e(f"ds_read_b128 v[{O+4*i}:{O+4*i+3}], v{T+8} offset:{XO + 1024*i}")
    for i in range(2):
        k.e(f"s_waitcnt lgkmcnt({1-i})")
        k.e(f"buffer_store_dwordx4 v[{O+4*i}:{O+4*i+3}], v{T+i}, s[48:51], s54 offen")
    stamp(k, 6, 3)
def b_tail(k):
    srd(k, 48, P_OUT, NB_X)
    k.e("v_lshlrev_b32 v8, 4, v0")
    k.e("s_lshl_b32 s59, s101, 14")
    k.e("v_add_u32 v8, s59, v8")
    for m in range(1, 4): k.e(f"v_xor_b32 v{8+m}, {16384*m}, v8")
    k.e("v_and_b32 v12, 15, v0")
    k.e("v_lshlrev_b32 v12, 6, v12")
    k.e("v_lshrrev_b32 v13, 4, v0")
    k.e("v_lshl_add_u32 v12, v13, 3, v12")
    k.e("v_add_u32 v12, s81, v12")
    k.e("v_lshrrev_b32 v13, 2, v0")
    k.e("v_mul_u32_u24 v13, 1280, v13")
    k.e("v_and_b32 v14, 3, v0")
    k.e("v_lshl_add_u32 v13, v14, 4, v13")
    k.e("v_mov_b32 v14, 1.0")
    k.e("v_mov_b32 v15, 1.0")
    k.e("s_waitcnt lgkmcnt(0)")
    k.e("s_barrier")
    P = 104
    for i, d in enumerate((3, 4)):
        k.e(f"ds_read_b128 v[{P+16*i}:{P+16*i+3}], v37 offset:{OWN + 1024*i}")
        for m in range(1, 4):
            k.e(f"ds_read_b128 v[{P+16*i+4*m}:{P+16*i+4*m+3}], v{8+m} offset:{(m-1)*5120 + 1024*d}")
    for i, d in enumerate((3, 4)):
        k.e(f"s_waitcnt lgkmcnt({4-4*i})")
        final_block(k, P + 16*i, 60 + 4*d, 40 + 4*d, 38, 14)
    for i in range(2): k.e(f"ds_write_b64 v12, v[{P+16*i+8}:{P+16*i+9}] offset:{YO + 32*i}")
    k.e("s_waitcnt lgkmcnt(0)")
    k.e(f"ds_read_b128 v[16:19], v37 offset:{YO}")
    k.e("s_waitcnt lgkmcnt(0)")
    k.e("buffer_store_dwordx4 v[16:19], v13, s[48:51], s54 offen offset:96")

BA, AA, ONE, ACC, AR, AC, FR = 10, 14, 20, 24, 88, 96, 112
def g1_setup(k):
    srd(k, 48, P_WS, 32 * NT * 4096, H_OFF)
    srd(k, 44, P_WS, NB_W, W2_OFF)
    k.e("s_and_b32 s52, s3, 1")
    k.e("s_lshr_b32 s53, s3, 1")
    k.e("v_lshlrev_b32 v1, 4, v0")
    k.e("v_add_u32 v2, 4096, v1")
    k.e("v_and_b32 v18, 15, v0")
    k.e("v_lshrrev_b32 v19, 4, v0")
    k.e("v_lshrrev_b32 v20, 1, v18")
    k.e("v_xor_b32 v20, v20, v19")
    k.e("v_lshlrev_b32 v20, 4, v20")
    k.e("v_lshl_add_u32 v20, v18, 7, v20")
    k.e("s_lshl_b32 s58, s52, 13")
    k.e("s_lshl_b32 s59, s53, 12")
    k.e("s_add_u32 s58, s58, s59")
    k.e(f"v_add_u32 v{BA}, s58, v20")
    k.e(f"v_xor_b32 v{BA+1}, 64, v{BA}")
    k.e(f"v_xor_b32 v{BA+2}, 0x1000, v{BA}")
    k.e(f"v_xor_b32 v{BA+3}, 0x1040, v{BA}")
    k.e("v_lshrrev_b32 v20, 2, v18")
    k.e("v_and_b32 v21, 3, v18")
    k.e("v_lshl_add_u32 v22, v19, 3, v20")
    k.e("v_lshlrev_b32 v22, 8, v22")
    k.e("v_lshl_add_u32 v22, v21, 3, v22")
    k.e(f"v_add_u32 v22, {WPART}, v22")
    k.e("v_and_b32 v23, 1, v19")
    k.e("v_lshl_add_u32 v23, v23, 2, v20")
    k.e("s_lshl_b32 s58, s53, 2")
    k.e("s_lshl_b32 s59, s52, 1")
    k.e("s_add_u32 s58, s58, s59")
    k.e("v_xor_b32 v23, s58, v23")
    k.e(f"v_lshl_add_u32 v{AA}, v23, 5, v22")
    for fb in range(1, 4): k.e(f"v_xor_b32 v{AA+fb}, {32*fb}, v{AA}")
    for i in range(4): k.e(f"v_mov_b32 v{ONE+i}, 0x3f803f80")
    for r, x in ((3, 0), (4, 2), (5, 1)):
        k.e(f"s_xor_b32 s58, s3, {x}")
        k.e("s_mul_i32 s58, s58, 3072")
        k.e(f"s_add_u32 s58, s58, {TOP}")
        k.e(f"v_add_u32 v{r}, s58, v1")
    k.e("s_lshl_b32 s58, s7, 1")
    k.e("s_add_u32 s57, s58, s53")
    k.e("s_lshl_b32 s59, s6, 1")
    k.e("s_add_u32 s59, s59, s52")
    k.e("s_lshl_b32 s56, s59, 5")
    k.e("s_add_u32 s56, s56, s57")
    k.e(f"s_lshl_b32 s56, s56, {HSH}")
    k.e(f"s_add_u32 s56, s56, {FH}")
    k.e(f"s_mul_i32 s59, s59, {NT}")
    k.e("s_lshl_b32 s58, s57, 1")
    k.e("s_add_u32 s58, s58, s59")
    k.e("s_lshl_b32 s58, s58, 12")
    k.e("s_lshl_b32 s59, s52, 12")
    k.e("s_add_u32 s60, s58, s59")
    k.e("s_xor_b32 s59, s59, 0x1000")
    k.e("s_add_u32 s61, s58, s59")
    k.e("s_lshl_b32 s59, s53, 11")
    k.e("v_add_u32 v6, s59, v1")
    k.e("v_xor_b32 v7, 0x800, v6")
    k.e(f"v_mov_b32 v18, {CNT}")
    k.e("s_lshl_b32 s58, s3, 2")
    k.e(f"s_add_u32 s58, s58, {CNT + PA}")
    k.e("v_mov_b32 v19, s58")

def g1_phase(k):
    PV = 176
    def reads(stage, ks, buf):
        so = (stage % 2) * SLOT
        L = []
        fa = FR + 32 * buf; fb_ = fa + 16
        for i in range(4):
            L.append(f"ds_read_b128 v[{fb_+4*i}:{fb_+4*i+3}], v{BA + 2*(i>>1) + ks} offset:{so + 2048*(i&1)}")
            L.append(f"ds_read_b64_tr_b16 v[{fa+4*i}:{fa+4*i+1}], v{AA+i} offset:{so + 8192*ks}")
            L.append(f"ds_read_b64_tr_b16 v[{fa+4*i+2}:{fa+4*i+3}], v{AA+i} offset:{so + 8192*ks + 1024}")
        return L
    def mfmas(buf, first=False, sums_first=False):
        fa = FR + 32 * buf; fb_ = fa + 16
        L = []; Sm = []
        def mm(Tg, d, a, b):
            c = "0" if first else f"v[{d}:{d+3}]"
            Tg.append(f"v_mfma_f32_16x16x32_bf16 v[{d}:{d+3}], v[{a}:{a+3}], v[{b}:{b+3}], {c}")
        for f in range(4):
            for m in range(4): mm(L, ACC + 16*f + 4*m, fa + 4*f, fb_ + 4*m)
        for i in range(2):
            mm(Sm, AR + 4*i, ONE, fb_ + 4*i)
            mm(Sm, AC + 4*i, fa + 4*i, ONE)
        if flag("QNOSUM") and not first and not sums_first: return L
        return Sm + L if sums_first else L + Sm
    def dense(L):
        n = flag("DEN", 2)
        return ["\n".join(L[i:i+n]) for i in range(0, len(L), n)]
    tog = [f"v_xor_b32 v{r}, 0x10000, v{r}" for r in list(range(BA, BA+4)) + list(range(AA, AA+4))]
    for s in range(NSTAGE):
        k.c(f"---- stage {s}")
        k.e("s_waitcnt lgkmcnt(0)")
        m1 = mfmas(1)
        if s < 9: k.e("s_barrier")
        else:
            for x in interleave(m1[:3], prog_min(PV, 58)): k.e(x)
            m1 = m1[3:]
            prog_spin(k, "L_a9", 18, PV, PB, 58, 1)
        if s == 0: stamp(k, 1, 0); stamp(k, 2, 0); cs(k, "b0")
        if s == 4: cs(k, "b4")
        if s == 4: stamp(k, 2, 1)
        if s == 8:
            stamp(k, 2, 2)
            k.e("s_setprio 2")
        for x in (reads(0, 0, 0) if s == 0 else interleave(m1, dense(reads(s, 0, 0)))): k.e(x)
        k.e("s_waitcnt lgkmcnt(0)")
        m0 = mfmas(0, first=(s == 0))
        nxt = tog if ((s + 1) % 2 == 0 and s + 1 < NSTAGE) else []
        if s == 9 and EPI:
            m0 = mfmas(0, sums_first=True)
            exch = [f"v_mov_b32 v{AR+1}, v{AR+4}",
                    f"ds_write_b64 v3, v[{AR}:{AR+1}]",
                    f"ds_write_b128 v3, v[{AC}:{AC+3}] offset:1024",
                    f"ds_write_b128 v3, v[{AC+4}:{AC+7}] offset:2048"] + prog_write(19, 8, 11)
            body = (interleave(m0[:10], dense(reads(s, 1, 1))) + ["s_waitcnt lgkmcnt(0)"] + mfmas(1, sums_first=True)[:4]
                    + m0[10:14] + interleave(m0[14:], exch))
        elif s == 8:
            body = interleave(m0[:-3], dense(reads(s, 1, 1))) + [f"ds_read_b128 v[{PV}:{PV+3}], v18 offset:{PB}"] + m0[-3:]
        else:
            body = interleave(m0, dense(reads(s, 1, 1)) + nxt)
        for x in body: k.e(x)
    if EPI:
        allm = mfmas(1, sums_first=True)[4:]
        fin = [allm[4*(2*p+ff) + m] for p in range(2) for m in range(4) for ff in range(2)]
        sync_reads = [f"ds_read_b128 v[{PV}:{PV+3}], v18 offset:{PA}",
                      f"ds_read_b64 v[{AR+2}:{AR+3}], v4",
                      f"ds_read_b128 v[{AC+8}:{AC+11}], v5 offset:1024",
                      f"ds_read_b128 v[{AC+12}:{AC+15}], v5 offset:2048"]
        k.e("s_cmp_ge_u32 s57, 27")
        for r in (56, 60, 61): k.e(f"s_cselect_b32 s{r}, {OOB}, s{r}")
        for x in fin[:2] + interleave(fin[2:8], sync_reads): k.e(x)
        k.e("s_branch L_a_chk")
        k.e("L_a_sync:")
        for x in sync_reads: k.e(x)
        k.e("L_a_chk:")
        k.e("s_waitcnt lgkmcnt(0)")
        for x in prog_min(PV, 58): k.e(x)
        k.e("s_cmp_lt_u32 s58, 11")
        k.e("s_cbranch_scc1 L_a_sync")
        stamp(k, 2, 3); cs(k, "sync")
        NM = FR; OUT = FR + 8
        V = [f"v_mul_f32 v{AR+m}, {-1.0/D!r}, v{AR+m}" for m in range(4)]
        V += [f"v_cvt_pk_bf16_f32 v{AR+4}, v{AR}, v{AR+1}", f"v_cvt_pk_bf16_f32 v{AR+5}, v{AR+2}, v{AR+3}"]
        for m in range(4):
            src = AR + 4 + (m >> 1)
            V.append(f"v_and_b32 v{NM+m}, 0xffff0000, v{src}" if m & 1 else f"v_lshlrev_b32 v{NM+m}, 16, v{src}")
        n = 0
        for p in range(2):
            for m in range(4):
                o = OUT + 4 * (n % 4); n += 1
                for ff in range(2):
                    f = 2*p + ff
                    a = ACC + 16*f + 4*m
                    V += [f"v_fmac_f32 v{a+r}, v{AC+4*f+r}, v{NM+m}" for r in range(4)]
                    V += [f"v_cvt_pk_bf16_f32 v{o+2*ff+h}, v{a+2*h}, v{a+2*h+1}" for h in range(2)]
                if p == 1 and m == 2 and flag("NP", 0): V.append(f"ds_read_b32 v8, v18 offset:{AUXOK}")
                V += [f"v_pk_max_i16 v{o+i}, v{o+i}, 0" for i in range(4)]
                V.append(f"buffer_store_dwordx4 v[{o}:{o+3}], v{6+(m>>1)}, s[48:51], s{60+p} offen offset:{1024*(m&1)}{HSC}")
        pos = len(V) - flag("EVP", 40)
        V = V[:pos] + prog_write(19, 8, 12) + V[pos:]
        rest = fin[8:]
        for i, x in enumerate(V):
            if i % 3 == 0 and rest: k.e(rest.pop(0))
            k.e(x)
    else:
        k.e("s_waitcnt lgkmcnt(0)")
        fin = mfmas(1, sums_first=True)
        exch = [f"v_mov_b32 v{AR+1}, v{AR+4}",
                f"ds_write_b64 v3, v[{AR}:{AR+1}]",
                f"ds_write_b128 v3, v[{AC}:{AC+3}] offset:1024",
                f"ds_write_b128 v3, v[{AC+4}:{AC+7}] offset:2048"] + prog_write(19, 8, 11)
        for x in fin[:7] + interleave(fin[7:], exch): k.e(x)
        k.e("L_a_sync:")
        k.e(f"ds_read_b128 v[{PV}:{PV+3}], v18 offset:{PA}")
        k.e(f"ds_read_b64 v[{AR+2}:{AR+3}], v4")
        k.e(f"ds_read_b128 v[{AC+8}:{AC+11}], v5 offset:1024")
        k.e(f"ds_read_b128 v[{AC+12}:{AC+15}], v5 offset:2048")
        if EWI: k.e(f"ds_read_b32 v8, v18 offset:{AUXOK}")
        k.e("s_waitcnt lgkmcnt(0)")
        for x in prog_min(PV, 58): k.e(x)
        k.e("s_cmp_lt_u32 s58, 11")
        k.e("s_cbranch_scc1 L_a_sync")
        stamp(k, 2, 3); cs(k, "sync")
        if flag("HTF", 1):
            k.e("s_cmp_ge_u32 s57, 27")
            for r in (56, 60, 61): k.e(f"s_cselect_b32 s{r}, {OOB}, s{r}")
        else:
            k.e("s_cmp_ge_u32 s57, 27")
            k.e("s_cbranch_scc1 L_g2w")
        NM = FR
        wl = []
        if EWI:
            k.e("v_readfirstlane_b32 s71, v8")
            k.e("s_mov_b32 s70, s77")
            k.e("s_cmp_eq_u32 s71, 0")
            k.e(f"s_cselect_b32 s77, {OOB}, s77")
            cur = []
            for st in range(EWI):
                for x in w_loads(st):
                    cur.append(x)
                    if is_vmem(x): wl.append(cur); cur = []
        for m in range(4): k.e(f"v_mul_f32 v{AR+m}, {-1.0/D!r}, v{AR+m}")
        k.e(f"v_cvt_pk_bf16_f32 v{AR+4}, v{AR}, v{AR+1}")
        k.e(f"v_cvt_pk_bf16_f32 v{AR+5}, v{AR+2}, v{AR+3}")
        for m in range(4):
            src = AR + 4 + (m >> 1)
            if m & 1: k.e(f"v_and_b32 v{NM+m}, 0xffff0000, v{src}")
            else:     k.e(f"v_lshlrev_b32 v{NM+m}, 16, v{src}")
        OUT = FR + 8
        n = 0
        for p in range(2):
            for m in range(4):
                o = OUT + 4 * (n % 4); n += 1
                for ff in range(2):
                    f = 2*p + ff
                    a = ACC + 16*f + 4*m
                    for r in range(4): k.e(f"v_fmac_f32 v{a+r}, v{AC+4*f+r}, v{NM+m}")
                    for h in range(2): k.e(f"v_cvt_pk_bf16_f32 v{o+2*ff+h}, v{a+2*h}, v{a+2*h+1}")
                if p == 1 and m == 2 and flag("NP", 0): k.e(f"ds_read_b32 v8, v18 offset:{AUXOK}")
                for i in range(4): k.e(f"v_pk_max_i16 v{o+i}, v{o+i}, 0")
                k.e(f"buffer_store_dwordx4 v[{o}:{o+3}], v{6+(m>>1)}, s[48:51], s{60+p} offen offset:{1024*(m&1)}{HSC}")
                lo, hi = (len(wl) * (n - 1)) // 8, (len(wl) * n) // 8
                for g in wl[lo:hi]:
                    for x in g: k.e(x)
        if EWI:
            k.e(f"s_waitcnt vmcnt({hi - lo})")
            publish(k, 56, 12, HSC)
            stamp(k, 1, 1)
            k.e("s_setprio 0")
            k.e("s_mov_b32 s77, s70")
            k.e("s_cmp_eq_u32 s71, 0")
            k.e("s_cbranch_scc0 L_g2b")
            k.e("s_branch L_g2w")
    NP = EWI or flag("NP", 0)
    if NP and not EWI:
        k.e("s_waitcnt lgkmcnt(0)")
        k.e("v_readfirstlane_b32 s58, v8")
        k.e("s_cmp_eq_u32 s58, 0")
        k.e("s_cbranch_scc1 L_a_slow")
        for st in range(NP):
            for x in w_loads(st): k.e(x)
        k.e(f"s_waitcnt vmcnt({5*NP})")
        publish(k, 56, 12, HSC)
        stamp(k, 1, 1)
        k.e("s_setprio 0")
        k.e("s_branch L_g2b")
        k.e("L_a_slow:")
    if AWP:
        k.e("v_lshlrev_b32 v9, 9, v0")
        k.e("s_bfm_b64 exec, 14, 0")
        k.e(f"buffer_load_dwordx2 v[10:11], v9, s[{FSRD}:{FSRD+3}], s71 offen{SC1}")
        k.e("s_mov_b64 exec, -1")
        k.e("s_waitcnt vmcnt(1)")
        publish(k, 56, 12, HSC)
        stamp(k, 1, 1)
        k.e("s_waitcnt vmcnt(1)")
        k.e("s_setprio 0")
        poll(k, "L_aw", 10, 9, 71, 58, 14, preloaded=True)
        k.e("s_branch L_g2b")
        k.e("L_g2w:")
        k.e("s_setprio 0")
        k.e(f"v_mov_b32 v10, {CNT}")
        lds_wait(k, "L_aw2", 10, 11, AUXOK, 58, sleep=4)
    else:
        if not EWI:
            k.e("s_waitcnt vmcnt(0)")
            publish(k, 56, 12, HSC)
            stamp(k, 1, 1)
        k.e("L_g2w:")
        k.e("s_setprio 0")
        k.e(f"v_mov_b32 v10, {CNT}")
        lds_wait(k, "L_aw2", 10, 11, AUXOK, 58, sleep=4)
    for st in range(NP):
        for x in w_loads(st): k.e(x)
    k.e("L_g2b:")

def b_aprep(k):
    srd(k, 40, P_Q, NB_X)
    srd(k, 44, P_WS, 16384, ST_OFF)
    srd(k, 68, P_WS, NB_T, YT_OFF)
    xo_offsets(k, 8, 1, 2)
    for i in range(3):
        k.e(f"s_add_u32 m0, s81, {XO + 1024*i}")
        k.e(f"buffer_load_dwordx4 v{8+i}, s[40:43], s54 offen lds")
    k.e("v_and_b32 v1, 15, v0")
    k.e("v_lshlrev_b32 v3, 3, v1")
    k.e("s_lshl_b32 s57, s53, 7")
    k.e("v_lshrrev_b32 v4, 3, v0")
    k.e(f"v_mul_u32_u24 v4, {RS}, v4")
    k.e("v_and_b32 v2, 7, v0")
    k.e("v_lshl_add_u32 v4, v2, 4, v4")
    k.e("s_mul_i32 s58, s9, 10")
    k.e("s_add_u32 s58, s58, s101")
    k.e(f"s_mul_i32 s58, s58, {8*RS}")
    k.e("s_lshl_b32 s59, s8, 7")
    k.e("s_add_u32 s58, s58, s59")
    k.e(f"v_mov_b32 v2, {CNT}")
    k.e("v_mul_u32_u24 v5, 160, v1")
    k.e("v_lshrrev_b32 v6, 4, v0")
    k.e("v_lshl_add_u32 v5, v6, 3, v5")
    k.e("v_add_u32 v5, s81, v5")
    k.e("v_lshrrev_b32 v36, 5, v0")
    k.e(f"v_mul_u32_u24 v36, {CONV_LDS}, v36")
    k.e("v_bfe_u32 v7, v0, 2, 3")
    k.e("v_lshl_add_u32 v36, v7, 7, v36")
    k.e("v_and_b32 v7, 3, v0")
    k.e("v_lshl_add_u32 v36, v7, 3, v36")
    k.e("s_lshl_b32 s59, s101, 5")
    k.e(f"s_add_u32 s59, s59, {RB0}")
    k.e("v_add_u32 v36, s59, v36")
    k.e("v_lshlrev_b32 v37, 4, v0")
    k.e("v_add_u32 v37, s81, v37")
    XR, YR, XF, SF = 16, 26, 40, 60
    k.e("s_waitcnt vmcnt(0)")
    for d in range(5): k.e(f"ds_read_b64 v[{XR+2*d}:{XR+2*d+1}], v5 offset:{XO + 32*d}")
    k.e("s_waitcnt lgkmcnt(0)")
    for d in range(5):
        for h in range(2): unpack(k, XF + 4*d + 2*h, XF + 4*d + 2*h + 1, XR + 2*d + h)
        if d < 3: k.e(f"ds_write_b128 v37, v[{XF+4*d}:{XF+4*d+3}] offset:{SO + 5120 + 1024*d}")
    k.e("s_setprio 0")
    k.e("s_cmp_eq_u32 s101, 0")
    k.e("s_cbranch_scc1 L_b_poller")
    lds_wait(k, "L_b_lw0", 2, 6, PROG, 60, sleep=flag("LSL", 16))
    lds_wait(k, "L_b_lwait", 2, 6, YOK, 60, sleep=2)
    k.e("s_setprio 3")
    k.e("s_branch L_b_go")
    k.e("L_b_poller:")
    k.e(f"s_mul_i32 s59, s9, {80 << YSH}")
    k.e(f"s_add_u32 s59, s59, {FY}")
    k.e(f"s_add_u32 s61, s59, {64 << YSH}")
    k.e(f"v_lshlrev_b32 v5, {YSH}, v0")
    k.e("v_add_u32 v7, s61, v5")
    k.e("s_lshr_b32 s10, s8, 3")
    k.e("s_lshl_b32 s10, s10, 1")
    k.e("s_and_b32 s11, s8, 1")
    k.e("s_add_u32 s10, s10, s11")
    k.e("s_and_b32 s11, s8, 6")
    k.e("s_lshl_b32 s11, s11, 2")
    k.e("s_add_u32 s10, s10, s11")
    k.e(f"s_add_u32 s10, s10, {224 + (FB >> 7)}")
    k.e("s_lshl_b32 s10, s10, 7")
    k.e("v_writelane_b32 v7, s10, 16")
    lds_wait(k, "L_b_aw", 2, 6, PROG, 60, sleep=flag("LSL2", 6))
    k.e("s_setprio 3")
    k.e("s_bfm_b64 exec, 17, 0")
    k.e(f"buffer_load_dwordx2 v[14:15], v7, s[{FSRD}:{FSRD+3}], 0 offen{SC1}")
    k.e("s_mov_b64 exec, -1")
    poll(k, "L_by", 12, 5, 59, 60, 64, sleep=8)
    poll(k, "L_by2", 14, 7, None, 60, 17, sleep=8, preloaded=True)
    k.e("v_mov_b32 v6, 1")
    k.e(f"ds_write_b32 v2, v6 offset:{YOK}")
    k.e("L_b_go:")
    stamp(k, 1, 3); stamp(k, 2, 3)
    k.e(f"buffer_load_dwordx2 v[12:13], v3, s[44:47], s57 offen{SC1}")
    for i in range(3):
        if i == 2:
            k.e("s_cmp_ge_u32 s101, 2")
            k.e("s_cbranch_scc1 L_b_noy")
        k.e(f"s_add_u32 m0, s81, {YO + 1024*i}")
        k.e(f"buffer_load_dwordx4 v4, s[68:71], s58 offen{SC1} lds")
        if i < 2: k.e(f"s_add_u32 s58, s58, {4*8*RS}")
    k.e("L_b_noy:")
    k.e("v_mov_b32 v3, 1")
    k.e("s_waitcnt vmcnt(2)")
    k.e("v_mul_f32 v38, 0xbfb8aa3b, v13")
    k.e("v_mul_f32 v39, 0xbfb8aa3b, v13")
    k.e(f"ds_write_b64 v37, v[38:39] offset:{SO + 10240}")
    for i in range(10):
        a, b = 80 + 2*i, 81 + 2*i
        k.e(f"v_sub_f32 v{a}, v{XF+2*i}, v12")
        k.e(f"v_sub_f32 v{b}, v{XF+2*i+1}, v12")
        k.e(f"v_cvt_pk_bf16_f32 v{b}, v{a}, v{b}")
        unpack(k, a, b, b)
        k.e(f"v_mul_f32 v{a}, v{a}, v13")
        k.e(f"v_mul_f32 v{b}, v{b}, v13")
        k.e(f"v_cvt_pk_bf16_f32 v{b}, v{a}, v{b}")
        unpack(k, a, b, b)
        k.e(f"v_mul_f32 v{a}, v{a}, v13")
        k.e(f"v_mul_f32 v{b}, v{b}, v13")
        if i == 4:
            k.e("s_waitcnt vmcnt(0)")
            k.e("s_mov_b64 exec, 1")
            k.e(f"ds_add_u32 v2, v3 offset:{YCNT}")
            k.e("s_mov_b64 exec, -1")
    k.e("L_b_cnt:")
    k.e(f"ds_read_b32 v3, v2 offset:{YCNT}")
    for d in range(5):
        k.e(f"ds_read_b64_tr_b16 v[{YR+2*d}:{YR+2*d+1}], v36 offset:{YO + 2*(d&1)*CONV_LDS + (d>>1)*1024}")
    k.e("s_waitcnt lgkmcnt(0)")
    k.e("v_readfirstlane_b32 s59, v3")
    k.e("s_cmp_lt_u32 s59, 4")
    k.e("s_cbranch_scc1 L_b_cnt")
    for d in range(5):
        for h in range(2):
            s = SF + 4*d + 2*h
            unpack(k, s, s+1, YR + 2*d + h)
            k.e(f"v_mul_f32 v{s}, v{s}, v{80+4*d+2*h}")
            k.e(f"v_mul_f32 v{s+1}, v{s+1}, v{81+4*d+2*h}")
        if d < 3: k.e(f"ds_write_b128 v37, v[{SF+4*d}:{SF+4*d+3}] offset:{SO + 1024*d}")
    b_tail(k)

def stats_rows(k, s_idx):
    k.e("s_and_b32 s10, s84, 6")
    k.e("s_lshl_b32 s10, s10, 8")
    k.e("s_lshr_b32 s11, s84, 3")
    k.e("s_lshl_b32 s11, s11, 7")
    k.e("s_add_u32 s10, s10, s11")
    k.e("s_and_b32 s11, s84, 1")
    k.e("s_lshl_b32 s11, s11, 6")
    k.e("s_add_u32 s10, s10, s11")
    k.e(f"s_lshl_b32 s11, s{s_idx}, 3")
    k.e("s_add_u32 s52, s10, s11")

def kernel():
    STS = flag("STS", 1); RLD = flag("RLD", 2); RST = flag("RST", 6)
    assert STS < RLD and RLD + (3 if flag('LKS', 99) > RLD else 4) <= RST <= 7
    k = Kern(NAME)
    stamp_begin(k)
    if flag("FIXT") or MS:
        k.e("s_memrealtime s[96:97]")
        k.e("s_mov_b32 s12, 0")
        k.e("s_mov_b32 s100, s2")
    k.e("s_cmp_ge_u32 s2, 256")
    k.e("s_cbranch_scc1 L_end")
    load_ptrs(k)
    k.e("v_lshrrev_b32 v1, 6, v0")
    k.e("v_readfirstlane_b32 s3, v1")
    k.e("v_and_b32 v0, 63, v0")
    for i in range(4): k.e(f"v_mov_b32 v{4+i}, 0")
    k.e("v_and_b32 v1, 3, v0")
    k.e("v_lshlrev_b32 v1, 4, v1")
    k.e(f"v_add_u32 v1, {CNT}, v1")
    k.e("ds_write_b128 v1, v[4:7]")
    k.e("s_and_b32 s4, s2, 7")
    k.e("s_lshr_b32 s5, s2, 3")
    k.e("s_lshr_b32 s10, s4, 1")
    k.e("s_and_b32 s11, s4, 1")
    k.e("s_lshl_b32 s6, s10, 2")
    k.e("s_and_b32 s7, s5, 3")
    k.e("s_add_u32 s6, s6, s7")
    k.e("s_lshl_b32 s9, s11, 2")
    k.e("s_add_u32 s9, s9, s7")
    k.e("s_lshr_b32 s8, s5, 2")
    k.e("s_mul_i32 s7, s11, 7")
    k.e("s_add_u32 s7, s7, s8")
    k.e("s_lshl_b32 s10, s10, 3")
    k.e("s_add_u32 s8, s8, s10")
    if flag("MAP81"):
        k.e("s_lshl_b32 s6, s4, 1")
        k.e("s_and_b32 s7, s5, 1")
        k.e("s_add_u32 s6, s6, s7")
        k.e("s_lshr_b32 s7, s5, 1")
        k.e("s_lshl_b32 s8, s4, 2")
        k.e("s_lshr_b32 s9, s5, 3")
        k.e("s_add_u32 s8, s8, s9")
        k.e("s_and_b32 s9, s5, 7")
    k.e("s_and_b32 s101, s3, 3")
    k.e(f"s_mul_i32 s81, s101, {CONV_LDS}")
    k.e(f"s_add_u32 s81, s81, {RB0}")
    def flags_srd():
        srd(k, FSRD, P_WS, FL_BYTES, FL_OFF)
        k.e(f"s_load_dwordx2 s[{TAG}:{TAG+1}], s[{FSRD}:{FSRD+1}], {EP}")
    k.e("s_cmp_ge_u32 s2, 224")
    k.e("s_cbranch_scc1 L_free")
    k.e("s_cmp_lt_u32 s3, 4")
    k.e("s_cbranch_scc1 L_a")
    ROLE[0] = "b"
    k.e(f"s_setprio {flag('PBL', 1)}")
    r = Rec(); k1.loader_setup(r, 6, 7, 101)
    for x in r.lines[8:]: k.e(x)
    k.e("s_waitcnt lgkmcnt(0)")
    for x in r.lines[:8]: k.e(x)
    vm = Vm(); last = {}
    def put(x):
        k.e(x)
        return vm.op() if is_vmem(x) else None
    def dma(st):
        for x in k1.dma(st):
            q = put(x)
            if q is not None: last[st] = q
    if flag("SB", 1): k.e("s_barrier")
    dma(0)
    flags_srd()
    k.e(f"v_mov_b32 v250, {CNT}")
    k.e("s_lshl_b32 s10, s101, 2")
    k.e(f"s_add_u32 s10, s10, {CNT + PB}")
    k.e("v_mov_b32 v248, s10")
    u_addr(k)
    rel1_addr(k)
    k.e("s_lshl_b32 s82, s2, 1")
    k.e("s_add_u32 s53, s2, 448")
    k.e("s_cmp_lt_u32 s2, 64")
    k.e("s_cselect_b32 s52, s53, 1000")
    k.e("s_cselect_b32 s53, s53, s82")
    watch_addr(k, 224, 82, 53)
    k.e("s_add_u32 s82, s82, s101")
    k.e("s_cmp_eq_u32 s101, 2")
    k.e("s_cselect_b32 s82, s52, s82")
    k.e("s_cmp_eq_u32 s101, 3")
    k.e("s_cselect_b32 s82, 1000, s82")
    k.e("s_lshl_b32 s83, s2, 7")
    k.e("s_waitcnt lgkmcnt(0)")
    make_tag(k)
    dma(1)
    PV = 252
    PUBS = STS + flag("PUBD", 3); st_idx = None
    k.e("s_cmp_eq_u32 s101, 2")
    k.e(f"s_cselect_b32 s83, s83, {OOB}")
    k.e("v_mov_b32 v249, 1")
    HKE = flag("HKE", 2); hk = 0 if HKE < 8 else 2
    WPUB = RST + 2 if RST <= 5 else 99
    k.e("s_lshl_b32 s88, s2, 7")
    k.e(f"s_add_u32 s88, s88, {FB}")
    k.e("s_cmp_eq_u32 s101, 1")
    k.e(f"s_cselect_b32 s88, s88, {OOB}")
    for s in range(8):
        w = vm.wait(last[s])
        if s == PUBS: w = min(w, vm.wait(st_idx))
        if s == WPUB: w = min(w, vm.wait(rs_idx))
        k.e(f"s_waitcnt vmcnt({w})")
        k.e("s_barrier")
        if s == WPUB:
            publish(k, 88, 4); vm.op()
            stamp(k, 2, 1)
        if s == PUBS:
            publish(k, 83, 4); vm.op()
            stamp(k, 2, 0)
        if s == STS:
            for x in u_out():
                q = put(x)
                if q is not None: st_idx = q
        if s == RST:
            for x in rel1_reads(): k.e(x)
        LKS = flag("LKS", 99)
        if s < LKS: dma(s + 2)
        elif s == LKS:
            dma(s + 2); dma(s + 3)
        elif s + 3 < NSTAGE: dma(s + 3)
        if s == RST:
            for x in rel1_stores():
                q = put(x)
                if q is not None: rs_idx = q
        if s == RLD:
            for x in rel1_loads(): put(x)
        if s == HKE:
            k.e("s_min_u32 s11, s82, 640")
            conv.conv4_early(k, 11); vm.op(); vm.op()
    w8, w9 = vm.wait(last[8]), vm.wait(last[9]); wr = min(vm.wait(rs_idx), w9)
    W8P = flag('W8P', 1) and RST == 6
    if W8P: w8 = min(w8, vm.wait(rs_idx))
    k.e("s_cmp_lt_u32 s82, 640")
    k.e("s_cbranch_scc1 L_b_hasconv")
    k.e(f"s_waitcnt vmcnt({w8})")
    k.e("s_barrier")
    k.e("s_cmp_eq_u32 s101, 3")
    k.e("s_cbranch_scc1 L_b_w7")
    k.e(f"s_waitcnt vmcnt({w9})")
    for x in prog_write(248, 251, 1): k.e(x)
    k.e("s_waitcnt vmcnt(0)")
    for x in prog_write(248, 251, 2): k.e(x)
    k.e("s_branch L_b_aprep")
    k.e("L_b_w7:")
    pre = watch_pre(228, 224)
    k.e("s_setprio 3")
    if W8P:
        k.e("s_lshl_b32 s83, s2, 7")
        k.e(f"s_add_u32 s83, s83, {FB}")
        publish(k, 83, 4)
        stamp(k, 2, 1)
    k.e(pre[0])
    k.e(f"s_waitcnt vmcnt({w9 + 1 + W8P})")
    for x in prog_write(248, 251, 1): k.e(x)
    k.e("s_waitcnt vmcnt(0)")
    for x in prog_write(248, 251, 2): k.e(x)
    k.e(f"v_cmp_ne_u64 vcc, s[{TAG}:{TAG+1}], v[228:229]")
    k.e("s_cmp_eq_u64 vcc, 0")
    k.e("s_cbranch_scc0 L_b_n1")
    k.e(f"ds_write_b32 v250, v249 offset:{UOK}")
    k.e("L_b_n1:")
    if WPUB == 99 and not W8P:
        k.e("s_lshl_b32 s83, s2, 7")
        k.e(f"s_add_u32 s83, s83, {FB}")
        prog_wait(k, "L_b_rs", 250, PV, PB, 10, 2)
        publish(k, 83, 4)
        stamp(k, 2, 1)
    if AWP:
        poll(k, "L_bwa", 228, 225, None, 10, 64, preloaded=True)
        k.e(f"ds_write_b32 v250, v249 offset:{UOK}")
    else:
        for _ in range(flag("WSL", 0)): k.e("s_sleep 16")
        if flag("EVT", 12):
            poll(k, "L_bw0", 228, 225, None, 10, 64, preloaded=True)
            k.e(f"ds_write_b32 v250, v249 offset:{UOK}")
            prog_wait(k, "L_b_evt", 250, PV, PA, 10, flag("EVT", 12), sleep=2)
        k.e(pre[1])
        watch(k, "L_bw", 228, 224, flag("BSL", 4))
    stamp(k, 2, 2)
    k.e("s_cmp_lg_u32 s2, 0")
    k.e("s_cbranch_scc1 L_b_aprep")
    k.e("s_setprio 0")
    k.e("v_lshlrev_b32 v1, 7, v0")
    k.e(f"s_mov_b32 s83, {FB}")
    k.e("L_ep_next:")
    poll(k, "L_ep", 4, 1, 83, 10, 64, sleep=16)
    k.e("s_add_u32 s83, s83, 8192")
    k.e(f"s_cmp_lt_u32 s83, {FB + 32768}")
    k.e("s_cbranch_scc1 L_ep_next")
    k.e(f"s_mov_b32 s83, {EP}")
    publish(k, 83, 4)
    k.e("s_branch L_b_aprep")
    k.e("L_b_hasconv:")
    if hk: conv.conv2_setup(k, 82)
    else: conv.conv4_late(k, 82)
    k.e(f"s_waitcnt vmcnt({w8 + hk})")
    k.e("s_barrier")
    (conv.conv3_addr if C3 else conv.conv2_addr)(k, 81)
    k.e(f"s_waitcnt vmcnt({w9 + hk})")
    for x in prog_write(248, 251, 1): k.e(x)
    k.e(f"s_waitcnt vmcnt({wr + hk})")
    for x in prog_write(248, 251, 2): k.e(x)
    k.e("L_b_conv:")
    k.e(f"v_mov_b32 v250, {CNT}")
    (conv.conv3_dma if C3 else conv.conv2_dma)(k, 81)
    k.e(f"s_waitcnt vmcnt({8 if C3 else 16})")
    conv.conv2_fix(k)
    k.e("L_b_c2:")
    stamp(k, 1, 0)
    lds_wait(k, "L_b_uw", 250, 251, UOK, 80)
    conv.conv_setup_u(k, 82, 81, SC1)
    k.e("s_waitcnt vmcnt(0)")
    if flag("FEV", 1) == 1: k.e(f"ds_write_b32 v250, v250 offset:24")
    stamp(k, 1, 1); stamp(k, 3, 3)
    k.e(f"s_setprio {flag('PC', 1)}")
    (conv.conv3_main if C3 else conv.conv_main)(k, "f")
    stamp(k, 3, 0)
    k.e("s_setprio 3")
    conv.conv_epilogue(k, 82, SC1)
    stamp(k, 3, 1)
    k.e(f"s_lshl_b32 s10, s82, {YSH}")
    k.e(f"s_add_u32 s83, s10, {FY}")
    k.e("s_waitcnt vmcnt(0)")
    stamp(k, 3, 2)
    publish(k, 83, 4, nbytes=1 << YSH)
    stamp(k, 1, 2)
    k.e("L_b_aprep:")
    k.e("s_setprio 1")
    b_aprep(k)
    stamp(k, 9, 0)
    ms_end(k, "b")
    finish(k, 1)
    k.e("L_free:")
    for _ in range(flag("XFREE")): k.e("s_sleep 64")
    k.e("s_waitcnt lgkmcnt(0)")
    flags_srd()
    k.e("s_sub_u32 s84, s2, 224")
    k.e("s_mov_b32 s85, s3")
    k.e("s_cmp_eq_u32 s3, 7")
    k.e("s_cbranch_scc1 L_free_code" if flag("CPF", 1) else "s_cbranch_scc1 L_free_sync")
    k.e("s_cmp_lt_u32 s3, 4")
    k.e("s_cbranch_scc1 L_free_stats")
    k.e("s_setprio 2")
    k.e("s_mul_i32 s85, s84, 3")
    k.e("s_add_u32 s85, s85, s101")
    k.e("s_add_u32 s85, s85, 224")
    aux.emit_prep(k, 85, 81, SC1)
    make_tag(k)
    k.e("s_lshl_b32 s85, s85, 7")
    k.e("s_waitcnt vmcnt(0)")
    publish(k, 85, 4)
    k.e("s_branch L_free_b")
    if flag("CPF", 1):
        k.e("L_free_code:")
        k.e("s_setprio 3")
        k.e("s_getpc_b64 s[40:41]")
        k.e("L_pc:")
        k.e(f"s_sub_u32 s40, s40, L_pc-{NAME}")
        k.e("s_subb_u32 s41, s41, 0")
        k.e(f"s_mov_b32 s42, L_end-{NAME}")
        k.e("s_mov_b32 s43, 0x20000")
        k.e("v_lshlrev_b32 v1, 7, v0")
        k.e("s_mov_b32 s44, 0")
        for i in range(4):
            k.e(f"buffer_load_dword v{200+i}, v1, s[40:43], s44 offen")
            k.e("s_add_u32 s44, s44, 8192")
        k.e("s_setprio 0")
        if AGG:
            k.e("s_waitcnt lgkmcnt(0)")
            make_tag(k)
            k.e("s_cmp_ge_u32 s84, 10")
            k.e("s_cbranch_scc1 L_free_noagg")
            k.e("v_mul_u32_u24 v2, 1280, v0")
            k.e("s_lshl_b32 s85, s84, 7")
            for _ in range(flag("UAGS", 3)): k.e("s_sleep 40")
            k.e("s_setprio 3")
            poll(k, "L_agu", 4, 2, 85, 10, 32, sleep=8)
            k.e(f"s_add_u32 s85, s85, {FS}")
            publish(k, 85, 4)
            k.e("L_free_noagg:")
            k.e("s_barrier")
            k.e("s_branch L_free_b")
        k.e("s_waitcnt lgkmcnt(0)")
        make_tag(k)
        k.e("s_branch L_free_b")
    k.e("L_free_stats:")
    stats_rows(k, 85)
    aux.emit_stats(k, 52, SC1)
    k.e("s_add_u32 s85, s85, 4")
    k.e("s_cmp_lt_u32 s85, 8")
    k.e("s_cbranch_scc1 L_free_stats")
    k.e("L_free_sync:")
    k.e("s_waitcnt vmcnt(0) lgkmcnt(0)")
    k.e("s_barrier")
    make_tag(k)
    k.e("s_branch L_free_a")
    k.e("L_free_b:")
    k.e("s_setprio 0")
    k.e("s_lshl_b32 s82, s84, 2")
    k.e("s_add_u32 s82, s82, s101")
    k.e("s_add_u32 s82, s82, 512")
    conv.conv2_setup(k, 82)
    conv.conv3_addr(k, 81)
    k.e(f"v_mov_b32 v250, {CNT}")
    conv.conv3_dma(k, 81)
    k.e("s_waitcnt vmcnt(8)")
    conv.conv2_fix(k)
    k.e("s_barrier")
    k.e("s_setprio 1")
    k.e("s_branch L_b_c2")
    k.e("L_free_a:")
    g2_offsets(k)
    srd(k, 44, P_WS, NB_W, W2_OFF)
    k.e("v_lshlrev_b32 v1, 4, v0")
    k.e("v_add_u32 v2, 4096, v1")
    if flag("XLEAD"):
        k.e("v_lshlrev_b32 v30, 7, v0")
        k.e("s_mov_b32 s10, s77")
        for i in range(9):
            k.e(f"buffer_load_dword v{32+i}, v30, s[44:47], s10 offen{SC1}")
            k.e("s_add_u32 s10, s10, 8192")
    if AGG:
        k.e("s_sub_u32 s85, s84, 10")
        k.e("s_cmp_lt_u32 s85, 4")
        k.e("s_cselect_b32 s10, s3, 0")
        k.e("s_cmp_lg_u32 s10, 1")
        k.e("s_cbranch_scc1 L_free_noaw")
        k.e("s_setprio 3")
        k.e("v_lshlrev_b32 v8, 9, v0")
        k.e("s_lshl_b32 s85, s85, 7")
        k.e(f"s_add_u32 s86, s85, {FB}")
        poll(k, "L_agw", 10, 8, 86, 10, 54, sleep=flag("WAGS", 4))
        k.e(f"s_add_u32 s85, s85, {FS + 1280}")
        publish(k, 85, 10)
        k.e("L_free_noaw:")
    k.e("s_cmp_lg_u32 s3, 0")
    k.e("s_cbranch_scc1 L_g2w")
    k.e("s_lshl_b32 s83, s2, 7")
    k.e(f"s_add_u32 s83, s83, {FB}")
    publish(k, 83, 4)
    k.e("s_lshl_b32 s62, s84, 2")
    k.e("s_add_u32 s62, s62, 512")
    watch_addr(k, 16, 62, 62)
    if flag("FEV", 1):
        k.e(watch_pre(20, 16)[0])
        watch(k, "L_fw", 20, 16, 4, lambda: lds_wait(k, "L_fev", 20, 24, 24, 10, sleep=4))
    elif flag("FLATE"):
        k.e(watch_pre(20, 16)[0])
        watch(k, "L_fw", 20, 16, flag("FSL", 4), lambda: [k.e("s_sleep 32") for _ in range(flag("FLATE"))])
    else:
        for x in watch_pre(20, 16): k.e(x)
        watch(k, "L_fw", 20, 16, flag("FSL", 4))
    k.e("s_branch L_g2w")
    ROLE[0] = "a"
    k.e("L_a:")
    k.e("s_setprio 3")
    prep_addr(k)
    k.e("s_waitcnt lgkmcnt(0)")
    prep_loads(k)
    if flag("SB", 1): k.e("s_barrier")
    k.e(f"s_setprio {flag('PAL', 0)}")
    flags_srd()
    g2_offsets(k)
    g1_setup(k)
    k.e("s_waitcnt lgkmcnt(0)")
    make_tag(k)
    prep_compute(k)
    if flag("FIXG"):
        srd(k, 12, P_DBG, 256)
        k.e("s_not_b32 s98, s96")
        k.e("v_mov_b32 v240, s98")
        k.e("v_mov_b32 v241, 0")
        k.e("s_cmp_lg_u32 s3, 0")
        k.e("s_cbranch_scc1 L_nog")
        k.e("s_mov_b64 exec, 1")
        k.e("buffer_atomic_umax v240, v241, s[12:15], 0 offen sc1")
        k.e("s_mov_b64 exec, -1")
        k.e("L_nog:")
    g1_phase(k)
    g2_phase(k)
    if flag("FIXT"):
        if flag("FIXG"):
            srd(k, 12, P_DBG, 256)
            k.e("v_mov_b32 v241, 0")
            k.e("buffer_load_dword v240, v241, s[12:15], 0 offen sc1")
            k.e("s_waitcnt vmcnt(0)")
            k.e("v_readfirstlane_b32 s96, v240")
            k.e("s_not_b32 s96, s96")
        k.e("L_fix:")
        k.e("s_memrealtime s[98:99]")
        k.e("s_waitcnt lgkmcnt(0)")
        k.e("s_sub_u32 s98, s98, s96")
        k.e(f"s_cmp_lt_u32 s98, {flag('FIXT')}")
        k.e("s_cbranch_scc1 L_fix")
    stamp(k, 9, 0)
    ms_end(k, "a")
    finish(k, 0)
    k.e("L_end:")
    k.e("s_endpgm")
    return k

if __name__ == "__main__":
    import sys
    hdr = open("recurrent_scan__ssm_conv_h3__dense_activation_relu__prompt.s.ref").read().split("; Override")[0]
    k = kernel()
    out = hdr + f"; @launch grid=(256,1,1) block=(512,1,1) lds={LDS_BYTES}\n"
    out += '.amdgcn_target "amdgcn-amd-amdhsa--gfx950"\n.text\n' + k.body() + '.section .rodata,"a"\n' + k.desc()
    open(sys.argv[1], "w").write(out)
```

```python
from common import *
import aux, conv, k1
from conv import interleave, CONV_LDS
from k1 import Vm, is_vmem, SLOT, WPART, NSTAGE, Rec

NAME = "recurrent_scan__ssm_conv_h3__dense_activation_relu__prompt_kernel"
SC1 = " sc1"
OOB = 0x40000000
RB0 = 65536
EA = 131072
TOP = RB0 + 4 * CONV_LDS
RLB = 135168
CNT = 163776
LDS_BYTES = 163840
YCNT, YOK, AUXOK, UOK, PROG, PA, PB = 0, 4, 12, 16, 20, 32, 48
XO, YO, SO = 0, 3072, 6144
HSH = 7; YSH = flag("YSH", 3)
FA, EP, FB, FH = 0, 40960, 45056, 77824
FY = FH + (1024 << 7)
FS = FY + (640 << 7)
FL_BYTES = FS + (16 << 7)
AGG = flag('AGG', 0)
TAG, FSRD = 90, 92
SPIN_MAX = 0x20000
NSTEP, NH, NW = 14, 4, 5
G_ACC, G_H = 8, 88
W_SL = [176, 196, 216, 236, 156]
C3 = flag("C3", 1)
EWI = flag("EWI", 0)
EPI = flag("EPI", 1)
AWP = flag("AWP", 0)
ST = flag("ST", 0)
MS = os.environ.get("MS", "")
ROLE = [None]
def stamp(k, setno, i):
    if ST == setno: stamp_mid(k, i)
    if MS == f"{setno}:{i}:{ROLE[0]}":
        k.e("s_memrealtime s[10:11]")
        k.e("s_waitcnt lgkmcnt(0)")
        k.e("s_sub_u32 s12, s10, s96")
def ms_end(k, tag):
    if not MS: return
    srd(k, 40, P_DBG, 256)
    k.e("v_mov_b32 v240, s12")
    k.e("v_mov_b32 v241, 0")
    k.e("s_mov_b64 exec, 1")
    k.e("buffer_atomic_umax v240, v241, s[40:43], 0 offen sc1")
    k.e("s_mov_b64 exec, -1")
    k.e("s_cmp_lg_u32 s100, 0")
    k.e(f"s_cbranch_scc1 L_mse{tag}")
    k.e("s_mov_b32 s13, 6000")
    for ph in range(2):
        k.e(f"L_ms{tag}{ph}:")
        k.e("s_memrealtime s[98:99]")
        k.e("s_waitcnt lgkmcnt(0)")
        k.e("s_sub_u32 s98, s98, s96")
        k.e("s_cmp_lt_u32 s98, s13")
        k.e(f"s_cbranch_scc1 L_ms{tag}{ph}")
        if ph == 0:
            k.e("buffer_load_dword v240, v241, s[40:43], 0 offen sc1")
            k.e("s_waitcnt vmcnt(0)")
            k.e("v_readfirstlane_b32 s14, v240")
            k.e("s_add_u32 s13, s13, s14")
    k.e(f"L_mse{tag}:")
def cstamp(k, name, i):
    if STAMP and os.environ.get("CK", "").split(",")[i:i+1] == [name]:
        stamp_mid(k, 2*i)
        k.e("s_memtime s[10:11]")
        k.e("s_waitcnt lgkmcnt(0)")
        k.e(f"s_mov_b32 s{13+2*i}, s10")
def cs(k, name):
    cstamp(k, name, 0); cstamp(k, name, 1)

def make_tag(k):
    k.e(f"s_mul_i32 s{TAG}, s{TAG}, 1664525")
    k.e(f"s_add_u32 s{TAG}, s{TAG}, 1013904223")
    k.e(f"s_mul_i32 s{TAG+1}, s{TAG+1}, 22695477")
    k.e(f"s_add_u32 s{TAG+1}, s{TAG+1}, 1")

HSC = '' if flag('HPLAIN') else SC1
def publish(k, s_off, va, SC1=SC1, nbytes=128):
    if not flag("FULLF", 1): nbytes = 8
    k.e(f"v_mov_b32 v{va}, s{TAG}")
    k.e(f"v_mov_b32 v{va+1}, s{TAG+1}")
    if nbytes == 8:
        k.e(f"v_mov_b32 v{va+2}, 0")
        k.e("s_mov_b64 exec, 1")
    else:
        k.e(f"v_lshlrev_b32 v{va+2}, 3, v0")
        k.e(f"s_bfm_b64 exec, {nbytes // 8}, 0")
    k.e(f"buffer_store_dwordx2 v[{va}:{va+1}], v{va+2}, s[{FSRD}:{FSRD+3}], s{s_off} offen{SC1}")
    k.e("s_mov_b64 exec, -1")

def poll(k, lbl, vd, voff, s_off, s_cnt, nlanes, sleep=4, preloaded=False):
    so = f"s{s_off}" if s_off is not None else "0"
    k.e(f"s_mov_b32 s{s_cnt}, 0")
    if nlanes < 64: k.e(f"s_bfm_b64 exec, {nlanes}, 0")
    if preloaded: k.e(f"s_branch {lbl}_chk")
    k.e(f"{lbl}:")
    k.e(f"buffer_load_dwordx2 v[{vd}:{vd+1}], v{voff}, s[{FSRD}:{FSRD+3}], {so} offen{SC1}")
    k.e("s_waitcnt vmcnt(0)")
    k.e(f"{lbl}_chk:")
    k.e(f"v_cmp_ne_u64 vcc, s[{TAG}:{TAG+1}], v[{vd}:{vd+1}]")
    k.e("s_and_b64 exec, exec, vcc")
    k.e(f"s_cbranch_scc0 {lbl}_ok")
    k.e(f"s_sleep {sleep}")
    k.e(f"s_add_u32 s{s_cnt}, s{s_cnt}, 1")
    k.e(f"s_cmp_lt_u32 s{s_cnt}, {SPIN_MAX:#x}")
    k.e(f"s_cbranch_scc1 {lbl}")
    k.e(f"{lbl}_ok:")
    k.e("s_mov_b64 exec, -1")

def lds_wait(k, lbl, vaddr, vtmp, off, s_tmp, sleep=2):
    k.e(f"{lbl}:")
    k.e(f"ds_read_b32 v{vtmp}, v{vaddr} offset:{off}")
    k.e("s_waitcnt lgkmcnt(0)")
    k.e(f"v_readfirstlane_b32 s{s_tmp}, v{vtmp}")
    k.e(f"s_cmp_lg_u32 s{s_tmp}, 0")
    k.e(f"s_cbranch_scc1 {lbl}_ok")
    k.e(f"s_sleep {sleep}")
    k.e(f"s_branch {lbl}")
    k.e(f"{lbl}_ok:")

def prog_write(vaddr, vtmp, val):
    return [f"v_mov_b32 v{vtmp}, {val}", f"s_mov_b64 exec, 1\nds_write_b32 v{vaddr}, v{vtmp}\ns_mov_b64 exec, -1"]
def prog_min(vd, s_tmp):
    return [f"v_min3_u32 v{vd}, v{vd}, v{vd+1}, v{vd+2}", f"v_min_u32 v{vd}, v{vd}, v{vd+3}", f"v_readfirstlane_b32 s{s_tmp}, v{vd}"]
def prog_spin(k, lbl, vcnt, vd, off, s_tmp, need, sleep=0):
    k.e(f"s_cmp_ge_u32 s{s_tmp}, {need}")
    k.e(f"s_cbranch_scc1 {lbl}_ok")
    k.e(f"{lbl}:")
    if sleep: k.e(f"s_sleep {sleep}")
    k.e(f"ds_read_b128 v[{vd}:{vd+3}], v{vcnt} offset:{off}")
    k.e("s_waitcnt lgkmcnt(0)")
    for x in prog_min(vd, s_tmp): k.e(x)
    k.e(f"s_cmp_lt_u32 s{s_tmp}, {need}")
    k.e(f"s_cbranch_scc1 {lbl}")
    k.e(f"{lbl}_ok:")
def prog_wait(k, lbl, vcnt, vd, off, s_tmp, need, sleep=1):
    k.e(f"s_mov_b32 s{s_tmp}, 0")
    prog_spin(k, lbl, vcnt, vd, off, s_tmp, need, sleep)

def watch_addr(k, va, s_cha, s_chb):
    if AGG:
        k.e("s_lshr_b32 s10, s9, 1")
        k.e(f"s_add_u32 s10, s10, {10 + (FS >> 7)}")
        k.e("s_lshl_b32 s10, s10, 7")
        k.e(f"v_mov_b32 v{va}, s10")
        k.e(f"s_lshr_b32 s10, s{s_cha}, 6")
        k.e(f"s_lshr_b32 s11, s{s_chb}, 6")
        k.e(f"v_mov_b32 v{va+1}, s11")
        k.e(f"v_writelane_b32 v{va+1}, s10, 0")
        k.e(f"v_lshlrev_b32 v{va+1}, 7, v{va+1}")
        k.e(f"v_add_u32 v{va+1}, {FS}, v{va+1}")
        return
    k.e("s_lshr_b32 s10, s9, 1")
    k.e(f"s_add_u32 s10, s10, {FB >> 7}")
    k.e(f"v_lshl_add_u32 v{va}, v0, 2, s10")
    k.e(f"v_mov_b32 v{va+1}, s10")
    k.e("v_cmp_gt_u32 vcc, 54, v0")
    k.e(f"v_cndmask_b32 v{va}, v{va+1}, v{va}, vcc")
    k.e(f"v_lshlrev_b32 v{va}, 7, v{va}")
    k.e(f"s_lshr_b32 s10, s{s_cha}, 6")
    k.e(f"s_lshr_b32 s11, s{s_chb}, 6")
    k.e(f"v_mov_b32 v{va+1}, s11")
    k.e(f"v_mov_b32 v{va+2}, s10")
    k.e("v_cmp_gt_u32 vcc, 32, v0")
    k.e(f"v_cndmask_b32 v{va+1}, v{va+1}, v{va+2}, vcc")
    k.e(f"v_and_b32 v{va+2}, 31, v0")
    k.e(f"v_mad_u32_u24 v{va+1}, v{va+2}, 10, v{va+1}")
    k.e(f"v_lshlrev_b32 v{va+1}, 7, v{va+1}")
def watch_pre(vd, va):
    return [f"buffer_load_dwordx2 v[{vd}:{vd+1}], v{va+1}, s[{FSRD}:{FSRD+3}], 0 offen{SC1}",
            f"buffer_load_dwordx2 v[{vd+2}:{vd+3}], v{va}, s[{FSRD}:{FSRD+3}], 0 offen{SC1}"]
def watch(k, lbl, vd, va, sl=4, late=None):
    k.e("s_waitcnt vmcnt(0)")
    poll(k, lbl + "a", vd, va + 1, None, 10, 64, sleep=sl, preloaded=True)
    k.e(f"v_mov_b32 v{vd}, {CNT}")
    k.e(f"v_mov_b32 v{vd+1}, 1")
    k.e(f"ds_write_b32 v{vd}, v{vd+1} offset:{UOK}")
    if late: late()
    poll(k, lbl + "b", vd + 2, va, None, 10, 64, sleep=sl, preloaded=not late)
    k.e(f"ds_write_b32 v{vd}, v{vd+1} offset:{AUXOK}")

def xo_offsets(k, vb, t1, t2):
    k.e("s_lshl_b32 s53, s8, 2")
    k.e("s_add_u32 s53, s53, s101")
    k.e("s_mul_i32 s54, s53, 20480")
    k.e("s_mul_i32 s55, s9, 160")
    k.e("s_add_u32 s54, s54, s55")
    for i in range(3):
        k.e(f"v_add_u32 v{t1}, {64*i}, v0")
        k.e(f"v_mul_u32_u24 v{t2}, 6554, v{t1}")
        k.e(f"v_lshrrev_b32 v{t2}, 16, v{t2}")
        k.e(f"v_mul_u32_u24 v{t2}, 1120, v{t2}")
        k.e(f"v_lshl_add_u32 v{vb+i}, v{t1}, 4, v{t2}")
    k.e(f"v_mov_b32 v{t2}, {OOB}")
    k.e("v_cmp_gt_u32 vcc, 32, v0")
    k.e(f"v_cndmask_b32 v{vb+2}, v{t2}, v{vb+2}, vcc")

def unit_ids(k, s_rb, s_cgp):
    k.e(f"s_mul_i32 s{s_rb}, s2, 6554")
    k.e(f"s_lshr_b32 s{s_rb}, s{s_rb}, 16")
    k.e(f"s_mul_i32 s{s_cgp}, s{s_rb}, 10")
    k.e(f"s_sub_u32 s{s_cgp}, s2, s{s_cgp}")
def prep_addr(k):
    unit_ids(k, 52, 53)
    k.e("s_lshl_b32 s54, s52, 2")
    k.e("s_add_u32 s54, s54, s101")
    k.e("s_mul_i32 s54, s54, 20480")
    k.e("s_lshl_b32 s55, s53, 7")
    k.e("s_add_u32 s54, s54, s55")
    k.e("v_lshrrev_b32 v1, 3, v0")
    k.e("v_mul_u32_u24 v2, 1280, v1")
    k.e("v_and_b32 v3, 7, v0")
    k.e("v_lshl_add_u32 v2, v3, 4, v2")
    if flag("XNOPL"): k.e(f"s_mov_b32 s54, {OOB}")
    k.e("v_add_u32 v200, s54, v2")
    k.e("v_subrev_u32 v201, 3840, v200")
    k.e(f"v_add_u32 v202, {10240 - 3840 - 1024}, v200")
    k.e(f"v_add_u32 v203, {20480 - 3840 - 2048}, v200")
    k.e(f"v_mov_b32 v6, {OOB}")
    k.e("v_cmp_gt_u32 vcc, 24, v0")
    k.e("v_cndmask_b32 v203, v6, v203, vcc")
    k.e(f"v_add_u32 v204, {10240 - 1024}, v200")
    k.e("s_mul_i32 s56, s101, 5120")
    k.e(f"s_add_u32 s56, s56, {EA}")
    k.e("v_and_b32 v7, 31, v0")
    k.e("s_lshl_b32 s55, s53, 9")
    k.e("v_lshl_add_u32 v205, v7, 4, s55")
def prep_loads(k):
    srd(k, 40, P_K, NB_X)
    k.e("s_mov_b32 m0, s56")
    k.e("buffer_load_dwordx4 v201, s[40:43], 0 offen lds")
    k.e("buffer_load_dwordx4 v202, s[40:43], 0 offen offset:1024 lds")
    k.e("buffer_load_dwordx4 v203, s[40:43], 0 offen offset:2048 lds")
    srd(k, 44, P_V, NB_X)
    k.e("s_add_u32 m0, s56, 3072")
    k.e("buffer_load_dwordx4 v200, s[44:47], 0 offen lds")
    k.e("buffer_load_dwordx4 v204, s[44:47], 0 offen offset:1024 lds")
    srd(k, 48, P_SH, D * 8)
    k.e("buffer_load_dwordx4 v[212:215], v205, s[48:51], 0 offen")
    k.e("v_lshrrev_b32 v9, 5, v0")
    k.e("v_lshlrev_b32 v10, 10, v9")
    k.e("v_lshl_add_u32 v10, v7, 2, v10")
    k.e("v_add_u32 v209, s56, v10")
    k.e("v_sub_u32 v11, 1, v9")
    k.e("v_lshlrev_b32 v11, 4, v11")
    k.e("v_lshl_add_u32 v11, v7, 6, v11")
    k.e("v_add_u32 v210, s56, v11")
def prep_compute(k):
    KR, VR, TP, KU, VU, KV, OUT = 112, 124, 132, 140, 216, 180, 184
    k.e("s_waitcnt vmcnt(0)")
    for j in range(11): k.e(f"ds_read_b32 v{KR+j}, v209 offset:{128*j}")
    for j in range(8): k.e(f"ds_read_b32 v{VR+j}, v209 offset:{3072 + 128*j}")
    for c in range(2):
        unpack(k, TP + 0 + c, TP + 2 + c, 212 + 2*c)
        unpack(k, TP + 4 + c, TP + 6 + c, 213 + 2*c)
    k.e("s_waitcnt lgkmcnt(8)")
    for j in range(11): unpack(k, KU + 2*j, KU + 2*j + 1, KR + j)
    k.e("s_waitcnt lgkmcnt(0)")
    for j in range(8): unpack(k, VU + 2*j, VU + 2*j + 1, VR + j)
    for r in range(8):
        d = KV + 2*(r & 1)
        for j in (3, 2, 1, 0):
            w = KU + 2*(r + 3 - j); t = TP + 2*j
            if j == 3: k.e(f"v_pk_mul_f32 v[{d}:{d+1}], v[{w}:{w+1}], v[{t}:{t+1}]")
            else: k.e(f"v_pk_fma_f32 v[{d}:{d+1}], v[{w}:{w+1}], v[{t}:{t+1}], v[{d}:{d+1}]")
        k.e(f"v_pk_mul_f32 v[{d}:{d+1}], v[{d}:{d+1}], v[{VU+2*r}:{VU+2*r+1}]")
        if r & 1:
            for c in range(2):
                k.e(f"v_cvt_pk_bf16_f32 v{OUT+4*c+3-r//2}, v{KV+2+c}, v{KV+c}")
    for c in range(2):
        k.e(f"ds_write_b128 v210, v[{OUT+4*c}:{OUT+4*c+3}] offset:{32*c}")

def b_aux_addr(k):
    srd(k, 84, P_W2, NB_W)
    srd(k, 44, P_WS, NB_W, W2_OFF)
    srd(k, 40, P_WS, NB_T, UR_OFF)
    k.e("s_lshr_b32 s57, s2, 2")
    k.e("s_and_b32 s58, s2, 3")
    k.e("s_mul_i32 s59, s57, 40960")
    k.e("s_mul_i32 s60, s58, 320")
    k.e("s_add_u32 s59, s59, s60")
    k.e("s_lshl_b32 s60, s101, 6")
    k.e("s_lshl_b32 s61, s101, 10")
    for i in range(3):
        k.e("v_add_u32 v9, s60, v0")
        if i: k.e(f"v_add_u32 v9, {256*i}, v9")
        k.e("v_mul_u32_u24 v10, 52429, v9")
        k.e("v_lshrrev_b32 v10, 20, v10")
        k.e("v_mul_u32_u24 v10, 960, v10")
        k.e(f"v_lshl_add_u32 v{206+i}, v9, 4, v10")
    k.e("s_cmp_ge_u32 s101, 2")
    k.e(f"s_cselect_b32 s60, {OOB}, 0")
    k.e("v_add_u32 v208, s60, v208")
    k.e(f"s_add_u32 s62, s61, {EA + 20480 + 8192}")
    k.e("s_cmp_ge_u32 s101, 2")
    k.e(f"s_cselect_b32 s62, {EA + 30720}, s62")
def b_aux_addr2(k):
    k.e("s_lshr_b32 s10, s101, 1")
    k.e("s_and_b32 s11, s101, 1")
    k.e("s_mul_i32 s60, s10, 5")
    k.e("s_mul_i32 s54, s11, 3")
    k.e("s_add_u32 s60, s60, s54")
    k.e("s_lshl_b32 s60, s60, 5")
    k.e(f"s_add_u32 s60, s60, {EA + 20480}")
    k.e("v_lshrrev_b32 v11, 2, v0")
    k.e("v_mul_u32_u24 v11, 320, v11")
    k.e("v_and_b32 v12, 3, v0")
    k.e("v_lshl_add_u32 v11, v12, 3, v11")
    k.e("v_add_u32 v214, s60, v11")
    k.e("s_lshl_b32 s60, s58, 1")
    k.e("s_add_u32 s60, s60, s10")
    k.e(f"s_mul_i32 s89, s60, {NT}")
    k.e("s_add_u32 s89, s89, s57")
    k.e("s_mul_i32 s89, s89, 5120")
    k.e("s_lshl_b32 s54, s54, 10")
    k.e("s_add_u32 s89, s89, s54")
    k.e("s_cmp_ge_u32 s2, 216")
    k.e(f"s_cselect_b32 s89, {OOB}, s89")
    if flag("XNOW"): k.e(f"s_mov_b32 s89, {OOB}")
    k.e("v_lshlrev_b32 v215, 4, v0")
    k.e("s_cmp_eq_u32 s11, 1")
    k.e(f"s_cselect_b32 s54, {OOB}, 0")
    k.e("v_add_u32 v216, s54, v215")
    unit_ids(k, 52, 53)
    k.e("v_lshrrev_b32 v1, 3, v0")
    k.e("v_and_b32 v3, 7, v0")
    k.e("v_lshrrev_b32 v11, 1, v3")
    k.e("v_sub_u32 v11, 3, v11")
    k.e("v_mul_u32_u24 v11, 5120, v11")
    k.e("v_lshl_add_u32 v11, v1, 5, v11")
    k.e("v_and_b32 v12, 1, v3")
    k.e("v_lshl_add_u32 v11, v12, 4, v11")
    k.e("s_lshl_b32 s55, s101, 9")
    k.e(f"s_add_u32 s55, s55, {EA}")
    k.e("v_add_u32 v211, s55, v11")
    k.e(f"v_mul_u32_u24 v232, {RS}, v1")
    k.e("v_lshl_add_u32 v232, v3, 4, v232")
    k.e(f"v_add_u32 v233, {8*RS}, v232")
    k.e("s_lshl_b32 s63, s53, 2")
    k.e("s_add_u32 s63, s63, s101")
    k.e(f"s_mul_i32 s63, s63, {16*RS}")
    k.e("s_lshl_b32 s55, s52, 7")
    k.e("s_sub_u32 s55, 3968, s55")
    k.e("s_add_u32 s63, s63, s55")
    if flag("XNOST"):
        k.e(f"s_mov_b32 s63, {OOB}")
        k.e(f"s_mov_b32 s89, {OOB}")
def rel_loads():
    return [f"s_add_u32 m0, s61, {EA + 20480}",
            "buffer_load_dwordx4 v206, s[84:87], s59 offen lds",
            f"s_add_u32 m0, s61, {EA + 20480 + 4096}",
            "buffer_load_dwordx4 v207, s[84:87], s59 offen lds",
            "s_mov_b32 m0, s62",
            "buffer_load_dwordx4 v208, s[84:87], s59 offen lds"]
def aux_out():
    L = [f"ds_read_b128 v[{100+4*i}:{103+4*i}], v211 offset:{256*i}" for i in range(2)]
    for i in range(3):
        L.append(f"ds_read_b64_tr_b16 v[{188+4*i}:{189+4*i}], v214 offset:{32*i}")
        L.append(f"ds_read_b64_tr_b16 v[{190+4*i}:{191+4*i}], v214 offset:{32*i + 5120}")
    L.append("s_waitcnt lgkmcnt(0)")
    L += [f"buffer_store_dwordx4 v[{100+4*i}:{103+4*i}], v{232+i}, s[40:43], s63 offen{SC1}" for i in range(2)]
    L += [f"buffer_store_dwordx4 v[{188+4*i}:{191+4*i}], v{216 if i == 2 else 215}, s[44:47], s89 offen offset:{1024*i}{SC1}" for i in range(3)]
    return L

def rel1_addr(k):
    srd(k, 84, P_W2, NB_W)
    srd(k, 44, P_WS, NB_W, W2_OFF)
    k.e("s_lshr_b32 s57, s2, 2")
    k.e("s_and_b32 s58, s2, 3")
    k.e("s_mul_i32 s59, s57, 40960")
    k.e("s_mul_i32 s60, s58, 320")
    k.e("s_add_u32 s59, s59, s60")
    k.e("s_lshl_b32 s60, s101, 6")
    k.e("s_lshl_b32 s61, s101, 10")
    for i in range(3):
        k.e("v_add_u32 v9, s60, v0")
        if i: k.e(f"v_add_u32 v9, {256*i}, v9")
        k.e("v_mul_u32_u24 v10, 52429, v9")
        k.e("v_lshrrev_b32 v10, 20, v10")
        k.e("v_mul_u32_u24 v10, 960, v10")
        k.e(f"v_lshl_add_u32 v{110+i}, v9, 4, v10")
    k.e("s_cmp_ge_u32 s101, 2")
    k.e(f"s_cselect_b32 s60, {OOB}, 0")
    k.e("v_add_u32 v112, s60, v112")
    k.e("v_lshrrev_b32 v11, 2, v0")
    k.e("v_mul_u32_u24 v11, 320, v11")
    k.e("v_and_b32 v12, 3, v0")
    k.e("v_lshl_add_u32 v11, v12, 3, v11")
    k.e("s_lshr_b32 s10, s101, 1")
    k.e("s_and_b32 s11, s101, 1")
    k.e("s_mul_i32 s60, s10, 5")
    k.e("s_mul_i32 s54, s11, 3")
    k.e("s_add_u32 s60, s60, s54")
    k.e("s_lshl_b32 s60, s60, 5")
    k.e(f"s_add_u32 s60, s60, {RLB}")
    k.e("v_add_u32 v214, s60, v11")
    k.e("s_lshl_b32 s60, s58, 1")
    k.e("s_add_u32 s60, s60, s10")
    k.e(f"s_mul_i32 s89, s60, {NT}")
    k.e("s_add_u32 s89, s89, s57")
    k.e("s_mul_i32 s89, s89, 5120")
    k.e("s_lshl_b32 s54, s54, 10")
    k.e("s_add_u32 s89, s89, s54")
    k.e("s_cmp_ge_u32 s2, 216")
    k.e(f"s_cselect_b32 s89, {OOB}, s89")
    if flag("XNOW"): k.e(f"s_mov_b32 s89, {OOB}")
    k.e("v_lshlrev_b32 v215, 4, v0")
    k.e("s_cmp_eq_u32 s11, 1")
    k.e(f"s_cselect_b32 s54, {OOB}, 0")
    k.e("v_add_u32 v216, s54, v215")
def rel1_loads():
    L = []
    for i in range(3):
        L.append(f"s_add_u32 m0, s61, {RLB + 4096*i}")
        L.append(f"buffer_load_dwordx4 v{110+i}, s[84:87], s59 offen lds")
    return L
def rel1_reads():
    L = []
    for i in range(3):
        L.append(f"ds_read_b64_tr_b16 v[{188+4*i}:{189+4*i}], v214 offset:{32*i}")
        L.append(f"ds_read_b64_tr_b16 v[{190+4*i}:{191+4*i}], v214 offset:{32*i + 5120}")
    return L
def rel1_stores():
    return ["s_waitcnt lgkmcnt(0)"] + [f"buffer_store_dwordx4 v[{188+4*i}:{191+4*i}], v{216 if i == 2 else 215}, s[44:47], s89 offen offset:{1024*i}{SC1}" for i in range(3)]
def u_addr(k):
    srd(k, 40, P_WS, NB_T, UR_OFF)
    unit_ids(k, 52, 53)
    k.e("v_lshrrev_b32 v1, 3, v0")
    k.e("v_and_b32 v3, 7, v0")
    k.e("v_lshrrev_b32 v11, 1, v3")
    k.e("v_sub_u32 v11, 3, v11")
    k.e("v_mul_u32_u24 v11, 5120, v11")
    k.e("v_lshl_add_u32 v11, v1, 5, v11")
    k.e("v_and_b32 v12, 1, v3")
    k.e("v_lshl_add_u32 v11, v12, 4, v11")
    k.e("s_lshl_b32 s55, s101, 9")
    k.e(f"s_add_u32 s55, s55, {EA}")
    k.e("v_add_u32 v211, s55, v11")
    k.e(f"v_mul_u32_u24 v232, {RS}, v1")
    k.e("v_lshl_add_u32 v232, v3, 4, v232")
    k.e(f"v_add_u32 v233, {8*RS}, v232")
    k.e("s_lshl_b32 s63, s53, 2")
    k.e("s_add_u32 s63, s63, s101")
    k.e(f"s_mul_i32 s63, s63, {16*RS}")
    k.e("s_lshl_b32 s55, s52, 7")
    k.e("s_sub_u32 s55, 3968, s55")
    k.e("s_add_u32 s63, s63, s55")
def u_out():
    L = [f"ds_read_b128 v[{100+4*i}:{103+4*i}], v211 offset:{256*i}" for i in range(2)]
    L.append("s_waitcnt lgkmcnt(0)")
    L += [f"buffer_store_dwordx4 v[{100+4*i}:{103+4*i}], v{232+i}, s[40:43], s63 offen{SC1}" for i in range(2)]
    return L

def g2_offsets(k):
    k.e("s_mul_i32 s10, s101, 14")
    k.e("s_cmp_eq_u32 s101, 3")
    k.e("s_cselect_b32 s10, 41, s10")
    k.e(f"s_mul_i32 s11, s8, {NT}")
    k.e("s_add_u32 s11, s11, s10")
    k.e("s_lshl_b32 s76, s11, 12")
    k.e(f"s_mul_i32 s11, s9, {NT}")
    k.e("s_add_u32 s11, s11, s10")
    k.e("s_mul_i32 s77, s11, 5120")
    k.e("s_cmp_ge_u32 s101, 2")
    k.e(f"s_cselect_b32 s79, {OOB}, 0")
    k.e("s_mul_i32 s75, s101, 7")
    k.e("s_min_u32 s75, s75, 20")
    k.e("s_lshl_b32 s11, s8, 5")
    k.e("s_add_u32 s75, s75, s11")
    k.e(f"s_lshl_b32 s75, s75, {HSH}")
    k.e(f"s_add_u32 s75, s75, {FH}")
    k.e("s_lshl_b32 s74, s101, 14")
    k.e("s_min_u32 s10, s10, 40")
    k.e("s_lshl_b32 s10, s10, 2")
    k.e("s_lshr_b32 s11, s9, 1")
    k.e("s_add_u32 s10, s10, s11")
    k.e("s_lshl_b32 s10, s10, 7")
    k.e(f"s_add_u32 s71, s10, {FB}")
LSTEPS = [int(x) for x in os.environ.get("LSTEPS", "5,8,11").split(",")]
def soff(dst, base, step, mul):
    st = step
    if flag("XHIT") & 1 and mul == 4096: st = step % 2
    if flag("XHIT") & 2 and mul == 5120: st = step % 2
    L = [f"s_add_u32 s{dst}, s{base}, {st * mul}"]
    if step == NSTEP - 1: L.append(f"s_add_u32 s{dst}, s{dst}, s79")
    return L
def w_loads(step):
    b = W_SL[step % NW]
    L = soff(73, 77, step, 5120)
    L += [f"buffer_load_dwordx4 v[{b+4*d}:{b+4*d+3}], v1, s[44:47], s73 offen offset:{1024*d}{SC1}" for d in range(4)]
    L.append(f"buffer_load_dwordx4 v[{b+16}:{b+19}], v2, s[44:47], s73 offen{SC1}")
    return L
def h_loads(step):
    b = G_H + 16 * (step % NH)
    L = soff(72, 76, step, 4096)
    L += [f"buffer_load_dwordx4 v[{b+4*m}:{b+4*m+3}], v{3+m}, s[40:43], s72 offen{SC1}" for m in range(4)]
    return L
def w_lds_reads(step):
    b = W_SL[step % NW]
    return [f"ds_read_b128 v[{b+4*d}:{b+4*d+3}], v7 offset:{LSTEPS.index(step)*5120 + 1024*d}" for d in range(5)]
def g2_mfmas(step, order=None):
    b = G_H + 16 * (step % NH); wb = W_SL[step % NW]
    L = []
    for d, m in (order or [(d, m) for d in range(5) for m in range(4)]):
        a = G_ACC + 16*d + 4*m
        c = "0" if step == 0 else f"v[{a}:{a+3}]"
        L.append(f"v_mfma_f32_16x16x32_bf16 v[{a}:{a+3}], v[{wb+4*d}:{wb+4*d+3}], v[{b+4*m}:{b+4*m+3}], {c}")
    return L

def g2_phase(k):
    for s in range(EWI or flag("NP", 0), NW):
        for x in w_loads(s): k.e(x)
    srd(k, 40, P_WS, 32 * NT * 4096, H_OFF)
    k.e("s_lshl_b32 s52, s101, 10")
    k.e("v_add_u32 v3, s52, v1")
    for m in range(1, 4): k.e(f"v_xor_b32 v{3+m}, {1024*m}, v3")
    k.e(f"v_lshlrev_b32 v9, {HSH}, v0")
    EPOL = flag("EPOL", 8); left = 15
    for li, s in enumerate(LSTEPS):
        for x in soff(78, 77, s, 5120): k.e(x)
        for d in range(5):
            if left == EPOL:
                k.e("s_bfm_b64 exec, 7, 0")
                k.e(f"buffer_load_dwordx2 v[10:11], v9, s[{FSRD}:{FSRD+3}], s75 offen{SC1}")
                k.e("s_mov_b64 exec, -1")
            left -= 1
            if d in (0, 4): k.e(f"s_add_u32 m0, s74, {li*5120 + 1024*d}")
            if d < 4: k.e(f"buffer_load_dwordx4 v1, s[44:47], s78 offen offset:{1024*d}{SC1} lds")
            else: k.e(f"buffer_load_dwordx4 v2, s[44:47], s78 offen{SC1} lds")
    k.e("v_add_u32 v7, s74, v1")
    k.e(f"v_mov_b32 v152, {CNT}")
    k.e(f"s_waitcnt vmcnt({EPOL})")
    poll(k, "L_hpoll", 10, 9, 75, 58, 7, sleep=2, preloaded=True)
    stamp(k, 1, 2); cs(k, "rdy")
    vm = Vm(); need = {}
    NH0 = flag("NH0", 3)
    for s in range(NH0):
        for x in h_loads(s):
            k.e(x)
            if is_vmem(x): need[("h", s)] = vm.op()
    def groups(L):
        G = []; cur = []
        for x in L:
            cur.append(x)
            if is_vmem(x): G.append(cur); cur = []
        return G
    LA = flag("LA", 2); R = flag("RATE", 6)
    qh = [(s - (NH - 1), s - LA, "h", s, g) for s in range(NH0, NSTEP) for g in groups(h_loads(s))]
    qw = [(s - (NW - 1), s - LA, "w", s, g) for s in range(NW, NSTEP) if s not in LSTEPS for g in groups(w_loads(s))]
    for s in range(NSTEP):
        idx = max(need[("h", s)], need.get(("w", s), -1))
        lg = " lgkmcnt(0)" if (s in LSTEPS or s == NSTEP - 1) else ""
        k.e(f"s_waitcnt vmcnt({vm.wait(idx)}){lg}")
        if s in (0, 3, 7, 10): stamp(k, 4, (0, 3, 7, 10).index(s))
        if s in (10, 12, 13): stamp(k, 5, (10, 12, 13).index(s))
        if s == NSTEP - 1: break
        fill = []
        while (qh or qw):
            cand = [q for q in (qh, qw) if q and q[0][0] <= s]
            if not cand: break
            q = min(cand, key=lambda q: q[0][1])
            if len(fill) >= R and q[0][1] > s: break
            fill.append(q.pop(0))
        extra = []
        if s == flag("YAT", 7): extra.append(f"ds_write_b32 v152, v152 offset:{PROG}")
        if s + 2 in LSTEPS: extra += w_lds_reads(s + 2)
        if s == 12:
            r = Rec(); tail_addr(r); extra += ["\n".join(r.lines[i:i+2]) for i in range(0, len(r.lines), 2)]
        n = len(fill); fi = 0; ei = 0
        for i, x in enumerate(g2_mfmas(s)):
            k.e(x)
            if fi < n and i >= (fi * 18) // n:
                for y in fill[fi][4]: k.e(y)
                need[(fill[fi][2], fill[fi][3])] = vm.op(); fi += 1
            elif ei < len(extra):
                k.e(extra[ei]); ei += 1
        assert fi == n
        for y in extra[ei:]: k.e(y)
    assert not qh and not qw
    k.e("s_setprio 2")
    order = [(3, 0), (4, 0)] + [(d, m) for m in (1, 2, 3) for d in range(5)] + [(0, 0), (1, 0), (2, 0)]
    wr = [f"ds_write_b128 v{T+8}, v[{G_ACC+16*d}:{G_ACC+16*d+3}] offset:{OWN + 1024*(d-3)}" for d in (3, 4)]
    wr += [f"ds_write_b128 v7, v[{G_ACC+16*d+4*m}:{G_ACC+16*d+4*m+3}] offset:{(m-1)*5120 + 1024*d}" for d, m in order[2:17]]
    k.e("s_cmp_ge_u32 s101, 2")
    k.e("s_cbranch_scc1 L_g2_short")
    for x in interleave(g2_mfmas(NSTEP - 1, order), wr, start=6): k.e(x)
    k.e("s_branch L_g2_join")
    k.e("L_g2_short:")
    k.e("s_nop 7")
    for x in wr: k.e(x)
    k.e("L_g2_join:")
    stamp(k, 1, 3); cs(k, "mend")
    g2_tail(k)

T = 156
OWN = SO + 3072
assert C3
def tail_addr(k):
    srd(k, 48, P_OUT, NB_X)
    k.e("s_lshl_b32 s53, s8, 2")
    k.e("s_add_u32 s53, s53, s101")
    k.e("s_mul_i32 s54, s53, 20480")
    k.e("s_mul_i32 s55, s9, 160")
    k.e("s_add_u32 s54, s54, s55")
    for i in range(2):
        k.e(f"v_add_u32 v{T+3}, {64*i}, v0")
        k.e(f"v_mul_u32_u24 v{T+4}, 10923, v{T+3}")
        k.e(f"v_lshrrev_b32 v{T+4}, 16, v{T+4}")
        k.e(f"v_mul_u32_u24 v{T+4}, {1280-96}, v{T+4}")
        k.e(f"v_lshl_add_u32 v{T+i}, v{T+3}, 4, v{T+4}")
    k.e(f"v_mov_b32 v{T+4}, {OOB}")
    k.e("v_cmp_gt_u32 vcc, 32, v0")
    k.e(f"v_cndmask_b32 v{T+1}, v{T+4}, v{T+1}, vcc")
    for m in range(1, 4): k.e(f"v_xor_b32 v{T+4+m}, {16384*m}, v7")
    k.e(f"v_add_u32 v{T+8}, s81, v1")
    k.e(f"v_and_b32 v{T+9}, 15, v0")
    k.e(f"v_mul_u32_u24 v{T+9}, 96, v{T+9}")
    k.e(f"v_lshrrev_b32 v{T+10}, 4, v0")
    k.e(f"v_lshl_add_u32 v{T+9}, v{T+10}, 3, v{T+9}")
    k.e(f"v_add_u32 v{T+9}, s81, v{T+9}")
    k.e(f"v_mov_b32 v{T+12}, 1.0")
    k.e(f"v_mov_b32 v{T+13}, 1.0")
def final_block(k, a, s, x, cc, one):
    for h in range(2):
        k.e(f"v_pk_add_f32 v[{a+2*h}:{a+2*h+1}], v[{a+2*h}:{a+2*h+1}], v[{a+4+2*h}:{a+4+2*h+1}]")
        k.e(f"v_pk_add_f32 v[{a+8+2*h}:{a+8+2*h+1}], v[{a+8+2*h}:{a+8+2*h+1}], v[{a+12+2*h}:{a+12+2*h+1}]")
    for h in range(2):
        k.e(f"v_pk_add_f32 v[{a+2*h}:{a+2*h+1}], v[{a+2*h}:{a+2*h+1}], v[{a+8+2*h}:{a+8+2*h+1}]")
    e = a + 4
    for h in range(2):
        k.e(f"v_pk_mul_f32 v[{e+2*h}:{e+2*h+1}], v[{a+2*h}:{a+2*h+1}], v[{cc}:{cc+1}]")
    for r in range(4): k.e(f"v_exp_f32 v{e+r}, v{e+r}")
    for h in range(2):
        k.e(f"v_pk_mul_f32 v[{a+2*h}:{a+2*h+1}], v[{a+2*h}:{a+2*h+1}], v[{s+2*h}:{s+2*h+1}]")
    for h in range(2):
        k.e(f"v_pk_add_f32 v[{e+2*h}:{e+2*h+1}], v[{e+2*h}:{e+2*h+1}], v[{one}:{one+1}]")
    for r in range(4): k.e(f"v_rcp_f32 v{e+r}, v{e+r}")
    for h in range(2):
        k.e(f"v_pk_fma_f32 v[{a+2*h}:{a+2*h+1}], v[{a+2*h}:{a+2*h+1}], v[{e+2*h}:{e+2*h+1}], v[{x+2*h}:{x+2*h+1}]")
    k.e(f"v_cvt_pk_bf16_f32 v{a+8}, v{a}, v{a+1}")
    k.e(f"v_cvt_pk_bf16_f32 v{a+9}, v{a+2}, v{a+3}")
def g2_tail(k):
    k.e("s_waitcnt lgkmcnt(0)")
    stamp(k, 6, 0)
    k.e("s_barrier")
    stamp(k, 5, 3); stamp(k, 6, 1)
    SF, XF, CC = 88, 108, T + 14
    k.e(f"ds_read_b64 v[{CC}:{CC+1}], v{T+8} offset:{SO + 10240}")
    for d in range(3):
        for m in range(1, 4):
            a = G_ACC + 16*d + 4*m
            k.e(f"ds_read_b128 v[{a}:{a+3}], v{T+4+m} offset:{(m-1)*5120 + 1024*d}")
        k.e(f"ds_read_b128 v[{SF+4*d}:{SF+4*d+3}], v{T+8} offset:{SO + 1024*d}")
        k.e(f"ds_read_b128 v[{XF+4*d}:{XF+4*d+3}], v{T+8} offset:{SO + 5120 + 1024*d}")
    for d in range(3):
        k.e(f"s_waitcnt lgkmcnt({10-5*d})")
        final_block(k, G_ACC + 16*d, SF + 4*d, XF + 4*d, CC, T + 12)
    stamp(k, 6, 2)
    for d in range(3):
        a = G_ACC + 16*d
        k.e(f"ds_write_b64 v{T+9}, v[{a+8}:{a+9}] offset:{XO + 32*d}")
    k.e("s_waitcnt lgkmcnt(0)")
    O = 128
    for i in range(2): k.e(f"ds_read_b128 v[{O+4*i}:{O+4*i+3}], v{T+8} offset:{XO + 1024*i}")
    for i in range(2):
        k.e(f"s_waitcnt lgkmcnt({1-i})")
        k.e(f"buffer_store_dwordx4 v[{O+4*i}:{O+4*i+3}], v{T+i}, s[48:51], s54 offen")
    stamp(k, 6, 3)
def b_tail(k):
    srd(k, 48, P_OUT, NB_X)
    k.e("v_lshlrev_b32 v8, 4, v0")
    k.e("s_lshl_b32 s59, s101, 14")
    k.e("v_add_u32 v8, s59, v8")
    for m in range(1, 4): k.e(f"v_xor_b32 v{8+m}, {16384*m}, v8")
    k.e("v_and_b32 v12, 15, v0")
    k.e("v_lshlrev_b32 v12, 6, v12")
    k.e("v_lshrrev_b32 v13, 4, v0")
    k.e("v_lshl_add_u32 v12, v13, 3, v12")
    k.e("v_add_u32 v12, s81, v12")
    k.e("v_lshrrev_b32 v13, 2, v0")
    k.e("v_mul_u32_u24 v13, 1280, v13")
    k.e("v_and_b32 v14, 3, v0")
    k.e("v_lshl_add_u32 v13, v14, 4, v13")
    k.e("v_mov_b32 v14, 1.0")
    k.e("v_mov_b32 v15, 1.0")
    k.e("s_waitcnt lgkmcnt(0)")
    k.e("s_barrier")
    P = 104
    for i, d in enumerate((3, 4)):
        k.e(f"ds_read_b128 v[{P+16*i}:{P+16*i+3}], v37 offset:{OWN + 1024*i}")
        for m in range(1, 4):
            k.e(f"ds_read_b128 v[{P+16*i+4*m}:{P+16*i+4*m+3}], v{8+m} offset:{(m-1)*5120 + 1024*d}")
    for i, d in enumerate((3, 4)):
        k.e(f"s_waitcnt lgkmcnt({4-4*i})")
        final_block(k, P + 16*i, 60 + 4*d, 40 + 4*d, 38, 14)
    for i in range(2): k.e(f"ds_write_b64 v12, v[{P+16*i+8}:{P+16*i+9}] offset:{YO + 32*i}")
    k.e("s_waitcnt lgkmcnt(0)")
    k.e(f"ds_read_b128 v[16:19], v37 offset:{YO}")
    k.e("s_waitcnt lgkmcnt(0)")
    k.e("buffer_store_dwordx4 v[16:19], v13, s[48:51], s54 offen offset:96")

BA, AA, ONE, ACC, AR, AC, FR = 10, 14, 20, 24, 88, 96, 112
def g1_setup(k):
    srd(k, 48, P_WS, 32 * NT * 4096, H_OFF)
    srd(k, 44, P_WS, NB_W, W2_OFF)
    k.e("s_and_b32 s52, s3, 1")
    k.e("s_lshr_b32 s53, s3, 1")
    k.e("v_lshlrev_b32 v1, 4, v0")
    k.e("v_add_u32 v2, 4096, v1")
    k.e("v_and_b32 v18, 15, v0")
    k.e("v_lshrrev_b32 v19, 4, v0")
    k.e("v_lshrrev_b32 v20, 1, v18")
    k.e("v_xor_b32 v20, v20, v19")
    k.e("v_lshlrev_b32 v20, 4, v20")
    k.e("v_lshl_add_u32 v20, v18, 7, v20")
    k.e("s_lshl_b32 s58, s52, 13")
    k.e("s_lshl_b32 s59, s53, 12")
    k.e("s_add_u32 s58, s58, s59")
    k.e(f"v_add_u32 v{BA}, s58, v20")
    k.e(f"v_xor_b32 v{BA+1}, 64, v{BA}")
    k.e(f"v_xor_b32 v{BA+2}, 0x1000, v{BA}")
    k.e(f"v_xor_b32 v{BA+3}, 0x1040, v{BA}")
    k.e("v_lshrrev_b32 v20, 2, v18")
    k.e("v_and_b32 v21, 3, v18")
    k.e("v_lshl_add_u32 v22, v19, 3, v20")
    k.e("v_lshlrev_b32 v22, 8, v22")
    k.e("v_lshl_add_u32 v22, v21, 3, v22")
    k.e(f"v_add_u32 v22, {WPART}, v22")
    k.e("v_and_b32 v23, 1, v19")
    k.e("v_lshl_add_u32 v23, v23, 2, v20")
    k.e("s_lshl_b32 s58, s53, 2")
    k.e("s_lshl_b32 s59, s52, 1")
    k.e("s_add_u32 s58, s58, s59")
    k.e("v_xor_b32 v23, s58, v23")
    k.e(f"v_lshl_add_u32 v{AA}, v23, 5, v22")
    for fb in range(1, 4): k.e(f"v_xor_b32 v{AA+fb}, {32*fb}, v{AA}")
    for i in range(4): k.e(f"v_mov_b32 v{ONE+i}, 0x3f803f80")
    for r, x in ((3, 0), (4, 2), (5, 1)):
        k.e(f"s_xor_b32 s58, s3, {x}")
        k.e("s_mul_i32 s58, s58, 3072")
        k.e(f"s_add_u32 s58, s58, {TOP}")
        k.e(f"v_add_u32 v{r}, s58, v1")
    k.e("s_lshl_b32 s58, s7, 1")
    k.e("s_add_u32 s57, s58, s53")
    k.e("s_lshl_b32 s59, s6, 1")
    k.e("s_add_u32 s59, s59, s52")
    k.e("s_lshl_b32 s56, s59, 5")
    k.e("s_add_u32 s56, s56, s57")
    k.e(f"s_lshl_b32 s56, s56, {HSH}")
    k.e(f"s_add_u32 s56, s56, {FH}")
    k.e(f"s_mul_i32 s59, s59, {NT}")
    k.e("s_lshl_b32 s58, s57, 1")
    k.e("s_add_u32 s58, s58, s59")
    k.e("s_lshl_b32 s58, s58, 12")
    k.e("s_lshl_b32 s59, s52, 12")
    k.e("s_add_u32 s60, s58, s59")
    k.e("s_xor_b32 s59, s59, 0x1000")
    k.e("s_add_u32 s61, s58, s59")
    k.e("s_lshl_b32 s59, s53, 11")
    k.e("v_add_u32 v6, s59, v1")
    k.e("v_xor_b32 v7, 0x800, v6")
    k.e(f"v_mov_b32 v18, {CNT}")
    k.e("s_lshl_b32 s58, s3, 2")
    k.e(f"s_add_u32 s58, s58, {CNT + PA}")
    k.e("v_mov_b32 v19, s58")

def g1_phase(k):
    PV = 176
    def reads(stage, ks, buf):
        so = (stage % 2) * SLOT
        L = []
        fa = FR + 32 * buf; fb_ = fa + 16
        for i in range(4):
            L.append(f"ds_read_b128 v[{fb_+4*i}:{fb_+4*i+3}], v{BA + 2*(i>>1) + ks} offset:{so + 2048*(i&1)}")
            L.append(f"ds_read_b64_tr_b16 v[{fa+4*i}:{fa+4*i+1}], v{AA+i} offset:{so + 8192*ks}")
            L.append(f"ds_read_b64_tr_b16 v[{fa+4*i+2}:{fa+4*i+3}], v{AA+i} offset:{so + 8192*ks + 1024}")
        return L
    def mfmas(buf, first=False, sums_first=False):
        fa = FR + 32 * buf; fb_ = fa + 16
        L = []; Sm = []
        def mm(Tg, d, a, b):
            c = "0" if first else f"v[{d}:{d+3}]"
            Tg.append(f"v_mfma_f32_16x16x32_bf16 v[{d}:{d+3}], v[{a}:{a+3}], v[{b}:{b+3}], {c}")
        for f in range(4):
            for m in range(4): mm(L, ACC + 16*f + 4*m, fa + 4*f, fb_ + 4*m)
        for i in range(2):
            mm(Sm, AR + 4*i, ONE, fb_ + 4*i)
            mm(Sm, AC + 4*i, fa + 4*i, ONE)
        if flag("QNOSUM") and not first and not sums_first: return L
        return Sm + L if sums_first else L + Sm
    def dense(L):
        n = flag("DEN", 2)
        return ["\n".join(L[i:i+n]) for i in range(0, len(L), n)]
    tog = [f"v_xor_b32 v{r}, 0x10000, v{r}" for r in list(range(BA, BA+4)) + list(range(AA, AA+4))]
    for s in range(NSTAGE):
        k.c(f"---- stage {s}")
        k.e("s_waitcnt lgkmcnt(0)")
        m1 = mfmas(1)
        if s < 9: k.e("s_barrier")
        else:
            for x in interleave(m1[:3], prog_min(PV, 58)): k.e(x)
            m1 = m1[3:]
            prog_spin(k, "L_a9", 18, PV, PB, 58, 1)
        if s == 0: stamp(k, 1, 0); stamp(k, 2, 0); cs(k, "b0")
        if s == 4: cs(k, "b4")
        if s == 4: stamp(k, 2, 1)
        if s == 8:
            stamp(k, 2, 2)
            k.e("s_setprio 2")
        for x in (reads(0, 0, 0) if s == 0 else interleave(m1, dense(reads(s, 0, 0)))): k.e(x)
        k.e("s_waitcnt lgkmcnt(0)")
        m0 = mfmas(0, first=(s == 0))
        nxt = tog if ((s + 1) % 2 == 0 and s + 1 < NSTAGE) else []
        if s == 9 and EPI:
            m0 = mfmas(0, sums_first=True)
            exch = [f"v_mov_b32 v{AR+1}, v{AR+4}",
                    f"ds_write_b64 v3, v[{AR}:{AR+1}]",
                    f"ds_write_b128 v3, v[{AC}:{AC+3}] offset:1024",
                    f"ds_write_b128 v3, v[{AC+4}:{AC+7}] offset:2048"] + prog_write(19, 8, 11)
            body = (interleave(m0[:10], dense(reads(s, 1, 1))) + ["s_waitcnt lgkmcnt(0)"] + mfmas(1, sums_first=True)[:4]
                    + m0[10:14] + interleave(m0[14:], exch))
        elif s == 8:
            body = interleave(m0[:-3], dense(reads(s, 1, 1))) + [f"ds_read_b128 v[{PV}:{PV+3}], v18 offset:{PB}"] + m0[-3:]
        else:
            body = interleave(m0, dense(reads(s, 1, 1)) + nxt)
        for x in body: k.e(x)
    if EPI:
        allm = mfmas(1, sums_first=True)[4:]
        fin = [allm[4*(2*p+ff) + m] for p in range(2) for m in range(4) for ff in range(2)]
        sync_reads = [f"ds_read_b128 v[{PV}:{PV+3}], v18 offset:{PA}",
                      f"ds_read_b64 v[{AR+2}:{AR+3}], v4",
                      f"ds_read_b128 v[{AC+8}:{AC+11}], v5 offset:1024",
                      f"ds_read_b128 v[{AC+12}:{AC+15}], v5 offset:2048"]
        k.e("s_cmp_ge_u32 s57, 27")
        for r in (56, 60, 61): k.e(f"s_cselect_b32 s{r}, {OOB}, s{r}")
        for x in fin[:2] + interleave(fin[2:8], sync_reads): k.e(x)
        k.e("s_branch L_a_chk")
        k.e("L_a_sync:")
        for x in sync_reads: k.e(x)
        k.e("L_a_chk:")
        k.e("s_waitcnt lgkmcnt(0)")
        for x in prog_min(PV, 58): k.e(x)
        k.e("s_cmp_lt_u32 s58, 11")
        k.e("s_cbranch_scc1 L_a_sync")
        stamp(k, 2, 3); cs(k, "sync")
        NM = FR; OUT = FR + 8
        V = [f"v_mul_f32 v{AR+m}, {-1.0/D!r}, v{AR+m}" for m in range(4)]
        V += [f"v_cvt_pk_bf16_f32 v{AR+4}, v{AR}, v{AR+1}", f"v_cvt_pk_bf16_f32 v{AR+5}, v{AR+2}, v{AR+3}"]
        for m in range(4):
            src = AR + 4 + (m >> 1)
            V.append(f"v_and_b32 v{NM+m}, 0xffff0000, v{src}" if m & 1 else f"v_lshlrev_b32 v{NM+m}, 16, v{src}")
        n = 0
        for p in range(2):
            for m in range(4):
                o = OUT + 4 * (n % 4); n += 1
                for ff in range(2):
                    f = 2*p + ff
                    a = ACC + 16*f + 4*m
                    V += [f"v_fmac_f32 v{a+r}, v{AC+4*f+r}, v{NM+m}" for r in range(4)]
                    V += [f"v_cvt_pk_bf16_f32 v{o+2*ff+h}, v{a+2*h}, v{a+2*h+1}" for h in range(2)]
                if p == 1 and m == 2 and flag("NP", 0): V.append(f"ds_read_b32 v8, v18 offset:{AUXOK}")
                V += [f"v_pk_max_i16 v{o+i}, v{o+i}, 0" for i in range(4)]
                V.append(f"buffer_store_dwordx4 v[{o}:{o+3}], v{6+(m>>1)}, s[48:51], s{60+p} offen offset:{1024*(m&1)}{HSC}")
        pos = len(V) - flag("EVP", 40)
        V = V[:pos] + prog_write(19, 8, 12) + V[pos:]
        rest = fin[8:]
        for i, x in enumerate(V):
            if i % 3 == 0 and rest: k.e(rest.pop(0))
            k.e(x)
    else:
        k.e("s_waitcnt lgkmcnt(0)")
        fin = mfmas(1, sums_first=True)
        exch = [f"v_mov_b32 v{AR+1}, v{AR+4}",
                f"ds_write_b64 v3, v[{AR}:{AR+1}]",
                f"ds_write_b128 v3, v[{AC}:{AC+3}] offset:1024",
                f"ds_write_b128 v3, v[{AC+4}:{AC+7}] offset:2048"] + prog_write(19, 8, 11)
        for x in fin[:7] + interleave(fin[7:], exch): k.e(x)
        k.e("L_a_sync:")
        k.e(f"ds_read_b128 v[{PV}:{PV+3}], v18 offset:{PA}")
        k.e(f"ds_read_b64 v[{AR+2}:{AR+3}], v4")
        k.e(f"ds_read_b128 v[{AC+8}:{AC+11}], v5 offset:1024")
        k.e(f"ds_read_b128 v[{AC+12}:{AC+15}], v5 offset:2048")
        if EWI: k.e(f"ds_read_b32 v8, v18 offset:{AUXOK}")
        k.e("s_waitcnt lgkmcnt(0)")
        for x in prog_min(PV, 58): k.e(x)
        k.e("s_cmp_lt_u32 s58, 11")
        k.e("s_cbranch_scc1 L_a_sync")
        stamp(k, 2, 3); cs(k, "sync")
        if flag("HTF", 1):
            k.e("s_cmp_ge_u32 s57, 27")
            for r in (56, 60, 61): k.e(f"s_cselect_b32 s{r}, {OOB}, s{r}")
        else:
            k.e("s_cmp_ge_u32 s57, 27")
            k.e("s_cbranch_scc1 L_g2w")
        NM = FR
        wl = []
        if EWI:
            k.e("v_readfirstlane_b32 s71, v8")
            k.e("s_mov_b32 s70, s77")
            k.e("s_cmp_eq_u32 s71, 0")
            k.e(f"s_cselect_b32 s77, {OOB}, s77")
            cur = []
            for st in range(EWI):
                for x in w_loads(st):
                    cur.append(x)
                    if is_vmem(x): wl.append(cur); cur = []
        for m in range(4): k.e(f"v_mul_f32 v{AR+m}, {-1.0/D!r}, v{AR+m}")
        k.e(f"v_cvt_pk_bf16_f32 v{AR+4}, v{AR}, v{AR+1}")
        k.e(f"v_cvt_pk_bf16_f32 v{AR+5}, v{AR+2}, v{AR+3}")
        for m in range(4):
            src = AR + 4 + (m >> 1)
            if m & 1: k.e(f"v_and_b32 v{NM+m}, 0xffff0000, v{src}")
            else:     k.e(f"v_lshlrev_b32 v{NM+m}, 16, v{src}")
        OUT = FR + 8
        n = 0
        for p in range(2):
            for m in range(4):
                o = OUT + 4 * (n % 4); n += 1
                for ff in range(2):
                    f = 2*p + ff
                    a = ACC + 16*f + 4*m
                    for r in range(4): k.e(f"v_fmac_f32 v{a+r}, v{AC+4*f+r}, v{NM+m}")
                    for h in range(2): k.e(f"v_cvt_pk_bf16_f32 v{o+2*ff+h}, v{a+2*h}, v{a+2*h+1}")
                if p == 1 and m == 2 and flag("NP", 0): k.e(f"ds_read_b32 v8, v18 offset:{AUXOK}")
                for i in range(4): k.e(f"v_pk_max_i16 v{o+i}, v{o+i}, 0")
                k.e(f"buffer_store_dwordx4 v[{o}:{o+3}], v{6+(m>>1)}, s[48:51], s{60+p} offen offset:{1024*(m&1)}{HSC}")
                lo, hi = (len(wl) * (n - 1)) // 8, (len(wl) * n) // 8
                for g in wl[lo:hi]:
                    for x in g: k.e(x)
        if EWI:
            k.e(f"s_waitcnt vmcnt({hi - lo})")
            publish(k, 56, 12, HSC)
            stamp(k, 1, 1)
            k.e("s_setprio 0")
            k.e("s_mov_b32 s77, s70")
            k.e("s_cmp_eq_u32 s71, 0")
            k.e("s_cbranch_scc0 L_g2b")
            k.e("s_branch L_g2w")
    NP = EWI or flag("NP", 0)
    if NP and not EWI:
        k.e("s_waitcnt lgkmcnt(0)")
        k.e("v_readfirstlane_b32 s58, v8")
        k.e("s_cmp_eq_u32 s58, 0")
        k.e("s_cbranch_scc1 L_a_slow")
        for st in range(NP):
            for x in w_loads(st): k.e(x)
        k.e(f"s_waitcnt vmcnt({5*NP})")
        publish(k, 56, 12, HSC)
        stamp(k, 1, 1)
        k.e("s_setprio 0")
        k.e("s_branch L_g2b")
        k.e("L_a_slow:")
    if AWP:
        k.e("v_lshlrev_b32 v9, 9, v0")
        k.e("s_bfm_b64 exec, 14, 0")
        k.e(f"buffer_load_dwordx2 v[10:11], v9, s[{FSRD}:{FSRD+3}], s71 offen{SC1}")
        k.e("s_mov_b64 exec, -1")
        k.e("s_waitcnt vmcnt(1)")
        publish(k, 56, 12, HSC)
        stamp(k, 1, 1)
        k.e("s_waitcnt vmcnt(1)")
        k.e("s_setprio 0")
        poll(k, "L_aw", 10, 9, 71, 58, 14, preloaded=True)
        k.e("s_branch L_g2b")
        k.e("L_g2w:")
        k.e("s_setprio 0")
        k.e(f"v_mov_b32 v10, {CNT}")
        lds_wait(k, "L_aw2", 10, 11, AUXOK, 58, sleep=4)
    else:
        if not EWI:
            k.e("s_waitcnt vmcnt(0)")
            publish(k, 56, 12, HSC)
            stamp(k, 1, 1)
        k.e("L_g2w:")
        k.e("s_setprio 0")
        k.e(f"v_mov_b32 v10, {CNT}")
        lds_wait(k, "L_aw2", 10, 11, AUXOK, 58, sleep=4)
    for st in range(NP):
        for x in w_loads(st): k.e(x)
    k.e("L_g2b:")

def b_aprep(k):
    srd(k, 40, P_Q, NB_X)
    srd(k, 44, P_WS, 16384, ST_OFF)
    srd(k, 68, P_WS, NB_T, YT_OFF)
    xo_offsets(k, 8, 1, 2)
    for i in range(3):
        k.e(f"s_add_u32 m0, s81, {XO + 1024*i}")
        k.e(f"buffer_load_dwordx4 v{8+i}, s[40:43], s54 offen lds")
    k.e("v_and_b32 v1, 15, v0")
    k.e("v_lshlrev_b32 v3, 3, v1")
    k.e("s_lshl_b32 s57, s53, 7")
    k.e("v_lshrrev_b32 v4, 3, v0")
    k.e(f"v_mul_u32_u24 v4, {RS}, v4")
    k.e("v_and_b32 v2, 7, v0")
    k.e("v_lshl_add_u32 v4, v2, 4, v4")
    k.e("s_mul_i32 s58, s9, 10")
    k.e("s_add_u32 s58, s58, s101")
    k.e(f"s_mul_i32 s58, s58, {8*RS}")
    k.e("s_lshl_b32 s59, s8, 7")
    k.e("s_add_u32 s58, s58, s59")
    k.e(f"v_mov_b32 v2, {CNT}")
    k.e("v_mul_u32_u24 v5, 160, v1")
    k.e("v_lshrrev_b32 v6, 4, v0")
    k.e("v_lshl_add_u32 v5, v6, 3, v5")
    k.e("v_add_u32 v5, s81, v5")
    k.e("v_lshrrev_b32 v36, 5, v0")
    k.e(f"v_mul_u32_u24 v36, {CONV_LDS}, v36")
    k.e("v_bfe_u32 v7, v0, 2, 3")
    k.e("v_lshl_add_u32 v36, v7, 7, v36")
    k.e("v_and_b32 v7, 3, v0")
    k.e("v_lshl_add_u32 v36, v7, 3, v36")
    k.e("s_lshl_b32 s59, s101, 5")
    k.e(f"s_add_u32 s59, s59, {RB0}")
    k.e("v_add_u32 v36, s59, v36")
    k.e("v_lshlrev_b32 v37, 4, v0")
    k.e("v_add_u32 v37, s81, v37")
    XR, YR, XF, SF = 16, 26, 40, 60
    k.e("s_waitcnt vmcnt(0)")
    for d in range(5): k.e(f"ds_read_b64 v[{XR+2*d}:{XR+2*d+1}], v5 offset:{XO + 32*d}")
    k.e("s_waitcnt lgkmcnt(0)")
    for d in range(5):
        for h in range(2): unpack(k, XF + 4*d + 2*h, XF + 4*d + 2*h + 1, XR + 2*d + h)
        if d < 3: k.e(f"ds_write_b128 v37, v[{XF+4*d}:{XF+4*d+3}] offset:{SO + 5120 + 1024*d}")
    k.e("s_setprio 0")
    k.e("s_cmp_eq_u32 s101, 0")
    k.e("s_cbranch_scc1 L_b_poller")
    lds_wait(k, "L_b_lw0", 2, 6, PROG, 60, sleep=flag("LSL", 16))
    lds_wait(k, "L_b_lwait", 2, 6, YOK, 60, sleep=2)
    k.e("s_setprio 3")
    k.e("s_branch L_b_go")
    k.e("L_b_poller:")
    k.e(f"s_mul_i32 s59, s9, {80 << YSH}")
    k.e(f"s_add_u32 s59, s59, {FY}")
    k.e(f"s_add_u32 s61, s59, {64 << YSH}")
    k.e(f"v_lshlrev_b32 v5, {YSH}, v0")
    k.e("v_add_u32 v7, s61, v5")
    k.e("s_lshr_b32 s10, s8, 3")
    k.e("s_lshl_b32 s10, s10, 1")
    k.e("s_and_b32 s11, s8, 1")
    k.e("s_add_u32 s10, s10, s11")
    k.e("s_and_b32 s11, s8, 6")
    k.e("s_lshl_b32 s11, s11, 2")
    k.e("s_add_u32 s10, s10, s11")
    k.e(f"s_add_u32 s10, s10, {224 + (FB >> 7)}")
    k.e("s_lshl_b32 s10, s10, 7")
    k.e("v_writelane_b32 v7, s10, 16")
    lds_wait(k, "L_b_aw", 2, 6, PROG, 60, sleep=flag("LSL2", 6))
    k.e("s_setprio 3")
    k.e("s_bfm_b64 exec, 17, 0")
    k.e(f"buffer_load_dwordx2 v[14:15], v7, s[{FSRD}:{FSRD+3}], 0 offen{SC1}")
    k.e("s_mov_b64 exec, -1")
    poll(k, "L_by", 12, 5, 59, 60, 64, sleep=8)
    poll(k, "L_by2", 14, 7, None, 60, 17, sleep=8, preloaded=True)
    k.e("v_mov_b32 v6, 1")
    k.e(f"ds_write_b32 v2, v6 offset:{YOK}")
    k.e("L_b_go:")
    stamp(k, 1, 3); stamp(k, 2, 3)
    k.e(f"buffer_load_dwordx2 v[12:13], v3, s[44:47], s57 offen{SC1}")
    for i in range(3):
        if i == 2:
            k.e("s_cmp_ge_u32 s101, 2")
            k.e("s_cbranch_scc1 L_b_noy")
        k.e(f"s_add_u32 m0, s81, {YO + 1024*i}")
        k.e(f"buffer_load_dwordx4 v4, s[68:71], s58 offen{SC1} lds")
        if i < 2: k.e(f"s_add_u32 s58, s58, {4*8*RS}")
    k.e("L_b_noy:")
    k.e("v_mov_b32 v3, 1")
    k.e("s_waitcnt vmcnt(2)")
    k.e("v_mul_f32 v38, 0xbfb8aa3b, v13")
    k.e("v_mul_f32 v39, 0xbfb8aa3b, v13")
    k.e(f"ds_write_b64 v37, v[38:39] offset:{SO + 10240}")
    for i in range(10):
        a, b = 80 + 2*i, 81 + 2*i
        k.e(f"v_sub_f32 v{a}, v{XF+2*i}, v12")
        k.e(f"v_sub_f32 v{b}, v{XF+2*i+1}, v12")
        k.e(f"v_cvt_pk_bf16_f32 v{b}, v{a}, v{b}")
        unpack(k, a, b, b)
        k.e(f"v_mul_f32 v{a}, v{a}, v13")
        k.e(f"v_mul_f32 v{b}, v{b}, v13")
        k.e(f"v_cvt_pk_bf16_f32 v{b}, v{a}, v{b}")
        unpack(k, a, b, b)
        k.e(f"v_mul_f32 v{a}, v{a}, v13")
        k.e(f"v_mul_f32 v{b}, v{b}, v13")
        if i == 4:
            k.e("s_waitcnt vmcnt(0)")
            k.e("s_mov_b64 exec, 1")
            k.e(f"ds_add_u32 v2, v3 offset:{YCNT}")
            k.e("s_mov_b64 exec, -1")
    k.e("L_b_cnt:")
    k.e(f"ds_read_b32 v3, v2 offset:{YCNT}")
    for d in range(5):
        k.e(f"ds_read_b64_tr_b16 v[{YR+2*d}:{YR+2*d+1}], v36 offset:{YO + 2*(d&1)*CONV_LDS + (d>>1)*1024}")
    k.e("s_waitcnt lgkmcnt(0)")
    k.e("v_readfirstlane_b32 s59, v3")
    k.e("s_cmp_lt_u32 s59, 4")
    k.e("s_cbranch_scc1 L_b_cnt")
    for d in range(5):
        for h in range(2):
            s = SF + 4*d + 2*h
            unpack(k, s, s+1, YR + 2*d + h)
            k.e(f"v_mul_f32 v{s}, v{s}, v{80+4*d+2*h}")
            k.e(f"v_mul_f32 v{s+1}, v{s+1}, v{81+4*d+2*h}")
        if d < 3: k.e(f"ds_write_b128 v37, v[{SF+4*d}:{SF+4*d+3}] offset:{SO + 1024*d}")
    b_tail(k)

def stats_rows(k, s_idx):
    k.e("s_and_b32 s10, s84, 6")
    k.e("s_lshl_b32 s10, s10, 8")
    k.e("s_lshr_b32 s11, s84, 3")
    k.e("s_lshl_b32 s11, s11, 7")
    k.e("s_add_u32 s10, s10, s11")
    k.e("s_and_b32 s11, s84, 1")
    k.e("s_lshl_b32 s11, s11, 6")
    k.e("s_add_u32 s10, s10, s11")
    k.e(f"s_lshl_b32 s11, s{s_idx}, 3")
    k.e("s_add_u32 s52, s10, s11")

def kernel():
    STS = flag("STS", 1); RLD = flag("RLD", 2); RST = flag("RST", 6)
    assert STS < RLD and RLD + (3 if flag('LKS', 99) > RLD else 4) <= RST <= 7
    k = Kern(NAME)
    stamp_begin(k)
    if flag("FIXT") or MS:
        k.e("s_memrealtime s[96:97]")
        k.e("s_mov_b32 s12, 0")
        k.e("s_mov_b32 s100, s2")
    k.e("s_cmp_ge_u32 s2, 256")
    k.e("s_cbranch_scc1 L_end")
    load_ptrs(k)
    k.e("v_lshrrev_b32 v1, 6, v0")
    k.e("v_readfirstlane_b32 s3, v1")
    k.e("v_and_b32 v0, 63, v0")
    for i in range(4): k.e(f"v_mov_b32 v{4+i}, 0")
    k.e("v_and_b32 v1, 3, v0")
    k.e("v_lshlrev_b32 v1, 4, v1")
    k.e(f"v_add_u32 v1, {CNT}, v1")
    k.e("ds_write_b128 v1, v[4:7]")
    k.e("s_and_b32 s4, s2, 7")
    k.e("s_lshr_b32 s5, s2, 3")
    k.e("s_lshr_b32 s10, s4, 1")
    k.e("s_and_b32 s11, s4, 1")
    k.e("s_lshl_b32 s6, s10, 2")
    k.e("s_and_b32 s7, s5, 3")
    k.e("s_add_u32 s6, s6, s7")
    k.e("s_lshl_b32 s9, s11, 2")
    k.e("s_add_u32 s9, s9, s7")
    k.e("s_lshr_b32 s8, s5, 2")
    k.e("s_mul_i32 s7, s11, 7")
    k.e("s_add_u32 s7, s7, s8")
    k.e("s_lshl_b32 s10, s10, 3")
    k.e("s_add_u32 s8, s8, s10")
    if flag("MAP81"):
        k.e("s_lshl_b32 s6, s4, 1")
        k.e("s_and_b32 s7, s5, 1")
        k.e("s_add_u32 s6, s6, s7")
        k.e("s_lshr_b32 s7, s5, 1")
        k.e("s_lshl_b32 s8, s4, 2")
        k.e("s_lshr_b32 s9, s5, 3")
        k.e("s_add_u32 s8, s8, s9")
        k.e("s_and_b32 s9, s5, 7")
    k.e("s_and_b32 s101, s3, 3")
    k.e(f"s_mul_i32 s81, s101, {CONV_LDS}")
    k.e(f"s_add_u32 s81, s81, {RB0}")
    def flags_srd():
        srd(k, FSRD, P_WS, FL_BYTES, FL_OFF)
        k.e(f"s_load_dwordx2 s[{TAG}:{TAG+1}], s[{FSRD}:{FSRD+1}], {EP}")
    k.e("s_cmp_ge_u32 s2, 224")
    k.e("s_cbranch_scc1 L_free")
    k.e("s_cmp_lt_u32 s3, 4")
    k.e("s_cbranch_scc1 L_a")
    ROLE[0] = "b"
    k.e(f"s_setprio {flag('PBL', 1)}")
    r = Rec(); k1.loader_setup(r, 6, 7, 101)
    for x in r.lines[8:]: k.e(x)
    k.e("s_waitcnt lgkmcnt(0)")
    for x in r.lines[:8]: k.e(x)
    vm = Vm(); last = {}
    def put(x):
        k.e(x)
        return vm.op() if is_vmem(x) else None
    def dma(st):
        for x in k1.dma(st):
            q = put(x)
            if q is not None: last[st] = q
    if flag("SB", 1): k.e("s_barrier")
    dma(0)
    flags_srd()
    k.e(f"v_mov_b32 v250, {CNT}")
    k.e("s_lshl_b32 s10, s101, 2")
    k.e(f"s_add_u32 s10, s10, {CNT + PB}")
    k.e("v_mov_b32 v248, s10")
    u_addr(k)
    rel1_addr(k)
    k.e("s_lshl_b32 s82, s2, 1")
    k.e("s_add_u32 s53, s2, 448")
    k.e("s_cmp_lt_u32 s2, 64")
    k.e("s_cselect_b32 s52, s53, 1000")
    k.e("s_cselect_b32 s53, s53, s82")
    watch_addr(k, 224, 82, 53)
    k.e("s_add_u32 s82, s82, s101")
    k.e("s_cmp_eq_u32 s101, 2")
    k.e("s_cselect_b32 s82, s52, s82")
    k.e("s_cmp_eq_u32 s101, 3")
    k.e("s_cselect_b32 s82, 1000, s82")
    k.e("s_lshl_b32 s83, s2, 7")
    k.e("s_waitcnt lgkmcnt(0)")
    make_tag(k)
    dma(1)
    PV = 252
    PUBS = STS + flag("PUBD", 3); st_idx = None
    k.e("s_cmp_eq_u32 s101, 2")
    k.e(f"s_cselect_b32 s83, s83, {OOB}")
    k.e("v_mov_b32 v249, 1")
    HKE = flag("HKE", 2); hk = 0 if HKE < 8 else 2
    WPUB = RST + 2 if RST <= 5 else 99
    k.e("s_lshl_b32 s88, s2, 7")
    k.e(f"s_add_u32 s88, s88, {FB}")
    k.e("s_cmp_eq_u32 s101, 1")
    k.e(f"s_cselect_b32 s88, s88, {OOB}")
    for s in range(8):
        w = vm.wait(last[s])
        if s == PUBS: w = min(w, vm.wait(st_idx))
        if s == WPUB: w = min(w, vm.wait(rs_idx))
        k.e(f"s_waitcnt vmcnt({w})")
        k.e("s_barrier")
        if s == WPUB:
            publish(k, 88, 4); vm.op()
            stamp(k, 2, 1)
        if s == PUBS:
            publish(k, 83, 4); vm.op()
            stamp(k, 2, 0)
        if s == STS:
            for x in u_out():
                q = put(x)
                if q is not None: st_idx = q
        if s == RST:
            for x in rel1_reads(): k.e(x)
        LKS = flag("LKS", 99)
        if s < LKS: dma(s + 2)
        elif s == LKS:
            dma(s + 2); dma(s + 3)
        elif s + 3 < NSTAGE: dma(s + 3)
        if s == RST:
            for x in rel1_stores():
                q = put(x)
                if q is not None: rs_idx = q
        if s == RLD:
            for x in rel1_loads(): put(x)
        if s == HKE:
            k.e("s_min_u32 s11, s82, 640")
            conv.conv4_early(k, 11); vm.op(); vm.op()
    w8, w9 = vm.wait(last[8]), vm.wait(last[9]); wr = min(vm.wait(rs_idx), w9)
    W8P = flag('W8P', 1) and RST == 6
    if W8P: w8 = min(w8, vm.wait(rs_idx))
    k.e("s_cmp_lt_u32 s82, 640")
    k.e("s_cbranch_scc1 L_b_hasconv")
    k.e(f"s_waitcnt vmcnt({w8})")
    k.e("s_barrier")
    k.e("s_cmp_eq_u32 s101, 3")
    k.e("s_cbranch_scc1 L_b_w7")
    k.e(f"s_waitcnt vmcnt({w9})")
    for x in prog_write(248, 251, 1): k.e(x)
    k.e("s_waitcnt vmcnt(0)")
    for x in prog_write(248, 251, 2): k.e(x)
    k.e("s_branch L_b_aprep")
    k.e("L_b_w7:")
    pre = watch_pre(228, 224)
    k.e("s_setprio 3")
    if W8P:
        k.e("s_lshl_b32 s83, s2, 7")
        k.e(f"s_add_u32 s83, s83, {FB}")
        publish(k, 83, 4)
        stamp(k, 2, 1)
    k.e(pre[0])
    k.e(f"s_waitcnt vmcnt({w9 + 1 + W8P})")
    for x in prog_write(248, 251, 1): k.e(x)
    k.e("s_waitcnt vmcnt(0)")
    for x in prog_write(248, 251, 2): k.e(x)
    k.e(f"v_cmp_ne_u64 vcc, s[{TAG}:{TAG+1}], v[228:229]")
    k.e("s_cmp_eq_u64 vcc, 0")
    k.e("s_cbranch_scc0 L_b_n1")
    k.e(f"ds_write_b32 v250, v249 offset:{UOK}")
    k.e("L_b_n1:")
    if WPUB == 99 and not W8P:
        k.e("s_lshl_b32 s83, s2, 7")
        k.e(f"s_add_u32 s83, s83, {FB}")
        prog_wait(k, "L_b_rs", 250, PV, PB, 10, 2)
        publish(k, 83, 4)
        stamp(k, 2, 1)
    if AWP:
        poll(k, "L_bwa", 228, 225, None, 10, 64, preloaded=True)
        k.e(f"ds_write_b32 v250, v249 offset:{UOK}")
    else:
        for _ in range(flag("WSL", 0)): k.e("s_sleep 16")
        if flag("EVT", 12):
            poll(k, "L_bw0", 228, 225, None, 10, 64, preloaded=True)
            k.e(f"ds_write_b32 v250, v249 offset:{UOK}")
            prog_wait(k, "L_b_evt", 250, PV, PA, 10, flag("EVT", 12), sleep=2)
        k.e(pre[1])
        watch(k, "L_bw", 228, 224, flag("BSL", 4))
    stamp(k, 2, 2)
    k.e("s_cmp_lg_u32 s2, 0")
    k.e("s_cbranch_scc1 L_b_aprep")
    k.e("s_setprio 0")
    k.e("v_lshlrev_b32 v1, 7, v0")
    k.e(f"s_mov_b32 s83, {FB}")
    k.e("L_ep_next:")
    poll(k, "L_ep", 4, 1, 83, 10, 64, sleep=16)
    k.e("s_add_u32 s83, s83, 8192")
    k.e(f"s_cmp_lt_u32 s83, {FB + 32768}")
    k.e("s_cbranch_scc1 L_ep_next")
    k.e(f"s_mov_b32 s83, {EP}")
    publish(k, 83, 4)
    k.e("s_branch L_b_aprep")
    k.e("L_b_hasconv:")
    if hk: conv.conv2_setup(k, 82)
    else: conv.conv4_late(k, 82)
    k.e(f"s_waitcnt vmcnt({w8 + hk})")
    k.e("s_barrier")
    (conv.conv3_addr if C3 else conv.conv2_addr)(k, 81)
    k.e(f"s_waitcnt vmcnt({w9 + hk})")
    for x in prog_write(248, 251, 1): k.e(x)
    k.e(f"s_waitcnt vmcnt({wr + hk})")
    for x in prog_write(248, 251, 2): k.e(x)
    k.e("L_b_conv:")
    k.e(f"v_mov_b32 v250, {CNT}")
    (conv.conv3_dma if C3 else conv.conv2_dma)(k, 81)
    k.e(f"s_waitcnt vmcnt({8 if C3 else 16})")
    conv.conv2_fix(k)
    k.e("L_b_c2:")
    stamp(k, 1, 0)
    lds_wait(k, "L_b_uw", 250, 251, UOK, 80)
    conv.conv_setup_u(k, 82, 81, SC1)
    k.e("s_waitcnt vmcnt(0)")
    if flag("FEV", 1) == 1: k.e(f"ds_write_b32 v250, v250 offset:24")
    stamp(k, 1, 1); stamp(k, 3, 3)
    k.e(f"s_setprio {flag('PC', 1)}")
    (conv.conv3_main if C3 else conv.conv_main)(k, "f")
    stamp(k, 3, 0)
    k.e("s_setprio 3")
    conv.conv_epilogue(k, 82, SC1)
    stamp(k, 3, 1)
    k.e(f"s_lshl_b32 s10, s82, {YSH}")
    k.e(f"s_add_u32 s83, s10, {FY}")
    k.e("s_waitcnt vmcnt(0)")
    stamp(k, 3, 2)
    publish(k, 83, 4, nbytes=1 << YSH)
    stamp(k, 1, 2)
    k.e("L_b_aprep:")
    k.e("s_setprio 1")
    b_aprep(k)
    stamp(k, 9, 0)
    ms_end(k, "b")
    finish(k, 1)
    k.e("L_free:")
    for _ in range(flag("XFREE")): k.e("s_sleep 64")
    k.e("s_waitcnt lgkmcnt(0)")
    flags_srd()
    k.e("s_sub_u32 s84, s2, 224")
    k.e("s_mov_b32 s85, s3")
    k.e("s_cmp_eq_u32 s3, 7")
    k.e("s_cbranch_scc1 L_free_code" if flag("CPF", 1) else "s_cbranch_scc1 L_free_sync")
    k.e("s_cmp_lt_u32 s3, 4")
    k.e("s_cbranch_scc1 L_free_stats")
    k.e("s_setprio 2")
    k.e("s_mul_i32 s85, s84, 3")
    k.e("s_add_u32 s85, s85, s101")
    k.e("s_add_u32 s85, s85, 224")
    aux.emit_prep(k, 85, 81, SC1)
    make_tag(k)
    k.e("s_lshl_b32 s85, s85, 7")
    k.e("s_waitcnt vmcnt(0)")
    publish(k, 85, 4)
    k.e("s_branch L_free_b")
    if flag("CPF", 1):
        k.e("L_free_code:")
        k.e("s_setprio 3")
        k.e("s_getpc_b64 s[40:41]")
        k.e("L_pc:")
        k.e(f"s_sub_u32 s40, s40, L_pc-{NAME}")
        k.e("s_subb_u32 s41, s41, 0")
        k.e(f"s_mov_b32 s42, L_end-{NAME}")
        k.e("s_mov_b32 s43, 0x20000")
        k.e("v_lshlrev_b32 v1, 7, v0")
        k.e("s_mov_b32 s44, 0")
        for i in range(4):
            k.e(f"buffer_load_dword v{200+i}, v1, s[40:43], s44 offen")
            k.e("s_add_u32 s44, s44, 8192")
        k.e("s_setprio 0")
        if AGG:
            k.e("s_waitcnt lgkmcnt(0)")
            make_tag(k)
            k.e("s_cmp_ge_u32 s84, 10")
            k.e("s_cbranch_scc1 L_free_noagg")
            k.e("v_mul_u32_u24 v2, 1280, v0")
            k.e("s_lshl_b32 s85, s84, 7")
            for _ in range(flag("UAGS", 3)): k.e("s_sleep 40")
            k.e("s_setprio 3")
            poll(k, "L_agu", 4, 2, 85, 10, 32, sleep=8)
            k.e(f"s_add_u32 s85, s85, {FS}")
            publish(k, 85, 4)
            k.e("L_free_noagg:")
            k.e("s_barrier")
            k.e("s_branch L_free_b")
        k.e("s_waitcnt lgkmcnt(0)")
        make_tag(k)
        k.e("s_branch L_free_b")
    k.e("L_free_stats:")
    stats_rows(k, 85)
    aux.emit_stats(k, 52, SC1)
    k.e("s_add_u32 s85, s85, 4")
    k.e("s_cmp_lt_u32 s85, 8")
    k.e("s_cbranch_scc1 L_free_stats")
    k.e("L_free_sync:")
    k.e("s_waitcnt vmcnt(0) lgkmcnt(0)")
    k.e("s_barrier")
    make_tag(k)
    k.e("s_branch L_free_a")
    k.e("L_free_b:")
    k.e("s_setprio 0")
    k.e("s_lshl_b32 s82, s84, 2")
    k.e("s_add_u32 s82, s82, s101")
    k.e("s_add_u32 s82, s82, 512")
    conv.conv2_setup(k, 82)
    conv.conv3_addr(k, 81)
    k.e(f"v_mov_b32 v250, {CNT}")
    conv.conv3_dma(k, 81)
    k.e("s_waitcnt vmcnt(8)")
    conv.conv2_fix(k)
    k.e("s_barrier")
    k.e("s_setprio 1")
    k.e("s_branch L_b_c2")
    k.e("L_free_a:")
    g2_offsets(k)
    srd(k, 44, P_WS, NB_W, W2_OFF)
    k.e("v_lshlrev_b32 v1, 4, v0")
    k.e("v_add_u32 v2, 4096, v1")
    if flag("XLEAD"):
        k.e("v_lshlrev_b32 v30, 7, v0")
        k.e("s_mov_b32 s10, s77")
        for i in range(9):
            k.e(f"buffer_load_dword v{32+i}, v30, s[44:47], s10 offen{SC1}")
            k.e("s_add_u32 s10, s10, 8192")
    if AGG:
        k.e("s_sub_u32 s85, s84, 10")
        k.e("s_cmp_lt_u32 s85, 4")
        k.e("s_cselect_b32 s10, s3, 0")
        k.e("s_cmp_lg_u32 s10, 1")
        k.e("s_cbranch_scc1 L_free_noaw")
        k.e("s_setprio 3")
        k.e("v_lshlrev_b32 v8, 9, v0")
        k.e("s_lshl_b32 s85, s85, 7")
        k.e(f"s_add_u32 s86, s85, {FB}")
        poll(k, "L_agw", 10, 8, 86, 10, 54, sleep=flag("WAGS", 4))
        k.e(f"s_add_u32 s85, s85, {FS + 1280}")
        publish(k, 85, 10)
        k.e("L_free_noaw:")
    k.e("s_cmp_lg_u32 s3, 0")
    k.e("s_cbranch_scc1 L_g2w")
    k.e("s_lshl_b32 s83, s2, 7")
    k.e(f"s_add_u32 s83, s83, {FB}")
    publish(k, 83, 4)
    k.e("s_lshl_b32 s62, s84, 2")
    k.e("s_add_u32 s62, s62, 512")
    watch_addr(k, 16, 62, 62)
    if flag("FEV", 1):
        k.e(watch_pre(20, 16)[0])
        watch(k, "L_fw", 20, 16, 4, lambda: lds_wait(k, "L_fev", 20, 24, 24, 10, sleep=4))
    elif flag("FLATE"):
        k.e(watch_pre(20, 16)[0])
        watch(k, "L_fw", 20, 16, flag("FSL", 4), lambda: [k.e("s_sleep 32") for _ in range(flag("FLATE"))])
    else:
        for x in watch_pre(20, 16): k.e(x)
        watch(k, "L_fw", 20, 16, flag("FSL", 4))
    k.e("s_branch L_g2w")
    ROLE[0] = "a"
    k.e("L_a:")
    k.e("s_setprio 3")
    prep_addr(k)
    k.e("s_waitcnt lgkmcnt(0)")
    prep_loads(k)
    if flag("TLB"):
        k.e("v_mov_b32 v12, 0")
        k.e("s_mov_b64 exec, 1")
        k.e("s_lshl_b32 s10, s8, 2")
        k.e("s_add_u32 s10, s10, s101")
        k.e("s_mul_i32 s10, s10, 20480")
        srd(k, 64, P_OUT, NB_X)
        k.e("buffer_load_dword v232, v12, s[64:67], s10 offen")
        if flag("TLB") > 1:
            srd(k, 64, P_W2, NB_W)
            k.e("s_mul_i32 s10, s2, 10240")
            k.e("buffer_load_dword v233, v12, s[64:67], s10 offen")
            srd(k, 64, P_SK, NB_X)
            k.e("s_lshl_b32 s10, s2, 13")
            k.e("buffer_load_dword v234, v12, s[64:67], s10 offen")
            srd(k, 64, P_WS, 0x1100000)
            k.e(f"s_mov_b32 s10, {UR_OFF + 4096}")
            k.e("buffer_load_dword v235, v12, s[64:67], s10 offen")
        k.e("s_mov_b64 exec, -1")
    if flag("SB", 1): k.e("s_barrier")
    k.e(f"s_setprio {flag('PAL', 0)}")
    flags_srd()
    g2_offsets(k)
    g1_setup(k)
    k.e("s_waitcnt lgkmcnt(0)")
    make_tag(k)
    prep_compute(k)
    if flag("FIXG"):
        srd(k, 12, P_DBG, 256)
        k.e("s_not_b32 s98, s96")
        k.e("v_mov_b32 v240, s98")
        k.e("v_mov_b32 v241, 0")
        k.e("s_cmp_lg_u32 s3, 0")
        k.e("s_cbranch_scc1 L_nog")
        k.e("s_mov_b64 exec, 1")
        k.e("buffer_atomic_umax v240, v241, s[12:15], 0 offen sc1")
        k.e("s_mov_b64 exec, -1")
        k.e("L_nog:")
    g1_phase(k)
    g2_phase(k)
    if flag("FIXT"):
        if flag("FIXG"):
            srd(k, 12, P_DBG, 256)
            k.e("v_mov_b32 v241, 0")
            k.e("buffer_load_dword v240, v241, s[12:15], 0 offen sc1")
            k.e("s_waitcnt vmcnt(0)")
            k.e("v_readfirstlane_b32 s96, v240")
            k.e("s_not_b32 s96, s96")
        k.e("L_fix:")
        k.e("s_memrealtime s[98:99]")
        k.e("s_waitcnt lgkmcnt(0)")
        k.e("s_sub_u32 s98, s98, s96")
        k.e(f"s_cmp_lt_u32 s98, {flag('FIXT')}")
        k.e("s_cbranch_scc1 L_fix")
    stamp(k, 9, 0)
    ms_end(k, "a")
    finish(k, 0)
    k.e("L_end:")
    k.e("s_endpgm")
    return k

if __name__ == "__main__":
    import sys
    hdr = open("recurrent_scan__ssm_conv_h3__dense_activation_relu__prompt.s.ref").read().split("; Override")[0]
    k = kernel()
    out = hdr + f"; @launch grid=(256,1,1) block=(512,1,1) lds={LDS_BYTES}\n"
    out += '.amdgcn_target "amdgcn-amd-amdhsa--gfx950"\n.text\n' + k.body() + '.section .rodata,"a"\n' + k.desc()
    open(sys.argv[1], "w").write(out)
```
